```python
import torch

def _softmax(x, axis=-1):
    return torch.softmax(x, dim=axis)
def _gelu(x):
    return torch.nn.functional.gelu(x, approximate="tanh")
def _silu(x):
    return torch.nn.functional.silu(x)
def _sigmoid(x):
    return torch.sigmoid(x)
def _layernorm(x, axis=-1, eps=1e-5):
    m = x.mean(dim=axis, keepdim=True)
    v = x.var(dim=axis, keepdim=True, unbiased=False)
    return (x - m) / torch.sqrt(v + eps)
def _scatter_add(tgt, idx, src, axis=0):
    return tgt.clone().index_add_(axis, idx, src)
def _segment_sum(src, seg, n):
    out = torch.zeros((n,) + src.shape[1:], dtype=src.dtype)
    return out.index_add_(0, seg, src)
def _pad(x, pw):
    flat = tuple(v for pair in reversed(pw) for v in pair)
    return torch.nn.functional.pad(x, flat)

kernel_name = 'concat_heads__gqa_block_cached__gqa_block_cached__near_ridge'

def setup_inputs():

    _w = (lambda a: (lambda t: t.to(torch.bfloat16) if t.is_floating_point() else t)(torch.as_tensor(a)))
    def _A_setup():
        B, Sq, D = 16, 96, 512
        Hq, Hkv, Sk, Dh = 32, 32, 96, 128
        assert Hq % Hkv == 0, (Hq, Hkv)
        return {
            "x": _w((lambda *s: torch.randn(*s, dtype=torch.bfloat16) * 0.8)(B, Sq, D)),
            "k_cache": _w((lambda *s: torch.randn(*s, dtype=torch.bfloat16) * 0.8)(B, Hkv, Sk, Dh)),
            "v_cache": _w((lambda *s: torch.randn(*s, dtype=torch.bfloat16) * 0.05)(B, Hkv, Sk, Dh)),
            "wq": _w((lambda *s: torch.randn(*s, dtype=torch.bfloat16) * 0.8)(D, Hq * Dh) * (D ** -0.5)),
            "wo": _w((lambda *s: torch.randn(*s, dtype=torch.bfloat16) * 0.05)(Hq * Dh, D) * ((Hq * Dh) ** -0.5)),
        }
    _A_in = _A_setup()

    def _B_setup():
        B, Sq, D = 16, 96, 512
        Hq, Hkv, Sk, Dh = 32, 32, 96, 128
        assert Hq % Hkv == 0, (Hq, Hkv)
        return {
            "x": _w((lambda *s: torch.randn(*s, dtype=torch.bfloat16) * 0.8)(B, Sq, D)),
            "k_cache": _w((lambda *s: torch.randn(*s, dtype=torch.bfloat16) * 0.8)(B, Hkv, Sk, Dh)),
            "v_cache": _w((lambda *s: torch.randn(*s, dtype=torch.bfloat16) * 0.05)(B, Hkv, Sk, Dh)),
            "wq": _w((lambda *s: torch.randn(*s, dtype=torch.bfloat16) * 0.8)(D, Hq * Dh) * (D ** -0.5)),
            "wo": _w((lambda *s: torch.randn(*s, dtype=torch.bfloat16) * 0.05)(Hq * Dh, D) * ((Hq * Dh) ** -0.5)),
        }
    _B_in = _B_setup()

    return {
        "A_x": _A_in["x"],
        "A_k_cache": _A_in["k_cache"],
        "A_v_cache": _A_in["v_cache"],
        "A_wq": _A_in["wq"],
        "A_wo": _A_in["wo"],
        "B_x": _B_in["x"],
        "B_k_cache": _B_in["k_cache"],
        "B_v_cache": _B_in["v_cache"],
        "B_wq": _B_in["wq"],
        "B_wo": _B_in["wo"],
    }

def reference(A_x, A_k_cache, A_v_cache, A_wq, A_wo, B_x, B_k_cache, B_v_cache, B_wq, B_wo):
    def _A_ref(x, k_cache, v_cache, wq, wo):
        B, Sq, D = x.shape
        Hq, Dh = 32, 128
        Hkv = k_cache.shape[1]
        rep = Hq // Hkv
        q = (lambda x, *d: x.permute(*d))((x @ wq).reshape(B, Sq, Hq, Dh), 0, 2, 1, 3)
        k = (lambda x, n, axis: torch.repeat_interleave(x, n, dim=axis))(k_cache, rep, axis=1)
        v = (lambda x, n, axis: torch.repeat_interleave(x, n, dim=axis))(v_cache, rep, axis=1)
        scores = torch.einsum("bhqd,bhkd->bhqk", q, k) * (Dh ** -0.5)
        p = _softmax(scores, axis=-1)
        o = torch.einsum("bhqk,bhkd->bhqd", p, v)
        return (lambda x, *d: x.permute(*d))(o, 0, 2, 1, 3).reshape(B, Sq, Hq * Dh) @ wo

    def _B_ref(x, k_cache, v_cache, wq, wo):
        B, Sq, D = x.shape
        Hq, Dh = 32, 128
        Hkv = k_cache.shape[1]
        rep = Hq // Hkv
        q = (lambda x, *d: x.permute(*d))((x @ wq).reshape(B, Sq, Hq, Dh), 0, 2, 1, 3)
        k = (lambda x, n, axis: torch.repeat_interleave(x, n, dim=axis))(k_cache, rep, axis=1)
        v = (lambda x, n, axis: torch.repeat_interleave(x, n, dim=axis))(v_cache, rep, axis=1)
        scores = torch.einsum("bhqd,bhkd->bhqk", q, k) * (Dh ** -0.5)
        p = _softmax(scores, axis=-1)
        o = torch.einsum("bhqk,bhkd->bhqd", p, v)
        return (lambda x, *d: x.permute(*d))(o, 0, 2, 1, 3).reshape(B, Sq, Hq * Dh) @ wo

    a = _A_ref(A_x, A_k_cache, A_v_cache, A_wq, A_wo)
    b = _B_ref(B_x, B_k_cache, B_v_cache, B_wq, B_wo)
    return torch.concatenate([a, b], axis=-1)
```

```python
def vr(i, n=1):
    return "v%d" % i if n == 1 else "v[%d:%d]" % (i, i + n - 1)


def sr(i, n=1):
    return "s%d" % i if n == 1 else "s[%d:%d]" % (i, i + n - 1)


class Gen:
    def __init__(self):
        self.lines = []
        self.clock = 0
        self.vmq = []
        self.lgq = []
        self.valu_w = {}
        self.trans_w = {}
        self.mfma_w = {}
        self.mfma_c = {}
        self.store_r = {}
        self.sgpr_valu_w = {}
        self.m0_w = -100

    def raw(self, text):
        self.lines.append("    " + text)

    def comment(self, text):
        self.lines.append("    ; " + text)

    def label(self, name):
        self.lines.append(name + ":")

    def _tick(self, n=1):
        self.clock += n

    def nop(self, n):
        while n > 0:
            k = min(n, 16)
            self.raw("s_nop %d" % (k - 1))
            self._tick(k)
            n -= k

    def _need(self, when, dist):
        if when is None:
            return 0
        have = self.clock - when - 1
        return max(0, dist - have)

    def _pad(self, n):
        if n > 0:
            self.nop(n)

    def s(self, text, m0=False):
        self.raw(text)
        if m0:
            self.m0_w = self.clock
        self._tick()

    def waitcnt(self, vm=None, lg=None):
        parts = []
        if vm is not None:
            parts.append("vmcnt(%d)" % vm)
        if lg is not None:
            parts.append("lgkmcnt(%d)" % lg)
        self.raw("s_waitcnt " + " ".join(parts))
        self._tick()

    def barrier(self):
        self.raw("s_barrier")
        self._tick()

    def wait_vm(self, tags):
        if isinstance(tags, str):
            tags = [tags]
        last = -1
        for i, t in enumerate(self.vmq):
            if t in tags:
                last = i
        if last < 0:
            return
        n = len(self.vmq) - 1 - last
        assert n <= 63
        self.waitcnt(vm=n)
        self.vmq = self.vmq[last + 1:]

    def wait_lg(self, tags):
        if isinstance(tags, str):
            tags = [tags]
        last = -1
        for i, t in enumerate(self.lgq):
            if t in tags:
                last = i
        if last < 0:
            return
        n = len(self.lgq) - 1 - last
        if n > 15:
            n = 15
            last = len(self.lgq) - 1 - n
        self.waitcnt(lg=n)
        self.lgq = self.lgq[last + 1:]

    def wait_all(self):
        self.waitcnt(vm=0, lg=0)
        self.vmq = []
        self.lgq = []

    def valu(self, text, dst=(), src=(), trans=False, sdst=(), permlane=False, readlane=False):
        pad = 0
        for r in list(src) + list(dst):
            w = self.mfma_w.get(r)
            if w is not None:
                pad = max(pad, self._need(w[0], 8))
        for r in dst:
            pad = max(pad, self._need(self.mfma_c.get(r), 3))
            pad = max(pad, self._need(self.store_r.get(r), 2))
        for r in src:
            if not trans:
                pad = max(pad, self._need(self.trans_w.get(r), 1))
            if permlane:
                pad = max(pad, self._need(self.valu_w.get(r), 2))
            if readlane:
                pad = max(pad, self._need(self.valu_w.get(r), 1))
        if permlane:
            for r in dst:
                pad = max(pad, self._need(self.valu_w.get(r), 2))
        self._pad(pad)
        self.raw(text)
        for r in dst:
            self.valu_w[r] = self.clock
            if trans:
                self.trans_w[r] = self.clock
            else:
                self.trans_w.pop(r, None)
            self.mfma_w.pop(r, None)
        for r in sdst:
            self.sgpr_valu_w[r] = self.clock
        self._tick()

    def mfma(self, d, a, b, c):
        pad = 0
        for r in list(range(a, a + 4)) + list(range(b, b + 4)):
            pad = max(pad, self._need(self.valu_w.get(r), 2))
            w = self.mfma_w.get(r)
            if w is not None:
                pad = max(pad, self._need(w[0], 8))
        if c is not None:
            for r in range(c, c + 4):
                pad = max(pad, self._need(self.valu_w.get(r), 2))
                w = self.mfma_w.get(r)
                if w is not None and not (w[1] == c and w[2] == 4):
                    pad = max(pad, self._need(w[0], 6))
        for r in range(d, d + 4):
            w = self.mfma_w.get(r)
            if w is not None and not (w[1] == d and w[2] == 4):
                pad = max(pad, self._need(w[0], 8))
            pad = max(pad, self._need(self.store_r.get(r), 2))
        self._pad(pad)
        cs = "0" if c is None else vr(c, 4)
        self.raw("v_mfma_f32_16x16x32_bf16 %s, %s, %s, %s" % (vr(d, 4), vr(a, 4), vr(b, 4), cs))
        for r in range(d, d + 4):
            self.mfma_w[r] = (self.clock, d, 4)
            self.valu_w.pop(r, None)
            self.trans_w.pop(r, None)
        if c is not None:
            for r in range(c, c + 4):
                self.mfma_c[r] = self.clock
        self._tick()

    def _mem_pad(self, reads=(), writes=(), sreads=()):
        pad = 0
        for r in list(reads) + list(writes):
            w = self.mfma_w.get(r)
            if w is not None:
                pad = max(pad, self._need(w[0], 8))
        for r in writes:
            pad = max(pad, self._need(self.store_r.get(r), 1))
            pad = max(pad, self._need(self.mfma_c.get(r), 3))
        for r in sreads:
            pad = max(pad, self._need(self.sgpr_valu_w.get(r), 5))
        return pad

    def vload(self, text, tag, dst=(), addr=(), sreads=(), lds=False):
        pad = self._mem_pad(addr, dst, sreads)
        if lds:
            pad = max(pad, self._need(self.m0_w, 1))
        self._pad(pad)
        self.raw(text)
        for r in dst:
            self.valu_w.pop(r, None)
            self.trans_w.pop(r, None)
            self.mfma_w.pop(r, None)
        self.vmq.append(tag)
        self._tick()

    def vstore(self, text, tag, data=(), addr=(), sreads=()):
        pad = self._mem_pad(list(data) + list(addr), (), sreads)
        self._pad(pad)
        self.raw(text)
        if len(data) >= 3:
            for r in data:
                self.store_r[r] = self.clock
        self.vmq.append(tag)
        self._tick()

    def dsread(self, text, tag, dst=(), addr=()):
        pad = self._mem_pad(addr, dst)
        self._pad(pad)
        self.raw(text)
        for r in dst:
            self.valu_w.pop(r, None)
            self.trans_w.pop(r, None)
            self.mfma_w.pop(r, None)
        self.lgq.append(tag)
        self._tick()

    def text(self):
        return "\n".join(self.lines) + "\n"
```

```python
import sys, os
sys.path.insert(0, os.path.dirname(os.path.abspath(__file__)))
from asmgen import Gen, vr, sr

NAME = "concat_heads__gqa_block_cached__gqa_block_cached__near_ridge"

R_ACC = 0
R_A = 96
R_B = 128
R_K = 164
V_A = 236
V_X = 244
V_W0 = 245
V_W1 = 246
V_VD0 = 247
V_VD1 = 248
V_K = 249
V_O = 250
V_DELTA = 251
V_T = 252

O_BLOCK_BYTES = 1536 * 4096 * 2
PART_BASE = 32 * 1024 * 1024
PART_SLAB = 2 * 1536 * 512 * 4
WS_BYTES = 268435456

S_WAVE = 3
SRD_X = 20
SRD_K = 24
SRD_V = 28
SRD_W = 32
SRD_WS = 36
S_M0W = 46
S_TMP = 47
S_WOFF = 48
S_M0V = 49
S_SC = 50
S_L2E = 52
S_TMP2 = 54


def acc(t, u):
    return R_ACC + (t * 3 + u) * 4


def bfrag(s, u):
    return R_B + ((s % 3) * 3 + u) * 4


def rng(a, n):
    return list(range(a, a + n))


def make_srd(g, srd, ptr, nbytes):
    g.s("s_mov_b32 %s, %s" % (sr(srd), sr(ptr)))
    g.s("s_and_b32 %s, %s, 0xffff" % (sr(srd + 1), sr(ptr + 1)))
    g.s("s_mov_b32 %s, %d" % (sr(srd + 2), nbytes))
    g.s("s_mov_b32 %s, 0x00020000" % sr(srd + 3))


def vop(g, text, dst, src=()):
    g.valu(text, dst=[dst] if isinstance(dst, int) else dst, src=src)


def tr_reads(g, s, t, korder, tagp="A"):
    buf = (s % 4) * 16384
    jstride = 2048 if korder == "natural" else 8192
    for j in range(2):
        d = R_A + t * 4 + j * 2
        g.dsread("ds_read_b64_tr_b16 %s, %s offset:%d" % (vr(d, 2), vr(V_A + t), buf + j * jstride),
                 "%s%d_%d" % (tagp, s, t), dst=rng(d, 2), addr=[V_A + t])


def gemm(g, nsteps, korder, issue_w, issue_b, extra):
    g.wait_vm(["W0", "W1"])
    g.barrier()
    for t in range(8):
        tr_reads(g, 0, t, korder)
    for s in range(nsteps):
        g.comment("---- gemm step %d" % s)
        if s > 0:
            g.wait_vm("W%d" % (s + 1))
            g.barrier()
        if s + 3 < nsteps:
            issue_w(s + 3)
        for t in range(8):
            g.wait_lg("A%d_%d" % (s, t))
            if t == 0:
                g.wait_vm("B%d" % s)
            for u in range(3):
                g.mfma(acc(t, u), R_A + t * 4, bfrag(s, u), None if s == 0 else acc(t, u))
            if s + 1 < nsteps:
                tr_reads(g, s + 1, t, korder)
        if s + 3 < nsteps:
            issue_b(s + 3)
        extra(s)


def pack_pair(g, lo, hi):
    g.valu("v_cvt_pk_bf16_f32 %s, %s, %s" % (vr(lo), vr(lo), vr(lo + 1)), dst=[lo], src=[lo, lo + 1])
    g.valu("v_cvt_pk_bf16_f32 %s, %s, %s" % (vr(lo + 1), vr(lo + 2), vr(lo + 3)), dst=[lo + 1], src=[lo + 2, lo + 3])
    g.valu("v_cvt_pk_bf16_f32 %s, %s, %s" % (vr(lo + 2), vr(hi), vr(hi + 1)), dst=[lo + 2], src=[hi, hi + 1])
    g.valu("v_cvt_pk_bf16_f32 %s, %s, %s" % (vr(lo + 3), vr(hi + 2), vr(hi + 3)), dst=[lo + 3], src=[hi + 2, hi + 3])


def issue_w_factory(g, rowstride_chunk):
    def issue_w(c):
        g.s("s_mov_b32 %s, %d" % (sr(S_WOFF), c * rowstride_chunk))
        for i in range(2):
            g.s("s_add_u32 m0, %s, %d" % (sr(S_M0W), (c % 4) * 16384 + i * 1024), m0=True)
            g.vload("buffer_load_dwordx4 %s, %s, %s offen lds" % (vr(V_W0 + i), sr(SRD_W, 4), sr(S_WOFF)),
                    "W%d" % c, addr=[V_W0 + i], lds=True)
    return issue_w


def lane_setup(g):
    L, Q, G, RP, C, F = 1, 2, 3, 4, 5, 6
    vop(g, "v_lshrrev_b32 v7, 6, v0", 7, [0])
    vop(g, "v_and_b32 v1, 63, v0", L, [0])
    g.valu("v_readfirstlane_b32 %s, v7" % sr(S_WAVE), src=[7], readlane=True, sdst=[S_WAVE])
    vop(g, "v_and_b32 v2, 15, v1", Q, [L])
    vop(g, "v_lshrrev_b32 v3, 4, v1", G, [L])
    vop(g, "v_bfe_u32 v4, v1, 2, 2", RP, [L])
    vop(g, "v_and_b32 v5, 3, v1", C, [L])
    vop(g, "v_and_b32 v6, 1, v3", F, [G])
    vop(g, "v_lshlrev_b32 v6, 2, v6", F, [F])
    vop(g, "v_or_b32 v6, v6, v4", F, [F, RP])
    g.nop(4)
    return dict(L=L, Q=Q, G=G, RP=RP, C=C, F=F)


def tr_addr_setup(g, T, korder, s_colhalf):
    sh = 3 if korder == "natural" else 2
    vop(g, "v_lshlrev_b32 v8, %d, v3" % sh, 8, [T['G']])
    vop(g, "v_add_u32 v8, v8, v4", 8, [8, T['RP']])
    vop(g, "v_lshlrev_b32 v8, 9, v8", 8, [8])
    vop(g, "v_lshl_add_u32 v8, v5, 3, v8", 8, [8, T['C']])
    g.s("s_lshl_b32 %s, %s, 8" % (sr(S_TMP), sr(s_colhalf)))
    vop(g, "v_add_u32 v8, %s, v8" % sr(S_TMP), 8, [8])
    for t in range(8):
        vop(g, "v_xor_b32 v9, %d, v6" % t, 9, [T['F']])
        vop(g, "v_lshl_add_u32 %s, v9, 5, v8" % vr(V_A + t), V_A + t, [9, 8])


def w_dma_setup(g, T, korder, rowbytes, s_coloff_bytes):
    vop(g, "v_lshrrev_b32 v10, 5, v1", 10, [T['L']])
    vop(g, "v_and_b32 v11, 31, v1", 11, [T['L']])
    if korder == "natural":
        g.s("s_lshr_b32 %s, %s, 1" % (sr(S_TMP), sr(S_WAVE)))
        g.s("s_and_b32 %s, %s, 1" % (sr(S_TMP), sr(S_TMP)))
    else:
        g.s("s_and_b32 %s, %s, 1" % (sr(S_TMP), sr(S_WAVE)))
    g.s("s_lshl_b32 %s, %s, 2" % (sr(S_TMP), sr(S_TMP)))
    g.s("s_lshl_b32 %s, %s, 2" % (sr(S_TMP2), sr(S_WAVE)))
    for i in range(2):
        vop(g, "v_add_u32 v12, %d, v10" % (2 * i), 12, [10])
        vop(g, "v_or_b32 v13, %s, v12" % sr(S_TMP), 13, [12])
        vop(g, "v_lshlrev_b32 v13, 1, v13", 13, [13])
        vop(g, "v_xor_b32 v13, v13, v11", 13, [13, 11])
        vop(g, "v_lshlrev_b32 v13, 4, v13", 13, [13])
        vop(g, "v_add_u32 v12, %s, v12" % sr(S_TMP2), 12, [12])
        g.s("s_mov_b32 s57, %d" % rowbytes)
        vop(g, "v_mul_lo_u32 v12, v12, s57", 12, [12])
        vop(g, "v_add_u32 v12, v12, v13", 12, [12, 13])
        vop(g, "v_add_u32 %s, %s, v12" % (vr(V_W0 + i), sr(s_coloff_bytes)), V_W0 + i, [12])
    g.s("s_lshl_b32 %s, %s, 11" % (sr(S_M0W), sr(S_WAVE)))


def xlane_reduce(g, m, tmp, op):
    for sw in ("v_permlane32_swap_b32", "v_permlane16_swap_b32"):
        vop(g, "v_mov_b32 %s, %s" % (vr(tmp), vr(m)), tmp, [m])
        g.valu("%s %s, %s" % (sw, vr(m), vr(tmp)), dst=[m, tmp], src=[m, tmp], permlane=True)
        vop(g, "%s %s, %s, %s" % (op, vr(m), vr(m), vr(tmp)), m, [m, tmp])


def gen_attn():
    g = Gen()
    g.s("s_cmp_ge_u32 s2, 256")
    g.s("s_cbranch_scc1 attn_end")
    T = lane_setup(g)
    g.s("s_and_b32 s4, s2, 7")
    g.s("s_lshr_b32 s5, s2, 3")
    g.s("s_lshr_b32 s6, s4, 2")
    g.s("s_and_b32 s7, s4, 3")
    g.s("s_lshl_b32 s7, s7, 2")
    g.s("s_lshr_b32 s16, s5, 3")
    g.s("s_add_u32 s7, s7, s16")
    g.s("s_and_b32 s5, s5, 7")
    g.s("s_mul_i32 s16, s6, 40")
    g.s("s_add_u32 s18, s0, s16")
    g.s("s_addc_u32 s19, s1, 0")
    g.s("s_load_dwordx8 s[8:15], s[18:19], 0")
    g.s("s_load_dwordx2 s[16:17], s[0:1], 96")
    g.s("s_lshr_b32 s40, s3, 2")
    g.s("s_lshr_b32 s41, s3, 1")
    g.s("s_and_b32 s41, s41, 1")
    g.s("s_and_b32 s42, s3, 1")
    g.s("s_lshl_b32 s43, s7, 1")
    g.s("s_add_u32 s43, s43, s40")
    g.s("s_lshl_b32 s44, s5, 1")
    g.s("s_add_u32 s44, s44, s41")
    g.s("s_lshl_b32 s45, s44, 5")
    g.s("s_add_u32 s45, s45, s43")
    g.s("s_mul_i32 s45, s45, 24576")
    g.s("s_mov_b32 %s, 0x3db504f3" % sr(S_SC))
    g.s("s_mov_b32 %s, 0x3db504f3" % sr(S_SC + 1))
    g.s("s_mov_b32 %s, 0x3fb8aa3b" % sr(S_L2E))
    g.s("s_mov_b32 %s, 0x3fb8aa3b" % sr(S_L2E + 1))
    g.s("s_mul_i32 s55, s44, 98304")
    g.s("s_mul_i32 s56, s42, 49152")
    g.s("s_add_u32 s55, s55, s56")
    vop(g, "v_lshlrev_b32 v8, 10, v2", 8, [2])
    vop(g, "v_lshl_add_u32 v8, v3, 4, v8", 8, [3, 8])
    vop(g, "v_add_u32 %s, s55, v8" % vr(V_X), V_X, [8])
    vop(g, "v_lshlrev_b32 v8, 8, v2", 8, [2])
    vop(g, "v_lshl_add_u32 v8, v3, 3, v8", 8, [3, 8])
    vop(g, "v_add_u32 %s, s45, v8" % vr(V_K), V_K, [8])
    g.s("s_mul_i32 s55, s42, 12288")
    g.s("s_add_u32 s55, s55, s45")
    for par in range(2):
        vop(g, "v_add_u32 v8, %d, v3" % (4 * par), 8, [3])
        vop(g, "v_lshlrev_b32 v8, 1, v8", 8, [8])
        vop(g, "v_xor_b32 v8, v8, v2", 8, [8, 2])
        vop(g, "v_lshlrev_b32 v8, 4, v8", 8, [8])
        vop(g, "v_lshl_add_u32 v8, v3, 8, v8", 8, [3, 8])
        vop(g, "v_add_u32 %s, s55, v8" % vr(V_VD0 + par), V_VD0 + par, [8])
    g.s("s_lshl_b32 s55, s7, 9")
    w_dma_setup(g, T, "natural", 8192, 55)
    tr_addr_setup(g, T, "natural", 40)
    g.s("s_lshr_b32 s55, s3, 1")
    g.s("s_mul_i32 s55, s55, 24576")
    g.s("s_add_u32 s55, s55, 65536")
    vop(g, "v_lshlrev_b32 v9, 2, v3", 9, [3])
    vop(g, "v_add_u32 v9, v9, v4", 9, [9, 4])
    vop(g, "v_lshlrev_b32 v9, 8, v9", 9, [9])
    vop(g, "v_lshl_add_u32 v9, v5, 3, v9", 9, [9, 5])
    vop(g, "v_add_u32 v9, s55, v9", 9, [9])
    vop(g, "v_sub_u32 %s, v9, v8" % vr(V_DELTA), V_DELTA, [9, 8])
    g.s("s_mul_i32 s56, s42, 12288")
    g.s("s_add_u32 %s, s55, s56" % sr(S_M0V))
    g.s("s_mul_i32 s55, s44, 6")
    g.s("s_mul_i32 s56, s42, 3")
    g.s("s_add_u32 s55, s55, s56")
    g.s("s_lshl_b32 s55, s55, 7")
    g.s("s_lshl_b32 s56, s43, 2")
    g.s("s_add_u32 s55, s55, s56")
    g.s("s_lshl_b32 s55, s55, 10")
    g.s("s_mul_i32 s56, s6, %d" % O_BLOCK_BYTES)
    g.s("s_add_u32 s55, s55, s56")
    vop(g, "v_lshlrev_b32 v8, 4, v1", 8, [1])
    vop(g, "v_add_u32 %s, s55, v8" % vr(V_O), V_O, [8])
    g.waitcnt(lg=0)
    make_srd(g, SRD_X, 8, 1572864)
    make_srd(g, SRD_K, 10, 12582912)
    make_srd(g, SRD_V, 12, 12582912)
    make_srd(g, SRD_W, 14, 4194304)
    make_srd(g, SRD_WS, 16, WS_BYTES)

    issue_w = issue_w_factory(g, 32 * 8192)

    def issue_b(s):
        for u in range(3):
            g.s("s_mov_b32 %s, %d" % (sr(S_TMP), u * 16384))
            d = bfrag(s, u)
            g.vload("buffer_load_dwordx4 %s, %s, %s, %s offen offset:%d" % (vr(d, 4), vr(V_X), sr(SRD_X, 4), sr(S_TMP), s * 64),
                    "B%d" % s, dst=rng(d, 4), addr=[V_X])

    def kfrag(p, kt):
        if p < 3:
            return R_K + (p * 6 + kt) * 4
        return R_A + kt * 4

    def issue_k(p, kt):
        g.s("s_mov_b32 %s, %d" % (sr(S_TMP), kt * 4096))
        for j in range(2):
            d = kfrag(p, kt) + 2 * j
            g.vload("buffer_load_dwordx2 %s, %s, %s, %s offen offset:%d" % (vr(d, 2), vr(V_K), sr(SRD_K, 4), sr(S_TMP), p * 64 + j * 32),
                    "K%d_%d" % (p, kt), dst=rng(d, 2), addr=[V_K])

    def issue_v(i):
        g.s("s_mov_b32 %s, %d" % (sr(S_TMP), i * 1024))
        g.s("s_add_u32 m0, %s, %d" % (sr(S_M0V), i * 1024), m0=True)
        g.vload("buffer_load_dwordx4 %s, %s, %s offen lds" % (vr(V_VD0 + (i & 1)), sr(SRD_V, 4), sr(S_TMP)),
                "V", addr=[V_VD0 + (i & 1)], lds=True)

    klist = [(p, kt) for p in range(3) for kt in range(6)]

    def extra(s):
        if s < 12:
            issue_v(s)
        if 2 <= s < 11:
            for p, kt in klist[(s - 2) * 2:(s - 2) * 2 + 2]:
                issue_k(p, kt)

    for c in range(3):
        issue_w(c)
    for s in range(3):
        issue_b(s)
    gemm(g, 16, "natural", issue_w, issue_b, extra)

    for kt in range(6):
        issue_k(3, kt)
    for p in range(4):
        for u in range(3):
            pack_pair(g, acc(2 * p, u), acc(2 * p + 1, u))

    def sacc(kt, u):
        i = kt * 3 + u
        if i < 12:
            return acc(1 + 2 * (i // 3), i % 3)
        return R_B + (i - 12) * 4

    for p in range(4):
        for kt in range(6):
            g.wait_vm("K%d_%d" % (p, kt))
            for u in range(3):
                g.mfma(sacc(kt, u), kfrag(p, kt), acc(2 * p, u), None if p == 0 else sacc(kt, u))

    g.wait_vm("V")
    g.barrier()
    for t in range(8):
        vop(g, "v_add_u32 %s, %s, %s" % (vr(V_A + t), vr(V_A + t), vr(V_DELTA)), V_A + t, [V_A + t, V_DELTA])

    def v_reads(pp, t):
        for j in range(2):
            d = R_A + t * 4 + j * 2
            g.dsread("ds_read_b64_tr_b16 %s, %s offset:%d" % (vr(d, 2), vr(V_A + t), pp * 8192 + j * 4096),
                     "VT%d_%d" % (pp, t), dst=rng(d, 2), addr=[V_A + t])

    for t in range(8):
        v_reads(0, t)

    def pfrag(pp, u):
        return R_K + (pp * 3 + u) * 4
    TMP = R_K + 36
    for u in range(3):
        a, b = TMP, TMP + 1
        for kt in range(6):
            r = sacc(kt, u)
            for rep in range(2):
                g.valu("v_cvt_pk_bf16_f32 %s, %s, %s" % (vr(a), vr(r), vr(r + 1)), dst=[a], src=[r, r + 1])
                g.valu("v_cvt_pk_bf16_f32 %s, %s, %s" % (vr(b), vr(r + 2), vr(r + 3)), dst=[b], src=[r + 2, r + 3])
                vop(g, "v_lshlrev_b32 %s, 16, %s" % (vr(r), vr(a)), r, [a])
                vop(g, "v_and_b32 %s, 0xffff0000, %s" % (vr(r + 1), vr(a)), r + 1, [a])
                vop(g, "v_lshlrev_b32 %s, 16, %s" % (vr(r + 2), vr(b)), r + 2, [b])
                vop(g, "v_and_b32 %s, 0xffff0000, %s" % (vr(r + 3), vr(b)), r + 3, [b])
                if rep == 0:
                    g.valu("v_pk_mul_f32 %s, %s, %s" % (vr(r, 2), vr(r, 2), sr(S_SC, 2)), dst=[r, r + 1], src=[r, r + 1])
                    g.valu("v_pk_mul_f32 %s, %s, %s" % (vr(r + 2, 2), vr(r + 2, 2), sr(S_SC, 2)), dst=[r + 2, r + 3], src=[r + 2, r + 3])
        vals = [sacc(kt, u) + r for kt in range(6) for r in range(4)]
        m = TMP + 2
        vop(g, "v_max3_f32 %s, %s, %s, %s" % (vr(m), vr(vals[0]), vr(vals[1]), vr(vals[2])), m, vals[0:3])
        i = 3
        while i < 24:
            if i + 1 < 24:
                vop(g, "v_max3_f32 %s, %s, %s, %s" % (vr(m), vr(m), vr(vals[i]), vr(vals[i + 1])), m, [m, vals[i], vals[i + 1]])
                i += 2
            else:
                vop(g, "v_max_f32 %s, %s, %s" % (vr(m), vr(m), vr(vals[i])), m, [m, vals[i]])
                i += 1
        xlane_reduce(g, m, TMP + 3, "v_max_f32")
        for v in vals:
            vop(g, "v_sub_f32 %s, %s, %s" % (vr(v), vr(v), vr(m)), v, [v, m])
        for k in range(0, 24, 2):
            v = vals[k]
            g.valu("v_pk_mul_f32 %s, %s, %s" % (vr(v, 2), vr(v, 2), sr(S_L2E, 2)), dst=[v, v + 1], src=[v, v + 1])
        for v in vals:
            g.valu("v_exp_f32 %s, %s" % (vr(v), vr(v)), dst=[v], src=[v], trans=True)
        sm = TMP + 4
        g.valu("v_pk_add_f32 %s, %s, %s" % (vr(sm, 2), vr(vals[0], 2), vr(vals[2], 2)), dst=[sm, sm + 1], src=vals[0:4])
        for k in range(4, 24, 2):
            g.valu("v_pk_add_f32 %s, %s, %s" % (vr(sm, 2), vr(sm, 2), vr(vals[k], 2)), dst=[sm, sm + 1], src=[sm, sm + 1, vals[k], vals[k] + 1])
        vop(g, "v_add_f32 %s, %s, %s" % (vr(sm), vr(sm), vr(sm + 1)), sm, [sm, sm + 1])
        xlane_reduce(g, sm, TMP + 3, "v_add_f32")
        g.valu("v_rcp_f32 %s, %s" % (vr(sm), vr(sm)), dst=[sm], src=[sm], trans=True)
        vop(g, "v_mov_b32 %s, %s" % (vr(sm + 1), vr(sm)), sm + 1, [sm])
        for k in range(0, 24, 2):
            v = vals[k]
            g.valu("v_pk_mul_f32 %s, %s, %s" % (vr(v, 2), vr(v, 2), vr(sm, 2)), dst=[v, v + 1], src=[v, v + 1, sm, sm + 1])
        for pp in range(3):
            d = pfrag(pp, u)
            lo, hi = sacc(2 * pp, u), sacc(2 * pp + 1, u)
            g.valu("v_cvt_pk_bf16_f32 %s, %s, %s" % (vr(d), vr(lo), vr(lo + 1)), dst=[d], src=[lo, lo + 1])
            g.valu("v_cvt_pk_bf16_f32 %s, %s, %s" % (vr(d + 1), vr(lo + 2), vr(lo + 3)), dst=[d + 1], src=[lo + 2, lo + 3])
            g.valu("v_cvt_pk_bf16_f32 %s, %s, %s" % (vr(d + 2), vr(hi), vr(hi + 1)), dst=[d + 2], src=[hi, hi + 1])
            g.valu("v_cvt_pk_bf16_f32 %s, %s, %s" % (vr(d + 3), vr(hi + 2), vr(hi + 3)), dst=[d + 3], src=[hi + 2, hi + 3])

    for pp in range(3):
        for t in range(8):
            g.wait_lg("VT%d_%d" % (pp, t))
            for u in range(3):
                g.mfma(acc(t, u), R_A + t * 4, pfrag(pp, u), None if pp == 0 else acc(t, u))
            if pp < 2:
                v_reads(pp + 1, t)

    for p in range(4):
        for u in range(3):
            pack_pair(g, acc(2 * p, u), acc(2 * p + 1, u))
            g.s("s_mov_b32 %s, %d" % (sr(S_TMP), u * 131072))
            d = acc(2 * p, u)
            g.vstore("buffer_store_dwordx4 %s, %s, %s, %s offen offset:%d" % (vr(d, 4), vr(V_O), sr(SRD_WS, 4), sr(S_TMP), p * 1024),
                     "ST", data=rng(d, 4), addr=[V_O])
    g.label("attn_end")
    g.s("s_endpgm")
    return g.text()


def gen_oproj():
    g = Gen()
    g.s("s_cmp_ge_u32 s2, 256")
    g.s("s_cbranch_scc1 oproj_end")
    T = lane_setup(g)
    g.s("s_and_b32 s4, s2, 7")
    g.s("s_lshr_b32 s5, s2, 3")
    g.s("s_lshr_b32 s6, s4, 2")
    g.s("s_lshr_b32 s7, s4, 1")
    g.s("s_and_b32 s7, s7, 1")
    g.s("s_and_b32 s43, s4, 1")
    g.s("s_lshl_b32 s43, s43, 2")
    g.s("s_lshr_b32 s16, s5, 3")
    g.s("s_add_u32 s43, s43, s16")
    g.s("s_and_b32 s5, s5, 7")
    g.s("s_mul_i32 s16, s6, 40")
    g.s("s_add_u32 s18, s0, s16")
    g.s("s_addc_u32 s19, s1, 0")
    g.s("s_load_dwordx2 s[14:15], s[18:19], 32")
    g.s("s_load_dwordx2 s[16:17], s[0:1], 96")
    g.s("s_lshr_b32 s40, s3, 2")
    g.s("s_and_b32 s41, s3, 3")
    g.s("s_mul_i32 s55, s5, 12")
    g.s("s_mul_i32 s56, s41, 3")
    g.s("s_add_u32 s55, s55, s56")
    g.s("s_lshl_b32 s55, s55, 7")
    g.s("s_lshl_b32 s56, s43, 4")
    g.s("s_add_u32 s55, s55, s56")
    g.s("s_lshl_b32 s55, s55, 10")
    g.s("s_mul_i32 s56, s6, %d" % O_BLOCK_BYTES)
    g.s("s_add_u32 s55, s55, s56")
    vop(g, "v_lshlrev_b32 v8, 4, v1", 8, [1])
    vop(g, "v_add_u32 %s, s55, v8" % vr(V_X), V_X, [8])
    g.s("s_lshl_b32 s55, s7, 9")
    g.s("s_lshl_b32 s56, s43, 19")
    g.s("s_add_u32 s55, s55, s56")
    w_dma_setup(g, T, "split", 1024, 55)
    tr_addr_setup(g, T, "split", 40)
    g.s("s_lshl_b32 s55, s43, 1")
    g.s("s_add_u32 s55, s55, s6")
    g.s("s_mul_i32 s55, s55, 1536")
    g.s("s_mul_i32 s56, s5, 192")
    g.s("s_add_u32 s55, s55, s56")
    g.s("s_mul_i32 s56, s41, 48")
    g.s("s_add_u32 s55, s55, s56")
    g.s("s_lshl_b32 s55, s55, 9")
    g.s("s_lshl_b32 s56, s7, 8")
    g.s("s_add_u32 s55, s55, s56")
    g.s("s_lshl_b32 s56, s40, 7")
    g.s("s_add_u32 s55, s55, s56")
    g.s("s_lshl_b32 s55, s55, 2")
    g.s("s_add_u32 s55, s55, %d" % PART_BASE)
    vop(g, "v_lshlrev_b32 v8, 11, v2", 8, [2])
    vop(g, "v_lshl_add_u32 v8, v3, 4, v8", 8, [3, 8])
    vop(g, "v_add_u32 %s, s55, v8" % vr(V_O), V_O, [8])
    g.waitcnt(lg=0)
    make_srd(g, SRD_W, 14, 4194304)
    make_srd(g, SRD_WS, 16, WS_BYTES)

    issue_w = issue_w_factory(g, 32 * 1024)

    def issue_b(s):
        for u in range(3):
            g.s("s_mov_b32 %s, %d" % (sr(S_TMP), u * 131072 + (s >> 2) * 4096))
            d = bfrag(s, u)
            g.vload("buffer_load_dwordx4 %s, %s, %s, %s offen offset:%d" % (vr(d, 4), vr(V_X), sr(SRD_WS, 4), sr(S_TMP), (s & 3) * 1024),
                    "B%d" % s, dst=rng(d, 4), addr=[V_X])

    for c in range(3):
        issue_w(c)
    for s in range(3):
        issue_b(s)
    gemm(g, 16, "split", issue_w, issue_b, lambda s: None)
    for u in range(3):
        g.s("s_mov_b32 %s, %d" % (sr(S_TMP), u * 32768))
        for t in range(8):
            d = acc(t, u)
            g.vstore("buffer_store_dwordx4 %s, %s, %s, %s offen offset:%d" % (vr(d, 4), vr(V_O), sr(SRD_WS, 4), sr(S_TMP), t * 64),
                     "ST", data=rng(d, 4), addr=[V_O])
    g.label("oproj_end")
    g.s("s_endpgm")
    return g.text()


def gen_reduce():
    g = Gen()
    g.s("s_cmp_ge_u32 s2, 768")
    g.s("s_cbranch_scc1 reduce_end")
    g.s("s_load_dwordx2 s[4:5], s[0:1], 80")
    g.s("s_load_dwordx2 s[6:7], s[0:1], 96")
    g.s("s_lshl_b32 s3, s2, 13")
    g.s("s_add_u32 s3, s3, %d" % PART_BASE)
    vop(g, "v_lshlrev_b32 v1, 5, v0", 1, [0])
    vop(g, "v_add_u32 v1, s3, v1", 1, [1])
    g.s("s_cmp_ge_u32 s2, 384")
    g.s("s_cselect_b32 s16, 1, 0")
    g.s("s_mul_i32 s17, s16, 384")
    g.s("s_sub_u32 s17, s2, s17")
    g.s("s_lshl_b32 s17, s17, 13")
    g.s("s_lshl_b32 s16, s16, 10")
    g.s("s_add_u32 s17, s17, s16")
    vop(g, "v_lshrrev_b32 v2, 6, v0", 2, [0])
    vop(g, "v_lshlrev_b32 v2, 11, v2", 2, [2])
    vop(g, "v_and_b32 v3, 63, v0", 3, [0])
    vop(g, "v_lshl_add_u32 v2, v3, 4, v2", 2, [2, 3])
    vop(g, "v_add_u32 v2, s17, v2", 2, [2])
    g.waitcnt(lg=0)
    make_srd(g, 8, 4, 16 * 96 * 1024 * 2)
    make_srd(g, 12, 6, WS_BYTES)
    for sk in range(8):
        g.s("s_mov_b32 s18, %d" % (sk * PART_SLAB))
        for h in range(2):
            d = 8 + sk * 8 + h * 4
            g.vload("buffer_load_dwordx4 %s, v1, s[12:15], s18 offen offset:%d" % (vr(d, 4), h * 16), "L%d" % sk,
                    dst=rng(d, 4), addr=[1])
    for sk in range(1, 8):
        g.wait_vm("L%d" % sk)
        for h in range(4):
            d = 8 + h * 2
            s_ = 8 + sk * 8 + h * 2
            g.valu("v_pk_add_f32 %s, %s, %s" % (vr(d, 2), vr(d, 2), vr(s_, 2)), dst=[d, d + 1], src=[d, d + 1, s_, s_ + 1])
    for h in range(4):
        g.valu("v_cvt_pk_bf16_f32 %s, %s, %s" % (vr(4 + h), vr(8 + 2 * h), vr(9 + 2 * h)), dst=[4 + h], src=[8 + 2 * h, 9 + 2 * h])
    g.vstore("buffer_store_dwordx4 v[4:7], v2, s[8:11], 0 offen", "ST", data=rng(4, 4), addr=[2])
    g.label("reduce_end")
    g.s("s_endpgm")
    return g.text()


HEADER = """; Kernarg layout for this problem (104 bytes, ptrs only, base s[0:1]):
; @launch kernel=attn_kernel grid=(256,1,1) block=(512,1,1) lds=163840
; @launch kernel=oproj_kernel grid=(256,1,1) block=(512,1,1) lds=65536
; @launch kernel=reduce_kernel grid=(768,1,1) block=(256,1,1) lds=0
.amdgcn_target "amdgcn-amd-amdhsa--gfx950"
.text
"""


def kernel_text(name, body):
    return (".globl %s\n.p2align 8\n.type %s,@function\n%s:\n" % (name, name, name)) + body


def kd(name, vgpr, sgpr):
    acc_off = (vgpr + 3) // 4 * 4
    return """.p2align 6
.amdhsa_kernel %s
  .amdhsa_next_free_vgpr %d
  .amdhsa_next_free_sgpr %d
  .amdhsa_accum_offset %d
  .amdhsa_group_segment_fixed_size 0
  .amdhsa_kernarg_size 104
  .amdhsa_user_sgpr_count 2
  .amdhsa_user_sgpr_kernarg_segment_ptr 1
  .amdhsa_system_sgpr_workgroup_id_x 1
.end_amdhsa_kernel
""" % (name, vgpr, sgpr, acc_off)


def main():
    out = HEADER
    out += kernel_text("attn_kernel", gen_attn())
    out += kernel_text("oproj_kernel", gen_oproj())
    out += kernel_text("reduce_kernel", gen_reduce())
    out += '.section .rodata,"a"\n'
    out += kd("attn_kernel", 256, 64)
    out += kd("oproj_kernel", 256, 64)
    out += kd("reduce_kernel", 72, 24)
    path = sys.argv[1] if len(sys.argv) > 1 else "cdna_kernels/%s.s" % NAME
    open(path, "w").write(out)
    print("wrote", path, len(out), "bytes")


if __name__ == "__main__":
    main()
```

```python
def vr(i, n=1):
    return "v%d" % i if n == 1 else "v[%d:%d]" % (i, i + n - 1)


def sr(i, n=1):
    return "s%d" % i if n == 1 else "s[%d:%d]" % (i, i + n - 1)


class Gen:
    def __init__(self):
        self.lines = []
        self.clock = 0
        self.vmq = []
        self.lgq = []
        self.valu_w = {}
        self.trans_w = {}
        self.mfma_w = {}
        self.mfma_c = {}
        self.store_r = {}
        self.sgpr_valu_w = {}
        self.m0_w = -100

    def raw(self, text):
        self.lines.append("    " + text)

    def comment(self, text):
        self.lines.append("    ; " + text)

    def label(self, name):
        self.lines.append(name + ":")

    def _tick(self, n=1):
        self.clock += n

    def nop(self, n):
        while n > 0:
            k = min(n, 16)
            self.raw("s_nop %d" % (k - 1))
            self._tick(k)
            n -= k

    def _need(self, when, dist):
        if when is None:
            return 0
        have = self.clock - when - 1
        return max(0, dist - have)

    def _pad(self, n):
        if n > 0:
            self.nop(n)

    def s(self, text, m0=False):
        self.raw(text)
        if m0:
            self.m0_w = self.clock
        self._tick()

    def waitcnt(self, vm=None, lg=None):
        parts = []
        if vm is not None:
            parts.append("vmcnt(%d)" % vm)
        if lg is not None:
            parts.append("lgkmcnt(%d)" % lg)
        self.raw("s_waitcnt " + " ".join(parts))
        self._tick()

    def barrier(self):
        self.raw("s_barrier")
        self._tick()

    def wait_vm(self, tags):
        if isinstance(tags, str):
            tags = [tags]
        last = -1
        for i, t in enumerate(self.vmq):
            if t in tags:
                last = i
        if last < 0:
            return
        n = len(self.vmq) - 1 - last
        assert n <= 63
        self.waitcnt(vm=n)
        self.vmq = self.vmq[last + 1:]

    def wait_lg(self, tags):
        if isinstance(tags, str):
            tags = [tags]
        last = -1
        for i, t in enumerate(self.lgq):
            if t in tags:
                last = i
        if last < 0:
            return
        n = len(self.lgq) - 1 - last
        if n > 15:
            n = 15
            last = len(self.lgq) - 1 - n
        self.waitcnt(lg=n)
        self.lgq = self.lgq[last + 1:]

    def wait_all(self):
        self.waitcnt(vm=0, lg=0)
        self.vmq = []
        self.lgq = []

    def valu(self, text, dst=(), src=(), trans=False, sdst=(), permlane=False, readlane=False):
        pad = 0
        for r in list(src) + list(dst):
            w = self.mfma_w.get(r)
            if w is not None:
                pad = max(pad, self._need(w[0], 8))
        for r in dst:
            pad = max(pad, self._need(self.mfma_c.get(r), 3))
            pad = max(pad, self._need(self.store_r.get(r), 2))
        for r in src:
            if not trans:
                pad = max(pad, self._need(self.trans_w.get(r), 1))
            if permlane:
                pad = max(pad, self._need(self.valu_w.get(r), 2))
            if readlane:
                pad = max(pad, self._need(self.valu_w.get(r), 1))
        if permlane:
            for r in dst:
                pad = max(pad, self._need(self.valu_w.get(r), 2))
        self._pad(pad)
        self.raw(text)
        for r in dst:
            self.valu_w[r] = self.clock
            if trans:
                self.trans_w[r] = self.clock
            else:
                self.trans_w.pop(r, None)
            self.mfma_w.pop(r, None)
        for r in sdst:
            self.sgpr_valu_w[r] = self.clock
        self._tick()

    def mfma(self, d, a, b, c):
        pad = 0
        for r in list(range(a, a + 4)) + list(range(b, b + 4)):
            pad = max(pad, self._need(self.valu_w.get(r), 2))
            w = self.mfma_w.get(r)
            if w is not None:
                pad = max(pad, self._need(w[0], 8))
        if c is not None:
            for r in range(c, c + 4):
                pad = max(pad, self._need(self.valu_w.get(r), 2))
                w = self.mfma_w.get(r)
                if w is not None and not (w[1] == c and w[2] == 4):
                    pad = max(pad, self._need(w[0], 6))
        for r in range(d, d + 4):
            w = self.mfma_w.get(r)
            if w is not None and not (w[1] == d and w[2] == 4):
                pad = max(pad, self._need(w[0], 8))
            pad = max(pad, self._need(self.store_r.get(r), 2))
        self._pad(pad)
        cs = "0" if c is None else vr(c, 4)
        self.raw("v_mfma_f32_16x16x32_bf16 %s, %s, %s, %s" % (vr(d, 4), vr(a, 4), vr(b, 4), cs))
        for r in range(d, d + 4):
            self.mfma_w[r] = (self.clock, d, 4)
            self.valu_w.pop(r, None)
            self.trans_w.pop(r, None)
        if c is not None:
            for r in range(c, c + 4):
                self.mfma_c[r] = self.clock
        self._tick()

    def _mem_pad(self, reads=(), writes=(), sreads=()):
        pad = 0
        for r in list(reads) + list(writes):
            w = self.mfma_w.get(r)
            if w is not None:
                pad = max(pad, self._need(w[0], 8))
        for r in writes:
            pad = max(pad, self._need(self.store_r.get(r), 1))
            pad = max(pad, self._need(self.mfma_c.get(r), 3))
        for r in sreads:
            pad = max(pad, self._need(self.sgpr_valu_w.get(r), 5))
        return pad

    def vload(self, text, tag, dst=(), addr=(), sreads=(), lds=False):
        pad = self._mem_pad(addr, dst, sreads)
        if lds:
            pad = max(pad, self._need(self.m0_w, 1))
        self._pad(pad)
        self.raw(text)
        for r in dst:
            self.valu_w.pop(r, None)
            self.trans_w.pop(r, None)
            self.mfma_w.pop(r, None)
        self.vmq.append(tag)
        self._tick()

    def vstore(self, text, tag, data=(), addr=(), sreads=()):
        pad = self._mem_pad(list(data) + list(addr), (), sreads)
        self._pad(pad)
        self.raw(text)
        if len(data) >= 3:
            for r in data:
                self.store_r[r] = self.clock
        self.vmq.append(tag)
        self._tick()

    def dsread(self, text, tag, dst=(), addr=()):
        pad = self._mem_pad(addr, dst)
        self._pad(pad)
        self.raw(text)
        for r in dst:
            self.valu_w.pop(r, None)
            self.trans_w.pop(r, None)
            self.mfma_w.pop(r, None)
        self.lgq.append(tag)
        self._tick()

    def text(self):
        return "\n".join(self.lines) + "\n"


def _dswrite(self, text, tag, data=(), addr=()):
    pad = self._mem_pad(list(data) + list(addr), ())
    self._pad(pad)
    self.raw(text)
    self.lgq.append(tag)
    self._tick()


Gen.dswrite = _dswrite
```

```python
import sys, os
sys.path.insert(0, os.path.dirname(os.path.abspath(__file__)))
from asmgen import Gen, vr, sr

NAME = "concat_heads__gqa_block_cached__gqa_block_cached__near_ridge"
O_BLOCK_BYTES = 1536 * 4096 * 2
WS_BYTES = 268435456

STAMP = int(os.environ.get("STAMP", "0"))
STAMP_BASE = 200 * 1024 * 1024
_stamp_n = [0]

S_WAVE = 3
SRD_X = 20
SRD_K = 24
SRD_V = 28
SRD_W = 32
SRD_WS = 36
SRD_OUT = 24
S_M0W = 46
S_TMP = 47
S_WOFF = 48
S_M0V = 49
S_SC = 50
S_L2E = 52


def rng(a, n):
    return list(range(a, a + n))


def stamp(g, kid, vt):
    if not STAMP:
        return
    n = _stamp_n[0]
    _stamp_n[0] += 1
    g.s("s_memtime s[60:61]")
    g.waitcnt(lg=0)
    g.lgq = []
    g.s("s_lshl_b32 s62, s2, 8")
    g.s("s_add_u32 s62, s62, %d" % (STAMP_BASE + kid * 131072 + n * 8))
    g.s("s_mul_i32 s63, s3, 1048576")
    g.s("s_add_u32 s62, s62, s63")
    g.valu("v_mov_b32 %s, s60" % vr(vt), dst=[vt])
    g.valu("v_mov_b32 %s, s61" % vr(vt + 1), dst=[vt + 1])
    g.valu("v_mov_b32 %s, s62" % vr(vt + 2), dst=[vt + 2])
    g.s("s_mov_b64 s[58:59], exec")
    g.s("s_mov_b64 exec, 1")
    g.vstore("buffer_store_dwordx2 %s, %s, %s, 0 offen" % (vr(vt, 2), vr(vt + 2), sr(SRD_WS, 4)), "STAMP", data=[vt, vt + 1], addr=[vt + 2])
    g.s("s_mov_b64 exec, s[58:59]")


def make_srd(g, srd, ptr, nbytes):
    g.s("s_mov_b32 %s, %s" % (sr(srd), sr(ptr)))
    g.s("s_and_b32 %s, %s, 0xffff" % (sr(srd + 1), sr(ptr + 1)))
    g.s("s_mov_b32 %s, %d" % (sr(srd + 2), nbytes))
    g.s("s_mov_b32 %s, 0x00020000" % sr(srd + 3))


def vop(g, text, dst, src=()):
    g.valu(text, dst=[dst] if isinstance(dst, int) else dst, src=src)


def lane_setup(g):
    vop(g, "v_lshrrev_b32 v7, 6, v0", 7, [0])
    vop(g, "v_and_b32 v1, 63, v0", 1, [0])
    g.valu("v_readfirstlane_b32 %s, v7" % sr(S_WAVE), src=[7], readlane=True, sdst=[S_WAVE])
    vop(g, "v_and_b32 v2, 15, v1", 2, [1])
    vop(g, "v_lshrrev_b32 v3, 4, v1", 3, [1])
    vop(g, "v_bfe_u32 v4, v1, 2, 2", 4, [1])
    vop(g, "v_and_b32 v5, 3, v1", 5, [1])
    vop(g, "v_and_b32 v6, 1, v3", 6, [3])
    vop(g, "v_lshlrev_b32 v6, 2, v6", 6, [6])
    vop(g, "v_or_b32 v6, v6, v4", 6, [6, 4])
    g.nop(4)


def pack_pair(g, lo, hi):
    g.valu("v_cvt_pk_bf16_f32 %s, %s, %s" % (vr(lo), vr(lo), vr(lo + 1)), dst=[lo], src=[lo, lo + 1])
    g.valu("v_cvt_pk_bf16_f32 %s, %s, %s" % (vr(lo + 1), vr(lo + 2), vr(lo + 3)), dst=[lo + 1], src=[lo + 2, lo + 3])
    g.valu("v_cvt_pk_bf16_f32 %s, %s, %s" % (vr(lo + 2), vr(hi), vr(hi + 1)), dst=[lo + 2], src=[hi, hi + 1])
    g.valu("v_cvt_pk_bf16_f32 %s, %s, %s" % (vr(lo + 3), vr(hi + 2), vr(hi + 3)), dst=[lo + 3], src=[hi + 2, hi + 3])


def xlane_reduce(g, m, tmp, op):
    for sw in ("v_permlane32_swap_b32", "v_permlane16_swap_b32"):
        vop(g, "v_mov_b32 %s, %s" % (vr(tmp), vr(m)), tmp, [m])
        g.valu("%s %s, %s" % (sw, vr(m), vr(tmp)), dst=[m, tmp], src=[m, tmp], permlane=True)
        vop(g, "%s %s, %s, %s" % (op, vr(m), vr(m), vr(tmp)), m, [m, tmp])


R_ACC = 0
R_A = 96
R_B = 128
R_K = 164
V_A = 236
V_X = 244
V_W = 245
V_TCH = 246
V_VD0 = 247
V_VD1 = 248
V_K = 249
V_O = 250
V_DELTA = 251
V_T = 252
A_V_LDS = 32768


def acc(t, u):
    return R_ACC + (t * 3 + u) * 4


def bfrag(s, u):
    return R_B + ((s % 3) * 3 + u) * 4


def attn_body(g, kv_first):
    def tr_reads(s, t):
        for j in range(2):
            d = R_A + t * 4 + j * 2
            g.dsread("ds_read_b64_tr_b16 %s, %s offset:%d" % (vr(d, 2), vr(V_A + t), (s % 4) * 8192 + j * 1024),
                     "A%d_%d" % (s, t), dst=rng(d, 2), addr=[V_A + t])

    def issue_w(c):
        for i in range(2):
            g.s("s_mov_b32 %s, %d" % (sr(S_WOFF), c * 262144 + i * 32768))
            g.s("s_add_u32 m0, %s, %d" % (sr(S_M0W), (c % 4) * 8192 + i * 1024), m0=True)
            g.vload("buffer_load_dwordx4 %s, %s, %s offen lds" % (vr(V_W), sr(SRD_W, 4), sr(S_WOFF)),
                    "W%d" % c, addr=[V_W], lds=True)

    def issue_b(s):
        for u in range(3):
            g.s("s_mov_b32 %s, %d" % (sr(S_TMP), u * 16384))
            d = bfrag(s, u)
            g.vload("buffer_load_dwordx4 %s, %s, %s, %s offen offset:%d" % (vr(d, 4), vr(V_X), sr(SRD_X, 4), sr(S_TMP), s * 64),
                    "B%d" % s, dst=rng(d, 4), addr=[V_X])

    def kfrag(p, kt):
        if kt < 4:
            return R_K + (kt * 4 + p) * 4
        return R_A + ((kt - 4) * 4 + p) * 4

    def issue_k(p, kt):
        g.s("s_mov_b32 %s, %d" % (sr(S_TMP), kt * 4096))
        for j in range(2):
            d = kfrag(p, kt) + 2 * j
            g.vload("buffer_load_dwordx2 %s, %s, %s, %s offen offset:%d" % (vr(d, 2), vr(V_K), sr(SRD_K, 4), sr(S_TMP), p * 64 + j * 32),
                    "K%d_%d" % (p, kt), dst=rng(d, 2), addr=[V_K])

    def issue_v(i):
        g.s("s_mov_b32 %s, %d" % (sr(S_TMP), i * 1024))
        g.s("s_add_u32 m0, %s, %d" % (sr(S_M0V), i * 1024), m0=True)
        g.vload("buffer_load_dwordx4 %s, %s, %s offen lds" % (vr(V_VD0 + (i & 1)), sr(SRD_V, 4), sr(S_TMP)),
                "V", addr=[V_VD0 + (i & 1)], lds=True)

    def issue_kv():
        for kt in range(4):
            for p in range(4):
                issue_k(p, kt)
        g.vload("buffer_load_dword %s, %s, %s, 0 offen" % (vr(V_T + 3), vr(V_TCH), sr(SRD_K, 4)), "TCH", dst=[V_T + 3], addr=[V_TCH])
        for i in range(12):
            issue_v(i)

    stamp(g, 0, V_T)
    if kv_first:
        issue_kv()
    for c in range(3):
        issue_w(c)
    for s in range(3):
        issue_b(s)
    nsteps = 16
    g.wait_vm(["W0", "W1"])
    g.barrier()
    for t in range(8):
        tr_reads(0, t)
    for s in range(nsteps):
        g.comment("---- gemm step %d" % s)
        if s > 0:
            g.wait_vm("W%d" % (s + 1))
            g.barrier()
        if s % 4 == 0:
            stamp(g, 0, V_T)
        if s + 3 < nsteps:
            issue_w(s + 3)
        for t in range(8):
            g.wait_lg("A%d_%d" % (s, t))
            if t == 0:
                g.wait_vm("B%d" % s)
            for u in range(3):
                g.mfma(acc(t, u), R_A + t * 4, bfrag(s, u), None if s == 0 else acc(t, u))
            if s + 1 < nsteps:
                tr_reads(s + 1, t)
        if s + 3 < nsteps:
            issue_b(s + 3)
        if s == 12 and not kv_first:
            issue_kv()

    stamp(g, 0, V_T)
    for kt in range(4, 6):
        for p in range(4):
            issue_k(p, kt)
    for p in range(4):
        for u in range(3):
            pack_pair(g, acc(2 * p, u), acc(2 * p + 1, u))

    def sacc(kt, u):
        i = kt * 3 + u
        if i < 12:
            return acc(1 + 2 * (i // 3), i % 3)
        return R_B + (i - 12) * 4

    for kt in range(6):
        for p in range(4):
            g.wait_vm("K%d_%d" % (p, kt))
            for u in range(3):
                g.mfma(sacc(kt, u), kfrag(p, kt), acc(2 * p, u), None if p == 0 else sacc(kt, u))
    stamp(g, 0, V_T)
    g.wait_vm("V")
    g.barrier()
    for t in range(8):
        vop(g, "v_add_u32 %s, %s, %s" % (vr(V_A + t), vr(V_A + t), vr(V_DELTA)), V_A + t, [V_A + t, V_DELTA])

    def v_reads(pp, t):
        for j in range(2):
            d = R_A + t * 4 + j * 2
            g.dsread("ds_read_b64_tr_b16 %s, %s offset:%d" % (vr(d, 2), vr(V_A + t), pp * 8192 + j * 4096),
                     "VT%d_%d" % (pp, t), dst=rng(d, 2), addr=[V_A + t])

    for t in range(8):
        v_reads(0, t)
    stamp(g, 0, V_T)

    def pfrag(pp, u):
        return R_K + (pp * 3 + u) * 4
    TMP = R_K + 36
    for u in range(3):
        a, b = TMP, TMP + 1
        for kt in range(6):
            r = sacc(kt, u)
            for rep in range(2):
                g.valu("v_cvt_pk_bf16_f32 %s, %s, %s" % (vr(a), vr(r), vr(r + 1)), dst=[a], src=[r, r + 1])
                g.valu("v_cvt_pk_bf16_f32 %s, %s, %s" % (vr(b), vr(r + 2), vr(r + 3)), dst=[b], src=[r + 2, r + 3])
                vop(g, "v_lshlrev_b32 %s, 16, %s" % (vr(r), vr(a)), r, [a])
                vop(g, "v_and_b32 %s, 0xffff0000, %s" % (vr(r + 1), vr(a)), r + 1, [a])
                vop(g, "v_lshlrev_b32 %s, 16, %s" % (vr(r + 2), vr(b)), r + 2, [b])
                vop(g, "v_and_b32 %s, 0xffff0000, %s" % (vr(r + 3), vr(b)), r + 3, [b])
                if rep == 0:
                    g.valu("v_pk_mul_f32 %s, %s, %s" % (vr(r, 2), vr(r, 2), sr(S_SC, 2)), dst=[r, r + 1], src=[r, r + 1])
                    g.valu("v_pk_mul_f32 %s, %s, %s" % (vr(r + 2, 2), vr(r + 2, 2), sr(S_SC, 2)), dst=[r + 2, r + 3], src=[r + 2, r + 3])
        vals = [sacc(kt, u) + r for kt in range(6) for r in range(4)]
        m = TMP + 2
        vop(g, "v_max3_f32 %s, %s, %s, %s" % (vr(m), vr(vals[0]), vr(vals[1]), vr(vals[2])), m, vals[0:3])
        i = 3
        while i < 24:
            if i + 1 < 24:
                vop(g, "v_max3_f32 %s, %s, %s, %s" % (vr(m), vr(m), vr(vals[i]), vr(vals[i + 1])), m, [m, vals[i], vals[i + 1]])
                i += 2
            else:
                vop(g, "v_max_f32 %s, %s, %s" % (vr(m), vr(m), vr(vals[i])), m, [m, vals[i]])
                i += 1
        xlane_reduce(g, m, TMP + 3, "v_max_f32")
        for v in vals:
            vop(g, "v_sub_f32 %s, %s, %s" % (vr(v), vr(v), vr(m)), v, [v, m])
        for k in range(0, 24, 2):
            v = vals[k]
            g.valu("v_pk_mul_f32 %s, %s, %s" % (vr(v, 2), vr(v, 2), sr(S_L2E, 2)), dst=[v, v + 1], src=[v, v + 1])
        for v in vals:
            g.valu("v_exp_f32 %s, %s" % (vr(v), vr(v)), dst=[v], src=[v], trans=True)
        sm = TMP + 4
        g.valu("v_pk_add_f32 %s, %s, %s" % (vr(sm, 2), vr(vals[0], 2), vr(vals[2], 2)), dst=[sm, sm + 1], src=vals[0:4])
        for k in range(4, 24, 2):
            g.valu("v_pk_add_f32 %s, %s, %s" % (vr(sm, 2), vr(sm, 2), vr(vals[k], 2)), dst=[sm, sm + 1], src=[sm, sm + 1, vals[k], vals[k] + 1])
        vop(g, "v_add_f32 %s, %s, %s" % (vr(sm), vr(sm), vr(sm + 1)), sm, [sm, sm + 1])
        xlane_reduce(g, sm, TMP + 3, "v_add_f32")
        g.valu("v_rcp_f32 %s, %s" % (vr(sm), vr(sm)), dst=[sm], src=[sm], trans=True)
        vop(g, "v_mov_b32 %s, %s" % (vr(sm + 1), vr(sm)), sm + 1, [sm])
        for k in range(0, 24, 2):
            v = vals[k]
            g.valu("v_pk_mul_f32 %s, %s, %s" % (vr(v, 2), vr(v, 2), vr(sm, 2)), dst=[v, v + 1], src=[v, v + 1, sm, sm + 1])
        for pp in range(3):
            d = pfrag(pp, u)
            lo, hi = sacc(2 * pp, u), sacc(2 * pp + 1, u)
            g.valu("v_cvt_pk_bf16_f32 %s, %s, %s" % (vr(d), vr(lo), vr(lo + 1)), dst=[d], src=[lo, lo + 1])
            g.valu("v_cvt_pk_bf16_f32 %s, %s, %s" % (vr(d + 1), vr(lo + 2), vr(lo + 3)), dst=[d + 1], src=[lo + 2, lo + 3])
            g.valu("v_cvt_pk_bf16_f32 %s, %s, %s" % (vr(d + 2), vr(hi), vr(hi + 1)), dst=[d + 2], src=[hi, hi + 1])
            g.valu("v_cvt_pk_bf16_f32 %s, %s, %s" % (vr(d + 3), vr(hi + 2), vr(hi + 3)), dst=[d + 3], src=[hi + 2, hi + 3])
    stamp(g, 0, V_T)
    for pp in range(3):
        for t in range(8):
            g.wait_lg("VT%d_%d" % (pp, t))
            for u in range(3):
                g.mfma(acc(t, u), R_A + t * 4, pfrag(pp, u), None if pp == 0 else acc(t, u))
            if pp < 2:
                v_reads(pp + 1, t)
    stamp(g, 0, V_T)
    for p in range(4):
        for u in range(3):
            pack_pair(g, acc(2 * p, u), acc(2 * p + 1, u))
            g.s("s_mov_b32 %s, %d" % (sr(S_TMP), u * 131072))
            d = acc(2 * p, u)
            g.vstore("buffer_store_dwordx4 %s, %s, %s, %s offen offset:%d" % (vr(d, 4), vr(V_O), sr(SRD_WS, 4), sr(S_TMP), p * 1024),
                     "ST", data=rng(d, 4), addr=[V_O])
    if STAMP:
        g.wait_vm("ST")
        stamp(g, 0, V_T)
    g.s("s_endpgm")


def gen_attn():
    g = Gen()
    g.s("s_cmp_ge_u32 s2, 512")
    g.s("s_cbranch_scc1 attn_end")
    lane_setup(g)
    g.s("s_and_b32 s4, s2, 7")
    g.s("s_lshr_b32 s5, s2, 3")
    g.s("s_lshr_b32 s6, s4, 2")
    g.s("s_and_b32 s7, s4, 3")
    g.s("s_lshl_b32 s7, s7, 3")
    g.s("s_lshr_b32 s16, s5, 3")
    g.s("s_add_u32 s43, s7, s16")
    g.s("s_lshr_b32 s40, s16, 2")
    g.s("s_and_b32 s5, s5, 7")
    g.s("s_mul_i32 s16, s6, 40")
    g.s("s_add_u32 s18, s0, s16")
    g.s("s_addc_u32 s19, s1, 0")
    g.s("s_load_dwordx8 s[8:15], s[18:19], 0")
    g.s("s_load_dwordx2 s[16:17], s[0:1], 96")
    g.s("s_lshr_b32 s41, s3, 1")
    g.s("s_and_b32 s42, s3, 1")
    g.s("s_lshl_b32 s44, s5, 1")
    g.s("s_add_u32 s44, s44, s41")
    g.s("s_lshl_b32 s45, s44, 5")
    g.s("s_add_u32 s45, s45, s43")
    g.s("s_mul_i32 s45, s45, 24576")
    g.s("s_mov_b32 %s, 0x3db504f3" % sr(S_SC))
    g.s("s_mov_b32 %s, 0x3db504f3" % sr(S_SC + 1))
    g.s("s_mov_b32 %s, 0x3fb8aa3b" % sr(S_L2E))
    g.s("s_mov_b32 %s, 0x3fb8aa3b" % sr(S_L2E + 1))
    g.s("s_mul_i32 s55, s44, 98304")
    g.s("s_mul_i32 s56, s42, 49152")
    g.s("s_add_u32 s55, s55, s56")
    vop(g, "v_lshlrev_b32 v8, 10, v2", 8, [2])
    vop(g, "v_lshl_add_u32 v8, v3, 4, v8", 8, [3, 8])
    vop(g, "v_add_u32 %s, s55, v8" % vr(V_X), V_X, [8])
    vop(g, "v_lshlrev_b32 v8, 8, v2", 8, [2])
    vop(g, "v_lshl_add_u32 v8, v3, 3, v8", 8, [3, 8])
    vop(g, "v_add_u32 %s, s45, v8" % vr(V_K), V_K, [8])
    g.s("s_add_u32 s55, s45, 16384")
    vop(g, "v_lshlrev_b32 v8, 7, v1", 8, [1])
    vop(g, "v_add_u32 %s, s55, v8" % vr(V_TCH), V_TCH, [8])
    g.s("s_mul_i32 s55, s42, 12288")
    g.s("s_add_u32 s55, s55, s45")
    for par in range(2):
        vop(g, "v_add_u32 v8, %d, v3" % (4 * par), 8, [3])
        vop(g, "v_lshlrev_b32 v8, 1, v8", 8, [8])
        vop(g, "v_xor_b32 v8, v8, v2", 8, [8, 2])
        vop(g, "v_lshlrev_b32 v8, 4, v8", 8, [8])
        vop(g, "v_lshl_add_u32 v8, v3, 8, v8", 8, [3, 8])
        vop(g, "v_add_u32 %s, s55, v8" % vr(V_VD0 + par), V_VD0 + par, [8])
    g.s("s_and_b32 s55, s3, 1")
    g.s("s_lshl_b32 s55, s55, 2")
    vop(g, "v_or_b32 v8, s55, v3", 8, [3])
    vop(g, "v_lshlrev_b32 v8, 1, v8", 8, [8])
    vop(g, "v_xor_b32 v8, v8, v2", 8, [8, 2])
    vop(g, "v_lshlrev_b32 v8, 4, v8", 8, [8])
    vop(g, "v_lshl_add_u32 v8, v3, 13, v8", 8, [3, 8])
    g.s("s_lshl_b32 s55, s3, 16")
    g.s("s_lshl_b32 s56, s43, 8")
    g.s("s_add_u32 s55, s55, s56")
    vop(g, "v_add_u32 %s, s55, v8" % vr(V_W), V_W, [8])
    g.s("s_lshl_b32 %s, s3, 11" % sr(S_M0W))
    vop(g, "v_lshlrev_b32 v8, 3, v3", 8, [3])
    vop(g, "v_add_u32 v8, v8, v4", 8, [8, 4])
    vop(g, "v_lshlrev_b32 v8, 8, v8", 8, [8])
    vop(g, "v_lshl_add_u32 v8, v5, 3, v8", 8, [8, 5])
    for t in range(8):
        vop(g, "v_xor_b32 v9, %d, v6" % t, 9, [6])
        vop(g, "v_lshl_add_u32 %s, v9, 5, v8" % vr(V_A + t), V_A + t, [9, 8])
    g.s("s_mul_i32 s55, s41, 24576")
    g.s("s_add_u32 s55, s55, %d" % A_V_LDS)
    vop(g, "v_lshlrev_b32 v9, 2, v3", 9, [3])
    vop(g, "v_add_u32 v9, v9, v4", 9, [9, 4])
    vop(g, "v_lshlrev_b32 v9, 8, v9", 9, [9])
    vop(g, "v_lshl_add_u32 v9, v5, 3, v9", 9, [9, 5])
    vop(g, "v_add_u32 v9, s55, v9", 9, [9])
    vop(g, "v_sub_u32 %s, v9, v8" % vr(V_DELTA), V_DELTA, [9, 8])
    g.s("s_mul_i32 s56, s42, 12288")
    g.s("s_add_u32 %s, s55, s56" % sr(S_M0V))
    g.s("s_mul_i32 s55, s44, 6")
    g.s("s_mul_i32 s56, s42, 3")
    g.s("s_add_u32 s55, s55, s56")
    g.s("s_lshl_b32 s55, s55, 7")
    g.s("s_lshl_b32 s56, s43, 2")
    g.s("s_add_u32 s55, s55, s56")
    g.s("s_lshl_b32 s55, s55, 10")
    g.s("s_mul_i32 s56, s6, %d" % O_BLOCK_BYTES)
    g.s("s_add_u32 s55, s55, s56")
    vop(g, "v_lshlrev_b32 v8, 4, v1", 8, [1])
    vop(g, "v_add_u32 %s, s55, v8" % vr(V_O), V_O, [8])
    g.waitcnt(lg=0)
    make_srd(g, SRD_X, 8, 1572864)
    make_srd(g, SRD_K, 10, 12582912)
    make_srd(g, SRD_V, 12, 12582912)
    make_srd(g, SRD_W, 14, 4194304)
    make_srd(g, SRD_WS, 16, WS_BYTES)
    g.s("s_cmp_eq_u32 s40, 1")
    g.s("s_cbranch_scc1 attn_kvfirst")
    t0 = g.text()
    gb = Gen()
    _stamp_n[0] = 0
    attn_body(gb, False)
    ga = Gen()
    _stamp_n[0] = 0
    ga.label("attn_kvfirst")
    attn_body(ga, True)
    ga.label("attn_end")
    ga.s("s_endpgm")
    return t0 + gb.text() + ga.text()


O_ACC = 0
O_A = 96
O_B = 112
O_VA = 184
O_VX = 188
O_VW = 189
O_VO = 190
O_VL = 191
O_VT = 192


def gen_oproj():
    g = Gen()
    _stamp_n[0] = 0

    def oacc(t, u):
        return O_ACC + (t * 6 + u) * 4

    def bfr(s, u):
        return O_B + ((s % 3) * 6 + u) * 4

    g.s("s_cmp_ge_u32 s2, 256")
    g.s("s_cbranch_scc1 oproj_end")
    lane_setup(g)
    g.s("s_and_b32 s4, s2, 7")
    g.s("s_lshr_b32 s5, s2, 3")
    g.s("s_lshr_b32 s6, s4, 2")
    g.s("s_and_b32 s7, s4, 3")
    g.s("s_and_b32 s40, s5, 3")
    g.s("s_lshr_b32 s41, s5, 2")
    g.s("s_mul_i32 s16, s6, 40")
    g.s("s_add_u32 s18, s0, s16")
    g.s("s_addc_u32 s19, s1, 0")
    g.s("s_load_dwordx2 s[14:15], s[18:19], 32")
    g.s("s_load_dwordx2 s[16:17], s[0:1], 96")
    g.s("s_load_dwordx2 s[12:13], s[0:1], 80")
    g.s("s_mul_i32 s55, s7, 24")
    g.s("s_mul_i32 s56, s40, 6")
    g.s("s_add_u32 s42, s55, s56")
    g.s("s_lshl_b32 s55, s42, 7")
    g.s("s_lshl_b32 s56, s3, 4")
    g.s("s_add_u32 s55, s55, s56")
    g.s("s_lshl_b32 s55, s55, 10")
    g.s("s_mul_i32 s56, s6, %d" % O_BLOCK_BYTES)
    g.s("s_add_u32 s55, s55, s56")
    vop(g, "v_lshlrev_b32 %s, 4, v1" % vr(O_VL), O_VL, [1])
    vop(g, "v_add_u32 %s, s55, %s" % (vr(O_VX), vr(O_VL)), O_VX, [O_VL])
    vop(g, "v_and_b32 v8, 7, v1", 8, [1])
    vop(g, "v_lshlrev_b32 v9, 1, v3", 9, [3])
    vop(g, "v_xor_b32 v8, v8, v9", 8, [8, 9])
    vop(g, "v_lshlrev_b32 v8, 4, v8", 8, [8])
    vop(g, "v_lshrrev_b32 v9, 3, v1", 9, [1])
    vop(g, "v_lshl_add_u32 v8, v9, 10, v8", 8, [8, 9])
    g.s("s_lshl_b32 s55, s41, 7")
    g.s("s_lshl_b32 s56, s3, 19")
    g.s("s_add_u32 s55, s55, s56")
    vop(g, "v_add_u32 %s, s55, v8" % vr(O_VW), O_VW, [8])
    g.s("s_lshl_b32 %s, s3, 14" % sr(S_M0W))
    vop(g, "v_lshlrev_b32 v8, 2, v3", 8, [3])
    vop(g, "v_add_u32 v8, v8, v4", 8, [8, 4])
    vop(g, "v_bfe_u32 v9, v8, 1, 2", 9, [8])
    vop(g, "v_lshlrev_b32 v8, 7, v8", 8, [8])
    vop(g, "v_lshl_add_u32 v8, v5, 3, v8", 8, [8, 5])
    vop(g, "v_add_u32 v8, %s, v8" % sr(S_M0W), 8, [8])
    for t in range(4):
        vop(g, "v_xor_b32 v10, %d, v9" % t, 10, [9])
        vop(g, "v_lshl_add_u32 %s, v10, 5, v8" % vr(O_VA + t), O_VA + t, [10, 8])
    g.s("s_lshl_b32 s55, s42, 4")
    g.s("s_lshl_b32 s55, s55, 10")
    g.s("s_lshl_b32 s56, s6, 9")
    g.s("s_add_u32 s55, s55, s56")
    g.s("s_lshl_b32 s56, s41, 6")
    g.s("s_add_u32 s55, s55, s56")
    g.s("s_lshl_b32 s55, s55, 1")
    vop(g, "v_lshlrev_b32 v8, 11, v2", 8, [2])
    vop(g, "v_lshl_add_u32 v8, v3, 3, v8", 8, [3, 8])
    vop(g, "v_add_u32 %s, s55, v8" % vr(O_VO), O_VO, [8])
    g.waitcnt(lg=0)
    make_srd(g, SRD_W, 14, 4194304)
    make_srd(g, SRD_WS, 16, WS_BYTES)
    make_srd(g, SRD_OUT, 12, 16 * 96 * 1024 * 2)

    def issue_w(c):
        for i in range(4):
            g.s("s_mov_b32 %s, %d" % (sr(S_WOFF), c * 32768 + i * 8192))
            g.s("s_add_u32 m0, %s, %d" % (sr(S_M0W), (c % 4) * 4096 + i * 1024), m0=True)
            g.vload("buffer_load_dwordx4 %s, %s, %s offen lds" % (vr(O_VW), sr(SRD_W, 4), sr(S_WOFF)),
                    "W%d" % c, addr=[O_VW], lds=True)

    def issue_b(s):
        for u in range(6):
            g.s("s_mov_b32 %s, %d" % (sr(S_TMP), u * 131072 + (s >> 2) * 4096))
            d = bfr(s, u)
            g.vload("buffer_load_dwordx4 %s, %s, %s, %s offen offset:%d" % (vr(d, 4), vr(O_VX), sr(SRD_WS, 4), sr(S_TMP), (s & 3) * 1024),
                    "B%d" % s, dst=rng(d, 4), addr=[O_VX])

    def tr_reads(s, t):
        for j in range(2):
            d = O_A + t * 4 + j * 2
            g.dsread("ds_read_b64_tr_b16 %s, %s offset:%d" % (vr(d, 2), vr(O_VA + t), (s % 4) * 4096 + j * 2048),
                     "A%d_%d" % (s, t), dst=rng(d, 2), addr=[O_VA + t])

    stamp(g, 1, O_VT)
    for c in range(3):
        issue_w(c)
        issue_b(c)
    g.wait_vm("W0")
    for t in range(4):
        tr_reads(0, t)
    nsteps = 16
    for s in range(nsteps):
        g.comment("---- step %d" % s)
        if s % 4 == 0:
            stamp(g, 1, O_VT)
        if s + 3 < nsteps:
            issue_w(s + 3)
        for t in range(4):
            g.wait_lg("A%d_%d" % (s, t))
            if t == 0:
                g.wait_vm("B%d" % s)
            for u in range(6):
                g.mfma(oacc(t, u), O_A + t * 4, bfr(s, u), None if s == 0 else oacc(t, u))
            if s + 1 < nsteps:
                if t == 0:
                    g.wait_vm("W%d" % (s + 1))
                tr_reads(s + 1, t)
        if s + 3 < nsteps:
            issue_b(s + 3)
    stamp(g, 1, O_VT)
    g.s("s_lshl_b32 s55, s3, 13")
    g.s("s_lshl_b32 s56, s3, 10")
    vop(g, "v_add_u32 %s, s55, %s" % (vr(O_VA), vr(O_VL)), O_VA, [O_VL])
    vop(g, "v_add_u32 %s, s56, %s" % (vr(O_VA + 1), vr(O_VL)), O_VA + 1, [O_VL])
    vop(g, "v_add_u32 %s, 0x10000, %s" % (vr(O_VA + 2), vr(O_VA)), O_VA + 2, [O_VA])
    vop(g, "v_add_u32 %s, 0x10000, %s" % (vr(O_VA + 3), vr(O_VA + 1)), O_VA + 3, [O_VA + 1])
    g.barrier()
    for ph in range(3):
        wa = O_VA + 2 * (ph & 1)
        ra = wa + 1
        for i in range(8):
            d = O_ACC + (8 * ph + i) * 4
            g.dswrite("ds_write_b128 %s, %s offset:%d" % (vr(wa), vr(d, 4), i * 1024), "RW", data=rng(d, 4), addr=[wa])
        g.wait_lg("RW")
        g.barrier()
        T = O_VT + 4
        for w2 in range(8):
            d = T + w2 * 4
            g.dsread("ds_read_b128 %s, %s offset:%d" % (vr(d, 4), vr(ra), w2 * 8192), "RR%d" % w2, dst=rng(d, 4), addr=[ra])
        for w2 in range(1, 8):
            g.wait_lg("RR%d" % w2)
            for h in range(2):
                d = T + h * 2
                s_ = T + w2 * 4 + h * 2
                g.valu("v_pk_add_f32 %s, %s, %s" % (vr(d, 2), vr(d, 2), vr(s_, 2)), dst=[d, d + 1], src=[d, d + 1, s_, s_ + 1])
        o = O_VT + 40 + ph * 2
        g.valu("v_cvt_pk_bf16_f32 %s, %s, %s" % (vr(o), vr(T), vr(T + 1)), dst=[o], src=[T, T + 1])
        g.valu("v_cvt_pk_bf16_f32 %s, %s, %s" % (vr(o + 1), vr(T + 2), vr(T + 3)), dst=[o + 1], src=[T + 2, T + 3])
        g.s("s_add_u32 s55, s3, %d" % (8 * ph))
        g.s("s_mul_i32 s56, s55, 43")
        g.s("s_lshr_b32 s56, s56, 8")
        g.s("s_mul_i32 s57, s56, 6")
        g.s("s_sub_u32 s57, s55, s57")
        g.s("s_lshl_b32 s57, s57, 15")
        g.s("s_lshl_b32 s56, s56, 5")
        g.s("s_add_u32 s57, s57, s56")
        g.vstore("buffer_store_dwordx2 %s, %s, %s, s57 offen" % (vr(o, 2), vr(O_VO), sr(SRD_OUT, 4)), "ST", data=rng(o, 2), addr=[O_VO])
    if STAMP:
        g.wait_vm("ST")
        stamp(g, 1, O_VT)
    g.label("oproj_end")
    g.s("s_endpgm")
    return g.text()


HEADER = """; Kernarg layout for this problem (104 bytes, ptrs only, base s[0:1]):
; @launch kernel=attn_kernel grid=(512,1,1) block=(256,1,1) lds=81920
; @launch kernel=oproj_kernel grid=(256,1,1) block=(512,1,1) lds=131072
.amdgcn_target "amdgcn-amd-amdhsa--gfx950"
.text
"""


def kernel_text(name, body):
    return (".globl %s\n.p2align 8\n.type %s,@function\n%s:\n" % (name, name, name)) + body


def kd(name, vgpr, sgpr):
    acc_off = (vgpr + 3) // 4 * 4
    return """.p2align 6
.amdhsa_kernel %s
  .amdhsa_next_free_vgpr %d
  .amdhsa_next_free_sgpr %d
  .amdhsa_accum_offset %d
  .amdhsa_group_segment_fixed_size 0
  .amdhsa_kernarg_size 104
  .amdhsa_user_sgpr_count 2
  .amdhsa_user_sgpr_kernarg_segment_ptr 1
  .amdhsa_system_sgpr_workgroup_id_x 1
.end_amdhsa_kernel
""" % (name, vgpr, sgpr, acc_off)


def main():
    out = HEADER
    out += kernel_text("attn_kernel", gen_attn())
    out += kernel_text("oproj_kernel", gen_oproj())
    out += '.section .rodata,"a"\n'
    out += kd("attn_kernel", 256, 64)
    out += kd("oproj_kernel", 256, 64)
    path = sys.argv[1] if len(sys.argv) > 1 else "cdna_kernels/%s.s" % NAME
    open(path, "w").write(out)
    print("wrote", path, len(out), "bytes")


if __name__ == "__main__":
    main()
```

```python
import sys, os
sys.path.insert(0, os.path.dirname(os.path.abspath(__file__)))
from asmgen import Gen, vr, sr

NAME = "concat_heads__gqa_block_cached__gqa_block_cached__near_ridge"
O_BLOCK_BYTES = 1536 * 4096 * 2
WS_BYTES = 268435456

STAMP = int(os.environ.get("STAMP", "0"))
STAMP_BASE = 200 * 1024 * 1024
NT = os.environ.get("NT", " nt")
TOUCH = int(os.environ.get("TOUCH", "1"))
_stamp_n = [0]

S_WAVE = 3
SRD_X = 20
SRD_K = 24
SRD_V = 28
SRD_W = 32
SRD_WS = 36
SRD_OUT = 24
S_M0W = 46
S_TMP = 47
S_WOFF = 48
S_M0V = 49
S_SC = 50
S_L2E = 52
S_W4K = 54
S_B8K = 57


def rng(a, n):
    return list(range(a, a + n))


def stamp(g, kid, vt):
    if not STAMP:
        return
    n = _stamp_n[0]
    _stamp_n[0] += 1
    g.s("s_memtime s[60:61]")
    g.waitcnt(lg=0)
    g.lgq = []
    g.s("s_lshl_b32 s62, s2, 8")
    g.s("s_add_u32 s62, s62, %d" % (STAMP_BASE + kid * 131072 + n * 8))
    g.s("s_mul_i32 s63, s3, 1048576")
    g.s("s_add_u32 s62, s62, s63")
    g.valu("v_mov_b32 %s, s60" % vr(vt), dst=[vt])
    g.valu("v_mov_b32 %s, s61" % vr(vt + 1), dst=[vt + 1])
    g.valu("v_mov_b32 %s, s62" % vr(vt + 2), dst=[vt + 2])
    g.s("s_mov_b64 s[58:59], exec")
    g.s("s_mov_b64 exec, 1")
    g.vstore("buffer_store_dwordx2 %s, %s, %s, 0 offen" % (vr(vt, 2), vr(vt + 2), sr(SRD_WS, 4)), "STAMP", data=[vt, vt + 1], addr=[vt + 2])
    g.s("s_mov_b64 exec, s[58:59]")


def make_srd(g, srd, ptr, nbytes):
    g.s("s_mov_b32 %s, %s" % (sr(srd), sr(ptr)))
    g.s("s_and_b32 %s, %s, 0xffff" % (sr(srd + 1), sr(ptr + 1)))
    g.s("s_mov_b32 %s, %d" % (sr(srd + 2), nbytes))
    g.s("s_mov_b32 %s, 0x00020000" % sr(srd + 3))


def vop(g, text, dst, src=()):
    g.valu(text, dst=[dst] if isinstance(dst, int) else dst, src=src)


def lane_setup(g):
    vop(g, "v_lshrrev_b32 v7, 6, v0", 7, [0])
    vop(g, "v_and_b32 v1, 63, v0", 1, [0])
    g.valu("v_readfirstlane_b32 %s, v7" % sr(S_WAVE), src=[7], readlane=True, sdst=[S_WAVE])
    vop(g, "v_and_b32 v2, 15, v1", 2, [1])
    vop(g, "v_lshrrev_b32 v3, 4, v1", 3, [1])
    vop(g, "v_bfe_u32 v4, v1, 2, 2", 4, [1])
    vop(g, "v_and_b32 v5, 3, v1", 5, [1])
    vop(g, "v_and_b32 v6, 1, v3", 6, [3])
    vop(g, "v_lshlrev_b32 v6, 2, v6", 6, [6])
    vop(g, "v_or_b32 v6, v6, v4", 6, [6, 4])
    g.nop(4)


def pack_pair(g, lo, hi):
    g.valu("v_cvt_pk_bf16_f32 %s, %s, %s" % (vr(lo), vr(lo), vr(lo + 1)), dst=[lo], src=[lo, lo + 1])
    g.valu("v_cvt_pk_bf16_f32 %s, %s, %s" % (vr(lo + 1), vr(lo + 2), vr(lo + 3)), dst=[lo + 1], src=[lo + 2, lo + 3])
    g.valu("v_cvt_pk_bf16_f32 %s, %s, %s" % (vr(lo + 2), vr(hi), vr(hi + 1)), dst=[lo + 2], src=[hi, hi + 1])
    g.valu("v_cvt_pk_bf16_f32 %s, %s, %s" % (vr(lo + 3), vr(hi + 2), vr(hi + 3)), dst=[lo + 3], src=[hi + 2, hi + 3])


def xlane_reduce(g, m, tmp, op):
    for sw in ("v_permlane32_swap_b32", "v_permlane16_swap_b32"):
        vop(g, "v_mov_b32 %s, %s" % (vr(tmp), vr(m)), tmp, [m])
        g.valu("%s %s, %s" % (sw, vr(m), vr(tmp)), dst=[m, tmp], src=[m, tmp], permlane=True)
        vop(g, "%s %s, %s, %s" % (op, vr(m), vr(m), vr(tmp)), m, [m, tmp])


R_ACC = 0
R_A = 96
R_B = 128
R_K = 164
V_A = 236
V_X = 244
V_W = 245
V_KW = 246
V_KR = 235
V_VD0 = 247
V_VD1 = 248
V_K = 249
V_O = 250
V_DELTA = 251
V_T = 252
A_V_LDS = 32768


def acc(t, u):
    return R_ACC + (t * 3 + u) * 4


def bfrag(s, u):
    return R_B + ((s % 3) * 3 + u) * 4


def attn_body(g, kv_first):
    def tr_reads(s, t):
        for j in range(2):
            d = R_A + t * 4 + j * 2
            g.dsread("ds_read_b64_tr_b16 %s, %s offset:%d" % (vr(d, 2), vr(V_A + t), (s % 4) * 8192 + j * 1024),
                     "A%d_%d" % (s, t), dst=rng(d, 2), addr=[V_A + t])

    def issue_w(c):
        for i in range(2):
            g.s("s_mov_b32 %s, %d" % (sr(S_WOFF), c * 262144 + i * 32768))
            g.s("s_add_u32 m0, %s, %d" % (sr(S_M0W), (c % 4) * 8192 + i * 1024), m0=True)
            g.vload("buffer_load_dwordx4 %s, %s, %s offen lds" % (vr(V_W), sr(SRD_W, 4), sr(S_WOFF)),
                    "W%d" % c, addr=[V_W], lds=True)

    def issue_b(s):
        for u in range(3):
            g.s("s_mov_b32 %s, %d" % (sr(S_TMP), u * 16384))
            d = bfrag(s, u)
            g.vload("buffer_load_dwordx4 %s, %s, %s, %s offen offset:%d" % (vr(d, 4), vr(V_X), sr(SRD_X, 4), sr(S_TMP), s * 64),
                    "B%d" % s, dst=rng(d, 4), addr=[V_X])

    def issue_k(i):
        g.s("s_mov_b32 %s, %d" % (sr(S_TMP), i * 4096))
        for m in range(4):
            d = R_K + (i * 4 + m) * 4
            g.vload("buffer_load_dwordx4 %s, %s, %s, %s offen offset:%d%s" % (vr(d, 4), vr(V_K), sr(SRD_K, 4), sr(S_TMP), m * 1024, NT),
                    "K%d" % i, dst=rng(d, 4), addr=[V_K])

    def issue_v(i):
        g.s("s_mov_b32 %s, %d" % (sr(S_TMP), i * 1024))
        g.s("s_add_u32 m0, %s, %d" % (sr(S_M0V), i * 1024), m0=True)
        g.vload("buffer_load_dwordx4 %s, %s, %s offen%s lds" % (vr(V_VD0 + (i & 1)), sr(SRD_V, 4), sr(S_TMP), NT),
                "V", addr=[V_VD0 + (i & 1)], lds=True)

    def issue_kv():
        for i in range(3):
            issue_k(i)
        for i in range(12):
            issue_v(i)

    stamp(g, 0, V_T)
    if kv_first:
        issue_kv()
    for c in range(3):
        issue_w(c)
    for s in range(3):
        issue_b(s)
    nsteps = 16
    g.wait_vm(["W0", "W1"])
    g.barrier()
    for t in range(8):
        tr_reads(0, t)
    for s in range(nsteps):
        g.comment("---- gemm step %d" % s)
        if s > 0:
            g.wait_vm("W%d" % (s + 1))
            g.barrier()
        if s % 4 == 0:
            stamp(g, 0, V_T)
        if s + 3 < nsteps:
            issue_w(s + 3)
        for t in range(8):
            g.wait_lg("A%d_%d" % (s, t))
            if t == 0:
                g.wait_vm("B%d" % s)
            for u in range(3):
                g.mfma(acc(t, u), R_A + t * 4, bfrag(s, u), None if s == 0 else acc(t, u))
            if s + 1 < nsteps:
                tr_reads(s + 1, t)
        if s + 3 < nsteps:
            issue_b(s + 3)
        if s == 12 and not kv_first:
            issue_kv()

    stamp(g, 0, V_T)
    for p in range(4):
        for u in range(3):
            pack_pair(g, acc(2 * p, u), acc(2 * p + 1, u))
    KA = 212
    KW = 220
    for m in range(4):
        vop(g, "v_xor_b32 %s, %d, %s" % (vr(KW + m), m * 64, vr(V_KW)), KW + m, [V_KW])
    for c in range(8):
        vop(g, "v_xor_b32 %s, %d, %s" % (vr(KA + c), c * 32, vr(V_KR)), KA + c, [V_KR])

    def sacc(kt, u):
        i = kt * 3 + u
        if i < 12:
            return acc(1 + 2 * (i // 3), i % 3)
        return R_B + (i - 12) * 4

    def k_write(i, slot_off):
        g.wait_vm("K%d" % i)
        for m in range(4):
            d = R_K + (i * 4 + m) * 4
            g.dswrite("ds_write_b128 %s, %s offset:%d" % (vr(KW + m), vr(d, 4), slot_off + m * 1024), "KW", data=rng(d, 4), addr=[KW + m])

    def k_reads(n, slot_off):
        for p in range(4):
            for j in range(2):
                d = R_A + ((n & 1) * 4 + p) * 4 + 2 * j
                g.dsread("ds_read_b64 %s, %s offset:%d" % (vr(d, 2), vr(KA + 2 * p + j), slot_off), "KF%d_%d" % (n, p), dst=rng(d, 2), addr=[KA + 2 * p + j])

    def s_tile(n, kt):
        for p in range(4):
            g.wait_lg("KF%d_%d" % (n, p))
            for u in range(3):
                g.mfma(sacc(kt, u), R_A + ((n & 1) * 4 + p) * 4, acc(2 * p, u), None if p == 0 else sacc(kt, u))

    g.barrier()
    k_write(0, 0)
    k_write(1, 4096)
    g.wait_lg("KW")
    g.barrier()
    r1 = [0, 1, 3, 4]
    k_reads(0, 0)
    for n in range(4):
        if n + 1 < 4:
            k_reads(n + 1, (n + 1) * 4096)
        s_tile(n, r1[n])
    g.barrier()
    for m in range(4):
        vop(g, "v_subrev_u32 %s, %s, %s" % (vr(KW + m), sr(S_W4K), vr(KW + m)), KW + m, [KW + m])
    for c in range(8):
        vop(g, "v_subrev_u32 %s, %s, %s" % (vr(KA + c), sr(S_B8K), vr(KA + c)), KA + c, [KA + c])
    k_write(2, 0)
    g.wait_lg("KW")
    g.barrier()
    k_reads(4, 0)
    k_reads(5, 4096)
    s_tile(4, 2)
    s_tile(5, 5)
    stamp(g, 0, V_T)
    g.wait_vm("V")
    g.barrier()
    for t in range(8):
        vop(g, "v_add_u32 %s, %s, %s" % (vr(V_A + t), vr(V_A + t), vr(V_DELTA)), V_A + t, [V_A + t, V_DELTA])

    def v_reads(pp, t):
        for j in range(2):
            d = R_A + t * 4 + j * 2
            g.dsread("ds_read_b64_tr_b16 %s, %s offset:%d" % (vr(d, 2), vr(V_A + t), pp * 8192 + j * 4096),
                     "VT%d_%d" % (pp, t), dst=rng(d, 2), addr=[V_A + t])

    for t in range(8):
        v_reads(0, t)
    stamp(g, 0, V_T)

    def pfrag(pp, u):
        return R_K + (pp * 3 + u) * 4
    TMP = R_K + 36
    for u in range(3):
        a, b = TMP, TMP + 1
        for kt in range(6):
            r = sacc(kt, u)
            for rep in range(2):
                g.valu("v_cvt_pk_bf16_f32 %s, %s, %s" % (vr(a), vr(r), vr(r + 1)), dst=[a], src=[r, r + 1])
                g.valu("v_cvt_pk_bf16_f32 %s, %s, %s" % (vr(b), vr(r + 2), vr(r + 3)), dst=[b], src=[r + 2, r + 3])
                vop(g, "v_lshlrev_b32 %s, 16, %s" % (vr(r), vr(a)), r, [a])
                vop(g, "v_and_b32 %s, 0xffff0000, %s" % (vr(r + 1), vr(a)), r + 1, [a])
                vop(g, "v_lshlrev_b32 %s, 16, %s" % (vr(r + 2), vr(b)), r + 2, [b])
                vop(g, "v_and_b32 %s, 0xffff0000, %s" % (vr(r + 3), vr(b)), r + 3, [b])
                if rep == 0:
                    g.valu("v_pk_mul_f32 %s, %s, %s" % (vr(r, 2), vr(r, 2), sr(S_SC, 2)), dst=[r, r + 1], src=[r, r + 1])
                    g.valu("v_pk_mul_f32 %s, %s, %s" % (vr(r + 2, 2), vr(r + 2, 2), sr(S_SC, 2)), dst=[r + 2, r + 3], src=[r + 2, r + 3])
        vals = [sacc(kt, u) + r for kt in range(6) for r in range(4)]
        m = TMP + 2
        vop(g, "v_max3_f32 %s, %s, %s, %s" % (vr(m), vr(vals[0]), vr(vals[1]), vr(vals[2])), m, vals[0:3])
        i = 3
        while i < 24:
            if i + 1 < 24:
                vop(g, "v_max3_f32 %s, %s, %s, %s" % (vr(m), vr(m), vr(vals[i]), vr(vals[i + 1])), m, [m, vals[i], vals[i + 1]])
                i += 2
            else:
                vop(g, "v_max_f32 %s, %s, %s" % (vr(m), vr(m), vr(vals[i])), m, [m, vals[i]])
                i += 1
        xlane_reduce(g, m, TMP + 3, "v_max_f32")
        for v in vals:
            vop(g, "v_sub_f32 %s, %s, %s" % (vr(v), vr(v), vr(m)), v, [v, m])
        for k in range(0, 24, 2):
            v = vals[k]
            g.valu("v_pk_mul_f32 %s, %s, %s" % (vr(v, 2), vr(v, 2), sr(S_L2E, 2)), dst=[v, v + 1], src=[v, v + 1])
        for v in vals:
            g.valu("v_exp_f32 %s, %s" % (vr(v), vr(v)), dst=[v], src=[v], trans=True)
        sm = TMP + 4
        g.valu("v_pk_add_f32 %s, %s, %s" % (vr(sm, 2), vr(vals[0], 2), vr(vals[2], 2)), dst=[sm, sm + 1], src=vals[0:4])
        for k in range(4, 24, 2):
            g.valu("v_pk_add_f32 %s, %s, %s" % (vr(sm, 2), vr(sm, 2), vr(vals[k], 2)), dst=[sm, sm + 1], src=[sm, sm + 1, vals[k], vals[k] + 1])
        vop(g, "v_add_f32 %s, %s, %s" % (vr(sm), vr(sm), vr(sm + 1)), sm, [sm, sm + 1])
        xlane_reduce(g, sm, TMP + 3, "v_add_f32")
        g.valu("v_rcp_f32 %s, %s" % (vr(sm), vr(sm)), dst=[sm], src=[sm], trans=True)
        vop(g, "v_mov_b32 %s, %s" % (vr(sm + 1), vr(sm)), sm + 1, [sm])
        for k in range(0, 24, 2):
            v = vals[k]
            g.valu("v_pk_mul_f32 %s, %s, %s" % (vr(v, 2), vr(v, 2), vr(sm, 2)), dst=[v, v + 1], src=[v, v + 1, sm, sm + 1])
        for pp in range(3):
            d = pfrag(pp, u)
            lo, hi = sacc(2 * pp, u), sacc(2 * pp + 1, u)
            g.valu("v_cvt_pk_bf16_f32 %s, %s, %s" % (vr(d), vr(lo), vr(lo + 1)), dst=[d], src=[lo, lo + 1])
            g.valu("v_cvt_pk_bf16_f32 %s, %s, %s" % (vr(d + 1), vr(lo + 2), vr(lo + 3)), dst=[d + 1], src=[lo + 2, lo + 3])
            g.valu("v_cvt_pk_bf16_f32 %s, %s, %s" % (vr(d + 2), vr(hi), vr(hi + 1)), dst=[d + 2], src=[hi, hi + 1])
            g.valu("v_cvt_pk_bf16_f32 %s, %s, %s" % (vr(d + 3), vr(hi + 2), vr(hi + 3)), dst=[d + 3], src=[hi + 2, hi + 3])
    stamp(g, 0, V_T)
    for pp in range(3):
        for t in range(8):
            g.wait_lg("VT%d_%d" % (pp, t))
            for u in range(3):
                g.mfma(acc(t, u), R_A + t * 4, pfrag(pp, u), None if pp == 0 else acc(t, u))
            if pp < 2:
                v_reads(pp + 1, t)
    stamp(g, 0, V_T)
    for p in range(4):
        for u in range(3):
            pack_pair(g, acc(2 * p, u), acc(2 * p + 1, u))
            g.s("s_mov_b32 %s, %d" % (sr(S_TMP), u * 131072))
            d = acc(2 * p, u)
            g.vstore("buffer_store_dwordx4 %s, %s, %s, %s offen offset:%d" % (vr(d, 4), vr(V_O), sr(SRD_WS, 4), sr(S_TMP), p * 1024),
                     "ST", data=rng(d, 4), addr=[V_O])
    if STAMP:
        g.wait_vm("ST")
        stamp(g, 0, V_T)
    g.s("s_endpgm")


def gen_attn():
    g = Gen()
    g.s("s_cmp_ge_u32 s2, 512")
    g.s("s_cbranch_scc1 attn_end")
    lane_setup(g)
    g.s("s_and_b32 s4, s2, 7")
    g.s("s_lshr_b32 s5, s2, 3")
    g.s("s_lshr_b32 s6, s4, 2")
    g.s("s_and_b32 s7, s4, 3")
    g.s("s_lshl_b32 s7, s7, 3")
    g.s("s_lshr_b32 s16, s5, 3")
    g.s("s_add_u32 s43, s7, s16")
    g.s("s_lshr_b32 s40, s16, 2")
    g.s("s_and_b32 s5, s5, 7")
    g.s("s_mul_i32 s16, s6, 40")
    g.s("s_add_u32 s18, s0, s16")
    g.s("s_addc_u32 s19, s1, 0")
    g.s("s_load_dwordx8 s[8:15], s[18:19], 0")
    g.s("s_load_dwordx2 s[16:17], s[0:1], 96")
    g.s("s_lshr_b32 s41, s3, 1")
    g.s("s_and_b32 s42, s3, 1")
    g.s("s_lshl_b32 s44, s5, 1")
    g.s("s_add_u32 s44, s44, s41")
    g.s("s_lshl_b32 s45, s44, 5")
    g.s("s_add_u32 s45, s45, s43")
    g.s("s_mul_i32 s45, s45, 24576")
    g.s("s_mov_b32 %s, 0x3db504f3" % sr(S_SC))
    g.s("s_mov_b32 %s, 0x3db504f3" % sr(S_SC + 1))
    g.s("s_mov_b32 %s, 0x3fb8aa3b" % sr(S_L2E))
    g.s("s_mov_b32 %s, 0x3fb8aa3b" % sr(S_L2E + 1))
    g.s("s_mul_i32 s55, s44, 98304")
    g.s("s_mul_i32 s56, s42, 49152")
    g.s("s_add_u32 s55, s55, s56")
    vop(g, "v_lshlrev_b32 v8, 10, v2", 8, [2])
    vop(g, "v_lshl_add_u32 v8, v3, 4, v8", 8, [3, 8])
    vop(g, "v_add_u32 %s, s55, v8" % vr(V_X), V_X, [8])
    g.s("s_mul_i32 s55, s42, 12288")
    g.s("s_add_u32 s55, s55, s45")
    vop(g, "v_lshlrev_b32 v8, 4, v1", 8, [1])
    vop(g, "v_add_u32 %s, s55, v8" % vr(V_K), V_K, [8])
    vop(g, "v_xor_b32 v8, v2, v3", 8, [2, 3])
    vop(g, "v_lshlrev_b32 v8, 4, v8", 8, [8])
    vop(g, "v_lshl_add_u32 v8, v3, 8, v8", 8, [3, 8])
    g.s("s_lshl_b32 s55, s3, 13")
    vop(g, "v_add_u32 %s, s55, v8" % vr(V_KW), V_KW, [8])
    vop(g, "v_lshrrev_b32 v8, 1, v3", 8, [3])
    vop(g, "v_xor_b32 v8, v8, v2", 8, [8, 2])
    vop(g, "v_lshlrev_b32 v8, 4, v8", 8, [8])
    vop(g, "v_lshl_add_u32 v8, v2, 8, v8", 8, [2, 8])
    vop(g, "v_and_b32 v9, 1, v3", 9, [3])
    vop(g, "v_lshl_add_u32 v8, v9, 3, v8", 8, [8, 9])
    g.s("s_lshl_b32 s55, s41, 14")
    vop(g, "v_add_u32 %s, s55, v8" % vr(V_KR), V_KR, [8])
    g.s("s_lshl_b32 %s, s3, 12" % sr(S_W4K))
    g.s("s_lshl_b32 %s, s41, 13" % sr(S_B8K))
    g.s("s_mul_i32 s55, s42, 12288")
    g.s("s_add_u32 s55, s55, s45")
    for par in range(2):
        vop(g, "v_add_u32 v8, %d, v3" % (4 * par), 8, [3])
        vop(g, "v_lshlrev_b32 v8, 1, v8", 8, [8])
        vop(g, "v_xor_b32 v8, v8, v2", 8, [8, 2])
        vop(g, "v_lshlrev_b32 v8, 4, v8", 8, [8])
        vop(g, "v_lshl_add_u32 v8, v3, 8, v8", 8, [3, 8])
        vop(g, "v_add_u32 %s, s55, v8" % vr(V_VD0 + par), V_VD0 + par, [8])
    g.s("s_and_b32 s55, s3, 1")
    g.s("s_lshl_b32 s55, s55, 2")
    vop(g, "v_or_b32 v8, s55, v3", 8, [3])
    vop(g, "v_lshlrev_b32 v8, 1, v8", 8, [8])
    vop(g, "v_xor_b32 v8, v8, v2", 8, [8, 2])
    vop(g, "v_lshlrev_b32 v8, 4, v8", 8, [8])
    vop(g, "v_lshl_add_u32 v8, v3, 13, v8", 8, [3, 8])
    g.s("s_lshl_b32 s55, s3, 16")
    g.s("s_lshl_b32 s56, s43, 8")
    g.s("s_add_u32 s55, s55, s56")
    vop(g, "v_add_u32 %s, s55, v8" % vr(V_W), V_W, [8])
    g.s("s_lshl_b32 %s, s3, 11" % sr(S_M0W))
    vop(g, "v_lshlrev_b32 v8, 3, v3", 8, [3])
    vop(g, "v_add_u32 v8, v8, v4", 8, [8, 4])
    vop(g, "v_lshlrev_b32 v8, 8, v8", 8, [8])
    vop(g, "v_lshl_add_u32 v8, v5, 3, v8", 8, [8, 5])
    for t in range(8):
        vop(g, "v_xor_b32 v9, %d, v6" % t, 9, [6])
        vop(g, "v_lshl_add_u32 %s, v9, 5, v8" % vr(V_A + t), V_A + t, [9, 8])
    g.s("s_mul_i32 s55, s41, 24576")
    g.s("s_add_u32 s55, s55, %d" % A_V_LDS)
    vop(g, "v_lshlrev_b32 v9, 2, v3", 9, [3])
    vop(g, "v_add_u32 v9, v9, v4", 9, [9, 4])
    vop(g, "v_lshlrev_b32 v9, 8, v9", 9, [9])
    vop(g, "v_lshl_add_u32 v9, v5, 3, v9", 9, [9, 5])
    vop(g, "v_add_u32 v9, s55, v9", 9, [9])
    vop(g, "v_sub_u32 %s, v9, v8" % vr(V_DELTA), V_DELTA, [9, 8])
    g.s("s_mul_i32 s56, s42, 12288")
    g.s("s_add_u32 %s, s55, s56" % sr(S_M0V))
    g.s("s_mul_i32 s55, s44, 6")
    g.s("s_mul_i32 s56, s42, 3")
    g.s("s_add_u32 s55, s55, s56")
    g.s("s_lshl_b32 s55, s55, 7")
    g.s("s_lshl_b32 s56, s43, 2")
    g.s("s_add_u32 s55, s55, s56")
    g.s("s_lshl_b32 s55, s55, 10")
    g.s("s_mul_i32 s56, s6, %d" % O_BLOCK_BYTES)
    g.s("s_add_u32 s55, s55, s56")
    vop(g, "v_lshlrev_b32 v8, 4, v1", 8, [1])
    vop(g, "v_add_u32 %s, s55, v8" % vr(V_O), V_O, [8])
    g.waitcnt(lg=0)
    make_srd(g, SRD_X, 8, 1572864)
    make_srd(g, SRD_K, 10, 12582912)
    make_srd(g, SRD_V, 12, 12582912)
    make_srd(g, SRD_W, 14, 4194304)
    make_srd(g, SRD_WS, 16, WS_BYTES)
    if TOUCH:
        g.s("s_and_b32 s55, s5, 3")
        g.s("s_lshl_b32 s55, s55, 2")
        g.s("s_add_u32 s55, s55, s3")
        g.s("s_lshl_b32 s55, s55, 18")
        g.s("s_lshl_b32 s56, s43, 8")
        g.s("s_add_u32 s55, s55, s56")
        vop(g, "v_lshrrev_b32 v8, 2, v1", 8, [1])
        vop(g, "v_lshlrev_b32 v8, 13, v8", 8, [8])
        vop(g, "v_lshl_add_u32 v8, v5, 6, v8", 8, [5, 8])
        vop(g, "v_add_u32 v8, s55, v8", 8, [8])
        for i in range(2):
            g.s("s_mov_b32 %s, %d" % (sr(S_TMP), i * 16 * 8192))
            g.vload("buffer_load_dword %s, v8, %s, %s offen" % (vr(V_T + 3), sr(SRD_W, 4), sr(S_TMP)), "TCH", dst=[V_T + 3], addr=[8])
        g.s("s_mul_i32 s55, s44, 98304")
        g.s("s_mul_i32 s56, s42, 49152")
        g.s("s_add_u32 s55, s55, s56")
        g.s("s_and_b32 s56, s43, 1")
        g.s("s_mul_i32 s56, s56, 24576")
        g.s("s_add_u32 s55, s55, s56")
        vop(g, "v_lshlrev_b32 v9, 6, v1", 9, [1])
        vop(g, "v_add_u32 v9, s55, v9", 9, [9])
        for i in range(6):
            g.s("s_mov_b32 %s, %d" % (sr(S_TMP), i * 4096))
            g.vload("buffer_load_dword %s, v9, %s, %s offen" % (vr(V_T + 3), sr(SRD_X, 4), sr(S_TMP)), "TCH", dst=[V_T + 3], addr=[9])
    g.s("s_cmp_eq_u32 s40, 1")
    g.s("s_cbranch_scc1 attn_kvfirst")
    t0 = g.text()
    gb = Gen()
    gb.vmq = list(g.vmq)
    _stamp_n[0] = 0
    attn_body(gb, False)
    ga = Gen()
    ga.vmq = list(g.vmq)
    _stamp_n[0] = 0
    ga.label("attn_kvfirst")
    attn_body(ga, True)
    ga.label("attn_end")
    ga.s("s_endpgm")
    return t0 + gb.text() + ga.text()


O_ACC = 0
O_A = 96
O_B = 112
O_VA = 184
O_VX = 188
O_VW = 189
O_VO = 190
O_VL = 191
O_VT = 192


def gen_oproj():
    g = Gen()
    _stamp_n[0] = 0

    def oacc(t, u):
        return O_ACC + (t * 6 + u) * 4

    def bfr(s, u):
        return O_B + ((s % 3) * 6 + u) * 4

    g.s("s_cmp_ge_u32 s2, 256")
    g.s("s_cbranch_scc1 oproj_end")
    lane_setup(g)
    g.s("s_and_b32 s4, s2, 7")
    g.s("s_lshr_b32 s5, s2, 3")
    g.s("s_lshr_b32 s6, s4, 2")
    g.s("s_and_b32 s7, s4, 3")
    g.s("s_and_b32 s40, s5, 3")
    g.s("s_lshr_b32 s41, s5, 2")
    g.s("s_mul_i32 s16, s6, 40")
    g.s("s_add_u32 s18, s0, s16")
    g.s("s_addc_u32 s19, s1, 0")
    g.s("s_load_dwordx2 s[14:15], s[18:19], 32")
    g.s("s_load_dwordx2 s[16:17], s[0:1], 96")
    g.s("s_load_dwordx2 s[12:13], s[0:1], 80")
    g.s("s_mul_i32 s55, s7, 24")
    g.s("s_mul_i32 s56, s40, 6")
    g.s("s_add_u32 s42, s55, s56")
    g.s("s_lshl_b32 s55, s42, 7")
    g.s("s_lshl_b32 s56, s3, 4")
    g.s("s_add_u32 s55, s55, s56")
    g.s("s_lshl_b32 s55, s55, 10")
    g.s("s_mul_i32 s56, s6, %d" % O_BLOCK_BYTES)
    g.s("s_add_u32 s55, s55, s56")
    vop(g, "v_lshlrev_b32 %s, 4, v1" % vr(O_VL), O_VL, [1])
    vop(g, "v_add_u32 %s, s55, %s" % (vr(O_VX), vr(O_VL)), O_VX, [O_VL])
    vop(g, "v_and_b32 v8, 7, v1", 8, [1])
    vop(g, "v_lshlrev_b32 v9, 1, v3", 9, [3])
    vop(g, "v_xor_b32 v8, v8, v9", 8, [8, 9])
    vop(g, "v_lshlrev_b32 v8, 4, v8", 8, [8])
    vop(g, "v_lshrrev_b32 v9, 3, v1", 9, [1])
    vop(g, "v_lshl_add_u32 v8, v9, 10, v8", 8, [8, 9])
    g.s("s_lshl_b32 s55, s41, 7")
    g.s("s_lshl_b32 s56, s3, 19")
    g.s("s_add_u32 s55, s55, s56")
    vop(g, "v_add_u32 %s, s55, v8" % vr(O_VW), O_VW, [8])
    g.s("s_lshl_b32 %s, s3, 14" % sr(S_M0W))
    vop(g, "v_lshlrev_b32 v8, 2, v3", 8, [3])
    vop(g, "v_add_u32 v8, v8, v4", 8, [8, 4])
    vop(g, "v_bfe_u32 v9, v8, 1, 2", 9, [8])
    vop(g, "v_lshlrev_b32 v8, 7, v8", 8, [8])
    vop(g, "v_lshl_add_u32 v8, v5, 3, v8", 8, [8, 5])
    vop(g, "v_add_u32 v8, %s, v8" % sr(S_M0W), 8, [8])
    for t in range(4):
        vop(g, "v_xor_b32 v10, %d, v9" % t, 10, [9])
        vop(g, "v_lshl_add_u32 %s, v10, 5, v8" % vr(O_VA + t), O_VA + t, [10, 8])
    g.s("s_lshl_b32 s55, s42, 4")
    g.s("s_lshl_b32 s55, s55, 10")
    g.s("s_lshl_b32 s56, s6, 9")
    g.s("s_add_u32 s55, s55, s56")
    g.s("s_lshl_b32 s56, s41, 6")
    g.s("s_add_u32 s55, s55, s56")
    g.s("s_lshl_b32 s55, s55, 1")
    vop(g, "v_lshlrev_b32 v8, 11, v2", 8, [2])
    vop(g, "v_lshl_add_u32 v8, v3, 3, v8", 8, [3, 8])
    vop(g, "v_add_u32 %s, s55, v8" % vr(O_VO), O_VO, [8])
    g.waitcnt(lg=0)
    make_srd(g, SRD_W, 14, 4194304)
    make_srd(g, SRD_WS, 16, WS_BYTES)
    make_srd(g, SRD_OUT, 12, 16 * 96 * 1024 * 2)

    def issue_w(c):
        for i in range(4):
            g.s("s_mov_b32 %s, %d" % (sr(S_WOFF), c * 32768 + i * 8192))
            g.s("s_add_u32 m0, %s, %d" % (sr(S_M0W), (c % 4) * 4096 + i * 1024), m0=True)
            g.vload("buffer_load_dwordx4 %s, %s, %s offen lds" % (vr(O_VW), sr(SRD_W, 4), sr(S_WOFF)),
                    "W%d" % c, addr=[O_VW], lds=True)

    def issue_b(s):
        for u in range(6):
            g.s("s_mov_b32 %s, %d" % (sr(S_TMP), u * 131072 + (s >> 2) * 4096))
            d = bfr(s, u)
            g.vload("buffer_load_dwordx4 %s, %s, %s, %s offen offset:%d" % (vr(d, 4), vr(O_VX), sr(SRD_WS, 4), sr(S_TMP), (s & 3) * 1024),
                    "B%d" % s, dst=rng(d, 4), addr=[O_VX])

    def tr_reads(s, t):
        for j in range(2):
            d = O_A + t * 4 + j * 2
            g.dsread("ds_read_b64_tr_b16 %s, %s offset:%d" % (vr(d, 2), vr(O_VA + t), (s % 4) * 4096 + j * 2048),
                     "A%d_%d" % (s, t), dst=rng(d, 2), addr=[O_VA + t])

    stamp(g, 1, O_VT)
    if TOUCH:
        g.s("s_lshl_b32 s55, s3, 19")
        g.s("s_lshl_b32 s56, s40, 17")
        g.s("s_add_u32 s55, s55, s56")
        g.s("s_lshl_b32 s56, s41, 7")
        g.s("s_add_u32 s55, s55, s56")
        vop(g, "v_lshrrev_b32 v8, 1, v1", 8, [1])
        vop(g, "v_lshlrev_b32 v8, 10, v8", 8, [8])
        vop(g, "v_and_b32 v9, 1, v1", 9, [1])
        vop(g, "v_lshl_add_u32 v8, v9, 6, v8", 8, [8, 9])
        vop(g, "v_add_u32 v8, s55, v8", 8, [8])
        for i in range(4):
            g.s("s_mov_b32 %s, %d" % (sr(S_TMP), i * 32768))
            g.vload("buffer_load_dword %s, v8, %s, %s offen" % (vr(O_VT + 3), sr(SRD_W, 4), sr(S_TMP)), "TCH", dst=[O_VT + 3], addr=[8])
        vop(g, "v_sub_u32 v9, %s, %s" % (vr(O_VX), vr(O_VL)), 9, [O_VX, O_VL])
        vop(g, "v_lshrrev_b32 v10, 5, v1", 10, [1])
        vop(g, "v_lshl_add_u32 v9, v10, 17, v9", 9, [9, 10])
        vop(g, "v_and_b32 v10, 31, v1", 10, [1])
        vop(g, "v_lshl_add_u32 v9, v10, 6, v9", 9, [9, 10])
        g.s("s_lshl_b32 s55, s41, 11")
        vop(g, "v_add_u32 v9, s55, v9", 9, [9])
        for i in range(3):
            g.s("s_mov_b32 %s, %d" % (sr(S_TMP), i * 262144))
            g.vload("buffer_load_dword %s, v9, %s, %s offen" % (vr(O_VT + 3), sr(SRD_WS, 4), sr(S_TMP)), "TCH", dst=[O_VT + 3], addr=[9])
    for c in range(3):
        issue_w(c)
        issue_b(c)
    g.wait_vm("W0")
    for t in range(4):
        tr_reads(0, t)
    nsteps = 16
    for s in range(nsteps):
        g.comment("---- step %d" % s)
        if s % 4 == 0:
            stamp(g, 1, O_VT)
        if s + 3 < nsteps:
            issue_w(s + 3)
        for t in range(4):
            g.wait_lg("A%d_%d" % (s, t))
            if t == 0:
                g.wait_vm("B%d" % s)
            for u in range(6):
                g.mfma(oacc(t, u), O_A + t * 4, bfr(s, u), None if s == 0 else oacc(t, u))
            if s + 1 < nsteps:
                if t == 0:
                    g.wait_vm("W%d" % (s + 1))
                tr_reads(s + 1, t)
        if s + 3 < nsteps:
            issue_b(s + 3)
    stamp(g, 1, O_VT)
    g.s("s_lshl_b32 s55, s3, 13")
    g.s("s_lshl_b32 s56, s3, 10")
    vop(g, "v_add_u32 %s, s55, %s" % (vr(O_VA), vr(O_VL)), O_VA, [O_VL])
    vop(g, "v_add_u32 %s, s56, %s" % (vr(O_VA + 1), vr(O_VL)), O_VA + 1, [O_VL])
    vop(g, "v_add_u32 %s, 0x10000, %s" % (vr(O_VA + 2), vr(O_VA)), O_VA + 2, [O_VA])
    vop(g, "v_add_u32 %s, 0x10000, %s" % (vr(O_VA + 3), vr(O_VA + 1)), O_VA + 3, [O_VA + 1])
    g.barrier()
    for ph in range(3):
        wa = O_VA + 2 * (ph & 1)
        ra = wa + 1
        for i in range(8):
            d = O_ACC + (8 * ph + i) * 4
            g.dswrite("ds_write_b128 %s, %s offset:%d" % (vr(wa), vr(d, 4), i * 1024), "RW", data=rng(d, 4), addr=[wa])
        g.wait_lg("RW")
        g.barrier()
        T = O_VT + 4
        for w2 in range(8):
            d = T + w2 * 4
            g.dsread("ds_read_b128 %s, %s offset:%d" % (vr(d, 4), vr(ra), w2 * 8192), "RR%d" % w2, dst=rng(d, 4), addr=[ra])
        for w2 in range(1, 8):
            g.wait_lg("RR%d" % w2)
            for h in range(2):
                d = T + h * 2
                s_ = T + w2 * 4 + h * 2
                g.valu("v_pk_add_f32 %s, %s, %s" % (vr(d, 2), vr(d, 2), vr(s_, 2)), dst=[d, d + 1], src=[d, d + 1, s_, s_ + 1])
        o = O_VT + 40 + ph * 2
        g.valu("v_cvt_pk_bf16_f32 %s, %s, %s" % (vr(o), vr(T), vr(T + 1)), dst=[o], src=[T, T + 1])
        g.valu("v_cvt_pk_bf16_f32 %s, %s, %s" % (vr(o + 1), vr(T + 2), vr(T + 3)), dst=[o + 1], src=[T + 2, T + 3])
        g.s("s_add_u32 s55, s3, %d" % (8 * ph))
        g.s("s_mul_i32 s56, s55, 43")
        g.s("s_lshr_b32 s56, s56, 8")
        g.s("s_mul_i32 s57, s56, 6")
        g.s("s_sub_u32 s57, s55, s57")
        g.s("s_lshl_b32 s57, s57, 15")
        g.s("s_lshl_b32 s56, s56, 5")
        g.s("s_add_u32 s57, s57, s56")
        g.vstore("buffer_store_dwordx2 %s, %s, %s, s57 offen" % (vr(o, 2), vr(O_VO), sr(SRD_OUT, 4)), "ST", data=rng(o, 2), addr=[O_VO])
    if STAMP:
        g.wait_vm("ST")
        stamp(g, 1, O_VT)
    g.label("oproj_end")
    g.s("s_endpgm")
    return g.text()


HEADER = """; Kernarg layout for this problem (104 bytes, ptrs only, base s[0:1]):
; @launch kernel=attn_kernel grid=(512,1,1) block=(256,1,1) lds=81920
; @launch kernel=oproj_kernel grid=(256,1,1) block=(512,1,1) lds=131072
.amdgcn_target "amdgcn-amd-amdhsa--gfx950"
.text
"""


def kernel_text(name, body):
    return (".globl %s\n.p2align 8\n.type %s,@function\n%s:\n" % (name, name, name)) + body


def kd(name, vgpr, sgpr):
    acc_off = (vgpr + 3) // 4 * 4
    return """.p2align 6
.amdhsa_kernel %s
  .amdhsa_next_free_vgpr %d
  .amdhsa_next_free_sgpr %d
  .amdhsa_accum_offset %d
  .amdhsa_group_segment_fixed_size 0
  .amdhsa_kernarg_size 104
  .amdhsa_user_sgpr_count 2
  .amdhsa_user_sgpr_kernarg_segment_ptr 1
  .amdhsa_system_sgpr_workgroup_id_x 1
.end_amdhsa_kernel
""" % (name, vgpr, sgpr, acc_off)


def main():
    out = HEADER
    out += kernel_text("attn_kernel", gen_attn())
    out += kernel_text("oproj_kernel", gen_oproj())
    out += '.section .rodata,"a"\n'
    out += kd("attn_kernel", 256, 64)
    out += kd("oproj_kernel", 256, 64)
    path = sys.argv[1] if len(sys.argv) > 1 else "cdna_kernels/%s.s" % NAME
    open(path, "w").write(out)
    print("wrote", path, len(out), "bytes")


if __name__ == "__main__":
    main()
```

```python
import sys, os
sys.path.insert(0, os.path.dirname(os.path.abspath(__file__)))
from asmgen import Gen, vr, sr

NAME = "concat_heads__gqa_block_cached__gqa_block_cached__near_ridge"
O_BLOCK_BYTES = 1536 * 4096 * 2
WS_BYTES = 268435456

STAMP = int(os.environ.get("STAMP", "0"))
STAMP_BASE = 200 * 1024 * 1024
NT = os.environ.get("NT", " nt")
TOUCH = int(os.environ.get("TOUCH", "1"))
TWAIT = int(os.environ.get("TWAIT", "1"))
WOPF = int(os.environ.get("WOPF", "1"))
OTOUCH = int(os.environ.get("OTOUCH", "0"))
_stamp_n = [0]

S_WAVE = 3
SRD_X = 20
SRD_K = 24
SRD_V = 28
SRD_W = 32
SRD_WS = 36
SRD_OUT = 24
SRD_WO = 64
S_M0W = 46
S_TMP = 47
S_WOFF = 48
S_M0V = 49
S_SC = 50
S_L2E = 52
S_W4K = 54
S_B8K = 57


def rng(a, n):
    return list(range(a, a + n))


def stamp(g, kid, vt):
    if not STAMP:
        return
    n = _stamp_n[0]
    _stamp_n[0] += 1
    g.s("s_memtime s[60:61]")
    g.waitcnt(lg=0)
    g.lgq = []
    g.s("s_lshl_b32 s62, s2, 8")
    g.s("s_add_u32 s62, s62, %d" % (STAMP_BASE + kid * 131072 + n * 8))
    g.s("s_mul_i32 s63, s3, 1048576")
    g.s("s_add_u32 s62, s62, s63")
    g.valu("v_mov_b32 %s, s60" % vr(vt), dst=[vt])
    g.valu("v_mov_b32 %s, s61" % vr(vt + 1), dst=[vt + 1])
    g.valu("v_mov_b32 %s, s62" % vr(vt + 2), dst=[vt + 2])
    g.s("s_mov_b64 s[58:59], exec")
    g.s("s_mov_b64 exec, 1")
    g.vstore("buffer_store_dwordx2 %s, %s, %s, 0 offen" % (vr(vt, 2), vr(vt + 2), sr(SRD_WS, 4)), "STAMP", data=[vt, vt + 1], addr=[vt + 2])
    g.s("s_mov_b64 exec, s[58:59]")


def make_srd(g, srd, ptr, nbytes):
    g.s("s_mov_b32 %s, %s" % (sr(srd), sr(ptr)))
    g.s("s_and_b32 %s, %s, 0xffff" % (sr(srd + 1), sr(ptr + 1)))
    g.s("s_mov_b32 %s, %d" % (sr(srd + 2), nbytes))
    g.s("s_mov_b32 %s, 0x00020000" % sr(srd + 3))


def vop(g, text, dst, src=()):
    g.valu(text, dst=[dst] if isinstance(dst, int) else dst, src=src)


def lane_setup(g):
    vop(g, "v_lshrrev_b32 v7, 6, v0", 7, [0])
    vop(g, "v_and_b32 v1, 63, v0", 1, [0])
    g.valu("v_readfirstlane_b32 %s, v7" % sr(S_WAVE), src=[7], readlane=True, sdst=[S_WAVE])
    vop(g, "v_and_b32 v2, 15, v1", 2, [1])
    vop(g, "v_lshrrev_b32 v3, 4, v1", 3, [1])
    vop(g, "v_bfe_u32 v4, v1, 2, 2", 4, [1])
    vop(g, "v_and_b32 v5, 3, v1", 5, [1])
    vop(g, "v_and_b32 v6, 1, v3", 6, [3])
    vop(g, "v_lshlrev_b32 v6, 2, v6", 6, [6])
    vop(g, "v_or_b32 v6, v6, v4", 6, [6, 4])
    g.nop(4)


def pack_pair(g, lo, hi):
    g.valu("v_cvt_pk_bf16_f32 %s, %s, %s" % (vr(lo), vr(lo), vr(lo + 1)), dst=[lo], src=[lo, lo + 1])
    g.valu("v_cvt_pk_bf16_f32 %s, %s, %s" % (vr(lo + 1), vr(lo + 2), vr(lo + 3)), dst=[lo + 1], src=[lo + 2, lo + 3])
    g.valu("v_cvt_pk_bf16_f32 %s, %s, %s" % (vr(lo + 2), vr(hi), vr(hi + 1)), dst=[lo + 2], src=[hi, hi + 1])
    g.valu("v_cvt_pk_bf16_f32 %s, %s, %s" % (vr(lo + 3), vr(hi + 2), vr(hi + 3)), dst=[lo + 3], src=[hi + 2, hi + 3])


def xlane_reduce(g, m, tmp, op):
    for sw in ("v_permlane32_swap_b32", "v_permlane16_swap_b32"):
        vop(g, "v_mov_b32 %s, %s" % (vr(tmp), vr(m)), tmp, [m])
        g.valu("%s %s, %s" % (sw, vr(m), vr(tmp)), dst=[m, tmp], src=[m, tmp], permlane=True)
        vop(g, "%s %s, %s, %s" % (op, vr(m), vr(m), vr(tmp)), m, [m, tmp])


R_ACC = 0
R_A = 96
R_B = 128
R_K = 176
V_A = 236
V_X = 244
V_W = 245
V_KW = 246
V_KR = 224
V_WO = 225
V_VD0 = 247
V_VD1 = 248
V_K = 249
V_O = 250
V_DELTA = 251
V_T = 252
A_V_LDS = 65536
NSLOT = 8
NB = 4


def acc(t, u):
    return R_ACC + (t * 3 + u) * 4


def bfrag(s, u):
    return R_B + ((s % NB) * 3 + u) * 4


def attn_body(g, kv_first):
    def tr_reads(s, t):
        for j in range(2):
            d = R_A + t * 4 + j * 2
            g.dsread("ds_read_b64_tr_b16 %s, %s offset:%d" % (vr(d, 2), vr(V_A + t), (s % NSLOT) * 8192 + j * 1024),
                     "A%d_%d" % (s, t), dst=rng(d, 2), addr=[V_A + t])

    def issue_w(c):
        g.s("s_mov_b32 %s, %d" % (sr(S_WOFF), c * 262144))
        g.s("s_add_u32 m0, %s, %d" % (sr(S_M0W), (c % NSLOT) * 8192), m0=True)
        g.vload("buffer_load_dwordx4 %s, %s, %s offen lds" % (vr(V_W), sr(SRD_W, 4), sr(S_WOFF)),
                "W%d" % c, addr=[V_W], lds=True)

    def issue_b(s):
        for u in range(3):
            g.s("s_mov_b32 %s, %d" % (sr(S_TMP), u * 16384))
            d = bfrag(s, u)
            g.vload("buffer_load_dwordx4 %s, %s, %s, %s offen offset:%d" % (vr(d, 4), vr(V_X), sr(SRD_X, 4), sr(S_TMP), s * 64),
                    "B%d" % s, dst=rng(d, 4), addr=[V_X])

    def issue_k(i):
        g.s("s_mov_b32 %s, %d" % (sr(S_TMP), i * 4096))
        for m in range(4):
            d = R_K + (i * 4 + m) * 4
            g.vload("buffer_load_dwordx4 %s, %s, %s, %s offen offset:%d%s" % (vr(d, 4), vr(V_K), sr(SRD_K, 4), sr(S_TMP), m * 1024, NT),
                    "K%d" % i, dst=rng(d, 4), addr=[V_K])

    def issue_v(i):
        g.s("s_mov_b32 %s, %d" % (sr(S_TMP), i * 1024))
        g.s("s_add_u32 m0, %s, %d" % (sr(S_M0V), i * 1024), m0=True)
        g.vload("buffer_load_dwordx4 %s, %s, %s offen%s lds" % (vr(V_VD0 + (i & 1)), sr(SRD_V, 4), sr(S_TMP), NT),
                "V", addr=[V_VD0 + (i & 1)], lds=True)

    def issue_kv():
        if os.environ.get("NOKV"):
            return
        for i in range(3):
            issue_k(i)
        for i in range(12):
            issue_v(i)

    stamp(g, 0, V_T)
    if kv_first:
        if TWAIT:
            g.wait_vm("TCH")
        issue_kv()
    issue_w(0)
    issue_b(0)
    issue_w(1)
    issue_b(1)
    issue_w(2)
    issue_b(2)
    for c in range(3, NSLOT - 1):
        issue_w(c)
    nsteps = 16
    g.wait_vm("W0")
    g.barrier()
    for t in range(8):
        tr_reads(0, t)
    for s in range(nsteps):
        g.comment("---- gemm step %d" % s)
        if s + 1 < nsteps:
            g.wait_vm("W%d" % (s + 1))
            g.barrier()
        if s % 4 == 0:
            stamp(g, 0, V_T)
        if s + NSLOT - 1 < nsteps:
            issue_w(s + NSLOT - 1)
        for t in range(8):
            g.wait_lg("A%d_%d" % (s, t))
            if t == 0:
                g.wait_vm("B%d" % s)
            for u in range(3):
                g.mfma(acc(t, u), R_A + t * 4, bfrag(s, u), None if s == 0 else acc(t, u))
            if s + 1 < nsteps:
                tr_reads(s + 1, t)
        if s + NB - 1 < nsteps:
            issue_b(s + NB - 1)
        if s == nsteps - NB and not kv_first:
            issue_kv()

    stamp(g, 0, V_T)
    for p in range(4):
        for u in range(3):
            pack_pair(g, acc(2 * p, u), acc(2 * p + 1, u))
    KA = R_B + 24
    KW = R_B + 32
    for m in range(4):
        vop(g, "v_xor_b32 %s, %d, %s" % (vr(KW + m), m * 64, vr(V_KW)), KW + m, [V_KW])
    for c in range(8):
        vop(g, "v_xor_b32 %s, %d, %s" % (vr(KA + c), c * 32, vr(V_KR)), KA + c, [V_KR])

    def sacc(kt, u):
        i = kt * 3 + u
        if i < 12:
            return acc(1 + 2 * (i // 3), i % 3)
        return R_B + (i - 12) * 4

    def k_write(i, slot_off):
        g.wait_vm("K%d" % i)
        for m in range(4):
            d = R_K + (i * 4 + m) * 4
            g.dswrite("ds_write_b128 %s, %s offset:%d" % (vr(KW + m), vr(d, 4), slot_off + m * 1024), "KW", data=rng(d, 4), addr=[KW + m])

    def k_reads(n, slot_off):
        for p in range(4):
            for j in range(2):
                d = R_A + ((n & 1) * 4 + p) * 4 + 2 * j
                g.dsread("ds_read_b64 %s, %s offset:%d" % (vr(d, 2), vr(KA + 2 * p + j), slot_off), "KF%d_%d" % (n, p), dst=rng(d, 2), addr=[KA + 2 * p + j])

    def s_tile(n, kt):
        for p in range(4):
            g.wait_lg("KF%d_%d" % (n, p))
            for u in range(3):
                g.mfma(sacc(kt, u), R_A + ((n & 1) * 4 + p) * 4, acc(2 * p, u), None if p == 0 else sacc(kt, u))

    g.barrier()
    k_write(0, 0)
    k_write(1, 4096)
    g.wait_lg("KW")
    g.barrier()
    r1 = [0, 1, 3, 4]
    k_reads(0, 0)
    for n in range(4):
        if n + 1 < 4:
            k_reads(n + 1, (n + 1) * 4096)
        s_tile(n, r1[n])
    g.barrier()
    for m in range(4):
        vop(g, "v_subrev_u32 %s, %s, %s" % (vr(KW + m), sr(S_W4K), vr(KW + m)), KW + m, [KW + m])
    for c in range(8):
        vop(g, "v_subrev_u32 %s, %s, %s" % (vr(KA + c), sr(S_B8K), vr(KA + c)), KA + c, [KA + c])
    k_write(2, 0)
    g.wait_lg("KW")
    g.barrier()
    k_reads(4, 0)
    k_reads(5, 4096)
    s_tile(4, 2)
    s_tile(5, 5)
    stamp(g, 0, V_T)
    g.wait_vm("V")
    g.barrier()
    for t in range(8):
        vop(g, "v_add_u32 %s, %s, %s" % (vr(V_A + t), vr(V_A + t), vr(V_DELTA)), V_A + t, [V_A + t, V_DELTA])

    def v_reads(pp, t):
        for j in range(2):
            d = R_A + t * 4 + j * 2
            g.dsread("ds_read_b64_tr_b16 %s, %s offset:%d" % (vr(d, 2), vr(V_A + t), pp * 8192 + j * 4096),
                     "VT%d_%d" % (pp, t), dst=rng(d, 2), addr=[V_A + t])

    for t in range(8):
        v_reads(0, t)
    stamp(g, 0, V_T)

    def pfrag(pp, u):
        return R_K + (pp * 3 + u) * 4
    TMP = R_K + 36
    for u in range(3):
        a, b = TMP, TMP + 1
        for kt in range(6):
            r = sacc(kt, u)
            for rep in range(2):
                g.valu("v_cvt_pk_bf16_f32 %s, %s, %s" % (vr(a), vr(r), vr(r + 1)), dst=[a], src=[r, r + 1])
                g.valu("v_cvt_pk_bf16_f32 %s, %s, %s" % (vr(b), vr(r + 2), vr(r + 3)), dst=[b], src=[r + 2, r + 3])
                vop(g, "v_lshlrev_b32 %s, 16, %s" % (vr(r), vr(a)), r, [a])
                vop(g, "v_and_b32 %s, 0xffff0000, %s" % (vr(r + 1), vr(a)), r + 1, [a])
                vop(g, "v_lshlrev_b32 %s, 16, %s" % (vr(r + 2), vr(b)), r + 2, [b])
                vop(g, "v_and_b32 %s, 0xffff0000, %s" % (vr(r + 3), vr(b)), r + 3, [b])
                if rep == 0:
                    g.valu("v_pk_mul_f32 %s, %s, %s" % (vr(r, 2), vr(r, 2), sr(S_SC, 2)), dst=[r, r + 1], src=[r, r + 1])
                    g.valu("v_pk_mul_f32 %s, %s, %s" % (vr(r + 2, 2), vr(r + 2, 2), sr(S_SC, 2)), dst=[r + 2, r + 3], src=[r + 2, r + 3])
        vals = [sacc(kt, u) + r for kt in range(6) for r in range(4)]
        m = TMP + 2
        vop(g, "v_max3_f32 %s, %s, %s, %s" % (vr(m), vr(vals[0]), vr(vals[1]), vr(vals[2])), m, vals[0:3])
        i = 3
        while i < 24:
            if i + 1 < 24:
                vop(g, "v_max3_f32 %s, %s, %s, %s" % (vr(m), vr(m), vr(vals[i]), vr(vals[i + 1])), m, [m, vals[i], vals[i + 1]])
                i += 2
            else:
                vop(g, "v_max_f32 %s, %s, %s" % (vr(m), vr(m), vr(vals[i])), m, [m, vals[i]])
                i += 1
        xlane_reduce(g, m, TMP + 3, "v_max_f32")
        for v in vals:
            vop(g, "v_sub_f32 %s, %s, %s" % (vr(v), vr(v), vr(m)), v, [v, m])
        for k in range(0, 24, 2):
            v = vals[k]
            g.valu("v_pk_mul_f32 %s, %s, %s" % (vr(v, 2), vr(v, 2), sr(S_L2E, 2)), dst=[v, v + 1], src=[v, v + 1])
        for v in vals:
            g.valu("v_exp_f32 %s, %s" % (vr(v), vr(v)), dst=[v], src=[v], trans=True)
        sm = TMP + 4
        g.valu("v_pk_add_f32 %s, %s, %s" % (vr(sm, 2), vr(vals[0], 2), vr(vals[2], 2)), dst=[sm, sm + 1], src=vals[0:4])
        for k in range(4, 24, 2):
            g.valu("v_pk_add_f32 %s, %s, %s" % (vr(sm, 2), vr(sm, 2), vr(vals[k], 2)), dst=[sm, sm + 1], src=[sm, sm + 1, vals[k], vals[k] + 1])
        vop(g, "v_add_f32 %s, %s, %s" % (vr(sm), vr(sm), vr(sm + 1)), sm, [sm, sm + 1])
        xlane_reduce(g, sm, TMP + 3, "v_add_f32")
        g.valu("v_rcp_f32 %s, %s" % (vr(sm), vr(sm)), dst=[sm], src=[sm], trans=True)
        vop(g, "v_mov_b32 %s, %s" % (vr(sm + 1), vr(sm)), sm + 1, [sm])
        for k in range(0, 24, 2):
            v = vals[k]
            g.valu("v_pk_mul_f32 %s, %s, %s" % (vr(v, 2), vr(v, 2), vr(sm, 2)), dst=[v, v + 1], src=[v, v + 1, sm, sm + 1])
        for pp in range(3):
            d = pfrag(pp, u)
            lo, hi = sacc(2 * pp, u), sacc(2 * pp + 1, u)
            g.valu("v_cvt_pk_bf16_f32 %s, %s, %s" % (vr(d), vr(lo), vr(lo + 1)), dst=[d], src=[lo, lo + 1])
            g.valu("v_cvt_pk_bf16_f32 %s, %s, %s" % (vr(d + 1), vr(lo + 2), vr(lo + 3)), dst=[d + 1], src=[lo + 2, lo + 3])
            g.valu("v_cvt_pk_bf16_f32 %s, %s, %s" % (vr(d + 2), vr(hi), vr(hi + 1)), dst=[d + 2], src=[hi, hi + 1])
            g.valu("v_cvt_pk_bf16_f32 %s, %s, %s" % (vr(d + 3), vr(hi + 2), vr(hi + 3)), dst=[d + 3], src=[hi + 2, hi + 3])
    stamp(g, 0, V_T)
    for pp in range(3):
        for t in range(8):
            g.wait_lg("VT%d_%d" % (pp, t))
            for u in range(3):
                g.mfma(acc(t, u), R_A + t * 4, pfrag(pp, u), None if pp == 0 else acc(t, u))
            if pp < 2:
                v_reads(pp + 1, t)
    stamp(g, 0, V_T)
    if WOPF:
        g.vload("buffer_load_dword %s, %s, %s, 0 offen" % (vr(V_T + 3), vr(V_WO), sr(SRD_WO, 4)), "TCH", dst=[V_T + 3], addr=[V_WO])
    for p in range(4):
        for u in range(3):
            pack_pair(g, acc(2 * p, u), acc(2 * p + 1, u))
            g.s("s_mov_b32 %s, %d" % (sr(S_TMP), u * 131072))
            d = acc(2 * p, u)
            g.vstore("buffer_store_dwordx4 %s, %s, %s, %s offen offset:%d" % (vr(d, 4), vr(V_O), sr(SRD_WS, 4), sr(S_TMP), p * 1024),
                     "ST", data=rng(d, 4), addr=[V_O])
    if STAMP:
        g.wait_vm("ST")
        stamp(g, 0, V_T)
    g.s("s_endpgm")


def gen_attn():
    g = Gen()
    g.s("s_cmp_ge_u32 s2, 256")
    g.s("s_cbranch_scc1 attn_end")
    lane_setup(g)
    g.s("s_and_b32 s4, s2, 7")
    g.s("s_lshr_b32 s5, s2, 3")
    g.s("s_lshr_b32 s6, s4, 2")
    g.s("s_and_b32 s7, s4, 3")
    g.s("s_lshl_b32 s7, s7, 3")
    g.s("s_lshr_b32 s16, s5, 2")
    g.s("s_add_u32 s43, s7, s16")
    g.s("s_and_b32 s40, s16, 1")
    g.s("s_and_b32 s5, s5, 3")
    g.s("s_mul_i32 s16, s6, 40")
    g.s("s_add_u32 s18, s0, s16")
    g.s("s_addc_u32 s19, s1, 0")
    g.s("s_load_dwordx8 s[8:15], s[18:19], 0")
    g.s("s_load_dwordx2 s[16:17], s[0:1], 96")
    g.s("s_load_dwordx2 s[68:69], s[18:19], 32")
    g.s("s_lshr_b32 s41, s3, 1")
    g.s("s_and_b32 s42, s3, 1")
    g.s("s_lshl_b32 s44, s5, 2")
    g.s("s_add_u32 s44, s44, s41")
    g.s("s_lshl_b32 s45, s44, 5")
    g.s("s_add_u32 s45, s45, s43")
    g.s("s_mul_i32 s45, s45, 24576")
    g.s("s_mov_b32 %s, 0x3db504f3" % sr(S_SC))
    g.s("s_mov_b32 %s, 0x3db504f3" % sr(S_SC + 1))
    g.s("s_mov_b32 %s, 0x3fb8aa3b" % sr(S_L2E))
    g.s("s_mov_b32 %s, 0x3fb8aa3b" % sr(S_L2E + 1))
    g.s("s_mul_i32 s55, s44, 98304")
    g.s("s_mul_i32 s56, s42, 49152")
    g.s("s_add_u32 s55, s55, s56")
    vop(g, "v_lshlrev_b32 v8, 10, v2", 8, [2])
    vop(g, "v_lshl_add_u32 v8, v3, 4, v8", 8, [3, 8])
    vop(g, "v_add_u32 %s, s55, v8" % vr(V_X), V_X, [8])
    g.s("s_mul_i32 s55, s42, 12288")
    g.s("s_add_u32 s55, s55, s45")
    vop(g, "v_lshlrev_b32 v8, 4, v1", 8, [1])
    vop(g, "v_add_u32 %s, s55, v8" % vr(V_K), V_K, [8])
    vop(g, "v_xor_b32 v8, v2, v3", 8, [2, 3])
    vop(g, "v_lshlrev_b32 v8, 4, v8", 8, [8])
    vop(g, "v_lshl_add_u32 v8, v3, 8, v8", 8, [3, 8])
    g.s("s_lshl_b32 s55, s3, 13")
    vop(g, "v_add_u32 %s, s55, v8" % vr(V_KW), V_KW, [8])
    vop(g, "v_lshrrev_b32 v8, 1, v3", 8, [3])
    vop(g, "v_xor_b32 v8, v8, v2", 8, [8, 2])
    vop(g, "v_lshlrev_b32 v8, 4, v8", 8, [8])
    vop(g, "v_lshl_add_u32 v8, v2, 8, v8", 8, [2, 8])
    vop(g, "v_and_b32 v9, 1, v3", 9, [3])
    vop(g, "v_lshl_add_u32 v8, v9, 3, v8", 8, [8, 9])
    g.s("s_lshl_b32 s55, s41, 14")
    vop(g, "v_add_u32 %s, s55, v8" % vr(V_KR), V_KR, [8])
    g.s("s_lshl_b32 %s, s3, 12" % sr(S_W4K))
    g.s("s_lshl_b32 %s, s41, 13" % sr(S_B8K))
    g.s("s_mul_i32 s55, s42, 12288")
    g.s("s_add_u32 s55, s55, s45")
    for par in range(2):
        vop(g, "v_add_u32 v8, %d, v3" % (4 * par), 8, [3])
        vop(g, "v_lshlrev_b32 v8, 1, v8", 8, [8])
        vop(g, "v_xor_b32 v8, v8, v2", 8, [8, 2])
        vop(g, "v_lshlrev_b32 v8, 4, v8", 8, [8])
        vop(g, "v_lshl_add_u32 v8, v3, 8, v8", 8, [3, 8])
        vop(g, "v_add_u32 %s, s55, v8" % vr(V_VD0 + par), V_VD0 + par, [8])
    g.s("s_and_b32 s55, s41, 1")
    g.s("s_lshl_b32 s55, s55, 2")
    vop(g, "v_or_b32 v8, s55, v3", 8, [3])
    vop(g, "v_lshlrev_b32 v8, 1, v8", 8, [8])
    vop(g, "v_xor_b32 v8, v8, v2", 8, [8, 2])
    vop(g, "v_lshlrev_b32 v8, 4, v8", 8, [8])
    vop(g, "v_lshl_add_u32 v8, v3, 13, v8", 8, [3, 8])
    g.s("s_lshl_b32 s55, s3, 15")
    g.s("s_lshl_b32 s56, s43, 8")
    g.s("s_add_u32 s55, s55, s56")
    vop(g, "v_add_u32 %s, s55, v8" % vr(V_W), V_W, [8])
    g.s("s_lshl_b32 %s, s3, 10" % sr(S_M0W))
    vop(g, "v_lshlrev_b32 v8, 3, v3", 8, [3])
    vop(g, "v_add_u32 v8, v8, v4", 8, [8, 4])
    vop(g, "v_lshlrev_b32 v8, 8, v8", 8, [8])
    vop(g, "v_lshl_add_u32 v8, v5, 3, v8", 8, [8, 5])
    for t in range(8):
        vop(g, "v_xor_b32 v9, %d, v6" % t, 9, [6])
        vop(g, "v_lshl_add_u32 %s, v9, 5, v8" % vr(V_A + t), V_A + t, [9, 8])
    g.s("s_mul_i32 s55, s41, 24576")
    g.s("s_add_u32 s55, s55, %d" % A_V_LDS)
    vop(g, "v_lshlrev_b32 v9, 2, v3", 9, [3])
    vop(g, "v_add_u32 v9, v9, v4", 9, [9, 4])
    vop(g, "v_lshlrev_b32 v9, 8, v9", 9, [9])
    vop(g, "v_lshl_add_u32 v9, v5, 3, v9", 9, [9, 5])
    vop(g, "v_add_u32 v9, s55, v9", 9, [9])
    vop(g, "v_sub_u32 %s, v9, v8" % vr(V_DELTA), V_DELTA, [9, 8])
    g.s("s_mul_i32 s56, s42, 12288")
    g.s("s_add_u32 %s, s55, s56" % sr(S_M0V))
    g.s("s_mul_i32 s55, s44, 6")
    g.s("s_mul_i32 s56, s42, 3")
    g.s("s_add_u32 s55, s55, s56")
    g.s("s_lshl_b32 s55, s55, 7")
    g.s("s_lshl_b32 s56, s43, 2")
    g.s("s_add_u32 s55, s55, s56")
    g.s("s_lshl_b32 s55, s55, 10")
    g.s("s_mul_i32 s56, s6, %d" % O_BLOCK_BYTES)
    g.s("s_add_u32 s55, s55, s56")
    vop(g, "v_lshlrev_b32 v8, 4, v1", 8, [1])
    vop(g, "v_add_u32 %s, s55, v8" % vr(V_O), V_O, [8])
    g.waitcnt(lg=0)
    make_srd(g, SRD_X, 8, 1572864)
    make_srd(g, SRD_K, 10, 12582912)
    make_srd(g, SRD_V, 12, 12582912)
    make_srd(g, SRD_W, 14, 4194304)
    make_srd(g, SRD_WS, 16, WS_BYTES)
    make_srd(g, SRD_WO, 68, 4194304)
    g.s("s_and_b32 s55, s2, 3")
    g.s("s_lshl_b32 s55, s55, 5")
    g.s("s_lshr_b32 s56, s2, 3")
    g.s("s_add_u32 s55, s55, s56")
    g.s("s_lshl_b32 s55, s55, 3")
    g.s("s_add_u32 s55, s55, s3")
    g.s("s_lshl_b32 s55, s55, 12")
    vop(g, "v_lshlrev_b32 v8, 6, v1", 8, [1])
    vop(g, "v_add_u32 %s, s55, v8" % vr(V_WO), V_WO, [8])
    if TOUCH:
        g.s("s_lshl_b32 s55, s5, 3")
        g.s("s_add_u32 s55, s55, s3")
        g.s("s_lshl_b32 s55, s55, 17")
        g.s("s_lshl_b32 s56, s43, 8")
        g.s("s_add_u32 s55, s55, s56")
        vop(g, "v_lshrrev_b32 v8, 2, v1", 8, [1])
        vop(g, "v_lshlrev_b32 v8, 13, v8", 8, [8])
        vop(g, "v_lshl_add_u32 v8, v5, 6, v8", 8, [5, 8])
        vop(g, "v_add_u32 v8, s55, v8", 8, [8])
        g.vload("buffer_load_dword %s, v8, %s, 0 offen" % (vr(V_T + 3), sr(SRD_W, 4)), "TCH", dst=[V_T + 3], addr=[8])
        g.s("s_mul_i32 s55, s44, 98304")
        g.s("s_mul_i32 s56, s42, 49152")
        g.s("s_add_u32 s55, s55, s56")
        g.s("s_and_b32 s56, s43, 3")
        g.s("s_mul_i32 s56, s56, 12288")
        g.s("s_add_u32 s55, s55, s56")
        vop(g, "v_lshlrev_b32 v9, 6, v1", 9, [1])
        vop(g, "v_add_u32 v9, s55, v9", 9, [9])
        for i in range(3):
            g.s("s_mov_b32 %s, %d" % (sr(S_TMP), i * 4096))
            g.vload("buffer_load_dword %s, v9, %s, %s offen" % (vr(V_T + 3), sr(SRD_X, 4), sr(S_TMP)), "TCH", dst=[V_T + 3], addr=[9])
    g.s("s_cmp_eq_u32 s40, 1")
    g.s("s_cbranch_scc1 attn_kvfirst")
    t0 = g.text()
    gb = Gen()
    gb.vmq = list(g.vmq)
    _stamp_n[0] = 0
    attn_body(gb, False)
    ga = Gen()
    ga.vmq = list(g.vmq)
    _stamp_n[0] = 0
    ga.label("attn_kvfirst")
    attn_body(ga, True)
    ga.label("attn_end")
    ga.s("s_endpgm")
    return t0 + gb.text() + ga.text()


O_ACC = 0
O_A = 96
O_B = 112
O_VA = 184
O_VX = 188
O_VW = 189
O_VO = 190
O_VL = 191
O_VT = 192


def gen_oproj():
    g = Gen()
    _stamp_n[0] = 0

    def oacc(t, u):
        return O_ACC + (t * 6 + u) * 4

    def bfr(s, u):
        return O_B + ((s % 3) * 6 + u) * 4

    g.s("s_cmp_ge_u32 s2, 256")
    g.s("s_cbranch_scc1 oproj_end")
    lane_setup(g)
    g.s("s_and_b32 s4, s2, 7")
    g.s("s_lshr_b32 s5, s2, 3")
    g.s("s_lshr_b32 s6, s4, 2")
    g.s("s_and_b32 s7, s4, 3")
    g.s("s_and_b32 s40, s5, 3")
    g.s("s_lshr_b32 s41, s5, 2")
    g.s("s_mul_i32 s16, s6, 40")
    g.s("s_add_u32 s18, s0, s16")
    g.s("s_addc_u32 s19, s1, 0")
    g.s("s_load_dwordx2 s[14:15], s[18:19], 32")
    g.s("s_load_dwordx2 s[16:17], s[0:1], 96")
    g.s("s_load_dwordx2 s[12:13], s[0:1], 80")
    g.s("s_mul_i32 s55, s7, 24")
    g.s("s_mul_i32 s56, s40, 6")
    g.s("s_add_u32 s42, s55, s56")
    g.s("s_lshl_b32 s55, s42, 7")
    g.s("s_lshl_b32 s56, s3, 4")
    g.s("s_add_u32 s55, s55, s56")
    g.s("s_lshl_b32 s55, s55, 10")
    g.s("s_mul_i32 s56, s6, %d" % O_BLOCK_BYTES)
    g.s("s_add_u32 s55, s55, s56")
    vop(g, "v_lshlrev_b32 %s, 4, v1" % vr(O_VL), O_VL, [1])
    vop(g, "v_add_u32 %s, s55, %s" % (vr(O_VX), vr(O_VL)), O_VX, [O_VL])
    vop(g, "v_and_b32 v8, 7, v1", 8, [1])
    vop(g, "v_lshlrev_b32 v9, 1, v3", 9, [3])
    vop(g, "v_xor_b32 v8, v8, v9", 8, [8, 9])
    vop(g, "v_lshlrev_b32 v8, 4, v8", 8, [8])
    vop(g, "v_lshrrev_b32 v9, 3, v1", 9, [1])
    vop(g, "v_lshl_add_u32 v8, v9, 10, v8", 8, [8, 9])
    g.s("s_lshl_b32 s55, s41, 7")
    g.s("s_lshl_b32 s56, s3, 19")
    g.s("s_add_u32 s55, s55, s56")
    vop(g, "v_add_u32 %s, s55, v8" % vr(O_VW), O_VW, [8])
    g.s("s_lshl_b32 %s, s3, 14" % sr(S_M0W))
    vop(g, "v_lshlrev_b32 v8, 2, v3", 8, [3])
    vop(g, "v_add_u32 v8, v8, v4", 8, [8, 4])
    vop(g, "v_bfe_u32 v9, v8, 1, 2", 9, [8])
    vop(g, "v_lshlrev_b32 v8, 7, v8", 8, [8])
    vop(g, "v_lshl_add_u32 v8, v5, 3, v8", 8, [8, 5])
    vop(g, "v_add_u32 v8, %s, v8" % sr(S_M0W), 8, [8])
    for t in range(4):
        vop(g, "v_xor_b32 v10, %d, v9" % t, 10, [9])
        vop(g, "v_lshl_add_u32 %s, v10, 5, v8" % vr(O_VA + t), O_VA + t, [10, 8])
    g.s("s_lshl_b32 s55, s42, 4")
    g.s("s_lshl_b32 s55, s55, 10")
    g.s("s_lshl_b32 s56, s6, 9")
    g.s("s_add_u32 s55, s55, s56")
    g.s("s_lshl_b32 s56, s41, 6")
    g.s("s_add_u32 s55, s55, s56")
    g.s("s_lshl_b32 s55, s55, 1")
    vop(g, "v_lshlrev_b32 v8, 11, v2", 8, [2])
    vop(g, "v_lshl_add_u32 v8, v3, 3, v8", 8, [3, 8])
    vop(g, "v_add_u32 %s, s55, v8" % vr(O_VO), O_VO, [8])
    g.waitcnt(lg=0)
    make_srd(g, SRD_W, 14, 4194304)
    make_srd(g, SRD_WS, 16, WS_BYTES)
    make_srd(g, SRD_OUT, 12, 16 * 96 * 1024 * 2)

    def issue_w(c):
        for i in range(4):
            g.s("s_mov_b32 %s, %d" % (sr(S_WOFF), c * 32768 + i * 8192))
            g.s("s_add_u32 m0, %s, %d" % (sr(S_M0W), (c % 4) * 4096 + i * 1024), m0=True)
            g.vload("buffer_load_dwordx4 %s, %s, %s offen lds" % (vr(O_VW), sr(SRD_W, 4), sr(S_WOFF)),
                    "W%d" % c, addr=[O_VW], lds=True)

    def issue_b(s):
        for u in range(6):
            g.s("s_mov_b32 %s, %d" % (sr(S_TMP), u * 131072 + (s >> 2) * 4096))
            d = bfr(s, u)
            g.vload("buffer_load_dwordx4 %s, %s, %s, %s offen offset:%d" % (vr(d, 4), vr(O_VX), sr(SRD_WS, 4), sr(S_TMP), (s & 3) * 1024),
                    "B%d" % s, dst=rng(d, 4), addr=[O_VX])

    def tr_reads(s, t):
        for j in range(2):
            d = O_A + t * 4 + j * 2
            g.dsread("ds_read_b64_tr_b16 %s, %s offset:%d" % (vr(d, 2), vr(O_VA + t), (s % 4) * 4096 + j * 2048),
                     "A%d_%d" % (s, t), dst=rng(d, 2), addr=[O_VA + t])

    stamp(g, 1, O_VT)
    if OTOUCH:
        g.s("s_lshl_b32 s55, s3, 19")
        g.s("s_lshl_b32 s56, s40, 17")
        g.s("s_add_u32 s55, s55, s56")
        g.s("s_lshl_b32 s56, s41, 7")
        g.s("s_add_u32 s55, s55, s56")
        vop(g, "v_lshrrev_b32 v8, 1, v1", 8, [1])
        vop(g, "v_lshlrev_b32 v8, 10, v8", 8, [8])
        vop(g, "v_and_b32 v9, 1, v1", 9, [1])
        vop(g, "v_lshl_add_u32 v8, v9, 6, v8", 8, [8, 9])
        vop(g, "v_add_u32 v8, s55, v8", 8, [8])
        for i in range(4):
            g.s("s_mov_b32 %s, %d" % (sr(S_TMP), i * 32768))
            g.vload("buffer_load_dword %s, v8, %s, %s offen" % (vr(O_VT + 3), sr(SRD_W, 4), sr(S_TMP)), "TCH", dst=[O_VT + 3], addr=[8])
        vop(g, "v_sub_u32 v9, %s, %s" % (vr(O_VX), vr(O_VL)), 9, [O_VX, O_VL])
        vop(g, "v_lshrrev_b32 v10, 5, v1", 10, [1])
        vop(g, "v_lshl_add_u32 v9, v10, 17, v9", 9, [9, 10])
        vop(g, "v_and_b32 v10, 31, v1", 10, [1])
        vop(g, "v_lshl_add_u32 v9, v10, 6, v9", 9, [9, 10])
        g.s("s_lshl_b32 s55, s41, 11")
        vop(g, "v_add_u32 v9, s55, v9", 9, [9])
        for i in range(3):
            g.s("s_mov_b32 %s, %d" % (sr(S_TMP), i * 262144))
            g.vload("buffer_load_dword %s, v9, %s, %s offen" % (vr(O_VT + 3), sr(SRD_WS, 4), sr(S_TMP)), "TCH", dst=[O_VT + 3], addr=[9])
    for c in range(3):
        issue_w(c)
        issue_b(c)
    g.wait_vm("W0")
    for t in range(4):
        tr_reads(0, t)
    nsteps = 16
    for s in range(nsteps):
        g.comment("---- step %d" % s)
        if s % 4 == 0:
            stamp(g, 1, O_VT)
        if s + 3 < nsteps:
            issue_w(s + 3)
        for t in range(4):
            g.wait_lg("A%d_%d" % (s, t))
            if t == 0:
                g.wait_vm("B%d" % s)
            for u in range(6):
                g.mfma(oacc(t, u), O_A + t * 4, bfr(s, u), None if s == 0 else oacc(t, u))
            if s + 1 < nsteps:
                if t == 0:
                    g.wait_vm("W%d" % (s + 1))
                tr_reads(s + 1, t)
        if s + 3 < nsteps:
            issue_b(s + 3)
    stamp(g, 1, O_VT)
    g.s("s_lshl_b32 s55, s3, 13")
    g.s("s_lshl_b32 s56, s3, 10")
    vop(g, "v_add_u32 %s, s55, %s" % (vr(O_VA), vr(O_VL)), O_VA, [O_VL])
    vop(g, "v_add_u32 %s, s56, %s" % (vr(O_VA + 1), vr(O_VL)), O_VA + 1, [O_VL])
    vop(g, "v_add_u32 %s, 0x10000, %s" % (vr(O_VA + 2), vr(O_VA)), O_VA + 2, [O_VA])
    vop(g, "v_add_u32 %s, 0x10000, %s" % (vr(O_VA + 3), vr(O_VA + 1)), O_VA + 3, [O_VA + 1])
    g.barrier()
    for ph in range(3):
        wa = O_VA + 2 * (ph & 1)
        ra = wa + 1
        for i in range(8):
            d = O_ACC + (8 * ph + i) * 4
            g.dswrite("ds_write_b128 %s, %s offset:%d" % (vr(wa), vr(d, 4), i * 1024), "RW", data=rng(d, 4), addr=[wa])
        g.wait_lg("RW")
        g.barrier()
        T = O_VT + 4
        for w2 in range(8):
            d = T + w2 * 4
            g.dsread("ds_read_b128 %s, %s offset:%d" % (vr(d, 4), vr(ra), w2 * 8192), "RR%d" % w2, dst=rng(d, 4), addr=[ra])
        for w2 in range(1, 8):
            g.wait_lg("RR%d" % w2)
            for h in range(2):
                d = T + h * 2
                s_ = T + w2 * 4 + h * 2
                g.valu("v_pk_add_f32 %s, %s, %s" % (vr(d, 2), vr(d, 2), vr(s_, 2)), dst=[d, d + 1], src=[d, d + 1, s_, s_ + 1])
        o = O_VT + 40 + ph * 2
        g.valu("v_cvt_pk_bf16_f32 %s, %s, %s" % (vr(o), vr(T), vr(T + 1)), dst=[o], src=[T, T + 1])
        g.valu("v_cvt_pk_bf16_f32 %s, %s, %s" % (vr(o + 1), vr(T + 2), vr(T + 3)), dst=[o + 1], src=[T + 2, T + 3])
        g.s("s_add_u32 s55, s3, %d" % (8 * ph))
        g.s("s_mul_i32 s56, s55, 43")
        g.s("s_lshr_b32 s56, s56, 8")
        g.s("s_mul_i32 s57, s56, 6")
        g.s("s_sub_u32 s57, s55, s57")
        g.s("s_lshl_b32 s57, s57, 15")
        g.s("s_lshl_b32 s56, s56, 5")
        g.s("s_add_u32 s57, s57, s56")
        g.vstore("buffer_store_dwordx2 %s, %s, %s, s57 offen" % (vr(o, 2), vr(O_VO), sr(SRD_OUT, 4)), "ST", data=rng(o, 2), addr=[O_VO])
    if STAMP:
        g.wait_vm("ST")
        stamp(g, 1, O_VT)
    g.label("oproj_end")
    g.s("s_endpgm")
    return g.text()


HEADER = """; Kernarg layout for this problem (104 bytes, ptrs only, base s[0:1]):
; @launch kernel=attn_kernel grid=(256,1,1) block=(512,1,1) lds=163840
; @launch kernel=oproj_kernel grid=(256,1,1) block=(512,1,1) lds=131072
.amdgcn_target "amdgcn-amd-amdhsa--gfx950"
.text
"""


def kernel_text(name, body):
    return (".globl %s\n.p2align 8\n.type %s,@function\n%s:\n" % (name, name, name)) + body


def kd(name, vgpr, sgpr):
    acc_off = (vgpr + 3) // 4 * 4
    return """.p2align 6
.amdhsa_kernel %s
  .amdhsa_next_free_vgpr %d
  .amdhsa_next_free_sgpr %d
  .amdhsa_accum_offset %d
  .amdhsa_group_segment_fixed_size 0
  .amdhsa_kernarg_size 104
  .amdhsa_user_sgpr_count 2
  .amdhsa_user_sgpr_kernarg_segment_ptr 1
  .amdhsa_system_sgpr_workgroup_id_x 1
.end_amdhsa_kernel
""" % (name, vgpr, sgpr, acc_off)


def main():
    out = HEADER
    out += kernel_text("attn_kernel", gen_attn())
    out += kernel_text("oproj_kernel", gen_oproj())
    out += '.section .rodata,"a"\n'
    out += kd("attn_kernel", 256, 80)
    out += kd("oproj_kernel", 256, 64)
    path = sys.argv[1] if len(sys.argv) > 1 else "cdna_kernels/%s.s" % NAME
    open(path, "w").write(out)
    print("wrote", path, len(out), "bytes")


if __name__ == "__main__":
    main()
```

```python
import sys, os
sys.path.insert(0, os.path.dirname(os.path.abspath(__file__)))
from asmgen import Gen, vr, sr

NAME = "concat_heads__gqa_block_cached__gqa_block_cached__near_ridge"
O_BLOCK_BYTES = 1536 * 4096 * 2
WS_BYTES = 268435456

STAMP = int(os.environ.get("STAMP", "0"))
STAMP_BASE = 200 * 1024 * 1024
NT = os.environ.get("NT", " nt")
TOUCH = int(os.environ.get("TOUCH", "1"))
TWAIT = int(os.environ.get("TWAIT", "1"))
WOPF = int(os.environ.get("WOPF", "1"))
OTOUCH = int(os.environ.get("OTOUCH", "0"))
_stamp_n = [0]

S_WAVE = 3
SRD_X = 20
SRD_K = 24
SRD_V = 28
SRD_W = 32
SRD_WS = 36
SRD_OUT = 24
SRD_WO = 64
S_M0W = 46
S_TMP = 47
S_WOFF = 48
S_M0V = 49
S_SC = 50
S_L2E = 52
S_W4K = 54
S_B8K = 57


def rng(a, n):
    return list(range(a, a + n))


def stamp(g, kid, vt):
    if not STAMP:
        return
    n = _stamp_n[0]
    _stamp_n[0] += 1
    g.s("s_memtime s[60:61]")
    g.waitcnt(lg=0)
    g.lgq = []
    g.s("s_lshl_b32 s62, s2, 8")
    g.s("s_add_u32 s62, s62, %d" % (STAMP_BASE + kid * 131072 + n * 8))
    g.s("s_mul_i32 s63, s3, 1048576")
    g.s("s_add_u32 s62, s62, s63")
    g.valu("v_mov_b32 %s, s60" % vr(vt), dst=[vt])
    g.valu("v_mov_b32 %s, s61" % vr(vt + 1), dst=[vt + 1])
    g.valu("v_mov_b32 %s, s62" % vr(vt + 2), dst=[vt + 2])
    g.s("s_mov_b64 s[58:59], exec")
    g.s("s_mov_b64 exec, 1")
    g.vstore("buffer_store_dwordx2 %s, %s, %s, 0 offen" % (vr(vt, 2), vr(vt + 2), sr(SRD_WS, 4)), "STAMP", data=[vt, vt + 1], addr=[vt + 2])
    g.s("s_mov_b64 exec, s[58:59]")


def make_srd(g, srd, ptr, nbytes):
    g.s("s_mov_b32 %s, %s" % (sr(srd), sr(ptr)))
    g.s("s_and_b32 %s, %s, 0xffff" % (sr(srd + 1), sr(ptr + 1)))
    g.s("s_mov_b32 %s, %d" % (sr(srd + 2), nbytes))
    g.s("s_mov_b32 %s, 0x00020000" % sr(srd + 3))


def vop(g, text, dst, src=()):
    g.valu(text, dst=[dst] if isinstance(dst, int) else dst, src=src)


def lane_setup(g):
    vop(g, "v_lshrrev_b32 v7, 6, v0", 7, [0])
    vop(g, "v_and_b32 v1, 63, v0", 1, [0])
    g.valu("v_readfirstlane_b32 %s, v7" % sr(S_WAVE), src=[7], readlane=True, sdst=[S_WAVE])
    vop(g, "v_and_b32 v2, 15, v1", 2, [1])
    vop(g, "v_lshrrev_b32 v3, 4, v1", 3, [1])
    vop(g, "v_bfe_u32 v4, v1, 2, 2", 4, [1])
    vop(g, "v_and_b32 v5, 3, v1", 5, [1])
    vop(g, "v_and_b32 v6, 1, v3", 6, [3])
    vop(g, "v_lshlrev_b32 v6, 2, v6", 6, [6])
    vop(g, "v_or_b32 v6, v6, v4", 6, [6, 4])
    g.nop(4)


def pack_pair(g, lo, hi):
    g.valu("v_cvt_pk_bf16_f32 %s, %s, %s" % (vr(lo), vr(lo), vr(lo + 1)), dst=[lo], src=[lo, lo + 1])
    g.valu("v_cvt_pk_bf16_f32 %s, %s, %s" % (vr(lo + 1), vr(lo + 2), vr(lo + 3)), dst=[lo + 1], src=[lo + 2, lo + 3])
    g.valu("v_cvt_pk_bf16_f32 %s, %s, %s" % (vr(lo + 2), vr(hi), vr(hi + 1)), dst=[lo + 2], src=[hi, hi + 1])
    g.valu("v_cvt_pk_bf16_f32 %s, %s, %s" % (vr(lo + 3), vr(hi + 2), vr(hi + 3)), dst=[lo + 3], src=[hi + 2, hi + 3])


def xlane_reduce(g, m, tmp, op):
    for sw in ("v_permlane32_swap_b32", "v_permlane16_swap_b32"):
        vop(g, "v_mov_b32 %s, %s" % (vr(tmp), vr(m)), tmp, [m])
        g.valu("%s %s, %s" % (sw, vr(m), vr(tmp)), dst=[m, tmp], src=[m, tmp], permlane=True)
        vop(g, "%s %s, %s, %s" % (op, vr(m), vr(m), vr(tmp)), m, [m, tmp])


R_ACC = 0
R_A = 96
R_B = 128
R_F = 164
R_K = 188
V_A = 236
V_X = 244
V_W = 245
V_BP = 246
V_VD0 = 247
V_VD1 = 248
V_K = 249
V_LANE = 250
V_T = 252
V_KW = R_B + 36
V_KR = R_B + 37
V_WO = R_B + 38
V_O = R_B + 39
V_DELTA = R_B + 40
T0 = R_B + 41
A_V_LDS = 65536
NSLOT = 8
NB = 3


def acc(t, u):
    return R_ACC + (t * 3 + u) * 4


def bstage(s, u):
    return R_B + ((s % NB) * 3 + u) * 4


def bfrag(s, u):
    return R_F + ((s % 2) * 3 + u) * 4


def post_gemm_addrs(g):
    L, Q, G, R, C, A, B = V_LANE, T0, T0 + 1, T0 + 2, T0 + 3, T0 + 4, T0 + 5
    v = vr
    vop(g, "v_and_b32 %s, 15, %s" % (v(Q), v(L)), Q, [L])
    vop(g, "v_lshrrev_b32 %s, 4, %s" % (v(G), v(L)), G, [L])
    vop(g, "v_bfe_u32 %s, %s, 2, 2" % (v(R), v(L)), R, [L])
    vop(g, "v_and_b32 %s, 3, %s" % (v(C), v(L)), C, [L])
    vop(g, "v_xor_b32 %s, %s, %s" % (v(A), v(Q), v(G)), A, [Q, G])
    vop(g, "v_lshlrev_b32 %s, 4, %s" % (v(A), v(A)), A, [A])
    vop(g, "v_lshl_add_u32 %s, %s, 8, %s" % (v(A), v(G), v(A)), A, [G, A])
    g.s("s_lshl_b32 s55, s3, 13")
    vop(g, "v_add_u32 %s, s55, %s" % (v(V_KW), v(A)), V_KW, [A])
    vop(g, "v_lshrrev_b32 %s, 1, %s" % (v(A), v(G)), A, [G])
    vop(g, "v_xor_b32 %s, %s, %s" % (v(A), v(A), v(Q)), A, [A, Q])
    vop(g, "v_lshlrev_b32 %s, 4, %s" % (v(A), v(A)), A, [A])
    vop(g, "v_lshl_add_u32 %s, %s, 8, %s" % (v(A), v(Q), v(A)), A, [Q, A])
    vop(g, "v_and_b32 %s, 1, %s" % (v(B), v(G)), B, [G])
    vop(g, "v_lshl_add_u32 %s, %s, 3, %s" % (v(A), v(B), v(A)), A, [A, B])
    g.s("s_lshl_b32 s55, s41, 14")
    vop(g, "v_add_u32 %s, s55, %s" % (v(V_KR), v(A)), V_KR, [A])
    g.s("s_mul_i32 s55, s41, 24576")
    g.s("s_add_u32 s55, s55, %d" % A_V_LDS)
    vop(g, "v_lshlrev_b32 %s, 10, %s" % (v(A), v(G)), A, [G])
    vop(g, "v_sub_u32 %s, s55, %s" % (v(V_DELTA), v(A)), V_DELTA, [A])
    g.s("s_mul_i32 s55, s44, 6")
    g.s("s_mul_i32 s56, s42, 3")
    g.s("s_add_u32 s55, s55, s56")
    g.s("s_lshl_b32 s55, s55, 7")
    g.s("s_lshl_b32 s56, s43, 2")
    g.s("s_add_u32 s55, s55, s56")
    g.s("s_lshl_b32 s55, s55, 10")
    g.s("s_mul_i32 s56, s6, %d" % O_BLOCK_BYTES)
    g.s("s_add_u32 s55, s55, s56")
    vop(g, "v_lshlrev_b32 %s, 4, %s" % (v(A), v(L)), A, [L])
    vop(g, "v_add_u32 %s, s55, %s" % (v(V_O), v(A)), V_O, [A])
    g.s("s_and_b32 s55, s2, 3")
    g.s("s_lshl_b32 s55, s55, 5")
    g.s("s_lshr_b32 s56, s2, 3")
    g.s("s_add_u32 s55, s55, s56")
    g.s("s_lshl_b32 s55, s55, 3")
    g.s("s_add_u32 s55, s55, s3")
    g.s("s_lshl_b32 s55, s55, 12")
    vop(g, "v_lshlrev_b32 %s, 6, %s" % (v(A), v(L)), A, [L])
    vop(g, "v_add_u32 %s, s55, %s" % (v(V_WO), v(A)), V_WO, [A])


def attn_body(g, kv_first):
    def tr_reads(s, t):
        if os.environ.get("NOTR") and s > 0:
            return
        for j in range(2):
            d = R_A + t * 4 + j * 2
            g.dsread("ds_read_b64_tr_b16 %s, %s offset:%d" % (vr(d, 2), vr(V_A + t), (s % NSLOT) * 8192 + j * 1024),
                     "A%d_%d" % (s, t), dst=rng(d, 2), addr=[V_A + t])

    def issue_w(c):
        if os.environ.get("NOW") and c > 1:
            return
        g.s("s_mov_b32 %s, %d" % (sr(S_WOFF), c * 262144))
        g.s("s_add_u32 m0, %s, %d" % (sr(S_M0W), (c % NSLOT) * 8192), m0=True)
        g.vload("buffer_load_dwordx4 %s, %s, %s offen lds" % (vr(V_W), sr(SRD_W, 4), sr(S_WOFF)),
                "W%d" % c, addr=[V_W], lds=True)

    def issue_b(s):
        if os.environ.get("NOX") and s > 3:
            return
        for u in range(3):
            g.s("s_mov_b32 %s, %d" % (sr(S_TMP), u * 16384))
            d = bstage(s, u)
            g.vload("buffer_load_dwordx4 %s, %s, %s, %s offen offset:%d" % (vr(d, 4), vr(V_X), sr(SRD_X, 4), sr(S_TMP), s * 64),
                    "B%d" % s, dst=rng(d, 4), addr=[V_X])

    def perm_b(s):
        g.wait_vm("B%d" % s)
        for u in range(3):
            for r in range(4):
                d = bfrag(s, u) + r
                a = bstage(s, u) + r
                g.dsread("ds_bpermute_b32 %s, %s, %s" % (vr(d), vr(V_BP), vr(a)), "F%d" % s, dst=[d], addr=[V_BP, a])

    def issue_k(i):
        g.s("s_mov_b32 %s, %d" % (sr(S_TMP), i * 4096))
        for m in range(4):
            d = R_K + (i * 4 + m) * 4
            g.vload("buffer_load_dwordx4 %s, %s, %s, %s offen offset:%d%s" % (vr(d, 4), vr(V_K), sr(SRD_K, 4), sr(S_TMP), m * 1024, NT),
                    "K%d" % i, dst=rng(d, 4), addr=[V_K])

    def issue_v(i):
        g.s("s_mov_b32 %s, %d" % (sr(S_TMP), i * 1024))
        g.s("s_add_u32 m0, %s, %d" % (sr(S_M0V), i * 1024), m0=True)
        g.vload("buffer_load_dwordx4 %s, %s, %s offen%s lds" % (vr(V_VD0 + (i & 1)), sr(SRD_V, 4), sr(S_TMP), NT),
                "V", addr=[V_VD0 + (i & 1)], lds=True)

    def issue_kv():
        if os.environ.get("NOKV"):
            return
        for i in range(3):
            issue_k(i)
        for i in range(12):
            issue_v(i)

    stamp(g, 0, V_T)
    if kv_first:
        if TWAIT:
            g.wait_vm("TCH")
        issue_kv()
    for c in range(NSLOT - 1):
        issue_w(c)
        if c < NB:
            issue_b(c)
    nsteps = 16
    g.wait_vm("W0")
    g.barrier()
    for t in range(8):
        tr_reads(0, t)
    perm_b(0)
    for s in range(nsteps):
        g.comment("---- gemm step %d" % s)
        if s + 1 < nsteps:
            g.wait_vm("W%d" % (s + 1))
            g.barrier()
        if s % 4 == 0:
            stamp(g, 0, V_T)
        if s + NSLOT - 1 < nsteps:
            issue_w(s + NSLOT - 1)
        if s + 1 < nsteps:
            perm_b(s + 1)
        for t in range(8):
            g.wait_lg("A%d_%d" % (s, t))
            if t == 0:
                g.wait_lg("F%d" % s)
            for u in range(3):
                g.mfma(acc(t, u), R_A + t * 4, bfrag(s, u), None if s == 0 else acc(t, u))
            if s + 1 < nsteps:
                tr_reads(s + 1, t)
        if s + NB < nsteps:
            g.wait_lg("F%d" % (s + 1))
            issue_b(s + NB)
        if s == nsteps - NB - 1 and not kv_first:
            issue_kv()

    post_gemm_addrs(g)
    stamp(g, 0, V_T)
    for p in range(4):
        for u in range(3):
            pack_pair(g, acc(2 * p, u), acc(2 * p + 1, u))
    KA = R_B + 24
    KW = R_B + 32
    for m in range(4):
        vop(g, "v_xor_b32 %s, %d, %s" % (vr(KW + m), m * 64, vr(V_KW)), KW + m, [V_KW])
    for c in range(8):
        vop(g, "v_xor_b32 %s, %d, %s" % (vr(KA + c), c * 32, vr(V_KR)), KA + c, [V_KR])

    def sacc(kt, u):
        i = kt * 3 + u
        if i < 12:
            return acc(1 + 2 * (i // 3), i % 3)
        return R_B + (i - 12) * 4

    def k_write(i, slot_off):
        g.wait_vm("K%d" % i)
        for m in range(4):
            d = R_K + (i * 4 + m) * 4
            g.dswrite("ds_write_b128 %s, %s offset:%d" % (vr(KW + m), vr(d, 4), slot_off + m * 1024), "KW", data=rng(d, 4), addr=[KW + m])

    def k_reads(n, slot_off):
        for p in range(4):
            for j in range(2):
                d = R_A + ((n & 1) * 4 + p) * 4 + 2 * j
                g.dsread("ds_read_b64 %s, %s offset:%d" % (vr(d, 2), vr(KA + 2 * p + j), slot_off), "KF%d_%d" % (n, p), dst=rng(d, 2), addr=[KA + 2 * p + j])

    def s_tile(n, kt):
        for p in range(4):
            g.wait_lg("KF%d_%d" % (n, p))
            for u in range(3):
                g.mfma(sacc(kt, u), R_A + ((n & 1) * 4 + p) * 4, acc(2 * p, u), None if p == 0 else sacc(kt, u))

    g.barrier()
    k_write(0, 0)
    k_write(1, 4096)
    g.wait_lg("KW")
    g.barrier()
    r1 = [0, 1, 3, 4]
    k_reads(0, 0)
    for n in range(4):
        if n + 1 < 4:
            k_reads(n + 1, (n + 1) * 4096)
        s_tile(n, r1[n])
    g.barrier()
    for m in range(4):
        vop(g, "v_subrev_u32 %s, %s, %s" % (vr(KW + m), sr(S_W4K), vr(KW + m)), KW + m, [KW + m])
    for c in range(8):
        vop(g, "v_subrev_u32 %s, %s, %s" % (vr(KA + c), sr(S_B8K), vr(KA + c)), KA + c, [KA + c])
    k_write(2, 0)
    g.wait_lg("KW")
    g.barrier()
    k_reads(4, 0)
    k_reads(5, 4096)
    s_tile(4, 2)
    s_tile(5, 5)
    stamp(g, 0, V_T)
    g.wait_vm("V")
    g.barrier()
    for t in range(8):
        vop(g, "v_add_u32 %s, %s, %s" % (vr(V_A + t), vr(V_A + t), vr(V_DELTA)), V_A + t, [V_A + t, V_DELTA])

    def v_reads(pp, t):
        for j in range(2):
            d = R_A + t * 4 + j * 2
            g.dsread("ds_read_b64_tr_b16 %s, %s offset:%d" % (vr(d, 2), vr(V_A + t), pp * 8192 + j * 4096),
                     "VT%d_%d" % (pp, t), dst=rng(d, 2), addr=[V_A + t])

    for t in range(8):
        v_reads(0, t)
    stamp(g, 0, V_T)

    def pfrag(pp, u):
        return R_K + (pp * 3 + u) * 4
    TMP = R_K + 36
    for u in range(3):
        a, b = TMP, TMP + 1
        for kt in range(6):
            r = sacc(kt, u)
            for rep in range(2):
                g.valu("v_cvt_pk_bf16_f32 %s, %s, %s" % (vr(a), vr(r), vr(r + 1)), dst=[a], src=[r, r + 1])
                g.valu("v_cvt_pk_bf16_f32 %s, %s, %s" % (vr(b), vr(r + 2), vr(r + 3)), dst=[b], src=[r + 2, r + 3])
                vop(g, "v_lshlrev_b32 %s, 16, %s" % (vr(r), vr(a)), r, [a])
                vop(g, "v_and_b32 %s, 0xffff0000, %s" % (vr(r + 1), vr(a)), r + 1, [a])
                vop(g, "v_lshlrev_b32 %s, 16, %s" % (vr(r + 2), vr(b)), r + 2, [b])
                vop(g, "v_and_b32 %s, 0xffff0000, %s" % (vr(r + 3), vr(b)), r + 3, [b])
                if rep == 0:
                    g.valu("v_pk_mul_f32 %s, %s, %s" % (vr(r, 2), vr(r, 2), sr(S_SC, 2)), dst=[r, r + 1], src=[r, r + 1])
                    g.valu("v_pk_mul_f32 %s, %s, %s" % (vr(r + 2, 2), vr(r + 2, 2), sr(S_SC, 2)), dst=[r + 2, r + 3], src=[r + 2, r + 3])
        vals = [sacc(kt, u) + r for kt in range(6) for r in range(4)]
        m = TMP + 2
        vop(g, "v_max3_f32 %s, %s, %s, %s" % (vr(m), vr(vals[0]), vr(vals[1]), vr(vals[2])), m, vals[0:3])
        i = 3
        while i < 24:
            if i + 1 < 24:
                vop(g, "v_max3_f32 %s, %s, %s, %s" % (vr(m), vr(m), vr(vals[i]), vr(vals[i + 1])), m, [m, vals[i], vals[i + 1]])
                i += 2
            else:
                vop(g, "v_max_f32 %s, %s, %s" % (vr(m), vr(m), vr(vals[i])), m, [m, vals[i]])
                i += 1
        xlane_reduce(g, m, TMP + 3, "v_max_f32")
        for v in vals:
            vop(g, "v_sub_f32 %s, %s, %s" % (vr(v), vr(v), vr(m)), v, [v, m])
        for k in range(0, 24, 2):
            v = vals[k]
            g.valu("v_pk_mul_f32 %s, %s, %s" % (vr(v, 2), vr(v, 2), sr(S_L2E, 2)), dst=[v, v + 1], src=[v, v + 1])
        for v in vals:
            g.valu("v_exp_f32 %s, %s" % (vr(v), vr(v)), dst=[v], src=[v], trans=True)
        sm = TMP + 4
        g.valu("v_pk_add_f32 %s, %s, %s" % (vr(sm, 2), vr(vals[0], 2), vr(vals[2], 2)), dst=[sm, sm + 1], src=vals[0:4])
        for k in range(4, 24, 2):
            g.valu("v_pk_add_f32 %s, %s, %s" % (vr(sm, 2), vr(sm, 2), vr(vals[k], 2)), dst=[sm, sm + 1], src=[sm, sm + 1, vals[k], vals[k] + 1])
        vop(g, "v_add_f32 %s, %s, %s" % (vr(sm), vr(sm), vr(sm + 1)), sm, [sm, sm + 1])
        xlane_reduce(g, sm, TMP + 3, "v_add_f32")
        g.valu("v_rcp_f32 %s, %s" % (vr(sm), vr(sm)), dst=[sm], src=[sm], trans=True)
        vop(g, "v_mov_b32 %s, %s" % (vr(sm + 1), vr(sm)), sm + 1, [sm])
        for k in range(0, 24, 2):
            v = vals[k]
            g.valu("v_pk_mul_f32 %s, %s, %s" % (vr(v, 2), vr(v, 2), vr(sm, 2)), dst=[v, v + 1], src=[v, v + 1, sm, sm + 1])
        for pp in range(3):
            d = pfrag(pp, u)
            lo, hi = sacc(2 * pp, u), sacc(2 * pp + 1, u)
            g.valu("v_cvt_pk_bf16_f32 %s, %s, %s" % (vr(d), vr(lo), vr(lo + 1)), dst=[d], src=[lo, lo + 1])
            g.valu("v_cvt_pk_bf16_f32 %s, %s, %s" % (vr(d + 1), vr(lo + 2), vr(lo + 3)), dst=[d + 1], src=[lo + 2, lo + 3])
            g.valu("v_cvt_pk_bf16_f32 %s, %s, %s" % (vr(d + 2), vr(hi), vr(hi + 1)), dst=[d + 2], src=[hi, hi + 1])
            g.valu("v_cvt_pk_bf16_f32 %s, %s, %s" % (vr(d + 3), vr(hi + 2), vr(hi + 3)), dst=[d + 3], src=[hi + 2, hi + 3])
    stamp(g, 0, V_T)
    for pp in range(3):
        for t in range(8):
            g.wait_lg("VT%d_%d" % (pp, t))
            for u in range(3):
                g.mfma(acc(t, u), R_A + t * 4, pfrag(pp, u), None if pp == 0 else acc(t, u))
            if pp < 2:
                v_reads(pp + 1, t)
    stamp(g, 0, V_T)
    if WOPF:
        g.vload("buffer_load_dword %s, %s, %s, 0 offen" % (vr(V_T + 3), vr(V_WO), sr(SRD_WO, 4)), "TCH", dst=[V_T + 3], addr=[V_WO])
    for p in range(4):
        for u in range(3):
            pack_pair(g, acc(2 * p, u), acc(2 * p + 1, u))
            g.s("s_mov_b32 %s, %d" % (sr(S_TMP), u * 131072))
            d = acc(2 * p, u)
            g.vstore("buffer_store_dwordx4 %s, %s, %s, %s offen offset:%d" % (vr(d, 4), vr(V_O), sr(SRD_WS, 4), sr(S_TMP), p * 1024),
                     "ST", data=rng(d, 4), addr=[V_O])
    if STAMP:
        g.wait_vm("ST")
        stamp(g, 0, V_T)
    g.s("s_endpgm")


def gen_attn():
    g = Gen()
    g.s("s_cmp_ge_u32 s2, 256")
    g.s("s_cbranch_scc1 attn_end")
    lane_setup(g)
    g.s("s_and_b32 s4, s2, 7")
    g.s("s_lshr_b32 s5, s2, 3")
    g.s("s_lshr_b32 s6, s4, 2")
    g.s("s_and_b32 s7, s4, 3")
    g.s("s_lshl_b32 s7, s7, 3")
    g.s("s_lshr_b32 s16, s5, 2")
    g.s("s_add_u32 s43, s7, s16")
    g.s("s_and_b32 s40, s16, 1")
    g.s("s_and_b32 s5, s5, 3")
    g.s("s_mul_i32 s16, s6, 40")
    g.s("s_add_u32 s18, s0, s16")
    g.s("s_addc_u32 s19, s1, 0")
    g.s("s_load_dwordx8 s[8:15], s[18:19], 0")
    g.s("s_load_dwordx2 s[16:17], s[0:1], 96")
    g.s("s_load_dwordx2 s[68:69], s[18:19], 32")
    g.s("s_lshr_b32 s41, s3, 1")
    g.s("s_and_b32 s42, s3, 1")
    g.s("s_lshl_b32 s44, s5, 2")
    g.s("s_add_u32 s44, s44, s41")
    g.s("s_lshl_b32 s45, s44, 5")
    g.s("s_add_u32 s45, s45, s43")
    g.s("s_mul_i32 s45, s45, 24576")
    g.s("s_mov_b32 %s, 0x3db504f3" % sr(S_SC))
    g.s("s_mov_b32 %s, 0x3db504f3" % sr(S_SC + 1))
    g.s("s_mov_b32 %s, 0x3fb8aa3b" % sr(S_L2E))
    g.s("s_mov_b32 %s, 0x3fb8aa3b" % sr(S_L2E + 1))
    g.s("s_mul_i32 s55, s44, 98304")
    g.s("s_mul_i32 s56, s42, 49152")
    g.s("s_add_u32 s55, s55, s56")
    vop(g, "v_lshrrev_b32 v8, 2, v1", 8, [1])
    vop(g, "v_lshlrev_b32 v8, 10, v8", 8, [8])
    vop(g, "v_lshl_add_u32 v8, v5, 4, v8", 8, [5, 8])
    vop(g, "v_add_u32 %s, s55, v8" % vr(V_X), V_X, [8])
    g.s("s_mul_i32 s55, s42, 12288")
    g.s("s_add_u32 s55, s55, s45")
    vop(g, "v_lshlrev_b32 v8, 4, v1", 8, [1])
    vop(g, "v_add_u32 %s, s55, v8" % vr(V_K), V_K, [8])
    g.s("s_lshl_b32 %s, s3, 12" % sr(S_W4K))
    g.s("s_lshl_b32 %s, s41, 13" % sr(S_B8K))
    g.s("s_mul_i32 s55, s42, 12288")
    g.s("s_add_u32 s55, s55, s45")
    for par in range(2):
        vop(g, "v_add_u32 v8, %d, v3" % (4 * par), 8, [3])
        vop(g, "v_lshlrev_b32 v8, 1, v8", 8, [8])
        vop(g, "v_xor_b32 v8, v8, v2", 8, [8, 2])
        vop(g, "v_lshlrev_b32 v8, 4, v8", 8, [8])
        vop(g, "v_lshl_add_u32 v8, v3, 8, v8", 8, [3, 8])
        vop(g, "v_add_u32 %s, s55, v8" % vr(V_VD0 + par), V_VD0 + par, [8])
    g.s("s_and_b32 s55, s41, 1")
    g.s("s_lshl_b32 s55, s55, 2")
    vop(g, "v_or_b32 v8, s55, v3", 8, [3])
    vop(g, "v_lshlrev_b32 v8, 1, v8", 8, [8])
    vop(g, "v_xor_b32 v8, v8, v2", 8, [8, 2])
    vop(g, "v_lshlrev_b32 v8, 4, v8", 8, [8])
    vop(g, "v_lshl_add_u32 v8, v3, 13, v8", 8, [3, 8])
    g.s("s_lshl_b32 s55, s3, 15")
    g.s("s_lshl_b32 s56, s43, 8")
    g.s("s_add_u32 s55, s55, s56")
    vop(g, "v_add_u32 %s, s55, v8" % vr(V_W), V_W, [8])
    g.s("s_lshl_b32 %s, s3, 10" % sr(S_M0W))
    vop(g, "v_lshlrev_b32 v8, 3, v3", 8, [3])
    vop(g, "v_add_u32 v8, v8, v4", 8, [8, 4])
    vop(g, "v_lshlrev_b32 v8, 8, v8", 8, [8])
    vop(g, "v_lshl_add_u32 v8, v5, 3, v8", 8, [8, 5])
    for t in range(8):
        vop(g, "v_xor_b32 v9, %d, v6" % t, 9, [6])
        vop(g, "v_lshl_add_u32 %s, v9, 5, v8" % vr(V_A + t), V_A + t, [9, 8])
    g.s("s_mul_i32 s55, s41, 24576")
    g.s("s_add_u32 s55, s55, %d" % A_V_LDS)
    g.s("s_mul_i32 s56, s42, 12288")
    g.s("s_add_u32 %s, s55, s56" % sr(S_M0V))
    vop(g, "v_mov_b32 %s, v1" % vr(V_LANE), V_LANE, [1])
    vop(g, "v_lshl_add_u32 v8, v2, 2, v3", 8, [2, 3])
    vop(g, "v_lshlrev_b32 %s, 2, v8" % vr(V_BP), V_BP, [8])
    g.waitcnt(lg=0)
    make_srd(g, SRD_X, 8, 1572864)
    make_srd(g, SRD_K, 10, 12582912)
    make_srd(g, SRD_V, 12, 12582912)
    make_srd(g, SRD_W, 14, 4194304)
    make_srd(g, SRD_WS, 16, WS_BYTES)
    make_srd(g, SRD_WO, 68, 4194304)
    if TOUCH:
        g.s("s_lshl_b32 s55, s5, 3")
        g.s("s_add_u32 s55, s55, s3")
        g.s("s_lshl_b32 s55, s55, 17")
        g.s("s_lshl_b32 s56, s43, 8")
        g.s("s_add_u32 s55, s55, s56")
        vop(g, "v_lshrrev_b32 v8, 2, v1", 8, [1])
        vop(g, "v_lshlrev_b32 v8, 13, v8", 8, [8])
        vop(g, "v_lshl_add_u32 v8, v5, 6, v8", 8, [5, 8])
        vop(g, "v_add_u32 v8, s55, v8", 8, [8])
        g.vload("buffer_load_dword %s, v8, %s, 0 offen" % (vr(V_T + 3), sr(SRD_W, 4)), "TCH", dst=[V_T + 3], addr=[8])
        g.s("s_mul_i32 s55, s44, 98304")
        g.s("s_mul_i32 s56, s42, 49152")
        g.s("s_add_u32 s55, s55, s56")
        g.s("s_and_b32 s56, s43, 3")
        g.s("s_mul_i32 s56, s56, 12288")
        g.s("s_add_u32 s55, s55, s56")
        vop(g, "v_lshlrev_b32 v9, 6, v1", 9, [1])
        vop(g, "v_add_u32 v9, s55, v9", 9, [9])
        for i in range(3):
            g.s("s_mov_b32 %s, %d" % (sr(S_TMP), i * 4096))
            g.vload("buffer_load_dword %s, v9, %s, %s offen" % (vr(V_T + 3), sr(SRD_X, 4), sr(S_TMP)), "TCH", dst=[V_T + 3], addr=[9])
    g.s("s_cmp_eq_u32 s40, 1")
    g.s("s_cbranch_scc1 attn_kvfirst")
    t0 = g.text()
    gb = Gen()
    gb.vmq = list(g.vmq)
    _stamp_n[0] = 0
    attn_body(gb, False)
    ga = Gen()
    ga.vmq = list(g.vmq)
    _stamp_n[0] = 0
    ga.label("attn_kvfirst")
    attn_body(ga, True)
    ga.label("attn_end")
    ga.s("s_endpgm")
    return t0 + gb.text() + ga.text()


O_ACC = 0
O_A = 96
O_B = 112
O_VA = 184
O_VX = 188
O_VW = 189
O_VO = 190
O_VL = 191
O_VT = 192


def gen_oproj():
    g = Gen()
    _stamp_n[0] = 0

    def oacc(t, u):
        return O_ACC + (t * 6 + u) * 4

    def bfr(s, u):
        return O_B + ((s % 3) * 6 + u) * 4

    g.s("s_cmp_ge_u32 s2, 256")
    g.s("s_cbranch_scc1 oproj_end")
    lane_setup(g)
    g.s("s_and_b32 s4, s2, 7")
    g.s("s_lshr_b32 s5, s2, 3")
    g.s("s_lshr_b32 s6, s4, 2")
    g.s("s_and_b32 s7, s4, 3")
    g.s("s_and_b32 s40, s5, 3")
    g.s("s_lshr_b32 s41, s5, 2")
    g.s("s_mul_i32 s16, s6, 40")
    g.s("s_add_u32 s18, s0, s16")
    g.s("s_addc_u32 s19, s1, 0")
    g.s("s_load_dwordx2 s[14:15], s[18:19], 32")
    g.s("s_load_dwordx2 s[16:17], s[0:1], 96")
    g.s("s_load_dwordx2 s[12:13], s[0:1], 80")
    g.s("s_mul_i32 s55, s7, 24")
    g.s("s_mul_i32 s56, s40, 6")
    g.s("s_add_u32 s42, s55, s56")
    g.s("s_lshl_b32 s55, s42, 7")
    g.s("s_lshl_b32 s56, s3, 4")
    g.s("s_add_u32 s55, s55, s56")
    g.s("s_lshl_b32 s55, s55, 10")
    g.s("s_mul_i32 s56, s6, %d" % O_BLOCK_BYTES)
    g.s("s_add_u32 s55, s55, s56")
    vop(g, "v_lshlrev_b32 %s, 4, v1" % vr(O_VL), O_VL, [1])
    vop(g, "v_add_u32 %s, s55, %s" % (vr(O_VX), vr(O_VL)), O_VX, [O_VL])
    vop(g, "v_and_b32 v8, 7, v1", 8, [1])
    vop(g, "v_lshlrev_b32 v9, 1, v3", 9, [3])
    vop(g, "v_xor_b32 v8, v8, v9", 8, [8, 9])
    vop(g, "v_lshlrev_b32 v8, 4, v8", 8, [8])
    vop(g, "v_lshrrev_b32 v9, 3, v1", 9, [1])
    vop(g, "v_lshl_add_u32 v8, v9, 10, v8", 8, [8, 9])
    g.s("s_lshl_b32 s55, s41, 7")
    g.s("s_lshl_b32 s56, s3, 19")
    g.s("s_add_u32 s55, s55, s56")
    vop(g, "v_add_u32 %s, s55, v8" % vr(O_VW), O_VW, [8])
    g.s("s_lshl_b32 %s, s3, 14" % sr(S_M0W))
    vop(g, "v_lshlrev_b32 v8, 2, v3", 8, [3])
    vop(g, "v_add_u32 v8, v8, v4", 8, [8, 4])
    vop(g, "v_bfe_u32 v9, v8, 1, 2", 9, [8])
    vop(g, "v_lshlrev_b32 v8, 7, v8", 8, [8])
    vop(g, "v_lshl_add_u32 v8, v5, 3, v8", 8, [8, 5])
    vop(g, "v_add_u32 v8, %s, v8" % sr(S_M0W), 8, [8])
    for t in range(4):
        vop(g, "v_xor_b32 v10, %d, v9" % t, 10, [9])
        vop(g, "v_lshl_add_u32 %s, v10, 5, v8" % vr(O_VA + t), O_VA + t, [10, 8])
    g.s("s_lshl_b32 s55, s42, 4")
    g.s("s_lshl_b32 s55, s55, 10")
    g.s("s_lshl_b32 s56, s6, 9")
    g.s("s_add_u32 s55, s55, s56")
    g.s("s_lshl_b32 s56, s41, 6")
    g.s("s_add_u32 s55, s55, s56")
    g.s("s_lshl_b32 s55, s55, 1")
    vop(g, "v_lshlrev_b32 v8, 11, v2", 8, [2])
    vop(g, "v_lshl_add_u32 v8, v3, 3, v8", 8, [3, 8])
    vop(g, "v_add_u32 %s, s55, v8" % vr(O_VO), O_VO, [8])
    g.waitcnt(lg=0)
    make_srd(g, SRD_W, 14, 4194304)
    make_srd(g, SRD_WS, 16, WS_BYTES)
    make_srd(g, SRD_OUT, 12, 16 * 96 * 1024 * 2)

    def issue_w(c):
        for i in range(4):
            g.s("s_mov_b32 %s, %d" % (sr(S_WOFF), c * 32768 + i * 8192))
            g.s("s_add_u32 m0, %s, %d" % (sr(S_M0W), (c % 4) * 4096 + i * 1024), m0=True)
            g.vload("buffer_load_dwordx4 %s, %s, %s offen lds" % (vr(O_VW), sr(SRD_W, 4), sr(S_WOFF)),
                    "W%d" % c, addr=[O_VW], lds=True)

    def issue_b(s):
        for u in range(6):
            g.s("s_mov_b32 %s, %d" % (sr(S_TMP), u * 131072 + (s >> 2) * 4096))
            d = bfr(s, u)
            g.vload("buffer_load_dwordx4 %s, %s, %s, %s offen offset:%d" % (vr(d, 4), vr(O_VX), sr(SRD_WS, 4), sr(S_TMP), (s & 3) * 1024),
                    "B%d" % s, dst=rng(d, 4), addr=[O_VX])

    def tr_reads(s, t):
        for j in range(2):
            d = O_A + t * 4 + j * 2
            g.dsread("ds_read_b64_tr_b16 %s, %s offset:%d" % (vr(d, 2), vr(O_VA + t), (s % 4) * 4096 + j * 2048),
                     "A%d_%d" % (s, t), dst=rng(d, 2), addr=[O_VA + t])

    stamp(g, 1, O_VT)
    if OTOUCH:
        g.s("s_lshl_b32 s55, s3, 19")
        g.s("s_lshl_b32 s56, s40, 17")
        g.s("s_add_u32 s55, s55, s56")
        g.s("s_lshl_b32 s56, s41, 7")
        g.s("s_add_u32 s55, s55, s56")
        vop(g, "v_lshrrev_b32 v8, 1, v1", 8, [1])
        vop(g, "v_lshlrev_b32 v8, 10, v8", 8, [8])
        vop(g, "v_and_b32 v9, 1, v1", 9, [1])
        vop(g, "v_lshl_add_u32 v8, v9, 6, v8", 8, [8, 9])
        vop(g, "v_add_u32 v8, s55, v8", 8, [8])
        for i in range(4):
            g.s("s_mov_b32 %s, %d" % (sr(S_TMP), i * 32768))
            g.vload("buffer_load_dword %s, v8, %s, %s offen" % (vr(O_VT + 3), sr(SRD_W, 4), sr(S_TMP)), "TCH", dst=[O_VT + 3], addr=[8])
        vop(g, "v_sub_u32 v9, %s, %s" % (vr(O_VX), vr(O_VL)), 9, [O_VX, O_VL])
        vop(g, "v_lshrrev_b32 v10, 5, v1", 10, [1])
        vop(g, "v_lshl_add_u32 v9, v10, 17, v9", 9, [9, 10])
        vop(g, "v_and_b32 v10, 31, v1", 10, [1])
        vop(g, "v_lshl_add_u32 v9, v10, 6, v9", 9, [9, 10])
        g.s("s_lshl_b32 s55, s41, 11")
        vop(g, "v_add_u32 v9, s55, v9", 9, [9])
        for i in range(3):
            g.s("s_mov_b32 %s, %d" % (sr(S_TMP), i * 262144))
            g.vload("buffer_load_dword %s, v9, %s, %s offen" % (vr(O_VT + 3), sr(SRD_WS, 4), sr(S_TMP)), "TCH", dst=[O_VT + 3], addr=[9])
    for c in range(3):
        issue_w(c)
        issue_b(c)
    g.wait_vm("W0")
    for t in range(4):
        tr_reads(0, t)
    nsteps = 16
    for s in range(nsteps):
        g.comment("---- step %d" % s)
        if s % 4 == 0:
            stamp(g, 1, O_VT)
        if s + 3 < nsteps:
            issue_w(s + 3)
        for t in range(4):
            g.wait_lg("A%d_%d" % (s, t))
            if t == 0:
                g.wait_vm("B%d" % s)
            for u in range(6):
                g.mfma(oacc(t, u), O_A + t * 4, bfr(s, u), None if s == 0 else oacc(t, u))
            if s + 1 < nsteps:
                if t == 0:
                    g.wait_vm("W%d" % (s + 1))
                tr_reads(s + 1, t)
        if s + 3 < nsteps:
            issue_b(s + 3)
    stamp(g, 1, O_VT)
    g.s("s_lshl_b32 s55, s3, 13")
    g.s("s_lshl_b32 s56, s3, 10")
    vop(g, "v_add_u32 %s, s55, %s" % (vr(O_VA), vr(O_VL)), O_VA, [O_VL])
    vop(g, "v_add_u32 %s, s56, %s" % (vr(O_VA + 1), vr(O_VL)), O_VA + 1, [O_VL])
    vop(g, "v_add_u32 %s, 0x10000, %s" % (vr(O_VA + 2), vr(O_VA)), O_VA + 2, [O_VA])
    vop(g, "v_add_u32 %s, 0x10000, %s" % (vr(O_VA + 3), vr(O_VA + 1)), O_VA + 3, [O_VA + 1])
    g.barrier()
    for ph in range(3):
        wa = O_VA + 2 * (ph & 1)
        ra = wa + 1
        for i in range(8):
            d = O_ACC + (8 * ph + i) * 4
            g.dswrite("ds_write_b128 %s, %s offset:%d" % (vr(wa), vr(d, 4), i * 1024), "RW", data=rng(d, 4), addr=[wa])
        g.wait_lg("RW")
        g.barrier()
        T = O_VT + 4
        for w2 in range(8):
            d = T + w2 * 4
            g.dsread("ds_read_b128 %s, %s offset:%d" % (vr(d, 4), vr(ra), w2 * 8192), "RR%d" % w2, dst=rng(d, 4), addr=[ra])
        for w2 in range(1, 8):
            g.wait_lg("RR%d" % w2)
            for h in range(2):
                d = T + h * 2
                s_ = T + w2 * 4 + h * 2
                g.valu("v_pk_add_f32 %s, %s, %s" % (vr(d, 2), vr(d, 2), vr(s_, 2)), dst=[d, d + 1], src=[d, d + 1, s_, s_ + 1])
        o = O_VT + 40 + ph * 2
        g.valu("v_cvt_pk_bf16_f32 %s, %s, %s" % (vr(o), vr(T), vr(T + 1)), dst=[o], src=[T, T + 1])
        g.valu("v_cvt_pk_bf16_f32 %s, %s, %s" % (vr(o + 1), vr(T + 2), vr(T + 3)), dst=[o + 1], src=[T + 2, T + 3])
        g.s("s_add_u32 s55, s3, %d" % (8 * ph))
        g.s("s_mul_i32 s56, s55, 43")
        g.s("s_lshr_b32 s56, s56, 8")
        g.s("s_mul_i32 s57, s56, 6")
        g.s("s_sub_u32 s57, s55, s57")
        g.s("s_lshl_b32 s57, s57, 15")
        g.s("s_lshl_b32 s56, s56, 5")
        g.s("s_add_u32 s57, s57, s56")
        g.vstore("buffer_store_dwordx2 %s, %s, %s, s57 offen" % (vr(o, 2), vr(O_VO), sr(SRD_OUT, 4)), "ST", data=rng(o, 2), addr=[O_VO])
    if STAMP:
        g.wait_vm("ST")
        stamp(g, 1, O_VT)
    g.label("oproj_end")
    g.s("s_endpgm")
    return g.text()


HEADER = """; Kernarg layout for this problem (104 bytes, ptrs only, base s[0:1]):
; @launch kernel=attn_kernel grid=(256,1,1) block=(512,1,1) lds=163840
; @launch kernel=oproj_kernel grid=(256,1,1) block=(512,1,1) lds=131072
.amdgcn_target "amdgcn-amd-amdhsa--gfx950"
.text
"""


def kernel_text(name, body):
    return (".globl %s\n.p2align 8\n.type %s,@function\n%s:\n" % (name, name, name)) + body


def kd(name, vgpr, sgpr):
    acc_off = (vgpr + 3) // 4 * 4
    return """.p2align 6
.amdhsa_kernel %s
  .amdhsa_next_free_vgpr %d
  .amdhsa_next_free_sgpr %d
  .amdhsa_accum_offset %d
  .amdhsa_group_segment_fixed_size 0
  .amdhsa_kernarg_size 104
  .amdhsa_user_sgpr_count 2
  .amdhsa_user_sgpr_kernarg_segment_ptr 1
  .amdhsa_system_sgpr_workgroup_id_x 1
.end_amdhsa_kernel
""" % (name, vgpr, sgpr, acc_off)


def main():
    out = HEADER
    out += kernel_text("attn_kernel", gen_attn())
    out += kernel_text("oproj_kernel", gen_oproj())
    out += '.section .rodata,"a"\n'
    out += kd("attn_kernel", 256, 80)
    out += kd("oproj_kernel", 256, 64)
    path = sys.argv[1] if len(sys.argv) > 1 else "cdna_kernels/%s.s" % NAME
    open(path, "w").write(out)
    print("wrote", path, len(out), "bytes")


if __name__ == "__main__":
    main()
```

```python
import sys, os
sys.path.insert(0, os.path.dirname(os.path.abspath(__file__)))
from asmgen import Gen, vr, sr

NAME = "concat_heads__gqa_block_cached__gqa_block_cached__near_ridge"
O_BLOCK_BYTES = 1536 * 4096 * 2
WS_BYTES = 268435456

STAMP = int(os.environ.get("STAMP", "0"))
STAMP_BASE = 200 * 1024 * 1024
NT = os.environ.get("NT", " nt")
TOUCH = int(os.environ.get("TOUCH", "1"))
TWAIT = int(os.environ.get("TWAIT", "1"))
WOPF = int(os.environ.get("WOPF", "1"))
OTOUCH = int(os.environ.get("OTOUCH", "0"))
_stamp_n = [0]

S_WAVE = 3
SRD_X = 20
SRD_K = 24
SRD_V = 28
SRD_W = 32
SRD_WS = 36
SRD_OUT = 76
SRD_WO = 64
SRD_DBG = 72
S_ME = 70
S_STOLEN = 71
S_GOFF = 84
S_W0 = 86
S_CL = 88
O_LDS = 32768
SLEEP = int(os.environ.get("SLEEP", "4"))
FORCE_STEAL = int(os.environ.get("FORCE_STEAL", "0"))
S_M0W = 46
S_TMP = 47
S_WOFF = 48
S_M0V = 49
S_SC = 50
S_L2E = 52
S_W4K = 54
S_B8K = 57


def rng(a, n):
    return list(range(a, a + n))


def stamp(g, kid, vt):
    if not STAMP:
        return
    n = _stamp_n[0]
    _stamp_n[0] += 1
    g.s("s_memtime s[60:61]")
    g.waitcnt(lg=0)
    g.lgq = []
    g.s("s_lshl_b32 s62, s70, 8")
    g.s("s_add_u32 s62, s62, %d" % (STAMP_BASE + kid * 131072 + n * 8))
    g.s("s_mul_i32 s63, s3, 1048576")
    g.s("s_add_u32 s62, s62, s63")
    g.valu("v_mov_b32 %s, s60" % vr(vt), dst=[vt])
    g.valu("v_mov_b32 %s, s61" % vr(vt + 1), dst=[vt + 1])
    g.valu("v_mov_b32 %s, s62" % vr(vt + 2), dst=[vt + 2])
    g.s("s_mov_b64 s[58:59], exec")
    g.s("s_mov_b64 exec, 1")
    g.vstore("buffer_store_dwordx2 %s, %s, %s, 0 offen" % (vr(vt, 2), vr(vt + 2), sr(SRD_WS, 4)), "STAMP", data=[vt, vt + 1], addr=[vt + 2])
    g.s("s_mov_b64 exec, s[58:59]")


def make_srd(g, srd, ptr, nbytes):
    g.s("s_mov_b32 %s, %s" % (sr(srd), sr(ptr)))
    g.s("s_and_b32 %s, %s, 0xffff" % (sr(srd + 1), sr(ptr + 1)))
    g.s("s_mov_b32 %s, %d" % (sr(srd + 2), nbytes))
    g.s("s_mov_b32 %s, 0x00020000" % sr(srd + 3))


def vop(g, text, dst, src=()):
    g.valu(text, dst=[dst] if isinstance(dst, int) else dst, src=src)


def lane_setup(g):
    vop(g, "v_mov_b32 v1, %s" % vr(V_LANE), 1, [V_LANE])
    vop(g, "v_and_b32 v2, 15, v1", 2, [1])
    vop(g, "v_lshrrev_b32 v3, 4, v1", 3, [1])
    vop(g, "v_bfe_u32 v4, v1, 2, 2", 4, [1])
    vop(g, "v_and_b32 v5, 3, v1", 5, [1])
    vop(g, "v_and_b32 v6, 1, v3", 6, [3])
    vop(g, "v_lshlrev_b32 v6, 2, v6", 6, [6])
    vop(g, "v_or_b32 v6, v6, v4", 6, [6, 4])


def pack_pair(g, lo, hi):
    g.valu("v_cvt_pk_bf16_f32 %s, %s, %s" % (vr(lo), vr(lo), vr(lo + 1)), dst=[lo], src=[lo, lo + 1])
    g.valu("v_cvt_pk_bf16_f32 %s, %s, %s" % (vr(lo + 1), vr(lo + 2), vr(lo + 3)), dst=[lo + 1], src=[lo + 2, lo + 3])
    g.valu("v_cvt_pk_bf16_f32 %s, %s, %s" % (vr(lo + 2), vr(hi), vr(hi + 1)), dst=[lo + 2], src=[hi, hi + 1])
    g.valu("v_cvt_pk_bf16_f32 %s, %s, %s" % (vr(lo + 3), vr(hi + 2), vr(hi + 3)), dst=[lo + 3], src=[hi + 2, hi + 3])


def xlane_reduce(g, m, tmp, op):
    for sw in ("v_permlane32_swap_b32", "v_permlane16_swap_b32"):
        vop(g, "v_mov_b32 %s, %s" % (vr(tmp), vr(m)), tmp, [m])
        g.valu("%s %s, %s" % (sw, vr(m), vr(tmp)), dst=[m, tmp], src=[m, tmp], permlane=True)
        vop(g, "%s %s, %s, %s" % (op, vr(m), vr(m), vr(tmp)), m, [m, tmp])


R_ACC = 0
R_A = 96
R_B = 128
R_F = 164
R_K = 188
V_A = 236
V_X = 244
V_W = 245
V_BP = 246
V_VD0 = 247
V_VD1 = 248
V_K = 249
V_LANE = 250
V_CLAIM = 251
V_T = 252
V_KW = R_B + 36
V_KR = R_B + 37
V_WO = R_B + 38
V_O = R_B + 39
V_DELTA = R_B + 40
T0 = R_B + 41
V_MASK = R_B + 47
A_V_LDS = 65536
NSLOT = 8
NB = 3


def acc(t, u):
    return R_ACC + (t * 3 + u) * 4


def bstage(s, u):
    return R_B + ((s % NB) * 3 + u) * 4


def bfrag(s, u):
    return R_F + ((s % 2) * 3 + u) * 4


def post_gemm_addrs(g):
    L, Q, G, R, C, A, B = V_LANE, T0, T0 + 1, T0 + 2, T0 + 3, T0 + 4, T0 + 5
    v = vr
    vop(g, "v_and_b32 %s, 15, %s" % (v(Q), v(L)), Q, [L])
    vop(g, "v_lshrrev_b32 %s, 4, %s" % (v(G), v(L)), G, [L])
    vop(g, "v_bfe_u32 %s, %s, 2, 2" % (v(R), v(L)), R, [L])
    vop(g, "v_and_b32 %s, 3, %s" % (v(C), v(L)), C, [L])
    vop(g, "v_xor_b32 %s, %s, %s" % (v(A), v(Q), v(G)), A, [Q, G])
    vop(g, "v_lshlrev_b32 %s, 4, %s" % (v(A), v(A)), A, [A])
    vop(g, "v_lshl_add_u32 %s, %s, 8, %s" % (v(A), v(G), v(A)), A, [G, A])
    g.s("s_lshl_b32 s55, s3, 13")
    vop(g, "v_add_u32 %s, s55, %s" % (v(V_KW), v(A)), V_KW, [A])
    vop(g, "v_lshrrev_b32 %s, 1, %s" % (v(A), v(G)), A, [G])
    vop(g, "v_xor_b32 %s, %s, %s" % (v(A), v(A), v(Q)), A, [A, Q])
    vop(g, "v_lshlrev_b32 %s, 4, %s" % (v(A), v(A)), A, [A])
    vop(g, "v_lshl_add_u32 %s, %s, 8, %s" % (v(A), v(Q), v(A)), A, [Q, A])
    vop(g, "v_and_b32 %s, 1, %s" % (v(B), v(G)), B, [G])
    vop(g, "v_lshl_add_u32 %s, %s, 3, %s" % (v(A), v(B), v(A)), A, [A, B])
    g.s("s_lshl_b32 s55, s41, 14")
    vop(g, "v_add_u32 %s, s55, %s" % (v(V_KR), v(A)), V_KR, [A])
    g.s("s_mul_i32 s55, s41, 24576")
    g.s("s_add_u32 s55, s55, %d" % A_V_LDS)
    vop(g, "v_lshlrev_b32 %s, 10, %s" % (v(A), v(G)), A, [G])
    vop(g, "v_sub_u32 %s, s55, %s" % (v(V_DELTA), v(A)), V_DELTA, [A])
    g.s("s_mul_i32 s55, s44, 6")
    g.s("s_mul_i32 s56, s42, 3")
    g.s("s_add_u32 s55, s55, s56")
    g.s("s_lshl_b32 s55, s55, 7")
    g.s("s_lshl_b32 s56, s43, 2")
    g.s("s_add_u32 s55, s55, s56")
    g.s("s_lshl_b32 s55, s55, 10")
    g.s("s_mul_i32 s56, s6, %d" % O_BLOCK_BYTES)
    g.s("s_add_u32 s55, s55, s56")
    vop(g, "v_lshlrev_b32 %s, 4, %s" % (v(A), v(L)), A, [L])
    vop(g, "v_add_u32 %s, s55, %s" % (v(V_O), v(A)), V_O, [A])
    g.s("s_and_b32 s55, s2, 3")
    g.s("s_lshl_b32 s55, s55, 5")
    g.s("s_lshr_b32 s56, s2, 3")
    g.s("s_add_u32 s55, s55, s56")
    g.s("s_lshl_b32 s55, s55, 3")
    g.s("s_add_u32 s55, s55, s3")
    g.s("s_lshl_b32 s55, s55, 12")
    vop(g, "v_lshlrev_b32 %s, 6, %s" % (v(A), v(L)), A, [L])
    vop(g, "v_add_u32 %s, s55, %s" % (v(V_WO), v(A)), V_WO, [A])


def attn_body(g, kv_first):
    def tr_reads(s, t):
        if os.environ.get("NOTR") and s > 0:
            return
        for j in range(2):
            d = R_A + t * 4 + j * 2
            g.dsread("ds_read_b64_tr_b16 %s, %s offset:%d" % (vr(d, 2), vr(V_A + t), (s % NSLOT) * 8192 + j * 1024),
                     "A%d_%d" % (s, t), dst=rng(d, 2), addr=[V_A + t])

    def issue_w(c):
        if os.environ.get("NOW") and c > 1:
            return
        g.s("s_mov_b32 %s, %d" % (sr(S_WOFF), c * 262144))
        g.s("s_add_u32 m0, %s, %d" % (sr(S_M0W), (c % NSLOT) * 8192), m0=True)
        g.vload("buffer_load_dwordx4 %s, %s, %s offen lds" % (vr(V_W), sr(SRD_W, 4), sr(S_WOFF)),
                "W%d" % c, addr=[V_W], lds=True)

    def issue_b(s):
        if os.environ.get("NOX") and s > 3:
            return
        for u in range(3):
            g.s("s_mov_b32 %s, %d" % (sr(S_TMP), u * 16384))
            d = bstage(s, u)
            g.vload("buffer_load_dwordx4 %s, %s, %s, %s offen offset:%d" % (vr(d, 4), vr(V_X), sr(SRD_X, 4), sr(S_TMP), s * 64),
                    "B%d" % s, dst=rng(d, 4), addr=[V_X])

    def perm_b(s, lo=0, hi=12):
        if os.environ.get("NOPERM") and s > 1:
            return
        if lo == 0:
            g.wait_vm("B%d" % s)
        for i in range(lo, hi):
            u, r = i // 4, i % 4
            d = bfrag(s, u) + r
            a = bstage(s, u) + r
            g.dsread("ds_bpermute_b32 %s, %s, %s" % (vr(d), vr(V_BP), vr(a)), "F%d" % s, dst=[d], addr=[V_BP, a])

    def issue_k(i):
        g.s("s_mov_b32 %s, %d" % (sr(S_TMP), i * 4096))
        for m in range(4):
            d = R_K + (i * 4 + m) * 4
            g.vload("buffer_load_dwordx4 %s, %s, %s, %s offen offset:%d%s" % (vr(d, 4), vr(V_K), sr(SRD_K, 4), sr(S_TMP), m * 1024, NT),
                    "K%d" % i, dst=rng(d, 4), addr=[V_K])

    def issue_v(i):
        g.s("s_mov_b32 %s, %d" % (sr(S_TMP), i * 1024))
        g.s("s_add_u32 m0, %s, %d" % (sr(S_M0V), i * 1024), m0=True)
        g.vload("buffer_load_dwordx4 %s, %s, %s offen%s lds" % (vr(V_VD0 + (i & 1)), sr(SRD_V, 4), sr(S_TMP), NT),
                "V", addr=[V_VD0 + (i & 1)], lds=True)

    def issue_kv():
        if os.environ.get("NOKV"):
            return
        for i in range(3):
            issue_k(i)
        for i in range(12):
            issue_v(i)

    stamp(g, 0, V_T)
    if kv_first:
        if TWAIT:
            g.wait_vm("TCH")
        issue_kv()
    for c in range(NSLOT - 1):
        issue_w(c)
        if c < NB:
            issue_b(c)
    g.s("s_mov_b64 exec, %s" % sr(S_CL, 2))
    g.vload("buffer_atomic_or %s, off, %s, %s sc0" % (vr(V_CLAIM), sr(SRD_DBG, 4), sr(S_GOFF)), "CL", dst=[V_CLAIM])
    g.s("s_mov_b64 exec, -1")
    nsteps = 16
    g.wait_vm("W0")
    g.barrier()
    for t in range(8):
        tr_reads(0, t)
    perm_b(0)
    for s in range(nsteps):
        g.comment("---- gemm step %d" % s)
        if s + 1 < nsteps:
            g.wait_vm("W%d" % (s + 1))
            g.barrier()
        if s % 4 == 0:
            stamp(g, 0, V_T)
        if s + NSLOT - 1 < nsteps:
            issue_w(s + NSLOT - 1)
        pcut = [0, 2, 4, 6, 8, 9, 10, 11, 12]
        for t in range(8):
            g.wait_lg("A%d_%d" % (s, t))
            if t == 0:
                g.wait_lg("F%d" % s)
            for u in range(3):
                g.mfma(acc(t, u), R_A + t * 4, bfrag(s, u), None if s == 0 else acc(t, u))
            if s + 1 < nsteps:
                tr_reads(s + 1, t)
                perm_b(s + 1, pcut[t], pcut[t + 1])
        if s + NB < nsteps:
            g.wait_lg("F%d" % (s + 1))
            issue_b(s + NB)
        if s == nsteps - NB - 1 and not kv_first:
            issue_kv()

    post_gemm_addrs(g)
    stamp(g, 0, V_T)
    for p in range(4):
        for u in range(3):
            pack_pair(g, acc(2 * p, u), acc(2 * p + 1, u))
    KA = R_B + 24
    KW = R_B + 32
    for m in range(4):
        vop(g, "v_xor_b32 %s, %d, %s" % (vr(KW + m), m * 64, vr(V_KW)), KW + m, [V_KW])
    for c in range(8):
        vop(g, "v_xor_b32 %s, %d, %s" % (vr(KA + c), c * 32, vr(V_KR)), KA + c, [V_KR])

    def sacc(kt, u):
        i = kt * 3 + u
        if i < 12:
            return acc(1 + 2 * (i // 3), i % 3)
        return R_B + (i - 12) * 4

    def k_write(i, slot_off):
        g.wait_vm("K%d" % i)
        for m in range(4):
            d = R_K + (i * 4 + m) * 4
            g.dswrite("ds_write_b128 %s, %s offset:%d" % (vr(KW + m), vr(d, 4), slot_off + m * 1024), "KW", data=rng(d, 4), addr=[KW + m])

    def k_reads(n, slot_off):
        for p in range(4):
            for j in range(2):
                d = R_A + ((n & 1) * 4 + p) * 4 + 2 * j
                g.dsread("ds_read_b64 %s, %s offset:%d" % (vr(d, 2), vr(KA + 2 * p + j), slot_off), "KF%d_%d" % (n, p), dst=rng(d, 2), addr=[KA + 2 * p + j])

    def s_tile(n, kt):
        for p in range(4):
            g.wait_lg("KF%d_%d" % (n, p))
            for u in range(3):
                g.mfma(sacc(kt, u), R_A + ((n & 1) * 4 + p) * 4, acc(2 * p, u), None if p == 0 else sacc(kt, u))

    g.barrier()
    k_write(0, 0)
    k_write(1, 4096)
    g.wait_lg("KW")
    g.barrier()
    r1 = [0, 1, 3, 4]
    k_reads(0, 0)
    for n in range(4):
        if n + 1 < 4:
            k_reads(n + 1, (n + 1) * 4096)
        s_tile(n, r1[n])
    g.barrier()
    for m in range(4):
        vop(g, "v_subrev_u32 %s, %s, %s" % (vr(KW + m), sr(S_W4K), vr(KW + m)), KW + m, [KW + m])
    for c in range(8):
        vop(g, "v_subrev_u32 %s, %s, %s" % (vr(KA + c), sr(S_B8K), vr(KA + c)), KA + c, [KA + c])
    k_write(2, 0)
    g.wait_lg("KW")
    g.barrier()
    k_reads(4, 0)
    k_reads(5, 4096)
    s_tile(4, 2)
    s_tile(5, 5)
    stamp(g, 0, V_T)
    g.wait_vm("V")
    g.barrier()
    for t in range(8):
        vop(g, "v_add_u32 %s, %s, %s" % (vr(V_A + t), vr(V_A + t), vr(V_DELTA)), V_A + t, [V_A + t, V_DELTA])

    def v_reads(pp, t):
        for j in range(2):
            d = R_A + t * 4 + j * 2
            g.dsread("ds_read_b64_tr_b16 %s, %s offset:%d" % (vr(d, 2), vr(V_A + t), pp * 8192 + j * 4096),
                     "VT%d_%d" % (pp, t), dst=rng(d, 2), addr=[V_A + t])

    for t in range(8):
        v_reads(0, t)
    stamp(g, 0, V_T)

    def pfrag(pp, u):
        return R_K + (pp * 3 + u) * 4
    TMP = R_K + 36
    for u in range(3):
        a, b = TMP, TMP + 1
        for kt in range(6):
            r = sacc(kt, u)
            for rep in range(2):
                g.valu("v_cvt_pk_bf16_f32 %s, %s, %s" % (vr(a), vr(r), vr(r + 1)), dst=[a], src=[r, r + 1])
                g.valu("v_cvt_pk_bf16_f32 %s, %s, %s" % (vr(b), vr(r + 2), vr(r + 3)), dst=[b], src=[r + 2, r + 3])
                vop(g, "v_lshlrev_b32 %s, 16, %s" % (vr(r), vr(a)), r, [a])
                vop(g, "v_and_b32 %s, 0xffff0000, %s" % (vr(r + 1), vr(a)), r + 1, [a])
                vop(g, "v_lshlrev_b32 %s, 16, %s" % (vr(r + 2), vr(b)), r + 2, [b])
                vop(g, "v_and_b32 %s, 0xffff0000, %s" % (vr(r + 3), vr(b)), r + 3, [b])
                if rep == 0:
                    g.valu("v_pk_mul_f32 %s, %s, %s" % (vr(r, 2), vr(r, 2), sr(S_SC, 2)), dst=[r, r + 1], src=[r, r + 1])
                    g.valu("v_pk_mul_f32 %s, %s, %s" % (vr(r + 2, 2), vr(r + 2, 2), sr(S_SC, 2)), dst=[r + 2, r + 3], src=[r + 2, r + 3])
        vals = [sacc(kt, u) + r for kt in range(6) for r in range(4)]
        m = TMP + 2
        vop(g, "v_max3_f32 %s, %s, %s, %s" % (vr(m), vr(vals[0]), vr(vals[1]), vr(vals[2])), m, vals[0:3])
        i = 3
        while i < 24:
            if i + 1 < 24:
                vop(g, "v_max3_f32 %s, %s, %s, %s" % (vr(m), vr(m), vr(vals[i]), vr(vals[i + 1])), m, [m, vals[i], vals[i + 1]])
                i += 2
            else:
                vop(g, "v_max_f32 %s, %s, %s" % (vr(m), vr(m), vr(vals[i])), m, [m, vals[i]])
                i += 1
        xlane_reduce(g, m, TMP + 3, "v_max_f32")
        for v in vals:
            vop(g, "v_sub_f32 %s, %s, %s" % (vr(v), vr(v), vr(m)), v, [v, m])
        for k in range(0, 24, 2):
            v = vals[k]
            g.valu("v_pk_mul_f32 %s, %s, %s" % (vr(v, 2), vr(v, 2), sr(S_L2E, 2)), dst=[v, v + 1], src=[v, v + 1])
        for v in vals:
            g.valu("v_exp_f32 %s, %s" % (vr(v), vr(v)), dst=[v], src=[v], trans=True)
        sm = TMP + 4
        g.valu("v_pk_add_f32 %s, %s, %s" % (vr(sm, 2), vr(vals[0], 2), vr(vals[2], 2)), dst=[sm, sm + 1], src=vals[0:4])
        for k in range(4, 24, 2):
            g.valu("v_pk_add_f32 %s, %s, %s" % (vr(sm, 2), vr(sm, 2), vr(vals[k], 2)), dst=[sm, sm + 1], src=[sm, sm + 1, vals[k], vals[k] + 1])
        vop(g, "v_add_f32 %s, %s, %s" % (vr(sm), vr(sm), vr(sm + 1)), sm, [sm, sm + 1])
        xlane_reduce(g, sm, TMP + 3, "v_add_f32")
        g.valu("v_rcp_f32 %s, %s" % (vr(sm), vr(sm)), dst=[sm], src=[sm], trans=True)
        vop(g, "v_mov_b32 %s, %s" % (vr(sm + 1), vr(sm)), sm + 1, [sm])
        for k in range(0, 24, 2):
            v = vals[k]
            g.valu("v_pk_mul_f32 %s, %s, %s" % (vr(v, 2), vr(v, 2), vr(sm, 2)), dst=[v, v + 1], src=[v, v + 1, sm, sm + 1])
        for pp in range(3):
            d = pfrag(pp, u)
            lo, hi = sacc(2 * pp, u), sacc(2 * pp + 1, u)
            g.valu("v_cvt_pk_bf16_f32 %s, %s, %s" % (vr(d), vr(lo), vr(lo + 1)), dst=[d], src=[lo, lo + 1])
            g.valu("v_cvt_pk_bf16_f32 %s, %s, %s" % (vr(d + 1), vr(lo + 2), vr(lo + 3)), dst=[d + 1], src=[lo + 2, lo + 3])
            g.valu("v_cvt_pk_bf16_f32 %s, %s, %s" % (vr(d + 2), vr(hi), vr(hi + 1)), dst=[d + 2], src=[hi, hi + 1])
            g.valu("v_cvt_pk_bf16_f32 %s, %s, %s" % (vr(d + 3), vr(hi + 2), vr(hi + 3)), dst=[d + 3], src=[hi + 2, hi + 3])
    stamp(g, 0, V_T)
    for pp in range(3):
        for t in range(8):
            g.wait_lg("VT%d_%d" % (pp, t))
            for u in range(3):
                g.mfma(acc(t, u), R_A + t * 4, pfrag(pp, u), None if pp == 0 else acc(t, u))
            if pp < 2:
                v_reads(pp + 1, t)
    stamp(g, 0, V_T)
    if WOPF:
        g.vload("buffer_load_dword %s, %s, %s, 0 offen" % (vr(V_T + 3), vr(V_WO), sr(SRD_WO, 4)), "TCH", dst=[V_T + 3], addr=[V_WO])
    g.s("s_mov_b64 exec, %s" % sr(S_W0, 2))
    g.vload("buffer_load_dword %s, off, %s, %s sc1" % (vr(V_MASK), sr(SRD_DBG, 4), sr(S_GOFF)), "MK", dst=[V_MASK])
    g.s("s_mov_b64 exec, -1")
    for p in range(4):
        for u in range(3):
            pack_pair(g, acc(2 * p, u), acc(2 * p + 1, u))
            g.s("s_mov_b32 %s, %d" % (sr(S_TMP), u * 131072))
            d = acc(2 * p, u)
            g.vstore("buffer_store_dwordx4 %s, %s, %s, %s offen offset:%d sc1" % (vr(d, 4), vr(V_O), sr(SRD_WS, 4), sr(S_TMP), p * 1024),
                     "ST", data=rng(d, 4), addr=[V_O])
    g.s("s_branch attn_tail")


def gen_attn():
    g = Gen()
    g.s("s_cmp_ge_u32 s2, 256")
    g.s("s_cbranch_scc1 attn_end")
    vop(g, "v_lshrrev_b32 v7, 6, v0", 7, [0])
    vop(g, "v_and_b32 %s, 63, v0" % vr(V_LANE), V_LANE, [0])
    g.valu("v_readfirstlane_b32 %s, v7" % sr(S_WAVE), src=[7], readlane=True, sdst=[S_WAVE])
    g.s("s_mov_b32 %s, s2" % sr(S_ME))
    g.s("s_mov_b32 %s, 0" % sr(S_STOLEN))
    g.s("s_load_dwordx4 s[80:83], s[0:1], 80")
    g.nop(4)
    g.s("s_cmp_eq_u32 s3, 0")
    g.s("s_cselect_b32 %s, 1, 0" % sr(S_W0))
    g.s("s_mov_b32 %s, 0" % sr(S_W0 + 1))
    g.s("s_mov_b32 %s, %s" % (sr(S_CL), sr(S_W0)))
    g.s("s_mov_b32 %s, 0" % sr(S_CL + 1))
    if FORCE_STEAL:
        g.s("s_bfe_u32 s4, s2, 0x30005")
        g.s("s_cmp_eq_u32 s4, %d" % (FORCE_STEAL - 1))
        g.s("s_cselect_b32 s90, 1, 0")
    g.label("job_start")
    lane_setup(g)
    g.s("s_and_b32 s4, s2, 7")
    g.s("s_lshr_b32 s5, s2, 3")
    g.s("s_lshr_b32 s6, s4, 2")
    g.s("s_and_b32 s7, s4, 3")
    g.s("s_lshl_b32 s7, s7, 3")
    g.s("s_lshr_b32 s16, s5, 2")
    g.s("s_add_u32 s43, s7, s16")
    g.s("s_and_b32 s40, s16, 1")
    g.s("s_and_b32 s5, s5, 3")
    g.s("s_mul_i32 s16, s6, 40")
    g.s("s_add_u32 s18, s0, s16")
    g.s("s_addc_u32 s19, s1, 0")
    g.s("s_load_dwordx8 s[8:15], s[18:19], 0")
    g.s("s_load_dwordx2 s[16:17], s[0:1], 96")
    g.s("s_load_dwordx2 s[68:69], s[18:19], 32")
    g.s("s_lshr_b32 s41, s3, 1")
    g.s("s_and_b32 s42, s3, 1")
    g.s("s_lshl_b32 s44, s5, 2")
    g.s("s_add_u32 s44, s44, s41")
    g.s("s_lshl_b32 s45, s44, 5")
    g.s("s_add_u32 s45, s45, s43")
    g.s("s_mul_i32 s45, s45, 24576")
    g.s("s_mov_b32 %s, 0x3db504f3" % sr(S_SC))
    g.s("s_mov_b32 %s, 0x3db504f3" % sr(S_SC + 1))
    g.s("s_mov_b32 %s, 0x3fb8aa3b" % sr(S_L2E))
    g.s("s_mov_b32 %s, 0x3fb8aa3b" % sr(S_L2E + 1))
    g.s("s_mul_i32 s55, s44, 98304")
    g.s("s_mul_i32 s56, s42, 49152")
    g.s("s_add_u32 s55, s55, s56")
    vop(g, "v_lshrrev_b32 v8, 2, v1", 8, [1])
    vop(g, "v_lshlrev_b32 v8, 10, v8", 8, [8])
    vop(g, "v_lshl_add_u32 v8, v5, 4, v8", 8, [5, 8])
    vop(g, "v_add_u32 %s, s55, v8" % vr(V_X), V_X, [8])
    g.s("s_mul_i32 s55, s42, 12288")
    g.s("s_add_u32 s55, s55, s45")
    vop(g, "v_lshlrev_b32 v8, 4, v1", 8, [1])
    vop(g, "v_add_u32 %s, s55, v8" % vr(V_K), V_K, [8])
    g.s("s_lshl_b32 %s, s3, 12" % sr(S_W4K))
    g.s("s_lshl_b32 %s, s41, 13" % sr(S_B8K))
    g.s("s_mul_i32 s55, s42, 12288")
    g.s("s_add_u32 s55, s55, s45")
    for par in range(2):
        vop(g, "v_add_u32 v8, %d, v3" % (4 * par), 8, [3])
        vop(g, "v_lshlrev_b32 v8, 1, v8", 8, [8])
        vop(g, "v_xor_b32 v8, v8, v2", 8, [8, 2])
        vop(g, "v_lshlrev_b32 v8, 4, v8", 8, [8])
        vop(g, "v_lshl_add_u32 v8, v3, 8, v8", 8, [3, 8])
        vop(g, "v_add_u32 %s, s55, v8" % vr(V_VD0 + par), V_VD0 + par, [8])
    g.s("s_and_b32 s55, s41, 1")
    g.s("s_lshl_b32 s55, s55, 2")
    vop(g, "v_or_b32 v8, s55, v3", 8, [3])
    vop(g, "v_lshlrev_b32 v8, 1, v8", 8, [8])
    vop(g, "v_xor_b32 v8, v8, v2", 8, [8, 2])
    vop(g, "v_lshlrev_b32 v8, 4, v8", 8, [8])
    vop(g, "v_lshl_add_u32 v8, v3, 13, v8", 8, [3, 8])
    g.s("s_lshl_b32 s55, s3, 15")
    g.s("s_lshl_b32 s56, s43, 8")
    g.s("s_add_u32 s55, s55, s56")
    vop(g, "v_add_u32 %s, s55, v8" % vr(V_W), V_W, [8])
    g.s("s_lshl_b32 %s, s3, 10" % sr(S_M0W))
    vop(g, "v_lshlrev_b32 v8, 3, v3", 8, [3])
    vop(g, "v_add_u32 v8, v8, v4", 8, [8, 4])
    vop(g, "v_lshlrev_b32 v8, 8, v8", 8, [8])
    vop(g, "v_lshl_add_u32 v8, v5, 3, v8", 8, [8, 5])
    for t in range(8):
        vop(g, "v_xor_b32 v9, %d, v6" % t, 9, [6])
        vop(g, "v_lshl_add_u32 %s, v9, 5, v8" % vr(V_A + t), V_A + t, [9, 8])
    g.s("s_mul_i32 s55, s41, 24576")
    g.s("s_add_u32 s55, s55, %d" % A_V_LDS)
    g.s("s_mul_i32 s56, s42, 12288")
    g.s("s_add_u32 %s, s55, s56" % sr(S_M0V))
    g.s("s_lshl_b32 s55, s6, 2")
    g.s("s_add_u32 s55, s55, s5")
    g.s("s_lshl_b32 %s, s55, 2" % sr(S_GOFF))
    g.s("s_add_u32 %s, %s, 128" % (sr(S_GOFF + 1), sr(S_GOFF)))
    g.s("s_lshl_b32 s55, 1, s43")
    vop(g, "v_mov_b32 %s, s55" % vr(V_CLAIM), V_CLAIM)
    vop(g, "v_lshl_add_u32 v8, v2, 2, v3", 8, [2, 3])
    vop(g, "v_lshlrev_b32 %s, 2, v8" % vr(V_BP), V_BP, [8])
    g.waitcnt(lg=0)
    make_srd(g, SRD_X, 8, 1572864)
    make_srd(g, SRD_K, 10, 12582912)
    make_srd(g, SRD_V, 12, 12582912)
    make_srd(g, SRD_W, 14, 4194304)
    make_srd(g, SRD_WS, 16, WS_BYTES)
    make_srd(g, SRD_WO, 68, 4194304)
    make_srd(g, SRD_OUT, 80, 16 * 96 * 1024 * 2)
    make_srd(g, SRD_DBG, 82, 256)
    if FORCE_STEAL:
        g.s("s_cmp_eq_u32 s90, 1")
        g.s("s_mov_b32 s90, 0")
        g.s("s_cbranch_scc1 steal")
    if TOUCH:
        g.s("s_lshl_b32 s55, s5, 3")
        g.s("s_add_u32 s55, s55, s3")
        g.s("s_lshl_b32 s55, s55, 17")
        g.s("s_lshl_b32 s56, s43, 8")
        g.s("s_add_u32 s55, s55, s56")
        vop(g, "v_lshrrev_b32 v8, 2, v1", 8, [1])
        vop(g, "v_lshlrev_b32 v8, 13, v8", 8, [8])
        vop(g, "v_lshl_add_u32 v8, v5, 6, v8", 8, [5, 8])
        vop(g, "v_add_u32 v8, s55, v8", 8, [8])
        g.vload("buffer_load_dword %s, v8, %s, 0 offen" % (vr(V_T + 3), sr(SRD_W, 4)), "TCH", dst=[V_T + 3], addr=[8])
        g.s("s_mul_i32 s55, s44, 98304")
        g.s("s_mul_i32 s56, s42, 49152")
        g.s("s_add_u32 s55, s55, s56")
        g.s("s_and_b32 s56, s43, 3")
        g.s("s_mul_i32 s56, s56, 12288")
        g.s("s_add_u32 s55, s55, s56")
        vop(g, "v_lshlrev_b32 v9, 6, v1", 9, [1])
        vop(g, "v_add_u32 v9, s55, v9", 9, [9])
        for i in range(3):
            g.s("s_mov_b32 %s, %d" % (sr(S_TMP), i * 4096))
            g.vload("buffer_load_dword %s, v9, %s, %s offen" % (vr(V_T + 3), sr(SRD_X, 4), sr(S_TMP)), "TCH", dst=[V_T + 3], addr=[9])
    g.s("s_cmp_eq_u32 s40, 1")
    g.s("s_cbranch_scc1 attn_kvfirst")
    t0 = g.text()
    gb = Gen()
    gb.vmq = list(g.vmq)
    _stamp_n[0] = 0
    attn_body(gb, False)
    ga = Gen()
    ga.vmq = list(g.vmq)
    _stamp_n[0] = 0
    ga.label("attn_kvfirst")
    attn_body(ga, True)
    return t0 + gb.text() + ga.text()


O_ACC = 0
O_A = 96
O_B = 112
O_VA = 184
O_VX = 188
O_VW = 189
O_VO = 190
O_VL = 191
O_VZ = 240
O_VT = 192


def oproj_setup(g):
    lane_setup(g)
    g.s("s_bfe_u32 s6, %s, 0x10002" % sr(S_ME))
    g.s("s_and_b32 s7, %s, 3" % sr(S_ME))
    g.s("s_bfe_u32 s40, %s, 0x20003" % sr(S_ME))
    g.s("s_lshr_b32 s41, %s, 5" % sr(S_ME))
    g.s("s_mul_i32 s55, s40, 24")
    g.s("s_mul_i32 s56, s7, 6")
    g.s("s_add_u32 s42, s55, s56")
    g.s("s_lshl_b32 s55, s42, 7")
    g.s("s_lshl_b32 s56, s3, 4")
    g.s("s_add_u32 s55, s55, s56")
    g.s("s_lshl_b32 s55, s55, 10")
    g.s("s_mul_i32 s56, s6, %d" % O_BLOCK_BYTES)
    g.s("s_add_u32 s55, s55, s56")
    vop(g, "v_lshlrev_b32 %s, 4, v1" % vr(O_VL), O_VL, [1])
    vop(g, "v_add_u32 %s, s55, %s" % (vr(O_VX), vr(O_VL)), O_VX, [O_VL])
    vop(g, "v_and_b32 v8, 7, v1", 8, [1])
    vop(g, "v_lshlrev_b32 v9, 1, v3", 9, [3])
    vop(g, "v_xor_b32 v8, v8, v9", 8, [8, 9])
    vop(g, "v_lshlrev_b32 v8, 4, v8", 8, [8])
    vop(g, "v_lshrrev_b32 v9, 3, v1", 9, [1])
    vop(g, "v_lshl_add_u32 v8, v9, 10, v8", 8, [8, 9])
    g.s("s_lshl_b32 s55, s41, 7")
    g.s("s_lshl_b32 s56, s3, 19")
    g.s("s_add_u32 s55, s55, s56")
    vop(g, "v_add_u32 %s, s55, v8" % vr(O_VW), O_VW, [8])
    g.s("s_lshl_b32 %s, s3, 14" % sr(S_M0W))
    g.s("s_add_u32 %s, %s, %d" % (sr(S_M0W), sr(S_M0W), O_LDS))
    vop(g, "v_lshlrev_b32 v8, 2, v3", 8, [3])
    vop(g, "v_add_u32 v8, v8, v4", 8, [8, 4])
    vop(g, "v_bfe_u32 v9, v8, 1, 2", 9, [8])
    vop(g, "v_lshlrev_b32 v8, 7, v8", 8, [8])
    vop(g, "v_lshl_add_u32 v8, v5, 3, v8", 8, [8, 5])
    vop(g, "v_add_u32 v8, %s, v8" % sr(S_M0W), 8, [8])
    for t in range(4):
        vop(g, "v_xor_b32 v10, %d, v9" % t, 10, [9])
        vop(g, "v_lshl_add_u32 %s, v10, 5, v8" % vr(O_VA + t), O_VA + t, [10, 8])
    g.s("s_lshl_b32 s55, s42, 4")
    g.s("s_lshl_b32 s55, s55, 10")
    g.s("s_lshl_b32 s56, s6, 9")
    g.s("s_add_u32 s55, s55, s56")
    g.s("s_lshl_b32 s56, s41, 6")
    g.s("s_add_u32 s55, s55, s56")
    g.s("s_lshl_b32 s55, s55, 1")
    vop(g, "v_lshlrev_b32 v8, 11, v2", 8, [2])
    vop(g, "v_lshl_add_u32 v8, v3, 3, v8", 8, [3, 8])
    vop(g, "v_add_u32 %s, s55, v8" % vr(O_VO), O_VO, [8])
    vop(g, "v_mov_b32 %s, 0" % vr(O_VZ), O_VZ)


def gen_steal():
    g = Gen()
    A, B = O_VT, O_VT + 1
    g.label("steal")
    g.waitcnt(vm=0, lg=0)
    g.barrier()
    g.s("s_cmp_lg_u32 s3, 0")
    g.s("s_cbranch_scc1 steal_join")
    g.label("steal_retry")
    g.vload("buffer_load_dword %s, off, %s, %s sc1" % (vr(A), sr(SRD_DBG, 4), sr(S_GOFF)), "X", dst=[A])
    g.waitcnt(vm=0)
    g.valu("v_readfirstlane_b32 s55, %s" % vr(A), src=[A], readlane=True, sdst=[55])
    g.s("s_mov_b32 s56, -1")
    g.s("s_cmp_eq_u32 s55, -1")
    g.s("s_cbranch_scc1 steal_pub")
    g.s("s_ff0_i32_b32 s56, s55")
    g.s("s_lshl_b32 s57, 1, s56")
    vop(g, "v_mov_b32 %s, s57" % vr(A), A)
    g.s("s_mov_b64 exec, 1")
    g.vload("buffer_atomic_or %s, off, %s, %s sc0" % (vr(A), sr(SRD_DBG, 4), sr(S_GOFF)), "X", dst=[A])
    g.s("s_mov_b64 exec, -1")
    g.waitcnt(vm=0)
    g.valu("v_readfirstlane_b32 s55, %s" % vr(A), src=[A], readlane=True, sdst=[55])
    g.s("s_and_b32 s55, s55, s57")
    g.s("s_cmp_lg_u32 s55, 0")
    g.s("s_cbranch_scc1 steal_retry")
    g.label("steal_pub")
    vop(g, "v_mov_b32 %s, s56" % vr(A), A)
    vop(g, "v_mov_b32 %s, 0" % vr(B), B)
    g.dswrite("ds_write_b32 %s, %s" % (vr(B), vr(A)), "X", data=[A], addr=[B])
    g.waitcnt(lg=0)
    g.label("steal_join")
    g.barrier()
    vop(g, "v_mov_b32 %s, 0" % vr(B), B)
    g.dsread("ds_read_b32 %s, %s" % (vr(A), vr(B)), "X", dst=[A], addr=[B])
    g.waitcnt(lg=0)
    g.valu("v_readfirstlane_b32 s56, %s" % vr(A), src=[A], readlane=True, sdst=[56])
    g.barrier()
    g.s("s_cmp_eq_u32 s56, -1")
    g.s("s_cbranch_scc1 steal_none")
    g.s("s_lshr_b32 s55, s56, 3")
    g.s("s_and_b32 s56, s56, 7")
    g.s("s_lshl_b32 s56, s56, 5")
    g.s("s_and_b32 s57, %s, 0x1c" % sr(S_ME))
    g.s("s_or_b32 s2, s55, s56")
    g.s("s_or_b32 s2, s2, s57")
    g.s("s_mov_b32 %s, 1" % sr(S_STOLEN))
    g.s("s_mov_b32 %s, 0" % sr(S_CL))
    g.s("s_branch job_start")
    g.label("steal_none")
    oproj_setup(g)
    g.s("s_branch oproj_pf")
    return g.text()


def gen_oproj():
    g = Gen()

    def oacc(t, u):
        return O_ACC + (t * 6 + u) * 4

    def bfr(s, u):
        return O_B + ((s % 3) * 6 + u) * 4

    g.label("attn_tail")
    g.nop(2)
    oproj_setup(g)
    g.s("s_lshl_b32 s57, 1, s43")
    vop(g, "v_mov_b32 %s, s57" % vr(O_VT), O_VT)
    g.waitcnt(vm=0)
    stamp(g, 0, V_T)
    g.s("s_mov_b64 exec, %s" % sr(S_W0, 2))
    g.dswrite("ds_write_b32 %s, %s" % (vr(O_VZ), vr(V_MASK)), "X", data=[V_MASK], addr=[O_VZ])
    g.s("s_mov_b64 exec, -1")
    g.valu("v_readfirstlane_b32 s55, %s" % vr(V_CLAIM), src=[V_CLAIM], readlane=True, sdst=[55])
    g.s("s_and_b32 s55, s55, s57")
    g.s("s_cmp_eq_u32 s55, 0")
    g.s("s_cselect_b32 s55, 1, %s" % sr(S_STOLEN))
    g.s("s_and_b32 s58, s55, %s" % sr(S_W0))
    g.s("s_mov_b32 s59, 0")
    g.waitcnt(lg=0)
    g.lgq = []
    g.barrier()
    g.s("s_mov_b64 exec, s[58:59]")
    g.vstore("buffer_atomic_add %s, off, %s, %s" % (vr(O_VT), sr(SRD_DBG, 4), sr(S_GOFF + 1)), "DN", data=[O_VT])
    g.s("s_mov_b64 exec, -1")
    g.dsread("ds_read_b32 %s, %s" % (vr(O_VT + 1), vr(O_VZ)), "X", dst=[O_VT + 1], addr=[O_VZ])
    g.waitcnt(lg=0)
    g.lgq = []
    g.valu("v_readfirstlane_b32 s55, %s" % vr(O_VT + 1), src=[O_VT + 1], readlane=True, sdst=[55])
    g.s("s_cmp_lg_u32 s55, -1")
    g.s("s_cbranch_scc1 steal")
    g.label("oproj_pf")

    def issue_w(c):
        for i in range(4):
            g.s("s_mov_b32 %s, %d" % (sr(S_WOFF), c * 32768 + i * 8192))
            g.s("s_add_u32 m0, %s, %d" % (sr(S_M0W), (c % 4) * 4096 + i * 1024), m0=True)
            g.vload("buffer_load_dwordx4 %s, %s, %s offen lds" % (vr(O_VW), sr(SRD_WO, 4), sr(S_WOFF)),
                    "W%d" % c, addr=[O_VW], lds=True)

    def issue_b(s):
        for u in range(6):
            g.s("s_mov_b32 %s, %d" % (sr(S_TMP), u * 131072 + (s >> 2) * 4096))
            d = bfr(s, u)
            g.vload("buffer_load_dwordx4 %s, %s, %s, %s offen offset:%d sc1" % (vr(d, 4), vr(O_VX), sr(SRD_WS, 4), sr(S_TMP), (s & 3) * 1024),
                    "B%d" % s, dst=rng(d, 4), addr=[O_VX])

    def tr_reads(s, t):
        for j in range(2):
            d = O_A + t * 4 + j * 2
            g.dsread("ds_read_b64_tr_b16 %s, %s offset:%d" % (vr(d, 2), vr(O_VA + t), (s % 4) * 4096 + j * 2048),
                     "A%d_%d" % (s, t), dst=rng(d, 2), addr=[O_VA + t])

    for c in range(3):
        issue_w(c)
    g.s("s_lshl_b32 s56, s3, 2")
    g.label("oproj_poll")
    g.vload("buffer_load_dword %s, off, %s, %s sc1" % (vr(O_VT + 2), sr(SRD_DBG, 4), sr(S_GOFF + 1)), "P", dst=[O_VT + 2])
    g.waitcnt(vm=0)
    g.vmq = []
    g.valu("v_readfirstlane_b32 s55, %s" % vr(O_VT + 2), src=[O_VT + 2], readlane=True, sdst=[55])
    g.s("s_lshr_b32 s55, s55, s56")
    g.s("s_and_b32 s55, s55, 15")
    g.s("s_cmp_eq_u32 s55, 15")
    g.s("s_cbranch_scc1 oproj_go")
    g.s("s_sleep %d" % SLEEP)
    g.s("s_branch oproj_poll")
    g.label("oproj_go")
    stamp(g, 0, V_T)
    for c in range(3):
        issue_b(c)
    g.wait_vm("W0")
    for t in range(4):
        tr_reads(0, t)
    nsteps = 16
    for s in range(nsteps):
        g.comment("---- step %d" % s)
        if s % 4 == 0:
            stamp(g, 0, V_T)
        if s + 3 < nsteps:
            issue_w(s + 3)
        for t in range(4):
            g.wait_lg("A%d_%d" % (s, t))
            if t == 0:
                g.wait_vm("B%d" % s)
            for u in range(6):
                g.mfma(oacc(t, u), O_A + t * 4, bfr(s, u), None if s == 0 else oacc(t, u))
            if s + 1 < nsteps:
                if t == 0:
                    g.wait_vm("W%d" % (s + 1))
                tr_reads(s + 1, t)
        if s + 3 < nsteps:
            issue_b(s + 3)
    stamp(g, 0, V_T)
    g.s("s_lshl_b32 s55, s3, 13")
    g.s("s_lshl_b32 s56, s3, 10")
    g.s("s_add_u32 s55, s55, %d" % O_LDS)
    g.s("s_add_u32 s56, s56, %d" % O_LDS)
    vop(g, "v_add_u32 %s, s55, %s" % (vr(O_VA), vr(O_VL)), O_VA, [O_VL])
    vop(g, "v_add_u32 %s, s56, %s" % (vr(O_VA + 1), vr(O_VL)), O_VA + 1, [O_VL])
    vop(g, "v_add_u32 %s, 0x10000, %s" % (vr(O_VA + 2), vr(O_VA)), O_VA + 2, [O_VA])
    vop(g, "v_add_u32 %s, 0x10000, %s" % (vr(O_VA + 3), vr(O_VA + 1)), O_VA + 3, [O_VA + 1])
    g.barrier()
    for ph in range(3):
        wa = O_VA + 2 * (ph & 1)
        ra = wa + 1
        for i in range(8):
            d = O_ACC + (8 * ph + i) * 4
            g.dswrite("ds_write_b128 %s, %s offset:%d" % (vr(wa), vr(d, 4), i * 1024), "RW", data=rng(d, 4), addr=[wa])
        g.wait_lg("RW")
        g.barrier()
        T = O_VT + 4
        for w2 in range(8):
            d = T + w2 * 4
            g.dsread("ds_read_b128 %s, %s offset:%d" % (vr(d, 4), vr(ra), w2 * 8192), "RR%d" % w2, dst=rng(d, 4), addr=[ra])
        for w2 in range(1, 8):
            g.wait_lg("RR%d" % w2)
            for h in range(2):
                d = T + h * 2
                s_ = T + w2 * 4 + h * 2
                g.valu("v_pk_add_f32 %s, %s, %s" % (vr(d, 2), vr(d, 2), vr(s_, 2)), dst=[d, d + 1], src=[d, d + 1, s_, s_ + 1])
        o = O_VT + 40 + ph * 2
        g.valu("v_cvt_pk_bf16_f32 %s, %s, %s" % (vr(o), vr(T), vr(T + 1)), dst=[o], src=[T, T + 1])
        g.valu("v_cvt_pk_bf16_f32 %s, %s, %s" % (vr(o + 1), vr(T + 2), vr(T + 3)), dst=[o + 1], src=[T + 2, T + 3])
        g.s("s_add_u32 s55, s3, %d" % (8 * ph))
        g.s("s_mul_i32 s56, s55, 43")
        g.s("s_lshr_b32 s56, s56, 8")
        g.s("s_mul_i32 s57, s56, 6")
        g.s("s_sub_u32 s57, s55, s57")
        g.s("s_lshl_b32 s57, s57, 15")
        g.s("s_lshl_b32 s56, s56, 5")
        g.s("s_add_u32 s57, s57, s56")
        g.vstore("buffer_store_dwordx2 %s, %s, %s, s57 offen" % (vr(o, 2), vr(O_VO), sr(SRD_OUT, 4)), "ST", data=rng(o, 2), addr=[O_VO])
    if STAMP:
        g.wait_vm("ST")
        stamp(g, 0, V_T)
    g.label("attn_end")
    g.s("s_endpgm")
    return g.text()


HEADER = """; Kernarg layout for this problem (104 bytes, ptrs only, base s[0:1]):
; @launch kernel=attn_kernel grid=(256,1,1) block=(512,1,1) lds=163840
.amdgcn_target "amdgcn-amd-amdhsa--gfx950"
.text
"""


def kernel_text(name, body):
    return (".globl %s\n.p2align 8\n.type %s,@function\n%s:\n" % (name, name, name)) + body


def kd(name, vgpr, sgpr):
    acc_off = (vgpr + 3) // 4 * 4
    return """.p2align 6
.amdhsa_kernel %s
  .amdhsa_next_free_vgpr %d
  .amdhsa_next_free_sgpr %d
  .amdhsa_accum_offset %d
  .amdhsa_group_segment_fixed_size 0
  .amdhsa_kernarg_size 104
  .amdhsa_user_sgpr_count 2
  .amdhsa_user_sgpr_kernarg_segment_ptr 1
  .amdhsa_system_sgpr_workgroup_id_x 1
.end_amdhsa_kernel
""" % (name, vgpr, sgpr, acc_off)


def main():
    out = HEADER
    out += kernel_text("attn_kernel", gen_attn() + gen_steal() + gen_oproj())
    out += '.section .rodata,"a"\n'
    out += kd("attn_kernel", 256, 96)
    path = sys.argv[1] if len(sys.argv) > 1 else "cdna_kernels/%s.s" % NAME
    open(path, "w").write(out)
    print("wrote", path, len(out), "bytes")


if __name__ == "__main__":
    main()
```

```python
import sys, os
sys.path.insert(0, os.path.dirname(os.path.abspath(__file__)))
from asmgen import Gen, vr, sr

NAME = "concat_heads__gqa_block_cached__gqa_block_cached__near_ridge"
O_BLOCK_BYTES = 1536 * 4096 * 2
WS_BYTES = 268435456

STAMP = int(os.environ.get("STAMP", "0"))
STAMP_BASE = 200 * 1024 * 1024
NT = os.environ.get("NT", " nt")
TOUCH = int(os.environ.get("TOUCH", "1"))
TWAIT = int(os.environ.get("TWAIT", "1"))
WOPF = int(os.environ.get("WOPF", "1"))
OTOUCH = int(os.environ.get("OTOUCH", "0"))
_stamp_n = [0]

S_WAVE = 3
SRD_X = 20
SRD_K = 24
SRD_V = 28
SRD_W = 32
SRD_WS = 36
SRD_OUT = 76
SRD_WO = 64
SRD_DBG = 72
S_ME = 70
S_STOLEN = 71
S_GOFF = 84
S_W0 = 86
S_CL = 88
S_PADD = 91
S_PEXP = 92
S_PSEEN = 93
REL = int(os.environ.get("REL", "0"))
O_LDS = 32768
SLEEP = int(os.environ.get("SLEEP", "4"))
FORCE_STEAL = int(os.environ.get("FORCE_STEAL", "0"))
S_M0W = 46
S_TMP = 47
S_WOFF = 48
S_M0V = 49
S_SC = 50
S_L2E = 52
S_W4K = 54
S_B8K = 57


def rng(a, n):
    return list(range(a, a + n))


def stamp(g, kid, vt):
    if not STAMP:
        return
    n = _stamp_n[0]
    _stamp_n[0] += 1
    g.s("s_memrealtime s[60:61]" if os.environ.get("REAL") else "s_memtime s[60:61]")
    g.waitcnt(lg=0)
    g.lgq = []
    g.s("s_lshl_b32 s62, s70, 8")
    g.s("s_add_u32 s62, s62, %d" % (STAMP_BASE + kid * 131072 + n * 8))
    g.s("s_mul_i32 s63, s3, 1048576")
    g.s("s_add_u32 s62, s62, s63")
    g.valu("v_mov_b32 %s, s60" % vr(vt), dst=[vt])
    g.valu("v_mov_b32 %s, s61" % vr(vt + 1), dst=[vt + 1])
    g.valu("v_mov_b32 %s, s62" % vr(vt + 2), dst=[vt + 2])
    g.s("s_mov_b64 s[58:59], exec")
    g.s("s_mov_b64 exec, 1")
    g.vstore("buffer_store_dwordx2 %s, %s, %s, 0 offen" % (vr(vt, 2), vr(vt + 2), sr(SRD_WS, 4)), "STAMP", data=[vt, vt + 1], addr=[vt + 2])
    g.s("s_mov_b64 exec, s[58:59]")


def make_srd(g, srd, ptr, nbytes):
    g.s("s_mov_b32 %s, %s" % (sr(srd), sr(ptr)))
    g.s("s_and_b32 %s, %s, 0xffff" % (sr(srd + 1), sr(ptr + 1)))
    g.s("s_mov_b32 %s, %d" % (sr(srd + 2), nbytes))
    g.s("s_mov_b32 %s, 0x00020000" % sr(srd + 3))


def vop(g, text, dst, src=()):
    g.valu(text, dst=[dst] if isinstance(dst, int) else dst, src=src)


def lane_setup(g):
    vop(g, "v_mov_b32 v1, %s" % vr(V_LANE), 1, [V_LANE])
    vop(g, "v_and_b32 v2, 15, v1", 2, [1])
    vop(g, "v_lshrrev_b32 v3, 4, v1", 3, [1])
    vop(g, "v_bfe_u32 v4, v1, 2, 2", 4, [1])
    vop(g, "v_and_b32 v5, 3, v1", 5, [1])
    vop(g, "v_and_b32 v6, 1, v3", 6, [3])
    vop(g, "v_lshlrev_b32 v6, 2, v6", 6, [6])
    vop(g, "v_or_b32 v6, v6, v4", 6, [6, 4])


def pack_pair(g, lo, hi):
    g.valu("v_cvt_pk_bf16_f32 %s, %s, %s" % (vr(lo), vr(lo), vr(lo + 1)), dst=[lo], src=[lo, lo + 1])
    g.valu("v_cvt_pk_bf16_f32 %s, %s, %s" % (vr(lo + 1), vr(lo + 2), vr(lo + 3)), dst=[lo + 1], src=[lo + 2, lo + 3])
    g.valu("v_cvt_pk_bf16_f32 %s, %s, %s" % (vr(lo + 2), vr(hi), vr(hi + 1)), dst=[lo + 2], src=[hi, hi + 1])
    g.valu("v_cvt_pk_bf16_f32 %s, %s, %s" % (vr(lo + 3), vr(hi + 2), vr(hi + 3)), dst=[lo + 3], src=[hi + 2, hi + 3])


def xlane_reduce(g, m, tmp, op):
    for sw in ("v_permlane32_swap_b32", "v_permlane16_swap_b32"):
        vop(g, "v_mov_b32 %s, %s" % (vr(tmp), vr(m)), tmp, [m])
        g.valu("%s %s, %s" % (sw, vr(m), vr(tmp)), dst=[m, tmp], src=[m, tmp], permlane=True)
        vop(g, "%s %s, %s, %s" % (op, vr(m), vr(m), vr(tmp)), m, [m, tmp])


R_ACC = 0
R_A = 96
R_B = 128
R_F = 164
R_K = 188
V_A = 236
V_X = 244
V_W = 245
V_BP = 246
V_VD0 = 247
V_VD1 = 248
V_K = 249
V_LANE = 250
V_CLAIM = 251
V_T = 252
V_KW = R_B + 36
V_KR = R_B + 37
V_WO = R_B + 38
V_O = R_B + 39
V_DELTA = R_B + 40
T0 = R_B + 41
V_MASK = R_B + 47
A_V_LDS = 65536
NSLOT = 8
NB = 3


def acc(t, u):
    return R_ACC + (t * 3 + u) * 4


def bstage(s, u):
    return R_B + ((s % NB) * 3 + u) * 4


def bfrag(s, u):
    return R_F + ((s % 2) * 3 + u) * 4


def post_gemm_addrs(g):
    L, Q, G, R, C, A, B = V_LANE, T0, T0 + 1, T0 + 2, T0 + 3, T0 + 4, T0 + 5
    v = vr
    vop(g, "v_and_b32 %s, 15, %s" % (v(Q), v(L)), Q, [L])
    vop(g, "v_lshrrev_b32 %s, 4, %s" % (v(G), v(L)), G, [L])
    vop(g, "v_bfe_u32 %s, %s, 2, 2" % (v(R), v(L)), R, [L])
    vop(g, "v_and_b32 %s, 3, %s" % (v(C), v(L)), C, [L])
    vop(g, "v_xor_b32 %s, %s, %s" % (v(A), v(Q), v(G)), A, [Q, G])
    vop(g, "v_lshlrev_b32 %s, 4, %s" % (v(A), v(A)), A, [A])
    vop(g, "v_lshl_add_u32 %s, %s, 8, %s" % (v(A), v(G), v(A)), A, [G, A])
    g.s("s_lshl_b32 s55, s3, 13")
    vop(g, "v_add_u32 %s, s55, %s" % (v(V_KW), v(A)), V_KW, [A])
    vop(g, "v_lshrrev_b32 %s, 1, %s" % (v(A), v(G)), A, [G])
    vop(g, "v_xor_b32 %s, %s, %s" % (v(A), v(A), v(Q)), A, [A, Q])
    vop(g, "v_lshlrev_b32 %s, 4, %s" % (v(A), v(A)), A, [A])
    vop(g, "v_lshl_add_u32 %s, %s, 8, %s" % (v(A), v(Q), v(A)), A, [Q, A])
    vop(g, "v_and_b32 %s, 1, %s" % (v(B), v(G)), B, [G])
    vop(g, "v_lshl_add_u32 %s, %s, 3, %s" % (v(A), v(B), v(A)), A, [A, B])
    g.s("s_lshl_b32 s55, s41, 14")
    vop(g, "v_add_u32 %s, s55, %s" % (v(V_KR), v(A)), V_KR, [A])
    g.s("s_mul_i32 s55, s41, 24576")
    g.s("s_add_u32 s55, s55, %d" % A_V_LDS)
    vop(g, "v_lshlrev_b32 %s, 10, %s" % (v(A), v(G)), A, [G])
    vop(g, "v_sub_u32 %s, s55, %s" % (v(V_DELTA), v(A)), V_DELTA, [A])
    g.s("s_mul_i32 s55, s44, 6")
    g.s("s_mul_i32 s56, s42, 3")
    g.s("s_add_u32 s55, s55, s56")
    g.s("s_lshl_b32 s55, s55, 7")
    g.s("s_lshl_b32 s56, s43, 2")
    g.s("s_add_u32 s55, s55, s56")
    g.s("s_lshl_b32 s55, s55, 10")
    g.s("s_mul_i32 s56, s6, %d" % O_BLOCK_BYTES)
    g.s("s_add_u32 s55, s55, s56")
    vop(g, "v_lshlrev_b32 %s, 4, %s" % (v(A), v(L)), A, [L])
    vop(g, "v_add_u32 %s, s55, %s" % (v(V_O), v(A)), V_O, [A])
    g.s("s_and_b32 s55, s2, 3")
    g.s("s_lshl_b32 s55, s55, 5")
    g.s("s_lshr_b32 s56, s2, 3")
    g.s("s_add_u32 s55, s55, s56")
    g.s("s_lshl_b32 s55, s55, 3")
    g.s("s_add_u32 s55, s55, s3")
    g.s("s_lshl_b32 s55, s55, 12")
    vop(g, "v_lshlrev_b32 %s, 6, %s" % (v(A), v(L)), A, [L])
    vop(g, "v_add_u32 %s, s55, %s" % (v(V_WO), v(A)), V_WO, [A])


def attn_body(g, kv_first):
    def tr_reads(s, t):
        if os.environ.get("NOTR") and s > 0:
            return
        for j in range(2):
            d = R_A + t * 4 + j * 2
            g.dsread("ds_read_b64_tr_b16 %s, %s offset:%d" % (vr(d, 2), vr(V_A + t), (s % NSLOT) * 8192 + j * 1024),
                     "A%d_%d" % (s, t), dst=rng(d, 2), addr=[V_A + t])

    def issue_w(c):
        if os.environ.get("NOW") and c > 1:
            return
        g.s("s_mov_b32 %s, %d" % (sr(S_WOFF), c * 262144))
        g.s("s_add_u32 m0, %s, %d" % (sr(S_M0W), (c % NSLOT) * 8192), m0=True)
        g.vload("buffer_load_dwordx4 %s, %s, %s offen lds" % (vr(V_W), sr(SRD_W, 4), sr(S_WOFF)),
                "W%d" % c, addr=[V_W], lds=True)

    def issue_b(s):
        if os.environ.get("NOX") and s > 3:
            return
        for u in range(3):
            g.s("s_mov_b32 %s, %d" % (sr(S_TMP), u * 16384))
            d = bstage(s, u)
            g.vload("buffer_load_dwordx4 %s, %s, %s, %s offen offset:%d" % (vr(d, 4), vr(V_X), sr(SRD_X, 4), sr(S_TMP), s * 64),
                    "B%d" % s, dst=rng(d, 4), addr=[V_X])

    def perm_b(s, lo=0, hi=12):
        if os.environ.get("NOPERM") and s > 1:
            return
        if lo == 0:
            g.wait_vm("B%d" % s)
        for i in range(lo, hi):
            u, r = i // 4, i % 4
            d = bfrag(s, u) + r
            a = bstage(s, u) + r
            g.dsread("ds_bpermute_b32 %s, %s, %s" % (vr(d), vr(V_BP), vr(a)), "F%d" % s, dst=[d], addr=[V_BP, a])

    def issue_k(i):
        g.s("s_mov_b32 %s, %d" % (sr(S_TMP), i * 4096))
        for m in range(4):
            d = R_K + (i * 4 + m) * 4
            g.vload("buffer_load_dwordx4 %s, %s, %s, %s offen offset:%d%s" % (vr(d, 4), vr(V_K), sr(SRD_K, 4), sr(S_TMP), m * 1024, NT),
                    "K%d" % i, dst=rng(d, 4), addr=[V_K])

    def issue_v(i):
        g.s("s_mov_b32 %s, %d" % (sr(S_TMP), i * 1024))
        g.s("s_add_u32 m0, %s, %d" % (sr(S_M0V), i * 1024), m0=True)
        g.vload("buffer_load_dwordx4 %s, %s, %s offen%s lds" % (vr(V_VD0 + (i & 1)), sr(SRD_V, 4), sr(S_TMP), NT),
                "V", addr=[V_VD0 + (i & 1)], lds=True)

    def issue_kv():
        if os.environ.get("NOKV"):
            return
        for i in range(3):
            issue_k(i)
        for i in range(12):
            issue_v(i)

    stamp(g, 0, V_T)
    if kv_first:
        if TWAIT:
            g.wait_vm("TCH")
        issue_kv()
    for c in range(NSLOT - 1):
        issue_w(c)
        if c < NB:
            issue_b(c)
    g.s("s_mov_b64 exec, %s" % sr(S_CL, 2))
    g.vload("buffer_atomic_or %s, off, %s, %s sc0" % (vr(V_CLAIM), sr(SRD_DBG, 4), sr(S_GOFF)), "CL", dst=[V_CLAIM])
    vop(g, "v_mov_b32 %s, %s" % (vr(V_T + 2), sr(S_PADD)), V_T + 2)
    g.vstore("buffer_atomic_add %s, off, %s, %s offset:64" % (vr(V_T + 2), sr(SRD_DBG, 4), sr(S_GOFF)), "CL", data=[V_T + 2])
    g.s("s_mov_b64 exec, -1")
    nsteps = 16
    g.wait_vm("W0")
    g.barrier()
    for t in range(8):
        tr_reads(0, t)
    perm_b(0)
    for s in range(nsteps):
        g.comment("---- gemm step %d" % s)
        if s + 1 < nsteps:
            g.wait_vm("W%d" % (s + 1))
            g.barrier()
        if s % 4 == 0:
            stamp(g, 0, V_T)
        if s + NSLOT - 1 < nsteps:
            issue_w(s + NSLOT - 1)
        pcut = [0, 2, 4, 6, 8, 9, 10, 11, 12]
        for t in range(8):
            g.wait_lg("A%d_%d" % (s, t))
            if t == 0:
                g.wait_lg("F%d" % s)
            for u in range(3):
                g.mfma(acc(t, u), R_A + t * 4, bfrag(s, u), None if s == 0 else acc(t, u))
            if s + 1 < nsteps:
                tr_reads(s + 1, t)
                perm_b(s + 1, pcut[t], pcut[t + 1])
        if s + NB < nsteps:
            g.wait_lg("F%d" % (s + 1))
            issue_b(s + NB)
        if s == nsteps - NB - 1 and not kv_first:
            issue_kv()

    post_gemm_addrs(g)
    stamp(g, 0, V_T)
    for p in range(4):
        for u in range(3):
            pack_pair(g, acc(2 * p, u), acc(2 * p + 1, u))
    KA = R_B + 24
    KW = R_B + 32
    for m in range(4):
        vop(g, "v_xor_b32 %s, %d, %s" % (vr(KW + m), m * 64, vr(V_KW)), KW + m, [V_KW])
    for c in range(8):
        vop(g, "v_xor_b32 %s, %d, %s" % (vr(KA + c), c * 32, vr(V_KR)), KA + c, [V_KR])

    def sacc(kt, u):
        i = kt * 3 + u
        if i < 12:
            return acc(1 + 2 * (i // 3), i % 3)
        return R_B + (i - 12) * 4

    def k_write(i, slot_off):
        g.wait_vm("K%d" % i)
        for m in range(4):
            d = R_K + (i * 4 + m) * 4
            g.dswrite("ds_write_b128 %s, %s offset:%d" % (vr(KW + m), vr(d, 4), slot_off + m * 1024), "KW", data=rng(d, 4), addr=[KW + m])

    def k_reads(n, slot_off):
        for p in range(4):
            for j in range(2):
                d = R_A + ((n & 1) * 4 + p) * 4 + 2 * j
                g.dsread("ds_read_b64 %s, %s offset:%d" % (vr(d, 2), vr(KA + 2 * p + j), slot_off), "KF%d_%d" % (n, p), dst=rng(d, 2), addr=[KA + 2 * p + j])

    def s_tile(n, kt):
        for p in range(4):
            g.wait_lg("KF%d_%d" % (n, p))
            for u in range(3):
                g.mfma(sacc(kt, u), R_A + ((n & 1) * 4 + p) * 4, acc(2 * p, u), None if p == 0 else sacc(kt, u))

    g.barrier()
    k_write(0, 0)
    k_write(1, 4096)
    g.wait_lg("KW")
    g.barrier()
    r1 = [0, 1, 3, 4]
    k_reads(0, 0)
    for n in range(4):
        if n + 1 < 4:
            k_reads(n + 1, (n + 1) * 4096)
        s_tile(n, r1[n])
    g.barrier()
    for m in range(4):
        vop(g, "v_subrev_u32 %s, %s, %s" % (vr(KW + m), sr(S_W4K), vr(KW + m)), KW + m, [KW + m])
    for c in range(8):
        vop(g, "v_subrev_u32 %s, %s, %s" % (vr(KA + c), sr(S_B8K), vr(KA + c)), KA + c, [KA + c])
    k_write(2, 0)
    g.wait_lg("KW")
    g.barrier()
    k_reads(4, 0)
    k_reads(5, 4096)
    s_tile(4, 2)
    s_tile(5, 5)
    stamp(g, 0, V_T)
    g.wait_vm("V")
    g.barrier()
    for t in range(8):
        vop(g, "v_add_u32 %s, %s, %s" % (vr(V_A + t), vr(V_A + t), vr(V_DELTA)), V_A + t, [V_A + t, V_DELTA])

    def v_reads(pp, t):
        for j in range(2):
            d = R_A + t * 4 + j * 2
            g.dsread("ds_read_b64_tr_b16 %s, %s offset:%d" % (vr(d, 2), vr(V_A + t), pp * 8192 + j * 4096),
                     "VT%d_%d" % (pp, t), dst=rng(d, 2), addr=[V_A + t])

    for t in range(8):
        v_reads(0, t)
    g.vload("buffer_load_dword %s, off, %s, %s offset:64 sc1" % (vr(V_MASK), sr(SRD_DBG, 4), sr(S_GOFF)), "MK", dst=[V_MASK])
    stamp(g, 0, V_T)

    def pfrag(pp, u):
        return R_K + (pp * 3 + u) * 4
    TMP = R_K + 36
    for u in range(3):
        a, b = TMP, TMP + 1
        for kt in range(6):
            r = sacc(kt, u)
            for rep in range(2):
                g.valu("v_cvt_pk_bf16_f32 %s, %s, %s" % (vr(a), vr(r), vr(r + 1)), dst=[a], src=[r, r + 1])
                g.valu("v_cvt_pk_bf16_f32 %s, %s, %s" % (vr(b), vr(r + 2), vr(r + 3)), dst=[b], src=[r + 2, r + 3])
                vop(g, "v_lshlrev_b32 %s, 16, %s" % (vr(r), vr(a)), r, [a])
                vop(g, "v_and_b32 %s, 0xffff0000, %s" % (vr(r + 1), vr(a)), r + 1, [a])
                vop(g, "v_lshlrev_b32 %s, 16, %s" % (vr(r + 2), vr(b)), r + 2, [b])
                vop(g, "v_and_b32 %s, 0xffff0000, %s" % (vr(r + 3), vr(b)), r + 3, [b])
                if rep == 0:
                    g.valu("v_pk_mul_f32 %s, %s, %s" % (vr(r, 2), vr(r, 2), sr(S_SC, 2)), dst=[r, r + 1], src=[r, r + 1])
                    g.valu("v_pk_mul_f32 %s, %s, %s" % (vr(r + 2, 2), vr(r + 2, 2), sr(S_SC, 2)), dst=[r + 2, r + 3], src=[r + 2, r + 3])
        vals = [sacc(kt, u) + r for kt in range(6) for r in range(4)]
        m = TMP + 2
        vop(g, "v_max3_f32 %s, %s, %s, %s" % (vr(m), vr(vals[0]), vr(vals[1]), vr(vals[2])), m, vals[0:3])
        i = 3
        while i < 24:
            if i + 1 < 24:
                vop(g, "v_max3_f32 %s, %s, %s, %s" % (vr(m), vr(m), vr(vals[i]), vr(vals[i + 1])), m, [m, vals[i], vals[i + 1]])
                i += 2
            else:
                vop(g, "v_max_f32 %s, %s, %s" % (vr(m), vr(m), vr(vals[i])), m, [m, vals[i]])
                i += 1
        xlane_reduce(g, m, TMP + 3, "v_max_f32")
        for v in vals:
            vop(g, "v_sub_f32 %s, %s, %s" % (vr(v), vr(v), vr(m)), v, [v, m])
        for k in range(0, 24, 2):
            v = vals[k]
            g.valu("v_pk_mul_f32 %s, %s, %s" % (vr(v, 2), vr(v, 2), sr(S_L2E, 2)), dst=[v, v + 1], src=[v, v + 1])
        for v in vals:
            g.valu("v_exp_f32 %s, %s" % (vr(v), vr(v)), dst=[v], src=[v], trans=True)
        sm = TMP + 4
        g.valu("v_pk_add_f32 %s, %s, %s" % (vr(sm, 2), vr(vals[0], 2), vr(vals[2], 2)), dst=[sm, sm + 1], src=vals[0:4])
        for k in range(4, 24, 2):
            g.valu("v_pk_add_f32 %s, %s, %s" % (vr(sm, 2), vr(sm, 2), vr(vals[k], 2)), dst=[sm, sm + 1], src=[sm, sm + 1, vals[k], vals[k] + 1])
        vop(g, "v_add_f32 %s, %s, %s" % (vr(sm), vr(sm), vr(sm + 1)), sm, [sm, sm + 1])
        xlane_reduce(g, sm, TMP + 3, "v_add_f32")
        g.valu("v_rcp_f32 %s, %s" % (vr(sm), vr(sm)), dst=[sm], src=[sm], trans=True)
        vop(g, "v_mov_b32 %s, %s" % (vr(sm + 1), vr(sm)), sm + 1, [sm])
        for k in range(0, 24, 2):
            v = vals[k]
            g.valu("v_pk_mul_f32 %s, %s, %s" % (vr(v, 2), vr(v, 2), vr(sm, 2)), dst=[v, v + 1], src=[v, v + 1, sm, sm + 1])
        for pp in range(3):
            d = pfrag(pp, u)
            lo, hi = sacc(2 * pp, u), sacc(2 * pp + 1, u)
            g.valu("v_cvt_pk_bf16_f32 %s, %s, %s" % (vr(d), vr(lo), vr(lo + 1)), dst=[d], src=[lo, lo + 1])
            g.valu("v_cvt_pk_bf16_f32 %s, %s, %s" % (vr(d + 1), vr(lo + 2), vr(lo + 3)), dst=[d + 1], src=[lo + 2, lo + 3])
            g.valu("v_cvt_pk_bf16_f32 %s, %s, %s" % (vr(d + 2), vr(hi), vr(hi + 1)), dst=[d + 2], src=[hi, hi + 1])
            g.valu("v_cvt_pk_bf16_f32 %s, %s, %s" % (vr(d + 3), vr(hi + 2), vr(hi + 3)), dst=[d + 3], src=[hi + 2, hi + 3])
    stamp(g, 0, V_T)
    for pp in range(3):
        for t in range(8):
            g.wait_lg("VT%d_%d" % (pp, t))
            for u in range(3):
                g.mfma(acc(t, u), R_A + t * 4, pfrag(pp, u), None if pp == 0 else acc(t, u))
            if pp < 2:
                v_reads(pp + 1, t)
    stamp(g, 0, V_T)
    if WOPF:
        g.vload("buffer_load_dword %s, %s, %s, 0 offen" % (vr(V_T + 3), vr(V_WO), sr(SRD_WO, 4)), "TCH", dst=[V_T + 3], addr=[V_WO])
    for p in range(4):
        for u in range(3):
            pack_pair(g, acc(2 * p, u), acc(2 * p + 1, u))
    g.wait_vm("MK")
    g.valu("v_readfirstlane_b32 %s, %s" % (sr(S_PSEEN), vr(V_MASK)), src=[V_MASK], readlane=True, sdst=[S_PSEEN])
    lab = "st_wt_%d" % int(kv_first)
    if not REL:
        g.s("s_cmp_lg_u32 %s, %s" % (sr(S_PSEEN), sr(S_PEXP)))
        g.s("s_cbranch_scc1 %s" % lab)
    q0 = list(g.vmq)
    for fl in ("", " sc1"):
        if fl:
            if REL:
                break
            g.label(lab)
            g.vmq = list(q0)
        for p in range(4):
            for u in range(3):
                g.s("s_mov_b32 %s, %d" % (sr(S_TMP), u * 131072))
                d = acc(2 * p, u)
                g.vstore("buffer_store_dwordx4 %s, %s, %s, %s offen offset:%d%s" % (vr(d, 4), vr(V_O), sr(SRD_WS, 4), sr(S_TMP), p * 1024, fl),
                         "ST", data=rng(d, 4), addr=[V_O])
        g.s("s_branch attn_tail")


def gen_attn():
    g = Gen()
    g.s("s_cmp_ge_u32 s2, 256")
    g.s("s_cbranch_scc1 attn_end")
    vop(g, "v_lshrrev_b32 v7, 6, v0", 7, [0])
    vop(g, "v_and_b32 %s, 63, v0" % vr(V_LANE), V_LANE, [0])
    g.valu("v_readfirstlane_b32 %s, v7" % sr(S_WAVE), src=[7], readlane=True, sdst=[S_WAVE])
    g.s("s_mov_b32 %s, s2" % sr(S_ME))
    g.s("s_mov_b32 %s, 0" % sr(S_STOLEN))
    g.s("s_load_dwordx4 s[80:83], s[0:1], 80")
    g.s("s_getreg_b32 s4, hwreg(HW_REG_XCC_ID, 0, 4)")
    g.s("s_mul_i32 s5, s4, s4")
    g.s("s_lshl_b32 s5, s5, 16")
    g.s("s_lshl_b32 s4, s4, 6")
    g.s("s_add_u32 s4, s4, s5")
    g.s("s_add_u32 %s, s4, 1" % sr(S_PADD))
    g.s("s_lshl_b32 %s, %s, 5" % (sr(S_PEXP), sr(S_PADD)))
    g.nop(4)
    g.s("s_cmp_eq_u32 s3, 0")
    g.s("s_cselect_b32 %s, 1, 0" % sr(S_W0))
    g.s("s_mov_b32 %s, 0" % sr(S_W0 + 1))
    g.s("s_mov_b32 %s, %s" % (sr(S_CL), sr(S_W0)))
    g.s("s_mov_b32 %s, 0" % sr(S_CL + 1))
    if FORCE_STEAL:
        g.s("s_bfe_u32 s4, s2, 0x30005")
        g.s("s_cmp_eq_u32 s4, %d" % (FORCE_STEAL - 1))
        g.s("s_cselect_b32 s90, 1, 0")
    g.label("job_start")
    lane_setup(g)
    g.s("s_bfe_u32 s6, s2, 0x10002")
    g.s("s_and_b32 s5, s2, 3")
    g.s("s_lshr_b32 s43, s2, 3")
    g.s("s_and_b32 s40, s43, 1")
    g.s("s_mul_i32 s16, s6, 40")
    g.s("s_add_u32 s18, s0, s16")
    g.s("s_addc_u32 s19, s1, 0")
    g.s("s_load_dwordx8 s[8:15], s[18:19], 0")
    g.s("s_load_dwordx2 s[16:17], s[0:1], 96")
    g.s("s_load_dwordx2 s[68:69], s[18:19], 32")
    g.s("s_lshr_b32 s41, s3, 1")
    g.s("s_and_b32 s42, s3, 1")
    g.s("s_lshl_b32 s44, s5, 2")
    g.s("s_add_u32 s44, s44, s41")
    g.s("s_lshl_b32 s45, s44, 5")
    g.s("s_add_u32 s45, s45, s43")
    g.s("s_mul_i32 s45, s45, 24576")
    g.s("s_mov_b32 %s, 0x3db504f3" % sr(S_SC))
    g.s("s_mov_b32 %s, 0x3db504f3" % sr(S_SC + 1))
    g.s("s_mov_b32 %s, 0x3fb8aa3b" % sr(S_L2E))
    g.s("s_mov_b32 %s, 0x3fb8aa3b" % sr(S_L2E + 1))
    g.s("s_mul_i32 s55, s44, 98304")
    g.s("s_mul_i32 s56, s42, 49152")
    g.s("s_add_u32 s55, s55, s56")
    vop(g, "v_lshrrev_b32 v8, 2, v1", 8, [1])
    vop(g, "v_lshlrev_b32 v8, 10, v8", 8, [8])
    vop(g, "v_lshl_add_u32 v8, v5, 4, v8", 8, [5, 8])
    vop(g, "v_add_u32 %s, s55, v8" % vr(V_X), V_X, [8])
    g.s("s_mul_i32 s55, s42, 12288")
    g.s("s_add_u32 s55, s55, s45")
    vop(g, "v_lshlrev_b32 v8, 4, v1", 8, [1])
    vop(g, "v_add_u32 %s, s55, v8" % vr(V_K), V_K, [8])
    g.s("s_lshl_b32 %s, s3, 12" % sr(S_W4K))
    g.s("s_lshl_b32 %s, s41, 13" % sr(S_B8K))
    g.s("s_mul_i32 s55, s42, 12288")
    g.s("s_add_u32 s55, s55, s45")
    for par in range(2):
        vop(g, "v_add_u32 v8, %d, v3" % (4 * par), 8, [3])
        vop(g, "v_lshlrev_b32 v8, 1, v8", 8, [8])
        vop(g, "v_xor_b32 v8, v8, v2", 8, [8, 2])
        vop(g, "v_lshlrev_b32 v8, 4, v8", 8, [8])
        vop(g, "v_lshl_add_u32 v8, v3, 8, v8", 8, [3, 8])
        vop(g, "v_add_u32 %s, s55, v8" % vr(V_VD0 + par), V_VD0 + par, [8])
    g.s("s_and_b32 s55, s41, 1")
    g.s("s_lshl_b32 s55, s55, 2")
    vop(g, "v_or_b32 v8, s55, v3", 8, [3])
    vop(g, "v_lshlrev_b32 v8, 1, v8", 8, [8])
    vop(g, "v_xor_b32 v8, v8, v2", 8, [8, 2])
    vop(g, "v_lshlrev_b32 v8, 4, v8", 8, [8])
    vop(g, "v_lshl_add_u32 v8, v3, 13, v8", 8, [3, 8])
    g.s("s_lshl_b32 s55, s3, 15")
    g.s("s_lshl_b32 s56, s43, 8")
    g.s("s_add_u32 s55, s55, s56")
    vop(g, "v_add_u32 %s, s55, v8" % vr(V_W), V_W, [8])
    g.s("s_lshl_b32 %s, s3, 10" % sr(S_M0W))
    vop(g, "v_lshlrev_b32 v8, 3, v3", 8, [3])
    vop(g, "v_add_u32 v8, v8, v4", 8, [8, 4])
    vop(g, "v_lshlrev_b32 v8, 8, v8", 8, [8])
    vop(g, "v_lshl_add_u32 v8, v5, 3, v8", 8, [8, 5])
    for t in range(8):
        vop(g, "v_xor_b32 v9, %d, v6" % t, 9, [6])
        vop(g, "v_lshl_add_u32 %s, v9, 5, v8" % vr(V_A + t), V_A + t, [9, 8])
    g.s("s_mul_i32 s55, s41, 24576")
    g.s("s_add_u32 s55, s55, %d" % A_V_LDS)
    g.s("s_mul_i32 s56, s42, 12288")
    g.s("s_add_u32 %s, s55, s56" % sr(S_M0V))
    g.s("s_lshl_b32 s55, s6, 2")
    g.s("s_add_u32 s55, s55, s5")
    g.s("s_lshl_b32 %s, s55, 2" % sr(S_GOFF))
    g.s("s_add_u32 %s, %s, 128" % (sr(S_GOFF + 1), sr(S_GOFF)))
    g.s("s_lshl_b32 s55, 1, s43")
    vop(g, "v_mov_b32 %s, s55" % vr(V_CLAIM), V_CLAIM)
    vop(g, "v_lshl_add_u32 v8, v2, 2, v3", 8, [2, 3])
    vop(g, "v_lshlrev_b32 %s, 2, v8" % vr(V_BP), V_BP, [8])
    g.waitcnt(lg=0)
    make_srd(g, SRD_X, 8, 1572864)
    make_srd(g, SRD_K, 10, 12582912)
    make_srd(g, SRD_V, 12, 12582912)
    make_srd(g, SRD_W, 14, 4194304)
    make_srd(g, SRD_WS, 16, WS_BYTES)
    make_srd(g, SRD_WO, 68, 4194304)
    make_srd(g, SRD_OUT, 80, 16 * 96 * 1024 * 2)
    make_srd(g, SRD_DBG, 82, 256)
    if FORCE_STEAL:
        g.s("s_cmp_eq_u32 s90, 1")
        g.s("s_mov_b32 s90, 0")
        g.s("s_cbranch_scc1 steal")
    if TOUCH:
        g.s("s_lshl_b32 s55, s3, 18")
        g.s("s_add_u32 s55, s55, %d" % (256 * 8192))
        g.s("s_lshl_b32 s56, s43, 8")
        g.s("s_add_u32 s55, s55, s56")
        vop(g, "v_lshrrev_b32 v8, 2, v1", 8, [1])
        vop(g, "v_lshlrev_b32 v8, 13, v8", 8, [8])
        vop(g, "v_lshl_add_u32 v8, v5, 6, v8", 8, [5, 8])
        vop(g, "v_add_u32 v8, s55, v8", 8, [8])
        for i in range(2):
            g.s("s_mov_b32 %s, %d" % (sr(S_TMP), i * 16 * 8192))
            g.vload("buffer_load_dword %s, v8, %s, %s offen" % (vr(V_T + 3), sr(SRD_W, 4), sr(S_TMP)), "TCH", dst=[V_T + 3], addr=[8])
        g.s("s_mul_i32 s55, s5, 393216")
        g.s("s_lshl_b32 s56, s43, 3")
        g.s("s_add_u32 s56, s56, s3")
        g.s("s_mul_i32 s56, s56, 1536")
        g.s("s_add_u32 s55, s55, s56")
        vop(g, "v_lshlrev_b32 v9, 6, v1", 9, [1])
        vop(g, "v_add_u32 v9, s55, v9", 9, [9])
        g.vload("buffer_load_dword %s, v9, %s, 0 offen" % (vr(V_T + 3), sr(SRD_X, 4)), "TCH", dst=[V_T + 3], addr=[9])
    g.s("s_cmp_eq_u32 s40, 1")
    g.s("s_cbranch_scc1 attn_kvfirst")
    t0 = g.text()
    gb = Gen()
    gb.vmq = list(g.vmq)
    _stamp_n[0] = 0
    attn_body(gb, False)
    ga = Gen()
    ga.vmq = list(g.vmq)
    _stamp_n[0] = 0
    ga.label("attn_kvfirst")
    attn_body(ga, True)
    return t0 + gb.text() + ga.text()


O_ACC = 0
O_A = 96
O_B = 112
O_VA = 184
O_VX = 188
O_VW = 189
O_VO = 190
O_VL = 191
O_VZ = 240
O_VT = 192


def oproj_setup(g):
    lane_setup(g)
    g.s("s_bfe_u32 s6, %s, 0x10002" % sr(S_ME))
    g.s("s_bfe_u32 s7, %s, 0x20003" % sr(S_ME))
    g.s("s_and_b32 s40, %s, 3" % sr(S_ME))
    g.s("s_lshr_b32 s41, %s, 5" % sr(S_ME))
    g.s("s_mul_i32 s55, s40, 24")
    g.s("s_mul_i32 s56, s7, 6")
    g.s("s_add_u32 s42, s55, s56")
    g.s("s_lshl_b32 s55, s42, 7")
    g.s("s_lshl_b32 s56, s3, 4")
    g.s("s_add_u32 s55, s55, s56")
    g.s("s_lshl_b32 s55, s55, 10")
    g.s("s_mul_i32 s56, s6, %d" % O_BLOCK_BYTES)
    g.s("s_add_u32 s55, s55, s56")
    vop(g, "v_lshlrev_b32 %s, 4, v1" % vr(O_VL), O_VL, [1])
    vop(g, "v_add_u32 %s, s55, %s" % (vr(O_VX), vr(O_VL)), O_VX, [O_VL])
    vop(g, "v_and_b32 v8, 7, v1", 8, [1])
    vop(g, "v_lshlrev_b32 v9, 1, v3", 9, [3])
    vop(g, "v_xor_b32 v8, v8, v9", 8, [8, 9])
    vop(g, "v_lshlrev_b32 v8, 4, v8", 8, [8])
    vop(g, "v_lshrrev_b32 v9, 3, v1", 9, [1])
    vop(g, "v_lshl_add_u32 v8, v9, 10, v8", 8, [8, 9])
    g.s("s_lshl_b32 s55, s41, 7")
    g.s("s_lshl_b32 s56, s3, 19")
    g.s("s_add_u32 s55, s55, s56")
    vop(g, "v_add_u32 %s, s55, v8" % vr(O_VW), O_VW, [8])
    g.s("s_lshl_b32 %s, s3, 14" % sr(S_M0W))
    g.s("s_add_u32 %s, %s, %d" % (sr(S_M0W), sr(S_M0W), O_LDS))
    vop(g, "v_lshlrev_b32 v8, 2, v3", 8, [3])
    vop(g, "v_add_u32 v8, v8, v4", 8, [8, 4])
    vop(g, "v_bfe_u32 v9, v8, 1, 2", 9, [8])
    vop(g, "v_lshlrev_b32 v8, 7, v8", 8, [8])
    vop(g, "v_lshl_add_u32 v8, v5, 3, v8", 8, [8, 5])
    vop(g, "v_add_u32 v8, %s, v8" % sr(S_M0W), 8, [8])
    for t in range(4):
        vop(g, "v_xor_b32 v10, %d, v9" % t, 10, [9])
        vop(g, "v_lshl_add_u32 %s, v10, 5, v8" % vr(O_VA + t), O_VA + t, [10, 8])
    g.s("s_lshl_b32 s55, s42, 4")
    g.s("s_lshl_b32 s55, s55, 10")
    g.s("s_lshl_b32 s56, s6, 9")
    g.s("s_add_u32 s55, s55, s56")
    g.s("s_lshl_b32 s56, s41, 6")
    g.s("s_add_u32 s55, s55, s56")
    g.s("s_lshl_b32 s55, s55, 1")
    vop(g, "v_lshlrev_b32 v8, 11, v2", 8, [2])
    vop(g, "v_lshl_add_u32 v8, v3, 3, v8", 8, [3, 8])
    vop(g, "v_add_u32 %s, s55, v8" % vr(O_VO), O_VO, [8])
    vop(g, "v_mov_b32 %s, 0" % vr(O_VZ), O_VZ)


def gen_steal():
    g = Gen()
    A, B = O_VT, O_VT + 1
    g.label("steal")
    g.waitcnt(vm=0, lg=0)
    g.barrier()
    g.s("s_cmp_lg_u32 s3, 0")
    g.s("s_cbranch_scc1 steal_join")
    g.label("steal_retry")
    g.vload("buffer_load_dword %s, off, %s, %s sc1" % (vr(A), sr(SRD_DBG, 4), sr(S_GOFF)), "X", dst=[A])
    g.waitcnt(vm=0)
    g.valu("v_readfirstlane_b32 s55, %s" % vr(A), src=[A], readlane=True, sdst=[55])
    g.s("s_mov_b32 s56, -1")
    g.s("s_cmp_eq_u32 s55, -1")
    g.s("s_cbranch_scc1 steal_pub")
    g.s("s_ff0_i32_b32 s56, s55")
    g.s("s_lshl_b32 s57, 1, s56")
    vop(g, "v_mov_b32 %s, s57" % vr(A), A)
    g.s("s_mov_b64 exec, 1")
    g.vload("buffer_atomic_or %s, off, %s, %s sc0" % (vr(A), sr(SRD_DBG, 4), sr(S_GOFF)), "X", dst=[A])
    g.s("s_mov_b64 exec, -1")
    g.waitcnt(vm=0)
    g.valu("v_readfirstlane_b32 s55, %s" % vr(A), src=[A], readlane=True, sdst=[55])
    g.s("s_and_b32 s55, s55, s57")
    g.s("s_cmp_lg_u32 s55, 0")
    g.s("s_cbranch_scc1 steal_retry")
    g.label("steal_pub")
    vop(g, "v_mov_b32 %s, s56" % vr(A), A)
    vop(g, "v_mov_b32 %s, 0" % vr(B), B)
    g.dswrite("ds_write_b32 %s, %s" % (vr(B), vr(A)), "X", data=[A], addr=[B])
    g.waitcnt(lg=0)
    g.label("steal_join")
    g.barrier()
    vop(g, "v_mov_b32 %s, 0" % vr(B), B)
    g.dsread("ds_read_b32 %s, %s" % (vr(A), vr(B)), "X", dst=[A], addr=[B])
    g.waitcnt(lg=0)
    g.valu("v_readfirstlane_b32 s56, %s" % vr(A), src=[A], readlane=True, sdst=[56])
    g.barrier()
    g.s("s_cmp_eq_u32 s56, -1")
    g.s("s_cbranch_scc1 steal_none")
    g.s("s_lshl_b32 s56, s56, 3")
    g.s("s_and_b32 s57, %s, 7" % sr(S_ME))
    g.s("s_or_b32 s2, s56, s57")
    g.s("s_mov_b32 %s, 1" % sr(S_STOLEN))
    g.s("s_mov_b32 %s, 0" % sr(S_CL))
    g.s("s_branch job_start")
    g.label("steal_none")
    oproj_setup(g)
    g.s("s_branch oproj_pf")
    return g.text()


def gen_oproj():
    g = Gen()

    def oacc(t, u):
        return O_ACC + (t * 6 + u) * 4

    def bfr(s, u):
        return O_B + ((s % 3) * 6 + u) * 4

    g.label("attn_tail")
    g.nop(2)
    oproj_setup(g)
    g.s("s_lshl_b32 s57, 1, s43")
    vop(g, "v_mov_b32 %s, s57" % vr(O_VT), O_VT)
    g.waitcnt(vm=0)
    stamp(g, 0, V_T)
    g.s("s_and_b32 s55, %s, 63" % sr(S_PSEEN))
    g.s("s_cmp_eq_u32 s55, 32")
    g.s("s_cselect_b32 s55, -1, 0")
    vop(g, "v_mov_b32 %s, s55" % vr(V_MASK), V_MASK)
    g.s("s_mov_b64 exec, %s" % sr(S_W0, 2))
    g.dswrite("ds_write_b32 %s, %s" % (vr(O_VZ), vr(V_MASK)), "X", data=[V_MASK], addr=[O_VZ])
    g.s("s_mov_b64 exec, -1")
    g.valu("v_readfirstlane_b32 s55, %s" % vr(V_CLAIM), src=[V_CLAIM], readlane=True, sdst=[55])
    g.s("s_and_b32 s55, s55, s57")
    g.s("s_cmp_eq_u32 s55, 0")
    g.s("s_cselect_b32 s55, 1, %s" % sr(S_STOLEN))
    g.s("s_and_b32 s58, s55, %s" % sr(S_W0))
    g.s("s_mov_b32 s59, 0")
    g.waitcnt(lg=0)
    g.lgq = []
    g.barrier()
    if REL:
        g.s("s_cmp_lg_u32 s3, 0")
        g.s("s_cbranch_scc1 rel_skip")
        g.s("buffer_wbl2 sc1")
        g.waitcnt(vm=0)
        g.label("rel_skip")
    g.s("s_mov_b64 exec, s[58:59]")
    g.vstore("buffer_atomic_add %s, off, %s, %s" % (vr(O_VT), sr(SRD_DBG, 4), sr(S_GOFF + 1)), "DN", data=[O_VT])
    g.s("s_mov_b64 exec, -1")
    g.dsread("ds_read_b32 %s, %s" % (vr(O_VT + 1), vr(O_VZ)), "X", dst=[O_VT + 1], addr=[O_VZ])
    g.waitcnt(lg=0)
    g.lgq = []
    g.valu("v_readfirstlane_b32 s55, %s" % vr(O_VT + 1), src=[O_VT + 1], readlane=True, sdst=[55])
    g.s("s_cmp_lg_u32 s55, -1")
    g.s("s_cbranch_scc1 steal")
    g.label("oproj_pf")

    def issue_w(c):
        for i in range(4):
            g.s("s_mov_b32 %s, %d" % (sr(S_WOFF), c * 32768 + i * 8192))
            g.s("s_add_u32 m0, %s, %d" % (sr(S_M0W), (c % 4) * 4096 + i * 1024), m0=True)
            g.vload("buffer_load_dwordx4 %s, %s, %s offen lds" % (vr(O_VW), sr(SRD_WO, 4), sr(S_WOFF)),
                    "W%d" % c, addr=[O_VW], lds=True)

    def issue_b(s):
        for u in range(6):
            g.s("s_mov_b32 %s, %d" % (sr(S_TMP), u * 131072 + (s >> 2) * 4096))
            d = bfr(s, u)
            g.vload("buffer_load_dwordx4 %s, %s, %s, %s offen offset:%d sc1" % (vr(d, 4), vr(O_VX), sr(SRD_WS, 4), sr(S_TMP), (s & 3) * 1024),
                    "B%d" % s, dst=rng(d, 4), addr=[O_VX])

    def tr_reads(s, t):
        for j in range(2):
            d = O_A + t * 4 + j * 2
            g.dsread("ds_read_b64_tr_b16 %s, %s offset:%d" % (vr(d, 2), vr(O_VA + t), (s % 4) * 4096 + j * 2048),
                     "A%d_%d" % (s, t), dst=rng(d, 2), addr=[O_VA + t])

    for c in range(3):
        issue_w(c)
    GBAR = int(os.environ.get("GBAR", "0"))
    g.s("s_lshl_b32 s56, s3, 2")
    if GBAR:
        vop(g, "v_lshlrev_b32 %s, 2, %s" % (vr(O_VT + 3), vr(V_LANE)), O_VT + 3, [V_LANE])
        g.s("s_mov_b64 exec, 0xff")
    g.label("oproj_poll")
    if GBAR:
        g.vload("buffer_load_dword %s, %s, %s, 0 offen offset:128 sc1" % (vr(O_VT + 2), vr(O_VT + 3), sr(SRD_DBG, 4)), "P", dst=[O_VT + 2], addr=[O_VT + 3])
        g.waitcnt(vm=0)
        g.vmq = []
        g.valu("v_cmp_ne_u32 vcc, -1, %s" % vr(O_VT + 2), src=[O_VT + 2])
        g.s("s_cmp_eq_u64 vcc, 0")
    else:
        g.vload("buffer_load_dword %s, off, %s, %s sc1" % (vr(O_VT + 2), sr(SRD_DBG, 4), sr(S_GOFF + 1)), "P", dst=[O_VT + 2])
        g.waitcnt(vm=0)
        g.vmq = []
        g.valu("v_readfirstlane_b32 s55, %s" % vr(O_VT + 2), src=[O_VT + 2], readlane=True, sdst=[55])
        g.s("s_lshr_b32 s55, s55, s56")
        g.s("s_and_b32 s55, s55, 15")
        g.s("s_cmp_eq_u32 s55, 15")
    g.s("s_cbranch_scc1 oproj_go")
    g.s("s_sleep %d" % SLEEP)
    g.s("s_branch oproj_poll")
    g.label("oproj_go")
    if GBAR:
        g.s("s_mov_b64 exec, -1")
    stamp(g, 0, V_T)
    for c in range(3):
        issue_b(c)
    g.wait_vm("W0")
    for t in range(4):
        tr_reads(0, t)
    nsteps = 16
    for s in range(nsteps):
        g.comment("---- step %d" % s)
        if s % 4 == 0:
            stamp(g, 0, V_T)
        if s + 3 < nsteps:
            issue_w(s + 3)
        for t in range(4):
            g.wait_lg("A%d_%d" % (s, t))
            if t == 0:
                g.wait_vm("B%d" % s)
            for u in range(6):
                g.mfma(oacc(t, u), O_A + t * 4, bfr(s, u), None if s == 0 else oacc(t, u))
            if s + 1 < nsteps:
                if t == 0:
                    g.wait_vm("W%d" % (s + 1))
                tr_reads(s + 1, t)
        if s + 3 < nsteps:
            issue_b(s + 3)
    stamp(g, 0, V_T)
    g.s("s_lshl_b32 s55, s3, 13")
    g.s("s_lshl_b32 s56, s3, 10")
    g.s("s_add_u32 s55, s55, %d" % O_LDS)
    g.s("s_add_u32 s56, s56, %d" % O_LDS)
    vop(g, "v_add_u32 %s, s55, %s" % (vr(O_VA), vr(O_VL)), O_VA, [O_VL])
    vop(g, "v_add_u32 %s, s56, %s" % (vr(O_VA + 1), vr(O_VL)), O_VA + 1, [O_VL])
    vop(g, "v_add_u32 %s, 0x10000, %s" % (vr(O_VA + 2), vr(O_VA)), O_VA + 2, [O_VA])
    vop(g, "v_add_u32 %s, 0x10000, %s" % (vr(O_VA + 3), vr(O_VA + 1)), O_VA + 3, [O_VA + 1])
    g.barrier()
    for ph in range(3):
        wa = O_VA + 2 * (ph & 1)
        ra = wa + 1
        for i in range(8):
            d = O_ACC + (8 * ph + i) * 4
            g.dswrite("ds_write_b128 %s, %s offset:%d" % (vr(wa), vr(d, 4), i * 1024), "RW", data=rng(d, 4), addr=[wa])
        g.wait_lg("RW")
        g.barrier()
        T = O_VT + 4
        for w2 in range(8):
            d = T + w2 * 4
            g.dsread("ds_read_b128 %s, %s offset:%d" % (vr(d, 4), vr(ra), w2 * 8192), "RR%d" % w2, dst=rng(d, 4), addr=[ra])
        for w2 in range(1, 8):
            g.wait_lg("RR%d" % w2)
            for h in range(2):
                d = T + h * 2
                s_ = T + w2 * 4 + h * 2
                g.valu("v_pk_add_f32 %s, %s, %s" % (vr(d, 2), vr(d, 2), vr(s_, 2)), dst=[d, d + 1], src=[d, d + 1, s_, s_ + 1])
        o = O_VT + 40 + ph * 2
        g.valu("v_cvt_pk_bf16_f32 %s, %s, %s" % (vr(o), vr(T), vr(T + 1)), dst=[o], src=[T, T + 1])
        g.valu("v_cvt_pk_bf16_f32 %s, %s, %s" % (vr(o + 1), vr(T + 2), vr(T + 3)), dst=[o + 1], src=[T + 2, T + 3])
        g.s("s_add_u32 s55, s3, %d" % (8 * ph))
        g.s("s_mul_i32 s56, s55, 43")
        g.s("s_lshr_b32 s56, s56, 8")
        g.s("s_mul_i32 s57, s56, 6")
        g.s("s_sub_u32 s57, s55, s57")
        g.s("s_lshl_b32 s57, s57, 15")
        g.s("s_lshl_b32 s56, s56, 5")
        g.s("s_add_u32 s57, s57, s56")
        g.vstore("buffer_store_dwordx2 %s, %s, %s, s57 offen" % (vr(o, 2), vr(O_VO), sr(SRD_OUT, 4)), "ST", data=rng(o, 2), addr=[O_VO])
    if STAMP:
        g.wait_vm("ST")
        stamp(g, 0, V_T)
    g.label("attn_end")
    g.s("s_endpgm")
    return g.text()


HEADER = """; Kernarg layout for this problem (104 bytes, ptrs only, base s[0:1]):
; @launch kernel=attn_kernel grid=(256,1,1) block=(512,1,1) lds=163840
.amdgcn_target "amdgcn-amd-amdhsa--gfx950"
.text
"""


def kernel_text(name, body):
    return (".globl %s\n.p2align 8\n.type %s,@function\n%s:\n" % (name, name, name)) + body


def kd(name, vgpr, sgpr):
    acc_off = (vgpr + 3) // 4 * 4
    return """.p2align 6
.amdhsa_kernel %s
  .amdhsa_next_free_vgpr %d
  .amdhsa_next_free_sgpr %d
  .amdhsa_accum_offset %d
  .amdhsa_group_segment_fixed_size 0
  .amdhsa_kernarg_size 104
  .amdhsa_user_sgpr_count 2
  .amdhsa_user_sgpr_kernarg_segment_ptr 1
  .amdhsa_system_sgpr_workgroup_id_x 1
.end_amdhsa_kernel
""" % (name, vgpr, sgpr, acc_off)


def main():
    out = HEADER
    out += kernel_text("attn_kernel", gen_attn() + gen_steal() + gen_oproj())
    out += '.section .rodata,"a"\n'
    out += kd("attn_kernel", 256, 96)
    path = sys.argv[1] if len(sys.argv) > 1 else "cdna_kernels/%s.s" % NAME
    open(path, "w").write(out)
    print("wrote", path, len(out), "bytes")


if __name__ == "__main__":
    main()
```

```python
import sys, os
sys.path.insert(0, os.path.dirname(os.path.abspath(__file__)))
from asmgen import Gen, vr, sr

NAME = "concat_heads__gqa_block_cached__gqa_block_cached__near_ridge"
O_BLOCK_BYTES = 1536 * 4096 * 2
WS_BYTES = 268435456

STAMP = int(os.environ.get("STAMP", "0"))
STAMP_BASE = 200 * 1024 * 1024
NT = os.environ.get("NT", " nt")
TOUCH = int(os.environ.get("TOUCH", "1"))
TWAIT = int(os.environ.get("TWAIT", "1"))
WOPF = int(os.environ.get("WOPF", "2"))
OTOUCH = int(os.environ.get("OTOUCH", "0"))
_stamp_n = [0]

S_WAVE = 3
SRD_X = 20
SRD_K = 24
SRD_V = 28
SRD_W = 32
SRD_WS = 36
SRD_OUT = 76
SRD_WO = 64
SRD_DBG = 72
S_ME = 70
S_STOLEN = 71
S_GOFF = 84
S_W0 = 86
S_CL = 88
S_PADD = 91
S_PEXP = 92
S_PSEEN = 93
S_FOFF = 94
S_FPOLL = 95
FLG = 64 * 1024 * 1024
REL = int(os.environ.get("REL", "0"))
O_LDS = 32768
SLEEP = int(os.environ.get("SLEEP", "8"))
FORCE_STEAL = int(os.environ.get("FORCE_STEAL", "0"))
S_M0W = 46
S_TMP = 47
S_WOFF = 48
S_M0V = 49
S_SC = 50
S_L2E = 52
S_W4K = 54
S_B8K = 57


def rng(a, n):
    return list(range(a, a + n))


def stamp(g, kid, vt):
    if not STAMP:
        return
    n = _stamp_n[0]
    _stamp_n[0] += 1
    g.s("s_memrealtime s[60:61]" if os.environ.get("REAL") else "s_memtime s[60:61]")
    g.waitcnt(lg=0)
    g.lgq = []
    g.s("s_lshl_b32 s62, s70, 8")
    g.s("s_add_u32 s62, s62, %d" % (STAMP_BASE + kid * 131072 + n * 8))
    g.s("s_mul_i32 s63, s3, 1048576")
    g.s("s_add_u32 s62, s62, s63")
    g.valu("v_mov_b32 %s, s60" % vr(vt), dst=[vt])
    g.valu("v_mov_b32 %s, s61" % vr(vt + 1), dst=[vt + 1])
    g.valu("v_mov_b32 %s, s62" % vr(vt + 2), dst=[vt + 2])
    g.s("s_mov_b64 s[58:59], exec")
    g.s("s_mov_b64 exec, 1")
    g.vstore("buffer_store_dwordx2 %s, %s, %s, 0 offen" % (vr(vt, 2), vr(vt + 2), sr(SRD_WS, 4)), "STAMP", data=[vt, vt + 1], addr=[vt + 2])
    g.s("s_mov_b64 exec, s[58:59]")


def make_srd(g, srd, ptr, nbytes):
    g.s("s_mov_b32 %s, %s" % (sr(srd), sr(ptr)))
    g.s("s_and_b32 %s, %s, 0xffff" % (sr(srd + 1), sr(ptr + 1)))
    g.s("s_mov_b32 %s, %d" % (sr(srd + 2), nbytes))
    g.s("s_mov_b32 %s, 0x00020000" % sr(srd + 3))


def vop(g, text, dst, src=()):
    g.valu(text, dst=[dst] if isinstance(dst, int) else dst, src=src)


def lane_setup(g):
    vop(g, "v_mov_b32 v1, %s" % vr(V_LANE), 1, [V_LANE])
    vop(g, "v_and_b32 v2, 15, v1", 2, [1])
    vop(g, "v_lshrrev_b32 v3, 4, v1", 3, [1])
    vop(g, "v_bfe_u32 v4, v1, 2, 2", 4, [1])
    vop(g, "v_and_b32 v5, 3, v1", 5, [1])
    vop(g, "v_and_b32 v6, 1, v3", 6, [3])
    vop(g, "v_lshlrev_b32 v6, 2, v6", 6, [6])
    vop(g, "v_or_b32 v6, v6, v4", 6, [6, 4])


def pack_pair(g, lo, hi):
    g.valu("v_cvt_pk_bf16_f32 %s, %s, %s" % (vr(lo), vr(lo), vr(lo + 1)), dst=[lo], src=[lo, lo + 1])
    g.valu("v_cvt_pk_bf16_f32 %s, %s, %s" % (vr(lo + 1), vr(lo + 2), vr(lo + 3)), dst=[lo + 1], src=[lo + 2, lo + 3])
    g.valu("v_cvt_pk_bf16_f32 %s, %s, %s" % (vr(lo + 2), vr(hi), vr(hi + 1)), dst=[lo + 2], src=[hi, hi + 1])
    g.valu("v_cvt_pk_bf16_f32 %s, %s, %s" % (vr(lo + 3), vr(hi + 2), vr(hi + 3)), dst=[lo + 3], src=[hi + 2, hi + 3])


def xlane_reduce(g, m, tmp, op):
    for sw in ("v_permlane32_swap_b32", "v_permlane16_swap_b32"):
        vop(g, "v_mov_b32 %s, %s" % (vr(tmp), vr(m)), tmp, [m])
        g.valu("%s %s, %s" % (sw, vr(m), vr(tmp)), dst=[m, tmp], src=[m, tmp], permlane=True)
        vop(g, "%s %s, %s, %s" % (op, vr(m), vr(m), vr(tmp)), m, [m, tmp])


R_ACC = 0
R_A = 96
R_B = 128
R_F = 164
R_K = 188
V_A = 236
V_X = 244
V_W = 245
V_BP = 246
V_VD0 = 247
V_VD1 = 248
V_K = 249
V_LANE = 250
V_CLAIM = 251
V_T = 252
V_KW = R_B + 36
V_KR = R_B + 37
V_WO = R_B + 38
V_O = R_B + 39
V_DELTA = R_B + 40
T0 = R_B + 41
V_MASK = R_B + 47
A_V_LDS = 65536
NSLOT = 8
NB = 3


def acc(t, u):
    return R_ACC + (t * 3 + u) * 4


def bstage(s, u):
    return R_B + ((s % NB) * 3 + u) * 4


def bfrag(s, u):
    return R_F + ((s % 2) * 3 + u) * 4


def post_gemm_addrs(g):
    L, Q, G, R, C, A, B = V_LANE, T0, T0 + 1, T0 + 2, T0 + 3, T0 + 4, T0 + 5
    v = vr
    vop(g, "v_and_b32 %s, 15, %s" % (v(Q), v(L)), Q, [L])
    vop(g, "v_lshrrev_b32 %s, 4, %s" % (v(G), v(L)), G, [L])
    vop(g, "v_bfe_u32 %s, %s, 2, 2" % (v(R), v(L)), R, [L])
    vop(g, "v_and_b32 %s, 3, %s" % (v(C), v(L)), C, [L])
    vop(g, "v_xor_b32 %s, %s, %s" % (v(A), v(Q), v(G)), A, [Q, G])
    vop(g, "v_lshlrev_b32 %s, 4, %s" % (v(A), v(A)), A, [A])
    vop(g, "v_lshl_add_u32 %s, %s, 8, %s" % (v(A), v(G), v(A)), A, [G, A])
    g.s("s_lshl_b32 s55, s3, 13")
    vop(g, "v_add_u32 %s, s55, %s" % (v(V_KW), v(A)), V_KW, [A])
    vop(g, "v_lshrrev_b32 %s, 1, %s" % (v(A), v(G)), A, [G])
    vop(g, "v_xor_b32 %s, %s, %s" % (v(A), v(A), v(Q)), A, [A, Q])
    vop(g, "v_lshlrev_b32 %s, 4, %s" % (v(A), v(A)), A, [A])
    vop(g, "v_lshl_add_u32 %s, %s, 8, %s" % (v(A), v(Q), v(A)), A, [Q, A])
    vop(g, "v_and_b32 %s, 1, %s" % (v(B), v(G)), B, [G])
    vop(g, "v_lshl_add_u32 %s, %s, 3, %s" % (v(A), v(B), v(A)), A, [A, B])
    g.s("s_lshl_b32 s55, s41, 14")
    vop(g, "v_add_u32 %s, s55, %s" % (v(V_KR), v(A)), V_KR, [A])
    g.s("s_mul_i32 s55, s41, 24576")
    g.s("s_add_u32 s55, s55, %d" % A_V_LDS)
    vop(g, "v_lshlrev_b32 %s, 10, %s" % (v(A), v(G)), A, [G])
    vop(g, "v_sub_u32 %s, s55, %s" % (v(V_DELTA), v(A)), V_DELTA, [A])
    g.s("s_mul_i32 s55, s44, 6")
    g.s("s_mul_i32 s56, s42, 3")
    g.s("s_add_u32 s55, s55, s56")
    g.s("s_lshl_b32 s55, s55, 7")
    g.s("s_lshl_b32 s56, s43, 2")
    g.s("s_add_u32 s55, s55, s56")
    g.s("s_lshl_b32 s55, s55, 10")
    g.s("s_mul_i32 s56, s6, %d" % O_BLOCK_BYTES)
    g.s("s_add_u32 s55, s55, s56")
    vop(g, "v_lshlrev_b32 %s, 4, %s" % (v(A), v(L)), A, [L])
    vop(g, "v_add_u32 %s, s55, %s" % (v(V_O), v(A)), V_O, [A])
    g.s("s_and_b32 s55, s2, 3")
    g.s("s_lshl_b32 s55, s55, 5")
    g.s("s_lshr_b32 s56, s2, 3")
    g.s("s_add_u32 s55, s55, s56")
    g.s("s_lshl_b32 s55, s55, 3")
    g.s("s_add_u32 s55, s55, s3")
    g.s("s_lshl_b32 s55, s55, 12")
    vop(g, "v_lshlrev_b32 %s, 6, %s" % (v(A), v(L)), A, [L])
    vop(g, "v_add_u32 %s, s55, %s" % (v(V_WO), v(A)), V_WO, [A])


def attn_body(g, kv_first):
    def tr_reads(s, t):
        if os.environ.get("NOTR") and s > 0:
            return
        for j in range(2):
            d = R_A + t * 4 + j * 2
            g.dsread("ds_read_b64_tr_b16 %s, %s offset:%d" % (vr(d, 2), vr(V_A + t), (s % NSLOT) * 8192 + j * 1024),
                     "A%d_%d" % (s, t), dst=rng(d, 2), addr=[V_A + t])

    def issue_w(c):
        if os.environ.get("NOW") and c > 1:
            return
        g.s("s_mov_b32 %s, %d" % (sr(S_WOFF), c * 262144))
        g.s("s_add_u32 m0, %s, %d" % (sr(S_M0W), (c % NSLOT) * 8192), m0=True)
        g.vload("buffer_load_dwordx4 %s, %s, %s offen lds" % (vr(V_W), sr(SRD_W, 4), sr(S_WOFF)),
                "W%d" % c, addr=[V_W], lds=True)

    def issue_b(s):
        if os.environ.get("NOX") and s > 3:
            return
        for u in range(3):
            g.s("s_mov_b32 %s, %d" % (sr(S_TMP), u * 16384))
            d = bstage(s, u)
            g.vload("buffer_load_dwordx4 %s, %s, %s, %s offen offset:%d" % (vr(d, 4), vr(V_X), sr(SRD_X, 4), sr(S_TMP), s * 64),
                    "B%d" % s, dst=rng(d, 4), addr=[V_X])

    def perm_b(s, lo=0, hi=12):
        if os.environ.get("NOPERM") and s > 1:
            return
        if lo == 0:
            g.wait_vm("B%d" % s)
        for i in range(lo, hi):
            u, r = i // 4, i % 4
            d = bfrag(s, u) + r
            a = bstage(s, u) + r
            g.dsread("ds_bpermute_b32 %s, %s, %s" % (vr(d), vr(V_BP), vr(a)), "F%d" % s, dst=[d], addr=[V_BP, a])

    def issue_k(i):
        g.s("s_mov_b32 %s, %d" % (sr(S_TMP), i * 4096))
        for m in range(4):
            d = R_K + (i * 4 + m) * 4
            g.vload("buffer_load_dwordx4 %s, %s, %s, %s offen offset:%d%s" % (vr(d, 4), vr(V_K), sr(SRD_K, 4), sr(S_TMP), m * 1024, NT),
                    "K%d" % i, dst=rng(d, 4), addr=[V_K])

    def issue_v(i):
        g.s("s_mov_b32 %s, %d" % (sr(S_TMP), i * 1024))
        g.s("s_add_u32 m0, %s, %d" % (sr(S_M0V), i * 1024), m0=True)
        g.vload("buffer_load_dwordx4 %s, %s, %s offen%s lds" % (vr(V_VD0 + (i & 1)), sr(SRD_V, 4), sr(S_TMP), NT),
                "V", addr=[V_VD0 + (i & 1)], lds=True)

    def issue_kv():
        if os.environ.get("NOKV"):
            return
        for i in range(3):
            issue_k(i)
        for i in range(12):
            issue_v(i)

    stamp(g, 0, V_T)
    if kv_first:
        if TWAIT:
            g.wait_vm("TCH")
        issue_kv()
    for c in range(NSLOT - 1):
        issue_w(c)
        if c < NB:
            issue_b(c)
    nsteps = 16
    g.wait_vm("W0")
    g.s("s_mov_b64 exec, %s" % sr(S_CL, 2))
    g.vload("buffer_atomic_or %s, off, %s, %s sc0" % (vr(V_CLAIM), sr(SRD_DBG, 4), sr(S_GOFF)), "CL", dst=[V_CLAIM])
    vop(g, "v_mov_b32 %s, %s" % (vr(V_T + 2), sr(S_PADD)), V_T + 2)
    g.vstore("buffer_atomic_add %s, off, %s, %s offset:64" % (vr(V_T + 2), sr(SRD_DBG, 4), sr(S_GOFF)), "CL", data=[V_T + 2])
    g.s("s_mov_b64 exec, -1")
    g.barrier()
    for t in range(8):
        tr_reads(0, t)
    perm_b(0)
    for s in range(nsteps):
        g.comment("---- gemm step %d" % s)
        if s + 1 < nsteps:
            g.wait_vm("W%d" % (s + 1))
            g.barrier()
        if s % 4 == 0:
            stamp(g, 0, V_T)
        if s + NSLOT - 1 < nsteps:
            issue_w(s + NSLOT - 1)
        pcut = [0, 2, 4, 6, 8, 9, 10, 11, 12]
        for t in range(8):
            g.wait_lg("A%d_%d" % (s, t))
            if t == 0:
                g.wait_lg("F%d" % s)
            for u in range(3):
                g.mfma(acc(t, u), R_A + t * 4, bfrag(s, u), None if s == 0 else acc(t, u))
            if s + 1 < nsteps:
                tr_reads(s + 1, t)
                perm_b(s + 1, pcut[t], pcut[t + 1])
        if s + NB < nsteps:
            g.wait_lg("F%d" % (s + 1))
            issue_b(s + NB)
        if s == nsteps - NB - 1 and not kv_first:
            issue_kv()

    post_gemm_addrs(g)
    if WOPF == 2:
        g.vload("buffer_load_dword %s, %s, %s, 0 offen" % (vr(V_T + 3), vr(V_WO), sr(SRD_WO, 4)), "TCH", dst=[V_T + 3], addr=[V_WO])
    if WOPF == 3:
        vop(g, "v_and_b32 %s, 0xfffff, %s" % (vr(V_WO), vr(V_WO)), V_WO, [V_WO])
        for i in range(4):
            g.s("s_mov_b32 %s, %d" % (sr(S_TMP), i << 20))
            g.vload("buffer_load_dword %s, %s, %s, %s offen" % (vr(V_T + 3), vr(V_WO), sr(SRD_WO, 4), sr(S_TMP)), "TCH", dst=[V_T + 3], addr=[V_WO])
    stamp(g, 0, V_T)
    for p in range(4):
        for u in range(3):
            pack_pair(g, acc(2 * p, u), acc(2 * p + 1, u))
    KA = R_B + 24
    KW = R_B + 32
    for m in range(4):
        vop(g, "v_xor_b32 %s, %d, %s" % (vr(KW + m), m * 64, vr(V_KW)), KW + m, [V_KW])
    for c in range(8):
        vop(g, "v_xor_b32 %s, %d, %s" % (vr(KA + c), c * 32, vr(V_KR)), KA + c, [V_KR])

    def sacc(kt, u):
        i = kt * 3 + u
        if i < 12:
            return acc(1 + 2 * (i // 3), i % 3)
        return R_B + (i - 12) * 4

    def k_write(i, slot_off):
        g.wait_vm("K%d" % i)
        for m in range(4):
            d = R_K + (i * 4 + m) * 4
            g.dswrite("ds_write_b128 %s, %s offset:%d" % (vr(KW + m), vr(d, 4), slot_off + m * 1024), "KW", data=rng(d, 4), addr=[KW + m])

    def k_reads(n, slot_off):
        for p in range(4):
            for j in range(2):
                d = R_A + ((n & 1) * 4 + p) * 4 + 2 * j
                g.dsread("ds_read_b64 %s, %s offset:%d" % (vr(d, 2), vr(KA + 2 * p + j), slot_off), "KF%d_%d" % (n, p), dst=rng(d, 2), addr=[KA + 2 * p + j])

    def s_tile(n, kt):
        for p in range(4):
            g.wait_lg("KF%d_%d" % (n, p))
            for u in range(3):
                g.mfma(sacc(kt, u), R_A + ((n & 1) * 4 + p) * 4, acc(2 * p, u), None if p == 0 else sacc(kt, u))

    g.barrier()
    k_write(0, 0)
    k_write(1, 4096)
    g.wait_lg("KW")
    g.barrier()
    r1 = [0, 1, 3, 4]
    k_reads(0, 0)
    for n in range(4):
        if n + 1 < 4:
            k_reads(n + 1, (n + 1) * 4096)
        s_tile(n, r1[n])
    g.barrier()
    for m in range(4):
        vop(g, "v_subrev_u32 %s, %s, %s" % (vr(KW + m), sr(S_W4K), vr(KW + m)), KW + m, [KW + m])
    for c in range(8):
        vop(g, "v_subrev_u32 %s, %s, %s" % (vr(KA + c), sr(S_B8K), vr(KA + c)), KA + c, [KA + c])
    k_write(2, 0)
    g.wait_lg("KW")
    g.barrier()
    k_reads(4, 0)
    k_reads(5, 4096)
    s_tile(4, 2)
    s_tile(5, 5)
    stamp(g, 0, V_T)
    g.wait_vm("V")
    g.barrier()
    for t in range(8):
        vop(g, "v_add_u32 %s, %s, %s" % (vr(V_A + t), vr(V_A + t), vr(V_DELTA)), V_A + t, [V_A + t, V_DELTA])

    def v_reads(pp, t):
        for j in range(2):
            d = R_A + t * 4 + j * 2
            g.dsread("ds_read_b64_tr_b16 %s, %s offset:%d" % (vr(d, 2), vr(V_A + t), pp * 8192 + j * 4096),
                     "VT%d_%d" % (pp, t), dst=rng(d, 2), addr=[V_A + t])

    for t in range(8):
        v_reads(0, t)
    g.vload("buffer_load_dword %s, off, %s, %s offset:64 sc1" % (vr(V_MASK), sr(SRD_DBG, 4), sr(S_GOFF)), "MK", dst=[V_MASK])
    stamp(g, 0, V_T)

    def pfrag(pp, u):
        return R_K + (pp * 3 + u) * 4
    TMP = R_K + 36
    for u in range(3):
        a, b = TMP, TMP + 1
        for kt in range(6):
            r = sacc(kt, u)
            for rep in range(2):
                g.valu("v_cvt_pk_bf16_f32 %s, %s, %s" % (vr(a), vr(r), vr(r + 1)), dst=[a], src=[r, r + 1])
                g.valu("v_cvt_pk_bf16_f32 %s, %s, %s" % (vr(b), vr(r + 2), vr(r + 3)), dst=[b], src=[r + 2, r + 3])
                vop(g, "v_lshlrev_b32 %s, 16, %s" % (vr(r), vr(a)), r, [a])
                vop(g, "v_and_b32 %s, 0xffff0000, %s" % (vr(r + 1), vr(a)), r + 1, [a])
                vop(g, "v_lshlrev_b32 %s, 16, %s" % (vr(r + 2), vr(b)), r + 2, [b])
                vop(g, "v_and_b32 %s, 0xffff0000, %s" % (vr(r + 3), vr(b)), r + 3, [b])
                if rep == 0:
                    g.valu("v_pk_mul_f32 %s, %s, %s" % (vr(r, 2), vr(r, 2), sr(S_SC, 2)), dst=[r, r + 1], src=[r, r + 1])
                    g.valu("v_pk_mul_f32 %s, %s, %s" % (vr(r + 2, 2), vr(r + 2, 2), sr(S_SC, 2)), dst=[r + 2, r + 3], src=[r + 2, r + 3])
        vals = [sacc(kt, u) + r for kt in range(6) for r in range(4)]
        m = TMP + 2
        vop(g, "v_max3_f32 %s, %s, %s, %s" % (vr(m), vr(vals[0]), vr(vals[1]), vr(vals[2])), m, vals[0:3])
        i = 3
        while i < 24:
            if i + 1 < 24:
                vop(g, "v_max3_f32 %s, %s, %s, %s" % (vr(m), vr(m), vr(vals[i]), vr(vals[i + 1])), m, [m, vals[i], vals[i + 1]])
                i += 2
            else:
                vop(g, "v_max_f32 %s, %s, %s" % (vr(m), vr(m), vr(vals[i])), m, [m, vals[i]])
                i += 1
        xlane_reduce(g, m, TMP + 3, "v_max_f32")
        for v in vals:
            vop(g, "v_sub_f32 %s, %s, %s" % (vr(v), vr(v), vr(m)), v, [v, m])
        for k in range(0, 24, 2):
            v = vals[k]
            g.valu("v_pk_mul_f32 %s, %s, %s" % (vr(v, 2), vr(v, 2), sr(S_L2E, 2)), dst=[v, v + 1], src=[v, v + 1])
        for v in vals:
            g.valu("v_exp_f32 %s, %s" % (vr(v), vr(v)), dst=[v], src=[v], trans=True)
        sm = TMP + 4
        g.valu("v_pk_add_f32 %s, %s, %s" % (vr(sm, 2), vr(vals[0], 2), vr(vals[2], 2)), dst=[sm, sm + 1], src=vals[0:4])
        for k in range(4, 24, 2):
            g.valu("v_pk_add_f32 %s, %s, %s" % (vr(sm, 2), vr(sm, 2), vr(vals[k], 2)), dst=[sm, sm + 1], src=[sm, sm + 1, vals[k], vals[k] + 1])
        vop(g, "v_add_f32 %s, %s, %s" % (vr(sm), vr(sm), vr(sm + 1)), sm, [sm, sm + 1])
        xlane_reduce(g, sm, TMP + 3, "v_add_f32")
        g.valu("v_rcp_f32 %s, %s" % (vr(sm), vr(sm)), dst=[sm], src=[sm], trans=True)
        vop(g, "v_mov_b32 %s, %s" % (vr(sm + 1), vr(sm)), sm + 1, [sm])
        for k in range(0, 24, 2):
            v = vals[k]
            g.valu("v_pk_mul_f32 %s, %s, %s" % (vr(v, 2), vr(v, 2), vr(sm, 2)), dst=[v, v + 1], src=[v, v + 1, sm, sm + 1])
        for pp in range(3):
            d = pfrag(pp, u)
            lo, hi = sacc(2 * pp, u), sacc(2 * pp + 1, u)
            g.valu("v_cvt_pk_bf16_f32 %s, %s, %s" % (vr(d), vr(lo), vr(lo + 1)), dst=[d], src=[lo, lo + 1])
            g.valu("v_cvt_pk_bf16_f32 %s, %s, %s" % (vr(d + 1), vr(lo + 2), vr(lo + 3)), dst=[d + 1], src=[lo + 2, lo + 3])
            g.valu("v_cvt_pk_bf16_f32 %s, %s, %s" % (vr(d + 2), vr(hi), vr(hi + 1)), dst=[d + 2], src=[hi, hi + 1])
            g.valu("v_cvt_pk_bf16_f32 %s, %s, %s" % (vr(d + 3), vr(hi + 2), vr(hi + 3)), dst=[d + 3], src=[hi + 2, hi + 3])
    stamp(g, 0, V_T)
    for pp in range(3):
        for t in range(8):
            g.wait_lg("VT%d_%d" % (pp, t))
            for u in range(3):
                g.mfma(acc(t, u), R_A + t * 4, pfrag(pp, u), None if pp == 0 else acc(t, u))
            if pp < 2:
                v_reads(pp + 1, t)
    stamp(g, 0, V_T)
    if WOPF == 1:
        g.vload("buffer_load_dword %s, %s, %s, 0 offen" % (vr(V_T + 3), vr(V_WO), sr(SRD_WO, 4)), "TCH", dst=[V_T + 3], addr=[V_WO])
    for p in range(4):
        for u in range(3):
            pack_pair(g, acc(2 * p, u), acc(2 * p + 1, u))
    g.wait_vm("MK")
    g.valu("v_readfirstlane_b32 %s, %s" % (sr(S_PSEEN), vr(V_MASK)), src=[V_MASK], readlane=True, sdst=[S_PSEEN])
    lab = "st_wt_%d" % int(kv_first)
    if not REL:
        g.s("s_cmp_lg_u32 %s, %s" % (sr(S_PSEEN), sr(S_PEXP)))
        g.s("s_cbranch_scc1 %s" % lab)
    q0 = list(g.vmq)
    for fl in ("", " sc1"):
        if fl:
            if REL:
                break
            g.label(lab)
            g.vmq = list(q0)
        for p in range(4):
            for u in range(3):
                g.s("s_mov_b32 %s, %d" % (sr(S_TMP), u * 131072))
                d = acc(2 * p, u)
                g.vstore("buffer_store_dwordx4 %s, %s, %s, %s offen offset:%d%s" % (vr(d, 4), vr(V_O), sr(SRD_WS, 4), sr(S_TMP), p * 1024, fl),
                         "ST", data=rng(d, 4), addr=[V_O])
        g.s("s_branch attn_tail")


def gen_attn():
    g = Gen()
    g.s("s_cmp_ge_u32 s2, 256")
    g.s("s_cbranch_scc1 attn_end")
    vop(g, "v_lshrrev_b32 v7, 6, v0", 7, [0])
    vop(g, "v_and_b32 %s, 63, v0" % vr(V_LANE), V_LANE, [0])
    g.valu("v_readfirstlane_b32 %s, v7" % sr(S_WAVE), src=[7], readlane=True, sdst=[S_WAVE])
    g.s("s_mov_b32 %s, s2" % sr(S_ME))
    g.s("s_mov_b32 %s, 0" % sr(S_STOLEN))
    g.s("s_mov_b32 %s, 0" % sr(S_PSEEN))
    g.s("s_load_dwordx4 s[80:83], s[0:1], 80")
    g.s("s_getreg_b32 s4, hwreg(HW_REG_XCC_ID, 0, 4)")
    g.s("s_mul_i32 s5, s4, s4")
    g.s("s_lshl_b32 s5, s5, 16")
    g.s("s_lshl_b32 s4, s4, 6")
    g.s("s_add_u32 s4, s4, s5")
    g.s("s_add_u32 %s, s4, 1" % sr(S_PADD))
    g.s("s_lshl_b32 %s, %s, 5" % (sr(S_PEXP), sr(S_PADD)))
    g.nop(4)
    g.s("s_cmp_eq_u32 s3, 0")
    g.s("s_cselect_b32 %s, 1, 0" % sr(S_W0))
    g.s("s_mov_b32 %s, 0" % sr(S_W0 + 1))
    g.s("s_mov_b32 %s, %s" % (sr(S_CL), sr(S_W0)))
    g.s("s_mov_b32 %s, 0" % sr(S_CL + 1))
    if FORCE_STEAL:
        g.s("s_bfe_u32 s4, s2, 0x30005")
        g.s("s_cmp_eq_u32 s4, %d" % (FORCE_STEAL - 1))
        g.s("s_cselect_b32 s90, 1, 0")
    g.label("job_start")
    lane_setup(g)
    g.s("s_bfe_u32 s6, s2, 0x10002")
    g.s("s_and_b32 s5, s2, 3")
    g.s("s_lshr_b32 s43, s2, 3")
    g.s("s_and_b32 s40, s43, 1")
    g.s("s_mul_i32 s16, s6, 40")
    g.s("s_add_u32 s18, s0, s16")
    g.s("s_addc_u32 s19, s1, 0")
    g.s("s_load_dwordx8 s[8:15], s[18:19], 0")
    g.s("s_load_dwordx2 s[16:17], s[0:1], 96")
    g.s("s_load_dwordx2 s[68:69], s[18:19], 32")
    g.s("s_lshr_b32 s41, s3, 1")
    g.s("s_and_b32 s42, s3, 1")
    g.s("s_lshl_b32 s44, s5, 2")
    g.s("s_add_u32 s44, s44, s41")
    g.s("s_lshl_b32 s45, s44, 5")
    g.s("s_add_u32 s45, s45, s43")
    g.s("s_mul_i32 s45, s45, 24576")
    g.s("s_mov_b32 %s, 0x3db504f3" % sr(S_SC))
    g.s("s_mov_b32 %s, 0x3db504f3" % sr(S_SC + 1))
    g.s("s_mov_b32 %s, 0x3fb8aa3b" % sr(S_L2E))
    g.s("s_mov_b32 %s, 0x3fb8aa3b" % sr(S_L2E + 1))
    g.s("s_mul_i32 s55, s44, 98304")
    g.s("s_mul_i32 s56, s42, 49152")
    g.s("s_add_u32 s55, s55, s56")
    vop(g, "v_lshrrev_b32 v8, 2, v1", 8, [1])
    vop(g, "v_lshlrev_b32 v8, 10, v8", 8, [8])
    vop(g, "v_lshl_add_u32 v8, v5, 4, v8", 8, [5, 8])
    vop(g, "v_add_u32 %s, s55, v8" % vr(V_X), V_X, [8])
    g.s("s_mul_i32 s55, s42, 12288")
    g.s("s_add_u32 s55, s55, s45")
    vop(g, "v_lshlrev_b32 v8, 4, v1", 8, [1])
    vop(g, "v_add_u32 %s, s55, v8" % vr(V_K), V_K, [8])
    g.s("s_lshl_b32 %s, s3, 12" % sr(S_W4K))
    g.s("s_lshl_b32 %s, s41, 13" % sr(S_B8K))
    g.s("s_mul_i32 s55, s42, 12288")
    g.s("s_add_u32 s55, s55, s45")
    for par in range(2):
        vop(g, "v_add_u32 v8, %d, v3" % (4 * par), 8, [3])
        vop(g, "v_lshlrev_b32 v8, 1, v8", 8, [8])
        vop(g, "v_xor_b32 v8, v8, v2", 8, [8, 2])
        vop(g, "v_lshlrev_b32 v8, 4, v8", 8, [8])
        vop(g, "v_lshl_add_u32 v8, v3, 8, v8", 8, [3, 8])
        vop(g, "v_add_u32 %s, s55, v8" % vr(V_VD0 + par), V_VD0 + par, [8])
    g.s("s_and_b32 s55, s41, 1")
    g.s("s_lshl_b32 s55, s55, 2")
    vop(g, "v_or_b32 v8, s55, v3", 8, [3])
    vop(g, "v_lshlrev_b32 v8, 1, v8", 8, [8])
    vop(g, "v_xor_b32 v8, v8, v2", 8, [8, 2])
    vop(g, "v_lshlrev_b32 v8, 4, v8", 8, [8])
    vop(g, "v_lshl_add_u32 v8, v3, 13, v8", 8, [3, 8])
    g.s("s_lshl_b32 s55, s3, 15")
    g.s("s_lshl_b32 s56, s43, 8")
    g.s("s_add_u32 s55, s55, s56")
    vop(g, "v_add_u32 %s, s55, v8" % vr(V_W), V_W, [8])
    g.s("s_lshl_b32 %s, s3, 10" % sr(S_M0W))
    vop(g, "v_lshlrev_b32 v8, 3, v3", 8, [3])
    vop(g, "v_add_u32 v8, v8, v4", 8, [8, 4])
    vop(g, "v_lshlrev_b32 v8, 8, v8", 8, [8])
    vop(g, "v_lshl_add_u32 v8, v5, 3, v8", 8, [8, 5])
    for t in range(8):
        vop(g, "v_xor_b32 v9, %d, v6" % t, 9, [6])
        vop(g, "v_lshl_add_u32 %s, v9, 5, v8" % vr(V_A + t), V_A + t, [9, 8])
    g.s("s_mul_i32 s55, s41, 24576")
    g.s("s_add_u32 s55, s55, %d" % A_V_LDS)
    g.s("s_mul_i32 s56, s42, 12288")
    g.s("s_add_u32 %s, s55, s56" % sr(S_M0V))
    g.s("s_lshl_b32 s55, s6, 2")
    g.s("s_add_u32 s55, s55, s5")
    g.s("s_lshl_b32 %s, s55, 2" % sr(S_GOFF))
    g.s("s_add_u32 %s, %s, 128" % (sr(S_GOFF + 1), sr(S_GOFF)))
    g.s("s_lshl_b32 s55, 1, s43")
    vop(g, "v_mov_b32 %s, s55" % vr(V_CLAIM), V_CLAIM)
    vop(g, "v_lshl_add_u32 v8, v2, 2, v3", 8, [2, 3])
    vop(g, "v_lshlrev_b32 %s, 2, v8" % vr(V_BP), V_BP, [8])
    g.waitcnt(lg=0)
    make_srd(g, SRD_X, 8, 1572864)
    make_srd(g, SRD_K, 10, 12582912)
    make_srd(g, SRD_V, 12, 12582912)
    make_srd(g, SRD_W, 14, 4194304)
    make_srd(g, SRD_WS, 16, WS_BYTES)
    make_srd(g, SRD_WO, 68, 4194304)
    make_srd(g, SRD_OUT, 80, 16 * 96 * 1024 * 2)
    make_srd(g, SRD_DBG, 82, 256)
    if FORCE_STEAL:
        g.s("s_cmp_eq_u32 s90, 1")
        g.s("s_mov_b32 s90, 0")
        g.s("s_cbranch_scc1 steal")
    g.s("s_lshl_b32 s55, %s, 6" % sr(S_GOFF))
    g.s("s_lshl_b32 s56, s43, 2")
    g.s("s_add_u32 s55, s55, s56")
    g.s("s_add_u32 %s, s55, %d" % (sr(S_FOFF), FLG))
    vop(g, "v_mov_b32 %s, 0" % vr(V_T + 2), V_T + 2)
    g.s("s_mov_b64 exec, %s" % sr(S_CL, 2))
    g.vstore("buffer_store_dword %s, off, %s, %s" % (vr(V_T + 2), sr(SRD_WS, 4), sr(S_FOFF)), "FC", data=[V_T + 2])
    g.s("s_mov_b64 exec, -1")
    if TOUCH:
        g.s("s_lshl_b32 s55, s3, 18")
        g.s("s_add_u32 s55, s55, %d" % (256 * 8192))
        g.s("s_lshl_b32 s56, s43, 8")
        g.s("s_add_u32 s55, s55, s56")
        vop(g, "v_lshrrev_b32 v8, 2, v1", 8, [1])
        vop(g, "v_lshlrev_b32 v8, 13, v8", 8, [8])
        vop(g, "v_lshl_add_u32 v8, v5, 6, v8", 8, [5, 8])
        vop(g, "v_add_u32 v8, s55, v8", 8, [8])
        for i in range(2):
            g.s("s_mov_b32 %s, %d" % (sr(S_TMP), i * 16 * 8192))
            g.vload("buffer_load_dword %s, v8, %s, %s offen" % (vr(V_T + 3), sr(SRD_W, 4), sr(S_TMP)), "TCH", dst=[V_T + 3], addr=[8])
        g.s("s_mul_i32 s55, s5, 393216")
        g.s("s_lshl_b32 s56, s43, 3")
        g.s("s_add_u32 s56, s56, s3")
        g.s("s_mul_i32 s56, s56, 1536")
        g.s("s_add_u32 s55, s55, s56")
        vop(g, "v_lshlrev_b32 v9, 6, v1", 9, [1])
        vop(g, "v_add_u32 v9, s55, v9", 9, [9])
        g.vload("buffer_load_dword %s, v9, %s, 0 offen" % (vr(V_T + 3), sr(SRD_X, 4)), "TCH", dst=[V_T + 3], addr=[9])
    g.s("s_cmp_eq_u32 s40, 1")
    g.s("s_cbranch_scc1 attn_kvfirst")
    t0 = g.text()
    gb = Gen()
    gb.vmq = list(g.vmq)
    _stamp_n[0] = 0
    attn_body(gb, False)
    ga = Gen()
    ga.vmq = list(g.vmq)
    _stamp_n[0] = 0
    ga.label("attn_kvfirst")
    attn_body(ga, True)
    return t0 + gb.text() + ga.text()


O_ACC = 0
O_A = 96
O_B = 112
O_VA = 184
O_VX = 188
O_VW = 189
O_VO = 190
O_VL = 191
O_VZ = 240
O_VT = 192


def oproj_setup(g):
    lane_setup(g)
    g.s("s_bfe_u32 s6, %s, 0x10002" % sr(S_ME))
    g.s("s_bfe_u32 s7, %s, 0x20003" % sr(S_ME))
    g.s("s_and_b32 s40, %s, 3" % sr(S_ME))
    g.s("s_lshr_b32 s41, %s, 5" % sr(S_ME))
    g.s("s_mul_i32 s55, s40, 24")
    g.s("s_mul_i32 s56, s7, 6")
    g.s("s_add_u32 s42, s55, s56")
    g.s("s_lshl_b32 s55, s42, 7")
    g.s("s_lshl_b32 s56, s3, 4")
    g.s("s_add_u32 s55, s55, s56")
    g.s("s_lshl_b32 s55, s55, 10")
    g.s("s_mul_i32 s56, s6, %d" % O_BLOCK_BYTES)
    g.s("s_add_u32 s55, s55, s56")
    vop(g, "v_lshlrev_b32 %s, 4, v1" % vr(O_VL), O_VL, [1])
    vop(g, "v_add_u32 %s, s55, %s" % (vr(O_VX), vr(O_VL)), O_VX, [O_VL])
    vop(g, "v_and_b32 v8, 7, v1", 8, [1])
    vop(g, "v_lshlrev_b32 v9, 1, v3", 9, [3])
    vop(g, "v_xor_b32 v8, v8, v9", 8, [8, 9])
    vop(g, "v_lshlrev_b32 v8, 4, v8", 8, [8])
    vop(g, "v_lshrrev_b32 v9, 3, v1", 9, [1])
    vop(g, "v_lshl_add_u32 v8, v9, 10, v8", 8, [8, 9])
    g.s("s_lshl_b32 s55, s41, 7")
    g.s("s_lshl_b32 s56, s3, 19")
    g.s("s_add_u32 s55, s55, s56")
    vop(g, "v_add_u32 %s, s55, v8" % vr(O_VW), O_VW, [8])
    g.s("s_lshl_b32 %s, s3, 14" % sr(S_M0W))
    g.s("s_add_u32 %s, %s, %d" % (sr(S_M0W), sr(S_M0W), O_LDS))
    vop(g, "v_lshlrev_b32 v8, 2, v3", 8, [3])
    vop(g, "v_add_u32 v8, v8, v4", 8, [8, 4])
    vop(g, "v_bfe_u32 v9, v8, 1, 2", 9, [8])
    vop(g, "v_lshlrev_b32 v8, 7, v8", 8, [8])
    vop(g, "v_lshl_add_u32 v8, v5, 3, v8", 8, [8, 5])
    vop(g, "v_add_u32 v8, %s, v8" % sr(S_M0W), 8, [8])
    for t in range(4):
        vop(g, "v_xor_b32 v10, %d, v9" % t, 10, [9])
        vop(g, "v_lshl_add_u32 %s, v10, 5, v8" % vr(O_VA + t), O_VA + t, [10, 8])
    g.s("s_lshl_b32 s55, s42, 4")
    g.s("s_lshl_b32 s55, s55, 10")
    g.s("s_lshl_b32 s56, s6, 9")
    g.s("s_add_u32 s55, s55, s56")
    g.s("s_lshl_b32 s56, s41, 6")
    g.s("s_add_u32 s55, s55, s56")
    g.s("s_lshl_b32 s55, s55, 1")
    vop(g, "v_lshlrev_b32 v8, 11, v2", 8, [2])
    vop(g, "v_lshl_add_u32 v8, v3, 3, v8", 8, [3, 8])
    vop(g, "v_add_u32 %s, s55, v8" % vr(O_VO), O_VO, [8])
    vop(g, "v_mov_b32 %s, 0" % vr(O_VZ), O_VZ)


def gen_steal():
    g = Gen()
    A, B = O_VT, O_VT + 1
    g.label("steal")
    g.waitcnt(vm=0, lg=0)
    g.barrier()
    g.s("s_cmp_lg_u32 s3, 0")
    g.s("s_cbranch_scc1 steal_join")
    g.label("steal_retry")
    g.vload("buffer_load_dword %s, off, %s, %s sc1" % (vr(A), sr(SRD_DBG, 4), sr(S_GOFF)), "X", dst=[A])
    g.waitcnt(vm=0)
    g.valu("v_readfirstlane_b32 s55, %s" % vr(A), src=[A], readlane=True, sdst=[55])
    g.s("s_mov_b32 s56, -1")
    g.s("s_cmp_eq_u32 s55, -1")
    g.s("s_cbranch_scc1 steal_pub")
    g.s("s_ff0_i32_b32 s56, s55")
    g.s("s_lshl_b32 s57, 1, s56")
    vop(g, "v_mov_b32 %s, s57" % vr(A), A)
    g.s("s_mov_b64 exec, 1")
    g.vload("buffer_atomic_or %s, off, %s, %s sc0" % (vr(A), sr(SRD_DBG, 4), sr(S_GOFF)), "X", dst=[A])
    g.s("s_mov_b64 exec, -1")
    g.waitcnt(vm=0)
    g.valu("v_readfirstlane_b32 s55, %s" % vr(A), src=[A], readlane=True, sdst=[55])
    g.s("s_and_b32 s55, s55, s57")
    g.s("s_cmp_lg_u32 s55, 0")
    g.s("s_cbranch_scc1 steal_retry")
    g.label("steal_pub")
    vop(g, "v_mov_b32 %s, s56" % vr(A), A)
    vop(g, "v_mov_b32 %s, 0" % vr(B), B)
    g.dswrite("ds_write_b32 %s, %s" % (vr(B), vr(A)), "X", data=[A], addr=[B])
    g.waitcnt(lg=0)
    g.label("steal_join")
    g.barrier()
    vop(g, "v_mov_b32 %s, 0" % vr(B), B)
    g.dsread("ds_read_b32 %s, %s" % (vr(A), vr(B)), "X", dst=[A], addr=[B])
    g.waitcnt(lg=0)
    g.valu("v_readfirstlane_b32 s56, %s" % vr(A), src=[A], readlane=True, sdst=[56])
    g.barrier()
    g.s("s_cmp_eq_u32 s56, -1")
    g.s("s_cbranch_scc1 steal_none")
    g.s("s_lshl_b32 s56, s56, 3")
    g.s("s_and_b32 s57, %s, 7" % sr(S_ME))
    g.s("s_or_b32 s2, s56, s57")
    g.s("s_mov_b32 %s, 1" % sr(S_STOLEN))
    g.s("s_mov_b32 %s, 0" % sr(S_CL))
    g.s("s_branch job_start")
    g.label("steal_none")
    oproj_setup(g)
    g.s("s_branch oproj_pf")
    return g.text()


def gen_oproj():
    g = Gen()

    def oacc(t, u):
        return O_ACC + (t * 6 + u) * 4

    def bfr(s, u):
        return O_B + ((s % 3) * 6 + u) * 4

    g.label("attn_tail")
    g.nop(2)
    oproj_setup(g)
    g.s("s_lshl_b32 s57, 1, s43")
    vop(g, "v_mov_b32 %s, s57" % vr(O_VT), O_VT)
    vop(g, "v_mov_b32 %s, 1" % vr(O_VT + 3), O_VT + 3)
    g.waitcnt(vm=0)
    stamp(g, 0, V_T)
    g.s("s_and_b32 s55, %s, 63" % sr(S_PSEEN))
    g.s("s_cmp_eq_u32 s55, 32")
    g.s("s_cselect_b32 s55, -1, 0")
    vop(g, "v_mov_b32 %s, s55" % vr(V_MASK), V_MASK)
    g.s("s_mov_b64 exec, %s" % sr(S_W0, 2))
    g.dswrite("ds_write_b32 %s, %s" % (vr(O_VZ), vr(V_MASK)), "X", data=[V_MASK], addr=[O_VZ])
    g.s("s_mov_b64 exec, -1")
    g.valu("v_readfirstlane_b32 s55, %s" % vr(V_CLAIM), src=[V_CLAIM], readlane=True, sdst=[55])
    g.s("s_and_b32 s55, s55, s57")
    g.s("s_cmp_eq_u32 s55, 0")
    g.s("s_cselect_b32 s55, 1, %s" % sr(S_STOLEN))
    g.s("s_and_b32 s58, s55, %s" % sr(S_W0))
    g.s("s_mov_b32 s59, 0")
    g.waitcnt(lg=0)
    g.lgq = []
    g.barrier()
    if REL:
        g.s("s_cmp_lg_u32 s3, 0")
        g.s("s_cbranch_scc1 rel_skip")
        g.s("buffer_wbl2 sc1")
        g.waitcnt(vm=0)
        g.label("rel_skip")
    g.s("s_mov_b64 exec, %s" % sr(S_CL, 2))
    g.vstore("buffer_store_dword %s, off, %s, %s" % (vr(O_VT + 3), sr(SRD_WS, 4), sr(S_FOFF)), "FS", data=[O_VT + 3])
    g.s("s_mov_b64 exec, s[58:59]")
    g.vstore("buffer_atomic_add %s, off, %s, %s" % (vr(O_VT), sr(SRD_DBG, 4), sr(S_GOFF + 1)), "DN", data=[O_VT])
    g.s("s_mov_b64 exec, -1")
    g.dsread("ds_read_b32 %s, %s" % (vr(O_VT + 1), vr(O_VZ)), "X", dst=[O_VT + 1], addr=[O_VZ])
    g.waitcnt(lg=0)
    g.lgq = []
    g.valu("v_readfirstlane_b32 s55, %s" % vr(O_VT + 1), src=[O_VT + 1], readlane=True, sdst=[55])
    g.s("s_cmp_lg_u32 s55, -1")
    g.s("s_cbranch_scc1 steal")
    g.label("oproj_pf")

    def issue_w(c):
        for i in range(4):
            g.s("s_mov_b32 %s, %d" % (sr(S_WOFF), c * 32768 + i * 8192))
            g.s("s_add_u32 m0, %s, %d" % (sr(S_M0W), (c % 4) * 4096 + i * 1024), m0=True)
            g.vload("buffer_load_dwordx4 %s, %s, %s offen lds" % (vr(O_VW), sr(SRD_WO, 4), sr(S_WOFF)),
                    "W%d" % c, addr=[O_VW], lds=True)

    def issue_b(s):
        for u in range(6):
            g.s("s_mov_b32 %s, %d" % (sr(S_TMP), u * 131072 + (s >> 2) * 4096))
            d = bfr(s, u)
            g.vload("buffer_load_dwordx4 %s, %s, %s, %s offen offset:%d sc1" % (vr(d, 4), vr(O_VX), sr(SRD_WS, 4), sr(S_TMP), (s & 3) * 1024),
                    "B%d" % s, dst=rng(d, 4), addr=[O_VX])

    def tr_reads(s, t):
        for j in range(2):
            d = O_A + t * 4 + j * 2
            g.dsread("ds_read_b64_tr_b16 %s, %s offset:%d" % (vr(d, 2), vr(O_VA + t), (s % 4) * 4096 + j * 2048),
                     "A%d_%d" % (s, t), dst=rng(d, 2), addr=[O_VA + t])

    LATEW = int(os.environ.get("LATEW", "0"))
    if not LATEW:
        for c in range(3):
            issue_w(c)
    g.s("s_cmp_lg_u32 %s, %s" % (sr(S_PSEEN), sr(S_PEXP)))
    g.s("s_cbranch_scc1 oproj_slowpoll")
    g.s("s_lshl_b32 s55, %s, 6" % sr(S_GOFF))
    g.s("s_lshl_b32 s56, s3, 4")
    g.s("s_add_u32 s55, s55, s56")
    g.s("s_add_u32 %s, s55, %d" % (sr(S_FPOLL), FLG))
    P = O_VT + 4
    g.label("oproj_poll")
    g.vload("buffer_load_dwordx4 %s, off, %s, %s sc1" % (vr(P, 4), sr(SRD_WS, 4), sr(S_FPOLL)), "P", dst=rng(P, 4))
    g.waitcnt(vm=0)
    g.vmq = []
    vop(g, "v_and_b32 %s, %s, %s" % (vr(P), vr(P), vr(P + 1)), P, [P, P + 1])
    vop(g, "v_and_b32 %s, %s, %s" % (vr(P + 2), vr(P + 2), vr(P + 3)), P + 2, [P + 2, P + 3])
    vop(g, "v_and_b32 %s, %s, %s" % (vr(P), vr(P), vr(P + 2)), P, [P, P + 2])
    g.valu("v_readfirstlane_b32 s55, %s" % vr(P), src=[P], readlane=True, sdst=[55])
    g.s("s_cmp_eq_u32 s55, 1")
    g.s("s_cbranch_scc1 oproj_go")
    g.s("s_sleep %d" % SLEEP)
    g.s("s_branch oproj_poll")
    g.label("oproj_slowpoll")
    g.s("s_lshl_b32 s56, s3, 2")
    g.vload("buffer_load_dword %s, off, %s, %s sc1" % (vr(O_VT + 2), sr(SRD_DBG, 4), sr(S_GOFF + 1)), "P", dst=[O_VT + 2])
    g.waitcnt(vm=0)
    g.vmq = []
    g.valu("v_readfirstlane_b32 s55, %s" % vr(O_VT + 2), src=[O_VT + 2], readlane=True, sdst=[55])
    g.s("s_lshr_b32 s55, s55, s56")
    g.s("s_and_b32 s55, s55, 15")
    g.s("s_cmp_eq_u32 s55, 15")
    g.s("s_cbranch_scc1 oproj_go")
    g.s("s_sleep 127")
    g.s("s_sleep 127")
    g.s("s_branch oproj_slowpoll")
    g.label("oproj_go")
    stamp(g, 0, V_T)
    for c in range(3):
        if LATEW:
            issue_w(c)
        issue_b(c)
    g.wait_vm("W0")
    for t in range(4):
        tr_reads(0, t)
    nsteps = 16
    for s in range(nsteps):
        g.comment("---- step %d" % s)
        if s % 4 == 0:
            stamp(g, 0, V_T)
        if s + 3 < nsteps:
            issue_w(s + 3)
        for t in range(4):
            g.wait_lg("A%d_%d" % (s, t))
            if t == 0:
                g.wait_vm("B%d" % s)
            for u in range(6):
                g.mfma(oacc(t, u), O_A + t * 4, bfr(s, u), None if s == 0 else oacc(t, u))
            if s + 1 < nsteps:
                if t == 0:
                    g.wait_vm("W%d" % (s + 1))
                tr_reads(s + 1, t)
        if s + 3 < nsteps:
            issue_b(s + 3)
    stamp(g, 0, V_T)
    g.s("s_lshl_b32 s55, s3, 13")
    g.s("s_lshl_b32 s56, s3, 10")
    g.s("s_add_u32 s55, s55, %d" % O_LDS)
    g.s("s_add_u32 s56, s56, %d" % O_LDS)
    vop(g, "v_add_u32 %s, s55, %s" % (vr(O_VA), vr(O_VL)), O_VA, [O_VL])
    vop(g, "v_add_u32 %s, s56, %s" % (vr(O_VA + 1), vr(O_VL)), O_VA + 1, [O_VL])
    vop(g, "v_add_u32 %s, 0x10000, %s" % (vr(O_VA + 2), vr(O_VA)), O_VA + 2, [O_VA])
    vop(g, "v_add_u32 %s, 0x10000, %s" % (vr(O_VA + 3), vr(O_VA + 1)), O_VA + 3, [O_VA + 1])
    g.barrier()
    for ph in range(3):
        wa = O_VA + 2 * (ph & 1)
        ra = wa + 1
        for i in range(8):
            d = O_ACC + (8 * ph + i) * 4
            g.dswrite("ds_write_b128 %s, %s offset:%d" % (vr(wa), vr(d, 4), i * 1024), "RW", data=rng(d, 4), addr=[wa])
        g.wait_lg("RW")
        g.barrier()
        T = O_VT + 4
        for w2 in range(8):
            d = T + w2 * 4
            g.dsread("ds_read_b128 %s, %s offset:%d" % (vr(d, 4), vr(ra), w2 * 8192), "RR%d" % w2, dst=rng(d, 4), addr=[ra])
        for w2 in range(1, 8):
            g.wait_lg("RR%d" % w2)
            for h in range(2):
                d = T + h * 2
                s_ = T + w2 * 4 + h * 2
                g.valu("v_pk_add_f32 %s, %s, %s" % (vr(d, 2), vr(d, 2), vr(s_, 2)), dst=[d, d + 1], src=[d, d + 1, s_, s_ + 1])
        o = O_VT + 40 + ph * 2
        g.valu("v_cvt_pk_bf16_f32 %s, %s, %s" % (vr(o), vr(T), vr(T + 1)), dst=[o], src=[T, T + 1])
        g.valu("v_cvt_pk_bf16_f32 %s, %s, %s" % (vr(o + 1), vr(T + 2), vr(T + 3)), dst=[o + 1], src=[T + 2, T + 3])
        g.s("s_add_u32 s55, s3, %d" % (8 * ph))
        g.s("s_mul_i32 s56, s55, 43")
        g.s("s_lshr_b32 s56, s56, 8")
        g.s("s_mul_i32 s57, s56, 6")
        g.s("s_sub_u32 s57, s55, s57")
        g.s("s_lshl_b32 s57, s57, 15")
        g.s("s_lshl_b32 s56, s56, 5")
        g.s("s_add_u32 s57, s57, s56")
        g.vstore("buffer_store_dwordx2 %s, %s, %s, s57 offen" % (vr(o, 2), vr(O_VO), sr(SRD_OUT, 4)), "ST", data=rng(o, 2), addr=[O_VO])
    if STAMP:
        g.wait_vm("ST")
        stamp(g, 0, V_T)
    g.label("attn_end")
    g.s("s_endpgm")
    return g.text()


HEADER = """; Kernarg layout for this problem (104 bytes, ptrs only, base s[0:1]):
; @launch kernel=attn_kernel grid=(256,1,1) block=(512,1,1) lds=163840
.amdgcn_target "amdgcn-amd-amdhsa--gfx950"
.text
"""


def kernel_text(name, body):
    return (".globl %s\n.p2align 8\n.type %s,@function\n%s:\n" % (name, name, name)) + body


def kd(name, vgpr, sgpr):
    acc_off = (vgpr + 3) // 4 * 4
    return """.p2align 6
.amdhsa_kernel %s
  .amdhsa_next_free_vgpr %d
  .amdhsa_next_free_sgpr %d
  .amdhsa_accum_offset %d
  .amdhsa_group_segment_fixed_size 0
  .amdhsa_kernarg_size 104
  .amdhsa_user_sgpr_count 2
  .amdhsa_user_sgpr_kernarg_segment_ptr 1
  .amdhsa_system_sgpr_workgroup_id_x 1
.end_amdhsa_kernel
""" % (name, vgpr, sgpr, acc_off)


def main():
    out = HEADER
    out += kernel_text("attn_kernel", gen_attn() + gen_steal() + gen_oproj())
    out += '.section .rodata,"a"\n'
    out += kd("attn_kernel", 256, 96)
    path = sys.argv[1] if len(sys.argv) > 1 else "cdna_kernels/%s.s" % NAME
    open(path, "w").write(out)
    print("wrote", path, len(out), "bytes")


if __name__ == "__main__":
    main()
```

```python
import sys, os
sys.path.insert(0, os.path.dirname(os.path.abspath(__file__)))
from asmgen import Gen, vr, sr

NAME = "concat_heads__gqa_block_cached__gqa_block_cached__near_ridge"
O_BLOCK_BYTES = 1536 * 4096 * 2
WS_BYTES = 268435456

STAMP = int(os.environ.get("STAMP", "0"))
STAMP_BASE = 200 * 1024 * 1024
NT = os.environ.get("NT", " nt")
TOUCH = int(os.environ.get("TOUCH", "1"))
TWAIT = int(os.environ.get("TWAIT", "1"))
WOPF = int(os.environ.get("WOPF", "2"))
OTOUCH = int(os.environ.get("OTOUCH", "0"))
_stamp_n = [0]

S_WAVE = 3
SRD_X = 20
SRD_K = 24
SRD_V = 28
SRD_W = 32
SRD_WS = 36
SRD_OUT = 76
SRD_WO = 64
SRD_DBG = 72
S_ME = 70
S_STOLEN = 71
S_GOFF = 84
S_W0 = 86
S_CL = 88
S_PADD = 91
S_PEXP = 92
S_PSEEN = 93
S_FOFF = 94
S_FPOLL = 95
FLG = 64 * 1024 * 1024
REL = int(os.environ.get("REL", "0"))
KVS = [int(x) for x in os.environ.get("KVS", "").split(",") if x]
VLATE = int(os.environ.get("VLATE", "0"))
KV2 = [[int(c, 16) for c in x] for x in os.environ.get("KV2", "").split(",") if x]
O_LDS = 32768
SLEEP = int(os.environ.get("SLEEP", "8"))
FORCE_STEAL = int(os.environ.get("FORCE_STEAL", "0"))
S_M0W = 46
S_TMP = 47
S_WOFF = 48
S_M0V = 49
S_SC = 50
S_L2E = 52
S_W4K = 54
S_B8K = 57


def rng(a, n):
    return list(range(a, a + n))


def stamp(g, kid, vt):
    if not STAMP:
        return
    n = _stamp_n[0]
    _stamp_n[0] += 1
    g.s("s_memrealtime s[60:61]" if os.environ.get("REAL") else "s_memtime s[60:61]")
    g.waitcnt(lg=0)
    g.lgq = []
    g.s("s_lshl_b32 s62, s70, 8")
    g.s("s_add_u32 s62, s62, %d" % (STAMP_BASE + kid * 131072 + n * 8))
    g.s("s_mul_i32 s63, s3, 1048576")
    g.s("s_add_u32 s62, s62, s63")
    g.valu("v_mov_b32 %s, s60" % vr(vt), dst=[vt])
    g.valu("v_mov_b32 %s, s61" % vr(vt + 1), dst=[vt + 1])
    g.valu("v_mov_b32 %s, s62" % vr(vt + 2), dst=[vt + 2])
    g.s("s_mov_b64 s[58:59], exec")
    g.s("s_mov_b64 exec, 1")
    g.vstore("buffer_store_dwordx2 %s, %s, %s, 0 offen" % (vr(vt, 2), vr(vt + 2), sr(SRD_WS, 4)), "STAMP", data=[vt, vt + 1], addr=[vt + 2])
    g.s("s_mov_b64 exec, s[58:59]")


def make_srd(g, srd, ptr, nbytes):
    g.s("s_mov_b32 %s, %s" % (sr(srd), sr(ptr)))
    g.s("s_and_b32 %s, %s, 0xffff" % (sr(srd + 1), sr(ptr + 1)))
    g.s("s_mov_b32 %s, %d" % (sr(srd + 2), nbytes))
    g.s("s_mov_b32 %s, 0x00020000" % sr(srd + 3))


def vop(g, text, dst, src=()):
    g.valu(text, dst=[dst] if isinstance(dst, int) else dst, src=src)


def lane_setup(g):
    vop(g, "v_mov_b32 v1, %s" % vr(V_LANE), 1, [V_LANE])
    vop(g, "v_and_b32 v2, 15, v1", 2, [1])
    vop(g, "v_lshrrev_b32 v3, 4, v1", 3, [1])
    vop(g, "v_bfe_u32 v4, v1, 2, 2", 4, [1])
    vop(g, "v_and_b32 v5, 3, v1", 5, [1])
    vop(g, "v_and_b32 v6, 1, v3", 6, [3])
    vop(g, "v_lshlrev_b32 v6, 2, v6", 6, [6])
    vop(g, "v_or_b32 v6, v6, v4", 6, [6, 4])


def pack_pair(g, lo, hi):
    g.valu("v_cvt_pk_bf16_f32 %s, %s, %s" % (vr(lo), vr(lo), vr(lo + 1)), dst=[lo], src=[lo, lo + 1])
    g.valu("v_cvt_pk_bf16_f32 %s, %s, %s" % (vr(lo + 1), vr(lo + 2), vr(lo + 3)), dst=[lo + 1], src=[lo + 2, lo + 3])
    g.valu("v_cvt_pk_bf16_f32 %s, %s, %s" % (vr(lo + 2), vr(hi), vr(hi + 1)), dst=[lo + 2], src=[hi, hi + 1])
    g.valu("v_cvt_pk_bf16_f32 %s, %s, %s" % (vr(lo + 3), vr(hi + 2), vr(hi + 3)), dst=[lo + 3], src=[hi + 2, hi + 3])


def xlane_reduce(g, m, tmp, op):
    for sw in ("v_permlane32_swap_b32", "v_permlane16_swap_b32"):
        vop(g, "v_mov_b32 %s, %s" % (vr(tmp), vr(m)), tmp, [m])
        g.valu("%s %s, %s" % (sw, vr(m), vr(tmp)), dst=[m, tmp], src=[m, tmp], permlane=True)
        vop(g, "%s %s, %s, %s" % (op, vr(m), vr(m), vr(tmp)), m, [m, tmp])


R_ACC = 0
R_A = 96
R_B = 128
R_F = 164
R_K = 188
V_A = 236
V_X = 244
V_W = 245
V_BP = 246
V_VD0 = 247
V_VD1 = 248
V_K = 249
V_LANE = 250
V_CLAIM = 251
V_T = 252
V_KW = R_B + 36
V_KR = R_B + 37
V_WO = R_B + 38
V_O = R_B + 39
V_DELTA = R_B + 40
T0 = R_B + 41
V_MASK = R_B + 47
A_V_LDS = 65536
NSLOT = 8
NB = 3
XD = int(os.environ.get("XD", "1"))
V_X2 = R_F


def acc(t, u):
    return R_ACC + (t * 3 + u) * 4


def bstage(s, u):
    return R_B + ((s % NB) * 3 + u) * 4


def bfrag(s, u):
    if u < XD:
        return bstage(s, u)
    return R_F + ((s % 2) * 3 + u) * 4


def post_gemm_addrs(g):
    L, Q, G, R, C, A, B = V_LANE, T0, T0 + 1, T0 + 2, T0 + 3, T0 + 4, T0 + 5
    v = vr
    vop(g, "v_and_b32 %s, 15, %s" % (v(Q), v(L)), Q, [L])
    vop(g, "v_lshrrev_b32 %s, 4, %s" % (v(G), v(L)), G, [L])
    vop(g, "v_bfe_u32 %s, %s, 2, 2" % (v(R), v(L)), R, [L])
    vop(g, "v_and_b32 %s, 3, %s" % (v(C), v(L)), C, [L])
    vop(g, "v_xor_b32 %s, %s, %s" % (v(A), v(Q), v(G)), A, [Q, G])
    vop(g, "v_lshlrev_b32 %s, 4, %s" % (v(A), v(A)), A, [A])
    vop(g, "v_lshl_add_u32 %s, %s, 8, %s" % (v(A), v(G), v(A)), A, [G, A])
    g.s("s_lshl_b32 s55, s3, 13")
    vop(g, "v_add_u32 %s, s55, %s" % (v(V_KW), v(A)), V_KW, [A])
    vop(g, "v_lshrrev_b32 %s, 1, %s" % (v(A), v(G)), A, [G])
    vop(g, "v_xor_b32 %s, %s, %s" % (v(A), v(A), v(Q)), A, [A, Q])
    vop(g, "v_lshlrev_b32 %s, 4, %s" % (v(A), v(A)), A, [A])
    vop(g, "v_lshl_add_u32 %s, %s, 8, %s" % (v(A), v(Q), v(A)), A, [Q, A])
    vop(g, "v_and_b32 %s, 1, %s" % (v(B), v(G)), B, [G])
    vop(g, "v_lshl_add_u32 %s, %s, 3, %s" % (v(A), v(B), v(A)), A, [A, B])
    g.s("s_lshl_b32 s55, s41, 14")
    vop(g, "v_add_u32 %s, s55, %s" % (v(V_KR), v(A)), V_KR, [A])
    g.s("s_mul_i32 s55, s41, 24576")
    g.s("s_add_u32 s55, s55, %d" % A_V_LDS)
    vop(g, "v_lshlrev_b32 %s, 10, %s" % (v(A), v(G)), A, [G])
    vop(g, "v_sub_u32 %s, s55, %s" % (v(V_DELTA), v(A)), V_DELTA, [A])
    g.s("s_mul_i32 s55, s44, 6")
    g.s("s_mul_i32 s56, s42, 3")
    g.s("s_add_u32 s55, s55, s56")
    g.s("s_lshl_b32 s55, s55, 7")
    g.s("s_lshl_b32 s56, s43, 2")
    g.s("s_add_u32 s55, s55, s56")
    g.s("s_lshl_b32 s55, s55, 10")
    g.s("s_mul_i32 s56, s6, %d" % O_BLOCK_BYTES)
    g.s("s_add_u32 s55, s55, s56")
    vop(g, "v_lshlrev_b32 %s, 4, %s" % (v(A), v(L)), A, [L])
    vop(g, "v_add_u32 %s, s55, %s" % (v(V_O), v(A)), V_O, [A])
    g.s("s_and_b32 s55, s2, 3")
    g.s("s_lshl_b32 s55, s55, 5")
    g.s("s_lshr_b32 s56, s2, 3")
    g.s("s_add_u32 s55, s55, s56")
    g.s("s_lshl_b32 s55, s55, 3")
    g.s("s_add_u32 s55, s55, s3")
    g.s("s_lshl_b32 s55, s55, 12")
    vop(g, "v_lshlrev_b32 %s, 6, %s" % (v(A), v(L)), A, [L])
    vop(g, "v_add_u32 %s, s55, %s" % (v(V_WO), v(A)), V_WO, [A])


def attn_body(g, kv_first):
    def tr_reads(s, t):
        if os.environ.get("NOTR") and s > 0:
            return
        for j in range(2):
            d = R_A + t * 4 + j * 2
            g.dsread("ds_read_b64_tr_b16 %s, %s offset:%d" % (vr(d, 2), vr(V_A + t), (s % NSLOT) * 8192 + j * 1024),
                     "A%d_%d" % (s, t), dst=rng(d, 2), addr=[V_A + t])

    def issue_w(c):
        if os.environ.get("NOW") and c > 1:
            return
        g.s("s_mov_b32 %s, %d" % (sr(S_WOFF), c * 262144))
        g.s("s_add_u32 m0, %s, %d" % (sr(S_M0W), (c % NSLOT) * 8192), m0=True)
        g.vload("buffer_load_dwordx4 %s, %s, %s offen lds" % (vr(V_W), sr(SRD_W, 4), sr(S_WOFF)),
                "W%d" % c, addr=[V_W], lds=True)

    def issue_b(s):
        if os.environ.get("NOX") and s > 3:
            return
        for u in range(3):
            g.s("s_mov_b32 %s, %d" % (sr(S_TMP), u * 16384))
            d = bstage(s, u)
            va = V_X2 if u < XD else V_X
            g.vload("buffer_load_dwordx4 %s, %s, %s, %s offen offset:%d" % (vr(d, 4), vr(va), sr(SRD_X, 4), sr(S_TMP), s * 64),
                    "B%d" % s, dst=rng(d, 4), addr=[va])

    def perm_b(s, lo=0, hi=12):
        if os.environ.get("NOPERM") and s > 1:
            return
        if lo == 0:
            g.wait_vm("B%d" % s)
        for i in range(lo, hi):
            u, r = i // 4, i % 4
            if u < XD:
                continue
            d = bfrag(s, u) + r
            a = bstage(s, u) + r
            g.dsread("ds_bpermute_b32 %s, %s, %s" % (vr(d), vr(V_BP), vr(a)), "F%d" % s, dst=[d], addr=[V_BP, a])

    def issue_k(i):
        g.s("s_mov_b32 %s, %d" % (sr(S_TMP), i * 4096))
        for m in range(4):
            d = R_K + (i * 4 + m) * 4
            g.vload("buffer_load_dwordx4 %s, %s, %s, %s offen offset:%d%s" % (vr(d, 4), vr(V_K), sr(SRD_K, 4), sr(S_TMP), m * 1024, NT),
                    "K%d" % i, dst=rng(d, 4), addr=[V_K])

    def issue_v(i):
        g.s("s_mov_b32 %s, %d" % (sr(S_TMP), i * 1024))
        g.s("s_add_u32 m0, %s, %d" % (sr(S_M0V), i * 1024), m0=True)
        g.vload("buffer_load_dwordx4 %s, %s, %s offen%s lds" % (vr(V_VD0 + (i & 1)), sr(SRD_V, 4), sr(S_TMP), NT),
                "V", addr=[V_VD0 + (i & 1)], lds=True)

    def issue_kv():
        if os.environ.get("NOKV"):
            return
        for i in range(3):
            issue_k(i)
        for i in range(12):
            issue_v(i)

    def issue_k1(i, m):
        g.s("s_mov_b32 %s, %d" % (sr(S_TMP), i * 4096))
        d = R_K + (i * 4 + m) * 4
        g.vload("buffer_load_dwordx4 %s, %s, %s, %s offen offset:%d%s" % (vr(d, 4), vr(V_K), sr(SRD_K, 4), sr(S_TMP), m * 1024, NT),
                "K%d" % i, dst=rng(d, 4), addr=[V_K])

    kvops = [(lambda i=i, m=m: issue_k1(i, m)) for i in range(3) for m in range(4)] + [(lambda i=i: issue_v(i)) for i in range(12)]

    def trickle(n):
        for _ in range(n):
            if kvops:
                kvops.pop(0)()

    stamp(g, 0, V_T)
    sched = KV2[int(kv_first)] if KV2 else None
    if kv_first:
        if TWAIT:
            g.wait_vm("TCH")
        if sched:
            trickle(sched[0])
        else:
            issue_kv()
    for c in range(NSLOT - 1):
        issue_w(c)
        if c < NB:
            issue_b(c)
    if KVS:
        trickle(KVS[0])
    nsteps = 16
    g.wait_vm("W0")
    g.s("s_mov_b64 exec, %s" % sr(S_CL, 2))
    g.vload("buffer_atomic_or %s, off, %s, %s sc0" % (vr(V_CLAIM), sr(SRD_DBG, 4), sr(S_GOFF)), "CL", dst=[V_CLAIM])
    vop(g, "v_mov_b32 %s, %s" % (vr(V_T + 2), sr(S_PADD)), V_T + 2)
    g.vstore("buffer_atomic_add %s, off, %s, %s offset:64" % (vr(V_T + 2), sr(SRD_DBG, 4), sr(S_GOFF)), "CL", data=[V_T + 2])
    g.s("s_mov_b64 exec, -1")
    g.barrier()
    for t in range(8):
        tr_reads(0, t)
    perm_b(0)
    for s in range(nsteps):
        g.comment("---- gemm step %d" % s)
        if s + 1 < nsteps:
            g.wait_vm("W%d" % (s + 1))
            g.barrier()
        if s % 4 == 0:
            stamp(g, 0, V_T)
        if s + NSLOT - 1 < nsteps:
            issue_w(s + NSLOT - 1)
        pcut = [[0, 2, 4, 6, 8, 9, 10, 11, 12], [0, 5, 6, 7, 8, 9, 10, 11, 12], [0, 9, 9, 10, 10, 11, 11, 12, 12], [0, 12, 12, 12, 12, 12, 12, 12, 12]][XD]
        for t in range(8):
            g.wait_lg("A%d_%d" % (s, t))
            if t == 0:
                g.wait_lg("F%d" % s)
            for u in range(3):
                g.mfma(acc(t, u), R_A + t * 4, bfrag(s, u), None if s == 0 else acc(t, u))
            if s + 1 < nsteps:
                tr_reads(s + 1, t)
                perm_b(s + 1, pcut[t], pcut[t + 1])
        if s + NB < nsteps:
            g.wait_lg("F%d" % (s + 1))
            issue_b(s + NB)
        if sched:
            trickle(24 if s == nsteps - 1 else sched[s + 1])
        elif KVS:
            trickle(KVS[s + 1] if s + 1 < len(KVS) else (24 if s == nsteps - 1 else 0))
        elif s == nsteps - NB - 1 and not kv_first:
            issue_kv()

    post_gemm_addrs(g)
    if WOPF == 2:
        g.vload("buffer_load_dword %s, %s, %s, 0 offen" % (vr(V_T + 3), vr(V_WO), sr(SRD_WO, 4)), "TCH", dst=[V_T + 3], addr=[V_WO])
    if WOPF == 3:
        vop(g, "v_and_b32 %s, 0xfffff, %s" % (vr(V_WO), vr(V_WO)), V_WO, [V_WO])
        for i in range(4):
            g.s("s_mov_b32 %s, %d" % (sr(S_TMP), i << 20))
            g.vload("buffer_load_dword %s, %s, %s, %s offen" % (vr(V_T + 3), vr(V_WO), sr(SRD_WO, 4), sr(S_TMP)), "TCH", dst=[V_T + 3], addr=[V_WO])
    stamp(g, 0, V_T)
    for p in range(4):
        for u in range(3):
            pack_pair(g, acc(2 * p, u), acc(2 * p + 1, u))
    KA = R_B + 24
    KW = R_B + 32
    for m in range(4):
        vop(g, "v_xor_b32 %s, %d, %s" % (vr(KW + m), m * 64, vr(V_KW)), KW + m, [V_KW])
    for c in range(8):
        vop(g, "v_xor_b32 %s, %d, %s" % (vr(KA + c), c * 32, vr(V_KR)), KA + c, [V_KR])

    def sacc(kt, u):
        i = kt * 3 + u
        if i < 12:
            return acc(1 + 2 * (i // 3), i % 3)
        return R_B + (i - 12) * 4

    def k_write(i, slot_off):
        g.wait_vm("K%d" % i)
        for m in range(4):
            d = R_K + (i * 4 + m) * 4
            g.dswrite("ds_write_b128 %s, %s offset:%d" % (vr(KW + m), vr(d, 4), slot_off + m * 1024), "KW", data=rng(d, 4), addr=[KW + m])

    def k_reads(n, slot_off):
        for p in range(4):
            for j in range(2):
                d = R_A + ((n & 1) * 4 + p) * 4 + 2 * j
                g.dsread("ds_read_b64 %s, %s offset:%d" % (vr(d, 2), vr(KA + 2 * p + j), slot_off), "KF%d_%d" % (n, p), dst=rng(d, 2), addr=[KA + 2 * p + j])

    def s_tile(n, kt):
        for p in range(4):
            g.wait_lg("KF%d_%d" % (n, p))
            for u in range(3):
                g.mfma(sacc(kt, u), R_A + ((n & 1) * 4 + p) * 4, acc(2 * p, u), None if p == 0 else sacc(kt, u))

    g.barrier()
    k_write(0, 0)
    k_write(1, 4096)
    g.wait_lg("KW")
    g.barrier()
    r1 = [0, 1, 3, 4]
    k_reads(0, 0)
    for n in range(4):
        if n + 1 < 4:
            k_reads(n + 1, (n + 1) * 4096)
        s_tile(n, r1[n])
    g.barrier()
    for m in range(4):
        vop(g, "v_subrev_u32 %s, %s, %s" % (vr(KW + m), sr(S_W4K), vr(KW + m)), KW + m, [KW + m])
    for c in range(8):
        vop(g, "v_subrev_u32 %s, %s, %s" % (vr(KA + c), sr(S_B8K), vr(KA + c)), KA + c, [KA + c])
    k_write(2, 0)
    g.wait_lg("KW")
    g.barrier()
    k_reads(4, 0)
    k_reads(5, 4096)
    s_tile(4, 2)
    s_tile(5, 5)
    stamp(g, 0, V_T)
    def v_reads(pp, t):
        for j in range(2):
            d = R_A + t * 4 + j * 2
            g.dsread("ds_read_b64_tr_b16 %s, %s offset:%d" % (vr(d, 2), vr(V_A + t), pp * 8192 + j * 4096),
                     "VT%d_%d" % (pp, t), dst=rng(d, 2), addr=[V_A + t])

    def v_ready():
        g.comment("---- V ready barrier, V addresses")
        g.wait_vm("V")
        g.barrier()
        for t in range(8):
            v_reads(0, t)

    for t in range(8):
        vop(g, "v_add_u32 %s, %s, %s" % (vr(V_A + t), vr(V_A + t), vr(V_DELTA)), V_A + t, [V_A + t, V_DELTA])
    if not VLATE:
        v_ready()
    g.vload("buffer_load_dword %s, off, %s, %s offset:64 sc1" % (vr(V_MASK), sr(SRD_DBG, 4), sr(S_GOFF)), "MK", dst=[V_MASK])
    stamp(g, 0, V_T)

    def pfrag(pp, u):
        return R_K + (pp * 3 + u) * 4
    TMP = R_K + 36
    for u in range(3):
        a, b = TMP, TMP + 1
        for kt in range(6):
            r = sacc(kt, u)
            for rep in range(2):
                g.valu("v_cvt_pk_bf16_f32 %s, %s, %s" % (vr(a), vr(r), vr(r + 1)), dst=[a], src=[r, r + 1])
                g.valu("v_cvt_pk_bf16_f32 %s, %s, %s" % (vr(b), vr(r + 2), vr(r + 3)), dst=[b], src=[r + 2, r + 3])
                vop(g, "v_lshlrev_b32 %s, 16, %s" % (vr(r), vr(a)), r, [a])
                vop(g, "v_and_b32 %s, 0xffff0000, %s" % (vr(r + 1), vr(a)), r + 1, [a])
                vop(g, "v_lshlrev_b32 %s, 16, %s" % (vr(r + 2), vr(b)), r + 2, [b])
                vop(g, "v_and_b32 %s, 0xffff0000, %s" % (vr(r + 3), vr(b)), r + 3, [b])
                if rep == 0:
                    g.valu("v_pk_mul_f32 %s, %s, %s" % (vr(r, 2), vr(r, 2), sr(S_SC, 2)), dst=[r, r + 1], src=[r, r + 1])
                    g.valu("v_pk_mul_f32 %s, %s, %s" % (vr(r + 2, 2), vr(r + 2, 2), sr(S_SC, 2)), dst=[r + 2, r + 3], src=[r + 2, r + 3])
        vals = [sacc(kt, u) + r for kt in range(6) for r in range(4)]
        m = TMP + 2
        vop(g, "v_max3_f32 %s, %s, %s, %s" % (vr(m), vr(vals[0]), vr(vals[1]), vr(vals[2])), m, vals[0:3])
        i = 3
        while i < 24:
            if i + 1 < 24:
                vop(g, "v_max3_f32 %s, %s, %s, %s" % (vr(m), vr(m), vr(vals[i]), vr(vals[i + 1])), m, [m, vals[i], vals[i + 1]])
                i += 2
            else:
                vop(g, "v_max_f32 %s, %s, %s" % (vr(m), vr(m), vr(vals[i])), m, [m, vals[i]])
                i += 1
        xlane_reduce(g, m, TMP + 3, "v_max_f32")
        for v in vals:
            vop(g, "v_sub_f32 %s, %s, %s" % (vr(v), vr(v), vr(m)), v, [v, m])
        for k in range(0, 24, 2):
            v = vals[k]
            g.valu("v_pk_mul_f32 %s, %s, %s" % (vr(v, 2), vr(v, 2), sr(S_L2E, 2)), dst=[v, v + 1], src=[v, v + 1])
        for v in vals:
            g.valu("v_exp_f32 %s, %s" % (vr(v), vr(v)), dst=[v], src=[v], trans=True)
        sm = TMP + 4
        g.valu("v_pk_add_f32 %s, %s, %s" % (vr(sm, 2), vr(vals[0], 2), vr(vals[2], 2)), dst=[sm, sm + 1], src=vals[0:4])
        for k in range(4, 24, 2):
            g.valu("v_pk_add_f32 %s, %s, %s" % (vr(sm, 2), vr(sm, 2), vr(vals[k], 2)), dst=[sm, sm + 1], src=[sm, sm + 1, vals[k], vals[k] + 1])
        vop(g, "v_add_f32 %s, %s, %s" % (vr(sm), vr(sm), vr(sm + 1)), sm, [sm, sm + 1])
        xlane_reduce(g, sm, TMP + 3, "v_add_f32")
        g.valu("v_rcp_f32 %s, %s" % (vr(sm), vr(sm)), dst=[sm], src=[sm], trans=True)
        vop(g, "v_mov_b32 %s, %s" % (vr(sm + 1), vr(sm)), sm + 1, [sm])
        for k in range(0, 24, 2):
            v = vals[k]
            g.valu("v_pk_mul_f32 %s, %s, %s" % (vr(v, 2), vr(v, 2), vr(sm, 2)), dst=[v, v + 1], src=[v, v + 1, sm, sm + 1])
        for pp in range(3):
            d = pfrag(pp, u)
            lo, hi = sacc(2 * pp, u), sacc(2 * pp + 1, u)
            g.valu("v_cvt_pk_bf16_f32 %s, %s, %s" % (vr(d), vr(lo), vr(lo + 1)), dst=[d], src=[lo, lo + 1])
            g.valu("v_cvt_pk_bf16_f32 %s, %s, %s" % (vr(d + 1), vr(lo + 2), vr(lo + 3)), dst=[d + 1], src=[lo + 2, lo + 3])
            g.valu("v_cvt_pk_bf16_f32 %s, %s, %s" % (vr(d + 2), vr(hi), vr(hi + 1)), dst=[d + 2], src=[hi, hi + 1])
            g.valu("v_cvt_pk_bf16_f32 %s, %s, %s" % (vr(d + 3), vr(hi + 2), vr(hi + 3)), dst=[d + 3], src=[hi + 2, hi + 3])
    if VLATE:
        v_ready()
    stamp(g, 0, V_T)
    for pp in range(3):
        for t in range(8):
            g.wait_lg("VT%d_%d" % (pp, t))
            for u in range(3):
                g.mfma(acc(t, u), R_A + t * 4, pfrag(pp, u), None if pp == 0 else acc(t, u))
            if pp < 2:
                v_reads(pp + 1, t)
    stamp(g, 0, V_T)
    if WOPF == 1:
        g.vload("buffer_load_dword %s, %s, %s, 0 offen" % (vr(V_T + 3), vr(V_WO), sr(SRD_WO, 4)), "TCH", dst=[V_T + 3], addr=[V_WO])
    for p in range(4):
        for u in range(3):
            pack_pair(g, acc(2 * p, u), acc(2 * p + 1, u))
    g.wait_vm("MK")
    g.valu("v_readfirstlane_b32 %s, %s" % (sr(S_PSEEN), vr(V_MASK)), src=[V_MASK], readlane=True, sdst=[S_PSEEN])
    lab = "st_wt_%d" % int(kv_first)
    if not REL:
        g.s("s_cmp_lg_u32 %s, %s" % (sr(S_PSEEN), sr(S_PEXP)))
        g.s("s_cbranch_scc1 %s" % lab)
    q0 = list(g.vmq)
    for fl in ("", " sc1"):
        if fl:
            if REL:
                break
            g.label(lab)
            g.vmq = list(q0)
        for p in range(4):
            for u in range(3):
                g.s("s_mov_b32 %s, %d" % (sr(S_TMP), u * 131072))
                d = acc(2 * p, u)
                g.vstore("buffer_store_dwordx4 %s, %s, %s, %s offen offset:%d%s" % (vr(d, 4), vr(V_O), sr(SRD_WS, 4), sr(S_TMP), p * 1024, fl),
                         "ST", data=rng(d, 4), addr=[V_O])
        g.s("s_branch attn_tail")


def gen_attn():
    g = Gen()
    g.s("s_cmp_ge_u32 s2, 256")
    g.s("s_cbranch_scc1 attn_end")
    vop(g, "v_lshrrev_b32 v7, 6, v0", 7, [0])
    vop(g, "v_and_b32 %s, 63, v0" % vr(V_LANE), V_LANE, [0])
    g.valu("v_readfirstlane_b32 %s, v7" % sr(S_WAVE), src=[7], readlane=True, sdst=[S_WAVE])
    g.s("s_mov_b32 %s, s2" % sr(S_ME))
    g.s("s_mov_b32 %s, 0" % sr(S_STOLEN))
    g.s("s_mov_b32 %s, 0" % sr(S_PSEEN))
    g.s("s_load_dwordx4 s[80:83], s[0:1], 80")
    g.s("s_getreg_b32 s4, hwreg(HW_REG_XCC_ID, 0, 4)")
    g.s("s_mul_i32 s5, s4, s4")
    g.s("s_lshl_b32 s5, s5, 16")
    g.s("s_lshl_b32 s4, s4, 6")
    g.s("s_add_u32 s4, s4, s5")
    g.s("s_add_u32 %s, s4, 1" % sr(S_PADD))
    g.s("s_lshl_b32 %s, %s, 5" % (sr(S_PEXP), sr(S_PADD)))
    g.nop(4)
    g.s("s_cmp_eq_u32 s3, 0")
    g.s("s_cselect_b32 %s, 1, 0" % sr(S_W0))
    g.s("s_mov_b32 %s, 0" % sr(S_W0 + 1))
    g.s("s_mov_b32 %s, %s" % (sr(S_CL), sr(S_W0)))
    g.s("s_mov_b32 %s, 0" % sr(S_CL + 1))
    if FORCE_STEAL:
        g.s("s_bfe_u32 s4, s2, 0x30005")
        g.s("s_cmp_eq_u32 s4, %d" % (FORCE_STEAL - 1))
        g.s("s_cselect_b32 s90, 1, 0")
    g.label("job_start")
    lane_setup(g)
    g.s("s_bfe_u32 s6, s2, 0x10002")
    g.s("s_and_b32 s5, s2, 3")
    g.s("s_lshr_b32 s43, s2, 3")
    g.s("s_and_b32 s40, s43, 1")
    g.s("s_mul_i32 s16, s6, 40")
    g.s("s_add_u32 s18, s0, s16")
    g.s("s_addc_u32 s19, s1, 0")
    g.s("s_load_dwordx8 s[8:15], s[18:19], 0")
    g.s("s_load_dwordx2 s[16:17], s[0:1], 96")
    g.s("s_load_dwordx2 s[68:69], s[18:19], 32")
    g.s("s_lshr_b32 s41, s3, 1")
    g.s("s_and_b32 s42, s3, 1")
    g.s("s_lshl_b32 s44, s5, 2")
    g.s("s_add_u32 s44, s44, s41")
    g.s("s_lshl_b32 s45, s44, 5")
    g.s("s_add_u32 s45, s45, s43")
    g.s("s_mul_i32 s45, s45, 24576")
    g.s("s_mov_b32 %s, 0x3db504f3" % sr(S_SC))
    g.s("s_mov_b32 %s, 0x3db504f3" % sr(S_SC + 1))
    g.s("s_mov_b32 %s, 0x3fb8aa3b" % sr(S_L2E))
    g.s("s_mov_b32 %s, 0x3fb8aa3b" % sr(S_L2E + 1))
    g.s("s_mul_i32 s55, s44, 98304")
    g.s("s_mul_i32 s56, s42, 49152")
    g.s("s_add_u32 s55, s55, s56")
    vop(g, "v_lshrrev_b32 v8, 2, v1", 8, [1])
    vop(g, "v_lshlrev_b32 v8, 10, v8", 8, [8])
    vop(g, "v_lshl_add_u32 v8, v5, 4, v8", 8, [5, 8])
    vop(g, "v_add_u32 %s, s55, v8" % vr(V_X), V_X, [8])
    if XD:
        vop(g, "v_lshlrev_b32 v8, 10, v2", 8, [2])
        vop(g, "v_lshl_add_u32 v8, v3, 4, v8", 8, [3, 8])
        vop(g, "v_add_u32 %s, s55, v8" % vr(V_X2), V_X2, [8])
    g.s("s_mul_i32 s55, s42, 12288")
    g.s("s_add_u32 s55, s55, s45")
    vop(g, "v_lshlrev_b32 v8, 4, v1", 8, [1])
    vop(g, "v_add_u32 %s, s55, v8" % vr(V_K), V_K, [8])
    g.s("s_lshl_b32 %s, s3, 12" % sr(S_W4K))
    g.s("s_lshl_b32 %s, s41, 13" % sr(S_B8K))
    g.s("s_mul_i32 s55, s42, 12288")
    g.s("s_add_u32 s55, s55, s45")
    for par in range(2):
        vop(g, "v_add_u32 v8, %d, v3" % (4 * par), 8, [3])
        vop(g, "v_lshlrev_b32 v8, 1, v8", 8, [8])
        vop(g, "v_xor_b32 v8, v8, v2", 8, [8, 2])
        vop(g, "v_lshlrev_b32 v8, 4, v8", 8, [8])
        vop(g, "v_lshl_add_u32 v8, v3, 8, v8", 8, [3, 8])
        vop(g, "v_add_u32 %s, s55, v8" % vr(V_VD0 + par), V_VD0 + par, [8])
    g.s("s_and_b32 s55, s41, 1")
    g.s("s_lshl_b32 s55, s55, 2")
    vop(g, "v_or_b32 v8, s55, v3", 8, [3])
    vop(g, "v_lshlrev_b32 v8, 1, v8", 8, [8])
    vop(g, "v_xor_b32 v8, v8, v2", 8, [8, 2])
    vop(g, "v_lshlrev_b32 v8, 4, v8", 8, [8])
    vop(g, "v_lshl_add_u32 v8, v3, 13, v8", 8, [3, 8])
    g.s("s_lshl_b32 s55, s3, 15")
    g.s("s_lshl_b32 s56, s43, 8")
    g.s("s_add_u32 s55, s55, s56")
    vop(g, "v_add_u32 %s, s55, v8" % vr(V_W), V_W, [8])
    g.s("s_lshl_b32 %s, s3, 10" % sr(S_M0W))
    vop(g, "v_lshlrev_b32 v8, 3, v3", 8, [3])
    vop(g, "v_add_u32 v8, v8, v4", 8, [8, 4])
    vop(g, "v_lshlrev_b32 v8, 8, v8", 8, [8])
    vop(g, "v_lshl_add_u32 v8, v5, 3, v8", 8, [8, 5])
    for t in range(8):
        vop(g, "v_xor_b32 v9, %d, v6" % t, 9, [6])
        vop(g, "v_lshl_add_u32 %s, v9, 5, v8" % vr(V_A + t), V_A + t, [9, 8])
    g.s("s_mul_i32 s55, s41, 24576")
    g.s("s_add_u32 s55, s55, %d" % A_V_LDS)
    g.s("s_mul_i32 s56, s42, 12288")
    g.s("s_add_u32 %s, s55, s56" % sr(S_M0V))
    g.s("s_lshl_b32 s55, s6, 2")
    g.s("s_add_u32 s55, s55, s5")
    g.s("s_lshl_b32 %s, s55, 2" % sr(S_GOFF))
    g.s("s_add_u32 %s, %s, 128" % (sr(S_GOFF + 1), sr(S_GOFF)))
    g.s("s_lshl_b32 s55, 1, s43")
    vop(g, "v_mov_b32 %s, s55" % vr(V_CLAIM), V_CLAIM)
    vop(g, "v_lshl_add_u32 v8, v2, 2, v3", 8, [2, 3])
    vop(g, "v_lshlrev_b32 %s, 2, v8" % vr(V_BP), V_BP, [8])
    g.waitcnt(lg=0)
    make_srd(g, SRD_X, 8, 1572864)
    make_srd(g, SRD_K, 10, 12582912)
    make_srd(g, SRD_V, 12, 12582912)
    make_srd(g, SRD_W, 14, 4194304)
    make_srd(g, SRD_WS, 16, WS_BYTES)
    make_srd(g, SRD_WO, 68, 4194304)
    make_srd(g, SRD_OUT, 80, 16 * 96 * 1024 * 2)
    make_srd(g, SRD_DBG, 82, 256)
    if FORCE_STEAL:
        g.s("s_cmp_eq_u32 s90, 1")
        g.s("s_mov_b32 s90, 0")
        g.s("s_cbranch_scc1 steal")
    g.s("s_lshl_b32 s55, %s, 6" % sr(S_GOFF))
    g.s("s_lshl_b32 s56, s43, 2")
    g.s("s_add_u32 s55, s55, s56")
    g.s("s_add_u32 %s, s55, %d" % (sr(S_FOFF), FLG))
    vop(g, "v_mov_b32 %s, 0" % vr(V_T + 2), V_T + 2)
    g.s("s_mov_b64 exec, %s" % sr(S_CL, 2))
    g.vstore("buffer_store_dword %s, off, %s, %s" % (vr(V_T + 2), sr(SRD_WS, 4), sr(S_FOFF)), "FC", data=[V_T + 2])
    g.s("s_mov_b64 exec, -1")
    if TOUCH:
        g.s("s_lshl_b32 s55, s3, 18")
        g.s("s_add_u32 s55, s55, %d" % (256 * 8192))
        g.s("s_lshl_b32 s56, s43, 8")
        g.s("s_add_u32 s55, s55, s56")
        vop(g, "v_lshrrev_b32 v8, 2, v1", 8, [1])
        vop(g, "v_lshlrev_b32 v8, 13, v8", 8, [8])
        vop(g, "v_lshl_add_u32 v8, v5, 6, v8", 8, [5, 8])
        vop(g, "v_add_u32 v8, s55, v8", 8, [8])
        for i in range(2):
            g.s("s_mov_b32 %s, %d" % (sr(S_TMP), i * 16 * 8192))
            g.vload("buffer_load_dword %s, v8, %s, %s offen" % (vr(V_T + 3), sr(SRD_W, 4), sr(S_TMP)), "TCH", dst=[V_T + 3], addr=[8])
        g.s("s_mul_i32 s55, s5, 393216")
        g.s("s_lshl_b32 s56, s43, 3")
        g.s("s_add_u32 s56, s56, s3")
        g.s("s_mul_i32 s56, s56, 1536")
        g.s("s_add_u32 s55, s55, s56")
        vop(g, "v_lshlrev_b32 v9, 6, v1", 9, [1])
        vop(g, "v_add_u32 v9, s55, v9", 9, [9])
        g.vload("buffer_load_dword %s, v9, %s, 0 offen" % (vr(V_T + 3), sr(SRD_X, 4)), "TCH", dst=[V_T + 3], addr=[9])
    if not KVS:
        g.s("s_cmp_eq_u32 s40, 1")
        g.s("s_cbranch_scc1 attn_kvfirst")
    t0 = g.text()
    gb = Gen()
    gb.vmq = list(g.vmq)
    _stamp_n[0] = 0
    attn_body(gb, False)
    if KVS:
        return t0 + gb.text()
    ga = Gen()
    ga.vmq = list(g.vmq)
    _stamp_n[0] = 0
    ga.label("attn_kvfirst")
    attn_body(ga, True)
    return t0 + gb.text() + ga.text()


O_ACC = 0
O_A = 96
O_B = 112
O_VA = 184
O_VX = 188
O_VW = 189
O_VO = 190
O_VL = 191
O_VZ = 240
O_VT = 192


def oproj_setup(g):
    lane_setup(g)
    g.s("s_bfe_u32 s6, %s, 0x10002" % sr(S_ME))
    g.s("s_bfe_u32 s7, %s, 0x20003" % sr(S_ME))
    g.s("s_and_b32 s40, %s, 3" % sr(S_ME))
    g.s("s_lshr_b32 s41, %s, 5" % sr(S_ME))
    g.s("s_mul_i32 s55, s40, 24")
    g.s("s_mul_i32 s56, s7, 6")
    g.s("s_add_u32 s42, s55, s56")
    g.s("s_lshl_b32 s55, s42, 7")
    g.s("s_lshl_b32 s56, s3, 4")
    g.s("s_add_u32 s55, s55, s56")
    g.s("s_lshl_b32 s55, s55, 10")
    g.s("s_mul_i32 s56, s6, %d" % O_BLOCK_BYTES)
    g.s("s_add_u32 s55, s55, s56")
    vop(g, "v_lshlrev_b32 %s, 4, v1" % vr(O_VL), O_VL, [1])
    vop(g, "v_add_u32 %s, s55, %s" % (vr(O_VX), vr(O_VL)), O_VX, [O_VL])
    vop(g, "v_and_b32 v8, 7, v1", 8, [1])
    vop(g, "v_lshlrev_b32 v9, 1, v3", 9, [3])
    vop(g, "v_xor_b32 v8, v8, v9", 8, [8, 9])
    vop(g, "v_lshlrev_b32 v8, 4, v8", 8, [8])
    vop(g, "v_lshrrev_b32 v9, 3, v1", 9, [1])
    vop(g, "v_lshl_add_u32 v8, v9, 10, v8", 8, [8, 9])
    g.s("s_lshl_b32 s55, s41, 7")
    g.s("s_lshl_b32 s56, s3, 19")
    g.s("s_add_u32 s55, s55, s56")
    vop(g, "v_add_u32 %s, s55, v8" % vr(O_VW), O_VW, [8])
    g.s("s_lshl_b32 %s, s3, 14" % sr(S_M0W))
    g.s("s_add_u32 %s, %s, %d" % (sr(S_M0W), sr(S_M0W), O_LDS))
    vop(g, "v_lshlrev_b32 v8, 2, v3", 8, [3])
    vop(g, "v_add_u32 v8, v8, v4", 8, [8, 4])
    vop(g, "v_bfe_u32 v9, v8, 1, 2", 9, [8])
    vop(g, "v_lshlrev_b32 v8, 7, v8", 8, [8])
    vop(g, "v_lshl_add_u32 v8, v5, 3, v8", 8, [8, 5])
    vop(g, "v_add_u32 v8, %s, v8" % sr(S_M0W), 8, [8])
    for t in range(4):
        vop(g, "v_xor_b32 v10, %d, v9" % t, 10, [9])
        vop(g, "v_lshl_add_u32 %s, v10, 5, v8" % vr(O_VA + t), O_VA + t, [10, 8])
    g.s("s_lshl_b32 s55, s42, 4")
    g.s("s_lshl_b32 s55, s55, 10")
    g.s("s_lshl_b32 s56, s6, 9")
    g.s("s_add_u32 s55, s55, s56")
    g.s("s_lshl_b32 s56, s41, 6")
    g.s("s_add_u32 s55, s55, s56")
    g.s("s_lshl_b32 s55, s55, 1")
    vop(g, "v_lshlrev_b32 v8, 11, v2", 8, [2])
    vop(g, "v_lshl_add_u32 v8, v3, 3, v8", 8, [3, 8])
    vop(g, "v_add_u32 %s, s55, v8" % vr(O_VO), O_VO, [8])
    vop(g, "v_mov_b32 %s, 0" % vr(O_VZ), O_VZ)


def gen_steal():
    g = Gen()
    A, B = O_VT, O_VT + 1
    g.label("steal")
    g.waitcnt(vm=0, lg=0)
    g.barrier()
    g.s("s_cmp_lg_u32 s3, 0")
    g.s("s_cbranch_scc1 steal_join")
    g.label("steal_retry")
    g.vload("buffer_load_dword %s, off, %s, %s sc1" % (vr(A), sr(SRD_DBG, 4), sr(S_GOFF)), "X", dst=[A])
    g.waitcnt(vm=0)
    g.valu("v_readfirstlane_b32 s55, %s" % vr(A), src=[A], readlane=True, sdst=[55])
    g.s("s_mov_b32 s56, -1")
    g.s("s_cmp_eq_u32 s55, -1")
    g.s("s_cbranch_scc1 steal_pub")
    g.s("s_ff0_i32_b32 s56, s55")
    g.s("s_lshl_b32 s57, 1, s56")
    vop(g, "v_mov_b32 %s, s57" % vr(A), A)
    g.s("s_mov_b64 exec, 1")
    g.vload("buffer_atomic_or %s, off, %s, %s sc0" % (vr(A), sr(SRD_DBG, 4), sr(S_GOFF)), "X", dst=[A])
    g.s("s_mov_b64 exec, -1")
    g.waitcnt(vm=0)
    g.valu("v_readfirstlane_b32 s55, %s" % vr(A), src=[A], readlane=True, sdst=[55])
    g.s("s_and_b32 s55, s55, s57")
    g.s("s_cmp_lg_u32 s55, 0")
    g.s("s_cbranch_scc1 steal_retry")
    g.label("steal_pub")
    vop(g, "v_mov_b32 %s, s56" % vr(A), A)
    vop(g, "v_mov_b32 %s, 0" % vr(B), B)
    g.dswrite("ds_write_b32 %s, %s" % (vr(B), vr(A)), "X", data=[A], addr=[B])
    g.waitcnt(lg=0)
    g.label("steal_join")
    g.barrier()
    vop(g, "v_mov_b32 %s, 0" % vr(B), B)
    g.dsread("ds_read_b32 %s, %s" % (vr(A), vr(B)), "X", dst=[A], addr=[B])
    g.waitcnt(lg=0)
    g.valu("v_readfirstlane_b32 s56, %s" % vr(A), src=[A], readlane=True, sdst=[56])
    g.barrier()
    g.s("s_cmp_eq_u32 s56, -1")
    g.s("s_cbranch_scc1 steal_none")
    g.s("s_lshl_b32 s56, s56, 3")
    g.s("s_and_b32 s57, %s, 7" % sr(S_ME))
    g.s("s_or_b32 s2, s56, s57")
    g.s("s_mov_b32 %s, 1" % sr(S_STOLEN))
    g.s("s_mov_b32 %s, 0" % sr(S_CL))
    g.s("s_branch job_start")
    g.label("steal_none")
    oproj_setup(g)
    g.s("s_branch oproj_pf")
    return g.text()


def gen_oproj():
    g = Gen()

    def oacc(t, u):
        return O_ACC + (t * 6 + u) * 4

    def bfr(s, u):
        return O_B + ((s % 3) * 6 + u) * 4

    g.label("attn_tail")
    g.nop(2)
    oproj_setup(g)
    g.s("s_lshl_b32 s57, 1, s43")
    vop(g, "v_mov_b32 %s, s57" % vr(O_VT), O_VT)
    vop(g, "v_mov_b32 %s, 1" % vr(O_VT + 3), O_VT + 3)
    g.waitcnt(vm=0)
    stamp(g, 0, V_T)
    g.s("s_and_b32 s55, %s, 63" % sr(S_PSEEN))
    g.s("s_cmp_eq_u32 s55, 32")
    g.s("s_cselect_b32 s55, -1, 0")
    vop(g, "v_mov_b32 %s, s55" % vr(V_MASK), V_MASK)
    g.s("s_mov_b64 exec, %s" % sr(S_W0, 2))
    g.dswrite("ds_write_b32 %s, %s" % (vr(O_VZ), vr(V_MASK)), "X", data=[V_MASK], addr=[O_VZ])
    g.s("s_mov_b64 exec, -1")
    g.valu("v_readfirstlane_b32 s55, %s" % vr(V_CLAIM), src=[V_CLAIM], readlane=True, sdst=[55])
    g.s("s_and_b32 s55, s55, s57")
    g.s("s_cmp_eq_u32 s55, 0")
    g.s("s_cselect_b32 s55, 1, %s" % sr(S_STOLEN))
    g.s("s_and_b32 s58, s55, %s" % sr(S_W0))
    g.s("s_mov_b32 s59, 0")
    g.waitcnt(lg=0)
    g.lgq = []
    g.barrier()
    if REL:
        g.s("s_cmp_lg_u32 s3, 0")
        g.s("s_cbranch_scc1 rel_skip")
        g.s("buffer_wbl2 sc1")
        g.waitcnt(vm=0)
        g.label("rel_skip")
    g.s("s_mov_b64 exec, %s" % sr(S_CL, 2))
    g.vstore("buffer_store_dword %s, off, %s, %s" % (vr(O_VT + 3), sr(SRD_WS, 4), sr(S_FOFF)), "FS", data=[O_VT + 3])
    g.s("s_mov_b64 exec, s[58:59]")
    g.vstore("buffer_atomic_add %s, off, %s, %s" % (vr(O_VT), sr(SRD_DBG, 4), sr(S_GOFF + 1)), "DN", data=[O_VT])
    g.s("s_mov_b64 exec, -1")
    g.dsread("ds_read_b32 %s, %s" % (vr(O_VT + 1), vr(O_VZ)), "X", dst=[O_VT + 1], addr=[O_VZ])
    g.waitcnt(lg=0)
    g.lgq = []
    g.valu("v_readfirstlane_b32 s55, %s" % vr(O_VT + 1), src=[O_VT + 1], readlane=True, sdst=[55])
    g.s("s_cmp_lg_u32 s55, -1")
    g.s("s_cbranch_scc1 steal")
    g.label("oproj_pf")

    def issue_w(c):
        if os.environ.get("ONOW") and c > 2:
            return
        for i in range(4):
            g.s("s_mov_b32 %s, %d" % (sr(S_WOFF), c * 32768 + i * 8192))
            g.s("s_add_u32 m0, %s, %d" % (sr(S_M0W), (c % 4) * 4096 + i * 1024), m0=True)
            g.vload("buffer_load_dwordx4 %s, %s, %s offen lds" % (vr(O_VW), sr(SRD_WO, 4), sr(S_WOFF)),
                    "W%d" % c, addr=[O_VW], lds=True)

    def issue_b(s):
        if os.environ.get("ONOB") and s > 2:
            return
        for u in range(6):
            g.s("s_mov_b32 %s, %d" % (sr(S_TMP), u * 131072 + (s >> 2) * 4096))
            d = bfr(s, u)
            g.vload("buffer_load_dwordx4 %s, %s, %s, %s offen offset:%d sc1" % (vr(d, 4), vr(O_VX), sr(SRD_WS, 4), sr(S_TMP), (s & 3) * 1024),
                    "B%d" % s, dst=rng(d, 4), addr=[O_VX])

    def tr_reads(s, t):
        for j in range(2):
            d = O_A + t * 4 + j * 2
            g.dsread("ds_read_b64_tr_b16 %s, %s offset:%d" % (vr(d, 2), vr(O_VA + t), (s % 4) * 4096 + j * 2048),
                     "A%d_%d" % (s, t), dst=rng(d, 2), addr=[O_VA + t])

    LATEW = int(os.environ.get("LATEW", "0"))
    if not LATEW:
        for c in range(3):
            issue_w(c)
    g.s("s_cmp_lg_u32 %s, %s" % (sr(S_PSEEN), sr(S_PEXP)))
    g.s("s_cbranch_scc1 oproj_slowpoll")
    g.s("s_lshl_b32 s55, %s, 6" % sr(S_GOFF))
    g.s("s_lshl_b32 s56, s3, 4")
    g.s("s_add_u32 s55, s55, s56")
    g.s("s_add_u32 %s, s55, %d" % (sr(S_FPOLL), FLG))
    P = O_VT + 4
    g.label("oproj_poll")
    g.vload("buffer_load_dwordx4 %s, off, %s, %s sc1" % (vr(P, 4), sr(SRD_WS, 4), sr(S_FPOLL)), "P", dst=rng(P, 4))
    g.waitcnt(vm=0)
    g.vmq = []
    vop(g, "v_and_b32 %s, %s, %s" % (vr(P), vr(P), vr(P + 1)), P, [P, P + 1])
    vop(g, "v_and_b32 %s, %s, %s" % (vr(P + 2), vr(P + 2), vr(P + 3)), P + 2, [P + 2, P + 3])
    vop(g, "v_and_b32 %s, %s, %s" % (vr(P), vr(P), vr(P + 2)), P, [P, P + 2])
    g.valu("v_readfirstlane_b32 s55, %s" % vr(P), src=[P], readlane=True, sdst=[55])
    g.s("s_cmp_eq_u32 s55, 1")
    g.s("s_cbranch_scc1 oproj_go")
    g.s("s_sleep %d" % SLEEP)
    g.s("s_branch oproj_poll")
    g.label("oproj_slowpoll")
    for i in range(int(os.environ.get("SLOWX", "0"))):
        g.s("s_sleep 127")
    g.s("s_lshl_b32 s56, s3, 2")
    g.vload("buffer_load_dword %s, off, %s, %s sc1" % (vr(O_VT + 2), sr(SRD_DBG, 4), sr(S_GOFF + 1)), "P", dst=[O_VT + 2])
    g.waitcnt(vm=0)
    g.vmq = []
    g.valu("v_readfirstlane_b32 s55, %s" % vr(O_VT + 2), src=[O_VT + 2], readlane=True, sdst=[55])
    g.s("s_lshr_b32 s55, s55, s56")
    g.s("s_and_b32 s55, s55, 15")
    g.s("s_cmp_eq_u32 s55, 15")
    g.s("s_cbranch_scc1 oproj_go")
    g.s("s_sleep 127")
    g.s("s_sleep 127")
    g.s("s_branch oproj_slowpoll")
    g.label("oproj_go")
    stamp(g, 0, V_T)
    for c in range(3):
        if LATEW:
            issue_w(c)
        issue_b(c)
    g.wait_vm("W0")
    for t in range(4):
        tr_reads(0, t)
    nsteps = 16
    for s in range(nsteps):
        g.comment("---- step %d" % s)
        OBAR = int(os.environ.get("OBAR", "0"))
        if OBAR and s % OBAR == 0 and s > 0:
            g.barrier()
        if s % 4 == 0:
            stamp(g, 0, V_T)
        if s + 3 < nsteps:
            issue_w(s + 3)
        for t in range(4):
            g.wait_lg("A%d_%d" % (s, t))
            if t == 0:
                g.wait_vm("B%d" % s)
            for u in range(6):
                g.mfma(oacc(t, u), O_A + t * 4, bfr(s, u), None if s == 0 else oacc(t, u))
            if s + 1 < nsteps:
                if t == 0:
                    g.wait_vm("W%d" % (s + 1))
                tr_reads(s + 1, t)
        if s + 3 < nsteps:
            issue_b(s + 3)
    stamp(g, 0, V_T)
    g.s("s_lshl_b32 s55, s3, 13")
    g.s("s_lshl_b32 s56, s3, 10")
    g.s("s_add_u32 s55, s55, %d" % O_LDS)
    g.s("s_add_u32 s56, s56, %d" % O_LDS)
    vop(g, "v_add_u32 %s, s55, %s" % (vr(O_VA), vr(O_VL)), O_VA, [O_VL])
    vop(g, "v_add_u32 %s, s56, %s" % (vr(O_VA + 1), vr(O_VL)), O_VA + 1, [O_VL])
    vop(g, "v_add_u32 %s, 0x10000, %s" % (vr(O_VA + 2), vr(O_VA)), O_VA + 2, [O_VA])
    vop(g, "v_add_u32 %s, 0x10000, %s" % (vr(O_VA + 3), vr(O_VA + 1)), O_VA + 3, [O_VA + 1])
    g.barrier()
    for ph in range(3):
        wa = O_VA + 2 * (ph & 1)
        ra = wa + 1
        for i in range(8):
            d = O_ACC + (8 * ph + i) * 4
            g.dswrite("ds_write_b128 %s, %s offset:%d" % (vr(wa), vr(d, 4), i * 1024), "RW", data=rng(d, 4), addr=[wa])
        g.wait_lg("RW")
        g.barrier()
        T = O_VT + 4
        for w2 in range(8):
            d = T + w2 * 4
            g.dsread("ds_read_b128 %s, %s offset:%d" % (vr(d, 4), vr(ra), w2 * 8192), "RR%d" % w2, dst=rng(d, 4), addr=[ra])
        for w2 in range(1, 8):
            g.wait_lg("RR%d" % w2)
            for h in range(2):
                d = T + h * 2
                s_ = T + w2 * 4 + h * 2
                g.valu("v_pk_add_f32 %s, %s, %s" % (vr(d, 2), vr(d, 2), vr(s_, 2)), dst=[d, d + 1], src=[d, d + 1, s_, s_ + 1])
        o = O_VT + 40 + ph * 2
        g.valu("v_cvt_pk_bf16_f32 %s, %s, %s" % (vr(o), vr(T), vr(T + 1)), dst=[o], src=[T, T + 1])
        g.valu("v_cvt_pk_bf16_f32 %s, %s, %s" % (vr(o + 1), vr(T + 2), vr(T + 3)), dst=[o + 1], src=[T + 2, T + 3])
        g.s("s_add_u32 s55, s3, %d" % (8 * ph))
        g.s("s_mul_i32 s56, s55, 43")
        g.s("s_lshr_b32 s56, s56, 8")
        g.s("s_mul_i32 s57, s56, 6")
        g.s("s_sub_u32 s57, s55, s57")
        g.s("s_lshl_b32 s57, s57, 15")
        g.s("s_lshl_b32 s56, s56, 5")
        g.s("s_add_u32 s57, s57, s56")
        g.vstore("buffer_store_dwordx2 %s, %s, %s, s57 offen" % (vr(o, 2), vr(O_VO), sr(SRD_OUT, 4)), "ST", data=rng(o, 2), addr=[O_VO])
    if STAMP:
        g.wait_vm("ST")
        stamp(g, 0, V_T)
    g.label("attn_end")
    g.s("s_endpgm")
    return g.text()


HEADER = """; Kernarg layout for this problem (104 bytes, ptrs only, base s[0:1]):
; @launch kernel=attn_kernel grid=(256,1,1) block=(512,1,1) lds=163840
.amdgcn_target "amdgcn-amd-amdhsa--gfx950"
.text
"""


def kernel_text(name, body):
    return (".globl %s\n.p2align 8\n.type %s,@function\n%s:\n" % (name, name, name)) + body


def kd(name, vgpr, sgpr):
    acc_off = (vgpr + 3) // 4 * 4
    return """.p2align 6
.amdhsa_kernel %s
  .amdhsa_next_free_vgpr %d
  .amdhsa_next_free_sgpr %d
  .amdhsa_accum_offset %d
  .amdhsa_group_segment_fixed_size 0
  .amdhsa_kernarg_size 104
  .amdhsa_user_sgpr_count 2
  .amdhsa_user_sgpr_kernarg_segment_ptr 1
  .amdhsa_system_sgpr_workgroup_id_x 1
.end_amdhsa_kernel
""" % (name, vgpr, sgpr, acc_off)


def main():
    out = HEADER
    out += kernel_text("attn_kernel", gen_attn() + gen_steal() + gen_oproj())
    out += '.section .rodata,"a"\n'
    out += kd("attn_kernel", 256, 96)
    path = sys.argv[1] if len(sys.argv) > 1 else "cdna_kernels/%s.s" % NAME
    open(path, "w").write(out)
    print("wrote", path, len(out), "bytes")


if __name__ == "__main__":
    main()
```

```python
import sys, os
sys.path.insert(0, os.path.dirname(os.path.abspath(__file__)))
from asmgen import Gen, vr, sr

NAME = "concat_heads__gqa_block_cached__gqa_block_cached__near_ridge"
O_BLOCK_BYTES = 1536 * 4096 * 2
WS_BYTES = 268435456

STAMP = int(os.environ.get("STAMP", "0"))
STAMP_BASE = 200 * 1024 * 1024
NT = os.environ.get("NT", " nt")
TOUCH = int(os.environ.get("TOUCH", "1"))
TWAIT = int(os.environ.get("TWAIT", "1"))
WOPF = int(os.environ.get("WOPF", "2"))
OTOUCH = int(os.environ.get("OTOUCH", "0"))
_stamp_n = [0]

S_WAVE = 3
SRD_X = 20
SRD_K = 24
SRD_V = 28
SRD_W = 32
SRD_WS = 36
SRD_OUT = 76
SRD_WO = 64
SRD_DBG = 72
S_ME = 70
S_STOLEN = 71
S_GOFF = 84
S_W0 = 86
S_CL = 88
S_PADD = 91
S_PEXP = 92
S_PSEEN = 93
S_FOFF = 94
S_FPOLL = 95
FLG = 64 * 1024 * 1024
REL = int(os.environ.get("REL", "0"))
KVS = [int(x) for x in os.environ.get("KVS", "").split(",") if x]
VLATE = int(os.environ.get("VLATE", "0"))
KV2 = [[int(c, 16) for c in x] for x in os.environ.get("KV2", "").split(",") if x]
O_LDS = 32768
SLEEP = int(os.environ.get("SLEEP", "8"))
FORCE_STEAL = int(os.environ.get("FORCE_STEAL", "0"))
S_M0W = 46
S_TMP = 47
S_WOFF = 48
S_M0V = 49
S_SC = 50
S_L2E = 52
S_W4K = 54
S_B8K = 57


def rng(a, n):
    return list(range(a, a + n))


def stamp(g, kid, vt):
    if not STAMP:
        return
    n = _stamp_n[0]
    _stamp_n[0] += 1
    g.s("s_memrealtime s[60:61]" if os.environ.get("REAL") else "s_memtime s[60:61]")
    g.waitcnt(lg=0)
    g.lgq = []
    g.s("s_lshl_b32 s62, s70, 8")
    g.s("s_add_u32 s62, s62, %d" % (STAMP_BASE + kid * 131072 + n * 8))
    g.s("s_mul_i32 s63, s3, 1048576")
    g.s("s_add_u32 s62, s62, s63")
    g.valu("v_mov_b32 %s, s60" % vr(vt), dst=[vt])
    g.valu("v_mov_b32 %s, s61" % vr(vt + 1), dst=[vt + 1])
    g.valu("v_mov_b32 %s, s62" % vr(vt + 2), dst=[vt + 2])
    g.s("s_mov_b64 s[58:59], exec")
    g.s("s_mov_b64 exec, 1")
    g.vstore("buffer_store_dwordx2 %s, %s, %s, 0 offen" % (vr(vt, 2), vr(vt + 2), sr(SRD_WS, 4)), "STAMP", data=[vt, vt + 1], addr=[vt + 2])
    g.s("s_mov_b64 exec, s[58:59]")


def make_srd(g, srd, ptr, nbytes):
    g.s("s_mov_b32 %s, %s" % (sr(srd), sr(ptr)))
    g.s("s_and_b32 %s, %s, 0xffff" % (sr(srd + 1), sr(ptr + 1)))
    g.s("s_mov_b32 %s, %d" % (sr(srd + 2), nbytes))
    g.s("s_mov_b32 %s, 0x00020000" % sr(srd + 3))


def vop(g, text, dst, src=()):
    g.valu(text, dst=[dst] if isinstance(dst, int) else dst, src=src)


def lane_setup(g):
    vop(g, "v_mov_b32 v1, %s" % vr(V_LANE), 1, [V_LANE])
    vop(g, "v_and_b32 v2, 15, v1", 2, [1])
    vop(g, "v_lshrrev_b32 v3, 4, v1", 3, [1])
    vop(g, "v_bfe_u32 v4, v1, 2, 2", 4, [1])
    vop(g, "v_and_b32 v5, 3, v1", 5, [1])
    vop(g, "v_and_b32 v6, 1, v3", 6, [3])
    vop(g, "v_lshlrev_b32 v6, 2, v6", 6, [6])
    vop(g, "v_or_b32 v6, v6, v4", 6, [6, 4])


def pack_pair(g, lo, hi):
    g.valu("v_cvt_pk_bf16_f32 %s, %s, %s" % (vr(lo), vr(lo), vr(lo + 1)), dst=[lo], src=[lo, lo + 1])
    g.valu("v_cvt_pk_bf16_f32 %s, %s, %s" % (vr(lo + 1), vr(lo + 2), vr(lo + 3)), dst=[lo + 1], src=[lo + 2, lo + 3])
    g.valu("v_cvt_pk_bf16_f32 %s, %s, %s" % (vr(lo + 2), vr(hi), vr(hi + 1)), dst=[lo + 2], src=[hi, hi + 1])
    g.valu("v_cvt_pk_bf16_f32 %s, %s, %s" % (vr(lo + 3), vr(hi + 2), vr(hi + 3)), dst=[lo + 3], src=[hi + 2, hi + 3])


def xlane_reduce(g, m, tmp, op):
    for sw in ("v_permlane32_swap_b32", "v_permlane16_swap_b32"):
        vop(g, "v_mov_b32 %s, %s" % (vr(tmp), vr(m)), tmp, [m])
        g.valu("%s %s, %s" % (sw, vr(m), vr(tmp)), dst=[m, tmp], src=[m, tmp], permlane=True)
        vop(g, "%s %s, %s, %s" % (op, vr(m), vr(m), vr(tmp)), m, [m, tmp])


R_ACC = 0
R_A = 96
R_B = 128
R_F = 164
R_K = 188
V_A = 236
V_X = 244
V_W = 245
V_BP = 246
V_VD0 = 247
V_VD1 = 248
V_K = 249
V_LANE = 250
V_CLAIM = 251
V_T = 252
V_KW = R_B + 36
V_KR = R_B + 37
V_WO = R_B + 38
V_O = R_B + 39
V_DELTA = R_B + 40
T0 = R_B + 41
V_MASK = R_B + 47
A_V_LDS = 65536
NSLOT = 8
NB = 3
XD = int(os.environ.get("XD", "1"))
V_X2 = R_F


def acc(t, u):
    return R_ACC + (t * 3 + u) * 4


def bstage(s, u):
    return R_B + ((s % NB) * 3 + u) * 4


def bfrag(s, u):
    if u < XD:
        return bstage(s, u)
    return R_F + ((s % 2) * 3 + u) * 4


def post_gemm_addrs(g):
    L, Q, G, R, C, A, B = V_LANE, T0, T0 + 1, T0 + 2, T0 + 3, T0 + 4, T0 + 5
    v = vr
    vop(g, "v_and_b32 %s, 15, %s" % (v(Q), v(L)), Q, [L])
    vop(g, "v_lshrrev_b32 %s, 4, %s" % (v(G), v(L)), G, [L])
    vop(g, "v_bfe_u32 %s, %s, 2, 2" % (v(R), v(L)), R, [L])
    vop(g, "v_and_b32 %s, 3, %s" % (v(C), v(L)), C, [L])
    vop(g, "v_xor_b32 %s, %s, %s" % (v(A), v(Q), v(G)), A, [Q, G])
    vop(g, "v_lshlrev_b32 %s, 4, %s" % (v(A), v(A)), A, [A])
    vop(g, "v_lshl_add_u32 %s, %s, 8, %s" % (v(A), v(G), v(A)), A, [G, A])
    g.s("s_lshl_b32 s55, s3, 13")
    vop(g, "v_add_u32 %s, s55, %s" % (v(V_KW), v(A)), V_KW, [A])
    vop(g, "v_lshrrev_b32 %s, 1, %s" % (v(A), v(G)), A, [G])
    vop(g, "v_xor_b32 %s, %s, %s" % (v(A), v(A), v(Q)), A, [A, Q])
    vop(g, "v_lshlrev_b32 %s, 4, %s" % (v(A), v(A)), A, [A])
    vop(g, "v_lshl_add_u32 %s, %s, 8, %s" % (v(A), v(Q), v(A)), A, [Q, A])
    vop(g, "v_and_b32 %s, 1, %s" % (v(B), v(G)), B, [G])
    vop(g, "v_lshl_add_u32 %s, %s, 3, %s" % (v(A), v(B), v(A)), A, [A, B])
    g.s("s_lshl_b32 s55, s41, 14")
    vop(g, "v_add_u32 %s, s55, %s" % (v(V_KR), v(A)), V_KR, [A])
    g.s("s_mul_i32 s55, s41, 24576")
    g.s("s_add_u32 s55, s55, %d" % A_V_LDS)
    vop(g, "v_lshlrev_b32 %s, 10, %s" % (v(A), v(G)), A, [G])
    vop(g, "v_sub_u32 %s, s55, %s" % (v(V_DELTA), v(A)), V_DELTA, [A])
    g.s("s_mul_i32 s55, s44, 6")
    g.s("s_mul_i32 s56, s42, 3")
    g.s("s_add_u32 s55, s55, s56")
    g.s("s_lshl_b32 s55, s55, 7")
    g.s("s_lshl_b32 s56, s43, 2")
    g.s("s_add_u32 s55, s55, s56")
    g.s("s_lshl_b32 s55, s55, 10")
    g.s("s_mul_i32 s56, s6, %d" % O_BLOCK_BYTES)
    g.s("s_add_u32 s55, s55, s56")
    vop(g, "v_lshlrev_b32 %s, 4, %s" % (v(A), v(L)), A, [L])
    vop(g, "v_add_u32 %s, s55, %s" % (v(V_O), v(A)), V_O, [A])
    g.s("s_and_b32 s55, s2, 3")
    g.s("s_lshl_b32 s55, s55, 5")
    g.s("s_lshr_b32 s56, s2, 3")
    g.s("s_add_u32 s55, s55, s56")
    g.s("s_lshl_b32 s55, s55, 3")
    g.s("s_add_u32 s55, s55, s3")
    g.s("s_lshl_b32 s55, s55, 12")
    vop(g, "v_lshlrev_b32 %s, 6, %s" % (v(A), v(L)), A, [L])
    vop(g, "v_add_u32 %s, s55, %s" % (v(V_WO), v(A)), V_WO, [A])


def attn_body(g, kv_first):
    def tr_reads(s, t):
        if os.environ.get("NOTR") and s > 0:
            return
        for j in range(2):
            d = R_A + t * 4 + j * 2
            g.dsread("ds_read_b64_tr_b16 %s, %s offset:%d" % (vr(d, 2), vr(V_A + t), (s % NSLOT) * 8192 + j * 1024),
                     "A%d_%d" % (s, t), dst=rng(d, 2), addr=[V_A + t])

    def issue_w(c):
        if os.environ.get("NOW") and c > 1:
            return
        g.s("s_mov_b32 %s, %d" % (sr(S_WOFF), c * 262144))
        g.s("s_add_u32 m0, %s, %d" % (sr(S_M0W), (c % NSLOT) * 8192), m0=True)
        g.vload("buffer_load_dwordx4 %s, %s, %s offen lds" % (vr(V_W), sr(SRD_W, 4), sr(S_WOFF)),
                "W%d" % c, addr=[V_W], lds=True)

    def issue_b(s):
        if os.environ.get("NOX") and s > 3:
            return
        for u in range(3):
            g.s("s_mov_b32 %s, %d" % (sr(S_TMP), u * 16384))
            d = bstage(s, u)
            va = V_X2 if u < XD else V_X
            g.vload("buffer_load_dwordx4 %s, %s, %s, %s offen offset:%d" % (vr(d, 4), vr(va), sr(SRD_X, 4), sr(S_TMP), s * 64),
                    "B%d" % s, dst=rng(d, 4), addr=[va])

    def perm_b(s, lo=0, hi=12):
        if os.environ.get("NOPERM") and s > 1:
            return
        if lo == 0:
            g.wait_vm("B%d" % s)
        for i in range(lo, hi):
            u, r = i // 4, i % 4
            if u < XD:
                continue
            d = bfrag(s, u) + r
            a = bstage(s, u) + r
            g.dsread("ds_bpermute_b32 %s, %s, %s" % (vr(d), vr(V_BP), vr(a)), "F%d" % s, dst=[d], addr=[V_BP, a])

    def issue_k(i):
        g.s("s_mov_b32 %s, %d" % (sr(S_TMP), i * 4096))
        for m in range(4):
            d = R_K + (i * 4 + m) * 4
            g.vload("buffer_load_dwordx4 %s, %s, %s, %s offen offset:%d%s" % (vr(d, 4), vr(V_K), sr(SRD_K, 4), sr(S_TMP), m * 1024, NT),
                    "K%d" % i, dst=rng(d, 4), addr=[V_K])

    def issue_v(i):
        g.s("s_mov_b32 %s, %d" % (sr(S_TMP), i * 1024))
        g.s("s_add_u32 m0, %s, %d" % (sr(S_M0V), i * 1024), m0=True)
        g.vload("buffer_load_dwordx4 %s, %s, %s offen%s lds" % (vr(V_VD0 + (i & 1)), sr(SRD_V, 4), sr(S_TMP), NT),
                "V", addr=[V_VD0 + (i & 1)], lds=True)

    def issue_kv():
        if os.environ.get("NOKV"):
            return
        for i in range(3):
            issue_k(i)
        for i in range(12):
            issue_v(i)

    def issue_k1(i, m):
        g.s("s_mov_b32 %s, %d" % (sr(S_TMP), i * 4096))
        d = R_K + (i * 4 + m) * 4
        g.vload("buffer_load_dwordx4 %s, %s, %s, %s offen offset:%d%s" % (vr(d, 4), vr(V_K), sr(SRD_K, 4), sr(S_TMP), m * 1024, NT),
                "K%d" % i, dst=rng(d, 4), addr=[V_K])

    kvops = [(lambda i=i, m=m: issue_k1(i, m)) for i in range(3) for m in range(4)] + [(lambda i=i: issue_v(i)) for i in range(12)]

    def trickle(n):
        for _ in range(n):
            if kvops:
                kvops.pop(0)()

    stamp(g, 0, V_T)
    sched = KV2[int(kv_first)] if KV2 else None
    if kv_first:
        if TWAIT:
            g.wait_vm("TCH")
        if sched:
            trickle(sched[0])
        else:
            issue_kv()
    for c in range(NSLOT - 1):
        issue_w(c)
        if c < NB:
            issue_b(c)
    if KVS:
        trickle(KVS[0])
    nsteps = 16
    g.wait_vm("W0")
    g.s("s_mov_b64 exec, %s" % sr(S_CL, 2))
    g.vload("buffer_atomic_or %s, off, %s, %s sc0" % (vr(V_CLAIM), sr(SRD_DBG, 4), sr(S_GOFF)), "CL", dst=[V_CLAIM])
    vop(g, "v_mov_b32 %s, %s" % (vr(V_T + 2), sr(S_PADD)), V_T + 2)
    g.vstore("buffer_atomic_add %s, off, %s, %s offset:64" % (vr(V_T + 2), sr(SRD_DBG, 4), sr(S_GOFF)), "CL", data=[V_T + 2])
    g.s("s_mov_b64 exec, -1")
    g.barrier()
    for t in range(8):
        tr_reads(0, t)
    perm_b(0)
    for s in range(nsteps):
        g.comment("---- gemm step %d" % s)
        if s + 1 < nsteps:
            g.wait_vm("W%d" % (s + 1))
            g.barrier()
        if s % 4 == 0:
            stamp(g, 0, V_T)
        if s + NSLOT - 1 < nsteps:
            issue_w(s + NSLOT - 1)
        pcut = [[0, 2, 4, 6, 8, 9, 10, 11, 12], [0, 5, 6, 7, 8, 9, 10, 11, 12], [0, 9, 9, 10, 10, 11, 11, 12, 12], [0, 12, 12, 12, 12, 12, 12, 12, 12]][XD]
        for t in range(8):
            g.wait_lg("A%d_%d" % (s, t))
            if t == 0:
                g.wait_lg("F%d" % s)
            for u in range(3):
                g.mfma(acc(t, u), R_A + t * 4, bfrag(s, u), None if s == 0 else acc(t, u))
            if s + 1 < nsteps:
                tr_reads(s + 1, t)
                perm_b(s + 1, pcut[t], pcut[t + 1])
        if s + NB < nsteps:
            g.wait_lg("F%d" % (s + 1))
            issue_b(s + NB)
        if sched:
            trickle(24 if s == nsteps - 1 else sched[s + 1])
        elif KVS:
            trickle(KVS[s + 1] if s + 1 < len(KVS) else (24 if s == nsteps - 1 else 0))
        elif s == nsteps - NB - 1 and not kv_first:
            issue_kv()

    post_gemm_addrs(g)
    if WOPF == 2:
        g.vload("buffer_load_dword %s, %s, %s, 0 offen" % (vr(V_T + 3), vr(V_WO), sr(SRD_WO, 4)), "TCH", dst=[V_T + 3], addr=[V_WO])
    if WOPF == 3:
        vop(g, "v_and_b32 %s, 0xfffff, %s" % (vr(V_WO), vr(V_WO)), V_WO, [V_WO])
        for i in range(4):
            g.s("s_mov_b32 %s, %d" % (sr(S_TMP), i << 20))
            g.vload("buffer_load_dword %s, %s, %s, %s offen" % (vr(V_T + 3), vr(V_WO), sr(SRD_WO, 4), sr(S_TMP)), "TCH", dst=[V_T + 3], addr=[V_WO])
    stamp(g, 0, V_T)
    for p in range(4):
        for u in range(3):
            pack_pair(g, acc(2 * p, u), acc(2 * p + 1, u))
    KA = R_B + 24
    KW = R_B + 32
    for m in range(4):
        vop(g, "v_xor_b32 %s, %d, %s" % (vr(KW + m), m * 64, vr(V_KW)), KW + m, [V_KW])
    for c in range(8):
        vop(g, "v_xor_b32 %s, %d, %s" % (vr(KA + c), c * 32, vr(V_KR)), KA + c, [V_KR])

    def sacc(kt, u):
        i = kt * 3 + u
        if i < 12:
            return acc(1 + 2 * (i // 3), i % 3)
        return R_B + (i - 12) * 4

    def k_write(i, slot_off):
        g.wait_vm("K%d" % i)
        for m in range(4):
            d = R_K + (i * 4 + m) * 4
            g.dswrite("ds_write_b128 %s, %s offset:%d" % (vr(KW + m), vr(d, 4), slot_off + m * 1024), "KW", data=rng(d, 4), addr=[KW + m])

    def k_reads(n, slot_off):
        for p in range(4):
            for j in range(2):
                d = R_A + ((n & 1) * 4 + p) * 4 + 2 * j
                g.dsread("ds_read_b64 %s, %s offset:%d" % (vr(d, 2), vr(KA + 2 * p + j), slot_off), "KF%d_%d" % (n, p), dst=rng(d, 2), addr=[KA + 2 * p + j])

    def s_tile(n, kt):
        for p in range(4):
            g.wait_lg("KF%d_%d" % (n, p))
            for u in range(3):
                g.mfma(sacc(kt, u), R_A + ((n & 1) * 4 + p) * 4, acc(2 * p, u), None if p == 0 else sacc(kt, u))

    g.barrier()
    k_write(0, 0)
    k_write(1, 4096)
    g.wait_lg("KW")
    g.barrier()
    r1 = [0, 1, 3, 4]
    k_reads(0, 0)
    for n in range(4):
        if n + 1 < 4:
            k_reads(n + 1, (n + 1) * 4096)
        s_tile(n, r1[n])
    g.barrier()
    for m in range(4):
        vop(g, "v_subrev_u32 %s, %s, %s" % (vr(KW + m), sr(S_W4K), vr(KW + m)), KW + m, [KW + m])
    for c in range(8):
        vop(g, "v_subrev_u32 %s, %s, %s" % (vr(KA + c), sr(S_B8K), vr(KA + c)), KA + c, [KA + c])
    k_write(2, 0)
    g.wait_lg("KW")
    g.barrier()
    k_reads(4, 0)
    k_reads(5, 4096)
    s_tile(4, 2)
    s_tile(5, 5)
    stamp(g, 0, V_T)
    def v_reads(pp, t):
        for j in range(2):
            d = R_A + t * 4 + j * 2
            g.dsread("ds_read_b64_tr_b16 %s, %s offset:%d" % (vr(d, 2), vr(V_A + t), pp * 8192 + j * 4096),
                     "VT%d_%d" % (pp, t), dst=rng(d, 2), addr=[V_A + t])

    def v_ready():
        g.comment("---- V ready barrier, V addresses")
        g.wait_vm("V")
        g.barrier()
        for t in range(8):
            v_reads(0, t)

    for t in range(8):
        vop(g, "v_add_u32 %s, %s, %s" % (vr(V_A + t), vr(V_A + t), vr(V_DELTA)), V_A + t, [V_A + t, V_DELTA])
    if not VLATE:
        v_ready()
    g.vload("buffer_load_dword %s, off, %s, %s offset:64 sc1" % (vr(V_MASK), sr(SRD_DBG, 4), sr(S_GOFF)), "MK", dst=[V_MASK])
    stamp(g, 0, V_T)

    def pfrag(pp, u):
        return R_K + (pp * 3 + u) * 4
    TMP = R_K + 36
    for u in range(3):
        a, b = TMP, TMP + 1
        for kt in range(6):
            r = sacc(kt, u)
            for rep in range(2):
                g.valu("v_cvt_pk_bf16_f32 %s, %s, %s" % (vr(a), vr(r), vr(r + 1)), dst=[a], src=[r, r + 1])
                g.valu("v_cvt_pk_bf16_f32 %s, %s, %s" % (vr(b), vr(r + 2), vr(r + 3)), dst=[b], src=[r + 2, r + 3])
                vop(g, "v_lshlrev_b32 %s, 16, %s" % (vr(r), vr(a)), r, [a])
                vop(g, "v_and_b32 %s, 0xffff0000, %s" % (vr(r + 1), vr(a)), r + 1, [a])
                vop(g, "v_lshlrev_b32 %s, 16, %s" % (vr(r + 2), vr(b)), r + 2, [b])
                vop(g, "v_and_b32 %s, 0xffff0000, %s" % (vr(r + 3), vr(b)), r + 3, [b])
                if rep == 0:
                    g.valu("v_pk_mul_f32 %s, %s, %s" % (vr(r, 2), vr(r, 2), sr(S_SC, 2)), dst=[r, r + 1], src=[r, r + 1])
                    g.valu("v_pk_mul_f32 %s, %s, %s" % (vr(r + 2, 2), vr(r + 2, 2), sr(S_SC, 2)), dst=[r + 2, r + 3], src=[r + 2, r + 3])
        vals = [sacc(kt, u) + r for kt in range(6) for r in range(4)]
        m = TMP + 2
        vop(g, "v_max3_f32 %s, %s, %s, %s" % (vr(m), vr(vals[0]), vr(vals[1]), vr(vals[2])), m, vals[0:3])
        i = 3
        while i < 24:
            if i + 1 < 24:
                vop(g, "v_max3_f32 %s, %s, %s, %s" % (vr(m), vr(m), vr(vals[i]), vr(vals[i + 1])), m, [m, vals[i], vals[i + 1]])
                i += 2
            else:
                vop(g, "v_max_f32 %s, %s, %s" % (vr(m), vr(m), vr(vals[i])), m, [m, vals[i]])
                i += 1
        xlane_reduce(g, m, TMP + 3, "v_max_f32")
        for v in vals:
            vop(g, "v_sub_f32 %s, %s, %s" % (vr(v), vr(v), vr(m)), v, [v, m])
        for k in range(0, 24, 2):
            v = vals[k]
            g.valu("v_pk_mul_f32 %s, %s, %s" % (vr(v, 2), vr(v, 2), sr(S_L2E, 2)), dst=[v, v + 1], src=[v, v + 1])
        for v in vals:
            g.valu("v_exp_f32 %s, %s" % (vr(v), vr(v)), dst=[v], src=[v], trans=True)
        sm = TMP + 4
        g.valu("v_pk_add_f32 %s, %s, %s" % (vr(sm, 2), vr(vals[0], 2), vr(vals[2], 2)), dst=[sm, sm + 1], src=vals[0:4])
        for k in range(4, 24, 2):
            g.valu("v_pk_add_f32 %s, %s, %s" % (vr(sm, 2), vr(sm, 2), vr(vals[k], 2)), dst=[sm, sm + 1], src=[sm, sm + 1, vals[k], vals[k] + 1])
        vop(g, "v_add_f32 %s, %s, %s" % (vr(sm), vr(sm), vr(sm + 1)), sm, [sm, sm + 1])
        xlane_reduce(g, sm, TMP + 3, "v_add_f32")
        g.valu("v_rcp_f32 %s, %s" % (vr(sm), vr(sm)), dst=[sm], src=[sm], trans=True)
        vop(g, "v_mov_b32 %s, %s" % (vr(sm + 1), vr(sm)), sm + 1, [sm])
        for k in range(0, 24, 2):
            v = vals[k]
            g.valu("v_pk_mul_f32 %s, %s, %s" % (vr(v, 2), vr(v, 2), vr(sm, 2)), dst=[v, v + 1], src=[v, v + 1, sm, sm + 1])
        for pp in range(3):
            d = pfrag(pp, u)
            lo, hi = sacc(2 * pp, u), sacc(2 * pp + 1, u)
            g.valu("v_cvt_pk_bf16_f32 %s, %s, %s" % (vr(d), vr(lo), vr(lo + 1)), dst=[d], src=[lo, lo + 1])
            g.valu("v_cvt_pk_bf16_f32 %s, %s, %s" % (vr(d + 1), vr(lo + 2), vr(lo + 3)), dst=[d + 1], src=[lo + 2, lo + 3])
            g.valu("v_cvt_pk_bf16_f32 %s, %s, %s" % (vr(d + 2), vr(hi), vr(hi + 1)), dst=[d + 2], src=[hi, hi + 1])
            g.valu("v_cvt_pk_bf16_f32 %s, %s, %s" % (vr(d + 3), vr(hi + 2), vr(hi + 3)), dst=[d + 3], src=[hi + 2, hi + 3])
    if VLATE:
        v_ready()
    stamp(g, 0, V_T)
    for pp in range(3):
        for t in range(8):
            g.wait_lg("VT%d_%d" % (pp, t))
            for u in range(3):
                g.mfma(acc(t, u), R_A + t * 4, pfrag(pp, u), None if pp == 0 else acc(t, u))
            if pp < 2:
                v_reads(pp + 1, t)
    stamp(g, 0, V_T)
    if WOPF == 1:
        g.vload("buffer_load_dword %s, %s, %s, 0 offen" % (vr(V_T + 3), vr(V_WO), sr(SRD_WO, 4)), "TCH", dst=[V_T + 3], addr=[V_WO])
    for p in range(4):
        for u in range(3):
            pack_pair(g, acc(2 * p, u), acc(2 * p + 1, u))
    g.wait_vm("MK")
    g.valu("v_readfirstlane_b32 %s, %s" % (sr(S_PSEEN), vr(V_MASK)), src=[V_MASK], readlane=True, sdst=[S_PSEEN])
    lab = "st_wt_%d" % int(kv_first)
    if not REL:
        g.s("s_cmp_lg_u32 %s, %s" % (sr(S_PSEEN), sr(S_PEXP)))
        g.s("s_cbranch_scc1 %s" % lab)
    q0 = list(g.vmq)
    for fl in ("", " sc1"):
        if fl:
            if REL:
                break
            g.label(lab)
            g.vmq = list(q0)
        for p in range(4):
            for u in range(3):
                g.s("s_mov_b32 %s, %d" % (sr(S_TMP), u * 131072))
                d = acc(2 * p, u)
                g.vstore("buffer_store_dwordx4 %s, %s, %s, %s offen offset:%d%s" % (vr(d, 4), vr(V_O), sr(SRD_WS, 4), sr(S_TMP), p * 1024, fl),
                         "ST", data=rng(d, 4), addr=[V_O])
        g.s("s_branch attn_tail")


def gen_attn():
    g = Gen()
    g.s("s_cmp_ge_u32 s2, 256")
    g.s("s_cbranch_scc1 attn_end")
    vop(g, "v_lshrrev_b32 v7, 6, v0", 7, [0])
    vop(g, "v_and_b32 %s, 63, v0" % vr(V_LANE), V_LANE, [0])
    g.valu("v_readfirstlane_b32 %s, v7" % sr(S_WAVE), src=[7], readlane=True, sdst=[S_WAVE])
    g.s("s_mov_b32 %s, s2" % sr(S_ME))
    g.s("s_mov_b32 %s, 0" % sr(S_STOLEN))
    g.s("s_mov_b32 %s, 0" % sr(S_PSEEN))
    g.s("s_load_dwordx4 s[80:83], s[0:1], 80")
    g.s("s_getreg_b32 s4, hwreg(HW_REG_XCC_ID, 0, 4)")
    g.s("s_mul_i32 s5, s4, s4")
    g.s("s_lshl_b32 s5, s5, 16")
    g.s("s_lshl_b32 s4, s4, 6")
    g.s("s_add_u32 s4, s4, s5")
    g.s("s_add_u32 %s, s4, 1" % sr(S_PADD))
    g.s("s_lshl_b32 %s, %s, 5" % (sr(S_PEXP), sr(S_PADD)))
    g.nop(4)
    g.s("s_cmp_eq_u32 s3, 0")
    g.s("s_cselect_b32 %s, 1, 0" % sr(S_W0))
    g.s("s_mov_b32 %s, 0" % sr(S_W0 + 1))
    g.s("s_mov_b32 %s, %s" % (sr(S_CL), sr(S_W0)))
    g.s("s_mov_b32 %s, 0" % sr(S_CL + 1))
    if FORCE_STEAL:
        g.s("s_bfe_u32 s4, s2, 0x30005")
        g.s("s_cmp_eq_u32 s4, %d" % (FORCE_STEAL - 1))
        g.s("s_cselect_b32 s90, 1, 0")
    g.label("job_start")
    lane_setup(g)
    g.s("s_bfe_u32 s6, s2, 0x10002")
    g.s("s_and_b32 s5, s2, 3")
    g.s("s_lshr_b32 s43, s2, 3")
    g.s("s_and_b32 s40, s43, 1")
    g.s("s_mul_i32 s16, s6, 40")
    g.s("s_add_u32 s18, s0, s16")
    g.s("s_addc_u32 s19, s1, 0")
    g.s("s_load_dwordx8 s[8:15], s[18:19], 0")
    g.s("s_load_dwordx2 s[16:17], s[0:1], 96")
    g.s("s_load_dwordx2 s[68:69], s[18:19], 32")
    g.s("s_lshr_b32 s41, s3, 1")
    g.s("s_and_b32 s42, s3, 1")
    g.s("s_lshl_b32 s44, s5, 2")
    g.s("s_add_u32 s44, s44, s41")
    g.s("s_lshl_b32 s45, s44, 5")
    g.s("s_add_u32 s45, s45, s43")
    g.s("s_mul_i32 s45, s45, 24576")
    g.s("s_mov_b32 %s, 0x3db504f3" % sr(S_SC))
    g.s("s_mov_b32 %s, 0x3db504f3" % sr(S_SC + 1))
    g.s("s_mov_b32 %s, 0x3fb8aa3b" % sr(S_L2E))
    g.s("s_mov_b32 %s, 0x3fb8aa3b" % sr(S_L2E + 1))
    g.s("s_mul_i32 s55, s44, 98304")
    g.s("s_mul_i32 s56, s42, 49152")
    g.s("s_add_u32 s55, s55, s56")
    vop(g, "v_lshrrev_b32 v8, 2, v1", 8, [1])
    vop(g, "v_lshlrev_b32 v8, 10, v8", 8, [8])
    vop(g, "v_lshl_add_u32 v8, v5, 4, v8", 8, [5, 8])
    vop(g, "v_add_u32 %s, s55, v8" % vr(V_X), V_X, [8])
    if XD:
        vop(g, "v_lshlrev_b32 v8, 10, v2", 8, [2])
        vop(g, "v_lshl_add_u32 v8, v3, 4, v8", 8, [3, 8])
        vop(g, "v_add_u32 %s, s55, v8" % vr(V_X2), V_X2, [8])
    g.s("s_mul_i32 s55, s42, 12288")
    g.s("s_add_u32 s55, s55, s45")
    vop(g, "v_lshlrev_b32 v8, 4, v1", 8, [1])
    vop(g, "v_add_u32 %s, s55, v8" % vr(V_K), V_K, [8])
    g.s("s_lshl_b32 %s, s3, 12" % sr(S_W4K))
    g.s("s_lshl_b32 %s, s41, 13" % sr(S_B8K))
    g.s("s_mul_i32 s55, s42, 12288")
    g.s("s_add_u32 s55, s55, s45")
    for par in range(2):
        vop(g, "v_add_u32 v8, %d, v3" % (4 * par), 8, [3])
        vop(g, "v_lshlrev_b32 v8, 1, v8", 8, [8])
        vop(g, "v_xor_b32 v8, v8, v2", 8, [8, 2])
        vop(g, "v_lshlrev_b32 v8, 4, v8", 8, [8])
        vop(g, "v_lshl_add_u32 v8, v3, 8, v8", 8, [3, 8])
        vop(g, "v_add_u32 %s, s55, v8" % vr(V_VD0 + par), V_VD0 + par, [8])
    g.s("s_and_b32 s55, s41, 1")
    g.s("s_lshl_b32 s55, s55, 2")
    vop(g, "v_or_b32 v8, s55, v3", 8, [3])
    vop(g, "v_lshlrev_b32 v8, 1, v8", 8, [8])
    vop(g, "v_xor_b32 v8, v8, v2", 8, [8, 2])
    vop(g, "v_lshlrev_b32 v8, 4, v8", 8, [8])
    vop(g, "v_lshl_add_u32 v8, v3, 13, v8", 8, [3, 8])
    g.s("s_lshl_b32 s55, s3, 15")
    g.s("s_lshl_b32 s56, s43, 8")
    g.s("s_add_u32 s55, s55, s56")
    vop(g, "v_add_u32 %s, s55, v8" % vr(V_W), V_W, [8])
    g.s("s_lshl_b32 %s, s3, 10" % sr(S_M0W))
    vop(g, "v_lshlrev_b32 v8, 3, v3", 8, [3])
    vop(g, "v_add_u32 v8, v8, v4", 8, [8, 4])
    vop(g, "v_lshlrev_b32 v8, 8, v8", 8, [8])
    vop(g, "v_lshl_add_u32 v8, v5, 3, v8", 8, [8, 5])
    for t in range(8):
        vop(g, "v_xor_b32 v9, %d, v6" % t, 9, [6])
        vop(g, "v_lshl_add_u32 %s, v9, 5, v8" % vr(V_A + t), V_A + t, [9, 8])
    g.s("s_mul_i32 s55, s41, 24576")
    g.s("s_add_u32 s55, s55, %d" % A_V_LDS)
    g.s("s_mul_i32 s56, s42, 12288")
    g.s("s_add_u32 %s, s55, s56" % sr(S_M0V))
    g.s("s_lshl_b32 s55, s6, 2")
    g.s("s_add_u32 s55, s55, s5")
    g.s("s_lshl_b32 %s, s55, 2" % sr(S_GOFF))
    g.s("s_add_u32 %s, %s, 128" % (sr(S_GOFF + 1), sr(S_GOFF)))
    g.s("s_lshl_b32 s55, 1, s43")
    vop(g, "v_mov_b32 %s, s55" % vr(V_CLAIM), V_CLAIM)
    vop(g, "v_lshl_add_u32 v8, v2, 2, v3", 8, [2, 3])
    vop(g, "v_lshlrev_b32 %s, 2, v8" % vr(V_BP), V_BP, [8])
    g.waitcnt(lg=0)
    make_srd(g, SRD_X, 8, 1572864)
    make_srd(g, SRD_K, 10, 12582912)
    make_srd(g, SRD_V, 12, 12582912)
    make_srd(g, SRD_W, 14, 4194304)
    make_srd(g, SRD_WS, 16, WS_BYTES)
    make_srd(g, SRD_WO, 68, 4194304)
    make_srd(g, SRD_OUT, 80, 16 * 96 * 1024 * 2)
    make_srd(g, SRD_DBG, 82, 256)
    if FORCE_STEAL:
        g.s("s_cmp_eq_u32 s90, 1")
        g.s("s_mov_b32 s90, 0")
        g.s("s_cbranch_scc1 steal")
    g.s("s_lshl_b32 s55, %s, 6" % sr(S_GOFF))
    g.s("s_lshl_b32 s56, s43, 2")
    g.s("s_add_u32 s55, s55, s56")
    g.s("s_add_u32 %s, s55, %d" % (sr(S_FOFF), FLG))
    vop(g, "v_mov_b32 %s, 0" % vr(V_T + 2), V_T + 2)
    g.s("s_mov_b64 exec, %s" % sr(S_CL, 2))
    g.vstore("buffer_store_dword %s, off, %s, %s" % (vr(V_T + 2), sr(SRD_WS, 4), sr(S_FOFF)), "FC", data=[V_T + 2])
    g.s("s_mov_b64 exec, -1")
    g.s("s_lshl_b32 s55, %s, 8" % sr(S_GOFF))
    g.s("s_and_b32 s56, s43, 7")
    g.s("s_lshl_b32 s56, s56, 7")
    g.s("s_add_u32 s55, s55, s56")
    g.s("s_lshr_b32 s56, s43, 3")
    g.s("s_lshl_b32 s56, s56, 2")
    g.s("s_add_u32 s55, s55, s56")
    g.s("s_add_u32 s55, s55, %d" % (FLG + 65536))
    g.s("s_mul_i32 s58, %s, 255" % sr(S_CL))
    g.s("s_mov_b32 s59, 0")
    vop(g, "v_lshlrev_b32 v8, 4, v1", 8, [1])
    g.s("s_mov_b64 exec, s[58:59]")
    g.vstore("buffer_store_dword %s, v8, %s, s55 offen" % (vr(V_T + 2), sr(SRD_WS, 4)), "FC", data=[V_T + 2], addr=[8])
    g.s("s_mov_b64 exec, -1")
    if TOUCH:
        g.s("s_lshl_b32 s55, s3, 18")
        g.s("s_add_u32 s55, s55, %d" % (256 * 8192))
        g.s("s_lshl_b32 s56, s43, 8")
        g.s("s_add_u32 s55, s55, s56")
        vop(g, "v_lshrrev_b32 v8, 2, v1", 8, [1])
        vop(g, "v_lshlrev_b32 v8, 13, v8", 8, [8])
        vop(g, "v_lshl_add_u32 v8, v5, 6, v8", 8, [5, 8])
        vop(g, "v_add_u32 v8, s55, v8", 8, [8])
        for i in range(2):
            g.s("s_mov_b32 %s, %d" % (sr(S_TMP), i * 16 * 8192))
            g.vload("buffer_load_dword %s, v8, %s, %s offen" % (vr(V_T + 3), sr(SRD_W, 4), sr(S_TMP)), "TCH", dst=[V_T + 3], addr=[8])
        g.s("s_mul_i32 s55, s5, 393216")
        g.s("s_lshl_b32 s56, s43, 3")
        g.s("s_add_u32 s56, s56, s3")
        g.s("s_mul_i32 s56, s56, 1536")
        g.s("s_add_u32 s55, s55, s56")
        vop(g, "v_lshlrev_b32 v9, 6, v1", 9, [1])
        vop(g, "v_add_u32 v9, s55, v9", 9, [9])
        g.vload("buffer_load_dword %s, v9, %s, 0 offen" % (vr(V_T + 3), sr(SRD_X, 4)), "TCH", dst=[V_T + 3], addr=[9])
    if not KVS:
        g.s("s_cmp_eq_u32 s40, 1")
        g.s("s_cbranch_scc1 attn_kvfirst")
    t0 = g.text()
    gb = Gen()
    gb.vmq = list(g.vmq)
    _stamp_n[0] = 0
    attn_body(gb, False)
    if KVS:
        return t0 + gb.text()
    ga = Gen()
    ga.vmq = list(g.vmq)
    _stamp_n[0] = 0
    ga.label("attn_kvfirst")
    attn_body(ga, True)
    return t0 + gb.text() + ga.text()


O_A = 96
O_B = 128
NBS = int(os.environ.get("NBS", "8"))
O_P = 224
O_VA = 236
O_VX = 244
O_VW = 245
O_VO = 247
O_VL = 248
O_VZ = 249
O_VT = 192
S_FAST = 8
S_PASS = 9
S_WB = 10
S_OB = 11
S_M0B = 12
S_XT = 13
S_F2 = 14
S_KQ = 15
S_HSH = 16
S_KH = 17
FLG2 = FLG + 65536
X_BASE = 96 * 1024 * 1024
NPRE = 10


def oproj_setup(g):
    lane_setup(g)
    g.s("s_bfe_u32 s6, %s, 0x10002" % sr(S_ME))
    g.s("s_and_b32 s40, %s, 3" % sr(S_ME))
    g.s("s_bfe_u32 s7, %s, 0x10003" % sr(S_ME))
    g.s("s_bfe_u32 s41, %s, 0x20004" % sr(S_ME))
    g.s("s_lshr_b32 %s, %s, 6" % (sr(S_KQ), sr(S_ME)))
    g.s("s_lshr_b32 %s, s3, 2" % sr(S_KH))
    g.s("s_and_b32 s44, s3, 3")
    g.s("s_mul_i32 s55, s40, 24")
    g.s("s_mul_i32 s56, s7, 12")
    g.s("s_add_u32 s42, s55, s56")
    g.s("s_mul_i32 s56, s44, 3")
    g.s("s_add_u32 s42, s42, s56")
    g.s("s_lshl_b32 s55, s42, 7")
    g.s("s_lshl_b32 s56, %s, 4" % sr(S_KH))
    g.s("s_add_u32 s55, s55, s56")
    g.s("s_lshl_b32 s55, s55, 10")
    g.s("s_mul_i32 s56, s6, %d" % O_BLOCK_BYTES)
    g.s("s_add_u32 s55, s55, s56")
    vop(g, "v_lshlrev_b32 %s, 4, v1" % vr(O_VL), O_VL, [1])
    vop(g, "v_add_u32 %s, s55, %s" % (vr(O_VX), vr(O_VL)), O_VX, [O_VL])
    g.s("s_lshl_b32 s55, s44, 13")
    g.s("s_lshl_b32 s56, s41, 8")
    g.s("s_add_u32 s55, s55, s56")
    g.s("s_lshl_b32 s56, %s, 19" % sr(S_KH))
    g.s("s_add_u32 s55, s55, s56")
    for par in range(2):
        vop(g, "v_add_u32 v8, %d, v3" % (4 * par), 8, [3])
        vop(g, "v_lshlrev_b32 v9, 1, v8", 9, [8])
        vop(g, "v_xor_b32 v9, v9, v2", 9, [9, 2])
        vop(g, "v_lshlrev_b32 v9, 4, v9", 9, [9])
        vop(g, "v_lshl_add_u32 v9, v8, 10, v9", 9, [8, 9])
        vop(g, "v_add_u32 %s, s55, v9" % vr(O_VW + par), O_VW + par, [9])
    g.s("s_lshl_b32 %s, %s, 13" % (sr(S_M0B), sr(S_KH)))
    g.s("s_lshl_b32 s56, s44, 11")
    g.s("s_add_u32 %s, %s, s56" % (sr(S_M0B), sr(S_M0B)))
    vop(g, "v_lshlrev_b32 v8, 2, v3", 8, [3])
    vop(g, "v_add_u32 v8, v8, v4", 8, [8, 4])
    vop(g, "v_lshlrev_b32 v8, 8, v8", 8, [8])
    vop(g, "v_lshl_add_u32 v8, v5, 3, v8", 8, [8, 5])
    g.s("s_lshl_b32 s55, %s, 13" % sr(S_KH))
    vop(g, "v_add_u32 v8, s55, v8", 8, [8])
    for T in range(8):
        g.s("s_add_u32 s55, %s, %d" % (sr(S_KQ), T))
        g.s("s_and_b32 s55, s55, 3")
        g.s("s_xor_b32 s56, %s, %d" % (sr(S_KH), T >> 2))
        g.s("s_lshl_b32 s56, s56, 2")
        g.s("s_add_u32 s55, s55, s56")
        vop(g, "v_xor_b32 v10, s55, v6", 10, [6])
        vop(g, "v_lshl_add_u32 %s, v10, 5, v8" % vr(O_VA + T), O_VA + T, [10, 8])
    g.s("s_lshl_b32 s55, s42, 14")
    g.s("s_lshl_b32 s56, s6, 9")
    g.s("s_add_u32 s55, s55, s56")
    g.s("s_lshl_b32 s56, s41, 7")
    g.s("s_add_u32 s55, s55, s56")
    g.s("s_lshl_b32 s56, %s, 6" % sr(S_KH))
    g.s("s_add_u32 s55, s55, s56")
    g.s("s_lshl_b32 s56, %s, 4" % sr(S_KQ))
    g.s("s_add_u32 s55, s55, s56")
    g.s("s_lshl_b32 s55, s55, 1")
    vop(g, "v_lshlrev_b32 v8, 11, v2", 8, [2])
    vop(g, "v_lshl_add_u32 v8, v3, 3, v8", 8, [3, 8])
    vop(g, "v_add_u32 %s, s55, v8" % vr(O_VO), O_VO, [8])
    vop(g, "v_mov_b32 %s, 0" % vr(O_VZ), O_VZ)
    g.s("s_bfe_u32 s55, %s, 0x30003" % sr(S_ME))
    g.s("s_lshl_b32 s56, %s, 1" % sr(S_GOFF))
    g.s("s_add_u32 s55, s55, s56")
    g.s("s_mul_i32 s56, s55, %d" % (16 * 24576))
    g.s("s_mul_i32 s57, s3, 3072")
    g.s("s_add_u32 s56, s56, s57")
    g.s("s_add_u32 %s, s56, %d" % (sr(S_XT), X_BASE))
    g.s("s_lshl_b32 s55, s55, 7")
    g.s("s_lshl_b32 s56, s3, 4")
    g.s("s_add_u32 s55, s55, s56")
    g.s("s_add_u32 %s, s55, %d" % (sr(S_F2), FLG2))


def gen_steal():
    g = Gen()
    A, B = O_VT, O_VT + 1
    g.label("steal")
    g.waitcnt(vm=0, lg=0)
    g.barrier()
    g.s("s_cmp_lg_u32 s3, 0")
    g.s("s_cbranch_scc1 steal_join")
    g.label("steal_retry")
    g.vload("buffer_load_dword %s, off, %s, %s sc1" % (vr(A), sr(SRD_DBG, 4), sr(S_GOFF)), "X", dst=[A])
    g.waitcnt(vm=0)
    g.valu("v_readfirstlane_b32 s55, %s" % vr(A), src=[A], readlane=True, sdst=[55])
    g.s("s_mov_b32 s56, -1")
    g.s("s_cmp_eq_u32 s55, -1")
    g.s("s_cbranch_scc1 steal_pub")
    g.s("s_ff0_i32_b32 s56, s55")
    g.s("s_lshl_b32 s57, 1, s56")
    vop(g, "v_mov_b32 %s, s57" % vr(A), A)
    g.s("s_mov_b64 exec, 1")
    g.vload("buffer_atomic_or %s, off, %s, %s sc0" % (vr(A), sr(SRD_DBG, 4), sr(S_GOFF)), "X", dst=[A])
    g.s("s_mov_b64 exec, -1")
    g.waitcnt(vm=0)
    g.valu("v_readfirstlane_b32 s55, %s" % vr(A), src=[A], readlane=True, sdst=[55])
    g.s("s_and_b32 s55, s55, s57")
    g.s("s_cmp_lg_u32 s55, 0")
    g.s("s_cbranch_scc1 steal_retry")
    g.label("steal_pub")
    vop(g, "v_mov_b32 %s, s56" % vr(A), A)
    vop(g, "v_mov_b32 %s, 0" % vr(B), B)
    g.dswrite("ds_write_b32 %s, %s" % (vr(B), vr(A)), "X", data=[A], addr=[B])
    g.waitcnt(lg=0)
    g.label("steal_join")
    g.barrier()
    vop(g, "v_mov_b32 %s, 0" % vr(B), B)
    g.dsread("ds_read_b32 %s, %s" % (vr(A), vr(B)), "X", dst=[A], addr=[B])
    g.waitcnt(lg=0)
    g.valu("v_readfirstlane_b32 s56, %s" % vr(A), src=[A], readlane=True, sdst=[56])
    g.barrier()
    g.s("s_cmp_eq_u32 s56, -1")
    g.s("s_cbranch_scc1 steal_none")
    g.s("s_lshl_b32 s56, s56, 3")
    g.s("s_and_b32 s57, %s, 7" % sr(S_ME))
    g.s("s_or_b32 s2, s56, s57")
    g.s("s_mov_b32 %s, 1" % sr(S_STOLEN))
    g.s("s_mov_b32 %s, 0" % sr(S_CL))
    g.s("s_branch job_start")
    g.label("steal_none")
    oproj_setup(g)
    g.s("s_mov_b32 %s, 0" % sr(S_FAST))
    g.s("s_branch oproj_pf")
    return g.text()


def gen_oproj():
    g = Gen()

    def oacc(T, u):
        return (T * 3 + u) * 4

    def bfr(s, u):
        return O_B + ((s % NBS) * 3 + u) * 4

    g.label("attn_tail")
    g.nop(2)
    oproj_setup(g)
    g.s("s_lshl_b32 s57, 1, s43")
    vop(g, "v_mov_b32 %s, s57" % vr(O_VT), O_VT)
    vop(g, "v_mov_b32 %s, 1" % vr(O_VT + 3), O_VT + 3)
    g.waitcnt(vm=0)
    stamp(g, 0, V_T)
    g.s("s_and_b32 s55, %s, 63" % sr(S_PSEEN))
    g.s("s_cmp_eq_u32 s55, 32")
    g.s("s_cselect_b32 s55, 1, 0")
    g.s("s_cmp_eq_u32 %s, %s" % (sr(S_PSEEN), sr(S_PEXP)))
    g.s("s_cselect_b32 s56, 2, 0")
    g.s("s_or_b32 s55, s55, s56")
    vop(g, "v_mov_b32 %s, s55" % vr(O_VT + 2), O_VT + 2)
    g.s("s_mov_b64 exec, %s" % sr(S_W0, 2))
    g.dswrite("ds_write_b32 %s, %s" % (vr(O_VZ), vr(O_VT + 2)), "X", data=[O_VT + 2], addr=[O_VZ])
    g.s("s_mov_b64 exec, -1")
    g.valu("v_readfirstlane_b32 s55, %s" % vr(V_CLAIM), src=[V_CLAIM], readlane=True, sdst=[55])
    g.s("s_and_b32 s55, s55, s57")
    g.s("s_cmp_eq_u32 s55, 0")
    g.s("s_cselect_b32 s55, 1, %s" % sr(S_STOLEN))
    g.s("s_and_b32 s58, s55, %s" % sr(S_W0))
    g.s("s_mov_b32 s59, 0")
    g.waitcnt(lg=0)
    g.lgq = []
    g.barrier()
    g.s("s_mov_b64 exec, %s" % sr(S_CL, 2))
    g.vstore("buffer_store_dword %s, off, %s, %s" % (vr(O_VT + 3), sr(SRD_WS, 4), sr(S_FOFF)), "FS", data=[O_VT + 3])
    g.s("s_mov_b64 exec, s[58:59]")
    g.vstore("buffer_atomic_add %s, off, %s, %s" % (vr(O_VT), sr(SRD_DBG, 4), sr(S_GOFF + 1)), "DN", data=[O_VT])
    g.s("s_mov_b64 exec, -1")
    g.dsread("ds_read_b32 %s, %s" % (vr(O_VT + 1), vr(O_VZ)), "X", dst=[O_VT + 1], addr=[O_VZ])
    g.waitcnt(lg=0)
    g.lgq = []
    g.valu("v_readfirstlane_b32 s55, %s" % vr(O_VT + 1), src=[O_VT + 1], readlane=True, sdst=[55])
    g.s("s_lshr_b32 %s, s55, 1" % sr(S_FAST))
    g.s("s_bitcmp0_b32 s55, 0")
    g.s("s_cbranch_scc1 steal")
    g.label("oproj_pf")
    g.s("s_mov_b32 %s, 0" % sr(S_PASS))
    for i in range(12):
        vop(g, "v_mov_b32 %s, 0" % vr(O_P + i), O_P + i)
    g.label("pass_start")
    g.barrier()
    g.s("s_add_u32 s55, %s, %s" % (sr(S_KQ), sr(S_PASS)))
    g.s("s_and_b32 s55, s55, 3")
    g.s("s_lshl_b32 %s, s55, 20" % sr(S_WB))
    g.s("s_lshl_b32 %s, s55, 15" % sr(S_OB))
    g.s("s_lshl_b32 %s, s55, 3" % sr(S_HSH))
    g.s("s_lshl_b32 s56, %s, 2" % sr(S_KH))
    g.s("s_add_u32 %s, %s, s56" % (sr(S_HSH), sr(S_HSH)))

    def slot_of(s):
        return s if s < NPRE else s - NPRE

    def issue_w(c):
        g.s("s_add_u32 %s, %s, %d" % (sr(S_WOFF), sr(S_WB), c * 32768))
        for par in range(2):
            g.s("s_add_u32 m0, %s, %d" % (sr(S_M0B), slot_of(c) * 16384 + par * 1024), m0=True)
            g.vload("buffer_load_dwordx4 %s, %s, %s offen lds" % (vr(O_VW + par), sr(SRD_WO, 4), sr(S_WOFF)),
                    "W%d" % c, addr=[O_VW + par], lds=True)

    def issue_b(s):
        for u in range(3):
            g.s("s_add_u32 %s, %s, %d" % (sr(S_TMP), sr(S_OB), u * 131072 + (s >> 2) * 4096))
            d = bfr(s, u)
            g.vload("buffer_load_dwordx4 %s, %s, %s, %s offen offset:%d sc1" % (vr(d, 4), vr(O_VX), sr(SRD_WS, 4), sr(S_TMP), (s & 3) * 1024),
                    "B%d" % s, dst=rng(d, 4), addr=[O_VX])

    def win(s):
        return slot_of(s) >> 2

    def adj(T, dw):
        vop(g, "v_add_u32 %s, 0x%x, %s" % (vr(O_VA + T), (dw * 65536) & 0xffffffff, vr(O_VA + T)), O_VA + T, [O_VA + T])

    def tr_reads(s, T):
        if s > 0 and win(s) != win(s - 1):
            adj(T, win(s) - win(s - 1))
        for j in range(2):
            d = O_A + T * 4 + j * 2
            g.dsread("ds_read_b64_tr_b16 %s, %s offset:%d" % (vr(d, 2), vr(O_VA + T), (slot_of(s) & 3) * 16384 + j * 4096),
                     "A%d_%d" % (s, T), dst=rng(d, 2), addr=[O_VA + T])

    for c in range(NPRE):
        issue_w(c)
    g.s("s_lshl_b32 s55, %s, 6" % sr(S_GOFF))
    g.s("s_lshl_b32 s56, %s, 2" % sr(S_HSH))
    g.s("s_add_u32 s55, s55, s56")
    g.s("s_add_u32 %s, s55, %d" % (sr(S_FPOLL), FLG))
    g.waitcnt(vm=0)
    g.vmq = []
    g.barrier()
    for T in range(8):
        tr_reads(0, T)
    g.s("s_cmp_eq_u32 %s, 0" % sr(S_FAST))
    g.s("s_cbranch_scc1 oproj_slowpoll")
    P = O_B

    def fastpoll(lab, go, saddr):
        g.label(lab)
        g.vload("buffer_load_dwordx4 %s, off, %s, %s sc1" % (vr(P, 4), sr(SRD_WS, 4), sr(saddr)), "P", dst=rng(P, 4))
        g.waitcnt(vm=0)
        g.vmq = []
        vop(g, "v_and_b32 %s, %s, %s" % (vr(P), vr(P), vr(P + 1)), P, [P, P + 1])
        vop(g, "v_and_b32 %s, %s, %s" % (vr(P + 2), vr(P + 2), vr(P + 3)), P + 2, [P + 2, P + 3])
        vop(g, "v_and_b32 %s, %s, %s" % (vr(P), vr(P), vr(P + 2)), P, [P, P + 2])
        g.valu("v_readfirstlane_b32 s55, %s" % vr(P), src=[P], readlane=True, sdst=[55])
        g.s("s_cmp_eq_u32 s55, 1")
        g.s("s_cbranch_scc1 %s" % go)
        g.s("s_sleep %d" % SLEEP)
        g.s("s_branch %s" % lab)

    fastpoll("oproj_poll", "oproj_go", S_FPOLL)
    g.label("oproj_slowpoll")
    g.vload("buffer_load_dword %s, off, %s, %s sc1" % (vr(P), sr(SRD_DBG, 4), sr(S_GOFF + 1)), "P", dst=[P])
    g.waitcnt(vm=0)
    g.vmq = []
    g.valu("v_readfirstlane_b32 s55, %s" % vr(P), src=[P], readlane=True, sdst=[55])
    g.s("s_lshr_b32 s55, s55, %s" % sr(S_HSH))
    g.s("s_and_b32 s55, s55, 15")
    g.s("s_cmp_eq_u32 s55, 15")
    g.s("s_cbranch_scc1 oproj_go")
    g.s("s_sleep 127")
    g.s("s_sleep 127")
    g.s("s_branch oproj_slowpoll")
    g.label("oproj_go")
    stamp(g, 0, V_T)
    for c in range(NBS):
        issue_b(c)
    nsteps = 16
    for s in range(nsteps):
        g.comment("---- step %d" % s)
        if s % 4 == 0:
            stamp(g, 0, V_T)
        for T in range(8):
            g.wait_lg("A%d_%d" % (s, T))
            if T == 0:
                g.wait_vm("B%d" % s)
            for u in range(3):
                g.mfma(oacc(T, u), O_A + T * 4, bfr(s, u), None if s == 0 else oacc(T, u))
            if s + 1 < nsteps:
                tr_reads(s + 1, T)
        if s in (2, 5):
            g.barrier()
            for c in range(3):
                issue_w(NPRE + (s - 2) + c)
        if s + NBS < nsteps:
            issue_b(s + NBS)
        if s in (8, 11):
            g.wait_vm("W%d" % (s + 4))
            g.barrier()
    stamp(g, 0, V_T)
    for T in range(8):
        adj(T, -win(nsteps - 1))
    RA, RB = O_A, O_A + 1
    g.s("s_mul_i32 s55, s3, 12288")
    g.s("s_xor_b32 s56, s3, 4")
    g.s("s_mul_i32 s56, s56, 12288")
    vop(g, "v_add_u32 %s, s55, %s" % (vr(RA), vr(O_VL)), RA, [O_VL])
    vop(g, "v_add_u32 %s, s56, %s" % (vr(RB), vr(O_VL)), RB, [O_VL])
    g.barrier()
    for i in range(12):
        d = 48 + i * 4
        g.dswrite("ds_write_b128 %s, %s offset:%d" % (vr(RA), vr(d, 4), i * 1024), "RW", data=rng(d, 4), addr=[RA])
    g.wait_lg("RW")
    g.barrier()
    for i in range(12):
        d = O_B + i * 4
        g.dsread("ds_read_b128 %s, %s offset:%d" % (vr(d, 4), vr(RB), i * 1024), "RR%d" % i, dst=rng(d, 4), addr=[RB])

    def padd(d, s_):
        for h in range(2):
            g.valu("v_pk_add_f32 %s, %s, %s" % (vr(d + 2 * h, 2), vr(d + 2 * h, 2), vr(s_ + 2 * h, 2)),
                   dst=[d + 2 * h, d + 2 * h + 1], src=[d + 2 * h, d + 2 * h + 1, s_ + 2 * h, s_ + 2 * h + 1])

    order = list(range(3, 12)) + [0, 1, 2]
    g.s("s_cmp_lg_u32 %s, 0" % sr(S_PASS))
    g.s("s_cselect_b32 s58, 0, -1")
    g.s("s_mov_b32 s59, s58")
    for i in order:
        g.wait_lg("RR%d" % i)
        padd(i * 4, O_B + i * 4)
        if i >= 3:
            slot, u = i // 3, i % 3
            if u == 0:
                g.s("s_add_u32 s55, %s, %d" % (sr(S_KQ), slot))
                g.s("s_and_b32 s55, s55, 3")
                g.s("s_lshl_b32 s55, s55, 2")
                g.s("s_add_u32 s55, s55, %s" % sr(S_KQ))
                g.s("s_mul_i32 s55, s55, 24576")
                g.s("s_add_u32 %s, s55, %s" % (sr(S_TMP), sr(S_XT)))
            g.s("s_mov_b64 exec, s[58:59]")
            g.vstore("buffer_store_dwordx4 %s, %s, %s, %s offen offset:%d" % (vr(i * 4, 4), vr(O_VL), sr(SRD_WS, 4), sr(S_TMP), u * 1024),
                     "XS", data=rng(i * 4, 4), addr=[O_VL])
            g.s("s_mov_b64 exec, -1")
        else:
            padd(O_P + i * 4, i * 4)
    stamp(g, 0, V_T)
    vop(g, "v_mov_b32 %s, 1" % vr(O_A), O_A)
    g.s("s_lshl_b32 s55, %s, 2" % sr(S_KQ))
    g.s("s_add_u32 s55, s55, %s" % sr(S_F2))
    g.s("s_cmp_lg_u32 %s, 0" % sr(S_PASS))
    g.s("s_cselect_b32 s58, 0, 1")
    g.s("s_mov_b32 s59, 0")
    g.waitcnt(vm=0)
    g.vmq = []
    g.s("s_mov_b64 exec, s[58:59]")
    g.vstore("buffer_store_dword %s, off, %s, s55" % (vr(O_A), sr(SRD_WS, 4)), "FS", data=[O_A])
    g.s("s_mov_b64 exec, -1")
    stamp(g, 0, V_T)
    g.s("s_cmp_lg_u32 %s, 0" % sr(S_FAST))
    g.s("s_cbranch_scc1 x_poll")
    g.s("s_add_u32 %s, %s, 1" % (sr(S_PASS), sr(S_PASS)))
    g.s("s_cmp_lt_u32 %s, 4" % sr(S_PASS))
    g.s("s_cbranch_scc1 pass_start")
    g.s("s_branch x_final")
    fastpoll("x_poll", "x_go", S_F2)
    g.label("x_go")
    stamp(g, 0, V_T)
    for i in range(1, 4):
        g.s("s_add_u32 s55, %s, %d" % (sr(S_KQ), i))
        g.s("s_and_b32 s55, s55, 3")
        g.s("s_lshl_b32 s56, %s, 2" % sr(S_KQ))
        g.s("s_add_u32 s55, s55, s56")
        g.s("s_mul_i32 s55, s55, 24576")
        g.s("s_add_u32 %s, s55, %s" % (sr(S_TMP), sr(S_XT)))
        for u in range(3):
            d = O_B + ((i - 1) * 3 + u) * 4
            g.vload("buffer_load_dwordx4 %s, %s, %s, %s offen offset:%d sc1" % (vr(d, 4), vr(O_VL), sr(SRD_WS, 4), sr(S_TMP), u * 1024),
                    "XL%d_%d" % (i, u), dst=rng(d, 4), addr=[O_VL])
    for i in range(1, 4):
        for u in range(3):
            g.wait_vm("XL%d_%d" % (i, u))
            padd(O_P + u * 4, O_B + ((i - 1) * 3 + u) * 4)
    g.label("x_final")
    g.nop(2)
    for u in range(3):
        T = O_P + u * 4
        o = O_A + u * 2
        g.valu("v_cvt_pk_bf16_f32 %s, %s, %s" % (vr(o), vr(T), vr(T + 1)), dst=[o], src=[T, T + 1])
        g.valu("v_cvt_pk_bf16_f32 %s, %s, %s" % (vr(o + 1), vr(T + 2), vr(T + 3)), dst=[o + 1], src=[T + 2, T + 3])
        g.s("s_mov_b32 s57, %d" % (u * 32768))
        g.vstore("buffer_store_dwordx2 %s, %s, %s, s57 offen" % (vr(o, 2), vr(O_VO), sr(SRD_OUT, 4)), "ST", data=rng(o, 2), addr=[O_VO])
    if STAMP:
        g.waitcnt(vm=0)
        stamp(g, 0, V_T)
    g.label("attn_end")
    g.s("s_endpgm")
    return g.text()


HEADER = """; Kernarg layout for this problem (104 bytes, ptrs only, base s[0:1]):
; @launch kernel=attn_kernel grid=(256,1,1) block=(512,1,1) lds=163840
.amdgcn_target "amdgcn-amd-amdhsa--gfx950"
.text
"""


def kernel_text(name, body):
    return (".globl %s\n.p2align 8\n.type %s,@function\n%s:\n" % (name, name, name)) + body


def kd(name, vgpr, sgpr):
    acc_off = (vgpr + 3) // 4 * 4
    return """.p2align 6
.amdhsa_kernel %s
  .amdhsa_next_free_vgpr %d
  .amdhsa_next_free_sgpr %d
  .amdhsa_accum_offset %d
  .amdhsa_group_segment_fixed_size 0
  .amdhsa_kernarg_size 104
  .amdhsa_user_sgpr_count 2
  .amdhsa_user_sgpr_kernarg_segment_ptr 1
  .amdhsa_system_sgpr_workgroup_id_x 1
.end_amdhsa_kernel
""" % (name, vgpr, sgpr, acc_off)


def main():
    out = HEADER
    out += kernel_text("attn_kernel", gen_attn() + gen_steal() + gen_oproj())
    out += '.section .rodata,"a"\n'
    out += kd("attn_kernel", 256, 96)
    path = sys.argv[1] if len(sys.argv) > 1 else "cdna_kernels/%s.s" % NAME
    open(path, "w").write(out)
    print("wrote", path, len(out), "bytes")


if __name__ == "__main__":
    main()
```

```python
import sys, os
sys.path.insert(0, os.path.dirname(os.path.abspath(__file__)))
from asmgen import Gen, vr, sr

NAME = "concat_heads__gqa_block_cached__gqa_block_cached__near_ridge"
O_BLOCK_BYTES = 1536 * 4096 * 2
WS_BYTES = 268435456

STAMP = int(os.environ.get("STAMP", "0"))
STAMP_BASE = 200 * 1024 * 1024
NT = os.environ.get("NT", " nt")
TOUCH = int(os.environ.get("TOUCH", "1"))
TWAIT = int(os.environ.get("TWAIT", "1"))
WOPF = int(os.environ.get("WOPF", "2"))
OTOUCH = int(os.environ.get("OTOUCH", "0"))
_stamp_n = [0]

S_WAVE = 3
SRD_X = 20
SRD_K = 24
SRD_V = 28
SRD_W = 32
SRD_WS = 36
SRD_OUT = 76
SRD_WO = 64
SRD_DBG = 72
S_ME = 70
S_STOLEN = 71
S_GOFF = 84
S_W0 = 86
S_CL = 88
S_PADD = 91
S_PEXP = 92
S_PSEEN = 93
S_FOFF = 94
S_FPOLL = 95
FLG = 64 * 1024 * 1024
REL = int(os.environ.get("REL", "0"))
KVS = [int(x) for x in os.environ.get("KVS", "").split(",") if x]
VLATE = int(os.environ.get("VLATE", "0"))
KV2 = [[int(c, 16) for c in x] for x in os.environ.get("KV2", "").split(",") if x]
O_LDS = 32768
SLEEP = int(os.environ.get("SLEEP", "8"))
FORCE_STEAL = int(os.environ.get("FORCE_STEAL", "0"))
S_M0W = 46
S_TMP = 47
S_WOFF = 48
S_M0V = 49
S_SC = 50
S_L2E = 52
S_W4K = 54
S_B8K = 57


def rng(a, n):
    return list(range(a, a + n))


def stamp(g, kid, vt):
    if not STAMP:
        return
    n = _stamp_n[0]
    _stamp_n[0] += 1
    g.s("s_memrealtime s[60:61]" if os.environ.get("REAL") else "s_memtime s[60:61]")
    g.waitcnt(lg=0)
    g.lgq = []
    g.s("s_lshl_b32 s62, s70, 8")
    g.s("s_add_u32 s62, s62, %d" % (STAMP_BASE + kid * 131072 + n * 8))
    g.s("s_mul_i32 s63, s3, 1048576")
    g.s("s_add_u32 s62, s62, s63")
    g.valu("v_mov_b32 %s, s60" % vr(vt), dst=[vt])
    g.valu("v_mov_b32 %s, s61" % vr(vt + 1), dst=[vt + 1])
    g.valu("v_mov_b32 %s, s62" % vr(vt + 2), dst=[vt + 2])
    g.s("s_mov_b64 s[58:59], exec")
    g.s("s_mov_b64 exec, 1")
    g.vstore("buffer_store_dwordx2 %s, %s, %s, 0 offen" % (vr(vt, 2), vr(vt + 2), sr(SRD_WS, 4)), "STAMP", data=[vt, vt + 1], addr=[vt + 2])
    g.s("s_mov_b64 exec, s[58:59]")


def make_srd(g, srd, ptr, nbytes):
    g.s("s_mov_b32 %s, %s" % (sr(srd), sr(ptr)))
    g.s("s_and_b32 %s, %s, 0xffff" % (sr(srd + 1), sr(ptr + 1)))
    g.s("s_mov_b32 %s, %d" % (sr(srd + 2), nbytes))
    g.s("s_mov_b32 %s, 0x00020000" % sr(srd + 3))


def vop(g, text, dst, src=()):
    g.valu(text, dst=[dst] if isinstance(dst, int) else dst, src=src)


def lane_setup(g):
    vop(g, "v_mov_b32 v1, %s" % vr(V_LANE), 1, [V_LANE])
    vop(g, "v_and_b32 v2, 15, v1", 2, [1])
    vop(g, "v_lshrrev_b32 v3, 4, v1", 3, [1])
    vop(g, "v_bfe_u32 v4, v1, 2, 2", 4, [1])
    vop(g, "v_and_b32 v5, 3, v1", 5, [1])
    vop(g, "v_and_b32 v6, 1, v3", 6, [3])
    vop(g, "v_lshlrev_b32 v6, 2, v6", 6, [6])
    vop(g, "v_or_b32 v6, v6, v4", 6, [6, 4])


def pack_pair(g, lo, hi):
    g.valu("v_cvt_pk_bf16_f32 %s, %s, %s" % (vr(lo), vr(lo), vr(lo + 1)), dst=[lo], src=[lo, lo + 1])
    g.valu("v_cvt_pk_bf16_f32 %s, %s, %s" % (vr(lo + 1), vr(lo + 2), vr(lo + 3)), dst=[lo + 1], src=[lo + 2, lo + 3])
    g.valu("v_cvt_pk_bf16_f32 %s, %s, %s" % (vr(lo + 2), vr(hi), vr(hi + 1)), dst=[lo + 2], src=[hi, hi + 1])
    g.valu("v_cvt_pk_bf16_f32 %s, %s, %s" % (vr(lo + 3), vr(hi + 2), vr(hi + 3)), dst=[lo + 3], src=[hi + 2, hi + 3])


def xlane_reduce(g, m, tmp, op):
    for sw in ("v_permlane32_swap_b32", "v_permlane16_swap_b32"):
        vop(g, "v_mov_b32 %s, %s" % (vr(tmp), vr(m)), tmp, [m])
        g.valu("%s %s, %s" % (sw, vr(m), vr(tmp)), dst=[m, tmp], src=[m, tmp], permlane=True)
        vop(g, "%s %s, %s, %s" % (op, vr(m), vr(m), vr(tmp)), m, [m, tmp])


R_ACC = 0
R_A = 96
R_B = 128
R_F = 164
R_K = 188
V_A = 236
V_X = 244
V_W = 245
V_BP = 246
V_VD0 = 247
V_VD1 = 248
V_K = 249
V_LANE = 250
V_CLAIM = 251
V_T = 252
V_KW = R_B + 36
V_KR = R_B + 37
V_WO = R_B + 38
V_O = R_B + 39
V_DELTA = R_B + 40
T0 = R_B + 41
V_MASK = R_B + 47
A_V_LDS = 65536
NSLOT = 8
NB = 3
XD = int(os.environ.get("XD", "1"))
V_X2 = R_F


def acc(t, u):
    return R_ACC + (t * 3 + u) * 4


def bstage(s, u):
    return R_B + ((s % NB) * 3 + u) * 4


def bfrag(s, u):
    if u < XD:
        return bstage(s, u)
    return R_F + ((s % 2) * 3 + u) * 4


def post_gemm_addrs(g):
    L, Q, G, R, C, A, B = V_LANE, T0, T0 + 1, T0 + 2, T0 + 3, T0 + 4, T0 + 5
    v = vr
    vop(g, "v_and_b32 %s, 15, %s" % (v(Q), v(L)), Q, [L])
    vop(g, "v_lshrrev_b32 %s, 4, %s" % (v(G), v(L)), G, [L])
    vop(g, "v_bfe_u32 %s, %s, 2, 2" % (v(R), v(L)), R, [L])
    vop(g, "v_and_b32 %s, 3, %s" % (v(C), v(L)), C, [L])
    vop(g, "v_xor_b32 %s, %s, %s" % (v(A), v(Q), v(G)), A, [Q, G])
    vop(g, "v_lshlrev_b32 %s, 4, %s" % (v(A), v(A)), A, [A])
    vop(g, "v_lshl_add_u32 %s, %s, 8, %s" % (v(A), v(G), v(A)), A, [G, A])
    g.s("s_lshl_b32 s55, s3, 13")
    vop(g, "v_add_u32 %s, s55, %s" % (v(V_KW), v(A)), V_KW, [A])
    vop(g, "v_lshrrev_b32 %s, 1, %s" % (v(A), v(G)), A, [G])
    vop(g, "v_xor_b32 %s, %s, %s" % (v(A), v(A), v(Q)), A, [A, Q])
    vop(g, "v_lshlrev_b32 %s, 4, %s" % (v(A), v(A)), A, [A])
    vop(g, "v_lshl_add_u32 %s, %s, 8, %s" % (v(A), v(Q), v(A)), A, [Q, A])
    vop(g, "v_and_b32 %s, 1, %s" % (v(B), v(G)), B, [G])
    vop(g, "v_lshl_add_u32 %s, %s, 3, %s" % (v(A), v(B), v(A)), A, [A, B])
    g.s("s_lshl_b32 s55, s41, 14")
    vop(g, "v_add_u32 %s, s55, %s" % (v(V_KR), v(A)), V_KR, [A])
    g.s("s_mul_i32 s55, s41, 24576")
    g.s("s_add_u32 s55, s55, %d" % A_V_LDS)
    vop(g, "v_lshlrev_b32 %s, 10, %s" % (v(A), v(G)), A, [G])
    vop(g, "v_sub_u32 %s, s55, %s" % (v(V_DELTA), v(A)), V_DELTA, [A])
    g.s("s_mul_i32 s55, s44, 6")
    g.s("s_mul_i32 s56, s42, 3")
    g.s("s_add_u32 s55, s55, s56")
    g.s("s_lshl_b32 s55, s55, 7")
    g.s("s_lshl_b32 s56, s43, 2")
    g.s("s_add_u32 s55, s55, s56")
    g.s("s_lshl_b32 s55, s55, 10")
    g.s("s_mul_i32 s56, s6, %d" % O_BLOCK_BYTES)
    g.s("s_add_u32 s55, s55, s56")
    vop(g, "v_lshlrev_b32 %s, 4, %s" % (v(A), v(L)), A, [L])
    vop(g, "v_add_u32 %s, s55, %s" % (v(V_O), v(A)), V_O, [A])
    g.s("s_and_b32 s55, s2, 3")
    g.s("s_lshl_b32 s55, s55, 5")
    g.s("s_lshr_b32 s56, s2, 3")
    g.s("s_add_u32 s55, s55, s56")
    g.s("s_lshl_b32 s55, s55, 3")
    g.s("s_add_u32 s55, s55, s3")
    g.s("s_lshl_b32 s55, s55, 12")
    vop(g, "v_lshlrev_b32 %s, 6, %s" % (v(A), v(L)), A, [L])
    vop(g, "v_add_u32 %s, s55, %s" % (v(V_WO), v(A)), V_WO, [A])


def attn_body(g, kv_first):
    def tr_reads(s, t):
        if os.environ.get("NOTR") and s > 0:
            return
        for j in range(2):
            d = R_A + t * 4 + j * 2
            g.dsread("ds_read_b64_tr_b16 %s, %s offset:%d" % (vr(d, 2), vr(V_A + t), (s % NSLOT) * 8192 + j * 1024),
                     "A%d_%d" % (s, t), dst=rng(d, 2), addr=[V_A + t])

    def issue_w(c):
        if os.environ.get("NOW") and c > 1:
            return
        g.s("s_mov_b32 %s, %d" % (sr(S_WOFF), c * 262144))
        g.s("s_add_u32 m0, %s, %d" % (sr(S_M0W), (c % NSLOT) * 8192), m0=True)
        g.vload("buffer_load_dwordx4 %s, %s, %s offen lds" % (vr(V_W), sr(SRD_W, 4), sr(S_WOFF)),
                "W%d" % c, addr=[V_W], lds=True)

    def issue_b(s):
        if os.environ.get("NOX") and s > 3:
            return
        for u in range(3):
            g.s("s_mov_b32 %s, %d" % (sr(S_TMP), u * 16384))
            d = bstage(s, u)
            va = V_X2 if u < XD else V_X
            g.vload("buffer_load_dwordx4 %s, %s, %s, %s offen offset:%d" % (vr(d, 4), vr(va), sr(SRD_X, 4), sr(S_TMP), s * 64),
                    "B%d" % s, dst=rng(d, 4), addr=[va])

    def perm_b(s, lo=0, hi=12):
        if os.environ.get("NOPERM") and s > 1:
            return
        if lo == 0:
            g.wait_vm("B%d" % s)
        for i in range(lo, hi):
            u, r = i // 4, i % 4
            if u < XD:
                continue
            d = bfrag(s, u) + r
            a = bstage(s, u) + r
            g.dsread("ds_bpermute_b32 %s, %s, %s" % (vr(d), vr(V_BP), vr(a)), "F%d" % s, dst=[d], addr=[V_BP, a])

    def issue_k(i):
        g.s("s_mov_b32 %s, %d" % (sr(S_TMP), i * 4096))
        for m in range(4):
            d = R_K + (i * 4 + m) * 4
            g.vload("buffer_load_dwordx4 %s, %s, %s, %s offen offset:%d%s" % (vr(d, 4), vr(V_K), sr(SRD_K, 4), sr(S_TMP), m * 1024, NT),
                    "K%d" % i, dst=rng(d, 4), addr=[V_K])

    def issue_v(i):
        g.s("s_mov_b32 %s, %d" % (sr(S_TMP), i * 1024))
        g.s("s_add_u32 m0, %s, %d" % (sr(S_M0V), i * 1024), m0=True)
        g.vload("buffer_load_dwordx4 %s, %s, %s offen%s lds" % (vr(V_VD0 + (i & 1)), sr(SRD_V, 4), sr(S_TMP), NT),
                "V", addr=[V_VD0 + (i & 1)], lds=True)

    def issue_kv():
        if os.environ.get("NOKV"):
            return
        for i in range(3):
            issue_k(i)
        for i in range(12):
            issue_v(i)

    def issue_k1(i, m):
        g.s("s_mov_b32 %s, %d" % (sr(S_TMP), i * 4096))
        d = R_K + (i * 4 + m) * 4
        g.vload("buffer_load_dwordx4 %s, %s, %s, %s offen offset:%d%s" % (vr(d, 4), vr(V_K), sr(SRD_K, 4), sr(S_TMP), m * 1024, NT),
                "K%d" % i, dst=rng(d, 4), addr=[V_K])

    kvops = [(lambda i=i, m=m: issue_k1(i, m)) for i in range(3) for m in range(4)] + [(lambda i=i: issue_v(i)) for i in range(12)]

    def trickle(n):
        for _ in range(n):
            if kvops:
                kvops.pop(0)()

    stamp(g, 0, V_T)
    sched = KV2[int(kv_first)] if KV2 else None
    if kv_first:
        if TWAIT:
            g.wait_vm("TCH")
        if sched:
            trickle(sched[0])
        else:
            issue_kv()
    for c in range(NSLOT - 1):
        issue_w(c)
        if c < NB:
            issue_b(c)
    if KVS:
        trickle(KVS[0])
    CT = int(os.environ.get("CT", "0"))
    if CT:
        lab = "ct_here_%d" % int(kv_first)
        g.s("s_getpc_b64 s[60:61]")
        g.label(lab)
        g.s("s_sub_u32 s60, s60, %s-attn_kernel" % lab)
        g.s("s_subb_u32 s61, s61, 0")
        g.s("s_and_b32 s61, s61, 0xffff")
        g.s("s_mov_b32 s62, attn_code_end-attn_kernel")
        g.s("s_mov_b32 s63, 0x00020000")
        g.s("s_lshl_b32 s55, s3, 13")
        vop(g, "v_lshlrev_b32 %s, 7, %s" % (vr(V_T + 2), vr(V_LANE)), V_T + 2, [V_LANE])
        g.vload("buffer_load_dword %s, %s, s[60:63], s55 offen" % (vr(V_T + 3), vr(V_T + 2)), "TCH", dst=[V_T + 3], addr=[V_T + 2])
    nsteps = 16
    g.wait_vm("W0")
    g.s("s_mov_b64 exec, %s" % sr(S_CL, 2))
    g.vload("buffer_atomic_or %s, off, %s, %s sc0" % (vr(V_CLAIM), sr(SRD_DBG, 4), sr(S_GOFF)), "CL", dst=[V_CLAIM])
    vop(g, "v_mov_b32 %s, %s" % (vr(V_T + 2), sr(S_PADD)), V_T + 2)
    g.vstore("buffer_atomic_add %s, off, %s, %s offset:64" % (vr(V_T + 2), sr(SRD_DBG, 4), sr(S_GOFF)), "CL", data=[V_T + 2])
    g.s("s_mov_b64 exec, -1")
    g.barrier()
    for t in range(8):
        tr_reads(0, t)
    perm_b(0)
    for s in range(nsteps):
        g.comment("---- gemm step %d" % s)
        if s + 1 < nsteps:
            g.wait_vm("W%d" % (s + 1))
            g.barrier()
        if s % 4 == 0:
            stamp(g, 0, V_T)
        if s + NSLOT - 1 < nsteps:
            issue_w(s + NSLOT - 1)
        pcut = [[0, 2, 4, 6, 8, 9, 10, 11, 12], [0, 5, 6, 7, 8, 9, 10, 11, 12], [0, 9, 9, 10, 10, 11, 11, 12, 12], [0, 12, 12, 12, 12, 12, 12, 12, 12]][XD]
        for t in range(8):
            g.wait_lg("A%d_%d" % (s, t))
            if t == 0:
                g.wait_lg("F%d" % s)
            for u in range(3):
                g.mfma(acc(t, u), R_A + t * 4, bfrag(s, u), None if s == 0 else acc(t, u))
            if s + 1 < nsteps:
                tr_reads(s + 1, t)
                perm_b(s + 1, pcut[t], pcut[t + 1])
        if s + NB < nsteps:
            g.wait_lg("F%d" % (s + 1))
            issue_b(s + NB)
        if sched:
            trickle(24 if s == nsteps - 1 else sched[s + 1])
        elif KVS:
            trickle(KVS[s + 1] if s + 1 < len(KVS) else (24 if s == nsteps - 1 else 0))
        elif s == nsteps - NB - 1 and not kv_first:
            issue_kv()

    post_gemm_addrs(g)
    if WOPF == 2:
        g.vload("buffer_load_dword %s, %s, %s, 0 offen" % (vr(V_T + 3), vr(V_WO), sr(SRD_WO, 4)), "TCH", dst=[V_T + 3], addr=[V_WO])
    if WOPF == 3:
        vop(g, "v_and_b32 %s, 0xfffff, %s" % (vr(V_WO), vr(V_WO)), V_WO, [V_WO])
        for i in range(4):
            g.s("s_mov_b32 %s, %d" % (sr(S_TMP), i << 20))
            g.vload("buffer_load_dword %s, %s, %s, %s offen" % (vr(V_T + 3), vr(V_WO), sr(SRD_WO, 4), sr(S_TMP)), "TCH", dst=[V_T + 3], addr=[V_WO])
    stamp(g, 0, V_T)
    for p in range(4):
        for u in range(3):
            pack_pair(g, acc(2 * p, u), acc(2 * p + 1, u))
    KA = R_B + 24
    KW = R_B + 32
    for m in range(4):
        vop(g, "v_xor_b32 %s, %d, %s" % (vr(KW + m), m * 64, vr(V_KW)), KW + m, [V_KW])
    for c in range(8):
        vop(g, "v_xor_b32 %s, %d, %s" % (vr(KA + c), c * 32, vr(V_KR)), KA + c, [V_KR])

    def sacc(kt, u):
        i = kt * 3 + u
        if i < 12:
            return acc(1 + 2 * (i // 3), i % 3)
        return R_B + (i - 12) * 4

    def k_write(i, slot_off):
        g.wait_vm("K%d" % i)
        for m in range(4):
            d = R_K + (i * 4 + m) * 4
            g.dswrite("ds_write_b128 %s, %s offset:%d" % (vr(KW + m), vr(d, 4), slot_off + m * 1024), "KW", data=rng(d, 4), addr=[KW + m])

    def k_reads(n, slot_off):
        for p in range(4):
            for j in range(2):
                d = R_A + ((n & 1) * 4 + p) * 4 + 2 * j
                g.dsread("ds_read_b64 %s, %s offset:%d" % (vr(d, 2), vr(KA + 2 * p + j), slot_off), "KF%d_%d" % (n, p), dst=rng(d, 2), addr=[KA + 2 * p + j])

    def s_tile(n, kt):
        for p in range(4):
            g.wait_lg("KF%d_%d" % (n, p))
            for u in range(3):
                g.mfma(sacc(kt, u), R_A + ((n & 1) * 4 + p) * 4, acc(2 * p, u), None if p == 0 else sacc(kt, u))

    g.barrier()
    k_write(0, 0)
    k_write(1, 4096)
    g.wait_lg("KW")
    g.barrier()
    r1 = [0, 1, 3, 4]
    k_reads(0, 0)
    for n in range(4):
        if n + 1 < 4:
            k_reads(n + 1, (n + 1) * 4096)
        s_tile(n, r1[n])
    g.barrier()
    for m in range(4):
        vop(g, "v_subrev_u32 %s, %s, %s" % (vr(KW + m), sr(S_W4K), vr(KW + m)), KW + m, [KW + m])
    for c in range(8):
        vop(g, "v_subrev_u32 %s, %s, %s" % (vr(KA + c), sr(S_B8K), vr(KA + c)), KA + c, [KA + c])
    k_write(2, 0)
    g.wait_lg("KW")
    g.barrier()
    k_reads(4, 0)
    k_reads(5, 4096)
    s_tile(4, 2)
    s_tile(5, 5)
    stamp(g, 0, V_T)
    def v_reads(pp, t):
        for j in range(2):
            d = R_A + t * 4 + j * 2
            g.dsread("ds_read_b64_tr_b16 %s, %s offset:%d" % (vr(d, 2), vr(V_A + t), pp * 8192 + j * 4096),
                     "VT%d_%d" % (pp, t), dst=rng(d, 2), addr=[V_A + t])

    def v_ready():
        g.comment("---- V ready barrier, V addresses")
        g.wait_vm("V")
        g.barrier()
        for t in range(8):
            v_reads(0, t)

    for t in range(8):
        vop(g, "v_add_u32 %s, %s, %s" % (vr(V_A + t), vr(V_A + t), vr(V_DELTA)), V_A + t, [V_A + t, V_DELTA])
    if not VLATE:
        v_ready()
    g.vload("buffer_load_dword %s, off, %s, %s offset:64 sc1" % (vr(V_MASK), sr(SRD_DBG, 4), sr(S_GOFF)), "MK", dst=[V_MASK])
    PT = int(os.environ.get("PT", "0"))
    if PT & 1:
        a = R_B + 24
        vop(g, "v_and_b32 %s, 3, %s" % (vr(a), vr(V_LANE)), a, [V_LANE])
        vop(g, "v_min_u32 %s, 2, %s" % (vr(a), vr(a)), a, [a])
        vop(g, "v_lshl_add_u32 %s, %s, 17, %s" % (vr(a), vr(a), vr(V_O)), a, [a, V_O])
        g.vload("buffer_load_dword %s, %s, %s, 0 offen" % (vr(V_T + 3), vr(a), sr(SRD_WS, 4)), "TCH", dst=[V_T + 3], addr=[a])
    if PT & 2:
        a = R_B + 25
        g.s("s_and_b32 s55, %s, 3" % sr(S_ME))
        g.s("s_mul_i32 s55, s55, %d" % (384 * 2048))
        g.s("s_mul_i32 s56, s3, %d" % (48 * 2048))
        g.s("s_add_u32 s55, s55, s56")
        vop(g, "v_lshlrev_b32 %s, 11, %s" % (vr(a), vr(V_LANE)), a, [V_LANE])
        g.vload("buffer_load_dword %s, %s, %s, s55 offen" % (vr(V_T + 3), vr(a), sr(SRD_OUT, 4)), "TCH", dst=[V_T + 3], addr=[a])
    if PT & 4:
        a = R_B + 26
        g.s("s_bfe_u32 s55, %s, 0x30003" % sr(S_ME))
        g.s("s_lshl_b32 s56, %s, 1" % sr(S_GOFF))
        g.s("s_add_u32 s55, s55, s56")
        g.s("s_mul_i32 s55, s55, %d" % (16 * 24576))
        g.s("s_and_b32 s56, s3, 1")
        g.s("s_mul_i32 s56, s56, %d" % (48 * 4096))
        g.s("s_add_u32 s55, s55, s56")
        g.s("s_add_u32 s55, s55, %d" % (96 * 1024 * 1024))
        vop(g, "v_lshlrev_b32 %s, 12, %s" % (vr(a), vr(V_LANE)), a, [V_LANE])
        g.vload("buffer_load_dword %s, %s, %s, s55 offen" % (vr(V_T + 3), vr(a), sr(SRD_WS, 4)), "TCH", dst=[V_T + 3], addr=[a])
    stamp(g, 0, V_T)

    def pfrag(pp, u):
        return R_K + (pp * 3 + u) * 4
    TMP = R_K + 36
    for u in range(3):
        a, b = TMP, TMP + 1
        for kt in range(6):
            r = sacc(kt, u)
            for rep in range(2):
                g.valu("v_cvt_pk_bf16_f32 %s, %s, %s" % (vr(a), vr(r), vr(r + 1)), dst=[a], src=[r, r + 1])
                g.valu("v_cvt_pk_bf16_f32 %s, %s, %s" % (vr(b), vr(r + 2), vr(r + 3)), dst=[b], src=[r + 2, r + 3])
                vop(g, "v_lshlrev_b32 %s, 16, %s" % (vr(r), vr(a)), r, [a])
                vop(g, "v_and_b32 %s, 0xffff0000, %s" % (vr(r + 1), vr(a)), r + 1, [a])
                vop(g, "v_lshlrev_b32 %s, 16, %s" % (vr(r + 2), vr(b)), r + 2, [b])
                vop(g, "v_and_b32 %s, 0xffff0000, %s" % (vr(r + 3), vr(b)), r + 3, [b])
                if rep == 0:
                    g.valu("v_pk_mul_f32 %s, %s, %s" % (vr(r, 2), vr(r, 2), sr(S_SC, 2)), dst=[r, r + 1], src=[r, r + 1])
                    g.valu("v_pk_mul_f32 %s, %s, %s" % (vr(r + 2, 2), vr(r + 2, 2), sr(S_SC, 2)), dst=[r + 2, r + 3], src=[r + 2, r + 3])
        vals = [sacc(kt, u) + r for kt in range(6) for r in range(4)]
        m = TMP + 2
        vop(g, "v_max3_f32 %s, %s, %s, %s" % (vr(m), vr(vals[0]), vr(vals[1]), vr(vals[2])), m, vals[0:3])
        i = 3
        while i < 24:
            if i + 1 < 24:
                vop(g, "v_max3_f32 %s, %s, %s, %s" % (vr(m), vr(m), vr(vals[i]), vr(vals[i + 1])), m, [m, vals[i], vals[i + 1]])
                i += 2
            else:
                vop(g, "v_max_f32 %s, %s, %s" % (vr(m), vr(m), vr(vals[i])), m, [m, vals[i]])
                i += 1
        xlane_reduce(g, m, TMP + 3, "v_max_f32")
        for v in vals:
            vop(g, "v_sub_f32 %s, %s, %s" % (vr(v), vr(v), vr(m)), v, [v, m])
        for k in range(0, 24, 2):
            v = vals[k]
            g.valu("v_pk_mul_f32 %s, %s, %s" % (vr(v, 2), vr(v, 2), sr(S_L2E, 2)), dst=[v, v + 1], src=[v, v + 1])
        for v in vals:
            g.valu("v_exp_f32 %s, %s" % (vr(v), vr(v)), dst=[v], src=[v], trans=True)
        sm = TMP + 4
        g.valu("v_pk_add_f32 %s, %s, %s" % (vr(sm, 2), vr(vals[0], 2), vr(vals[2], 2)), dst=[sm, sm + 1], src=vals[0:4])
        for k in range(4, 24, 2):
            g.valu("v_pk_add_f32 %s, %s, %s" % (vr(sm, 2), vr(sm, 2), vr(vals[k], 2)), dst=[sm, sm + 1], src=[sm, sm + 1, vals[k], vals[k] + 1])
        vop(g, "v_add_f32 %s, %s, %s" % (vr(sm), vr(sm), vr(sm + 1)), sm, [sm, sm + 1])
        xlane_reduce(g, sm, TMP + 3, "v_add_f32")
        g.valu("v_rcp_f32 %s, %s" % (vr(sm), vr(sm)), dst=[sm], src=[sm], trans=True)
        vop(g, "v_mov_b32 %s, %s" % (vr(sm + 1), vr(sm)), sm + 1, [sm])
        for k in range(0, 24, 2):
            v = vals[k]
            g.valu("v_pk_mul_f32 %s, %s, %s" % (vr(v, 2), vr(v, 2), vr(sm, 2)), dst=[v, v + 1], src=[v, v + 1, sm, sm + 1])
        for pp in range(3):
            d = pfrag(pp, u)
            lo, hi = sacc(2 * pp, u), sacc(2 * pp + 1, u)
            g.valu("v_cvt_pk_bf16_f32 %s, %s, %s" % (vr(d), vr(lo), vr(lo + 1)), dst=[d], src=[lo, lo + 1])
            g.valu("v_cvt_pk_bf16_f32 %s, %s, %s" % (vr(d + 1), vr(lo + 2), vr(lo + 3)), dst=[d + 1], src=[lo + 2, lo + 3])
            g.valu("v_cvt_pk_bf16_f32 %s, %s, %s" % (vr(d + 2), vr(hi), vr(hi + 1)), dst=[d + 2], src=[hi, hi + 1])
            g.valu("v_cvt_pk_bf16_f32 %s, %s, %s" % (vr(d + 3), vr(hi + 2), vr(hi + 3)), dst=[d + 3], src=[hi + 2, hi + 3])
    if VLATE:
        v_ready()
    stamp(g, 0, V_T)
    for pp in range(3):
        for t in range(8):
            g.wait_lg("VT%d_%d" % (pp, t))
            for u in range(3):
                g.mfma(acc(t, u), R_A + t * 4, pfrag(pp, u), None if pp == 0 else acc(t, u))
            if pp < 2:
                v_reads(pp + 1, t)
    stamp(g, 0, V_T)
    if WOPF == 1:
        g.vload("buffer_load_dword %s, %s, %s, 0 offen" % (vr(V_T + 3), vr(V_WO), sr(SRD_WO, 4)), "TCH", dst=[V_T + 3], addr=[V_WO])
    for p in range(4):
        for u in range(3):
            pack_pair(g, acc(2 * p, u), acc(2 * p + 1, u))
    g.wait_vm("MK")
    g.valu("v_readfirstlane_b32 %s, %s" % (sr(S_PSEEN), vr(V_MASK)), src=[V_MASK], readlane=True, sdst=[S_PSEEN])
    lab = "st_wt_%d" % int(kv_first)
    if not REL:
        g.s("s_cmp_lg_u32 %s, %s" % (sr(S_PSEEN), sr(S_PEXP)))
        g.s("s_cbranch_scc1 %s" % lab)
    q0 = list(g.vmq)
    for fl in ("", " sc1"):
        if fl:
            if REL:
                break
            g.label(lab)
            g.vmq = list(q0)
        for p in range(4):
            for u in range(3):
                g.s("s_mov_b32 %s, %d" % (sr(S_TMP), u * 131072))
                d = acc(2 * p, u)
                g.vstore("buffer_store_dwordx4 %s, %s, %s, %s offen offset:%d%s" % (vr(d, 4), vr(V_O), sr(SRD_WS, 4), sr(S_TMP), p * 1024, fl),
                         "ST", data=rng(d, 4), addr=[V_O])
        g.s("s_branch attn_tail")


def gen_attn():
    g = Gen()
    g.s("s_cmp_ge_u32 s2, 256")
    g.s("s_cbranch_scc1 attn_end")
    vop(g, "v_lshrrev_b32 v7, 6, v0", 7, [0])
    vop(g, "v_and_b32 %s, 63, v0" % vr(V_LANE), V_LANE, [0])
    g.valu("v_readfirstlane_b32 %s, v7" % sr(S_WAVE), src=[7], readlane=True, sdst=[S_WAVE])
    g.s("s_mov_b32 %s, s2" % sr(S_ME))
    g.s("s_mov_b32 %s, 0" % sr(S_STOLEN))
    g.s("s_mov_b32 %s, 0" % sr(S_PSEEN))
    g.s("s_load_dwordx4 s[80:83], s[0:1], 80")
    g.s("s_getreg_b32 s4, hwreg(HW_REG_XCC_ID, 0, 4)")
    g.s("s_mul_i32 s5, s4, s4")
    g.s("s_lshl_b32 s5, s5, 16")
    g.s("s_lshl_b32 s4, s4, 6")
    g.s("s_add_u32 s4, s4, s5")
    g.s("s_add_u32 %s, s4, 1" % sr(S_PADD))
    g.s("s_lshl_b32 %s, %s, 5" % (sr(S_PEXP), sr(S_PADD)))
    g.nop(4)
    g.s("s_cmp_eq_u32 s3, 0")
    g.s("s_cselect_b32 %s, 1, 0" % sr(S_W0))
    g.s("s_mov_b32 %s, 0" % sr(S_W0 + 1))
    g.s("s_mov_b32 %s, %s" % (sr(S_CL), sr(S_W0)))
    g.s("s_mov_b32 %s, 0" % sr(S_CL + 1))
    if FORCE_STEAL:
        g.s("s_bfe_u32 s4, s2, 0x30005")
        g.s("s_cmp_eq_u32 s4, %d" % (FORCE_STEAL - 1))
        g.s("s_cselect_b32 s90, 1, 0")
    g.label("job_start")
    lane_setup(g)
    g.s("s_bfe_u32 s6, s2, 0x10002")
    g.s("s_and_b32 s5, s2, 3")
    g.s("s_lshr_b32 s43, s2, 3")
    g.s("s_and_b32 s40, s43, 1")
    g.s("s_mul_i32 s16, s6, 40")
    g.s("s_add_u32 s18, s0, s16")
    g.s("s_addc_u32 s19, s1, 0")
    g.s("s_load_dwordx8 s[8:15], s[18:19], 0")
    g.s("s_load_dwordx2 s[16:17], s[0:1], 96")
    g.s("s_load_dwordx2 s[68:69], s[18:19], 32")
    g.s("s_lshr_b32 s41, s3, 1")
    g.s("s_and_b32 s42, s3, 1")
    g.s("s_lshl_b32 s44, s5, 2")
    g.s("s_add_u32 s44, s44, s41")
    g.s("s_lshl_b32 s45, s44, 5")
    g.s("s_add_u32 s45, s45, s43")
    g.s("s_mul_i32 s45, s45, 24576")
    g.s("s_mov_b32 %s, 0x3db504f3" % sr(S_SC))
    g.s("s_mov_b32 %s, 0x3db504f3" % sr(S_SC + 1))
    g.s("s_mov_b32 %s, 0x3fb8aa3b" % sr(S_L2E))
    g.s("s_mov_b32 %s, 0x3fb8aa3b" % sr(S_L2E + 1))
    g.s("s_mul_i32 s55, s44, 98304")
    g.s("s_mul_i32 s56, s42, 49152")
    g.s("s_add_u32 s55, s55, s56")
    vop(g, "v_lshrrev_b32 v8, 2, v1", 8, [1])
    vop(g, "v_lshlrev_b32 v8, 10, v8", 8, [8])
    vop(g, "v_lshl_add_u32 v8, v5, 4, v8", 8, [5, 8])
    vop(g, "v_add_u32 %s, s55, v8" % vr(V_X), V_X, [8])
    if XD:
        vop(g, "v_lshlrev_b32 v8, 10, v2", 8, [2])
        vop(g, "v_lshl_add_u32 v8, v3, 4, v8", 8, [3, 8])
        vop(g, "v_add_u32 %s, s55, v8" % vr(V_X2), V_X2, [8])
    g.s("s_mul_i32 s55, s42, 12288")
    g.s("s_add_u32 s55, s55, s45")
    vop(g, "v_lshlrev_b32 v8, 4, v1", 8, [1])
    vop(g, "v_add_u32 %s, s55, v8" % vr(V_K), V_K, [8])
    g.s("s_lshl_b32 %s, s3, 12" % sr(S_W4K))
    g.s("s_lshl_b32 %s, s41, 13" % sr(S_B8K))
    g.s("s_mul_i32 s55, s42, 12288")
    g.s("s_add_u32 s55, s55, s45")
    for par in range(2):
        vop(g, "v_add_u32 v8, %d, v3" % (4 * par), 8, [3])
        vop(g, "v_lshlrev_b32 v8, 1, v8", 8, [8])
        vop(g, "v_xor_b32 v8, v8, v2", 8, [8, 2])
        vop(g, "v_lshlrev_b32 v8, 4, v8", 8, [8])
        vop(g, "v_lshl_add_u32 v8, v3, 8, v8", 8, [3, 8])
        vop(g, "v_add_u32 %s, s55, v8" % vr(V_VD0 + par), V_VD0 + par, [8])
    g.s("s_and_b32 s55, s41, 1")
    g.s("s_lshl_b32 s55, s55, 2")
    vop(g, "v_or_b32 v8, s55, v3", 8, [3])
    vop(g, "v_lshlrev_b32 v8, 1, v8", 8, [8])
    vop(g, "v_xor_b32 v8, v8, v2", 8, [8, 2])
    vop(g, "v_lshlrev_b32 v8, 4, v8", 8, [8])
    vop(g, "v_lshl_add_u32 v8, v3, 13, v8", 8, [3, 8])
    g.s("s_lshl_b32 s55, s3, 15")
    g.s("s_lshl_b32 s56, s43, 8")
    g.s("s_add_u32 s55, s55, s56")
    vop(g, "v_add_u32 %s, s55, v8" % vr(V_W), V_W, [8])
    g.s("s_lshl_b32 %s, s3, 10" % sr(S_M0W))
    vop(g, "v_lshlrev_b32 v8, 3, v3", 8, [3])
    vop(g, "v_add_u32 v8, v8, v4", 8, [8, 4])
    vop(g, "v_lshlrev_b32 v8, 8, v8", 8, [8])
    vop(g, "v_lshl_add_u32 v8, v5, 3, v8", 8, [8, 5])
    for t in range(8):
        vop(g, "v_xor_b32 v9, %d, v6" % t, 9, [6])
        vop(g, "v_lshl_add_u32 %s, v9, 5, v8" % vr(V_A + t), V_A + t, [9, 8])
    g.s("s_mul_i32 s55, s41, 24576")
    g.s("s_add_u32 s55, s55, %d" % A_V_LDS)
    g.s("s_mul_i32 s56, s42, 12288")
    g.s("s_add_u32 %s, s55, s56" % sr(S_M0V))
    g.s("s_lshl_b32 s55, s6, 2")
    g.s("s_add_u32 s55, s55, s5")
    g.s("s_lshl_b32 %s, s55, 2" % sr(S_GOFF))
    g.s("s_add_u32 %s, %s, 128" % (sr(S_GOFF + 1), sr(S_GOFF)))
    g.s("s_lshl_b32 s55, 1, s43")
    vop(g, "v_mov_b32 %s, s55" % vr(V_CLAIM), V_CLAIM)
    vop(g, "v_lshl_add_u32 v8, v2, 2, v3", 8, [2, 3])
    vop(g, "v_lshlrev_b32 %s, 2, v8" % vr(V_BP), V_BP, [8])
    g.waitcnt(lg=0)
    make_srd(g, SRD_X, 8, 1572864)
    make_srd(g, SRD_K, 10, 12582912)
    make_srd(g, SRD_V, 12, 12582912)
    make_srd(g, SRD_W, 14, 4194304)
    make_srd(g, SRD_WS, 16, WS_BYTES)
    make_srd(g, SRD_WO, 68, 4194304)
    make_srd(g, SRD_OUT, 80, 16 * 96 * 1024 * 2)
    make_srd(g, SRD_DBG, 82, 256)
    if FORCE_STEAL:
        g.s("s_cmp_eq_u32 s90, 1")
        g.s("s_mov_b32 s90, 0")
        g.s("s_cbranch_scc1 steal")
    g.s("s_lshl_b32 s55, %s, 6" % sr(S_GOFF))
    g.s("s_lshl_b32 s56, s43, 2")
    g.s("s_add_u32 s55, s55, s56")
    g.s("s_add_u32 %s, s55, %d" % (sr(S_FOFF), FLG))
    vop(g, "v_mov_b32 %s, 0" % vr(V_T + 2), V_T + 2)
    g.s("s_mov_b64 exec, %s" % sr(S_CL, 2))
    g.vstore("buffer_store_dword %s, off, %s, %s" % (vr(V_T + 2), sr(SRD_WS, 4), sr(S_FOFF)), "FC", data=[V_T + 2])
    g.s("s_mov_b64 exec, -1")
    if TOUCH:
        g.s("s_lshl_b32 s55, s3, 18")
        g.s("s_add_u32 s55, s55, %d" % (256 * 8192))
        g.s("s_lshl_b32 s56, s43, 8")
        g.s("s_add_u32 s55, s55, s56")
        vop(g, "v_lshrrev_b32 v8, 2, v1", 8, [1])
        vop(g, "v_lshlrev_b32 v8, 13, v8", 8, [8])
        vop(g, "v_lshl_add_u32 v8, v5, 6, v8", 8, [5, 8])
        vop(g, "v_add_u32 v8, s55, v8", 8, [8])
        for i in range(2):
            g.s("s_mov_b32 %s, %d" % (sr(S_TMP), i * 16 * 8192))
            g.vload("buffer_load_dword %s, v8, %s, %s offen" % (vr(V_T + 3), sr(SRD_W, 4), sr(S_TMP)), "TCH", dst=[V_T + 3], addr=[8])
        g.s("s_mul_i32 s55, s5, 393216")
        g.s("s_lshl_b32 s56, s43, 3")
        g.s("s_add_u32 s56, s56, s3")
        g.s("s_mul_i32 s56, s56, 1536")
        g.s("s_add_u32 s55, s55, s56")
        vop(g, "v_lshlrev_b32 v9, 6, v1", 9, [1])
        vop(g, "v_add_u32 v9, s55, v9", 9, [9])
        g.vload("buffer_load_dword %s, v9, %s, 0 offen" % (vr(V_T + 3), sr(SRD_X, 4)), "TCH", dst=[V_T + 3], addr=[9])
    if not KVS:
        g.s("s_cmp_eq_u32 s40, 1")
        g.s("s_cbranch_scc1 attn_kvfirst")
    t0 = g.text()
    gb = Gen()
    gb.vmq = list(g.vmq)
    _stamp_n[0] = 0
    attn_body(gb, False)
    if KVS:
        return t0 + gb.text()
    ga = Gen()
    ga.vmq = list(g.vmq)
    _stamp_n[0] = 0
    ga.label("attn_kvfirst")
    attn_body(ga, True)
    return t0 + gb.text() + ga.text()


O_ACC = 0
O_A = 96
O_B = 112
O_VA = 184
O_VX = 188
O_VW = 189
O_VO = 190
O_VL = 191
O_VZ = 240
O_VT = 192


def oproj_setup(g):
    lane_setup(g)
    g.s("s_bfe_u32 s6, %s, 0x10002" % sr(S_ME))
    g.s("s_bfe_u32 s7, %s, 0x20003" % sr(S_ME))
    g.s("s_and_b32 s40, %s, 3" % sr(S_ME))
    g.s("s_lshr_b32 s41, %s, 5" % sr(S_ME))
    g.s("s_mul_i32 s55, s40, 24")
    g.s("s_mul_i32 s56, s7, 6")
    g.s("s_add_u32 s42, s55, s56")
    g.s("s_lshl_b32 s55, s42, 7")
    g.s("s_lshl_b32 s56, s3, 4")
    g.s("s_add_u32 s55, s55, s56")
    g.s("s_lshl_b32 s55, s55, 10")
    g.s("s_mul_i32 s56, s6, %d" % O_BLOCK_BYTES)
    g.s("s_add_u32 s55, s55, s56")
    vop(g, "v_lshlrev_b32 %s, 4, v1" % vr(O_VL), O_VL, [1])
    vop(g, "v_add_u32 %s, s55, %s" % (vr(O_VX), vr(O_VL)), O_VX, [O_VL])
    vop(g, "v_and_b32 v8, 7, v1", 8, [1])
    vop(g, "v_lshlrev_b32 v9, 1, v3", 9, [3])
    vop(g, "v_xor_b32 v8, v8, v9", 8, [8, 9])
    vop(g, "v_lshlrev_b32 v8, 4, v8", 8, [8])
    vop(g, "v_lshrrev_b32 v9, 3, v1", 9, [1])
    vop(g, "v_lshl_add_u32 v8, v9, 10, v8", 8, [8, 9])
    g.s("s_lshl_b32 s55, s41, 7")
    g.s("s_lshl_b32 s56, s3, 19")
    g.s("s_add_u32 s55, s55, s56")
    vop(g, "v_add_u32 %s, s55, v8" % vr(O_VW), O_VW, [8])
    g.s("s_lshl_b32 %s, s3, 14" % sr(S_M0W))
    g.s("s_add_u32 %s, %s, %d" % (sr(S_M0W), sr(S_M0W), O_LDS))
    vop(g, "v_lshlrev_b32 v8, 2, v3", 8, [3])
    vop(g, "v_add_u32 v8, v8, v4", 8, [8, 4])
    vop(g, "v_bfe_u32 v9, v8, 1, 2", 9, [8])
    vop(g, "v_lshlrev_b32 v8, 7, v8", 8, [8])
    vop(g, "v_lshl_add_u32 v8, v5, 3, v8", 8, [8, 5])
    vop(g, "v_add_u32 v8, %s, v8" % sr(S_M0W), 8, [8])
    for t in range(4):
        vop(g, "v_xor_b32 v10, %d, v9" % t, 10, [9])
        vop(g, "v_lshl_add_u32 %s, v10, 5, v8" % vr(O_VA + t), O_VA + t, [10, 8])
    g.s("s_lshl_b32 s55, s42, 4")
    g.s("s_lshl_b32 s55, s55, 10")
    g.s("s_lshl_b32 s56, s6, 9")
    g.s("s_add_u32 s55, s55, s56")
    g.s("s_lshl_b32 s56, s41, 6")
    g.s("s_add_u32 s55, s55, s56")
    g.s("s_lshl_b32 s55, s55, 1")
    vop(g, "v_lshlrev_b32 v8, 11, v2", 8, [2])
    vop(g, "v_lshl_add_u32 v8, v3, 3, v8", 8, [3, 8])
    vop(g, "v_add_u32 %s, s55, v8" % vr(O_VO), O_VO, [8])
    vop(g, "v_mov_b32 %s, 0" % vr(O_VZ), O_VZ)


def gen_steal():
    g = Gen()
    A, B = O_VT, O_VT + 1
    g.label("steal")
    g.waitcnt(vm=0, lg=0)
    g.barrier()
    g.s("s_cmp_lg_u32 s3, 0")
    g.s("s_cbranch_scc1 steal_join")
    g.label("steal_retry")
    g.vload("buffer_load_dword %s, off, %s, %s sc1" % (vr(A), sr(SRD_DBG, 4), sr(S_GOFF)), "X", dst=[A])
    g.waitcnt(vm=0)
    g.valu("v_readfirstlane_b32 s55, %s" % vr(A), src=[A], readlane=True, sdst=[55])
    g.s("s_mov_b32 s56, -1")
    g.s("s_cmp_eq_u32 s55, -1")
    g.s("s_cbranch_scc1 steal_pub")
    g.s("s_ff0_i32_b32 s56, s55")
    g.s("s_lshl_b32 s57, 1, s56")
    vop(g, "v_mov_b32 %s, s57" % vr(A), A)
    g.s("s_mov_b64 exec, 1")
    g.vload("buffer_atomic_or %s, off, %s, %s sc0" % (vr(A), sr(SRD_DBG, 4), sr(S_GOFF)), "X", dst=[A])
    g.s("s_mov_b64 exec, -1")
    g.waitcnt(vm=0)
    g.valu("v_readfirstlane_b32 s55, %s" % vr(A), src=[A], readlane=True, sdst=[55])
    g.s("s_and_b32 s55, s55, s57")
    g.s("s_cmp_lg_u32 s55, 0")
    g.s("s_cbranch_scc1 steal_retry")
    g.label("steal_pub")
    vop(g, "v_mov_b32 %s, s56" % vr(A), A)
    vop(g, "v_mov_b32 %s, 0" % vr(B), B)
    g.dswrite("ds_write_b32 %s, %s" % (vr(B), vr(A)), "X", data=[A], addr=[B])
    g.waitcnt(lg=0)
    g.label("steal_join")
    g.barrier()
    vop(g, "v_mov_b32 %s, 0" % vr(B), B)
    g.dsread("ds_read_b32 %s, %s" % (vr(A), vr(B)), "X", dst=[A], addr=[B])
    g.waitcnt(lg=0)
    g.valu("v_readfirstlane_b32 s56, %s" % vr(A), src=[A], readlane=True, sdst=[56])
    g.barrier()
    g.s("s_cmp_eq_u32 s56, -1")
    g.s("s_cbranch_scc1 steal_none")
    g.s("s_lshl_b32 s56, s56, 3")
    g.s("s_and_b32 s57, %s, 7" % sr(S_ME))
    g.s("s_or_b32 s2, s56, s57")
    g.s("s_mov_b32 %s, 1" % sr(S_STOLEN))
    g.s("s_mov_b32 %s, 0" % sr(S_CL))
    g.s("s_branch job_start")
    g.label("steal_none")
    oproj_setup(g)
    g.s("s_branch oproj_pf")
    return g.text()


def gen_oproj():
    g = Gen()

    def oacc(t, u):
        return O_ACC + (t * 6 + u) * 4

    def bfr(s, u):
        return O_B + ((s % 3) * 6 + u) * 4

    g.label("attn_tail")
    g.nop(2)
    oproj_setup(g)
    g.s("s_lshl_b32 s57, 1, s43")
    vop(g, "v_mov_b32 %s, s57" % vr(O_VT), O_VT)
    vop(g, "v_mov_b32 %s, 1" % vr(O_VT + 3), O_VT + 3)
    g.waitcnt(vm=0)
    stamp(g, 0, V_T)
    g.s("s_and_b32 s55, %s, 63" % sr(S_PSEEN))
    g.s("s_cmp_eq_u32 s55, 32")
    g.s("s_cselect_b32 s55, -1, 0")
    vop(g, "v_mov_b32 %s, s55" % vr(V_MASK), V_MASK)
    g.s("s_mov_b64 exec, %s" % sr(S_W0, 2))
    g.dswrite("ds_write_b32 %s, %s" % (vr(O_VZ), vr(V_MASK)), "X", data=[V_MASK], addr=[O_VZ])
    g.s("s_mov_b64 exec, -1")
    g.valu("v_readfirstlane_b32 s55, %s" % vr(V_CLAIM), src=[V_CLAIM], readlane=True, sdst=[55])
    g.s("s_and_b32 s55, s55, s57")
    g.s("s_cmp_eq_u32 s55, 0")
    g.s("s_cselect_b32 s55, 1, %s" % sr(S_STOLEN))
    g.s("s_and_b32 s58, s55, %s" % sr(S_W0))
    g.s("s_mov_b32 s59, 0")
    g.waitcnt(lg=0)
    g.lgq = []
    g.barrier()
    if REL:
        g.s("s_cmp_lg_u32 s3, 0")
        g.s("s_cbranch_scc1 rel_skip")
        g.s("buffer_wbl2 sc1")
        g.waitcnt(vm=0)
        g.label("rel_skip")
    g.s("s_mov_b64 exec, %s" % sr(S_CL, 2))
    g.vstore("buffer_store_dword %s, off, %s, %s" % (vr(O_VT + 3), sr(SRD_WS, 4), sr(S_FOFF)), "FS", data=[O_VT + 3])
    g.s("s_mov_b64 exec, s[58:59]")
    g.vstore("buffer_atomic_add %s, off, %s, %s" % (vr(O_VT), sr(SRD_DBG, 4), sr(S_GOFF + 1)), "DN", data=[O_VT])
    g.s("s_mov_b64 exec, -1")
    g.dsread("ds_read_b32 %s, %s" % (vr(O_VT + 1), vr(O_VZ)), "X", dst=[O_VT + 1], addr=[O_VZ])
    g.waitcnt(lg=0)
    g.lgq = []
    g.valu("v_readfirstlane_b32 s55, %s" % vr(O_VT + 1), src=[O_VT + 1], readlane=True, sdst=[55])
    g.s("s_cmp_lg_u32 s55, -1")
    g.s("s_cbranch_scc1 steal")
    g.label("oproj_pf")

    ROT = os.environ.get("ROT", "")

    def rot_idx(c, sh):
        g.s("s_add_u32 s9, s8, %d" % c)
        g.s("s_and_b32 s9, s9, 15")
        g.s("s_lshl_b32 s9, s9, %d" % sh)

    if ROT:
        for ln in ROT.split(";"):
            g.s(ln)

    def issue_w(c):
        if os.environ.get("ONOW") and c > 2:
            return
        if ROT:
            rot_idx(c, 15)
        for i in range(4):
            if ROT:
                g.s("s_add_u32 %s, s9, %d" % (sr(S_WOFF), i * 8192))
            else:
                g.s("s_mov_b32 %s, %d" % (sr(S_WOFF), c * 32768 + i * 8192))
            g.s("s_add_u32 m0, %s, %d" % (sr(S_M0W), (c % 4) * 4096 + i * 1024), m0=True)
            g.vload("buffer_load_dwordx4 %s, %s, %s offen%s lds" % (vr(O_VW), sr(SRD_WO, 4), sr(S_WOFF), os.environ.get("WOPOL", "")),
                    "W%d" % c, addr=[O_VW], lds=True)

    def issue_b(s):
        if os.environ.get("ONOB") and s > 2:
            return
        if ROT:
            rot_idx(s, 10)
        for u in range(6):
            if ROT:
                g.s("s_add_u32 %s, s9, %d" % (sr(S_TMP), u * 131072))
            else:
                g.s("s_mov_b32 %s, %d" % (sr(S_TMP), u * 131072 + (s >> 2) * 4096))
            d = bfr(s, u)
            g.vload("buffer_load_dwordx4 %s, %s, %s, %s offen offset:%d%s" % (vr(d, 4), vr(O_VX), sr(SRD_WS, 4), sr(S_TMP), 0 if ROT else (s & 3) * 1024, os.environ.get("OPOL", " sc1")),
                    "B%d" % s, dst=rng(d, 4), addr=[O_VX])

    def tr_reads(s, t):
        for j in range(2):
            d = O_A + t * 4 + j * 2
            g.dsread("ds_read_b64_tr_b16 %s, %s offset:%d" % (vr(d, 2), vr(O_VA + t), (s % 4) * 4096 + j * 2048),
                     "A%d_%d" % (s, t), dst=rng(d, 2), addr=[O_VA + t])

    LATEW = int(os.environ.get("LATEW", "0"))
    if not LATEW:
        for c in range(3):
            issue_w(c)
    g.s("s_cmp_lg_u32 %s, %s" % (sr(S_PSEEN), sr(S_PEXP)))
    g.s("s_cbranch_scc1 oproj_slowpoll")
    g.s("s_lshl_b32 s55, %s, 6" % sr(S_GOFF))
    g.s("s_lshl_b32 s56, s3, 4")
    g.s("s_add_u32 s55, s55, s56")
    g.s("s_add_u32 %s, s55, %d" % (sr(S_FPOLL), FLG))
    P = O_VT + 4
    g.label("oproj_poll")
    g.vload("buffer_load_dwordx4 %s, off, %s, %s sc1" % (vr(P, 4), sr(SRD_WS, 4), sr(S_FPOLL)), "P", dst=rng(P, 4))
    g.waitcnt(vm=0)
    g.vmq = []
    vop(g, "v_and_b32 %s, %s, %s" % (vr(P), vr(P), vr(P + 1)), P, [P, P + 1])
    vop(g, "v_and_b32 %s, %s, %s" % (vr(P + 2), vr(P + 2), vr(P + 3)), P + 2, [P + 2, P + 3])
    vop(g, "v_and_b32 %s, %s, %s" % (vr(P), vr(P), vr(P + 2)), P, [P, P + 2])
    g.valu("v_readfirstlane_b32 s55, %s" % vr(P), src=[P], readlane=True, sdst=[55])
    g.s("s_cmp_eq_u32 s55, 1")
    g.s("s_cbranch_scc1 oproj_go")
    g.s("s_sleep %d" % SLEEP)
    g.s("s_branch oproj_poll")
    g.label("oproj_slowpoll")
    for i in range(int(os.environ.get("SLOWX", "0"))):
        g.s("s_sleep 127")
    g.s("s_lshl_b32 s56, s3, 2")
    g.vload("buffer_load_dword %s, off, %s, %s sc1" % (vr(O_VT + 2), sr(SRD_DBG, 4), sr(S_GOFF + 1)), "P", dst=[O_VT + 2])
    g.waitcnt(vm=0)
    g.vmq = []
    g.valu("v_readfirstlane_b32 s55, %s" % vr(O_VT + 2), src=[O_VT + 2], readlane=True, sdst=[55])
    g.s("s_lshr_b32 s55, s55, s56")
    g.s("s_and_b32 s55, s55, 15")
    g.s("s_cmp_eq_u32 s55, 15")
    g.s("s_cbranch_scc1 oproj_go")
    g.s("s_sleep 127")
    g.s("s_sleep 127")
    g.s("s_branch oproj_slowpoll")
    g.label("oproj_go")
    stamp(g, 0, V_T)
    for c in range(3):
        if LATEW:
            issue_w(c)
        issue_b(c)
    g.wait_vm("W0")
    for t in range(4):
        tr_reads(0, t)
    nsteps = 16
    for s in range(nsteps):
        g.comment("---- step %d" % s)
        OBAR = int(os.environ.get("OBAR", "0"))
        if OBAR and s % OBAR == 0 and s > 0:
            g.barrier()
        if s % 4 == 0:
            stamp(g, 0, V_T)
        if s + 3 < nsteps:
            issue_w(s + 3)
        for t in range(4):
            g.wait_lg("A%d_%d" % (s, t))
            if t == 0:
                g.wait_vm("B%d" % s)
            for u in range(6):
                if os.environ.get("ONOM") and s > 0 and u >= int(os.environ.get("ONOM")) - 1:
                    continue
                g.mfma(oacc(t, u), O_A + t * 4, bfr(s, u), None if s == 0 else oacc(t, u))
            if s + 1 < nsteps:
                if t == 0:
                    g.wait_vm("W%d" % (s + 1))
                if not (os.environ.get("ONOTR") and s > 0):
                    tr_reads(s + 1, t)
        if s + 3 < nsteps:
            issue_b(s + 3)
    stamp(g, 0, V_T)
    g.s("s_lshl_b32 s55, s3, 13")
    g.s("s_lshl_b32 s56, s3, 10")
    g.s("s_add_u32 s55, s55, %d" % O_LDS)
    g.s("s_add_u32 s56, s56, %d" % O_LDS)
    vop(g, "v_add_u32 %s, s55, %s" % (vr(O_VA), vr(O_VL)), O_VA, [O_VL])
    vop(g, "v_add_u32 %s, s56, %s" % (vr(O_VA + 1), vr(O_VL)), O_VA + 1, [O_VL])
    vop(g, "v_add_u32 %s, 0x10000, %s" % (vr(O_VA + 2), vr(O_VA)), O_VA + 2, [O_VA])
    vop(g, "v_add_u32 %s, 0x10000, %s" % (vr(O_VA + 3), vr(O_VA + 1)), O_VA + 3, [O_VA + 1])
    g.barrier()
    for ph in range(3):
        wa = O_VA + 2 * (ph & 1)
        ra = wa + 1
        for i in range(8):
            d = O_ACC + (8 * ph + i) * 4
            g.dswrite("ds_write_b128 %s, %s offset:%d" % (vr(wa), vr(d, 4), i * 1024), "RW", data=rng(d, 4), addr=[wa])
        g.wait_lg("RW")
        g.barrier()
        T = O_VT + 4
        for w2 in range(8):
            d = T + w2 * 4
            g.dsread("ds_read_b128 %s, %s offset:%d" % (vr(d, 4), vr(ra), w2 * 8192), "RR%d" % w2, dst=rng(d, 4), addr=[ra])
        for w2 in range(1, 8):
            g.wait_lg("RR%d" % w2)
            for h in range(2):
                d = T + h * 2
                s_ = T + w2 * 4 + h * 2
                g.valu("v_pk_add_f32 %s, %s, %s" % (vr(d, 2), vr(d, 2), vr(s_, 2)), dst=[d, d + 1], src=[d, d + 1, s_, s_ + 1])
        o = O_VT + 40 + ph * 2
        g.valu("v_cvt_pk_bf16_f32 %s, %s, %s" % (vr(o), vr(T), vr(T + 1)), dst=[o], src=[T, T + 1])
        g.valu("v_cvt_pk_bf16_f32 %s, %s, %s" % (vr(o + 1), vr(T + 2), vr(T + 3)), dst=[o + 1], src=[T + 2, T + 3])
        g.s("s_add_u32 s55, s3, %d" % (8 * ph))
        g.s("s_mul_i32 s56, s55, 43")
        g.s("s_lshr_b32 s56, s56, 8")
        g.s("s_mul_i32 s57, s56, 6")
        g.s("s_sub_u32 s57, s55, s57")
        g.s("s_lshl_b32 s57, s57, 15")
        g.s("s_lshl_b32 s56, s56, 5")
        g.s("s_add_u32 s57, s57, s56")
        g.vstore("buffer_store_dwordx2 %s, %s, %s, s57 offen" % (vr(o, 2), vr(O_VO), sr(SRD_OUT, 4)), "ST", data=rng(o, 2), addr=[O_VO])
    if STAMP:
        g.wait_vm("ST")
        stamp(g, 0, V_T)
    g.label("attn_end")
    g.s("s_endpgm")
    g.label("attn_code_end")
    return g.text()


HEADER = """; Kernarg layout for this problem (104 bytes, ptrs only, base s[0:1]):
; @launch kernel=attn_kernel grid=(256,1,1) block=(512,1,1) lds=163840
.amdgcn_target "amdgcn-amd-amdhsa--gfx950"
.text
"""


def kernel_text(name, body):
    return (".globl %s\n.p2align 8\n.type %s,@function\n%s:\n" % (name, name, name)) + body


def kd(name, vgpr, sgpr):
    acc_off = (vgpr + 3) // 4 * 4
    return """.p2align 6
.amdhsa_kernel %s
  .amdhsa_next_free_vgpr %d
  .amdhsa_next_free_sgpr %d
  .amdhsa_accum_offset %d
  .amdhsa_group_segment_fixed_size 0
  .amdhsa_kernarg_size 104
  .amdhsa_user_sgpr_count 2
  .amdhsa_user_sgpr_kernarg_segment_ptr 1
  .amdhsa_system_sgpr_workgroup_id_x 1
.end_amdhsa_kernel
""" % (name, vgpr, sgpr, acc_off)


def main():
    out = HEADER
    out += kernel_text("attn_kernel", gen_attn() + gen_steal() + gen_oproj())
    out += '.section .rodata,"a"\n'
    out += kd("attn_kernel", 256, 96)
    path = sys.argv[1] if len(sys.argv) > 1 else "cdna_kernels/%s.s" % NAME
    open(path, "w").write(out)
    print("wrote", path, len(out), "bytes")


if __name__ == "__main__":
    main()
```

```python
import sys, os
sys.path.insert(0, os.path.dirname(os.path.abspath(__file__)))
from asmgen import Gen, vr, sr

NAME = "concat_heads__gqa_block_cached__gqa_block_cached__near_ridge"
O_BLOCK_BYTES = 1536 * 4096 * 2
WS_BYTES = 268435456

STAMP = int(os.environ.get("STAMP", "0"))
STAMP_BASE = 200 * 1024 * 1024
NT = os.environ.get("NT", " nt")
TOUCH = int(os.environ.get("TOUCH", "1"))
TWAIT = int(os.environ.get("TWAIT", "1"))
WOPF = int(os.environ.get("WOPF", "2"))
OTOUCH = int(os.environ.get("OTOUCH", "0"))
_stamp_n = [0]

S_WAVE = 3
SRD_X = 20
SRD_K = 24
SRD_V = 28
SRD_W = 32
SRD_WS = 36
SRD_OUT = 76
SRD_WO = 64
SRD_DBG = 72
S_ME = 70
S_STOLEN = 71
S_GOFF = 84
S_W0 = 86
S_CL = 88
S_PADD = 91
S_PEXP = 92
S_PSEEN = 93
S_FOFF = 94
S_FPOLL = 95
FLG = 64 * 1024 * 1024
REL = int(os.environ.get("REL", "0"))
KVS = [int(x) for x in os.environ.get("KVS", "").split(",") if x]
VLATE = int(os.environ.get("VLATE", "0"))
KV2 = [[int(c, 16) for c in x] for x in os.environ.get("KV2", "").split(",") if x]
O_LDS = 0
S_EARLY = 96
S_DEC = 97
NE = int(os.environ.get("NE", "2"))
NSL = 5
O_VW = 245
SLEEP = int(os.environ.get("SLEEP", "8"))
FORCE_STEAL = int(os.environ.get("FORCE_STEAL", "0"))
S_M0W = 46
S_TMP = 47
S_WOFF = 48
S_M0V = 49
S_SC = 50
S_L2E = 52
S_W4K = 54
S_B8K = 57


def rng(a, n):
    return list(range(a, a + n))


def stamp(g, kid, vt):
    if not STAMP:
        return
    n = _stamp_n[0]
    _stamp_n[0] += 1
    g.s("s_memrealtime s[60:61]" if os.environ.get("REAL") else "s_memtime s[60:61]")
    g.waitcnt(lg=0)
    g.lgq = []
    g.s("s_lshl_b32 s62, s70, 8")
    g.s("s_add_u32 s62, s62, %d" % (STAMP_BASE + kid * 131072 + n * 8))
    g.s("s_mul_i32 s63, s3, 1048576")
    g.s("s_add_u32 s62, s62, s63")
    g.valu("v_mov_b32 %s, s60" % vr(vt), dst=[vt])
    g.valu("v_mov_b32 %s, s61" % vr(vt + 1), dst=[vt + 1])
    g.valu("v_mov_b32 %s, s62" % vr(vt + 2), dst=[vt + 2])
    g.s("s_mov_b64 s[58:59], exec")
    g.s("s_mov_b64 exec, 1")
    g.vstore("buffer_store_dwordx2 %s, %s, %s, 0 offen" % (vr(vt, 2), vr(vt + 2), sr(SRD_WS, 4)), "STAMP", data=[vt, vt + 1], addr=[vt + 2])
    g.s("s_mov_b64 exec, s[58:59]")


def make_srd(g, srd, ptr, nbytes):
    g.s("s_mov_b32 %s, %s" % (sr(srd), sr(ptr)))
    g.s("s_and_b32 %s, %s, 0xffff" % (sr(srd + 1), sr(ptr + 1)))
    g.s("s_mov_b32 %s, %d" % (sr(srd + 2), nbytes))
    g.s("s_mov_b32 %s, 0x00020000" % sr(srd + 3))


def vop(g, text, dst, src=()):
    g.valu(text, dst=[dst] if isinstance(dst, int) else dst, src=src)


def lane_setup(g):
    vop(g, "v_mov_b32 v1, %s" % vr(V_LANE), 1, [V_LANE])
    vop(g, "v_and_b32 v2, 15, v1", 2, [1])
    vop(g, "v_lshrrev_b32 v3, 4, v1", 3, [1])
    vop(g, "v_bfe_u32 v4, v1, 2, 2", 4, [1])
    vop(g, "v_and_b32 v5, 3, v1", 5, [1])
    vop(g, "v_and_b32 v6, 1, v3", 6, [3])
    vop(g, "v_lshlrev_b32 v6, 2, v6", 6, [6])
    vop(g, "v_or_b32 v6, v6, v4", 6, [6, 4])


def pack_pair(g, lo, hi):
    g.valu("v_cvt_pk_bf16_f32 %s, %s, %s" % (vr(lo), vr(lo), vr(lo + 1)), dst=[lo], src=[lo, lo + 1])
    g.valu("v_cvt_pk_bf16_f32 %s, %s, %s" % (vr(lo + 1), vr(lo + 2), vr(lo + 3)), dst=[lo + 1], src=[lo + 2, lo + 3])
    g.valu("v_cvt_pk_bf16_f32 %s, %s, %s" % (vr(lo + 2), vr(hi), vr(hi + 1)), dst=[lo + 2], src=[hi, hi + 1])
    g.valu("v_cvt_pk_bf16_f32 %s, %s, %s" % (vr(lo + 3), vr(hi + 2), vr(hi + 3)), dst=[lo + 3], src=[hi + 2, hi + 3])


def xlane_reduce(g, m, tmp, op):
    for sw in ("v_permlane32_swap_b32", "v_permlane16_swap_b32"):
        vop(g, "v_mov_b32 %s, %s" % (vr(tmp), vr(m)), tmp, [m])
        g.valu("%s %s, %s" % (sw, vr(m), vr(tmp)), dst=[m, tmp], src=[m, tmp], permlane=True)
        vop(g, "%s %s, %s, %s" % (op, vr(m), vr(m), vr(tmp)), m, [m, tmp])


R_ACC = 0
R_A = 96
R_B = 128
R_F = 164
R_K = 188
V_A = 236
V_X = 244
V_W = 245
V_BP = 246
V_VD0 = 247
V_VD1 = 248
V_K = 249
V_LANE = 250
V_CLAIM = 251
V_T = 252
V_KW = R_B + 36
V_KR = R_B + 37
V_WO = R_B + 38
V_O = R_B + 39
V_DELTA = R_B + 40
T0 = R_B + 41
V_MASK = R_B + 47
A_V_LDS = 65536
NSLOT = 8
NB = 3
XD = int(os.environ.get("XD", "1"))
V_X2 = R_F


def acc(t, u):
    return R_ACC + (t * 3 + u) * 4


def bstage(s, u):
    return R_B + ((s % NB) * 3 + u) * 4


def bfrag(s, u):
    if u < XD:
        return bstage(s, u)
    return R_F + ((s % 2) * 3 + u) * 4


def post_gemm_addrs(g):
    L, Q, G, R, C, A, B = V_LANE, T0, T0 + 1, T0 + 2, T0 + 3, T0 + 4, T0 + 5
    v = vr
    vop(g, "v_and_b32 %s, 15, %s" % (v(Q), v(L)), Q, [L])
    vop(g, "v_lshrrev_b32 %s, 4, %s" % (v(G), v(L)), G, [L])
    vop(g, "v_bfe_u32 %s, %s, 2, 2" % (v(R), v(L)), R, [L])
    vop(g, "v_and_b32 %s, 3, %s" % (v(C), v(L)), C, [L])
    vop(g, "v_xor_b32 %s, %s, %s" % (v(A), v(Q), v(G)), A, [Q, G])
    vop(g, "v_lshlrev_b32 %s, 4, %s" % (v(A), v(A)), A, [A])
    vop(g, "v_lshl_add_u32 %s, %s, 8, %s" % (v(A), v(G), v(A)), A, [G, A])
    g.s("s_lshl_b32 s55, s3, 13")
    vop(g, "v_add_u32 %s, s55, %s" % (v(V_KW), v(A)), V_KW, [A])
    vop(g, "v_lshrrev_b32 %s, 1, %s" % (v(A), v(G)), A, [G])
    vop(g, "v_xor_b32 %s, %s, %s" % (v(A), v(A), v(Q)), A, [A, Q])
    vop(g, "v_lshlrev_b32 %s, 4, %s" % (v(A), v(A)), A, [A])
    vop(g, "v_lshl_add_u32 %s, %s, 8, %s" % (v(A), v(Q), v(A)), A, [Q, A])
    vop(g, "v_and_b32 %s, 1, %s" % (v(B), v(G)), B, [G])
    vop(g, "v_lshl_add_u32 %s, %s, 3, %s" % (v(A), v(B), v(A)), A, [A, B])
    g.s("s_lshl_b32 s55, s41, 14")
    vop(g, "v_add_u32 %s, s55, %s" % (v(V_KR), v(A)), V_KR, [A])
    g.s("s_mul_i32 s55, s41, 24576")
    g.s("s_add_u32 s55, s55, %d" % A_V_LDS)
    vop(g, "v_lshlrev_b32 %s, 10, %s" % (v(A), v(G)), A, [G])
    vop(g, "v_sub_u32 %s, s55, %s" % (v(V_DELTA), v(A)), V_DELTA, [A])
    g.s("s_mul_i32 s55, s44, 6")
    g.s("s_mul_i32 s56, s42, 3")
    g.s("s_add_u32 s55, s55, s56")
    g.s("s_lshl_b32 s55, s55, 7")
    g.s("s_lshl_b32 s56, s43, 2")
    g.s("s_add_u32 s55, s55, s56")
    g.s("s_lshl_b32 s55, s55, 10")
    g.s("s_mul_i32 s56, s6, %d" % O_BLOCK_BYTES)
    g.s("s_add_u32 s55, s55, s56")
    vop(g, "v_lshlrev_b32 %s, 4, %s" % (v(A), v(L)), A, [L])
    vop(g, "v_add_u32 %s, s55, %s" % (v(V_O), v(A)), V_O, [A])
    g.s("s_and_b32 s55, s2, 3")
    g.s("s_lshl_b32 s55, s55, 5")
    g.s("s_lshr_b32 s56, s2, 3")
    g.s("s_add_u32 s55, s55, s56")
    g.s("s_lshl_b32 s55, s55, 3")
    g.s("s_add_u32 s55, s55, s3")
    g.s("s_lshl_b32 s55, s55, 12")
    vop(g, "v_lshlrev_b32 %s, 6, %s" % (v(A), v(L)), A, [L])
    vop(g, "v_add_u32 %s, s55, %s" % (v(V_WO), v(A)), V_WO, [A])


def ow_addrs(g, t1, t2):
    vop(g, "v_and_b32 %s, 7, %s" % (vr(t1), vr(V_LANE)), t1, [V_LANE])
    vop(g, "v_lshrrev_b32 %s, 4, %s" % (vr(t2), vr(V_LANE)), t2, [V_LANE])
    vop(g, "v_lshlrev_b32 %s, 1, %s" % (vr(t2), vr(t2)), t2, [t2])
    vop(g, "v_xor_b32 %s, %s, %s" % (vr(t1), vr(t1), vr(t2)), t1, [t1, t2])
    vop(g, "v_lshlrev_b32 %s, 4, %s" % (vr(t1), vr(t1)), t1, [t1])
    vop(g, "v_lshrrev_b32 %s, 3, %s" % (vr(t2), vr(V_LANE)), t2, [V_LANE])
    vop(g, "v_lshl_add_u32 %s, %s, 10, %s" % (vr(t1), vr(t2), vr(t1)), t1, [t1, t2])
    g.s("s_lshr_b32 s55, %s, 5" % sr(S_ME))
    g.s("s_lshl_b32 s55, s55, 7")
    g.s("s_lshl_b32 s56, s3, 19")
    g.s("s_add_u32 s55, s55, s56")
    vop(g, "v_add_u32 %s, s55, %s" % (vr(O_VW), vr(t1)), O_VW, [t1])
    g.s("s_lshl_b32 %s, s3, 12" % sr(S_M0W))


def issue_ow(g, c):
    for i in range(4):
        g.s("s_mov_b32 %s, %d" % (sr(S_WOFF), c * 32768 + i * 8192))
        g.s("s_add_u32 m0, %s, %d" % (sr(S_M0W), (c % NSL) * 32768 + i * 1024), m0=True)
        g.vload("buffer_load_dwordx4 %s, %s, %s offen lds" % (vr(O_VW), sr(SRD_WO, 4), sr(S_WOFF)),
                "W%d" % c, addr=[O_VW], lds=True)


def attn_body(g, kv_first):
    def tr_reads(s, t):
        if os.environ.get("NOTR") and s > 0:
            return
        for j in range(2):
            d = R_A + t * 4 + j * 2
            g.dsread("ds_read_b64_tr_b16 %s, %s offset:%d" % (vr(d, 2), vr(V_A + t), (s % NSLOT) * 8192 + j * 1024),
                     "A%d_%d" % (s, t), dst=rng(d, 2), addr=[V_A + t])

    def issue_w(c):
        if os.environ.get("NOW") and c > 1:
            return
        g.s("s_mov_b32 %s, %d" % (sr(S_WOFF), c * 262144))
        g.s("s_add_u32 m0, %s, %d" % (sr(S_M0W), (c % NSLOT) * 8192), m0=True)
        g.vload("buffer_load_dwordx4 %s, %s, %s offen lds" % (vr(V_W), sr(SRD_W, 4), sr(S_WOFF)),
                "W%d" % c, addr=[V_W], lds=True)

    def issue_b(s):
        if os.environ.get("NOX") and s > 3:
            return
        for u in range(3):
            g.s("s_mov_b32 %s, %d" % (sr(S_TMP), u * 16384))
            d = bstage(s, u)
            va = V_X2 if u < XD else V_X
            g.vload("buffer_load_dwordx4 %s, %s, %s, %s offen offset:%d" % (vr(d, 4), vr(va), sr(SRD_X, 4), sr(S_TMP), s * 64),
                    "B%d" % s, dst=rng(d, 4), addr=[va])

    def perm_b(s, lo=0, hi=12):
        if os.environ.get("NOPERM") and s > 1:
            return
        if lo == 0:
            g.wait_vm("B%d" % s)
        for i in range(lo, hi):
            u, r = i // 4, i % 4
            if u < XD:
                continue
            d = bfrag(s, u) + r
            a = bstage(s, u) + r
            g.dsread("ds_bpermute_b32 %s, %s, %s" % (vr(d), vr(V_BP), vr(a)), "F%d" % s, dst=[d], addr=[V_BP, a])

    def issue_k(i):
        g.s("s_mov_b32 %s, %d" % (sr(S_TMP), i * 4096))
        for m in range(4):
            d = R_K + (i * 4 + m) * 4
            g.vload("buffer_load_dwordx4 %s, %s, %s, %s offen offset:%d%s" % (vr(d, 4), vr(V_K), sr(SRD_K, 4), sr(S_TMP), m * 1024, NT),
                    "K%d" % i, dst=rng(d, 4), addr=[V_K])

    def issue_v(i):
        g.s("s_mov_b32 %s, %d" % (sr(S_TMP), i * 1024))
        g.s("s_add_u32 m0, %s, %d" % (sr(S_M0V), i * 1024), m0=True)
        g.vload("buffer_load_dwordx4 %s, %s, %s offen%s lds" % (vr(V_VD0 + (i & 1)), sr(SRD_V, 4), sr(S_TMP), NT),
                "V", addr=[V_VD0 + (i & 1)], lds=True)

    def issue_kv():
        if os.environ.get("NOKV"):
            return
        for i in range(3):
            issue_k(i)
        for i in range(12):
            issue_v(i)

    def issue_k1(i, m):
        g.s("s_mov_b32 %s, %d" % (sr(S_TMP), i * 4096))
        d = R_K + (i * 4 + m) * 4
        g.vload("buffer_load_dwordx4 %s, %s, %s, %s offen offset:%d%s" % (vr(d, 4), vr(V_K), sr(SRD_K, 4), sr(S_TMP), m * 1024, NT),
                "K%d" % i, dst=rng(d, 4), addr=[V_K])

    kvops = [(lambda i=i, m=m: issue_k1(i, m)) for i in range(3) for m in range(4)] + [(lambda i=i: issue_v(i)) for i in range(12)]

    def trickle(n):
        for _ in range(n):
            if kvops:
                kvops.pop(0)()

    stamp(g, 0, V_T)
    if STAMP:
        for n, r in ((18, 98), (19, 100)):
            g.s("s_lshl_b32 s62, s70, 8")
            g.s("s_add_u32 s62, s62, %d" % (STAMP_BASE + n * 8))
            g.s("s_mul_i32 s63, s3, 1048576")
            g.s("s_add_u32 s62, s62, s63")
            g.valu("v_mov_b32 %s, s%d" % (vr(V_T), r), dst=[V_T])
            g.valu("v_mov_b32 %s, s%d" % (vr(V_T + 1), r + 1), dst=[V_T + 1])
            g.valu("v_mov_b32 %s, s62" % vr(V_T + 2), dst=[V_T + 2])
            g.s("s_mov_b64 exec, 1")
            g.vstore("buffer_store_dwordx2 %s, %s, %s, 0 offen" % (vr(V_T, 2), vr(V_T + 2), sr(SRD_WS, 4)), "STAMP", data=[V_T, V_T + 1], addr=[V_T + 2])
            g.s("s_mov_b64 exec, -1")
    sched = KV2[int(kv_first)] if KV2 else None
    if kv_first:
        if TWAIT:
            g.wait_vm("TCH")
        if sched:
            trickle(sched[0])
        else:
            issue_kv()
    for c in range(NSLOT - 1):
        issue_w(c)
        if c < NB:
            issue_b(c)
    if KVS:
        trickle(KVS[0])
    CT = int(os.environ.get("CT", "0"))
    if CT:
        lab = "ct_here_%d" % int(kv_first)
        g.s("s_getpc_b64 s[60:61]")
        g.label(lab)
        g.s("s_sub_u32 s60, s60, %s-attn_kernel" % lab)
        g.s("s_subb_u32 s61, s61, 0")
        g.s("s_and_b32 s61, s61, 0xffff")
        g.s("s_mov_b32 s62, attn_code_end-attn_kernel")
        g.s("s_mov_b32 s63, 0x00020000")
        g.s("s_lshl_b32 s55, s3, 13")
        vop(g, "v_lshlrev_b32 %s, 7, %s" % (vr(V_T + 2), vr(V_LANE)), V_T + 2, [V_LANE])
        g.vload("buffer_load_dword %s, %s, s[60:63], s55 offen" % (vr(V_T + 3), vr(V_T + 2)), "TCH", dst=[V_T + 3], addr=[V_T + 2])
    nsteps = 16
    g.wait_vm("W0")
    g.s("s_mov_b64 exec, %s" % sr(S_CL, 2))
    g.vload("buffer_atomic_or %s, off, %s, %s sc0" % (vr(V_CLAIM), sr(SRD_DBG, 4), sr(S_GOFF)), "CL", dst=[V_CLAIM])
    vop(g, "v_mov_b32 %s, %s" % (vr(V_T + 2), sr(S_PADD)), V_T + 2)
    g.vstore("buffer_atomic_add %s, off, %s, %s offset:64" % (vr(V_T + 2), sr(SRD_DBG, 4), sr(S_GOFF)), "CL", data=[V_T + 2])
    g.s("s_mov_b64 exec, -1")
    g.barrier()
    for t in range(8):
        tr_reads(0, t)
    perm_b(0)
    for s in range(nsteps):
        g.comment("---- gemm step %d" % s)
        if s + 1 < nsteps:
            g.wait_vm("W%d" % (s + 1))
            g.barrier()
        if s % 4 == 0:
            stamp(g, 0, V_T)
        if s + NSLOT - 1 < nsteps:
            issue_w(s + NSLOT - 1)
        pcut = [[0, 2, 4, 6, 8, 9, 10, 11, 12], [0, 5, 6, 7, 8, 9, 10, 11, 12], [0, 9, 9, 10, 10, 11, 11, 12, 12], [0, 12, 12, 12, 12, 12, 12, 12, 12]][XD]
        for t in range(8):
            g.wait_lg("A%d_%d" % (s, t))
            if t == 0:
                g.wait_lg("F%d" % s)
            for u in range(3):
                g.mfma(acc(t, u), R_A + t * 4, bfrag(s, u), None if s == 0 else acc(t, u))
            if s + 1 < nsteps:
                tr_reads(s + 1, t)
                perm_b(s + 1, pcut[t], pcut[t + 1])
        if s + NB < nsteps:
            g.wait_lg("F%d" % (s + 1))
            issue_b(s + NB)
        if sched:
            trickle(24 if s == nsteps - 1 else sched[s + 1])
        elif KVS:
            trickle(KVS[s + 1] if s + 1 < len(KVS) else (24 if s == nsteps - 1 else 0))
        elif s == nsteps - NB - 1 and not kv_first:
            issue_kv()

    post_gemm_addrs(g)
    g.vload("buffer_load_dword %s, off, %s, %s offset:64 sc1" % (vr(V_MASK), sr(SRD_DBG, 4), sr(S_GOFF)), "MK", dst=[V_MASK])
    if WOPF == 2:
        g.vload("buffer_load_dword %s, %s, %s, 0 offen" % (vr(V_T + 3), vr(V_WO), sr(SRD_WO, 4)), "TCH", dst=[V_T + 3], addr=[V_WO])
    if WOPF == 3:
        vop(g, "v_and_b32 %s, 0xfffff, %s" % (vr(V_WO), vr(V_WO)), V_WO, [V_WO])
        for i in range(4):
            g.s("s_mov_b32 %s, %d" % (sr(S_TMP), i << 20))
            g.vload("buffer_load_dword %s, %s, %s, %s offen" % (vr(V_T + 3), vr(V_WO), sr(SRD_WO, 4), sr(S_TMP)), "TCH", dst=[V_T + 3], addr=[V_WO])
    stamp(g, 0, V_T)
    for p in range(4):
        for u in range(3):
            pack_pair(g, acc(2 * p, u), acc(2 * p + 1, u))
    KA = R_B + 24
    KW = R_B + 32
    for m in range(4):
        vop(g, "v_xor_b32 %s, %d, %s" % (vr(KW + m), m * 64, vr(V_KW)), KW + m, [V_KW])
    for c in range(8):
        vop(g, "v_xor_b32 %s, %d, %s" % (vr(KA + c), c * 32, vr(V_KR)), KA + c, [V_KR])

    def sacc(kt, u):
        i = kt * 3 + u
        if i < 12:
            return acc(1 + 2 * (i // 3), i % 3)
        return R_B + (i - 12) * 4

    def k_write(i, slot_off):
        g.wait_vm("K%d" % i)
        for m in range(4):
            d = R_K + (i * 4 + m) * 4
            g.dswrite("ds_write_b128 %s, %s offset:%d" % (vr(KW + m), vr(d, 4), slot_off + m * 1024), "KW", data=rng(d, 4), addr=[KW + m])

    def k_reads(n, slot_off):
        for p in range(4):
            for j in range(2):
                d = R_A + ((n & 1) * 4 + p) * 4 + 2 * j
                g.dsread("ds_read_b64 %s, %s offset:%d" % (vr(d, 2), vr(KA + 2 * p + j), slot_off), "KF%d_%d" % (n, p), dst=rng(d, 2), addr=[KA + 2 * p + j])

    def s_tile(n, kt):
        for p in range(4):
            g.wait_lg("KF%d_%d" % (n, p))
            for u in range(3):
                g.mfma(sacc(kt, u), R_A + ((n & 1) * 4 + p) * 4, acc(2 * p, u), None if p == 0 else sacc(kt, u))

    g.barrier()
    k_write(0, 0)
    k_write(1, 4096)
    g.wait_lg("KW")
    g.barrier()
    r1 = [0, 1, 3, 4]
    k_reads(0, 0)
    for n in range(4):
        if n + 1 < 4:
            k_reads(n + 1, (n + 1) * 4096)
        s_tile(n, r1[n])
    g.barrier()
    for m in range(4):
        vop(g, "v_subrev_u32 %s, %s, %s" % (vr(KW + m), sr(S_W4K), vr(KW + m)), KW + m, [KW + m])
    for c in range(8):
        vop(g, "v_subrev_u32 %s, %s, %s" % (vr(KA + c), sr(S_B8K), vr(KA + c)), KA + c, [KA + c])
    k_write(2, 0)
    g.wait_lg("KW")
    g.barrier()
    k_reads(4, 0)
    k_reads(5, 4096)
    s_tile(4, 2)
    s_tile(5, 5)
    stamp(g, 0, V_T)
    def v_reads(pp, t):
        for j in range(2):
            d = R_A + t * 4 + j * 2
            g.dsread("ds_read_b64_tr_b16 %s, %s offset:%d" % (vr(d, 2), vr(V_A + t), pp * 8192 + j * 4096),
                     "VT%d_%d" % (pp, t), dst=rng(d, 2), addr=[V_A + t])

    def v_ready():
        g.comment("---- V ready barrier, V addresses")
        g.wait_vm(["V", "MK"])
        g.valu("v_readfirstlane_b32 %s, %s" % (sr(S_PSEEN), vr(V_MASK)), src=[V_MASK], readlane=True, sdst=[S_PSEEN])
        da, dv = R_B + 28, R_B + 29
        g.s("s_and_b32 s55, %s, 63" % sr(S_PSEEN))
        g.s("s_cmp_eq_u32 s55, 32")
        g.s("s_cselect_b32 s55, 1, 0")
        vop(g, "v_mov_b32 %s, s55" % vr(dv), dv)
        vop(g, "v_lshlrev_b32 %s, 12, %s" % (vr(da), vr(V_LANE)), da, [V_LANE])
        g.s("s_mul_i32 s58, %s, 255" % sr(S_W0))
        g.s("s_mov_b32 s59, 0")
        g.s("s_mov_b64 exec, s[58:59]")
        g.dswrite("ds_write_b32 %s, %s offset:32768" % (vr(da), vr(dv)), "DW", data=[dv], addr=[da])
        g.s("s_mov_b64 exec, -1")
        vop(g, "v_mov_b32 %s, %s" % (vr(da), sr(S_W4K)), da)
        g.wait_lg("DW")
        g.barrier()
        g.dsread("ds_read_b32 %s, %s offset:32768" % (vr(dv), vr(da)), "DR", dst=[dv], addr=[da])
        for t in range(8):
            v_reads(0, t)
        ow_addrs(g, R_B + 30, R_B + 31)
        g.wait_lg("DR")
        g.valu("v_readfirstlane_b32 %s, %s" % (sr(S_DEC), vr(dv)), src=[dv], readlane=True, sdst=[S_DEC])
        for c in range(NE):
            issue_ow(g, c)
        g.s("s_mov_b32 %s, 1" % sr(S_EARLY))

    for t in range(8):
        vop(g, "v_add_u32 %s, %s, %s" % (vr(V_A + t), vr(V_A + t), vr(V_DELTA)), V_A + t, [V_A + t, V_DELTA])
    if not VLATE:
        v_ready()
    PT = int(os.environ.get("PT", "1"))
    if PT & 1:
        a = R_B + 24
        vop(g, "v_and_b32 %s, 3, %s" % (vr(a), vr(V_LANE)), a, [V_LANE])
        vop(g, "v_min_u32 %s, 2, %s" % (vr(a), vr(a)), a, [a])
        vop(g, "v_lshl_add_u32 %s, %s, 17, %s" % (vr(a), vr(a), vr(V_O)), a, [a, V_O])
        g.vload("buffer_load_dword %s, %s, %s, 0 offen" % (vr(V_T + 3), vr(a), sr(SRD_WS, 4)), "TCH", dst=[V_T + 3], addr=[a])
    if PT & 2:
        a = R_B + 25
        g.s("s_and_b32 s55, %s, 3" % sr(S_ME))
        g.s("s_mul_i32 s55, s55, %d" % (384 * 2048))
        g.s("s_mul_i32 s56, s3, %d" % (48 * 2048))
        g.s("s_add_u32 s55, s55, s56")
        vop(g, "v_lshlrev_b32 %s, 11, %s" % (vr(a), vr(V_LANE)), a, [V_LANE])
        g.vload("buffer_load_dword %s, %s, %s, s55 offen" % (vr(V_T + 3), vr(a), sr(SRD_OUT, 4)), "TCH", dst=[V_T + 3], addr=[a])
    if PT & 4:
        a = R_B + 26
        g.s("s_bfe_u32 s55, %s, 0x30003" % sr(S_ME))
        g.s("s_lshl_b32 s56, %s, 1" % sr(S_GOFF))
        g.s("s_add_u32 s55, s55, s56")
        g.s("s_mul_i32 s55, s55, %d" % (16 * 24576))
        g.s("s_and_b32 s56, s3, 1")
        g.s("s_mul_i32 s56, s56, %d" % (48 * 4096))
        g.s("s_add_u32 s55, s55, s56")
        g.s("s_add_u32 s55, s55, %d" % (96 * 1024 * 1024))
        vop(g, "v_lshlrev_b32 %s, 12, %s" % (vr(a), vr(V_LANE)), a, [V_LANE])
        g.vload("buffer_load_dword %s, %s, %s, s55 offen" % (vr(V_T + 3), vr(a), sr(SRD_WS, 4)), "TCH", dst=[V_T + 3], addr=[a])
    stamp(g, 0, V_T)

    def pfrag(pp, u):
        return R_K + (pp * 3 + u) * 4
    TMP = R_K + 36
    for u in range(3):
        a, b = TMP, TMP + 1
        for kt in range(6):
            r = sacc(kt, u)
            for rep in range(2):
                g.valu("v_cvt_pk_bf16_f32 %s, %s, %s" % (vr(a), vr(r), vr(r + 1)), dst=[a], src=[r, r + 1])
                g.valu("v_cvt_pk_bf16_f32 %s, %s, %s" % (vr(b), vr(r + 2), vr(r + 3)), dst=[b], src=[r + 2, r + 3])
                vop(g, "v_lshlrev_b32 %s, 16, %s" % (vr(r), vr(a)), r, [a])
                vop(g, "v_and_b32 %s, 0xffff0000, %s" % (vr(r + 1), vr(a)), r + 1, [a])
                vop(g, "v_lshlrev_b32 %s, 16, %s" % (vr(r + 2), vr(b)), r + 2, [b])
                vop(g, "v_and_b32 %s, 0xffff0000, %s" % (vr(r + 3), vr(b)), r + 3, [b])
                if rep == 0:
                    g.valu("v_pk_mul_f32 %s, %s, %s" % (vr(r, 2), vr(r, 2), sr(S_SC, 2)), dst=[r, r + 1], src=[r, r + 1])
                    g.valu("v_pk_mul_f32 %s, %s, %s" % (vr(r + 2, 2), vr(r + 2, 2), sr(S_SC, 2)), dst=[r + 2, r + 3], src=[r + 2, r + 3])
        vals = [sacc(kt, u) + r for kt in range(6) for r in range(4)]
        m = TMP + 2
        vop(g, "v_max3_f32 %s, %s, %s, %s" % (vr(m), vr(vals[0]), vr(vals[1]), vr(vals[2])), m, vals[0:3])
        i = 3
        while i < 24:
            if i + 1 < 24:
                vop(g, "v_max3_f32 %s, %s, %s, %s" % (vr(m), vr(m), vr(vals[i]), vr(vals[i + 1])), m, [m, vals[i], vals[i + 1]])
                i += 2
            else:
                vop(g, "v_max_f32 %s, %s, %s" % (vr(m), vr(m), vr(vals[i])), m, [m, vals[i]])
                i += 1
        xlane_reduce(g, m, TMP + 3, "v_max_f32")
        for v in vals:
            vop(g, "v_sub_f32 %s, %s, %s" % (vr(v), vr(v), vr(m)), v, [v, m])
        for k in range(0, 24, 2):
            v = vals[k]
            g.valu("v_pk_mul_f32 %s, %s, %s" % (vr(v, 2), vr(v, 2), sr(S_L2E, 2)), dst=[v, v + 1], src=[v, v + 1])
        for v in vals:
            g.valu("v_exp_f32 %s, %s" % (vr(v), vr(v)), dst=[v], src=[v], trans=True)
        sm = TMP + 4
        g.valu("v_pk_add_f32 %s, %s, %s" % (vr(sm, 2), vr(vals[0], 2), vr(vals[2], 2)), dst=[sm, sm + 1], src=vals[0:4])
        for k in range(4, 24, 2):
            g.valu("v_pk_add_f32 %s, %s, %s" % (vr(sm, 2), vr(sm, 2), vr(vals[k], 2)), dst=[sm, sm + 1], src=[sm, sm + 1, vals[k], vals[k] + 1])
        vop(g, "v_add_f32 %s, %s, %s" % (vr(sm), vr(sm), vr(sm + 1)), sm, [sm, sm + 1])
        xlane_reduce(g, sm, TMP + 3, "v_add_f32")
        g.valu("v_rcp_f32 %s, %s" % (vr(sm), vr(sm)), dst=[sm], src=[sm], trans=True)
        vop(g, "v_mov_b32 %s, %s" % (vr(sm + 1), vr(sm)), sm + 1, [sm])
        for k in range(0, 24, 2):
            v = vals[k]
            g.valu("v_pk_mul_f32 %s, %s, %s" % (vr(v, 2), vr(v, 2), vr(sm, 2)), dst=[v, v + 1], src=[v, v + 1, sm, sm + 1])
        for pp in range(3):
            d = pfrag(pp, u)
            lo, hi = sacc(2 * pp, u), sacc(2 * pp + 1, u)
            g.valu("v_cvt_pk_bf16_f32 %s, %s, %s" % (vr(d), vr(lo), vr(lo + 1)), dst=[d], src=[lo, lo + 1])
            g.valu("v_cvt_pk_bf16_f32 %s, %s, %s" % (vr(d + 1), vr(lo + 2), vr(lo + 3)), dst=[d + 1], src=[lo + 2, lo + 3])
            g.valu("v_cvt_pk_bf16_f32 %s, %s, %s" % (vr(d + 2), vr(hi), vr(hi + 1)), dst=[d + 2], src=[hi, hi + 1])
            g.valu("v_cvt_pk_bf16_f32 %s, %s, %s" % (vr(d + 3), vr(hi + 2), vr(hi + 3)), dst=[d + 3], src=[hi + 2, hi + 3])
    if VLATE:
        v_ready()
    stamp(g, 0, V_T)
    for pp in range(3):
        for t in range(8):
            g.wait_lg("VT%d_%d" % (pp, t))
            for u in range(3):
                g.mfma(acc(t, u), R_A + t * 4, pfrag(pp, u), None if pp == 0 else acc(t, u))
            if pp < 2:
                v_reads(pp + 1, t)
    stamp(g, 0, V_T)
    if WOPF == 1:
        g.vload("buffer_load_dword %s, %s, %s, 0 offen" % (vr(V_T + 3), vr(V_WO), sr(SRD_WO, 4)), "TCH", dst=[V_T + 3], addr=[V_WO])
    for p in range(4):
        for u in range(3):
            pack_pair(g, acc(2 * p, u), acc(2 * p + 1, u))
    lab = "st_wt_%d" % int(kv_first)
    if not REL:
        g.s("s_cmp_lg_u32 %s, %s" % (sr(S_PSEEN), sr(S_PEXP)))
        g.s("s_cbranch_scc1 %s" % lab)
    q0 = list(g.vmq)
    for fl in ("", " sc1"):
        if fl:
            if REL:
                break
            g.label(lab)
            g.vmq = list(q0)
        for p in range(4):
            for u in range(3):
                g.s("s_mov_b32 %s, %d" % (sr(S_TMP), u * 131072))
                d = acc(2 * p, u)
                g.vstore("buffer_store_dwordx4 %s, %s, %s, %s offen offset:%d%s" % (vr(d, 4), vr(V_O), sr(SRD_WS, 4), sr(S_TMP), p * 1024, fl),
                         "ST", data=rng(d, 4), addr=[V_O])
        g.s("s_branch attn_tail")


def gen_attn():
    g = Gen()
    g.s("s_cmp_ge_u32 s2, 256")
    g.s("s_cbranch_scc1 attn_end")
    if STAMP:
        g.s("s_memrealtime s[98:99]")
    vop(g, "v_lshrrev_b32 v7, 6, v0", 7, [0])
    vop(g, "v_and_b32 %s, 63, v0" % vr(V_LANE), V_LANE, [0])
    g.valu("v_readfirstlane_b32 %s, v7" % sr(S_WAVE), src=[7], readlane=True, sdst=[S_WAVE])
    g.s("s_mov_b32 %s, s2" % sr(S_ME))
    g.s("s_mov_b32 %s, 0" % sr(S_STOLEN))
    g.s("s_mov_b32 %s, 0" % sr(S_PSEEN))
    g.s("s_mov_b32 %s, 0" % sr(S_EARLY))
    g.s("s_load_dwordx4 s[80:83], s[0:1], 80")
    g.s("s_getreg_b32 s4, hwreg(HW_REG_XCC_ID, 0, 4)")
    g.s("s_mul_i32 s5, s4, s4")
    g.s("s_lshl_b32 s5, s5, 16")
    g.s("s_lshl_b32 s4, s4, 6")
    g.s("s_add_u32 s4, s4, s5")
    g.s("s_add_u32 %s, s4, 1" % sr(S_PADD))
    g.s("s_lshl_b32 %s, %s, 5" % (sr(S_PEXP), sr(S_PADD)))
    g.nop(4)
    g.s("s_cmp_eq_u32 s3, 0")
    g.s("s_cselect_b32 %s, 1, 0" % sr(S_W0))
    g.s("s_mov_b32 %s, 0" % sr(S_W0 + 1))
    g.s("s_mov_b32 %s, %s" % (sr(S_CL), sr(S_W0)))
    g.s("s_mov_b32 %s, 0" % sr(S_CL + 1))
    if FORCE_STEAL:
        g.s("s_bfe_u32 s4, s2, 0x30005")
        g.s("s_cmp_eq_u32 s4, %d" % (FORCE_STEAL - 1))
        g.s("s_cselect_b32 s90, 1, 0")
    g.label("job_start")
    lane_setup(g)
    g.s("s_bfe_u32 s6, s2, 0x10002")
    g.s("s_and_b32 s5, s2, 3")
    g.s("s_lshr_b32 s43, s2, 3")
    g.s("s_and_b32 s40, s43, 1")
    g.s("s_mul_i32 s16, s6, 40")
    g.s("s_add_u32 s18, s0, s16")
    g.s("s_addc_u32 s19, s1, 0")
    g.s("s_load_dwordx8 s[8:15], s[18:19], 0")
    g.s("s_load_dwordx2 s[16:17], s[0:1], 96")
    g.s("s_load_dwordx2 s[68:69], s[18:19], 32")
    g.s("s_lshr_b32 s41, s3, 1")
    g.s("s_and_b32 s42, s3, 1")
    g.s("s_lshl_b32 s44, s5, 2")
    g.s("s_add_u32 s44, s44, s41")
    g.s("s_lshl_b32 s45, s44, 5")
    g.s("s_add_u32 s45, s45, s43")
    g.s("s_mul_i32 s45, s45, 24576")
    g.s("s_mov_b32 %s, 0x3db504f3" % sr(S_SC))
    g.s("s_mov_b32 %s, 0x3db504f3" % sr(S_SC + 1))
    g.s("s_mov_b32 %s, 0x3fb8aa3b" % sr(S_L2E))
    g.s("s_mov_b32 %s, 0x3fb8aa3b" % sr(S_L2E + 1))
    g.s("s_mul_i32 s55, s44, 98304")
    g.s("s_mul_i32 s56, s42, 49152")
    g.s("s_add_u32 s55, s55, s56")
    vop(g, "v_lshrrev_b32 v8, 2, v1", 8, [1])
    vop(g, "v_lshlrev_b32 v8, 10, v8", 8, [8])
    vop(g, "v_lshl_add_u32 v8, v5, 4, v8", 8, [5, 8])
    vop(g, "v_add_u32 %s, s55, v8" % vr(V_X), V_X, [8])
    if XD:
        vop(g, "v_lshlrev_b32 v8, 10, v2", 8, [2])
        vop(g, "v_lshl_add_u32 v8, v3, 4, v8", 8, [3, 8])
        vop(g, "v_add_u32 %s, s55, v8" % vr(V_X2), V_X2, [8])
    g.s("s_mul_i32 s55, s42, 12288")
    g.s("s_add_u32 s55, s55, s45")
    vop(g, "v_lshlrev_b32 v8, 4, v1", 8, [1])
    vop(g, "v_add_u32 %s, s55, v8" % vr(V_K), V_K, [8])
    g.s("s_lshl_b32 %s, s3, 12" % sr(S_W4K))
    g.s("s_lshl_b32 %s, s41, 13" % sr(S_B8K))
    g.s("s_mul_i32 s55, s42, 12288")
    g.s("s_add_u32 s55, s55, s45")
    for par in range(2):
        vop(g, "v_add_u32 v8, %d, v3" % (4 * par), 8, [3])
        vop(g, "v_lshlrev_b32 v8, 1, v8", 8, [8])
        vop(g, "v_xor_b32 v8, v8, v2", 8, [8, 2])
        vop(g, "v_lshlrev_b32 v8, 4, v8", 8, [8])
        vop(g, "v_lshl_add_u32 v8, v3, 8, v8", 8, [3, 8])
        vop(g, "v_add_u32 %s, s55, v8" % vr(V_VD0 + par), V_VD0 + par, [8])
    g.s("s_and_b32 s55, s41, 1")
    g.s("s_lshl_b32 s55, s55, 2")
    vop(g, "v_or_b32 v8, s55, v3", 8, [3])
    vop(g, "v_lshlrev_b32 v8, 1, v8", 8, [8])
    vop(g, "v_xor_b32 v8, v8, v2", 8, [8, 2])
    vop(g, "v_lshlrev_b32 v8, 4, v8", 8, [8])
    vop(g, "v_lshl_add_u32 v8, v3, 13, v8", 8, [3, 8])
    g.s("s_lshl_b32 s55, s3, 15")
    g.s("s_lshl_b32 s56, s43, 8")
    g.s("s_add_u32 s55, s55, s56")
    vop(g, "v_add_u32 %s, s55, v8" % vr(V_W), V_W, [8])
    g.s("s_lshl_b32 %s, s3, 10" % sr(S_M0W))
    vop(g, "v_lshlrev_b32 v8, 3, v3", 8, [3])
    vop(g, "v_add_u32 v8, v8, v4", 8, [8, 4])
    vop(g, "v_lshlrev_b32 v8, 8, v8", 8, [8])
    vop(g, "v_lshl_add_u32 v8, v5, 3, v8", 8, [8, 5])
    for t in range(8):
        vop(g, "v_xor_b32 v9, %d, v6" % t, 9, [6])
        vop(g, "v_lshl_add_u32 %s, v9, 5, v8" % vr(V_A + t), V_A + t, [9, 8])
    g.s("s_mul_i32 s55, s41, 24576")
    g.s("s_add_u32 s55, s55, %d" % A_V_LDS)
    g.s("s_mul_i32 s56, s42, 12288")
    g.s("s_add_u32 %s, s55, s56" % sr(S_M0V))
    g.s("s_lshl_b32 s55, s6, 2")
    g.s("s_add_u32 s55, s55, s5")
    g.s("s_lshl_b32 %s, s55, 2" % sr(S_GOFF))
    g.s("s_add_u32 %s, %s, 128" % (sr(S_GOFF + 1), sr(S_GOFF)))
    g.s("s_lshl_b32 s55, 1, s43")
    vop(g, "v_mov_b32 %s, s55" % vr(V_CLAIM), V_CLAIM)
    vop(g, "v_lshl_add_u32 v8, v2, 2, v3", 8, [2, 3])
    vop(g, "v_lshlrev_b32 %s, 2, v8" % vr(V_BP), V_BP, [8])
    g.waitcnt(lg=0)
    if STAMP:
        g.s("s_memrealtime s[100:101]")
    make_srd(g, SRD_X, 8, 1572864)
    make_srd(g, SRD_K, 10, 12582912)
    make_srd(g, SRD_V, 12, 12582912)
    make_srd(g, SRD_W, 14, 4194304)
    make_srd(g, SRD_WS, 16, WS_BYTES)
    make_srd(g, SRD_WO, 68, 4194304)
    make_srd(g, SRD_OUT, 80, 16 * 96 * 1024 * 2)
    make_srd(g, SRD_DBG, 82, 256)
    TW = int(os.environ.get("TW", "0"))
    if TW:
        g.s("s_cmp_eq_u32 s3, 0")
        g.s("s_cselect_b32 s58, -1, 0")
        g.s("s_mov_b32 s59, s58")
        g.s("s_lshl_b32 s60, s5, 7")
        g.s("s_add_u32 s60, s60, s43")
        g.s("s_mul_i32 s60, s60, 24576")
        LO, HI, OF, T1 = 10, 11, 12, 13

        def grp(k, base, emit):
            g.s("s_mov_b32 exec_lo, 0x%x" % ((0xffff << (16 * k)) & 0xffffffff if k < 2 else 0))
            g.s("s_mov_b32 exec_hi, 0x%x" % ((0xffff << (16 * (k - 2))) & 0xffffffff if k >= 2 else 0))
            vop(g, "v_mov_b32 %s, s%d" % (vr(LO), base), LO)
            vop(g, "v_mov_b32 %s, s%d" % (vr(HI), base + 1), HI)
            emit()

        def fire():
            g.s("s_mov_b64 exec, -1")
            g.valu("v_add_co_u32 %s, vcc, %s, %s" % (vr(LO), vr(LO), vr(OF)), dst=[LO], src=[LO, OF])
            g.valu("v_addc_co_u32 %s, vcc, 0, %s, vcc" % (vr(HI), vr(HI)), dst=[HI], src=[HI])
            g.s("s_mov_b64 exec, s[58:59]")
            g.vload("global_load_dword %s, %s, off" % (vr(V_T + 3), vr(LO, 2)), "TCH", dst=[V_T + 3], addr=[LO, HI])
            g.s("s_mov_b64 exec, -1")

        g.s("s_lshl_b32 s55, s43, 8")
        g.s("s_mul_i32 s56, s5, 393216")
        g.s("s_mov_b32 s61, 786432")

        def kvoff():
            vop(g, "v_mul_lo_u32 %s, v5, s61" % vr(OF), OF, [5])
            vop(g, "v_mul_u32_u24 %s, 6144, v4" % vr(T1), T1, [4])
            vop(g, "v_add3_u32 %s, %s, %s, s60" % (vr(OF), vr(OF), vr(T1)), OF, [OF, T1])
        grp(0, 14, lambda: vop(g, "v_lshl_add_u32 %s, v2, 18, s55" % vr(OF), OF, [2]))
        grp(1, 10, kvoff)
        grp(2, 12, kvoff)

        def xoff():
            vop(g, "v_mul_u32_u24 %s, 24576, v2" % vr(OF), OF, [2])
            vop(g, "v_add_u32 %s, s56, %s" % (vr(OF), vr(OF)), OF, [OF])
        grp(3, 8, xoff)
        fire()
        if TW >= 2:
            g.s("s_add_u32 s55, s55, 131072")
            g.s("s_lshl_b32 s56, %s, 6" % sr(S_GOFF))
            g.s("s_add_u32 s56, s56, %d" % FLG)
            grp(0, 68, lambda: vop(g, "v_lshlrev_b32 %s, 18, v2" % vr(OF), OF, [2]))
            grp(1, 16, lambda: vop(g, "v_mov_b32 %s, s56" % vr(OF), OF))
            grp(2, 82, lambda: vop(g, "v_mov_b32 %s, 0" % vr(OF), OF))
            grp(3, 14, lambda: vop(g, "v_lshl_add_u32 %s, v2, 18, s55" % vr(OF), OF, [2]))
            fire()
    if FORCE_STEAL:
        g.s("s_cmp_eq_u32 s90, 1")
        g.s("s_mov_b32 s90, 0")
        g.s("s_cbranch_scc1 steal")
    g.s("s_lshl_b32 s55, %s, 6" % sr(S_GOFF))
    g.s("s_lshl_b32 s56, s43, 2")
    g.s("s_add_u32 s55, s55, s56")
    g.s("s_add_u32 %s, s55, %d" % (sr(S_FOFF), FLG))
    vop(g, "v_mov_b32 %s, 0" % vr(V_T + 2), V_T + 2)
    g.s("s_mov_b64 exec, %s" % sr(S_CL, 2))
    g.vstore("buffer_store_dword %s, off, %s, %s" % (vr(V_T + 2), sr(SRD_WS, 4), sr(S_FOFF)), "FC", data=[V_T + 2])
    g.s("s_mov_b64 exec, -1")
    if TOUCH:
        g.s("s_lshl_b32 s55, s3, 18")
        g.s("s_add_u32 s55, s55, %d" % (256 * 8192))
        g.s("s_lshl_b32 s56, s43, 8")
        g.s("s_add_u32 s55, s55, s56")
        vop(g, "v_lshrrev_b32 v8, 2, v1", 8, [1])
        vop(g, "v_lshlrev_b32 v8, 13, v8", 8, [8])
        vop(g, "v_lshl_add_u32 v8, v5, 6, v8", 8, [5, 8])
        vop(g, "v_add_u32 v8, s55, v8", 8, [8])
        for i in range(2):
            g.s("s_mov_b32 %s, %d" % (sr(S_TMP), i * 16 * 8192))
            g.vload("buffer_load_dword %s, v8, %s, %s offen" % (vr(V_T + 3), sr(SRD_W, 4), sr(S_TMP)), "TCH", dst=[V_T + 3], addr=[8])
        g.s("s_mul_i32 s55, s5, 393216")
        g.s("s_lshl_b32 s56, s43, 3")
        g.s("s_add_u32 s56, s56, s3")
        g.s("s_mul_i32 s56, s56, 1536")
        g.s("s_add_u32 s55, s55, s56")
        vop(g, "v_lshlrev_b32 v9, 6, v1", 9, [1])
        vop(g, "v_add_u32 v9, s55, v9", 9, [9])
        g.vload("buffer_load_dword %s, v9, %s, 0 offen" % (vr(V_T + 3), sr(SRD_X, 4)), "TCH", dst=[V_T + 3], addr=[9])
    if not KVS:
        g.s("s_cmp_eq_u32 s40, 1")
        g.s("s_cbranch_scc1 attn_kvfirst")
    t0 = g.text()
    gb = Gen()
    gb.vmq = list(g.vmq)
    _stamp_n[0] = 0
    attn_body(gb, False)
    if KVS:
        return t0 + gb.text()
    ga = Gen()
    ga.vmq = list(g.vmq)
    _stamp_n[0] = 0
    ga.label("attn_kvfirst")
    attn_body(ga, True)
    return t0 + gb.text() + ga.text()


O_ACC = 0
O_A = 96
O_B = 112
O_VA = 184
O_VX = 188
O_VO = 190
O_VL = 191
O_VZ = 240
O_VA2 = 226
O_VT = 192


def oproj_setup(g):
    lane_setup(g)
    g.s("s_bfe_u32 s6, %s, 0x10002" % sr(S_ME))
    g.s("s_bfe_u32 s7, %s, 0x20003" % sr(S_ME))
    g.s("s_and_b32 s40, %s, 3" % sr(S_ME))
    g.s("s_lshr_b32 s41, %s, 5" % sr(S_ME))
    g.s("s_mul_i32 s55, s40, 24")
    g.s("s_mul_i32 s56, s7, 6")
    g.s("s_add_u32 s42, s55, s56")
    g.s("s_lshl_b32 s55, s42, 7")
    g.s("s_lshl_b32 s56, s3, 4")
    g.s("s_add_u32 s55, s55, s56")
    g.s("s_lshl_b32 s55, s55, 10")
    g.s("s_mul_i32 s56, s6, %d" % O_BLOCK_BYTES)
    g.s("s_add_u32 s55, s55, s56")
    vop(g, "v_lshlrev_b32 %s, 4, v1" % vr(O_VL), O_VL, [1])
    vop(g, "v_add_u32 %s, s55, %s" % (vr(O_VX), vr(O_VL)), O_VX, [O_VL])
    ow_addrs(g, 8, 9)
    vop(g, "v_lshlrev_b32 v8, 2, v3", 8, [3])
    vop(g, "v_add_u32 v8, v8, v4", 8, [8, 4])
    vop(g, "v_bfe_u32 v9, v8, 1, 2", 9, [8])
    vop(g, "v_lshlrev_b32 v8, 7, v8", 8, [8])
    vop(g, "v_lshl_add_u32 v8, v5, 3, v8", 8, [8, 5])
    vop(g, "v_add_u32 v8, %s, v8" % sr(S_M0W), 8, [8])
    for t in range(4):
        vop(g, "v_xor_b32 v10, %d, v9" % t, 10, [9])
        vop(g, "v_lshl_add_u32 %s, v10, 5, v8" % vr(O_VA + t), O_VA + t, [10, 8])
        vop(g, "v_add_u32 %s, 0x10000, %s" % (vr(O_VA2 + t), vr(O_VA + t)), O_VA2 + t, [O_VA + t])
        vop(g, "v_add_u32 %s, 0x20000, %s" % (vr(O_VA2 + 4 + t), vr(O_VA + t)), O_VA2 + 4 + t, [O_VA + t])
    g.s("s_lshl_b32 s55, s42, 4")
    g.s("s_lshl_b32 s55, s55, 10")
    g.s("s_lshl_b32 s56, s6, 9")
    g.s("s_add_u32 s55, s55, s56")
    g.s("s_lshl_b32 s56, s41, 6")
    g.s("s_add_u32 s55, s55, s56")
    g.s("s_lshl_b32 s55, s55, 1")
    vop(g, "v_lshlrev_b32 v8, 11, v2", 8, [2])
    vop(g, "v_lshl_add_u32 v8, v3, 3, v8", 8, [3, 8])
    vop(g, "v_add_u32 %s, s55, v8" % vr(O_VO), O_VO, [8])
    vop(g, "v_mov_b32 %s, 0" % vr(O_VZ), O_VZ)


def gen_steal():
    g = Gen()
    A, B = O_VT, O_VT + 1
    g.label("steal")
    g.s("s_mov_b32 %s, 0" % sr(S_EARLY))
    g.waitcnt(vm=0, lg=0)
    g.barrier()
    g.s("s_cmp_lg_u32 s3, 0")
    g.s("s_cbranch_scc1 steal_join")
    g.label("steal_retry")
    g.vload("buffer_load_dword %s, off, %s, %s sc1" % (vr(A), sr(SRD_DBG, 4), sr(S_GOFF)), "X", dst=[A])
    g.waitcnt(vm=0)
    g.valu("v_readfirstlane_b32 s55, %s" % vr(A), src=[A], readlane=True, sdst=[55])
    g.s("s_mov_b32 s56, -1")
    g.s("s_cmp_eq_u32 s55, -1")
    g.s("s_cbranch_scc1 steal_pub")
    g.s("s_ff0_i32_b32 s56, s55")
    g.s("s_lshl_b32 s57, 1, s56")
    vop(g, "v_mov_b32 %s, s57" % vr(A), A)
    g.s("s_mov_b64 exec, 1")
    g.vload("buffer_atomic_or %s, off, %s, %s sc0" % (vr(A), sr(SRD_DBG, 4), sr(S_GOFF)), "X", dst=[A])
    g.s("s_mov_b64 exec, -1")
    g.waitcnt(vm=0)
    g.valu("v_readfirstlane_b32 s55, %s" % vr(A), src=[A], readlane=True, sdst=[55])
    g.s("s_and_b32 s55, s55, s57")
    g.s("s_cmp_lg_u32 s55, 0")
    g.s("s_cbranch_scc1 steal_retry")
    g.label("steal_pub")
    vop(g, "v_mov_b32 %s, s56" % vr(A), A)
    vop(g, "v_mov_b32 %s, 0" % vr(B), B)
    g.dswrite("ds_write_b32 %s, %s" % (vr(B), vr(A)), "X", data=[A], addr=[B])
    g.waitcnt(lg=0)
    g.label("steal_join")
    g.barrier()
    vop(g, "v_mov_b32 %s, 0" % vr(B), B)
    g.dsread("ds_read_b32 %s, %s" % (vr(A), vr(B)), "X", dst=[A], addr=[B])
    g.waitcnt(lg=0)
    g.valu("v_readfirstlane_b32 s56, %s" % vr(A), src=[A], readlane=True, sdst=[56])
    g.barrier()
    g.s("s_cmp_eq_u32 s56, -1")
    g.s("s_cbranch_scc1 steal_none")
    g.s("s_lshl_b32 s56, s56, 3")
    g.s("s_and_b32 s57, %s, 7" % sr(S_ME))
    g.s("s_or_b32 s2, s56, s57")
    g.s("s_mov_b32 %s, 1" % sr(S_STOLEN))
    g.s("s_mov_b32 %s, 0" % sr(S_CL))
    g.s("s_branch job_start")
    g.label("steal_none")
    oproj_setup(g)
    g.s("s_branch oproj_pf")
    return g.text()


def gen_oproj():
    g = Gen()

    def oacc(t, u):
        return O_ACC + (t * 6 + u) * 4

    def bfr(s, u):
        return O_B + ((s % 3) * 6 + u) * 4

    g.label("attn_tail")
    g.nop(2)
    oproj_setup(g)
    g.s("s_lshl_b32 s57, 1, s43")
    vop(g, "v_mov_b32 %s, s57" % vr(O_VT), O_VT)
    vop(g, "v_mov_b32 %s, 1" % vr(O_VT + 3), O_VT + 3)
    g.waitcnt(vm=0)
    stamp(g, 0, V_T)
    g.valu("v_readfirstlane_b32 s55, %s" % vr(V_CLAIM), src=[V_CLAIM], readlane=True, sdst=[55])
    g.s("s_and_b32 s55, s55, s57")
    g.s("s_cmp_eq_u32 s55, 0")
    g.s("s_cselect_b32 s55, 1, %s" % sr(S_STOLEN))
    g.s("s_and_b32 s58, s55, %s" % sr(S_W0))
    g.s("s_mov_b32 s59, 0")
    g.waitcnt(lg=0)
    g.lgq = []
    g.barrier()
    if REL:
        g.s("s_cmp_lg_u32 s3, 0")
        g.s("s_cbranch_scc1 rel_skip")
        g.s("buffer_wbl2 sc1")
        g.waitcnt(vm=0)
        g.label("rel_skip")
    g.s("s_mov_b64 exec, %s" % sr(S_CL, 2))
    g.vstore("buffer_store_dword %s, off, %s, %s" % (vr(O_VT + 3), sr(SRD_WS, 4), sr(S_FOFF)), "FS", data=[O_VT + 3])
    g.s("s_mov_b64 exec, s[58:59]")
    g.vstore("buffer_atomic_add %s, off, %s, %s" % (vr(O_VT), sr(SRD_DBG, 4), sr(S_GOFF + 1)), "DN", data=[O_VT])
    g.s("s_mov_b64 exec, -1")
    g.s("s_cmp_lg_u32 %s, 1" % sr(S_DEC))
    g.s("s_cbranch_scc1 steal")
    g.label("oproj_pf")

    ROT = ""

    def issue_w(c):
        issue_ow(g, c)

    def issue_b(s):
        if os.environ.get("ONOB") and s > 2:
            return
        if ROT:
            rot_idx(s, 10)
        for u in range(6):
            if ROT:
                g.s("s_add_u32 %s, s9, %d" % (sr(S_TMP), u * 131072))
            else:
                g.s("s_mov_b32 %s, %d" % (sr(S_TMP), u * 131072 + (s >> 2) * 4096))
            d = bfr(s, u)
            g.vload("buffer_load_dwordx4 %s, %s, %s, %s offen offset:%d%s" % (vr(d, 4), vr(O_VX), sr(SRD_WS, 4), sr(S_TMP), 0 if ROT else (s & 3) * 1024, os.environ.get("OPOL", " sc1")),
                    "B%d" % s, dst=rng(d, 4), addr=[O_VX])

    def tr_reads(s, t):
        slot = s % NSL
        va = [O_VA, O_VA2, O_VA2 + 4][slot >> 1] + t
        for j in range(2):
            d = O_A + t * 4 + j * 2
            g.dsread("ds_read_b64_tr_b16 %s, %s offset:%d" % (vr(d, 2), vr(va), (slot & 1) * 32768 + j * 2048),
                     "A%d_%d" % (s, t), dst=rng(d, 2), addr=[va])

    LATEW = 0
    if NE:
        g.s("s_cmp_lg_u32 %s, 0" % sr(S_EARLY))
        g.s("s_cbranch_scc1 pre_skip")
        for c in range(NE):
            issue_w(c)
        g.label("pre_skip")
    for c in range(NE, NSL):
        issue_w(c)
    g.s("s_cmp_lg_u32 %s, %s" % (sr(S_PSEEN), sr(S_PEXP)))
    g.s("s_cbranch_scc1 oproj_slowpoll")
    g.s("s_lshl_b32 s55, %s, 6" % sr(S_GOFF))
    g.s("s_lshl_b32 s56, s3, 4")
    g.s("s_add_u32 s55, s55, s56")
    g.s("s_add_u32 %s, s55, %d" % (sr(S_FPOLL), FLG))
    P = O_VT + 4
    g.label("oproj_poll")
    g.vload("buffer_load_dwordx4 %s, off, %s, %s sc1" % (vr(P, 4), sr(SRD_WS, 4), sr(S_FPOLL)), "P", dst=rng(P, 4))
    g.waitcnt(vm=0)
    g.vmq = []
    vop(g, "v_and_b32 %s, %s, %s" % (vr(P), vr(P), vr(P + 1)), P, [P, P + 1])
    vop(g, "v_and_b32 %s, %s, %s" % (vr(P + 2), vr(P + 2), vr(P + 3)), P + 2, [P + 2, P + 3])
    vop(g, "v_and_b32 %s, %s, %s" % (vr(P), vr(P), vr(P + 2)), P, [P, P + 2])
    g.valu("v_readfirstlane_b32 s55, %s" % vr(P), src=[P], readlane=True, sdst=[55])
    g.s("s_cmp_eq_u32 s55, 1")
    g.s("s_cbranch_scc1 oproj_go")
    g.s("s_sleep %d" % SLEEP)
    g.s("s_branch oproj_poll")
    g.label("oproj_slowpoll")
    for i in range(int(os.environ.get("SLOWX", "0"))):
        g.s("s_sleep 127")
    g.s("s_lshl_b32 s56, s3, 2")
    g.vload("buffer_load_dword %s, off, %s, %s sc1" % (vr(O_VT + 2), sr(SRD_DBG, 4), sr(S_GOFF + 1)), "P", dst=[O_VT + 2])
    g.waitcnt(vm=0)
    g.vmq = []
    g.valu("v_readfirstlane_b32 s55, %s" % vr(O_VT + 2), src=[O_VT + 2], readlane=True, sdst=[55])
    g.s("s_lshr_b32 s55, s55, s56")
    g.s("s_and_b32 s55, s55, 15")
    g.s("s_cmp_eq_u32 s55, 15")
    g.s("s_cbranch_scc1 oproj_go")
    g.s("s_sleep 127")
    g.s("s_sleep 127")
    g.s("s_branch oproj_slowpoll")
    g.label("oproj_go")
    stamp(g, 0, V_T)
    for c in range(3):
        if LATEW:
            issue_w(c)
        issue_b(c)
    g.wait_vm("W0")
    for t in range(4):
        tr_reads(0, t)
    nsteps = 16
    for s in range(nsteps):
        g.comment("---- step %d" % s)
        OBAR = int(os.environ.get("OBAR", "0"))
        if OBAR and s % OBAR == 0 and s > 0:
            g.barrier()
        if s % 4 == 0:
            stamp(g, 0, V_T)
        if s >= 1 and s + NSL - 1 < nsteps:
            issue_w(s + NSL - 1)
        for t in range(4):
            g.wait_lg("A%d_%d" % (s, t))
            if t == 0:
                g.wait_vm("B%d" % s)
            for u in range(6):
                if os.environ.get("ONOM") and s > 0 and u >= int(os.environ.get("ONOM")) - 1:
                    continue
                g.mfma(oacc(t, u), O_A + t * 4, bfr(s, u), None if s == 0 else oacc(t, u))
            if s + 1 < nsteps:
                if t == 0:
                    g.wait_vm("W%d" % (s + 1))
                if not (os.environ.get("ONOTR") and s > 0):
                    tr_reads(s + 1, t)
        if s + 3 < nsteps:
            issue_b(s + 3)
    stamp(g, 0, V_T)
    g.s("s_lshl_b32 s55, s3, 13")
    g.s("s_lshl_b32 s56, s3, 10")
    g.s("s_add_u32 s55, s55, %d" % O_LDS)
    g.s("s_add_u32 s56, s56, %d" % O_LDS)
    vop(g, "v_add_u32 %s, s55, %s" % (vr(O_VA), vr(O_VL)), O_VA, [O_VL])
    vop(g, "v_add_u32 %s, s56, %s" % (vr(O_VA + 1), vr(O_VL)), O_VA + 1, [O_VL])
    vop(g, "v_add_u32 %s, 0x10000, %s" % (vr(O_VA + 2), vr(O_VA)), O_VA + 2, [O_VA])
    vop(g, "v_add_u32 %s, 0x10000, %s" % (vr(O_VA + 3), vr(O_VA + 1)), O_VA + 3, [O_VA + 1])
    g.barrier()
    for ph in range(3):
        wa = O_VA + 2 * (ph & 1)
        ra = wa + 1
        for i in range(8):
            d = O_ACC + (8 * ph + i) * 4
            g.dswrite("ds_write_b128 %s, %s offset:%d" % (vr(wa), vr(d, 4), i * 1024), "RW", data=rng(d, 4), addr=[wa])
        g.wait_lg("RW")
        g.barrier()
        T = O_VT + 4
        for w2 in range(8):
            d = T + w2 * 4
            g.dsread("ds_read_b128 %s, %s offset:%d" % (vr(d, 4), vr(ra), w2 * 8192), "RR%d" % w2, dst=rng(d, 4), addr=[ra])
        for w2 in range(1, 8):
            g.wait_lg("RR%d" % w2)
            for h in range(2):
                d = T + h * 2
                s_ = T + w2 * 4 + h * 2
                g.valu("v_pk_add_f32 %s, %s, %s" % (vr(d, 2), vr(d, 2), vr(s_, 2)), dst=[d, d + 1], src=[d, d + 1, s_, s_ + 1])
        o = O_VT + 40 + ph * 2
        g.valu("v_cvt_pk_bf16_f32 %s, %s, %s" % (vr(o), vr(T), vr(T + 1)), dst=[o], src=[T, T + 1])
        g.valu("v_cvt_pk_bf16_f32 %s, %s, %s" % (vr(o + 1), vr(T + 2), vr(T + 3)), dst=[o + 1], src=[T + 2, T + 3])
        g.s("s_add_u32 s55, s3, %d" % (8 * ph))
        g.s("s_mul_i32 s56, s55, 43")
        g.s("s_lshr_b32 s56, s56, 8")
        g.s("s_mul_i32 s57, s56, 6")
        g.s("s_sub_u32 s57, s55, s57")
        g.s("s_lshl_b32 s57, s57, 15")
        g.s("s_lshl_b32 s56, s56, 5")
        g.s("s_add_u32 s57, s57, s56")
        g.vstore("buffer_store_dwordx2 %s, %s, %s, s57 offen" % (vr(o, 2), vr(O_VO), sr(SRD_OUT, 4)), "ST", data=rng(o, 2), addr=[O_VO])
    if STAMP:
        g.wait_vm("ST")
        stamp(g, 0, V_T)
    g.label("attn_end")
    g.s("s_endpgm")
    g.label("attn_code_end")
    return g.text()


HEADER = """; Kernarg layout for this problem (104 bytes, ptrs only, base s[0:1]):
; @launch kernel=attn_kernel grid=(256,1,1) block=(512,1,1) lds=163840
.amdgcn_target "amdgcn-amd-amdhsa--gfx950"
.text
"""


def kernel_text(name, body):
    return (".globl %s\n.p2align 8\n.type %s,@function\n%s:\n" % (name, name, name)) + body


def kd(name, vgpr, sgpr):
    acc_off = (vgpr + 3) // 4 * 4
    return """.p2align 6
.amdhsa_kernel %s
  .amdhsa_next_free_vgpr %d
  .amdhsa_next_free_sgpr %d
  .amdhsa_accum_offset %d
  .amdhsa_group_segment_fixed_size 0
  .amdhsa_kernarg_size 104
  .amdhsa_user_sgpr_count 2
  .amdhsa_user_sgpr_kernarg_segment_ptr 1
  .amdhsa_system_sgpr_workgroup_id_x 1
.end_amdhsa_kernel
""" % (name, vgpr, sgpr, acc_off)


def main():
    out = HEADER
    out += kernel_text("attn_kernel", gen_attn() + gen_steal() + gen_oproj())
    out += '.section .rodata,"a"\n'
    out += kd("attn_kernel", 256, 102)
    path = sys.argv[1] if len(sys.argv) > 1 else "cdna_kernels/%s.s" % NAME
    open(path, "w").write(out)
    print("wrote", path, len(out), "bytes")


if __name__ == "__main__":
    main()
```

```python
import sys, os
sys.path.insert(0, os.path.dirname(os.path.abspath(__file__)))
from asmgen import Gen, vr, sr

NAME = "concat_heads__gqa_block_cached__gqa_block_cached__near_ridge"
O_BLOCK_BYTES = 1536 * 4096 * 2
WS_BYTES = 268435456

STAMP = int(os.environ.get("STAMP", "0"))
STAMP_BASE = 200 * 1024 * 1024
NT = os.environ.get("NT", " nt")
TOUCH = int(os.environ.get("TOUCH", "1"))
TWAIT = int(os.environ.get("TWAIT", "1"))
WOPF = int(os.environ.get("WOPF", "2"))
OTOUCH = int(os.environ.get("OTOUCH", "0"))
_stamp_n = [0]

S_WAVE = 3
SRD_X = 20
SRD_K = 24
SRD_V = 28
SRD_W = 32
SRD_WS = 36
SRD_OUT = 76
SRD_WO = 64
SRD_DBG = 72
S_ME = 70
S_STOLEN = 71
S_GOFF = 84
S_W0 = 86
S_CL = 88
S_PADD = 91
S_PEXP = 92
S_PSEEN = 93
S_FOFF = 94
S_FPOLL = 95
FLG = 64 * 1024 * 1024
REL = int(os.environ.get("REL", "0"))
KVS = [int(x) for x in os.environ.get("KVS", "").split(",") if x]
VLATE = int(os.environ.get("VLATE", "0"))
KV2 = [[int(c, 16) for c in x] for x in os.environ.get("KV2", "").split(",") if x]
O_LDS = 0
S_EARLY = 96
S_DEC = 97
NE = int(os.environ.get("NE", "2"))
NSL = 5
O_VW = 245
SLEEP = int(os.environ.get("SLEEP", "8"))
FORCE_STEAL = int(os.environ.get("FORCE_STEAL", "0"))
S_M0W = 46
S_TMP = 47
S_WOFF = 48
S_M0V = 49
S_SC = 50
S_L2E = 52
S_W4K = 54
S_B8K = 57


def rng(a, n):
    return list(range(a, a + n))


def stamp(g, kid, vt):
    if not STAMP:
        return
    n = _stamp_n[0]
    _stamp_n[0] += 1
    g.s("s_memrealtime s[60:61]" if os.environ.get("REAL") else "s_memtime s[60:61]")
    g.waitcnt(lg=0)
    g.lgq = []
    g.s("s_lshl_b32 s62, s70, 8")
    g.s("s_add_u32 s62, s62, %d" % (STAMP_BASE + kid * 131072 + n * 8))
    g.s("s_mul_i32 s63, s3, 1048576")
    g.s("s_add_u32 s62, s62, s63")
    g.valu("v_mov_b32 %s, s60" % vr(vt), dst=[vt])
    g.valu("v_mov_b32 %s, s61" % vr(vt + 1), dst=[vt + 1])
    g.valu("v_mov_b32 %s, s62" % vr(vt + 2), dst=[vt + 2])
    g.s("s_mov_b64 s[58:59], exec")
    g.s("s_mov_b64 exec, 1")
    g.vstore("buffer_store_dwordx2 %s, %s, %s, 0 offen" % (vr(vt, 2), vr(vt + 2), sr(SRD_WS, 4)), "STAMP", data=[vt, vt + 1], addr=[vt + 2])
    g.s("s_mov_b64 exec, s[58:59]")


def make_srd(g, srd, ptr, nbytes):
    g.s("s_mov_b32 %s, %s" % (sr(srd), sr(ptr)))
    g.s("s_and_b32 %s, %s, 0xffff" % (sr(srd + 1), sr(ptr + 1)))
    g.s("s_mov_b32 %s, %d" % (sr(srd + 2), nbytes))
    g.s("s_mov_b32 %s, 0x00020000" % sr(srd + 3))


def vop(g, text, dst, src=()):
    g.valu(text, dst=[dst] if isinstance(dst, int) else dst, src=src)


def lane_setup(g):
    vop(g, "v_mov_b32 v1, %s" % vr(V_LANE), 1, [V_LANE])
    vop(g, "v_and_b32 v2, 15, v1", 2, [1])
    vop(g, "v_lshrrev_b32 v3, 4, v1", 3, [1])
    vop(g, "v_bfe_u32 v4, v1, 2, 2", 4, [1])
    vop(g, "v_and_b32 v5, 3, v1", 5, [1])
    vop(g, "v_and_b32 v6, 1, v3", 6, [3])
    vop(g, "v_lshlrev_b32 v6, 2, v6", 6, [6])
    vop(g, "v_or_b32 v6, v6, v4", 6, [6, 4])


def pack_pair(g, lo, hi):
    g.valu("v_cvt_pk_bf16_f32 %s, %s, %s" % (vr(lo), vr(lo), vr(lo + 1)), dst=[lo], src=[lo, lo + 1])
    g.valu("v_cvt_pk_bf16_f32 %s, %s, %s" % (vr(lo + 1), vr(lo + 2), vr(lo + 3)), dst=[lo + 1], src=[lo + 2, lo + 3])
    g.valu("v_cvt_pk_bf16_f32 %s, %s, %s" % (vr(lo + 2), vr(hi), vr(hi + 1)), dst=[lo + 2], src=[hi, hi + 1])
    g.valu("v_cvt_pk_bf16_f32 %s, %s, %s" % (vr(lo + 3), vr(hi + 2), vr(hi + 3)), dst=[lo + 3], src=[hi + 2, hi + 3])


def xlane_reduce(g, m, tmp, op):
    for sw in ("v_permlane32_swap_b32", "v_permlane16_swap_b32"):
        vop(g, "v_mov_b32 %s, %s" % (vr(tmp), vr(m)), tmp, [m])
        g.valu("%s %s, %s" % (sw, vr(m), vr(tmp)), dst=[m, tmp], src=[m, tmp], permlane=True)
        vop(g, "%s %s, %s, %s" % (op, vr(m), vr(m), vr(tmp)), m, [m, tmp])


R_ACC = 0
R_A = 96
R_B = 128
R_F = 164
R_K = 188
V_A = 236
V_X = 244
V_W = 245
V_BP = 246
V_VD0 = 247
V_VD1 = 248
V_K = 249
V_LANE = 250
V_CLAIM = 251
V_T = 252
V_KW = R_B + 36
V_KR = R_B + 37
V_WO = R_B + 38
V_O = R_B + 39
V_DELTA = R_B + 40
T0 = R_B + 41
V_MASK = R_B + 47
A_V_LDS = 65536
NSLOT = 8
NB = 3
XD = int(os.environ.get("XD", "1"))
V_X2 = R_F


def acc(t, u):
    return R_ACC + (t * 3 + u) * 4


def bstage(s, u):
    return R_B + ((s % NB) * 3 + u) * 4


def bfrag(s, u):
    if u < XD:
        return bstage(s, u)
    return R_F + ((s % 2) * 3 + u) * 4


def post_gemm_addrs(g):
    L, Q, G, R, C, A, B = V_LANE, T0, T0 + 1, T0 + 2, T0 + 3, T0 + 4, T0 + 5
    v = vr
    vop(g, "v_and_b32 %s, 15, %s" % (v(Q), v(L)), Q, [L])
    vop(g, "v_lshrrev_b32 %s, 4, %s" % (v(G), v(L)), G, [L])
    vop(g, "v_bfe_u32 %s, %s, 2, 2" % (v(R), v(L)), R, [L])
    vop(g, "v_and_b32 %s, 3, %s" % (v(C), v(L)), C, [L])
    vop(g, "v_xor_b32 %s, %s, %s" % (v(A), v(Q), v(G)), A, [Q, G])
    vop(g, "v_lshlrev_b32 %s, 4, %s" % (v(A), v(A)), A, [A])
    vop(g, "v_lshl_add_u32 %s, %s, 8, %s" % (v(A), v(G), v(A)), A, [G, A])
    g.s("s_lshl_b32 s55, s3, 13")
    vop(g, "v_add_u32 %s, s55, %s" % (v(V_KW), v(A)), V_KW, [A])
    vop(g, "v_lshrrev_b32 %s, 1, %s" % (v(A), v(G)), A, [G])
    vop(g, "v_xor_b32 %s, %s, %s" % (v(A), v(A), v(Q)), A, [A, Q])
    vop(g, "v_lshlrev_b32 %s, 4, %s" % (v(A), v(A)), A, [A])
    vop(g, "v_lshl_add_u32 %s, %s, 8, %s" % (v(A), v(Q), v(A)), A, [Q, A])
    vop(g, "v_and_b32 %s, 1, %s" % (v(B), v(G)), B, [G])
    vop(g, "v_lshl_add_u32 %s, %s, 3, %s" % (v(A), v(B), v(A)), A, [A, B])
    g.s("s_lshl_b32 s55, s41, 14")
    vop(g, "v_add_u32 %s, s55, %s" % (v(V_KR), v(A)), V_KR, [A])
    g.s("s_mul_i32 s55, s41, 24576")
    g.s("s_add_u32 s55, s55, %d" % A_V_LDS)
    vop(g, "v_lshlrev_b32 %s, 10, %s" % (v(A), v(G)), A, [G])
    vop(g, "v_sub_u32 %s, s55, %s" % (v(V_DELTA), v(A)), V_DELTA, [A])
    g.s("s_mul_i32 s55, s44, 6")
    g.s("s_mul_i32 s56, s42, 3")
    g.s("s_add_u32 s55, s55, s56")
    g.s("s_lshl_b32 s55, s55, 7")
    g.s("s_lshl_b32 s56, s43, 2")
    g.s("s_add_u32 s55, s55, s56")
    g.s("s_lshl_b32 s55, s55, 10")
    g.s("s_mul_i32 s56, s6, %d" % O_BLOCK_BYTES)
    g.s("s_add_u32 s55, s55, s56")
    vop(g, "v_lshlrev_b32 %s, 4, %s" % (v(A), v(L)), A, [L])
    vop(g, "v_add_u32 %s, s55, %s" % (v(V_O), v(A)), V_O, [A])
    g.s("s_and_b32 s55, s2, 3")
    g.s("s_lshl_b32 s55, s55, 5")
    g.s("s_lshr_b32 s56, s2, 3")
    g.s("s_add_u32 s55, s55, s56")
    g.s("s_lshl_b32 s55, s55, 3")
    g.s("s_add_u32 s55, s55, s3")
    g.s("s_lshl_b32 s55, s55, 12")
    vop(g, "v_lshlrev_b32 %s, 6, %s" % (v(A), v(L)), A, [L])
    vop(g, "v_add_u32 %s, s55, %s" % (v(V_WO), v(A)), V_WO, [A])


def ow_addrs(g, t1, t2):
    vop(g, "v_and_b32 %s, 7, %s" % (vr(t1), vr(V_LANE)), t1, [V_LANE])
    vop(g, "v_lshrrev_b32 %s, 4, %s" % (vr(t2), vr(V_LANE)), t2, [V_LANE])
    vop(g, "v_lshlrev_b32 %s, 1, %s" % (vr(t2), vr(t2)), t2, [t2])
    vop(g, "v_xor_b32 %s, %s, %s" % (vr(t1), vr(t1), vr(t2)), t1, [t1, t2])
    vop(g, "v_lshlrev_b32 %s, 4, %s" % (vr(t1), vr(t1)), t1, [t1])
    vop(g, "v_lshrrev_b32 %s, 3, %s" % (vr(t2), vr(V_LANE)), t2, [V_LANE])
    vop(g, "v_lshl_add_u32 %s, %s, 10, %s" % (vr(t1), vr(t2), vr(t1)), t1, [t1, t2])
    g.s("s_lshr_b32 s55, %s, 5" % sr(S_ME))
    g.s("s_lshl_b32 s55, s55, 7")
    g.s("s_lshl_b32 s56, s3, 19")
    g.s("s_add_u32 s55, s55, s56")
    vop(g, "v_add_u32 %s, s55, %s" % (vr(O_VW), vr(t1)), O_VW, [t1])
    g.s("s_lshl_b32 %s, s3, 12" % sr(S_M0W))


def issue_ow(g, c):
    for i in range(4):
        g.s("s_mov_b32 %s, %d" % (sr(S_WOFF), c * 32768 + i * 8192))
        g.s("s_add_u32 m0, %s, %d" % (sr(S_M0W), (c % NSL) * 32768 + i * 1024), m0=True)
        g.vload("buffer_load_dwordx4 %s, %s, %s offen lds" % (vr(O_VW), sr(SRD_WO, 4), sr(S_WOFF)),
                "W%d" % c, addr=[O_VW], lds=True)


def attn_body(g, kv_first):
    def tr_reads(s, t):
        if os.environ.get("NOTR") and s > 0:
            return
        for j in range(2):
            d = R_A + t * 4 + j * 2
            g.dsread("ds_read_b64_tr_b16 %s, %s offset:%d" % (vr(d, 2), vr(V_A + t), (s % NSLOT) * 8192 + j * 1024),
                     "A%d_%d" % (s, t), dst=rng(d, 2), addr=[V_A + t])

    def issue_w(c):
        if os.environ.get("NOW") and c > 1:
            return
        g.s("s_mov_b32 %s, %d" % (sr(S_WOFF), c * 262144))
        g.s("s_add_u32 m0, %s, %d" % (sr(S_M0W), (c % NSLOT) * 8192), m0=True)
        g.vload("buffer_load_dwordx4 %s, %s, %s offen lds" % (vr(V_W), sr(SRD_W, 4), sr(S_WOFF)),
                "W%d" % c, addr=[V_W], lds=True)

    def issue_b(s):
        if os.environ.get("NOX") and s > 3:
            return
        for u in range(3):
            g.s("s_mov_b32 %s, %d" % (sr(S_TMP), u * 16384))
            d = bstage(s, u)
            va = V_X2 if u < XD else V_X
            g.vload("buffer_load_dwordx4 %s, %s, %s, %s offen offset:%d" % (vr(d, 4), vr(va), sr(SRD_X, 4), sr(S_TMP), s * 64),
                    "B%d" % s, dst=rng(d, 4), addr=[va])

    def perm_b(s, lo=0, hi=12):
        if os.environ.get("NOPERM") and s > 1:
            return
        if lo == 0:
            g.wait_vm("B%d" % s)
        for i in range(lo, hi):
            u, r = i // 4, i % 4
            if u < XD:
                continue
            d = bfrag(s, u) + r
            a = bstage(s, u) + r
            g.dsread("ds_bpermute_b32 %s, %s, %s" % (vr(d), vr(V_BP), vr(a)), "F%d" % s, dst=[d], addr=[V_BP, a])

    def issue_k(i):
        g.s("s_mov_b32 %s, %d" % (sr(S_TMP), i * 4096))
        for m in range(4):
            d = R_K + (i * 4 + m) * 4
            g.vload("buffer_load_dwordx4 %s, %s, %s, %s offen offset:%d%s" % (vr(d, 4), vr(V_K), sr(SRD_K, 4), sr(S_TMP), m * 1024, NT),
                    "K%d" % i, dst=rng(d, 4), addr=[V_K])

    def issue_v(i):
        g.s("s_mov_b32 %s, %d" % (sr(S_TMP), i * 1024))
        g.s("s_add_u32 m0, %s, %d" % (sr(S_M0V), i * 1024), m0=True)
        g.vload("buffer_load_dwordx4 %s, %s, %s offen%s lds" % (vr(V_VD0 + (i & 1)), sr(SRD_V, 4), sr(S_TMP), NT),
                "V", addr=[V_VD0 + (i & 1)], lds=True)

    def issue_kv():
        if os.environ.get("NOKV"):
            return
        for i in range(3):
            issue_k(i)
        for i in range(12):
            issue_v(i)

    def issue_k1(i, m):
        g.s("s_mov_b32 %s, %d" % (sr(S_TMP), i * 4096))
        d = R_K + (i * 4 + m) * 4
        g.vload("buffer_load_dwordx4 %s, %s, %s, %s offen offset:%d%s" % (vr(d, 4), vr(V_K), sr(SRD_K, 4), sr(S_TMP), m * 1024, NT),
                "K%d" % i, dst=rng(d, 4), addr=[V_K])

    kvops = [(lambda i=i, m=m: issue_k1(i, m)) for i in range(3) for m in range(4)] + [(lambda i=i: issue_v(i)) for i in range(12)]

    def trickle(n):
        for _ in range(n):
            if kvops:
                kvops.pop(0)()

    stamp(g, 0, V_T)
    if STAMP:
        for n, r in ((18, 98), (19, 100)):
            g.s("s_lshl_b32 s62, s70, 8")
            g.s("s_add_u32 s62, s62, %d" % (STAMP_BASE + n * 8))
            g.s("s_mul_i32 s63, s3, 1048576")
            g.s("s_add_u32 s62, s62, s63")
            g.valu("v_mov_b32 %s, s%d" % (vr(V_T), r), dst=[V_T])
            g.valu("v_mov_b32 %s, s%d" % (vr(V_T + 1), r + 1), dst=[V_T + 1])
            g.valu("v_mov_b32 %s, s62" % vr(V_T + 2), dst=[V_T + 2])
            g.s("s_mov_b64 exec, 1")
            g.vstore("buffer_store_dwordx2 %s, %s, %s, 0 offen" % (vr(V_T, 2), vr(V_T + 2), sr(SRD_WS, 4)), "STAMP", data=[V_T, V_T + 1], addr=[V_T + 2])
            g.s("s_mov_b64 exec, -1")
    sched = KV2[int(kv_first)] if KV2 else None
    if kv_first:
        if TWAIT:
            g.wait_vm("TCH")
        if sched:
            trickle(sched[0])
        else:
            issue_kv()
    for c in range(NSLOT - 1):
        issue_w(c)
        if c < NB:
            issue_b(c)
    if KVS:
        trickle(KVS[0])
    CT = int(os.environ.get("CT", "0"))
    if CT:
        lab = "ct_here_%d" % int(kv_first)
        g.s("s_getpc_b64 s[60:61]")
        g.label(lab)
        g.s("s_sub_u32 s60, s60, %s-attn_kernel" % lab)
        g.s("s_subb_u32 s61, s61, 0")
        g.s("s_and_b32 s61, s61, 0xffff")
        g.s("s_mov_b32 s62, attn_code_end-attn_kernel")
        g.s("s_mov_b32 s63, 0x00020000")
        g.s("s_lshl_b32 s55, s3, 13")
        vop(g, "v_lshlrev_b32 %s, 7, %s" % (vr(V_T + 2), vr(V_LANE)), V_T + 2, [V_LANE])
        g.vload("buffer_load_dword %s, %s, s[60:63], s55 offen" % (vr(V_T + 3), vr(V_T + 2)), "TCH", dst=[V_T + 3], addr=[V_T + 2])
    nsteps = 16
    g.wait_vm("W0")
    g.s("s_mov_b64 exec, %s" % sr(S_CL, 2))
    g.vload("buffer_atomic_or %s, off, %s, %s sc0" % (vr(V_CLAIM), sr(SRD_DBG, 4), sr(S_GOFF)), "CL", dst=[V_CLAIM])
    vop(g, "v_mov_b32 %s, %s" % (vr(V_T + 2), sr(S_PADD)), V_T + 2)
    g.vstore("buffer_atomic_add %s, off, %s, %s offset:64" % (vr(V_T + 2), sr(SRD_DBG, 4), sr(S_GOFF)), "CL", data=[V_T + 2])
    g.s("s_mov_b64 exec, -1")
    g.barrier()
    for t in range(8):
        tr_reads(0, t)
    perm_b(0)
    for s in range(nsteps):
        g.comment("---- gemm step %d" % s)
        if s + 1 < nsteps:
            g.wait_vm("W%d" % (s + 1))
            g.barrier()
        if s % 4 == 0:
            stamp(g, 0, V_T)
        if s + NSLOT - 1 < nsteps:
            issue_w(s + NSLOT - 1)
        pcut = [[0, 2, 4, 6, 8, 9, 10, 11, 12], [0, 5, 6, 7, 8, 9, 10, 11, 12], [0, 9, 9, 10, 10, 11, 11, 12, 12], [0, 12, 12, 12, 12, 12, 12, 12, 12]][XD]
        for t in range(8):
            g.wait_lg("A%d_%d" % (s, t))
            if t == 0:
                g.wait_lg("F%d" % s)
            for u in range(3):
                g.mfma(acc(t, u), R_A + t * 4, bfrag(s, u), None if s == 0 else acc(t, u))
            if s + 1 < nsteps:
                tr_reads(s + 1, t)
                perm_b(s + 1, pcut[t], pcut[t + 1])
        if s + NB < nsteps:
            g.wait_lg("F%d" % (s + 1))
            issue_b(s + NB)
        if sched:
            trickle(24 if s == nsteps - 1 else sched[s + 1])
        elif KVS:
            trickle(KVS[s + 1] if s + 1 < len(KVS) else (24 if s == nsteps - 1 else 0))
        elif s == nsteps - NB - 1 and not kv_first:
            issue_kv()

    post_gemm_addrs(g)
    g.vload("buffer_load_dword %s, off, %s, %s offset:64 sc1" % (vr(V_MASK), sr(SRD_DBG, 4), sr(S_GOFF)), "MK", dst=[V_MASK])
    if WOPF == 2:
        g.vload("buffer_load_dword %s, %s, %s, 0 offen" % (vr(V_T + 3), vr(V_WO), sr(SRD_WO, 4)), "TCH", dst=[V_T + 3], addr=[V_WO])
    if WOPF == 3:
        vop(g, "v_and_b32 %s, 0xfffff, %s" % (vr(V_WO), vr(V_WO)), V_WO, [V_WO])
        for i in range(4):
            g.s("s_mov_b32 %s, %d" % (sr(S_TMP), i << 20))
            g.vload("buffer_load_dword %s, %s, %s, %s offen" % (vr(V_T + 3), vr(V_WO), sr(SRD_WO, 4), sr(S_TMP)), "TCH", dst=[V_T + 3], addr=[V_WO])
    stamp(g, 0, V_T)
    for p in range(4):
        for u in range(3):
            pack_pair(g, acc(2 * p, u), acc(2 * p + 1, u))
    KA = R_B + 24
    KW = R_B + 32
    for m in range(4):
        vop(g, "v_xor_b32 %s, %d, %s" % (vr(KW + m), m * 64, vr(V_KW)), KW + m, [V_KW])
    for c in range(8):
        vop(g, "v_xor_b32 %s, %d, %s" % (vr(KA + c), c * 32, vr(V_KR)), KA + c, [V_KR])

    def sacc(kt, u):
        i = kt * 3 + u
        if i < 12:
            return acc(1 + 2 * (i // 3), i % 3)
        return R_B + (i - 12) * 4

    def k_write(i, slot_off):
        g.wait_vm("K%d" % i)
        for m in range(4):
            d = R_K + (i * 4 + m) * 4
            g.dswrite("ds_write_b128 %s, %s offset:%d" % (vr(KW + m), vr(d, 4), slot_off + m * 1024), "KW", data=rng(d, 4), addr=[KW + m])

    def k_reads(n, slot_off):
        for p in range(4):
            for j in range(2):
                d = R_A + ((n & 1) * 4 + p) * 4 + 2 * j
                g.dsread("ds_read_b64 %s, %s offset:%d" % (vr(d, 2), vr(KA + 2 * p + j), slot_off), "KF%d_%d" % (n, p), dst=rng(d, 2), addr=[KA + 2 * p + j])

    def s_tile(n, kt):
        for p in range(4):
            g.wait_lg("KF%d_%d" % (n, p))
            for u in range(3):
                g.mfma(sacc(kt, u), R_A + ((n & 1) * 4 + p) * 4, acc(2 * p, u), None if p == 0 else sacc(kt, u))

    g.barrier()
    k_write(0, 0)
    k_write(1, 4096)
    g.wait_lg("KW")
    g.barrier()
    r1 = [0, 1, 3, 4]
    k_reads(0, 0)
    for n in range(4):
        if n + 1 < 4:
            k_reads(n + 1, (n + 1) * 4096)
        s_tile(n, r1[n])
    g.barrier()
    for m in range(4):
        vop(g, "v_subrev_u32 %s, %s, %s" % (vr(KW + m), sr(S_W4K), vr(KW + m)), KW + m, [KW + m])
    for c in range(8):
        vop(g, "v_subrev_u32 %s, %s, %s" % (vr(KA + c), sr(S_B8K), vr(KA + c)), KA + c, [KA + c])
    k_write(2, 0)
    g.wait_lg("KW")
    g.barrier()
    k_reads(4, 0)
    k_reads(5, 4096)
    s_tile(4, 2)
    s_tile(5, 5)
    stamp(g, 0, V_T)
    def v_reads(pp, t):
        for j in range(2):
            d = R_A + t * 4 + j * 2
            g.dsread("ds_read_b64_tr_b16 %s, %s offset:%d" % (vr(d, 2), vr(V_A + t), pp * 8192 + j * 4096),
                     "VT%d_%d" % (pp, t), dst=rng(d, 2), addr=[V_A + t])

    def v_ready():
        g.comment("---- V ready barrier, V addresses")
        g.wait_vm(["V", "MK"])
        g.valu("v_readfirstlane_b32 %s, %s" % (sr(S_PSEEN), vr(V_MASK)), src=[V_MASK], readlane=True, sdst=[S_PSEEN])
        da, dv = R_B + 28, R_B + 29
        g.s("s_and_b32 s55, %s, 63" % sr(S_PSEEN))
        g.s("s_cmp_eq_u32 s55, 32")
        g.s("s_cselect_b32 s55, 1, 0")
        vop(g, "v_mov_b32 %s, s55" % vr(dv), dv)
        vop(g, "v_lshlrev_b32 %s, 12, %s" % (vr(da), vr(V_LANE)), da, [V_LANE])
        g.s("s_mul_i32 s58, %s, 255" % sr(S_W0))
        g.s("s_mov_b32 s59, 0")
        g.s("s_mov_b64 exec, s[58:59]")
        g.dswrite("ds_write_b32 %s, %s offset:32768" % (vr(da), vr(dv)), "DW", data=[dv], addr=[da])
        g.s("s_mov_b64 exec, -1")
        vop(g, "v_mov_b32 %s, %s" % (vr(da), sr(S_W4K)), da)
        g.wait_lg("DW")
        g.barrier()
        g.dsread("ds_read_b32 %s, %s offset:32768" % (vr(dv), vr(da)), "DR", dst=[dv], addr=[da])
        for t in range(8):
            v_reads(0, t)
        ow_addrs(g, R_B + 30, R_B + 31)
        g.wait_lg("DR")
        g.valu("v_readfirstlane_b32 %s, %s" % (sr(S_DEC), vr(dv)), src=[dv], readlane=True, sdst=[S_DEC])
        for c in range(NE):
            issue_ow(g, c)
        g.s("s_mov_b32 %s, 1" % sr(S_EARLY))

    for t in range(8):
        vop(g, "v_add_u32 %s, %s, %s" % (vr(V_A + t), vr(V_A + t), vr(V_DELTA)), V_A + t, [V_A + t, V_DELTA])
    if not VLATE:
        v_ready()
    PT = int(os.environ.get("PT", "1"))
    if PT & 1:
        a = R_B + 24
        vop(g, "v_and_b32 %s, 3, %s" % (vr(a), vr(V_LANE)), a, [V_LANE])
        vop(g, "v_min_u32 %s, 2, %s" % (vr(a), vr(a)), a, [a])
        vop(g, "v_lshl_add_u32 %s, %s, 17, %s" % (vr(a), vr(a), vr(V_O)), a, [a, V_O])
        g.vload("buffer_load_dword %s, %s, %s, 0 offen" % (vr(V_T + 3), vr(a), sr(SRD_WS, 4)), "TCH", dst=[V_T + 3], addr=[a])
    if PT & 2:
        a = R_B + 25
        g.s("s_and_b32 s55, %s, 3" % sr(S_ME))
        g.s("s_mul_i32 s55, s55, %d" % (384 * 2048))
        g.s("s_mul_i32 s56, s3, %d" % (48 * 2048))
        g.s("s_add_u32 s55, s55, s56")
        vop(g, "v_lshlrev_b32 %s, 11, %s" % (vr(a), vr(V_LANE)), a, [V_LANE])
        g.vload("buffer_load_dword %s, %s, %s, s55 offen" % (vr(V_T + 3), vr(a), sr(SRD_OUT, 4)), "TCH", dst=[V_T + 3], addr=[a])
    if PT & 4:
        a = R_B + 26
        g.s("s_bfe_u32 s55, %s, 0x30003" % sr(S_ME))
        g.s("s_lshl_b32 s56, %s, 1" % sr(S_GOFF))
        g.s("s_add_u32 s55, s55, s56")
        g.s("s_mul_i32 s55, s55, %d" % (16 * 24576))
        g.s("s_and_b32 s56, s3, 1")
        g.s("s_mul_i32 s56, s56, %d" % (48 * 4096))
        g.s("s_add_u32 s55, s55, s56")
        g.s("s_add_u32 s55, s55, %d" % (96 * 1024 * 1024))
        vop(g, "v_lshlrev_b32 %s, 12, %s" % (vr(a), vr(V_LANE)), a, [V_LANE])
        g.vload("buffer_load_dword %s, %s, %s, s55 offen" % (vr(V_T + 3), vr(a), sr(SRD_WS, 4)), "TCH", dst=[V_T + 3], addr=[a])
    stamp(g, 0, V_T)

    def pfrag(pp, u):
        return R_K + (pp * 3 + u) * 4
    TMP = R_K + 36
    for u in range(3):
        a, b = TMP, TMP + 1
        for kt in range(6):
            r = sacc(kt, u)
            for rep in range(2):
                g.valu("v_cvt_pk_bf16_f32 %s, %s, %s" % (vr(a), vr(r), vr(r + 1)), dst=[a], src=[r, r + 1])
                g.valu("v_cvt_pk_bf16_f32 %s, %s, %s" % (vr(b), vr(r + 2), vr(r + 3)), dst=[b], src=[r + 2, r + 3])
                vop(g, "v_lshlrev_b32 %s, 16, %s" % (vr(r), vr(a)), r, [a])
                vop(g, "v_and_b32 %s, 0xffff0000, %s" % (vr(r + 1), vr(a)), r + 1, [a])
                vop(g, "v_lshlrev_b32 %s, 16, %s" % (vr(r + 2), vr(b)), r + 2, [b])
                vop(g, "v_and_b32 %s, 0xffff0000, %s" % (vr(r + 3), vr(b)), r + 3, [b])
                if rep == 0:
                    g.valu("v_pk_mul_f32 %s, %s, %s" % (vr(r, 2), vr(r, 2), sr(S_SC, 2)), dst=[r, r + 1], src=[r, r + 1])
                    g.valu("v_pk_mul_f32 %s, %s, %s" % (vr(r + 2, 2), vr(r + 2, 2), sr(S_SC, 2)), dst=[r + 2, r + 3], src=[r + 2, r + 3])
        vals = [sacc(kt, u) + r for kt in range(6) for r in range(4)]
        m = TMP + 2
        vop(g, "v_max3_f32 %s, %s, %s, %s" % (vr(m), vr(vals[0]), vr(vals[1]), vr(vals[2])), m, vals[0:3])
        i = 3
        while i < 24:
            if i + 1 < 24:
                vop(g, "v_max3_f32 %s, %s, %s, %s" % (vr(m), vr(m), vr(vals[i]), vr(vals[i + 1])), m, [m, vals[i], vals[i + 1]])
                i += 2
            else:
                vop(g, "v_max_f32 %s, %s, %s" % (vr(m), vr(m), vr(vals[i])), m, [m, vals[i]])
                i += 1
        xlane_reduce(g, m, TMP + 3, "v_max_f32")
        for v in vals:
            vop(g, "v_sub_f32 %s, %s, %s" % (vr(v), vr(v), vr(m)), v, [v, m])
        for k in range(0, 24, 2):
            v = vals[k]
            g.valu("v_pk_mul_f32 %s, %s, %s" % (vr(v, 2), vr(v, 2), sr(S_L2E, 2)), dst=[v, v + 1], src=[v, v + 1])
        for v in vals:
            g.valu("v_exp_f32 %s, %s" % (vr(v), vr(v)), dst=[v], src=[v], trans=True)
        sm = TMP + 4
        g.valu("v_pk_add_f32 %s, %s, %s" % (vr(sm, 2), vr(vals[0], 2), vr(vals[2], 2)), dst=[sm, sm + 1], src=vals[0:4])
        for k in range(4, 24, 2):
            g.valu("v_pk_add_f32 %s, %s, %s" % (vr(sm, 2), vr(sm, 2), vr(vals[k], 2)), dst=[sm, sm + 1], src=[sm, sm + 1, vals[k], vals[k] + 1])
        vop(g, "v_add_f32 %s, %s, %s" % (vr(sm), vr(sm), vr(sm + 1)), sm, [sm, sm + 1])
        xlane_reduce(g, sm, TMP + 3, "v_add_f32")
        g.valu("v_rcp_f32 %s, %s" % (vr(sm), vr(sm)), dst=[sm], src=[sm], trans=True)
        vop(g, "v_mov_b32 %s, %s" % (vr(sm + 1), vr(sm)), sm + 1, [sm])
        for k in range(0, 24, 2):
            v = vals[k]
            g.valu("v_pk_mul_f32 %s, %s, %s" % (vr(v, 2), vr(v, 2), vr(sm, 2)), dst=[v, v + 1], src=[v, v + 1, sm, sm + 1])
        for pp in range(3):
            d = pfrag(pp, u)
            lo, hi = sacc(2 * pp, u), sacc(2 * pp + 1, u)
            g.valu("v_cvt_pk_bf16_f32 %s, %s, %s" % (vr(d), vr(lo), vr(lo + 1)), dst=[d], src=[lo, lo + 1])
            g.valu("v_cvt_pk_bf16_f32 %s, %s, %s" % (vr(d + 1), vr(lo + 2), vr(lo + 3)), dst=[d + 1], src=[lo + 2, lo + 3])
            g.valu("v_cvt_pk_bf16_f32 %s, %s, %s" % (vr(d + 2), vr(hi), vr(hi + 1)), dst=[d + 2], src=[hi, hi + 1])
            g.valu("v_cvt_pk_bf16_f32 %s, %s, %s" % (vr(d + 3), vr(hi + 2), vr(hi + 3)), dst=[d + 3], src=[hi + 2, hi + 3])
    if VLATE:
        v_ready()
    stamp(g, 0, V_T)
    for pp in range(3):
        for t in range(8):
            g.wait_lg("VT%d_%d" % (pp, t))
            for u in range(3):
                g.mfma(acc(t, u), R_A + t * 4, pfrag(pp, u), None if pp == 0 else acc(t, u))
            if pp < 2:
                v_reads(pp + 1, t)
    stamp(g, 0, V_T)
    if WOPF == 1:
        g.vload("buffer_load_dword %s, %s, %s, 0 offen" % (vr(V_T + 3), vr(V_WO), sr(SRD_WO, 4)), "TCH", dst=[V_T + 3], addr=[V_WO])
    for p in range(4):
        for u in range(3):
            pack_pair(g, acc(2 * p, u), acc(2 * p + 1, u))
    lab = "st_wt_%d" % int(kv_first)
    if not REL:
        g.s("s_cmp_lg_u32 %s, %s" % (sr(S_PSEEN), sr(S_PEXP)))
        g.s("s_cbranch_scc1 %s" % lab)
    q0 = list(g.vmq)
    for fl in ("", " sc1"):
        if fl:
            if REL:
                break
            g.label(lab)
            g.vmq = list(q0)
        for p in range(4):
            for u in range(3):
                g.s("s_mov_b32 %s, %d" % (sr(S_TMP), u * 131072))
                d = acc(2 * p, u)
                g.vstore("buffer_store_dwordx4 %s, %s, %s, %s offen offset:%d%s" % (vr(d, 4), vr(V_O), sr(SRD_WS, 4), sr(S_TMP), p * 1024, fl),
                         "ST", data=rng(d, 4), addr=[V_O])
        g.s("s_branch attn_tail")


def gen_attn():
    g = Gen()
    g.s("s_cmp_ge_u32 s2, 256")
    g.s("s_cbranch_scc1 attn_end")
    if STAMP:
        g.s("s_memrealtime s[98:99]")
    vop(g, "v_lshrrev_b32 v7, 6, v0", 7, [0])
    vop(g, "v_and_b32 %s, 63, v0" % vr(V_LANE), V_LANE, [0])
    g.valu("v_readfirstlane_b32 %s, v7" % sr(S_WAVE), src=[7], readlane=True, sdst=[S_WAVE])
    g.s("s_mov_b32 %s, s2" % sr(S_ME))
    g.s("s_mov_b32 %s, 0" % sr(S_STOLEN))
    g.s("s_mov_b32 %s, 0" % sr(S_PSEEN))
    g.s("s_mov_b32 %s, 0" % sr(S_EARLY))
    g.s("s_load_dwordx4 s[80:83], s[0:1], 80")
    g.s("s_getreg_b32 s4, hwreg(HW_REG_XCC_ID, 0, 4)")
    g.s("s_mul_i32 s5, s4, s4")
    g.s("s_lshl_b32 s5, s5, 16")
    g.s("s_lshl_b32 s4, s4, 6")
    g.s("s_add_u32 s4, s4, s5")
    g.s("s_add_u32 %s, s4, 1" % sr(S_PADD))
    g.s("s_lshl_b32 %s, %s, 5" % (sr(S_PEXP), sr(S_PADD)))
    g.nop(4)
    g.s("s_cmp_eq_u32 s3, 0")
    g.s("s_cselect_b32 %s, 1, 0" % sr(S_W0))
    g.s("s_mov_b32 %s, 0" % sr(S_W0 + 1))
    g.s("s_mov_b32 %s, %s" % (sr(S_CL), sr(S_W0)))
    g.s("s_mov_b32 %s, 0" % sr(S_CL + 1))
    if FORCE_STEAL:
        g.s("s_bfe_u32 s4, s2, 0x30005")
        g.s("s_cmp_eq_u32 s4, %d" % (FORCE_STEAL - 1))
        g.s("s_cselect_b32 s90, 1, 0")
    g.label("job_start")
    lane_setup(g)
    g.s("s_bfe_u32 s6, s2, 0x10002")
    g.s("s_and_b32 s5, s2, 3")
    g.s("s_lshr_b32 s43, s2, 3")
    g.s("s_and_b32 s40, s43, 1")
    g.s("s_mul_i32 s16, s6, 40")
    g.s("s_add_u32 s18, s0, s16")
    g.s("s_addc_u32 s19, s1, 0")
    g.s("s_load_dwordx8 s[8:15], s[18:19], 0")
    g.s("s_load_dwordx2 s[16:17], s[0:1], 96")
    g.s("s_load_dwordx2 s[68:69], s[18:19], 32")
    g.s("s_lshr_b32 s41, s3, 1")
    g.s("s_and_b32 s42, s3, 1")
    g.s("s_lshl_b32 s44, s5, 2")
    g.s("s_add_u32 s44, s44, s41")
    g.s("s_lshl_b32 s45, s44, 5")
    g.s("s_add_u32 s45, s45, s43")
    g.s("s_mul_i32 s45, s45, 24576")
    g.s("s_mov_b32 %s, 0x3db504f3" % sr(S_SC))
    g.s("s_mov_b32 %s, 0x3db504f3" % sr(S_SC + 1))
    g.s("s_mov_b32 %s, 0x3fb8aa3b" % sr(S_L2E))
    g.s("s_mov_b32 %s, 0x3fb8aa3b" % sr(S_L2E + 1))
    g.s("s_mul_i32 s55, s44, 98304")
    g.s("s_mul_i32 s56, s42, 49152")
    g.s("s_add_u32 s55, s55, s56")
    vop(g, "v_lshrrev_b32 v8, 2, v1", 8, [1])
    vop(g, "v_lshlrev_b32 v8, 10, v8", 8, [8])
    vop(g, "v_lshl_add_u32 v8, v5, 4, v8", 8, [5, 8])
    vop(g, "v_add_u32 %s, s55, v8" % vr(V_X), V_X, [8])
    if XD:
        vop(g, "v_lshlrev_b32 v8, 10, v2", 8, [2])
        vop(g, "v_lshl_add_u32 v8, v3, 4, v8", 8, [3, 8])
        vop(g, "v_add_u32 %s, s55, v8" % vr(V_X2), V_X2, [8])
    g.s("s_mul_i32 s55, s42, 12288")
    g.s("s_add_u32 s55, s55, s45")
    vop(g, "v_lshlrev_b32 v8, 4, v1", 8, [1])
    vop(g, "v_add_u32 %s, s55, v8" % vr(V_K), V_K, [8])
    g.s("s_lshl_b32 %s, s3, 12" % sr(S_W4K))
    g.s("s_lshl_b32 %s, s41, 13" % sr(S_B8K))
    g.s("s_mul_i32 s55, s42, 12288")
    g.s("s_add_u32 s55, s55, s45")
    for par in range(2):
        vop(g, "v_add_u32 v8, %d, v3" % (4 * par), 8, [3])
        vop(g, "v_lshlrev_b32 v8, 1, v8", 8, [8])
        vop(g, "v_xor_b32 v8, v8, v2", 8, [8, 2])
        vop(g, "v_lshlrev_b32 v8, 4, v8", 8, [8])
        vop(g, "v_lshl_add_u32 v8, v3, 8, v8", 8, [3, 8])
        vop(g, "v_add_u32 %s, s55, v8" % vr(V_VD0 + par), V_VD0 + par, [8])
    g.s("s_and_b32 s55, s41, 1")
    g.s("s_lshl_b32 s55, s55, 2")
    vop(g, "v_or_b32 v8, s55, v3", 8, [3])
    vop(g, "v_lshlrev_b32 v8, 1, v8", 8, [8])
    vop(g, "v_xor_b32 v8, v8, v2", 8, [8, 2])
    vop(g, "v_lshlrev_b32 v8, 4, v8", 8, [8])
    vop(g, "v_lshl_add_u32 v8, v3, 13, v8", 8, [3, 8])
    g.s("s_lshl_b32 s55, s3, 15")
    g.s("s_lshl_b32 s56, s43, 8")
    g.s("s_add_u32 s55, s55, s56")
    vop(g, "v_add_u32 %s, s55, v8" % vr(V_W), V_W, [8])
    g.s("s_lshl_b32 %s, s3, 10" % sr(S_M0W))
    vop(g, "v_lshlrev_b32 v8, 3, v3", 8, [3])
    vop(g, "v_add_u32 v8, v8, v4", 8, [8, 4])
    vop(g, "v_lshlrev_b32 v8, 8, v8", 8, [8])
    vop(g, "v_lshl_add_u32 v8, v5, 3, v8", 8, [8, 5])
    for t in range(8):
        vop(g, "v_xor_b32 v9, %d, v6" % t, 9, [6])
        vop(g, "v_lshl_add_u32 %s, v9, 5, v8" % vr(V_A + t), V_A + t, [9, 8])
    g.s("s_mul_i32 s55, s41, 24576")
    g.s("s_add_u32 s55, s55, %d" % A_V_LDS)
    g.s("s_mul_i32 s56, s42, 12288")
    g.s("s_add_u32 %s, s55, s56" % sr(S_M0V))
    g.s("s_lshl_b32 s55, s6, 2")
    g.s("s_add_u32 s55, s55, s5")
    g.s("s_lshl_b32 %s, s55, 2" % sr(S_GOFF))
    g.s("s_add_u32 %s, %s, 128" % (sr(S_GOFF + 1), sr(S_GOFF)))
    g.s("s_lshl_b32 s55, 1, s43")
    vop(g, "v_mov_b32 %s, s55" % vr(V_CLAIM), V_CLAIM)
    vop(g, "v_lshl_add_u32 v8, v2, 2, v3", 8, [2, 3])
    vop(g, "v_lshlrev_b32 %s, 2, v8" % vr(V_BP), V_BP, [8])
    g.waitcnt(lg=0)
    if STAMP:
        g.s("s_memrealtime s[100:101]")
    make_srd(g, SRD_X, 8, 1572864)
    make_srd(g, SRD_K, 10, 12582912)
    make_srd(g, SRD_V, 12, 12582912)
    make_srd(g, SRD_W, 14, 4194304)
    make_srd(g, SRD_WS, 16, WS_BYTES)
    make_srd(g, SRD_WO, 68, 4194304)
    make_srd(g, SRD_OUT, 80, 16 * 96 * 1024 * 2)
    make_srd(g, SRD_DBG, 82, 256)
    TW = int(os.environ.get("TW", "0"))
    if TW:
        g.s("s_cmp_eq_u32 s3, 0")
        g.s("s_cselect_b32 s58, -1, 0")
        g.s("s_mov_b32 s59, s58")
        g.s("s_lshl_b32 s60, s5, 7")
        g.s("s_add_u32 s60, s60, s43")
        g.s("s_mul_i32 s60, s60, 24576")
        LO, HI, OF, T1 = 10, 11, 12, 13

        def grp(k, base, emit):
            g.s("s_mov_b32 exec_lo, 0x%x" % ((0xffff << (16 * k)) & 0xffffffff if k < 2 else 0))
            g.s("s_mov_b32 exec_hi, 0x%x" % ((0xffff << (16 * (k - 2))) & 0xffffffff if k >= 2 else 0))
            vop(g, "v_mov_b32 %s, s%d" % (vr(LO), base), LO)
            vop(g, "v_mov_b32 %s, s%d" % (vr(HI), base + 1), HI)
            emit()

        def fire():
            g.s("s_mov_b64 exec, -1")
            g.valu("v_add_co_u32 %s, vcc, %s, %s" % (vr(LO), vr(LO), vr(OF)), dst=[LO], src=[LO, OF])
            g.valu("v_addc_co_u32 %s, vcc, 0, %s, vcc" % (vr(HI), vr(HI)), dst=[HI], src=[HI])
            g.s("s_mov_b64 exec, s[58:59]")
            g.vload("global_load_dword %s, %s, off" % (vr(V_T + 3), vr(LO, 2)), "TCH", dst=[V_T + 3], addr=[LO, HI])
            g.s("s_mov_b64 exec, -1")

        g.s("s_lshl_b32 s55, s43, 8")
        g.s("s_mul_i32 s56, s5, 393216")
        g.s("s_mov_b32 s61, 786432")

        def kvoff():
            vop(g, "v_mul_lo_u32 %s, v5, s61" % vr(OF), OF, [5])
            vop(g, "v_mul_u32_u24 %s, 6144, v4" % vr(T1), T1, [4])
            vop(g, "v_add3_u32 %s, %s, %s, s60" % (vr(OF), vr(OF), vr(T1)), OF, [OF, T1])
        grp(0, 14, lambda: vop(g, "v_lshl_add_u32 %s, v2, 18, s55" % vr(OF), OF, [2]))
        grp(1, 10, kvoff)
        grp(2, 12, kvoff)

        def xoff():
            vop(g, "v_mul_u32_u24 %s, 24576, v2" % vr(OF), OF, [2])
            vop(g, "v_add_u32 %s, s56, %s" % (vr(OF), vr(OF)), OF, [OF])
        grp(3, 8, xoff)
        fire()
        if TW >= 2:
            g.s("s_add_u32 s55, s55, 131072")
            g.s("s_lshl_b32 s56, %s, 6" % sr(S_GOFF))
            g.s("s_add_u32 s56, s56, %d" % FLG)
            grp(0, 68, lambda: vop(g, "v_lshlrev_b32 %s, 18, v2" % vr(OF), OF, [2]))
            grp(1, 16, lambda: vop(g, "v_mov_b32 %s, s56" % vr(OF), OF))
            grp(2, 82, lambda: vop(g, "v_mov_b32 %s, 0" % vr(OF), OF))
            grp(3, 14, lambda: vop(g, "v_lshl_add_u32 %s, v2, 18, s55" % vr(OF), OF, [2]))
            fire()
    if FORCE_STEAL:
        g.s("s_cmp_eq_u32 s90, 1")
        g.s("s_mov_b32 s90, 0")
        g.s("s_cbranch_scc1 steal")
    g.s("s_lshl_b32 s55, %s, 6" % sr(S_GOFF))
    g.s("s_lshl_b32 s56, s43, 2")
    g.s("s_add_u32 s55, s55, s56")
    g.s("s_add_u32 %s, s55, %d" % (sr(S_FOFF), FLG))
    vop(g, "v_mov_b32 %s, 0" % vr(V_T + 2), V_T + 2)
    g.s("s_mov_b64 exec, %s" % sr(S_CL, 2))
    g.vstore("buffer_store_dword %s, off, %s, %s" % (vr(V_T + 2), sr(SRD_WS, 4), sr(S_FOFF)), "FC", data=[V_T + 2])
    g.s("s_mov_b64 exec, -1")
    if TOUCH:
        g.s("s_lshl_b32 s55, s3, 18")
        g.s("s_add_u32 s55, s55, %d" % (256 * 8192))
        g.s("s_lshl_b32 s56, s43, 8")
        g.s("s_add_u32 s55, s55, s56")
        vop(g, "v_lshrrev_b32 v8, 2, v1", 8, [1])
        vop(g, "v_lshlrev_b32 v8, 13, v8", 8, [8])
        vop(g, "v_lshl_add_u32 v8, v5, 6, v8", 8, [5, 8])
        vop(g, "v_add_u32 v8, s55, v8", 8, [8])
        for i in range(2):
            g.s("s_mov_b32 %s, %d" % (sr(S_TMP), i * 16 * 8192))
            g.vload("buffer_load_dword %s, v8, %s, %s offen" % (vr(V_T + 3), sr(SRD_W, 4), sr(S_TMP)), "TCH", dst=[V_T + 3], addr=[8])
        g.s("s_mul_i32 s55, s5, 393216")
        g.s("s_lshl_b32 s56, s43, 3")
        g.s("s_add_u32 s56, s56, s3")
        g.s("s_mul_i32 s56, s56, 1536")
        g.s("s_add_u32 s55, s55, s56")
        vop(g, "v_lshlrev_b32 v9, 6, v1", 9, [1])
        vop(g, "v_add_u32 v9, s55, v9", 9, [9])
        g.vload("buffer_load_dword %s, v9, %s, 0 offen" % (vr(V_T + 3), sr(SRD_X, 4)), "TCH", dst=[V_T + 3], addr=[9])
    if not KVS:
        g.s("s_cmp_eq_u32 s40, 1")
        g.s("s_cbranch_scc1 attn_kvfirst")
    t0 = g.text()
    gb = Gen()
    gb.vmq = list(g.vmq)
    _stamp_n[0] = 0
    attn_body(gb, False)
    if KVS:
        return t0 + gb.text()
    ga = Gen()
    ga.vmq = list(g.vmq)
    _stamp_n[0] = 0
    ga.label("attn_kvfirst")
    attn_body(ga, True)
    return t0 + gb.text() + ga.text()


O_ACC = 0
O_A = 96
O_B = 112
O_VA = 184
O_VX = 188
O_VO = 190
O_VL = 191
O_VZ = 240
O_VA2 = 226
O_VT = 192


def oproj_setup(g):
    lane_setup(g)
    g.s("s_bfe_u32 s6, %s, 0x10002" % sr(S_ME))
    g.s("s_bfe_u32 s7, %s, 0x20003" % sr(S_ME))
    g.s("s_and_b32 s40, %s, 3" % sr(S_ME))
    g.s("s_lshr_b32 s41, %s, 5" % sr(S_ME))
    g.s("s_mul_i32 s55, s40, 24")
    g.s("s_mul_i32 s56, s7, 6")
    g.s("s_add_u32 s42, s55, s56")
    g.s("s_lshl_b32 s55, s42, 7")
    g.s("s_lshl_b32 s56, s3, 4")
    g.s("s_add_u32 s55, s55, s56")
    g.s("s_lshl_b32 s55, s55, 10")
    g.s("s_mul_i32 s56, s6, %d" % O_BLOCK_BYTES)
    g.s("s_add_u32 s55, s55, s56")
    vop(g, "v_lshlrev_b32 %s, 4, v1" % vr(O_VL), O_VL, [1])
    vop(g, "v_add_u32 %s, s55, %s" % (vr(O_VX), vr(O_VL)), O_VX, [O_VL])
    ow_addrs(g, 8, 9)
    vop(g, "v_lshlrev_b32 v8, 2, v3", 8, [3])
    vop(g, "v_add_u32 v8, v8, v4", 8, [8, 4])
    vop(g, "v_bfe_u32 v9, v8, 1, 2", 9, [8])
    vop(g, "v_lshlrev_b32 v8, 7, v8", 8, [8])
    vop(g, "v_lshl_add_u32 v8, v5, 3, v8", 8, [8, 5])
    vop(g, "v_add_u32 v8, %s, v8" % sr(S_M0W), 8, [8])
    for t in range(4):
        vop(g, "v_xor_b32 v10, %d, v9" % t, 10, [9])
        vop(g, "v_lshl_add_u32 %s, v10, 5, v8" % vr(O_VA + t), O_VA + t, [10, 8])
        vop(g, "v_add_u32 %s, 0x10000, %s" % (vr(O_VA2 + t), vr(O_VA + t)), O_VA2 + t, [O_VA + t])
        vop(g, "v_add_u32 %s, 0x20000, %s" % (vr(O_VA2 + 4 + t), vr(O_VA + t)), O_VA2 + 4 + t, [O_VA + t])
    g.s("s_lshl_b32 s55, s42, 4")
    g.s("s_lshl_b32 s55, s55, 10")
    g.s("s_lshl_b32 s56, s6, 9")
    g.s("s_add_u32 s55, s55, s56")
    g.s("s_lshl_b32 s56, s41, 6")
    g.s("s_add_u32 s55, s55, s56")
    g.s("s_lshl_b32 s55, s55, 1")
    vop(g, "v_lshlrev_b32 v8, 11, v2", 8, [2])
    vop(g, "v_lshl_add_u32 v8, v3, 3, v8", 8, [3, 8])
    vop(g, "v_add_u32 %s, s55, v8" % vr(O_VO), O_VO, [8])
    vop(g, "v_mov_b32 %s, 0" % vr(O_VZ), O_VZ)


def gen_steal():
    g = Gen()
    A, B = O_VT, O_VT + 1
    g.label("steal")
    g.s("s_mov_b32 %s, 0" % sr(S_EARLY))
    g.waitcnt(vm=0, lg=0)
    g.barrier()
    g.s("s_cmp_lg_u32 s3, 0")
    g.s("s_cbranch_scc1 steal_join")
    g.label("steal_retry")
    g.vload("buffer_load_dword %s, off, %s, %s sc1" % (vr(A), sr(SRD_DBG, 4), sr(S_GOFF)), "X", dst=[A])
    g.waitcnt(vm=0)
    g.valu("v_readfirstlane_b32 s55, %s" % vr(A), src=[A], readlane=True, sdst=[55])
    g.s("s_mov_b32 s56, -1")
    g.s("s_cmp_eq_u32 s55, -1")
    g.s("s_cbranch_scc1 steal_pub")
    g.s("s_ff0_i32_b32 s56, s55")
    g.s("s_lshl_b32 s57, 1, s56")
    vop(g, "v_mov_b32 %s, s57" % vr(A), A)
    g.s("s_mov_b64 exec, 1")
    g.vload("buffer_atomic_or %s, off, %s, %s sc0" % (vr(A), sr(SRD_DBG, 4), sr(S_GOFF)), "X", dst=[A])
    g.s("s_mov_b64 exec, -1")
    g.waitcnt(vm=0)
    g.valu("v_readfirstlane_b32 s55, %s" % vr(A), src=[A], readlane=True, sdst=[55])
    g.s("s_and_b32 s55, s55, s57")
    g.s("s_cmp_lg_u32 s55, 0")
    g.s("s_cbranch_scc1 steal_retry")
    g.label("steal_pub")
    vop(g, "v_mov_b32 %s, s56" % vr(A), A)
    vop(g, "v_mov_b32 %s, 0" % vr(B), B)
    g.dswrite("ds_write_b32 %s, %s" % (vr(B), vr(A)), "X", data=[A], addr=[B])
    g.waitcnt(lg=0)
    g.label("steal_join")
    g.barrier()
    vop(g, "v_mov_b32 %s, 0" % vr(B), B)
    g.dsread("ds_read_b32 %s, %s" % (vr(A), vr(B)), "X", dst=[A], addr=[B])
    g.waitcnt(lg=0)
    g.valu("v_readfirstlane_b32 s56, %s" % vr(A), src=[A], readlane=True, sdst=[56])
    g.barrier()
    g.s("s_cmp_eq_u32 s56, -1")
    g.s("s_cbranch_scc1 steal_none")
    g.s("s_lshl_b32 s56, s56, 3")
    g.s("s_and_b32 s57, %s, 7" % sr(S_ME))
    g.s("s_or_b32 s2, s56, s57")
    g.s("s_mov_b32 %s, 1" % sr(S_STOLEN))
    g.s("s_mov_b32 %s, 0" % sr(S_CL))
    g.s("s_branch job_start")
    g.label("steal_none")
    oproj_setup(g)
    g.s("s_branch oproj_pf")
    return g.text()


WB = os.environ.get("WB", "")


def wb_hook(g, s):
    if not WB:
        return
    st, wv, sh = [int(x) for x in WB.split(",")]
    if s != st:
        return
    g.s("s_lshr_b32 s55, %s, %d" % (sr(S_ME), sh))
    g.s("s_lshl_b32 s55, s55, 3")
    g.s("s_or_b32 s55, s55, s3")
    g.s("s_cmp_lg_u32 s55, %d" % wv)
    g.s("s_cbranch_scc1 wb_skip")
    g.s("buffer_wbl2 sc1")
    g.label("wb_skip")


def gen_oproj():
    g = Gen()

    def oacc(t, u):
        return O_ACC + (t * 6 + u) * 4

    def bfr(s, u):
        return O_B + ((s % 3) * 6 + u) * 4

    g.label("attn_tail")
    g.nop(2)
    oproj_setup(g)
    g.s("s_lshl_b32 s57, 1, s43")
    vop(g, "v_mov_b32 %s, s57" % vr(O_VT), O_VT)
    vop(g, "v_mov_b32 %s, 1" % vr(O_VT + 3), O_VT + 3)
    g.waitcnt(vm=0)
    stamp(g, 0, V_T)
    g.valu("v_readfirstlane_b32 s55, %s" % vr(V_CLAIM), src=[V_CLAIM], readlane=True, sdst=[55])
    g.s("s_and_b32 s55, s55, s57")
    g.s("s_cmp_eq_u32 s55, 0")
    g.s("s_cselect_b32 s55, 1, %s" % sr(S_STOLEN))
    g.s("s_and_b32 s58, s55, %s" % sr(S_W0))
    g.s("s_mov_b32 s59, 0")
    g.waitcnt(lg=0)
    g.lgq = []
    g.barrier()
    if REL:
        g.s("s_cmp_lg_u32 s3, 0")
        g.s("s_cbranch_scc1 rel_skip")
        g.s("buffer_wbl2 sc1")
        g.waitcnt(vm=0)
        g.label("rel_skip")
    g.s("s_mov_b64 exec, %s" % sr(S_CL, 2))
    g.vstore("buffer_store_dword %s, off, %s, %s" % (vr(O_VT + 3), sr(SRD_WS, 4), sr(S_FOFF)), "FS", data=[O_VT + 3])
    g.s("s_mov_b64 exec, s[58:59]")
    g.vstore("buffer_atomic_add %s, off, %s, %s" % (vr(O_VT), sr(SRD_DBG, 4), sr(S_GOFF + 1)), "DN", data=[O_VT])
    g.s("s_mov_b64 exec, -1")
    g.s("s_cmp_lg_u32 %s, 1" % sr(S_DEC))
    g.s("s_cbranch_scc1 steal")
    g.label("oproj_pf")

    ROT = ""

    def issue_w(c):
        issue_ow(g, c)

    def issue_b(s):
        if os.environ.get("ONOB") and s > 2:
            return
        if ROT:
            rot_idx(s, 10)
        for u in range(6):
            if ROT:
                g.s("s_add_u32 %s, s9, %d" % (sr(S_TMP), u * 131072))
            else:
                g.s("s_mov_b32 %s, %d" % (sr(S_TMP), u * 131072 + (s >> 2) * 4096))
            d = bfr(s, u)
            g.vload("buffer_load_dwordx4 %s, %s, %s, %s offen offset:%d%s" % (vr(d, 4), vr(O_VX), sr(SRD_WS, 4), sr(S_TMP), 0 if ROT else (s & 3) * 1024, os.environ.get("OPOL", " sc1")),
                    "B%d" % s, dst=rng(d, 4), addr=[O_VX])

    def tr_reads(s, t):
        slot = s % NSL
        va = [O_VA, O_VA2, O_VA2 + 4][slot >> 1] + t
        for j in range(2):
            d = O_A + t * 4 + j * 2
            g.dsread("ds_read_b64_tr_b16 %s, %s offset:%d" % (vr(d, 2), vr(va), (slot & 1) * 32768 + j * 2048),
                     "A%d_%d" % (s, t), dst=rng(d, 2), addr=[va])

    LATEW = 0
    if NE:
        g.s("s_cmp_lg_u32 %s, 0" % sr(S_EARLY))
        g.s("s_cbranch_scc1 pre_skip")
        for c in range(NE):
            issue_w(c)
        g.label("pre_skip")
    for c in range(NE, NSL):
        issue_w(c)
    g.s("s_cmp_lg_u32 %s, %s" % (sr(S_PSEEN), sr(S_PEXP)))
    g.s("s_cbranch_scc1 oproj_slowpoll")
    g.s("s_lshl_b32 s55, %s, 6" % sr(S_GOFF))
    g.s("s_lshl_b32 s56, s3, 4")
    g.s("s_add_u32 s55, s55, s56")
    g.s("s_add_u32 %s, s55, %d" % (sr(S_FPOLL), FLG))
    P = O_VT + 4
    g.label("oproj_poll")
    g.vload("buffer_load_dwordx4 %s, off, %s, %s sc1" % (vr(P, 4), sr(SRD_WS, 4), sr(S_FPOLL)), "P", dst=rng(P, 4))
    g.waitcnt(vm=0)
    g.vmq = []
    vop(g, "v_and_b32 %s, %s, %s" % (vr(P), vr(P), vr(P + 1)), P, [P, P + 1])
    vop(g, "v_and_b32 %s, %s, %s" % (vr(P + 2), vr(P + 2), vr(P + 3)), P + 2, [P + 2, P + 3])
    vop(g, "v_and_b32 %s, %s, %s" % (vr(P), vr(P), vr(P + 2)), P, [P, P + 2])
    g.valu("v_readfirstlane_b32 s55, %s" % vr(P), src=[P], readlane=True, sdst=[55])
    g.s("s_cmp_eq_u32 s55, 1")
    g.s("s_cbranch_scc1 oproj_go")
    g.s("s_sleep %d" % SLEEP)
    g.s("s_branch oproj_poll")
    g.label("oproj_slowpoll")
    for i in range(int(os.environ.get("SLOWX", "0"))):
        g.s("s_sleep 127")
    g.s("s_lshl_b32 s56, s3, 2")
    g.vload("buffer_load_dword %s, off, %s, %s sc1" % (vr(O_VT + 2), sr(SRD_DBG, 4), sr(S_GOFF + 1)), "P", dst=[O_VT + 2])
    g.waitcnt(vm=0)
    g.vmq = []
    g.valu("v_readfirstlane_b32 s55, %s" % vr(O_VT + 2), src=[O_VT + 2], readlane=True, sdst=[55])
    g.s("s_lshr_b32 s55, s55, s56")
    g.s("s_and_b32 s55, s55, 15")
    g.s("s_cmp_eq_u32 s55, 15")
    g.s("s_cbranch_scc1 oproj_go")
    g.s("s_sleep 127")
    g.s("s_sleep 127")
    g.s("s_branch oproj_slowpoll")
    g.label("oproj_go")
    stamp(g, 0, V_T)
    for c in range(3):
        if LATEW:
            issue_w(c)
        issue_b(c)
    g.wait_vm("W0")
    for t in range(4):
        tr_reads(0, t)
    nsteps = 16
    for s in range(nsteps):
        g.comment("---- step %d" % s)
        OBAR = int(os.environ.get("OBAR", "0"))
        if OBAR and s % OBAR == 0 and s > 0:
            g.barrier()
        if s % 4 == 0:
            stamp(g, 0, V_T)
        wb_hook(g, s)
        if s >= 1 and s + NSL - 1 < nsteps:
            issue_w(s + NSL - 1)
        for t in range(4):
            g.wait_lg("A%d_%d" % (s, t))
            if t == 0:
                g.wait_vm("B%d" % s)
            for u in range(6):
                if os.environ.get("ONOM") and s > 0 and u >= int(os.environ.get("ONOM")) - 1:
                    continue
                g.mfma(oacc(t, u), O_A + t * 4, bfr(s, u), None if s == 0 else oacc(t, u))
            if s + 1 < nsteps:
                if t == 0:
                    g.wait_vm("W%d" % (s + 1))
                if not (os.environ.get("ONOTR") and s > 0):
                    tr_reads(s + 1, t)
        if s + 3 < nsteps:
            issue_b(s + 3)
    stamp(g, 0, V_T)
    wb_hook(g, 16)
    g.s("s_lshl_b32 s55, s3, 13")
    g.s("s_lshl_b32 s56, s3, 10")
    g.s("s_add_u32 s55, s55, %d" % O_LDS)
    g.s("s_add_u32 s56, s56, %d" % O_LDS)
    vop(g, "v_add_u32 %s, s55, %s" % (vr(O_VA), vr(O_VL)), O_VA, [O_VL])
    vop(g, "v_add_u32 %s, s56, %s" % (vr(O_VA + 1), vr(O_VL)), O_VA + 1, [O_VL])
    vop(g, "v_add_u32 %s, 0x10000, %s" % (vr(O_VA + 2), vr(O_VA)), O_VA + 2, [O_VA])
    vop(g, "v_add_u32 %s, 0x10000, %s" % (vr(O_VA + 3), vr(O_VA + 1)), O_VA + 3, [O_VA + 1])
    g.barrier()
    for ph in range(3):
        wa = O_VA + 2 * (ph & 1)
        ra = wa + 1
        for i in range(8):
            d = O_ACC + (8 * ph + i) * 4
            g.dswrite("ds_write_b128 %s, %s offset:%d" % (vr(wa), vr(d, 4), i * 1024), "RW", data=rng(d, 4), addr=[wa])
        g.wait_lg("RW")
        g.barrier()
        T = O_VT + 4
        for w2 in range(8):
            d = T + w2 * 4
            g.dsread("ds_read_b128 %s, %s offset:%d" % (vr(d, 4), vr(ra), w2 * 8192), "RR%d" % w2, dst=rng(d, 4), addr=[ra])
        for w2 in range(1, 8):
            g.wait_lg("RR%d" % w2)
            for h in range(2):
                d = T + h * 2
                s_ = T + w2 * 4 + h * 2
                g.valu("v_pk_add_f32 %s, %s, %s" % (vr(d, 2), vr(d, 2), vr(s_, 2)), dst=[d, d + 1], src=[d, d + 1, s_, s_ + 1])
        o = O_VT + 40 + ph * 2
        g.valu("v_cvt_pk_bf16_f32 %s, %s, %s" % (vr(o), vr(T), vr(T + 1)), dst=[o], src=[T, T + 1])
        g.valu("v_cvt_pk_bf16_f32 %s, %s, %s" % (vr(o + 1), vr(T + 2), vr(T + 3)), dst=[o + 1], src=[T + 2, T + 3])
        g.s("s_add_u32 s55, s3, %d" % (8 * ph))
        g.s("s_mul_i32 s56, s55, 43")
        g.s("s_lshr_b32 s56, s56, 8")
        g.s("s_mul_i32 s57, s56, 6")
        g.s("s_sub_u32 s57, s55, s57")
        g.s("s_lshl_b32 s57, s57, 15")
        g.s("s_lshl_b32 s56, s56, 5")
        g.s("s_add_u32 s57, s57, s56")
        g.vstore("buffer_store_dwordx2 %s, %s, %s, s57 offen" % (vr(o, 2), vr(O_VO), sr(SRD_OUT, 4)), "ST", data=rng(o, 2), addr=[O_VO])
    if STAMP:
        g.wait_vm("ST")
        stamp(g, 0, V_T)
    g.label("attn_end")
    g.s("s_endpgm")
    g.label("attn_code_end")
    return g.text()


HEADER = """; Kernarg layout for this problem (104 bytes, ptrs only, base s[0:1]):
; @launch kernel=attn_kernel grid=(256,1,1) block=(512,1,1) lds=163840
.amdgcn_target "amdgcn-amd-amdhsa--gfx950"
.text
"""


def kernel_text(name, body):
    return (".globl %s\n.p2align 8\n.type %s,@function\n%s:\n" % (name, name, name)) + body


def kd(name, vgpr, sgpr):
    acc_off = (vgpr + 3) // 4 * 4
    return """.p2align 6
.amdhsa_kernel %s
  .amdhsa_next_free_vgpr %d
  .amdhsa_next_free_sgpr %d
  .amdhsa_accum_offset %d
  .amdhsa_group_segment_fixed_size 0
  .amdhsa_kernarg_size 104
  .amdhsa_user_sgpr_count 2
  .amdhsa_user_sgpr_kernarg_segment_ptr 1
  .amdhsa_system_sgpr_workgroup_id_x 1
.end_amdhsa_kernel
""" % (name, vgpr, sgpr, acc_off)


def main():
    out = HEADER
    out += kernel_text("attn_kernel", gen_attn() + gen_steal() + gen_oproj())
    out += '.section .rodata,"a"\n'
    out += kd("attn_kernel", 256, 102)
    path = sys.argv[1] if len(sys.argv) > 1 else "cdna_kernels/%s.s" % NAME
    open(path, "w").write(out)
    print("wrote", path, len(out), "bytes")


if __name__ == "__main__":
    main()
```

```python
def vr(i, n=1):
    p = "v"
    if i >= 256:
        p, i = "a", i - 256
    return "%s%d" % (p, i) if n == 1 else "%s[%d:%d]" % (p, i, i + n - 1)


def sr(i, n=1):
    return "s%d" % i if n == 1 else "s[%d:%d]" % (i, i + n - 1)


class Gen:
    def __init__(self):
        self.lines = []
        self.clock = 0
        self.vmq = []
        self.lgq = []
        self.valu_w = {}
        self.trans_w = {}
        self.mfma_w = {}
        self.mfma_c = {}
        self.store_r = {}
        self.sgpr_valu_w = {}
        self.m0_w = -100

    def raw(self, text):
        self.lines.append("    " + text)

    def comment(self, text):
        self.lines.append("    ; " + text)

    def label(self, name):
        self.lines.append(name + ":")

    def _tick(self, n=1):
        self.clock += n

    def nop(self, n):
        while n > 0:
            k = min(n, 16)
            self.raw("s_nop %d" % (k - 1))
            self._tick(k)
            n -= k

    def _need(self, when, dist):
        if when is None:
            return 0
        have = self.clock - when - 1
        return max(0, dist - have)

    def _pad(self, n):
        if n > 0:
            self.nop(n)

    def s(self, text, m0=False):
        self.raw(text)
        if m0:
            self.m0_w = self.clock
        self._tick()

    def waitcnt(self, vm=None, lg=None):
        parts = []
        if vm is not None:
            parts.append("vmcnt(%d)" % vm)
        if lg is not None:
            parts.append("lgkmcnt(%d)" % lg)
        self.raw("s_waitcnt " + " ".join(parts))
        self._tick()

    def barrier(self):
        self.raw("s_barrier")
        self._tick()

    def wait_vm(self, tags):
        if isinstance(tags, str):
            tags = [tags]
        last = -1
        for i, t in enumerate(self.vmq):
            if t in tags:
                last = i
        if last < 0:
            return
        n = len(self.vmq) - 1 - last
        assert n <= 63
        self.waitcnt(vm=n)
        self.vmq = self.vmq[last + 1:]

    def wait_lg(self, tags):
        if isinstance(tags, str):
            tags = [tags]
        last = -1
        for i, t in enumerate(self.lgq):
            if t in tags:
                last = i
        if last < 0:
            return
        n = len(self.lgq) - 1 - last
        if n > 15:
            n = 15
            last = len(self.lgq) - 1 - n
        self.waitcnt(lg=n)
        self.lgq = self.lgq[last + 1:]

    def wait_all(self):
        self.waitcnt(vm=0, lg=0)
        self.vmq = []
        self.lgq = []

    def valu(self, text, dst=(), src=(), trans=False, sdst=(), permlane=False, readlane=False):
        pad = 0
        for r in list(src) + list(dst):
            w = self.mfma_w.get(r)
            if w is not None:
                pad = max(pad, self._need(w[0], 8))
        for r in dst:
            pad = max(pad, self._need(self.mfma_c.get(r), 3))
            pad = max(pad, self._need(self.store_r.get(r), 2))
        for r in src:
            if not trans:
                pad = max(pad, self._need(self.trans_w.get(r), 1))
            if permlane:
                pad = max(pad, self._need(self.valu_w.get(r), 2))
            if readlane:
                pad = max(pad, self._need(self.valu_w.get(r), 1))
        if permlane:
            for r in dst:
                pad = max(pad, self._need(self.valu_w.get(r), 2))
        self._pad(pad)
        self.raw(text)
        for r in dst:
            self.valu_w[r] = self.clock
            if trans:
                self.trans_w[r] = self.clock
            else:
                self.trans_w.pop(r, None)
            self.mfma_w.pop(r, None)
        for r in sdst:
            self.sgpr_valu_w[r] = self.clock
        self._tick()

    def mfma(self, d, a, b, c):
        pad = 0
        for r in list(range(a, a + 4)) + list(range(b, b + 4)):
            pad = max(pad, self._need(self.valu_w.get(r), 2))
            w = self.mfma_w.get(r)
            if w is not None:
                pad = max(pad, self._need(w[0], 8))
        if c is not None:
            for r in range(c, c + 4):
                pad = max(pad, self._need(self.valu_w.get(r), 2))
                w = self.mfma_w.get(r)
                if w is not None and not (w[1] == c and w[2] == 4):
                    pad = max(pad, self._need(w[0], 6))
        for r in range(d, d + 4):
            w = self.mfma_w.get(r)
            if w is not None and not (w[1] == d and w[2] == 4):
                pad = max(pad, self._need(w[0], 8))
            pad = max(pad, self._need(self.store_r.get(r), 2))
        self._pad(pad)
        cs = "0" if c is None else vr(c, 4)
        self.raw("v_mfma_f32_16x16x32_bf16 %s, %s, %s, %s" % (vr(d, 4), vr(a, 4), vr(b, 4), cs))
        for r in range(d, d + 4):
            self.mfma_w[r] = (self.clock, d, 4)
            self.valu_w.pop(r, None)
            self.trans_w.pop(r, None)
        if c is not None:
            for r in range(c, c + 4):
                self.mfma_c[r] = self.clock
        self._tick()

    def _mem_pad(self, reads=(), writes=(), sreads=()):
        pad = 0
        for r in list(reads) + list(writes):
            w = self.mfma_w.get(r)
            if w is not None:
                pad = max(pad, self._need(w[0], 8))
        for r in writes:
            pad = max(pad, self._need(self.store_r.get(r), 1))
            pad = max(pad, self._need(self.mfma_c.get(r), 3))
        for r in sreads:
            pad = max(pad, self._need(self.sgpr_valu_w.get(r), 5))
        return pad

    def vload(self, text, tag, dst=(), addr=(), sreads=(), lds=False):
        pad = self._mem_pad(addr, dst, sreads)
        if lds:
            pad = max(pad, self._need(self.m0_w, 1))
        self._pad(pad)
        self.raw(text)
        for r in dst:
            self.valu_w.pop(r, None)
            self.trans_w.pop(r, None)
            self.mfma_w.pop(r, None)
        self.vmq.append(tag)
        self._tick()

    def vstore(self, text, tag, data=(), addr=(), sreads=()):
        pad = self._mem_pad(list(data) + list(addr), (), sreads)
        self._pad(pad)
        self.raw(text)
        if len(data) >= 3:
            for r in data:
                self.store_r[r] = self.clock
        self.vmq.append(tag)
        self._tick()

    def dsread(self, text, tag, dst=(), addr=()):
        pad = self._mem_pad(addr, dst)
        self._pad(pad)
        self.raw(text)
        for r in dst:
            self.valu_w.pop(r, None)
            self.trans_w.pop(r, None)
            self.mfma_w.pop(r, None)
        self.lgq.append(tag)
        self._tick()

    def text(self):
        return "\n".join(self.lines) + "\n"


def _dswrite(self, text, tag, data=(), addr=()):
    pad = self._mem_pad(list(data) + list(addr), ())
    self._pad(pad)
    self.raw(text)
    self.lgq.append(tag)
    self._tick()


Gen.dswrite = _dswrite
```

```python
import sys, os
sys.path.insert(0, os.path.dirname(os.path.abspath(__file__)))
from asmgen2 import Gen, vr, sr

NAME = "concat_heads__gqa_block_cached__gqa_block_cached__near_ridge"
WS_BYTES = 268435456
E = lambda k, d: int(os.environ.get(k, str(d)))
STAMP = E("STAMP", 0)
STAMP_BASE = 200 * 1024 * 1024
NRAW = E("NRAW", 3)
WQT = E("WQT", 1)
WOT = E("WOT", 1)
XBAR = dict((int(a), int(b)) for a, b in (t.split(":") for t in os.environ.get("XBAR", "0:1,4:3,8:5,12:7").split(",")))
VL = dict((int(t[0]), int(t[2])) for t in os.environ.get("VL", "0h0,1h1").split(",") if t)
PDEF = os.environ.get("PTOK", "x0,w0,s2,s3,s4,x1,w1,s5,s6,s7,s8,s9,s10,s11")
QB = os.environ.get("QB", "w2,x2,x3,w3,w4,w5,w6,x4,x5,w7,w8,w9,w10,x6,x7,w11,w12,w13,w14,w15,V0h0,V1h1")
CLS = []
for c in os.environ.get("KP", "5,9,13|6,10,14|7,11,15|8,12,15").split("|"):
    kp = [int(t) for t in c.split(",")]
    q = []
    for tok in QB.split(","):
        q.append(tok)
        for p_ in range(3):
            if tok == "w%d" % kp[p_]:
                q.append("K%dh%d" % (p_, p_))
    CLS.append({"P": PDEF.split(","), "Q": q})
RM = E("RM", 14)
BUD, CC, CW, CAP = E("BUD", 58), E("CC", 65), E("CW", 33), E("CAP", 100)
SM2 = E("SM2", 0)
POST = {}
for it in os.environ.get("POST", "0=V2;3=T;5=Y").split(";"):
    k, v = it.split("=")
    POST[int(k)] = v.split(",")
CLF = os.environ.get("CLF", "b")
FORCE_AB = E("FORCE_AB", 0)
POLL_MAX = E("POLL_MAX", 300)
SLEEP = E("SLEEP", 2)
NT = os.environ.get("NT", " nt")
PART = 0
FLG = 64 * 1024 * 1024
FC = 0x5A3C96E1
FLGP = FLG + 65536
X_AB = E("X_AB", 40000)
X_CK = E("X_CK", 20000)
RETRY = E("RETRY", 40)
R2 = [int(c) for c in os.environ.get("R2", "11211212")]
PFS = E("PFS", 1)
PPS = E("PPS", 11)
T2POS = E("T2POS", 1)
EXP, EXS, EXL = E("EXP", 0), E("EXS", 4), E("EXL", 11)

SRD_X, SRD_K, SRD_V, SRD_W, SRD_WS, SRD_WO, SRD_OUT, SRD_DBG = 20, 24, 28, 32, 36, 40, 44, 48
SE = 51
S_PLO, S_PHI = 60, 61
S_BH, S_HG, S_B, S_BLK, S_GRP, S_TYPE, S_C = 62, 63, 64, 65, 66, 67, 68
S_W0 = 70
S_T = 72
S_NONCE, S_RO, S_RR, S_PEND, S_PHASE, S_CNT = 80, 81, 82, 83, 84, 85
S_XS = 86
S_XM = 89
S_PB = 89
S_VL = 92
S_M = 94
S_ST = 96

RAW = 0
WT = 96 if NRAW == 3 else 224
WT8 = 64
KF = 128
VW, XB, VK, VV, VWO, L16, VOW, L16H = 240, 241, 245, 246, 247, 248, 249, 250
VOW2 = XB
TQ = 251
XA = TQ
WTA = 112 if NRAW == 3 else A0 + 254 if False else 112
VR2 = 0
VKD, VKR = 113, 117
QF = 32
SB = 64
PT = 112
TM = 124
OB = 64
TT = 32
ZQ = 224
A0 = 256
ACC = A0
BF = A0 + 192
VRA = A0 + 192

L_V = 98304
L_MISC = 34816
LDS_BYTES = 163840

_stamp_n = [0]


def rng(a, n):
    return list(range(a, a + n))


def vop(g, text, dst, src=()):
    g.valu(text, dst=[dst] if isinstance(dst, int) else dst, src=src)


SV = 236


def stamp(g, have=False):
    if not STAMP:
        return
    n = _stamp_n[0]
    _stamp_n[0] += 1
    if not have:
        g.s("%s %s" % (os.environ.get("CLK", "s_memrealtime"), sr(S_ST, 2)))
        g.waitcnt(lg=0)
        g.lgq = []
    g.valu("v_writelane_b32 %s, %s, %d" % (vr(SV), sr(S_ST), n), dst=[SV])
    g.valu("v_writelane_b32 %s, %s, %d" % (vr(SV + 1), sr(S_ST + 1), n), dst=[SV + 1])


def stamp_flush(g):
    if not STAMP:
        return
    g.s("s_lshl_b32 %s, s2, 8" % sr(S_ST + 2))
    g.s("s_add_u32 %s, %s, %d" % (sr(S_ST + 2), sr(S_ST + 2), STAMP_BASE))
    g.s("s_mul_i32 %s, s3, 1048576" % sr(S_ST + 3))
    g.s("s_add_u32 %s, %s, %s" % (sr(S_ST + 2), sr(S_ST + 2), sr(S_ST + 3)))
    vop(g, "v_lshrrev_b32 %s, 1, %s" % (vr(TQ), vr(L16)), TQ, [L16])
    g.s("s_mov_b64 exec, 0xffffffff")
    g.vstore("buffer_store_dwordx2 %s, %s, %s, %s offen" % (vr(SV, 2), vr(TQ), sr(SRD_WS, 4), sr(S_ST + 2)), "STAMP", data=[SV, SV + 1], addr=[TQ])
    g.s("s_mov_b64 exec, -1")


def make_srd(g, srd, ptr, nbytes):
    g.s("s_mov_b32 %s, %s" % (sr(srd), sr(ptr)))
    g.s("s_and_b32 %s, %s, 0xffff" % (sr(srd + 1), sr(ptr + 1)))
    g.s("s_mov_b32 %s, %d" % (sr(srd + 2), nbytes))
    g.s("s_mov_b32 %s, 0x00020000" % sr(srd + 3))


def acc1(j, u):
    return ACC + (u * 8 + j) * 4


def acc2(j, u):
    return ACC + (u * 8 + j) * 4


SL2 = [0, 32, 64, KF, KF + 32]


def raw2(s, e):
    return SL2[s % 5] + e * 4


CYC = [KF + 64, 32, 64, 0, KF, KF + 32]


def raw(s, e):
    return CYC[s % 6] + e * 4


def bf(s, u):
    return BF + ((s % 2) * 6 + u) * 4


def perm_ops(g, rbase, j, dst):
    ops = []
    for m in range(4):
        a, b = rbase + (2 * m) * 4 + (j >> 1), rbase + (2 * m + 1) * 4 + (j >> 1)
        sel = S_PHI if j & 1 else S_PLO

        def op(a=a, b=b, d=dst + m, sel=sel):
            g.valu("v_perm_b32 %s, %s, %s, %s" % (vr(d), vr(b), vr(a), sr(sel)), dst=[d], src=[a, b])
        ops.append(op)
    return ops


def merge(main, fill):
    n = len(main)
    k = 0
    for i, m in enumerate(main):
        m()
        upto = (len(fill) * (i + 1) + n - 1) // n
        while k < upto:
            fill[k]()
            k += 1


def units(tag, ops, cost):
    out, cur = [], []
    for o in ops:
        cur.append(o)
        if getattr(o, "is_load", False):
            out.append([tag, cost, cur])
            cur = []
    if cur:
        out.append([tag, 0, cur])
    return out


def gemm1(g, cl, b_reads, tail):
    acc = acc1
    pend = []
    rdone = set()
    kbar = min(k - 1 for k in XBAR if k - 1 >= 5)
    for tok in cl["Q"]:
        if tok[0] == "@":
            pend.append([tok, 0, []])
        else:
            pend += units(tok, tok_ops(g, tok), CW if tok[0] == "w" else CC)
    credit = [0]
    kiss = {}
    INFO.append(kiss)

    def ok(tag, s, j):
        if tag[0] == "@":
            return s >= int(tag[1:])
        if tag[0] == "w":
            return (s, j) >= (int(tag[1:]) - 6, 7)
        if tag[0] == "K" and tag[3] == "2":
            return (s, j) >= (kbar, 4)
        if tag[0] == "V":
            return tag[3] in rdone
        return True

    def take(s, j):
        out = []
        credit[0] = min(CAP, credit[0] + BUD)
        while pend and ok(pend[0][0], s, j) and credit[0] >= pend[0][1]:
            t, c, o = pend.pop(0)
            credit[0] -= c
            out += o
            kiss[t] = 8 * s + j
        return out

    def upto(tag, s, j):
        out = []
        while any(t == tag for t, _, _ in pend):
            t, c, o = pend.pop(0)
            assert t[0] == "@" or ok(t, s, j), (t, tag, s, j)
            credit[0] -= c
            out += o
            kiss[t] = 8 * s + j
            LATE.append((tag, t, s, j))
        return out
    side = []

    rnext = [0]

    def side_add(s):
        while rnext[0] < 3:
            p_ = rnext[0]
            tok = "R%dh%d" % (p_, p_)
            if s < 16 and (s < 11 + p_ or any(t == "K" + tok[1:] for t, _, _ in pend) or 8 * s < kiss["K" + tok[1:]] + RM):
                break
            side.append(lambda tok=tok, s=s: run(upto("K" + tok[1:], s, 0)))
            side.extend(tok_ops(g, tok))
            side.append(lambda tok=tok: rdone.add(tok[3]))
            rnext[0] += 1
            INFO.append((tok, s))

    def side_take(n):
        out = []
        while side and n > 0:
            o = side.pop(0)
            out.append(o)
            if getattr(o, "is_load", False):
                n -= 1
        while side and not getattr(side[0], "is_load", False) and len(side) == 1:
            out.append(side.pop(0))
        return out
    g.wait_vm("W0")
    for op in perm_ops(g, raw(0, 0), 0, WT):
        op()
    for s in range(15):
        side_add(s)
        for j in range(8):
            idx = 8 * s + j
            fill = []
            if j == 7:
                fill += upto("w%d" % (s + 1), s, j)
                fill.append(lambda s=s: g.wait_vm("W%d" % (s + 1)))
                fill += perm_ops(g, raw(s + 1, 0), 0, (WT8 if s == 14 else WT + ((idx + 1) % 4) * 4))
            else:
                fill += perm_ops(g, raw(s, 0), j + 1, WT + ((idx + 1) % 4) * 4)
            fill += take(s, j)
            if j == 3 and (s + 1) in XBAR:
                tags = ["X%d" % k for k in range(XBAR[s + 1] + 1)]
                for t in tags:
                    fill += upto(t.lower(), s, j)
                fill.append(lambda tags=tags: g.wait_vm(tags))
                fill.append(g.barrier)
            if 3 <= j <= 5:
                fill += b_reads(s + 1)[(j - 3) * 2:(j - 3) * 2 + 2]
            elif j < 3:
                fill += side_take(3)
            if j == 0:
                g.wait_lg("B%d" % s)
                if STAMP == 2 and s > 0:
                    stamp(g)
            a = WT + (idx % 4) * 4
            main = [(lambda u=u: g.mfma(acc(j, u), a, bf(s, u), None if s == 0 else acc(j, u))) for u in range(6)]
            merge(main, fill)
    s = 15
    side_add(15)
    g.wait_lg("B15")
    carry = []
    for n, u in enumerate(range(6)):
        main = [(lambda j=j: g.mfma(acc(j, u), WT8 + j * 4, bf(s, u), acc(j, u))) for j in range(8)]
        if n == 0:
            for j in range(8):
                main[j]()
                if j < 7:
                    for op in perm_ops(g, raw(s, 0), j + 1, WT8 + (j + 1) * 4):
                        op()
        else:
            fill = side_take(4)
            merge(main[:1], fill)
            fill = take(15, n) + take(15, n) + carry[:20]
            carry = carry[20:]
            merge(main[1:], fill)
        carry += tail(u)
    side_add(16)
    run(side)
    rest = []
    for t, c, o in pend:
        assert t[0] == "@" or ok(t, 16, 0), t
        rest += o
    return rest, carry


LATE = []
INFO = []


def mark(ops):
    for o in ops:
        names = o.__code__.co_names
        if "vload" in names:
            o.is_load = True
    return ops


def q_conv(g, u):
    ops = []
    for i in range(4):
        for m in range(4):
            t0, t1 = TQ + (m % 2) * 2, TQ + (m % 2) * 2 + 1
            s0, s1 = acc1(2 * m, u) + i, acc1(2 * m + 1, u) + i
            d = QF + (u % 2) * 16 + i * 4 + m
            ops.append(lambda t=t0, s=s0: g.valu("v_accvgpr_read_b32 %s, %s" % (vr(t), vr(s)), dst=[t], src=[s]))
            ops.append(lambda t=t1, s=s1: g.valu("v_accvgpr_read_b32 %s, %s" % (vr(t), vr(s)), dst=[t], src=[s]))
            ops.append(lambda d=d, a=t0, b=t1: g.valu("v_cvt_pk_bf16_f32 %s, %s, %s" % (vr(d), vr(a), vr(b)), dst=[d], src=[a, b]))
    return ops


def sacc(u, kt):
    return SB + (u % 2) * 24 + kt * 4


def pfrag(u, pp):
    return ACC + u * 32 + pp * 4


def softmax_ops(g, u):
    ops = []
    A = ops.append
    vals = [sacc(u, kt) + r for kt in range(6) for r in range(4)]
    m, tmp, r = TM, TM + 1, TM + 2
    m2 = TM + 3

    def V(text, dst, src, **kw):
        A(lambda: g.valu(text, dst=dst, src=src, **kw))
    V("v_max3_f32 %s, %s, %s, %s" % (vr(m), vr(vals[0]), vr(vals[1]), vr(vals[2])), [m], vals[0:3])
    V("v_max3_f32 %s, %s, %s, %s" % (vr(m2), vr(vals[3]), vr(vals[4]), vr(vals[5])), [m2], vals[3:6])
    k = 6
    while k < 24:
        mm = m if (k // 2) % 2 else m2
        V("v_max3_f32 %s, %s, %s, %s" % (vr(mm), vr(mm), vr(vals[k]), vr(vals[k + 1])), [mm], [mm, vals[k], vals[k + 1]])
        k += 2
    V("v_max_f32 %s, %s, %s" % (vr(m), vr(m), vr(m2)), [m], [m, m2])

    def xl(x, op):
        for sw in ("v_permlane32_swap_b32", "v_permlane16_swap_b32"):
            V("v_mov_b32 %s, %s" % (vr(tmp), vr(x)), [tmp], [x])
            V("%s %s, %s" % (sw, vr(x), vr(tmp)), [x, tmp], [x, tmp], permlane=True)
            V("%s %s, %s, %s" % (op, vr(x), vr(x), vr(tmp)), [x], [x, tmp])
    xl(m, "v_max_f32")
    V("v_mul_f32 %s, %s, %s" % (vr(m), sr(S_C), vr(m)), [m], [m])
    for v in vals:
        V("v_fma_f32 %s, %s, %s, -%s" % (vr(v), vr(v), sr(S_C), vr(m)), [v], [v, m])
    for v in vals:
        V("v_exp_f32 %s, %s" % (vr(v), vr(v)), [v], [v], trans=True)
    sm = [PT + c for c in range(4)]
    for c in range(4):
        V("v_add_f32 %s, %s, %s" % (vr(sm[c]), vr(vals[c]), vr(vals[c + 4])), [sm[c]], [vals[c], vals[c + 4]])
    for k in range(8, 24):
        c = k % 4
        V("v_add_f32 %s, %s, %s" % (vr(sm[c]), vr(sm[c]), vr(vals[k])), [sm[c]], [sm[c], vals[k]])
    V("v_add_f32 %s, %s, %s" % (vr(sm[0]), vr(sm[0]), vr(sm[1])), [sm[0]], [sm[0], sm[1]])
    V("v_add_f32 %s, %s, %s" % (vr(sm[2]), vr(sm[2]), vr(sm[3])), [sm[2]], [sm[2], sm[3]])
    V("v_add_f32 %s, %s, %s" % (vr(r), vr(sm[0]), vr(sm[2])), [r], [sm[0], sm[2]])
    xl(r, "v_add_f32")
    V("v_rcp_f32 %s, %s" % (vr(r), vr(r)), [r], [r], trans=True)
    for v in vals:
        V("v_mul_f32 %s, %s, %s" % (vr(v), vr(v), vr(r)), [v], [v, r])
    for pp in range(3):
        for h in range(4):
            a = sacc(u, 2 * pp + (h >> 1)) + (h & 1) * 2
            d = PT + pp * 4 + h
            V("v_cvt_pk_bf16_f32 %s, %s, %s" % (vr(d), vr(a), vr(a + 1)), [d], [a, a + 1])
    for k in range(12):
        d = pfrag(u, 0) + k
        V("v_accvgpr_write_b32 %s, %s" % (vr(d), vr(PT + k)), [d], [PT + k])
    return ops


S_K2, S_KD, S_JUNK, S_TB = 4, 5, 13, 6


def k_dma(g, part, half):
    ops = []
    for n8 in range(8):
        n = part * 8 + n8
        ops.append(lambda n=n: g.s("s_add_u32 %s, %s, %d" % (sr(S_T + 1), sr(S_BH), n * 1024)))
        if half == 2:
            ops.append(lambda n8=n8: g.s("s_add_u32 m0, %s, %d" % (sr(S_K2), n8 * 1024), m0=True))
        else:
            ops.append(lambda n8=n8: g.s("s_add_u32 m0, %s, %d" % (sr(S_VL), half * 8192 + n8 * 1024), m0=True))
        ops.append(lambda n=n: g.vload("buffer_load_dwordx4 %s, %s, %s offen%s lds" % (vr(VKD + (n & 3)), sr(SRD_K, 4), sr(S_T + 1), NT), "KD%d" % part, addr=[VKD + (n & 3)], lds=True))
    return ops


def k_read(g, part, half):
    ops = [lambda: g.wait_vm("KD%d" % part)]
    if half == 2:
        for i in range(4):
            ops.append(lambda i=i: vop(g, "v_subrev_u32 %s, %s, %s" % (vr(VKR + i), sr(S_KD), vr(VKR + i)), VKR + i, [VKR + i]))
    for k2 in range(2):
        for i in range(4):
            d = KF + ((part * 2 + k2) * 4 + i) * 4
            o = lambda d=d, i=i, k2=k2: g.dsread("ds_read_b128 %s, %s offset:%d" % (vr(d, 4), vr(VKR + i), (half & 1) * 8192 + k2 * 4096), "KR%d" % half, dst=rng(d, 4), addr=[VKR + i])
            o.is_load = True
            ops.append(o)
    return ops


def vraw(pp, e):
    return (VRA + pp * 32 + e * 4) if pp < 2 else (VR2 + e * 4)


def v_loads(g, pp_):
    ops = []
    for pp in (pp_,):
        for e in range(8):
            if e % 4 == 0:
                ops.append(lambda pp=pp, e=e: g.s("s_add_u32 %s, %s, %d" % (sr(S_T + 1), sr(S_BH), pp * 8192 + (e >> 2) * 4096)))
            d = vraw(pp, e)
            ops.append(lambda d=d, e=e, pp=pp: g.vload("buffer_load_dwordx4 %s, %s, %s, %s offen offset:%d%s" % (vr(d, 4), vr(VV), sr(SRD_V, 4), sr(S_T + 1), (e & 3) * 256, NT),
                                                       "V%d" % pp, dst=rng(d, 4), addr=[VV]))
    return ops


def v_dma(g, pp, half):
    ops = [lambda: g.wait_lg("KR%d" % half)]
    for e in range(8):
        ops.append(lambda pp=pp, e=e: g.s("s_add_u32 %s, %s, %d" % (sr(S_T + 1), sr(S_BH), pp * 8192 + (e >> 2) * 4096 + (e & 3) * 256)))
        ops.append(lambda pp=pp, e=e: g.s("s_add_u32 m0, %s, %d" % (sr(S_VL), (half * 8 + e) * 1024), m0=True))
        ops.append(lambda: g.vload("buffer_load_dwordx4 %s, %s, %s offen%s lds" % (vr(VV), sr(SRD_V, 4), sr(S_T + 1), NT), "VD", addr=[VV], lds=True))
    return ops


def wo_touch(g):
    ops = []
    A = ops.append
    A(lambda: g.s("s_lshl_b32 %s, %s, 2" % (sr(S_T + 3), sr(S_B))))
    A(lambda: g.s("s_add_u32 %s, %s, s3" % (sr(S_T + 3), sr(S_T + 3))))
    A(lambda: g.s("s_lshl_b32 %s, %s, 13" % (sr(S_T + 3), sr(S_T + 3))))
    A(lambda: g.s("s_lshl_b32 %s, %s, 19" % (sr(S_T + 4), sr(S_HG))))
    A(lambda: g.s("s_add_u32 %s, %s, %s" % (sr(S_T + 3), sr(S_T + 3), sr(S_T + 4))))
    A(lambda: vop(g, "v_lshlrev_b32 %s, 3, %s" % (vr(TQ + 4), vr(L16)), TQ + 4, [L16]))
    A(lambda: g.vload("buffer_load_dword %s, %s, %s, %s offen" % (vr(VK), vr(TQ + 4), sr(SRD_WO, 4), sr(S_T + 3)), "TCH", dst=[VK], addr=[TQ + 4]))
    return ops


def w1_loads(g):
    def f(s):
        ops = []
        if s > 0:
            ops.append(lambda: vop(g, "v_add_u32 %s, 0x40000, %s" % (vr(VW), vr(VW)), VW, [VW]))
        for e in range(8):
            d = raw(s, e)
            so = "0" if e == 0 else sr(SE + e)
            ops.append(lambda d=d, so=so, s=s: g.vload("buffer_load_dwordx4 %s, %s, %s, %s offen" % (vr(d, 4), vr(VW), sr(SRD_W, 4), so),
                                                       "W%d" % s, dst=rng(d, 4), addr=[VW]))
        return mark(ops)
    return f


def b1_reads(g):
    def f(s):
        ops = []
        sp = s >> 1
        a = XB + (s & 1) + 2 * (sp >> 2)
        for u in range(6):
            d = bf(s, u)
            ops.append(lambda d=d, a=a, off=((sp & 3) * 12 + 2 * u) * 1024, s=s:
                       g.dsread("ds_read_b128 %s, %s offset:%d" % (vr(d, 4), vr(a), off), "B%d" % s, dst=rng(d, 4), addr=[a]))
        return ops
    return f


def w2_loads(g):
    def f(s):
        ops = []
        if E("NOW2", 0) and s >= 5:
            return ops
        h, i = s >> 2, s & 3
        base = h * 131072 + i * 8192
        for e in range(8):
            if e % 4 == 0:
                ops.append(lambda e=e: g.s("s_mov_b32 %s, %d" % (sr(S_T + 2), base + (e >> 2) * 4096)))
            d = raw2(s, e)
            if E("X2T", 0):
                for hf in range(2):
                    ops.append(lambda d=d + 2 * hf, e=e, s=s, hf=hf: g.vload("buffer_load_dwordx2 %s, %s, %s, %s offen offset:%d" % (vr(d, 2), vr(VWO), sr(SRD_WO, 4), sr(S_T + 2), (e & 3) * 1024 + hf * 128),
                                                                         "W%d" % s, dst=rng(d, 2), addr=[VWO]))
                continue
            ops.append(lambda d=d, e=e, s=s: g.vload("buffer_load_dwordx4 %s, %s, %s, %s offen offset:%d" % (vr(d, 4), vr(VWO), sr(SRD_WO, 4), sr(S_T + 2), (e & 3) * 1024),
                                                     "W%d" % s, dst=rng(d, 4), addr=[VWO]))
        return mark(ops)
    return f


def b2_reads(g):
    def f(s):
        ops = []
        h, i = s >> 2, s & 3
        for u in range(6):
            d = bf(s, u)
            n = i * 6 + u
            a, off = (L16H, h * 16384 + n * 1024) if n < 16 else (L16, h * 8192 + (n - 16) * 1024)
            ops.append(lambda d=d, a=a, off=off, s=s:
                       g.dsread("ds_read_b128 %s, %s offset:%d" % (vr(d, 4), vr(a), off), "B%d" % s, dst=rng(d, 4), addr=[a]))
        return ops
    return f


def b2_read1(g, s, u, d, tag):
    h, i = s >> 2, s & 3
    n = i * 6 + u
    a, off = (L16H, h * 16384 + n * 1024) if n < 16 else (L16, h * 8192 + (n - 16) * 1024)
    return lambda: g.dsread("ds_read_b128 %s, %s offset:%d" % (vr(d, 4), vr(a), off), tag, dst=rng(d, 4), addr=[a])


def gemm2(g, w_loads, b_reads, tail, extra):
    pend = []

    def add(tag, ops):
        pend.extend((tag, o) for o in ops)

    def take(n):
        out = []
        while pend and n > 0:
            t, o = pend.pop(0)
            out.append(o)
            if getattr(o, "is_load", False):
                n -= 1
        return out

    def upto(tag):
        out = []
        while any(t == tag for t, _ in pend):
            out.append(pend.pop(0)[1])
        return out
    TS = {13: KF + 64, 14: SL2[11 % 5], 15: SL2[12 % 5]}
    bq = lambda n, k: BF + (((n * 3 + 6) % 12) + k) * 4
    for t in (2, 3, 4):
        add("W%d" % t, w_loads(t))
    g.wait_vm("W0")
    for op in perm_ops(g, raw2(0, 0), 0, WT):
        op()
    xq = []
    for s in range(13):
        xq += extra(s)
        if s == 12:
            xq += upto("W13") + [lambda: g.wait_vm("W13")]
            for j in range(8):
                xq += perm_ops(g, raw2(13, 0), j, TS[13] + j * 4)
        for j in range(8):
            idx = 8 * s + j
            fill = []
            if j == 7:
                if s < 12:
                    fill += upto("W%d" % (s + 1))
                    fill.append(lambda s=s: g.wait_vm("W%d" % (s + 1)))
                    fill += perm_ops(g, raw2(s + 1, 0), 0, WT + ((idx + 1) % 4) * 4)
                if s + 5 < 16:
                    add("W%d" % (s + 5), w_loads(s + 5))
            else:
                fill += perm_ops(g, raw2(s, 0), j + 1, WT + ((idx + 1) % 4) * 4)
            fill += take(R2[j])
            if 3 <= j <= 5:
                if s < 12:
                    fill += b_reads(s + 1)[(j - 3) * 2:(j - 3) * 2 + 2]
                else:
                    fill += [b2_read1(g, 13 + (j - 3), n, bq(n, j - 3), "C%d" % n) for n in range(2)]
            k = (len(xq) + 7 - j) // (8 - j)
            k = min(k, 8) if s < 12 else k
            fill += xq[:k]
            xq = xq[k:]
            if j == 0:
                g.wait_lg("B%d" % s)
                if STAMP == 3 and s > 0:
                    stamp(g)
            a = WT + (idx % 4) * 4
            main = [(lambda u=u: g.mfma(acc2(j, u), a, bf(s, u), None if s == 0 else acc2(j, u))) for u in range(6)]
            merge(main, fill)
    assert not xq
    carry = []
    for n in range(6):
        u = n
        g.wait_lg("C%d" % n)
        if STAMP == 3:
            stamp(g)
        main = [(lambda j=j, k=k: g.mfma(acc2(j, u), TS[13 + k] + j * 4, bq(n, k), acc2(j, u))) for k in range(3) for j in range(8)]
        brd = [b2_read1(g, 13 + k, n + 2, bq(n + 2, k), "C%d" % (n + 2)) for k in range(3)] if n + 2 < 6 else []
        if n == 0:
            for k in (1, 2):
                fill = upto("W%d" % (13 + k)) + [lambda k=k: g.wait_vm("W%d" % (13 + k))]
                for j in range(8):
                    fill += perm_ops(g, raw2(13 + k, 0), j, TS[13 + k] + j * 4)
                merge(main[(k - 1) * 8:k * 8 - 1], fill)
                main[k * 8 - 1]()
            merge(main[16:], brd)
        else:
            merge(main, brd + carry)
        carry = tail(n)
    assert not pend
    run(carry)


def run(ops):
    for o in ops:
        o()


def prologue():
    g = Gen()
    g.s("s_cmp_ge_u32 s2, 256")
    g.s("s_cbranch_scc1 k_end")
    if STAMP:
        g.s("%s %s" % (os.environ.get("CLK", "s_memrealtime"), sr(S_ST, 2)))
    if E("CPF", 2):
        g.s("s_getpc_b64 %s" % sr(SRD_OUT, 2))
        g.label("pc_here")
        if E("CPF", 2) == 1:
            g.s("s_bfe_u32 %s, s2, 0x30003" % sr(S_T))
            g.s("s_lshl_b32 %s, %s, 15" % (sr(S_T), sr(S_T)))
        else:
            g.s("s_lshr_b32 %s, s2, 3" % sr(S_T))
            g.s("s_lshl_b32 %s, %s, 12" % (sr(S_T), sr(S_T)))
            g.valu("v_cmp_gt_u32 vcc, 32, v0", src=[0])
        g.s("s_and_b32 %s, %s, 0xffff" % (sr(SRD_OUT + 1), sr(SRD_OUT + 1)))
        g.s("s_mov_b32 %s, code_end-pc_here" % sr(SRD_OUT + 2))
        g.s("s_mov_b32 %s, 0x00020000" % sr(SRD_OUT + 3))
        vop(g, "v_lshlrev_b32 %s, 7, v0" % vr(TQ + 4), TQ + 4, [0])
        if E("CPF", 2) != 1:
            vop(g, "v_cndmask_b32 %s, -1, %s, vcc" % (vr(TQ + 4), vr(TQ + 4)), TQ + 4, [TQ + 4])
        g.vload("buffer_load_dword %s, %s, %s, %s offen" % (vr(TQ + 4), vr(TQ + 4), sr(SRD_OUT, 4), sr(S_T)), "CPF", dst=[TQ + 4], addr=[TQ + 4])
    g.s("s_bfe_u32 %s, s2, 0x10002" % sr(S_BLK))
    g.s("s_mul_i32 s16, %s, 40" % sr(S_BLK))
    g.s("s_add_u32 s18, s0, s16")
    g.s("s_addc_u32 s19, s1, 0")
    g.s("s_load_dwordx8 s[8:15], s[18:19], 0")
    g.s("s_load_dwordx2 s[16:17], s[18:19], 32")
    g.s("s_load_dwordx4 s[4:7], s[0:1], 80")
    g.s("s_load_dwordx2 s[18:19], s[0:1], 96")
    LN, Q, G, R8, C8, T1, T2 = 130, 131, 132, 133, 134, 135, 136
    vop(g, "v_lshrrev_b32 %s, 6, v0" % vr(T1), T1, [0])
    vop(g, "v_and_b32 %s, 63, v0" % vr(LN), LN, [0])
    g.valu("v_readfirstlane_b32 s3, %s" % vr(T1), src=[T1], readlane=True, sdst=[3])
    g.s("s_and_b32 %s, s2, 3" % sr(S_HG))
    g.s("s_lshl_b32 %s, %s, 1" % (sr(S_HG), sr(S_HG)))
    g.s("s_bfe_u32 %s, s2, 0x10003" % sr(S_T))
    g.s("s_add_u32 %s, %s, %s" % (sr(S_HG), sr(S_HG), sr(S_T)))
    g.s("s_lshr_b32 %s, s2, 4" % sr(S_B))
    g.s("s_lshl_b32 %s, %s, 4" % (sr(S_GRP), sr(S_BLK)))
    g.s("s_add_u32 %s, %s, %s" % (sr(S_GRP), sr(S_GRP), sr(S_B)))
    vop(g, "v_and_b32 %s, 15, %s" % (vr(Q), vr(LN)), Q, [LN])
    vop(g, "v_lshrrev_b32 %s, 4, %s" % (vr(G), vr(LN)), G, [LN])
    vop(g, "v_lshrrev_b32 %s, 3, %s" % (vr(R8), vr(LN)), R8, [LN])
    vop(g, "v_and_b32 %s, 7, %s" % (vr(C8), vr(LN)), C8, [LN])
    vop(g, "v_lshlrev_b32 %s, 4, %s" % (vr(L16), vr(LN)), L16, [LN])
    vop(g, "v_add_u32 %s, %d, %s" % (vr(L16H), L_V, vr(L16)), L16H, [L16])
    for e in range(1, 8):
        g.s("s_mov_b32 %s, %d" % (sr(SE + e), e * 8192))
    g.s("s_mov_b32 %s, 0x05040100" % sr(S_PLO))
    g.s("s_mov_b32 %s, 0x07060302" % sr(S_PHI))
    g.s("s_mov_b32 %s, 0x3e0293ee" % sr(S_C))
    g.s("s_cmp_eq_u32 s3, 0")
    g.s("s_cselect_b32 %s, 1, 0" % sr(S_W0))
    g.s("s_mov_b32 %s, 0" % sr(S_W0 + 1))
    g.s("s_lshl_b32 %s, %s, 5" % (sr(S_T), sr(S_B)))
    g.s("s_lshl_b32 %s, %s, 2" % (sr(S_T + 1), sr(S_HG)))
    g.s("s_add_u32 %s, %s, %s" % (sr(S_T), sr(S_T), sr(S_T + 1)))
    g.s("s_add_u32 %s, %s, s3" % (sr(S_T), sr(S_T)))
    g.s("s_mul_i32 %s, %s, 24576" % (sr(S_BH), sr(S_T)))
    g.s("s_lshl_b32 %s, s3, 14" % sr(S_T))
    g.s("s_add_u32 %s, %s, %d" % (sr(S_VL), sr(S_T), L_V))

    vop(g, "v_lshrrev_b32 %s, 1, %s" % (vr(T1), vr(R8)), T1, [R8])
    vop(g, "v_xor_b32 %s, %s, %s" % (vr(T1), vr(T1), vr(C8)), T1, [T1, C8])
    g.s("s_mul_i32 %s, %s, 98304" % (sr(S_T + 2), sr(S_B)))
    for t in range(3):
        g.s("s_mul_i32 %s, s3, 3" % sr(S_T))
        g.s("s_add_u32 %s, %s, %d" % (sr(S_T), sr(S_T), t))
        g.s("s_lshl_b32 %s, %s, 10" % (sr(S_XM + t), sr(S_T)))
        g.s("s_lshl_b32 %s, %s, 13" % (sr(S_T + 1), sr(S_T)))
        g.s("s_add_u32 %s, %s, %s" % (sr(S_XS + t), sr(S_T + 1), sr(S_T + 2)))
        g.s("s_and_b32 %s, %s, 1" % (sr(S_T), sr(S_T)))
        g.s("s_lshl_b32 %s, %s, 2" % (sr(S_T), sr(S_T)))
        vop(g, "v_xor_b32 %s, %s, %s" % (vr(T2), sr(S_T), vr(T1)), T2, [T1])
        vop(g, "v_lshlrev_b32 %s, 4, %s" % (vr(T2), vr(T2)), T2, [T2])
        vop(g, "v_lshl_add_u32 %s, %s, 10, %s" % (vr(XA + t), vr(R8), vr(T2)), XA + t, [R8, T2])
    PI = 140
    PI = Q
    g.s("s_lshl_b32 %s, %s, 10" % (sr(S_T), sr(S_HG)))
    g.s("s_lshl_b32 %s, s3, 8" % sr(S_T + 1))
    g.s("s_add_u32 %s, %s, %s" % (sr(S_T), sr(S_T), sr(S_T + 1)))
    vop(g, "v_lshlrev_b32 %s, 4, %s" % (vr(T1), vr(PI)), T1, [PI])
    vop(g, "v_lshl_add_u32 %s, %s, 16, %s" % (vr(T2), vr(G), vr(T1)), T2, [G, T1])
    vop(g, "v_add_u32 %s, %s, %s" % (vr(VW), sr(S_T), vr(T2)), VW, [T2])
    g.s("s_lshl_b32 %s, %s, 19" % (sr(S_T), sr(S_HG)))
    g.s("s_add_u32 %s, %s, %s" % (sr(S_T), sr(S_T), sr(S_T + 1)))
    if E("X2T", 0):
        vop(g, "v_lshlrev_b32 %s, 3, %s" % (vr(T1), vr(PI)), T1, [PI])
    vop(g, "v_lshl_add_u32 %s, %s, 15, %s" % (vr(T2), vr(G), vr(T1)), T2, [G, T1])
    vop(g, "v_add_u32 %s, %s, %s" % (vr(VWO), sr(S_T), vr(T2)), VWO, [T2])
    vop(g, "v_xor_b32 %s, %s, %s" % (vr(T1), vr(Q), vr(G)), T1, [Q, G])
    vop(g, "v_lshlrev_b32 %s, 4, %s" % (vr(T1), vr(T1)), T1, [T1])
    vop(g, "v_lshl_add_u32 %s, %s, 8, %s" % (vr(VKD), vr(G), vr(T1)), VKD, [G, T1])
    vop(g, "v_lshlrev_b32 %s, 2, %s" % (vr(T1), vr(G)), T1, [G])
    vop(g, "v_xor_b32 %s, %s, %s" % (vr(T1), vr(T1), vr(Q)), T1, [T1, Q])
    vop(g, "v_lshlrev_b32 %s, 4, %s" % (vr(T1), vr(T1)), T1, [T1])
    vop(g, "v_lshl_add_u32 %s, %s, 8, %s" % (vr(VKR), vr(Q), vr(T1)), VKR, [Q, T1])
    vop(g, "v_add_u32 %s, %s, %s" % (vr(VKR), sr(S_VL), vr(VKR)), VKR, [VKR])
    for m in range(1, 4):
        vop(g, "v_xor_b32 %s, %d, %s" % (vr(VKD + m), m * 64, vr(VKD)), VKD + m, [VKD])
        vop(g, "v_xor_b32 %s, %d, %s" % (vr(VKR + m), m * 16, vr(VKR)), VKR + m, [VKR])
    vop(g, "v_lshlrev_b32 %s, 4, %s" % (vr(T1), vr(Q)), T1, [Q])
    vop(g, "v_lshl_add_u32 %s, %s, 10, %s" % (vr(VV), vr(G), vr(T1)), VV, [G, T1])
    vop(g, "v_lshrrev_b32 %s, 1, %s" % (vr(T1), vr(Q)), T1, [Q])
    vop(g, "v_xor_b32 %s, %s, %s" % (vr(T1), vr(T1), vr(G)), T1, [T1, G])
    vop(g, "v_lshlrev_b32 %s, 7, %s" % (vr(T2), vr(Q)), T2, [Q])
    vop(g, "v_lshl_add_u32 %s, %s, 4, %s" % (vr(XB), vr(T1), vr(T2)), XB, [T1, T2])
    vop(g, "v_xor_b32 %s, 64, %s" % (vr(XB + 1), vr(XB)), XB + 1, [XB])
    vop(g, "v_add_u32 %s, 0xc000, %s" % (vr(XB + 2), vr(XB)), XB + 2, [XB])
    vop(g, "v_add_u32 %s, 0xc000, %s" % (vr(XB + 3), vr(XB + 1)), XB + 3, [XB + 1])
    vop(g, "v_add_u32 %s, %s, %s" % (vr(VOW), sr(S_VL), vr(L16)), VOW, [L16])
    g.s("s_lshl_b32 %s, %s, 2" % (sr(S_T), sr(S_B)))
    g.s("s_add_u32 %s, %s, s3" % (sr(S_T), sr(S_T)))
    g.s("s_lshl_b32 %s, %s, 16" % (sr(S_T), sr(S_T)))
    g.s("s_lshl_b32 %s, %s, 10" % (sr(S_T + 1), sr(S_HG)))
    g.s("s_add_u32 %s, %s, %s" % (sr(S_T), sr(S_T), sr(S_T + 1)))
    vop(g, "v_lshlrev_b32 %s, 7, %s" % (vr(T1), vr(C8)), T1, [C8])
    vop(g, "v_lshl_add_u32 %s, %s, 13, %s" % (vr(T1), vr(R8), vr(T1)), T1, [R8, T1])
    vop(g, "v_add_u32 %s, %s, %s" % (vr(WTA), sr(S_T), vr(T1)), WTA, [T1])
    g.waitcnt(lg=0)
    make_srd(g, SRD_X, 8, 1572864)
    make_srd(g, SRD_K, 10, 12582912)
    make_srd(g, SRD_V, 12, 12582912)
    make_srd(g, SRD_W, 14, 4194304)
    make_srd(g, SRD_WO, 16, 4194304)
    make_srd(g, SRD_OUT, 4, 16 * 96 * 1024 * 2)
    make_srd(g, SRD_DBG, 6, 256)
    make_srd(g, SRD_WS, 18, WS_BYTES)
    g.s("s_lshl_b32 %s, s3, 13" % sr(S_K2))
    g.s("s_sub_u32 %s, %s, %s" % (sr(S_KD), sr(S_VL), sr(S_K2)))
    g.s("s_lshl_b32 %s, %s, 1" % (sr(S_T), sr(S_B)))
    g.s("s_lshr_b32 %s, s3, 1" % sr(S_T + 1))
    g.s("s_add_u32 %s, %s, %s" % (sr(S_T), sr(S_T), sr(S_T + 1)))
    g.s("s_lshl_b32 %s, %s, 13" % (sr(S_T), sr(S_T)))
    g.s("s_lshl_b32 %s, %s, 10" % (sr(S_T + 1), sr(S_HG)))
    g.s("s_add_u32 %s, %s, %s" % (sr(S_T), sr(S_T), sr(S_T + 1)))
    g.s("s_and_b32 %s, s3, 1" % sr(S_T + 1))
    g.s("s_lshl_b32 %s, %s, 9" % (sr(S_T + 1), sr(S_T + 1)))
    g.s("s_add_u32 %s, %s, %s" % (sr(S_T), sr(S_T), sr(S_T + 1)))
    g.s("s_add_u32 %s, s14, %s" % (sr(S_TB), sr(S_T)))
    g.s("s_addc_u32 %s, s15, 0" % sr(S_TB + 1))
    stamp(g, have=True)
    return g


def tok_ops(g, tok):
    ops = []
    if tok[0] == 'x':
        sp = int(tok[1:])
        for t in range(3):
            ops.append(lambda t=t: g.s("s_add_u32 %s, %s, %d" % (sr(S_T), sr(S_XS + t), sp * 128)))
            ops.append(lambda t=t: g.s("s_add_u32 m0, %s, %d" % (sr(S_XM + t), sp * 12288), m0=True))
            ops.append(lambda t=t: g.vload("buffer_load_dwordx4 %s, %s, %s offen lds" % (vr(XA + t), sr(SRD_X, 4), sr(S_T)), "X%d" % sp, addr=[XA + t], lds=True))
    elif tok[0] == 'w':
        ops += w1_loads(g)(int(tok[1:]))
    elif tok == 't':
        ops.append(lambda: g.vload("buffer_load_dword %s, %s, %s, 0 offen" % (vr(TQ + 3), vr(WTA), sr(SRD_W, 4)), "TCH", dst=[TQ + 3], addr=[WTA]))
    elif tok[0] == 's':
        st = int(tok[1:])
        ops.append(lambda: g.s("s_mov_b32 %s, %d" % (sr(S_T + 2), st * 262144)))
        for l in range(8 if SM2 else 4):
            def sm(l=l):
                g.s("s_load_dword %s, %s, %s offset:%d" % (sr(S_JUNK), sr(S_TB, 2), sr(S_T + 2), l * (64 if SM2 else 128)))
                g.lgq.append("SM")
            ops.append(sm)
    elif tok == 'T':
        ops += wo_touch(g)
    elif tok == 'Y':
        for srd, so in ((SRD_WS, S_XS + 1), (SRD_WS, S_PB), (SRD_WS, S_PB + 1), (SRD_WS, S_XS + 2), (SRD_OUT, S_OB)):
            ops.append(lambda srd=srd, so=so: g.vload("buffer_load_dword %s, off, %s, %s" % (vr(VK), sr(srd, 4), sr(so)), "TCH", dst=[VK]))
    elif tok[0] == 'Z':
        t = int(tok[1])
        if t == 0:
            for k in range(4):
                ops.append(lambda k=k: vop(g, "v_mov_b32 %s, -1" % vr(ZQ + k), ZQ + k))
        for h in range(2):
            for i in range(4):
                ops.append(lambda h=h, i=i: g.s("s_add_u32 %s, %s, %d" % (sr(S_T + 6), sr(S_PB + h), (i * 3 + t) * 1024)))
                o = lambda: g.vstore("buffer_store_dwordx4 %s, %s, %s, %s offen sc1" % (vr(ZQ, 4), vr(L16), sr(SRD_WS, 4), sr(S_T + 6)),
                                     "POI", data=rng(ZQ, 4), addr=[L16])
                o.is_load = True
                ops.append(o)
    elif tok[0] == 'K':
        ops += k_dma(g, int(tok[1]), int(tok[3]))
    elif tok[0] == 'R':
        ops += k_read(g, int(tok[1]), int(tok[3]))
    elif tok[0] == 'V' and len(tok) == 4:
        assert VL[int(tok[1])] == int(tok[3])
        ops += v_dma(g, int(tok[1]), int(tok[3]))
    elif tok[0] == 'V':
        vl = v_loads(g, int(tok[1]))
        ops += vl if len(tok) == 2 else vl[:5] if tok[2] == 'a' else vl[5:]
    else:
        raise ValueError(tok)
    return mark(ops)


def part1(g, cl):
    for tok in cl["P"]:
        run(tok_ops(g, tok))
    g.wait_vm(["X%d" % k for k in range(XBAR[0] + 1)])
    g.barrier()
    stamp(g)
    run(b1_reads(g)(0))

    def tail(u):
        return q_conv(g, u) if u < 2 else []
    assert max(XBAR) >= 6
    pend, rest = gemm1(g, cl, b1_reads(g), tail)
    run(pend)
    stamp(g)
    g.s("s_lshl_b32 %s, s3, 13" % sr(S_T))
    vop(g, "v_add_u32 %s, %s, %s" % (vr(VOW2), sr(S_T), vr(L16)), VOW2, [L16])
    run(rest)
    stamp(g)
    g.nop(8)


S_FS, S_OB = 69, 93


def job_setup(g, A):
    A(lambda: g.s("s_lshl_b32 %s, %s, 2" % (sr(S_T), sr(S_GRP))))
    A(lambda: g.s("s_lshr_b32 %s, %s, 1" % (sr(S_T + 1), sr(S_RO))))
    A(lambda: g.s("s_add_u32 %s, %s, %s" % (sr(S_T + 1), sr(S_T + 1), sr(S_T))))
    A(lambda: g.s("s_lshl_b32 %s, %s, 7" % (sr(S_T + 1), sr(S_T + 1))))
    A(lambda: g.s("s_add_u32 %s, %s, %d" % (sr(S_XS + 1), sr(S_T + 1), FLG)))
    A(lambda: g.s("s_lshl_b32 %s, %s, 3" % (sr(S_T), sr(S_GRP))))
    A(lambda: g.s("s_add_u32 %s, %s, %s" % (sr(S_T), sr(S_T), sr(S_RO))))
    A(lambda: g.s("s_mul_i32 %s, %s, 96" % (sr(S_T), sr(S_T))))
    A(lambda: g.s("s_mul_i32 %s, %s, 3" % (sr(S_T + 1), sr(S_RR))))
    A(lambda: g.s("s_add_u32 %s, %s, %s" % (sr(S_T), sr(S_T), sr(S_T + 1))))
    A(lambda: g.s("s_lshl_b32 %s, %s, 10" % (sr(S_XS + 2), sr(S_T))))
    A(lambda: g.s("s_mul_i32 %s, %s, %d" % (sr(S_OB), sr(S_B), 96 * 2048)))
    A(lambda: g.s("s_lshl_b32 %s, %s, 10" % (sr(S_T), sr(S_BLK))))
    A(lambda: g.s("s_add_u32 %s, %s, %s" % (sr(S_OB), sr(S_OB), sr(S_T))))
    A(lambda: g.s("s_lshr_b32 %s, %s, 1" % (sr(S_T), sr(S_RO))))
    A(lambda: g.s("s_lshl_b32 %s, %s, 8" % (sr(S_T), sr(S_T))))
    A(lambda: g.s("s_add_u32 %s, %s, %s" % (sr(S_OB), sr(S_OB), sr(S_T))))
    A(lambda: g.s("s_lshl_b32 %s, %s, 4" % (sr(S_T), sr(S_RR))))
    A(lambda: g.s("s_add_u32 %s, %s, %s" % (sr(S_OB), sr(S_OB), sr(S_T))))
    A(lambda: g.s("s_and_b32 %s, %s, 1" % (sr(S_T), sr(S_RO))))
    A(lambda: g.s("s_lshl_b32 %s, %s, 15" % (sr(S_T), sr(S_T))))
    A(lambda: g.s("s_add_u32 %s, %s, %s" % (sr(S_OB), sr(S_OB), sr(S_T))))


def part2(g):
    g.s("s_memrealtime %s" % sr(S_T + 4, 2))
    NV = 238
    g.s("s_lshl_b32 %s, %s, 2" % (sr(S_T + 3), sr(S_GRP)))
    lq = list(g.lgq)
    g.waitcnt(lg=0)
    g.lgq = []
    g.s("s_or_b32 %s, %s, 1" % (sr(S_NONCE), sr(S_T + 4)))
    vop(g, "v_mov_b32 %s, %s" % (vr(NV), sr(S_NONCE)), NV)
    vop(g, "v_mov_b32 %s, 0" % vr(NV + 1), NV + 1)
    g.s("s_mov_b64 exec, %s" % sr(S_W0, 2))
    g.vload("buffer_atomic_cmpswap %s, off, %s, %s sc0 sc1" % (vr(NV, 2), sr(SRD_DBG, 4), sr(S_T + 3)), "NONCE", dst=[NV], addr=[NV, NV + 1])
    g.s("s_mov_b64 exec, -1")
    g.s("s_lshl_b32 %s, %s, 3" % (sr(S_PB), sr(S_GRP)))
    g.s("s_lshl_b32 %s, s3, 1" % sr(S_PB + 1))
    g.s("s_add_u32 %s, %s, %s" % (sr(S_PB), sr(S_PB), sr(S_PB + 1)))
    g.s("s_lshl_b32 %s, %s, 3" % (sr(S_PB), sr(S_PB)))
    g.s("s_add_u32 %s, %s, %s" % (sr(S_PB), sr(S_PB), sr(S_HG)))
    g.s("s_mul_i32 %s, %s, 12288" % (sr(S_PB), sr(S_PB)))
    g.s("s_add_u32 %s, %s, %d" % (sr(S_PB + 1), sr(S_PB), 8 * 12288))
    g.s("s_lshl_b32 %s, %s, 2" % (sr(S_XS), sr(S_GRP)))
    g.s("s_add_u32 %s, %s, s3" % (sr(S_XS), sr(S_XS)))
    g.s("s_lshl_b32 %s, %s, 7" % (sr(S_XS), sr(S_XS)))
    g.s("s_add_u32 %s, %s, %d" % (sr(S_XS), sr(S_XS), FLG))
    g.s("s_lshl_b32 %s, %s, 3" % (sr(S_FS), sr(S_HG)))
    g.s("s_add_u32 %s, %s, %s" % (sr(S_FS), sr(S_FS), sr(S_XS)))
    g.s("s_mov_b32 %s, %s" % (sr(S_RO), sr(S_HG)))
    g.s("s_mov_b32 %s, s3" % sr(S_RR))
    job_setup(g, lambda o: o())
    vrd = [lambda: g.wait_vm(["VD"])] if VL else []
    for pp in sorted(VL):
        for e in range(8):
            d = vraw(pp, e)
            vrd.append(lambda d=d, pp=pp, e=e: g.dsread("ds_read_b128 %s, %s offset:%d" % (vr(d, 4), vr(VOW), (VL[pp] * 8 + e) * 1024), "V%d" % pp, dst=rng(d, 4), addr=[VOW]))
    for u in range(7):
        main = []
        if u < 6:
            for i in range(4):
                for kt in range(6):
                    main.append(lambda kt=kt, i=i, u=u: g.mfma(sacc(u, kt), KF + (kt * 4 + i) * 4, QF + (u % 2) * 16 + i * 4, None if i == 0 else sacc(u, kt)))
        fill = []
        if u >= 1:
            fill += softmax_ops(g, u - 1)
        if 2 <= u + 1 <= 5:
            fill += q_conv(g, u + 1)
        if u == 5:
            fill += vrd
        pre = []
        for tok in POST.get(u, []):
            pre += tok_ops(g, tok)
        if pre:
            k = max(1, len(fill) // len(pre))
            nf = []
            for i, f in enumerate(fill):
                if i % k == 0 and pre:
                    nf.append(pre.pop(0))
                nf.append(f)
            fill = nf + pre
        if main:
            merge(main, fill)
        else:
            run(fill)
    stamp(g)

    def vt(pp, j):
        return KF + (pp * 8 + j) * 4

    def oacc(u, j):
        return OB + (u % 2) * 32 + j * 4

    def pv_main(u, pps):
        return [(lambda pp=pp, j=j: g.mfma(oacc(u, j), vt(pp, j), pfrag(u, pp), None if pp == 0 else oacc(u, j))) for pp in pps for j in range(8)]

    def t_ops(pp):
        ops = [lambda: g.wait_vm("V%d" % pp), lambda: g.wait_lg("V%d" % pp)]
        base = VR2 if pp == 2 else TT
        if pp < 2:
            for k in range(32):
                ops.append(lambda k=k: g.valu("v_accvgpr_read_b32 %s, %s" % (vr(TT + k), vr(VRA + pp * 32 + k)), dst=[TT + k], src=[VRA + pp * 32 + k]))
        for j in range(8):
            ops += perm_ops(g, base, j, vt(pp, j))
        return ops

    def o_conv(u):
        ops = []
        for i in range(4):
            d = PT_O + (i % 2) * 4
            for m in range(4):
                a, b = oacc(u, 2 * m) + i, oacc(u, 2 * m + 1) + i
                ops.append(lambda d=d + m, a=a, b=b: g.valu("v_cvt_pk_bf16_f32 %s, %s, %s" % (vr(d), vr(a), vr(b)), dst=[d], src=[a, b]))
            n = i * 6 + u
            a, off = (VOW, n * 1024) if n < 16 else (VOW2, (n - 16) * 1024)
            ops.append(lambda d=d, a=a, off=off: g.dswrite("ds_write_b128 %s, %s offset:%d" % (vr(a), vr(d, 4), off), "OW", data=rng(d, 4), addr=[a]))
        return ops
    PT_O = 228
    wl2 = w2_loads(g)
    run(t_ops(0))
    stamp(g)
    merge(pv_main(0, [0]), t_ops(1))
    merge(pv_main(0, [1]), t_ops(2))
    vop(g, "v_mov_b32 %s, %d" % (vr(TQ + 1), L_MISC), TQ + 1)
    merge(pv_main(0, [2]), wl2(0))
    for u in range(1, 6):
        fill = o_conv(u - 1)
        if u == 1:
            fill = fill + wl2(1)
        merge(pv_main(u, [0, 1, 2]), fill)
    g.wait_vm("NONCE")
    g.valu("v_readfirstlane_b32 %s, %s" % (sr(S_T), vr(NV)), src=[NV], readlane=True, sdst=[S_T])
    g.s("s_cmp_eq_u32 %s, 0" % sr(S_T))
    g.s("s_cselect_b32 %s, %s, %s" % (sr(S_T), sr(S_NONCE), sr(S_T)))
    vop(g, "v_mov_b32 %s, %s" % (vr(TQ), sr(S_T)), TQ)
    g.s("s_mov_b64 exec, %s" % sr(S_W0, 2))
    g.dswrite("ds_write_b32 %s, %s offset:4" % (vr(TQ + 1), vr(TQ)), "OW", data=[TQ], addr=[TQ + 1])
    g.s("s_mov_b64 exec, -1")
    run(o_conv(5))
    g.waitcnt(lg=0)
    g.lgq = []
    stamp(g)
    g.barrier()
    stamp(g)
    g.dsread("ds_read_b32 %s, %s offset:4" % (vr(NV), vr(TQ + 1)), "NN", dst=[NV], addr=[TQ + 1])
    run(b2_reads(g)(0))
    g.wait_lg("NN")
    g.valu("v_readfirstlane_b32 %s, %s" % (sr(S_NONCE), vr(NV)), src=[NV], readlane=True, sdst=[S_NONCE])
    cnt = [0]
    AC, VO, VF, F0, PL, PP = 224, 230, 231, 232, 234, 242
    S_CL = S_TYPE

    def tail(n):
        u = n
        ops = []
        for i in range(4):
            d = 96 + (cnt[0] % 8) * 4
            cnt[0] += 1
            for m in range(4):
                a, b = acc2(2 * m, u) + i, acc2(2 * m + 1, u) + i
                t0, t1 = TQ + (m % 2) * 2, TQ + (m % 2) * 2 + 1
                ops.append(lambda t=t0, s=a: g.valu("v_accvgpr_read_b32 %s, %s" % (vr(t), vr(s)), dst=[t], src=[s]))
                ops.append(lambda t=t1, s=b: g.valu("v_accvgpr_read_b32 %s, %s" % (vr(t), vr(s)), dst=[t], src=[s]))
                ops.append(lambda d=d + m, a=t0, b=t1: g.valu("v_cvt_pk_bf16_f32 %s, %s, %s" % (vr(d), vr(a), vr(b)), dst=[d], src=[a, b]))
                if not E("NOFAST", 1):
                    ops.append(lambda d=d + m: g.valu("v_min_u32 %s, -2, %s" % (vr(d), vr(d)), dst=[d], src=[d]))
            p = i * 3 + (n >> 1)
            if EXP and i >= 2:
                continue
            ops.append(lambda p=p: g.s("s_add_u32 %s, %s, %d" % (sr(S_T + 6), sr(S_PB + (n & 1)), p * 1024)))
            ops.append(lambda d=d: g.vstore("buffer_store_dwordx4 %s, %s, %s, %s offen sc1" % (vr(d, 4), vr(L16), sr(SRD_WS, 4), sr(S_T + 6)),
                                            "PS", data=rng(d, 4), addr=[L16]))
        return ops

    def flag_store(soff, tag):
        g.s("s_mov_b64 exec, 1")
        g.vstore("buffer_store_dwordx2 %s, off, %s, %s sc1" % (vr(F0, 2), sr(SRD_WS, 4), sr(soff)), tag, data=[F0, F0 + 1])
        g.s("s_mov_b64 exec, -1")

    def setup_ops():
        ops = []
        A = ops.append
        A(lambda: g.s("s_xor_b32 %s, %s, 0x%x" % (sr(S_T), sr(S_NONCE), FC)))
        A(lambda: vop(g, "v_mov_b32 %s, %s" % (vr(F0), sr(S_NONCE)), F0))
        A(lambda: vop(g, "v_mov_b32 %s, %s" % (vr(F0 + 1), sr(S_T)), F0 + 1))
        LN, Q, G_, X1, X2, X3 = 112, 113, 114, 115, 116, 117
        V = lambda text, d, src=(): A(lambda: vop(g, text, d, src))
        V("v_lshrrev_b32 %s, 4, %s" % (vr(LN), vr(L16)), LN, [L16])
        V("v_and_b32 %s, 15, %s" % (vr(Q), vr(LN)), Q, [LN])
        V("v_lshrrev_b32 %s, 4, %s" % (vr(G_), vr(LN)), G_, [LN])
        V("v_lshrrev_b32 %s, 2, %s" % (vr(X1), vr(Q)), X1, [Q])
        V("v_and_b32 %s, 1, %s" % (vr(X2), vr(Q)), X2, [Q])
        V("v_lshlrev_b32 %s, 4, %s" % (vr(X2), vr(X2)), X2, [X2])
        V("v_mov_b32 %s, 0x3f80" % vr(X3), X3)
        V("v_lshlrev_b32 %s, %s, %s" % (vr(X3), vr(X2), vr(X3)), X3, [X2, X3])
        A(lambda: g.valu("v_cmp_eq_u32 vcc, %s, %s" % (vr(X1), vr(G_)), src=[X1, G_]))
        A(lambda: g.nop(2))
        V("v_cndmask_b32 %s, 0, %s, vcc" % (vr(X3), vr(X3)), X3, [X3])
        V("v_and_b32 %s, 2, %s" % (vr(X2), vr(Q)), X2, [Q])
        A(lambda: g.valu("v_cmp_eq_u32 vcc, 0, %s" % vr(X2), src=[X2]))
        for k in (0, 1, 4, 5):
            V("v_mov_b32 %s, 0" % vr(AC + k), AC + k)
        V("v_cndmask_b32 %s, 0, %s, vcc" % (vr(AC + 2), vr(X3)), AC + 2, [X3])
        V("v_cndmask_b32 %s, %s, 0, vcc" % (vr(AC + 3), vr(X3)), AC + 3, [X3])
        V("v_lshlrev_b32 %s, 6, %s" % (vr(VO), vr(G_)), VO, [G_])
        V("v_lshl_add_u32 %s, %s, 11, %s" % (vr(VO), vr(Q), vr(VO)), VO, [Q, VO])
        V("v_lshrrev_b32 %s, 1, %s" % (vr(VF), vr(L16)), VF, [L16])
        A(lambda: g.s("s_mov_b32 %s, 0" % sr(S_PHASE)))
        A(lambda: g.s("s_mov_b32 %s, 0" % sr(S_PEND)))
        A(lambda: g.s("s_mov_b32 %s, 0" % sr(S_CNT)))
        return ops

    def extra(s):
        ops = []
        if EXP and EXS <= s < EXS + 6:
            n = s - EXS
            for i in (2, 3):
                p = i * 3 + (n >> 1)
                def st(p=p, n=n):
                    g.s("s_add_u32 %s, %s, %d" % (sr(S_T + 6), sr(S_PB + (n & 1)), p * 1024))
                    g.vstore("buffer_store_dwordx4 %s, %s, %s, %s offen sc1" % (vr(A0 + 240, 4), vr(L16), sr(SRD_WS, 4), sr(S_T + 6)), "PS", data=rng(A0 + 240, 4), addr=[L16])
                ops.append(st)
        if EXP and s == EXL:
            for k in range(12):
                def ld(k=k):
                    d = A0 + 244 + (k % 3) * 4
                    g.s("s_add_u32 %s, %s, %d" % (sr(S_T), sr(S_XS + 2), (k & 7) * 12288 + (k >> 3) * 1024))
                    g.vload("buffer_load_dwordx4 %s, %s, %s, %s offen sc1" % (vr(d, 4), vr(L16), sr(SRD_WS, 4), sr(S_T)), "RX", dst=rng(d, 4), addr=[L16])
                ops.append(ld)
        if s == 0:
            ops.append(lambda: g.wait_vm("POI"))
            ops += setup_ops()
        if s == PFS and not E("NOFAST", 1):
            def pf():
                g.wait_vm("POI")
                g.s("s_add_u32 %s, %s, %d" % (sr(S_T), sr(S_FS), FLGP - FLG))
                flag_store(S_T, "PF")
            ops.append(pf)
        if s == PPS and not E("NOFAST", 1):
            def pp():
                g.s("s_add_u32 %s, %s, %d" % (sr(S_T), sr(S_XS + 1), FLGP - FLG))
                g.vload("buffer_load_dwordx2 %s, %s, %s, %s offen sc1" % (vr(PP, 2), vr(VF), sr(SRD_WS, 4), sr(S_T)), "PP", dst=[PP, PP + 1], addr=[VF])
            ops.append(pp)
        return ops
    gemm2(g, wl2, b2_reads(g), tail, extra)
    stamp(g)
    LDT = [KF, KF + 32, 0]
    RD = 32
    OQ = 64

    def r_loads(t):
        for src in range(8):
            if EXP and (t == 0 or (t == 1 and src < 4)):
                continue
            d = LDT[t] + src * 4
            g.s("s_add_u32 %s, %s, %d" % (sr(S_T), sr(S_XS + 2), src * 12288 + t * 1024))
            g.vload("buffer_load_dwordx4 %s, %s, %s, %s offen sc1" % (vr(d, 4), vr(L16), sr(SRD_WS, 4), sr(S_T)), "R%d" % t, dst=rng(d, 4), addr=[L16])

    def r_sum(t):
        for src in range(8):
            d = LDT[t] + src * 4
            for h in range(2):
                r = RD + (t * 2 + h) * 4
                g.mfma(r, AC + 2 - 2 * h, d, None if src == 0 else r)

    def r_out(t):
        o = OQ + t * 4
        for h in range(2):
            r = RD + (t * 2 + h) * 4
            for k in range(2):
                g.valu("v_cvt_pk_bf16_f32 %s, %s, %s" % (vr(o + h * 2 + k), vr(r + 2 * k), vr(r + 2 * k + 1)), dst=[o + h * 2 + k], src=[r + 2 * k, r + 2 * k + 1])
        g.s("s_add_u32 %s, %s, %d" % (sr(S_T + 3), sr(S_OB), t * 65536))
        g.vstore("buffer_store_dwordx4 %s, %s, %s, %s offen%s" % (vr(o, 4), vr(VO), sr(SRD_OUT, 4), sr(S_T + 3), os.environ.get("OUTF", "")), "OUT", data=rng(o, 4), addr=[VO])

    def r_check(t):
        m = [TQ, TQ + 1]
        b = LDT[t]
        for c in range(2):
            g.valu("v_max3_u32 %s, %s, %s, %s" % (vr(m[c]), vr(b + 16 * c), vr(b + 16 * c + 1), vr(b + 16 * c + 2)), dst=[m[c]], src=rng(b + 16 * c, 3))
        for k in range(3, 15, 2):
            for c in range(2):
                x = b + 16 * c + k
                g.valu("v_max3_u32 %s, %s, %s, %s" % (vr(m[c]), vr(m[c]), vr(x), vr(x + 1)), dst=[m[c]], src=[m[c], x, x + 1])
        g.valu("v_max3_u32 %s, %s, %s, %s" % (vr(m[0]), vr(m[0]), vr(b + 15), vr(b + 31)), dst=[m[0]], src=[m[0], b + 15, b + 31])
        g.valu("v_max_u32 %s, %s, %s" % (vr(m[0]), vr(m[0]), vr(m[1])), dst=[m[0]], src=m)
        g.valu("v_cmp_eq_u32 vcc, -1, %s" % vr(m[0]), src=[m[0]])
        g.nop(1)
        g.s("s_cbranch_vccnz retry%d" % t)

    def flags_ok(pl):
        g.valu("v_cmp_eq_u32 vcc, %s, %s" % (vr(pl), vr(F0)), src=[pl, F0])
        g.valu("v_cmp_eq_u32 %s, %s, %s" % (sr(S_M, 2), vr(pl + 1), vr(F0 + 1)), src=[pl + 1, F0 + 1])
        g.s("s_mov_b64 exec, -1")
        g.s("s_and_b32 %s, %s, vcc_lo" % (sr(S_M), sr(S_M)))
        g.s("s_and_b32 %s, %s, 0xff" % (sr(S_M + 1), sr(S_M)))
        g.s("s_cmp_eq_u32 %s, 0xff" % sr(S_M + 1))

    NOFAST = E("NOFAST", 1)
    if not NOFAST:
        r_loads(0)
        r_loads(1)
        if T2POS == 0:
            r_loads(2)
        g.wait_vm("PP")
        flags_ok(PP)
        if FORCE_AB & 512:
            g.s("s_bitcmp1_b32 s2, 4")
        g.s("s_cbranch_scc0 slow")
        if FORCE_AB & 255:
            g.s("s_and_b32 %s, s2, %d" % (sr(S_T), FORCE_AB & 255))
            g.s("s_cmp_eq_u32 %s, 0" % sr(S_T))
            g.s("s_cbranch_scc1 slow")
        if FORCE_AB & 256:
            g.s("s_branch slow")
        g.wait_vm("R0")
        flag_store(S_FS, "FS")
        stamp(g)
        for t in range(3):
            g.wait_vm("R%d" % t)
            g.label("chk%d" % t)
            g.nop(1)
            r_check(t)
            if t == 0 and T2POS == 1:
                r_loads(2)
            r_sum(t)
            if t == 0 and T2POS == 2:
                r_loads(2)
            if t == 2:
                stamp(g)
            r_out(t)
        stamp(g)
        stamp_flush(g)
        g.s("s_branch after")
        for t in range(3):
            g.label("retry%d" % t)
            g.vmq = []
            r_loads(t)
            g.s("s_add_u32 %s, %s, 1" % (sr(S_CNT), sr(S_CNT)))
            g.s("s_cmp_lt_u32 %s, %d" % (sr(S_CNT), RETRY))
            g.waitcnt(vm=0)
            g.vmq = []
            g.s("s_cbranch_scc1 chk%d" % t)
            if t < 2:
                g.s("s_branch slow")
    S_DONE, S_ACC, S_NEW = S_CNT, S_T + 6, S_T + 7

    def poll_load(soff):
        g.vload("buffer_load_dwordx2 %s, %s, %s, %s offen sc1" % (vr(PL, 2), vr(VF), sr(SRD_WS, 4), sr(soff)), "PL", dst=[PL, PL + 1], addr=[VF])

    def poll(soff):
        poll_load(soff)
        g.waitcnt(vm=0)
        g.vmq = []
        flags_ok(PL)

    def elapsed():
        g.s("s_memrealtime %s" % sr(S_T + 4, 2))
        g.waitcnt(lg=0)
        g.s("s_sub_u32 %s, %s, %s" % (sr(S_T + 4), sr(S_T + 4), sr(S_NONCE)))

    def job_init():
        for k in range(24):
            vop(g, "v_mov_b32 %s, 0" % vr(RD + k), RD + k)
        g.s("s_mov_b32 %s, 0" % sr(S_DONE))
        g.s("s_mov_b32 %s, 0" % sr(S_ACC))
    g.label("slow")
    if E("PFIRST", 0):
        poll_load(S_XS + 1)
    job_init()
    g.waitcnt(vm=0)
    g.vmq = []
    flag_store(S_FS, "FS")
    if NOFAST:
        stamp(g)
    if FORCE_AB & 255:
        g.s("s_and_b32 %s, s2, %d" % (sr(S_T), FORCE_AB & 255))
        g.s("s_cmp_eq_u32 %s, 0" % sr(S_T))
        g.s("s_cbranch_scc1 giveup")
    if FORCE_AB & 256:
        g.s("s_branch giveup")
    g.s("s_branch %s" % ("process" if E("PFIRST", 0) else "poll"))
    g.label("job")
    job_setup(g, lambda o: o())
    job_init()
    g.label("poll")
    poll_load(S_XS + 1)
    g.waitcnt(vm=0)
    g.vmq = []
    g.label("process")
    flags_ok(PL)
    g.s("s_andn2_b32 %s, %s, %s" % (sr(S_NEW), sr(S_M + 1), sr(S_DONE)))
    g.s("s_cbranch_scc0 noload")
    for src in range(8):
        g.s("s_bitcmp1_b32 %s, %d" % (sr(S_NEW), src))
        g.s("s_cbranch_scc0 nold%d" % src)
        g.s("s_add_u32 %s, %s, %d" % (sr(S_T), sr(S_XS + 2), src * 12288))
        for t in range(3):
            d = LDT[t] + src * 4
            g.vload("buffer_load_dwordx4 %s, %s, %s, %s offen offset:%d sc1" % (vr(d, 4), vr(L16), sr(SRD_WS, 4), sr(S_T), t * 1024), "R", dst=rng(d, 4), addr=[L16])
        g.label("nold%d" % src)
    g.vmq = []
    g.label("noload")
    g.s("s_cmp_eq_u32 %s, 0" % sr(S_ACC))
    g.s("s_cbranch_scc1 noacc")
    for src in range(8):
        g.s("s_bitcmp1_b32 %s, %d" % (sr(S_ACC), src))
        g.s("s_cbranch_scc0 noac%d" % src)
        for t in range(3):
            for h in range(2):
                r = RD + (t * 2 + h) * 4
                g.mfma(r, AC + 2 - 2 * h, LDT[t] + src * 4, r)
        g.label("noac%d" % src)
    g.label("noacc")
    g.s("s_or_b32 %s, %s, %s" % (sr(S_DONE), sr(S_DONE), sr(S_NEW)))
    g.s("s_mov_b32 %s, %s" % (sr(S_ACC), sr(S_NEW)))
    g.s("s_cmp_lg_u32 %s, 0xff" % sr(S_DONE))
    g.s("s_cbranch_scc1 more")
    g.s("s_cmp_eq_u32 %s, 0" % sr(S_ACC))
    g.s("s_cbranch_scc1 finish")
    if NOFAST:
        stamp(g)
    g.waitcnt(vm=0)
    g.s("s_mov_b32 %s, 0" % sr(S_NEW))
    g.s("s_branch noload")
    g.label("more")
    g.s("s_cmp_lg_u32 %s, 0" % sr(S_NEW))
    g.s("s_cbranch_scc1 poll")
    g.s("s_sleep %d" % SLEEP)
    elapsed()
    g.s("s_cmp_lt_i32 %s, %d" % (sr(S_T + 4), X_AB))
    g.s("s_cbranch_scc1 poll")
    g.label("giveup")
    g.s("s_and_b32 %s, %s, 1" % (sr(S_T), sr(S_RO)))
    g.s("s_lshl_b32 %s, %s, 2" % (sr(S_T), sr(S_T)))
    g.s("s_add_u32 %s, %s, %s" % (sr(S_T), sr(S_T), sr(S_RR)))
    g.s("s_lshl_b32 %s, %s, 3" % (sr(S_T), sr(S_T)))
    g.s("s_add_u32 %s, %s, 64" % (sr(S_T), sr(S_T)))
    g.s("s_add_u32 %s, %s, %s" % (sr(S_T), sr(S_T), sr(S_XS + 1)))
    flag_store(S_T, "FS")
    g.waitcnt(vm=0)
    g.vmq = []
    poll(S_XS + 1)
    g.s("s_cbranch_scc1 process")
    g.s("s_branch after")
    g.label("finish")
    g.nop(10)
    for t in range(3):
        r_out(t)
    if NOFAST:
        stamp(g)
        stamp_flush(g)
    g.label("after")
    g.nop(8)
    g.s("s_cmp_lg_u32 %s, 0" % sr(S_PHASE))
    g.s("s_cbranch_scc1 next")
    g.s("s_mov_b32 %s, 1" % sr(S_PHASE))
    g.waitcnt(vm=3 + (1 if STAMP else 0))
    elapsed()
    g.s("s_cmp_lt_i32 %s, %d" % (sr(S_T + 4), X_CK))
    if not FORCE_AB:
        g.s("s_cbranch_scc1 k_end")
    poll(S_XS)
    g.s("s_lshr_b32 %s, %s, 8" % (sr(S_PEND), sr(S_M)))
    g.s("s_and_b32 %s, %s, 0xff" % (sr(S_PEND), sr(S_PEND)))
    g.s("s_cmp_eq_u32 %s, 0xff" % sr(S_M + 1))
    g.s("s_cselect_b32 %s, %s, 0" % (sr(S_PEND), sr(S_PEND)))
    g.label("next")
    g.s("s_cmp_eq_u32 %s, 0" % sr(S_PEND))
    g.s("s_cbranch_scc1 k_end")
    g.s("s_ff1_i32_b32 %s, %s" % (sr(S_T), sr(S_PEND)))
    g.s("s_bitset0_b32 %s, %s" % (sr(S_PEND), sr(S_T)))
    g.s("s_and_b32 %s, %s, 3" % (sr(S_RR), sr(S_T)))
    g.s("s_lshr_b32 %s, %s, 2" % (sr(S_T), sr(S_T)))
    g.s("s_lshl_b32 %s, s3, 1" % sr(S_RO))
    g.s("s_add_u32 %s, %s, %s" % (sr(S_RO), sr(S_RO), sr(S_T)))
    g.waitcnt(vm=0)
    g.s("s_branch job")
    g.label("k_end")


def body():
    _stamp_n[0] = 0
    g0 = prologue()
    n = len(CLS)
    if n > 1:
        if CLF == "b":
            g0.s("s_and_b32 %s, %s, %d" % (sr(S_TYPE), sr(S_B), n - 1))
        else:
            g0.s("s_add_u32 %s, %s, %s" % (sr(S_TYPE), sr(S_B), sr(S_HG)))
            g0.s("s_and_b32 %s, %s, %d" % (sr(S_TYPE), sr(S_TYPE), n - 1))
        for c in range(1, n):
            g0.s("s_cmp_eq_u32 %s, %d" % (sr(S_TYPE), c))
            g0.s("s_cbranch_scc1 cls%d" % c)
    n0 = _stamp_n[0]
    txt = []
    for c in range(n):
        _stamp_n[0] = n0
        g = Gen()
        g.label("cls%d" % c)
        part1(g, CLS[c])
        if c:
            g.s("s_branch join")
        txt.append(g.text())
    g = Gen()
    g.vmq = ["V0", "V1", "V2", "TCH", "VD"]
    g.label("join")
    part2(g)
    g.raw("s_endpgm")
    return g0.text() + txt[0] + g.text() + "".join(txt[1:]) + "code_end:\n"


def main():
    out = "; fused attention: q-proj + attention + o-proj partial per workgroup, cross-workgroup bf16 reduction\n"
    out += "; @launch kernel=attn_kernel grid=(256,1,1) block=(256,1,1) lds=%d\n" % LDS_BYTES
    out += '.amdgcn_target "amdgcn-amd-amdhsa--gfx950"\n.text\n'
    out += ".globl attn_kernel\n.p2align 8\n.type attn_kernel,@function\nattn_kernel:\n"
    out += body()
    out += '.section .rodata,"a"\n.p2align 6\n.amdhsa_kernel attn_kernel\n'
    out += "  .amdhsa_next_free_vgpr 512\n  .amdhsa_next_free_sgpr 102\n  .amdhsa_accum_offset 256\n"
    out += "  .amdhsa_group_segment_fixed_size 0\n  .amdhsa_kernarg_size 104\n  .amdhsa_user_sgpr_count 2\n"
    out += "  .amdhsa_user_sgpr_kernarg_segment_ptr 1\n  .amdhsa_system_sgpr_workgroup_id_x 1\n.end_amdhsa_kernel\n"
    path = sys.argv[1] if len(sys.argv) > 1 else "cdna_kernels/%s.s" % NAME
    open(path, "w").write(out)
    print("wrote", path, len(out), "bytes; stamps", _stamp_n[0], "late", LATE[:12])
    if E("INFO", 0):
        for i in INFO:
            print(i)


main()
```

```python
import sys, os
sys.path.insert(0, os.path.dirname(os.path.abspath(__file__)))
from asmgen2 import Gen, vr, sr

NAME = "concat_heads__gqa_block_cached__gqa_block_cached__near_ridge"
WS_BYTES = 268435456
E = lambda k, d: int(os.environ.get(k, str(d)))
STAMP = E("STAMP", 0)
STAMP_BASE = 200 * 1024 * 1024
NRAW = E("NRAW", 3)
WQT = E("WQT", 1)
WOT = E("WOT", 1)
XBAR = dict((int(a), int(b)) for a, b in (t.split(":") for t in os.environ.get("XBAR", "0:1,4:3,8:5,12:7").split(",")))
VL = dict((int(t[0]), int(t[2])) for t in os.environ.get("VL", "0h0,1h1,2h2").split(",") if t)
PDEF = os.environ.get("PTOK", "x0,w0,x1,w1,t")
QB = os.environ.get("QB", "w2,x2,x3,w3,w4,w5,w6,x4,x5,w7,w8,w9,w10,x6,x7,w11,w12,w13,w14,w15,V0h0,V1h1")
CLS = []
for c in os.environ.get("KP", "5,9,13|6,10,14|7,11,15|8,12,15").split("|"):
    kp = [int(t) for t in c.split(",")]
    q = []
    for tok in QB.split(","):
        q.append(tok)
        for p_ in range(3):
            if tok == "w%d" % kp[p_]:
                q.append("K%dh%d" % (p_, p_))
    CLS.append({"P": PDEF.split(","), "Q": q})
if os.environ.get("QTOK"):
    CLS = [{"P": PDEF.split(","), "Q": c.split(",")} for c in os.environ["QTOK"].split("|")]
RM = E("RM", 14)
BUD, CC, CW, CAP = E("BUD", 58), E("CC", 65), E("CW", 33), E("CAP", 100)
SM2 = E("SM2", 0)
POST = {}
for it in os.environ.get("POST", "0=V2h2;3=T;4=Y").split(";"):
    k, v = it.split("=")
    POST[int(k)] = v.split(",")
CLF = os.environ.get("CLF", "b")
FORCE_AB = E("FORCE_AB", 0)
POLL_MAX = E("POLL_MAX", 300)
SLEEP = E("SLEEP", 2)
NT = os.environ.get("NT", " nt")
PART = 0
FLG = 64 * 1024 * 1024
FC = 0x5A3C96E1
FLGP = FLG + 65536
X_AB = E("X_AB", 40000)
X_CK = E("X_CK", 20000)
RETRY = E("RETRY", 40)
R2 = [int(c) for c in os.environ.get("R2", "11211212")]
PFS = E("PFS", 1)
PPS = E("PPS", 11)
T2POS = E("T2POS", 1)
EXP, EXS, EXL = E("EXP", 0), E("EXS", 4), E("EXL", 11)

SRD_X, SRD_K, SRD_V, SRD_W, SRD_WS, SRD_WO, SRD_OUT, SRD_DBG = 20, 24, 28, 32, 36, 40, 44, 48
SE = 51
S_PLO, S_PHI = 60, 61
S_BH, S_HG, S_B, S_BLK, S_GRP, S_TYPE, S_C = 62, 63, 64, 65, 66, 67, 68
S_W0 = 70
S_T = 72
S_NONCE, S_RO, S_RR, S_PEND, S_PHASE, S_CNT = 80, 81, 82, 83, 84, 85
S_WI, S_XR = 80, 82
ROT = E("ROT", 2)
S_XS = 86
S_XM = 89
S_PB = 89
S_VL = 92
S_M = 94
S_ST = 96

RAW = 0
WT = 96 if NRAW == 3 else 224
WT8 = 64
KF = 128
VW, XB, VK, VV, VWO, L16, VOW, L16H = 240, 241, 245, 246, 247, 248, 249, 250
VOW2 = XB
TQ = 251
XA = TQ
WTA = 112 if NRAW == 3 else A0 + 254 if False else 112
VR2 = 0
VKD, VKR = 113, 117
QF = 32
SB = 64
PT = 112
TM = 124
OB = 64
TT = 32
ZQ = 224
A0 = 256
ACC = A0
BF = A0 + 192
VRA = A0 + 192

L_V = 98304
L_MISC = 34816
LDS_BYTES = 163840

_stamp_n = [0]


def rng(a, n):
    return list(range(a, a + n))


def vop(g, text, dst, src=()):
    g.valu(text, dst=[dst] if isinstance(dst, int) else dst, src=src)


SV = 236


def stamp(g, have=False):
    if not STAMP:
        return
    n = _stamp_n[0]
    _stamp_n[0] += 1
    if not have:
        g.s("%s %s" % (os.environ.get("CLK", "s_memrealtime"), sr(S_ST, 2)))
        g.waitcnt(lg=0)
        g.lgq = []
    g.valu("v_writelane_b32 %s, %s, %d" % (vr(SV), sr(S_ST), n), dst=[SV])
    g.valu("v_writelane_b32 %s, %s, %d" % (vr(SV + 1), sr(S_ST + 1), n), dst=[SV + 1])


def stamp_flush(g):
    if not STAMP:
        return
    g.s("s_lshl_b32 %s, s2, 8" % sr(S_ST + 2))
    g.s("s_add_u32 %s, %s, %d" % (sr(S_ST + 2), sr(S_ST + 2), STAMP_BASE))
    g.s("s_mul_i32 %s, s3, 1048576" % sr(S_ST + 3))
    g.s("s_add_u32 %s, %s, %s" % (sr(S_ST + 2), sr(S_ST + 2), sr(S_ST + 3)))
    vop(g, "v_lshrrev_b32 %s, 1, %s" % (vr(TQ), vr(L16)), TQ, [L16])
    g.s("s_mov_b64 exec, 0xffffffff")
    g.vstore("buffer_store_dwordx2 %s, %s, %s, %s offen" % (vr(SV, 2), vr(TQ), sr(SRD_WS, 4), sr(S_ST + 2)), "STAMP", data=[SV, SV + 1], addr=[TQ])
    g.s("s_mov_b64 exec, -1")


def make_srd(g, srd, ptr, nbytes):
    g.s("s_mov_b32 %s, %s" % (sr(srd), sr(ptr)))
    g.s("s_and_b32 %s, %s, 0xffff" % (sr(srd + 1), sr(ptr + 1)))
    g.s("s_mov_b32 %s, %d" % (sr(srd + 2), nbytes))
    g.s("s_mov_b32 %s, 0x00020000" % sr(srd + 3))


def acc1(j, u):
    return ACC + (u * 8 + j) * 4


def acc2(j, u):
    return ACC + (u * 8 + j) * 4


SL2 = [32, 0, 64, KF, KF + 32]


def raw2(s, e):
    return SL2[s % 5] + e * 4


CYC = [KF + 64, 32, 64, 0, KF, KF + 32]


def raw(s, e):
    return CYC[s % 6] + e * 4


def bf(s, u):
    return BF + ((s % 2) * 6 + u) * 4


def perm_ops(g, rbase, j, dst):
    ops = []
    for m in range(4):
        a, b = rbase + (2 * m) * 4 + (j >> 1), rbase + (2 * m + 1) * 4 + (j >> 1)
        sel = S_PHI if j & 1 else S_PLO

        def op(a=a, b=b, d=dst + m, sel=sel):
            g.valu("v_perm_b32 %s, %s, %s, %s" % (vr(d), vr(b), vr(a), sr(sel)), dst=[d], src=[a, b])
        ops.append(op)
    return ops


def merge(main, fill):
    n = len(main)
    k = 0
    for i, m in enumerate(main):
        m()
        upto = (len(fill) * (i + 1) + n - 1) // n
        while k < upto:
            fill[k]()
            k += 1


def units(tag, ops, cost):
    out, cur = [], []
    for o in ops:
        cur.append(o)
        if getattr(o, "is_load", False):
            out.append([tag, cost, cur])
            cur = []
    if cur:
        out.append([tag, 0, cur])
    return out


def gemm1(g, cl, b_reads, tail):
    acc = acc1
    pend = []
    rdone = set()
    kbar = min(k - 1 for k in XBAR if k - 1 >= 5)
    vbar = min(k - 1 for k in XBAR if k - 1 >= 11)
    for tok in cl["Q"]:
        if tok[0] == "@":
            pend.append([tok, 0, []])
        else:
            pend += units(tok, tok_ops(g, tok), CW if tok[0] == "w" or (ROT == 2 and tok[0] == "x" and int(tok[1]) >= 4) else CC)
    credit = [0]
    kiss = {}
    INFO.append(kiss)

    def ok(tag, s, j):
        if tag[0] == "@":
            return s >= int(tag[1:])
        if tag[0] == "w":
            return (s, j) >= (int(tag[1:]) - 6, 7)
        if tag[0] == "K" and tag[3] == "2":
            return (s, j) >= (kbar, 4)
        if tag[0] == "V" and tag[3] == "2":
            return (s, j) >= (vbar, 4)
        if tag[0] == "V":
            return tag[3] in rdone
        return True

    def take(s, j):
        out = []
        credit[0] = min(CAP, credit[0] + BUD)
        while pend and ok(pend[0][0], s, j) and credit[0] >= pend[0][1]:
            t, c, o = pend.pop(0)
            credit[0] -= c
            out += o
            kiss[t] = 8 * s + j
        return out

    def upto(tag, s, j):
        out = []
        while any(t == tag for t, _, _ in pend):
            t, c, o = pend.pop(0)
            assert t[0] == "@" or ok(t, s, j), (t, tag, s, j)
            credit[0] -= c
            out += o
            kiss[t] = 8 * s + j
            LATE.append((tag, t, s, j))
        return out
    side = []

    rnext = [0]

    def side_add(s):
        while rnext[0] < 3:
            p_ = rnext[0]
            tok = "R%dh%d" % (p_, p_)
            if s < 16 and (s < 11 + p_ or any(t == "K" + tok[1:] for t, _, _ in pend) or 8 * s < kiss["K" + tok[1:]] + RM):
                break
            side.append(lambda tok=tok, s=s: run(upto("K" + tok[1:], s, 0)))
            side.extend(tok_ops(g, tok))
            side.append(lambda tok=tok: rdone.add(tok[3]))
            rnext[0] += 1
            INFO.append((tok, s))

    def side_take(n):
        out = []
        while side and n > 0:
            o = side.pop(0)
            out.append(o)
            if getattr(o, "is_load", False):
                n -= 1
        while side and not getattr(side[0], "is_load", False) and len(side) == 1:
            out.append(side.pop(0))
        return out
    g.wait_vm("W0")
    for op in perm_ops(g, raw(0, 0), 0, WT):
        op()
    for s in range(15):
        side_add(s)
        for j in range(8):
            idx = 8 * s + j
            fill = []
            if j == 7:
                fill += upto("w%d" % (s + 1), s, j)
                fill.append(lambda s=s: g.wait_vm("W%d" % (s + 1)))
                fill += perm_ops(g, raw(s + 1, 0), 0, (WT8 if s == 14 else WT + ((idx + 1) % 4) * 4))
            else:
                fill += perm_ops(g, raw(s, 0), j + 1, WT + ((idx + 1) % 4) * 4)
            fill += take(s, j)
            if j == 3 and (s + 1) in XBAR:
                tags = ["X%d" % k for k in range(XBAR[s + 1] + 1)]
                for t in tags:
                    fill += upto(t.lower(), s, j)
                fill.append(lambda tags=tags: g.wait_vm(tags))
                fill.append(g.barrier)
            if 3 <= j <= 5:
                fill += b_reads(s + 1)[(j - 3) * 2:(j - 3) * 2 + 2]
            elif j < 3:
                fill += side_take(3)
            if j == 0:
                g.wait_lg("B%d" % s)
                if STAMP == 2 and s > 0:
                    stamp(g)
            a = WT + (idx % 4) * 4
            main = [(lambda u=u: g.mfma(acc(j, u), a, bf(s, u), None if s == 0 else acc(j, u))) for u in range(6)]
            merge(main, fill)
    s = 15
    side_add(15)
    g.wait_lg("B15")
    carry = []
    for n, u in enumerate(range(6)):
        main = [(lambda j=j: g.mfma(acc(j, u), WT8 + j * 4, bf(s, u), acc(j, u))) for j in range(8)]
        if n == 0:
            for j in range(8):
                main[j]()
                if j < 7:
                    for op in perm_ops(g, raw(s, 0), j + 1, WT8 + (j + 1) * 4):
                        op()
        else:
            fill = side_take(4)
            merge(main[:1], fill)
            fill = take(15, n) + take(15, n) + carry[:20]
            carry = carry[20:]
            merge(main[1:], fill)
        carry += tail(u)
    side_add(16)
    run(side)
    rest = []
    for t, c, o in pend:
        assert t[0] == "@" or ok(t, 16, 0), t
        rest += o
    return rest, carry


LATE = []
INFO = []


def mark(ops):
    for o in ops:
        names = o.__code__.co_names
        if "vload" in names:
            o.is_load = True
    return ops


def q_conv(g, u):
    ops = []
    for i in range(4):
        for m in range(4):
            t0, t1 = TQ + (m % 2) * 2, TQ + (m % 2) * 2 + 1
            s0, s1 = acc1(2 * m, u) + i, acc1(2 * m + 1, u) + i
            d = QF + (u % 2) * 16 + i * 4 + m
            ops.append(lambda t=t0, s=s0: g.valu("v_accvgpr_read_b32 %s, %s" % (vr(t), vr(s)), dst=[t], src=[s]))
            ops.append(lambda t=t1, s=s1: g.valu("v_accvgpr_read_b32 %s, %s" % (vr(t), vr(s)), dst=[t], src=[s]))
            ops.append(lambda d=d, a=t0, b=t1: g.valu("v_cvt_pk_bf16_f32 %s, %s, %s" % (vr(d), vr(a), vr(b)), dst=[d], src=[a, b]))
    return ops


def sacc(u, kt):
    return SB + (u % 2) * 24 + kt * 4


def pfrag(u, pp):
    return ACC + u * 32 + pp * 4


ONES = 224


def psum(u):
    return ACC + u * 32 + 12


def softmax_ops(g, u):
    ops = []
    A = ops.append
    vals = [sacc(u, kt) + r for kt in range(6) for r in range(4)]
    m, tmp, r = TM, TM + 1, TM + 2
    m2 = TM + 3

    def V(text, dst, src, **kw):
        A(lambda: g.valu(text, dst=dst, src=src, **kw))
    V("v_max3_f32 %s, %s, %s, %s" % (vr(m), vr(vals[0]), vr(vals[1]), vr(vals[2])), [m], vals[0:3])
    V("v_max3_f32 %s, %s, %s, %s" % (vr(m2), vr(vals[3]), vr(vals[4]), vr(vals[5])), [m2], vals[3:6])
    k = 6
    while k < 24:
        mm = m if (k // 2) % 2 else m2
        V("v_max3_f32 %s, %s, %s, %s" % (vr(mm), vr(mm), vr(vals[k]), vr(vals[k + 1])), [mm], [mm, vals[k], vals[k + 1]])
        k += 2
    V("v_max_f32 %s, %s, %s" % (vr(m), vr(m), vr(m2)), [m], [m, m2])

    def xl(x, op):
        for sw in ("v_permlane32_swap_b32", "v_permlane16_swap_b32"):
            V("v_mov_b32 %s, %s" % (vr(tmp), vr(x)), [tmp], [x])
            V("%s %s, %s" % (sw, vr(x), vr(tmp)), [x, tmp], [x, tmp], permlane=True)
            V("%s %s, %s, %s" % (op, vr(x), vr(x), vr(tmp)), [x], [x, tmp])
    xl(m, "v_max_f32")
    V("v_mul_f32 %s, %s, %s" % (vr(m), sr(S_C), vr(m)), [m], [m])
    for v in vals:
        V("v_fma_f32 %s, %s, %s, -%s" % (vr(v), vr(v), sr(S_C), vr(m)), [v], [v, m])
    for v in vals:
        V("v_exp_f32 %s, %s" % (vr(v), vr(v)), [v], [v], trans=True)
    for pp in range(3):
        for h in range(4):
            a = sacc(u, 2 * pp + (h >> 1)) + (h & 1) * 2
            d = PT + pp * 4 + h
            V("v_cvt_pk_bf16_f32 %s, %s, %s" % (vr(d), vr(a), vr(a + 1)), [d], [a, a + 1])
    for k in range(12):
        d = pfrag(u, 0) + k
        V("v_accvgpr_write_b32 %s, %s" % (vr(d), vr(PT + k)), [d], [PT + k])
    for pp in range(3):
        A(lambda pp=pp: g.mfma(psum(u), ONES, PT + pp * 4, None if pp == 0 else psum(u)))
    return ops


S_K2, S_KD, S_JUNK, S_TB = 4, 5, 13, 6


def k_dma(g, part, half):
    ops = []
    for n8 in range(8):
        n = part * 8 + n8
        ops.append(lambda n=n: g.s("s_add_u32 %s, %s, %d" % (sr(S_T + 1), sr(S_BH), n * 1024)))
        if half == 2:
            ops.append(lambda n8=n8: g.s("s_add_u32 m0, %s, %d" % (sr(S_K2), n8 * 1024), m0=True))
        else:
            ops.append(lambda n8=n8: g.s("s_add_u32 m0, %s, %d" % (sr(S_VL), half * 8192 + n8 * 1024), m0=True))
        ops.append(lambda n=n: g.vload("buffer_load_dwordx4 %s, %s, %s offen%s lds" % (vr(VKD + (n & 3)), sr(SRD_K, 4), sr(S_T + 1), NT), "KD%d" % part, addr=[VKD + (n & 3)], lds=True))
    return ops


def k_read(g, part, half):
    ops = [lambda: g.wait_vm("KD%d" % part)]
    if half == 2:
        for i in range(4):
            ops.append(lambda i=i: vop(g, "v_subrev_u32 %s, %s, %s" % (vr(VKR + i), sr(S_KD), vr(VKR + i)), VKR + i, [VKR + i]))
    for k2 in range(2):
        for i in range(4):
            d = KF + ((part * 2 + k2) * 4 + i) * 4
            o = lambda d=d, i=i, k2=k2: g.dsread("ds_read_b128 %s, %s offset:%d" % (vr(d, 4), vr(VKR + i), (half & 1) * 8192 + k2 * 4096), "KR%d" % half, dst=rng(d, 4), addr=[VKR + i])
            o.is_load = True
            ops.append(o)
    return ops


def vraw(pp, e):
    return (VRA + pp * 32 + e * 4) if pp < 2 else (VR2 + e * 4)


def v_loads(g, pp_):
    ops = []
    for pp in (pp_,):
        for e in range(8):
            if e % 4 == 0:
                ops.append(lambda pp=pp, e=e: g.s("s_add_u32 %s, %s, %d" % (sr(S_T + 1), sr(S_BH), pp * 8192 + (e >> 2) * 4096)))
            d = vraw(pp, e)
            ops.append(lambda d=d, e=e, pp=pp: g.vload("buffer_load_dwordx4 %s, %s, %s, %s offen offset:%d%s" % (vr(d, 4), vr(VV), sr(SRD_V, 4), sr(S_T + 1), (e & 3) * 256, NT),
                                                       "V%d" % pp, dst=rng(d, 4), addr=[VV]))
    return ops


L_V2 = 36864


def v_dma(g, pp, half):
    ops = [lambda: g.wait_lg("KR%d" % half)] if half < 2 else []
    for e in range(8):
        ops.append(lambda pp=pp, e=e: g.s("s_add_u32 %s, %s, %d" % (sr(S_T + 1), sr(S_BH), pp * 8192 + e * 1024)))
        if half < 2:
            ops.append(lambda pp=pp, e=e: g.s("s_add_u32 m0, %s, %d" % (sr(S_VL), (half * 8 + e) * 1024), m0=True))
        else:
            ops.append(lambda pp=pp, e=e: g.s("s_add_u32 m0, %s, %d" % (sr(S_K2), L_V2 + e * 1024), m0=True))
        a = VK if e & 1 else VV
        ops.append(lambda a=a: g.vload("buffer_load_dwordx4 %s, %s, %s offen%s lds" % (vr(a), sr(SRD_V, 4), sr(S_T + 1), NT), "VD", addr=[a], lds=True))
    return ops


def wo_touch(g):
    ops = []
    A = ops.append
    A(lambda: g.s("s_lshl_b32 %s, %s, 2" % (sr(S_T + 3), sr(S_B))))
    A(lambda: g.s("s_add_u32 %s, %s, s3" % (sr(S_T + 3), sr(S_T + 3))))
    A(lambda: g.s("s_lshl_b32 %s, %s, 13" % (sr(S_T + 3), sr(S_T + 3))))
    A(lambda: g.s("s_lshl_b32 %s, %s, 19" % (sr(S_T + 4), sr(S_HG))))
    A(lambda: g.s("s_add_u32 %s, %s, %s" % (sr(S_T + 3), sr(S_T + 3), sr(S_T + 4))))
    A(lambda: vop(g, "v_lshlrev_b32 %s, 3, %s" % (vr(TQ + 4), vr(L16)), TQ + 4, [L16]))
    A(lambda: g.vload("buffer_load_dword %s, %s, %s, %s offen" % (vr(TQ + 4), vr(TQ + 4), sr(SRD_WO, 4), sr(S_T + 3)), "TCH", dst=[TQ + 4], addr=[TQ + 4]))
    return ops


def w1_loads(g):
    def f(s):
        ops = []
        if s > 0:
            if ROT:
                ops.append(lambda: vop(g, "v_add_u32 %s, %s, %s" % (vr(VW), sr(S_WI + (s & 1)), vr(VW)), VW, [VW]))
                ops.append(lambda: vop(g, "v_and_b32 %s, 0x3fffff, %s" % (vr(VW), vr(VW)), VW, [VW]))
            else:
                ops.append(lambda: vop(g, "v_add_u32 %s, 0x40000, %s" % (vr(VW), vr(VW)), VW, [VW]))
        for e in range(8):
            d = raw(s, e)
            so = "0" if e == 0 else sr(SE + e)
            ops.append(lambda d=d, so=so, s=s: g.vload("buffer_load_dwordx4 %s, %s, %s, %s offen" % (vr(d, 4), vr(VW), sr(SRD_W, 4), so),
                                                       "W%d" % s, dst=rng(d, 4), addr=[VW]))
        return mark(ops)
    return f


def b1_reads(g):
    def f(s):
        ops = []
        sp = s >> 1
        a = XB + (s & 1) + 2 * (sp >> 2)
        for u in range(6):
            d = bf(s, u)
            ops.append(lambda d=d, a=a, off=((sp & 3) * 12 + 2 * u) * 1024, s=s:
                       g.dsread("ds_read_b128 %s, %s offset:%d" % (vr(d, 4), vr(a), off), "B%d" % s, dst=rng(d, 4), addr=[a]))
        return ops
    return f


def w2_loads(g):
    def f(s):
        ops = []
        if E("NOW2", 0) and s >= 5:
            return ops
        h, i = s >> 2, s & 3
        base = h * 131072 + i * 16384
        for e in range(8):
            if e % 4 == 0:
                ops.append(lambda e=e: g.s("s_mov_b32 %s, %d" % (sr(S_T + 2), base + (e >> 2) * 8192)))
            d = raw2(s, e)
            if E("X2T", 0):
                for hf in range(2):
                    ops.append(lambda d=d + 2 * hf, e=e, s=s, hf=hf: g.vload("buffer_load_dwordx2 %s, %s, %s, %s offen offset:%d" % (vr(d, 2), vr(VWO), sr(SRD_WO, 4), sr(S_T + 2), (e & 3) * 1024 + hf * 128),
                                                                         "W%d" % s, dst=rng(d, 2), addr=[VWO]))
                continue
            ops.append(lambda d=d, e=e, s=s: g.vload("buffer_load_dwordx4 %s, %s, %s, %s offen offset:%d" % (vr(d, 4), vr(VWO), sr(SRD_WO, 4), sr(S_T + 2), (e & 3) * 1024),
                                                     "W%d" % s, dst=rng(d, 4), addr=[VWO]))
        return mark(ops)
    return f


def b2_reads(g):
    def f(s):
        ops = []
        h, i = s >> 2, s & 3
        for u in range(6):
            d = bf(s, u)
            n = i * 6 + u
            a, off = (L16H, h * 16384 + n * 1024) if n < 16 else (L16, h * 8192 + (n - 16) * 1024)
            ops.append(lambda d=d, a=a, off=off, s=s:
                       g.dsread("ds_read_b128 %s, %s offset:%d" % (vr(d, 4), vr(a), off), "B%d" % s, dst=rng(d, 4), addr=[a]))
        return ops
    return f


def b2_read1(g, s, u, d, tag):
    h, i = s >> 2, s & 3
    n = i * 6 + u
    a, off = (L16H, h * 16384 + n * 1024) if n < 16 else (L16, h * 8192 + (n - 16) * 1024)
    return lambda: g.dsread("ds_read_b128 %s, %s offset:%d" % (vr(d, 4), vr(a), off), tag, dst=rng(d, 4), addr=[a])


def gemm2(g, w_loads, b_reads, tail, extra):
    pend = []

    def add(tag, ops):
        pend.extend((tag, o) for o in ops)

    def take(n):
        out = []
        while pend and n > 0:
            t, o = pend.pop(0)
            out.append(o)
            if getattr(o, "is_load", False):
                n -= 1
        return out

    def upto(tag):
        out = []
        while any(t == tag for t, _ in pend):
            out.append(pend.pop(0)[1])
        return out
    TS = {13: KF + 64, 14: SL2[11 % 5], 15: SL2[12 % 5]}
    bq = lambda n, k: BF + (((n * 3 + 6) % 12) + k) * 4
    for t in (2, 3, 4):
        add("W%d" % t, w_loads(t))
    g.wait_vm("W0")
    for op in perm_ops(g, raw2(0, 0), 0, WT):
        op()
    xq = []
    for s in range(13):
        xq += extra(s)
        if s == 12:
            xq += upto("W13") + [lambda: g.wait_vm("W13")]
            for j in range(8):
                xq += perm_ops(g, raw2(13, 0), j, TS[13] + j * 4)
        for j in range(8):
            idx = 8 * s + j
            fill = []
            if j == 7:
                if s < 12:
                    fill += upto("W%d" % (s + 1))
                    fill.append(lambda s=s: g.wait_vm("W%d" % (s + 1)))
                    fill += perm_ops(g, raw2(s + 1, 0), 0, WT + ((idx + 1) % 4) * 4)
                if s + 5 < 16:
                    add("W%d" % (s + 5), w_loads(s + 5))
            else:
                fill += perm_ops(g, raw2(s, 0), j + 1, WT + ((idx + 1) % 4) * 4)
            fill += take(R2[j])
            if 3 <= j <= 5:
                if s < 12:
                    fill += b_reads(s + 1)[(j - 3) * 2:(j - 3) * 2 + 2]
                else:
                    fill += [b2_read1(g, 13 + (j - 3), n, bq(n, j - 3), "C%d" % n) for n in range(2)]
            k = (len(xq) + 7 - j) // (8 - j)
            k = min(k, 8) if s < 12 else k
            fill += xq[:k]
            xq = xq[k:]
            if j == 0:
                g.wait_lg("B%d" % s)
                if STAMP == 3 and s > 0:
                    stamp(g)
            a = WT + (idx % 4) * 4
            main = [(lambda u=u: g.mfma(acc2(j, u), a, bf(s, u), None if s == 0 else acc2(j, u))) for u in range(6)]
            merge(main, fill)
    assert not xq
    carry = []
    for n in range(6):
        u = n
        g.wait_lg("C%d" % n)
        if STAMP == 3:
            stamp(g)
        main = [(lambda j=j, k=k: g.mfma(acc2(j, u), TS[13 + k] + j * 4, bq(n, k), acc2(j, u))) for k in range(3) for j in range(8)]
        brd = [b2_read1(g, 13 + k, n + 2, bq(n + 2, k), "C%d" % (n + 2)) for k in range(3)] if n + 2 < 6 else []
        if n == 0:
            for k in (1, 2):
                fill = upto("W%d" % (13 + k)) + [lambda k=k: g.wait_vm("W%d" % (13 + k))]
                for j in range(8):
                    fill += perm_ops(g, raw2(13 + k, 0), j, TS[13 + k] + j * 4)
                merge(main[(k - 1) * 8:k * 8 - 1], fill)
                main[k * 8 - 1]()
            merge(main[16:], brd)
        else:
            merge(main, brd + carry)
        carry = tail(n)
    assert not pend
    run(carry)


def run(ops):
    for o in ops:
        o()


def prologue():
    g = Gen()
    g.s("s_cmp_ge_u32 s2, 256")
    g.s("s_cbranch_scc1 k_end")
    if STAMP:
        g.s("%s %s" % (os.environ.get("CLK", "s_memrealtime"), sr(S_ST, 2)))
    if E("CPF", 2):
        g.s("s_getpc_b64 %s" % sr(SRD_OUT, 2))
        g.label("pc_here")
        if E("CPF", 2) == 1:
            g.s("s_bfe_u32 %s, s2, 0x30003" % sr(S_T))
            g.s("s_lshl_b32 %s, %s, 15" % (sr(S_T), sr(S_T)))
        else:
            g.s("s_lshr_b32 %s, s2, 3" % sr(S_T))
            g.s("s_lshl_b32 %s, %s, 12" % (sr(S_T), sr(S_T)))
            g.valu("v_cmp_gt_u32 vcc, 32, v0", src=[0])
        g.s("s_and_b32 %s, %s, 0xffff" % (sr(SRD_OUT + 1), sr(SRD_OUT + 1)))
        g.s("s_mov_b32 %s, code_end-pc_here" % sr(SRD_OUT + 2))
        g.s("s_mov_b32 %s, 0x00020000" % sr(SRD_OUT + 3))
        vop(g, "v_lshlrev_b32 %s, 7, v0" % vr(TQ + 4), TQ + 4, [0])
        if E("CPF", 2) != 1:
            vop(g, "v_cndmask_b32 %s, -1, %s, vcc" % (vr(TQ + 4), vr(TQ + 4)), TQ + 4, [TQ + 4])
        g.vload("buffer_load_dword %s, %s, %s, %s offen" % (vr(TQ + 4), vr(TQ + 4), sr(SRD_OUT, 4), sr(S_T)), "CPF", dst=[TQ + 4], addr=[TQ + 4])
    g.s("s_bfe_u32 %s, s2, 0x10002" % sr(S_BLK))
    g.s("s_mul_i32 s16, %s, 40" % sr(S_BLK))
    g.s("s_add_u32 s18, s0, s16")
    g.s("s_addc_u32 s19, s1, 0")
    g.s("s_load_dwordx8 s[8:15], s[18:19], 0")
    g.s("s_load_dwordx2 s[16:17], s[18:19], 32")
    g.s("s_load_dwordx4 s[4:7], s[0:1], 80")
    g.s("s_load_dwordx2 s[18:19], s[0:1], 96")
    LN, Q, G, R8, C8, T1, T2 = 130, 131, 132, 133, 134, 135, 136
    vop(g, "v_lshrrev_b32 %s, 6, v0" % vr(T1), T1, [0])
    vop(g, "v_and_b32 %s, 63, v0" % vr(LN), LN, [0])
    g.valu("v_readfirstlane_b32 s3, %s" % vr(T1), src=[T1], readlane=True, sdst=[3])
    g.s("s_and_b32 %s, s2, 3" % sr(S_HG))
    g.s("s_lshl_b32 %s, %s, 1" % (sr(S_HG), sr(S_HG)))
    g.s("s_bfe_u32 %s, s2, 0x10003" % sr(S_T))
    g.s("s_add_u32 %s, %s, %s" % (sr(S_HG), sr(S_HG), sr(S_T)))
    g.s("s_lshr_b32 %s, s2, 4" % sr(S_B))
    g.s("s_lshl_b32 %s, %s, 4" % (sr(S_GRP), sr(S_BLK)))
    g.s("s_add_u32 %s, %s, %s" % (sr(S_GRP), sr(S_GRP), sr(S_B)))
    vop(g, "v_and_b32 %s, 15, %s" % (vr(Q), vr(LN)), Q, [LN])
    vop(g, "v_lshrrev_b32 %s, 4, %s" % (vr(G), vr(LN)), G, [LN])
    vop(g, "v_lshrrev_b32 %s, 3, %s" % (vr(R8), vr(LN)), R8, [LN])
    vop(g, "v_and_b32 %s, 7, %s" % (vr(C8), vr(LN)), C8, [LN])
    vop(g, "v_lshlrev_b32 %s, 4, %s" % (vr(L16), vr(LN)), L16, [LN])
    vop(g, "v_add_u32 %s, %d, %s" % (vr(L16H), L_V, vr(L16)), L16H, [L16])
    for e in range(1, 8):
        g.s("s_mov_b32 %s, %d" % (sr(SE + e), e * 8192))
    g.s("s_mov_b32 %s, 0x05040100" % sr(S_PLO))
    g.s("s_mov_b32 %s, 0x07060302" % sr(S_PHI))
    g.s("s_mov_b32 %s, 0x3e0293ee" % sr(S_C))
    g.s("s_cmp_eq_u32 s3, 0")
    g.s("s_cselect_b32 %s, 1, 0" % sr(S_W0))
    g.s("s_mov_b32 %s, 0" % sr(S_W0 + 1))
    g.s("s_lshl_b32 %s, %s, 5" % (sr(S_T), sr(S_B)))
    g.s("s_lshl_b32 %s, %s, 2" % (sr(S_T + 1), sr(S_HG)))
    g.s("s_add_u32 %s, %s, %s" % (sr(S_T), sr(S_T), sr(S_T + 1)))
    g.s("s_add_u32 %s, %s, s3" % (sr(S_T), sr(S_T)))
    g.s("s_mul_i32 %s, %s, 24576" % (sr(S_BH), sr(S_T)))
    g.s("s_lshl_b32 %s, s3, 14" % sr(S_T))
    g.s("s_add_u32 %s, %s, %d" % (sr(S_VL), sr(S_T), L_V))

    vop(g, "v_lshrrev_b32 %s, 1, %s" % (vr(T1), vr(R8)), T1, [R8])
    vop(g, "v_xor_b32 %s, %s, %s" % (vr(T1), vr(T1), vr(C8)), T1, [T1, C8])
    g.s("s_mul_i32 %s, %s, 98304" % (sr(S_T + 2), sr(S_B)))
    for t in range(3):
        g.s("s_mul_i32 %s, s3, 3" % sr(S_T))
        g.s("s_add_u32 %s, %s, %d" % (sr(S_T), sr(S_T), t))
        g.s("s_lshl_b32 %s, %s, 10" % (sr(S_XM + t), sr(S_T)))
        g.s("s_lshl_b32 %s, %s, 13" % (sr(S_T + 1), sr(S_T)))
        g.s("s_add_u32 %s, %s, %s" % (sr(S_XS + t), sr(S_T + 1), sr(S_T + 2)))
        g.s("s_and_b32 %s, %s, 1" % (sr(S_T), sr(S_T)))
        g.s("s_lshl_b32 %s, %s, 2" % (sr(S_T), sr(S_T)))
        vop(g, "v_xor_b32 %s, %s, %s" % (vr(T2), sr(S_T), vr(T1)), T2, [T1])
        vop(g, "v_lshlrev_b32 %s, 4, %s" % (vr(T2), vr(T2)), T2, [T2])
        vop(g, "v_lshl_add_u32 %s, %s, 10, %s" % (vr(XA + t), vr(R8), vr(T2)), XA + t, [R8, T2])
    PI = 140
    PI = Q
    g.s("s_lshl_b32 %s, %s, 10" % (sr(S_T), sr(S_HG)))
    g.s("s_lshl_b32 %s, s3, 8" % sr(S_T + 1))
    g.s("s_add_u32 %s, %s, %s" % (sr(S_T), sr(S_T), sr(S_T + 1)))
    vop(g, "v_lshlrev_b32 %s, 4, %s" % (vr(T1), vr(PI)), T1, [PI])
    vop(g, "v_lshl_add_u32 %s, %s, 16, %s" % (vr(T2), vr(G), vr(T1)), T2, [G, T1])
    if ROT:
        if ROT == 1:
            g.s("s_mov_b32 %s, %s" % (sr(S_XR + 2), sr(S_B)))
        else:
            g.s("s_and_b32 %s, s2, 8" % sr(S_XR + 2))
        g.s("s_lshl_b32 %s, %s, 18" % (sr(S_WI), sr(S_XR + 2)))
        g.s("s_add_u32 %s, %s, %s" % (sr(S_T), sr(S_T), sr(S_WI)))
        g.s("s_and_b32 %s, %s, 14" % (sr(S_XR), sr(S_XR + 2)))
        g.s("s_lshl_b32 %s, %s, 6" % (sr(S_XR), sr(S_XR)))
        g.s("s_and_b32 %s, %s, 1" % (sr(S_XR + 1), sr(S_XR + 2)))
        g.s("s_lshl_b32 %s, %s, 6" % (sr(S_XR + 1), sr(S_XR + 1)))
        g.s("s_cmp_eq_u32 %s, 0" % sr(S_XR + 1))
        g.s("s_cselect_b32 %s, 0x40000, 0xc0000" % sr(S_WI) if False else "s_mov_b32 %s, 0xc0000" % sr(S_WI))
        g.s("s_cmov_b32 %s, 0x40000" % sr(S_WI))
        g.s("s_mov_b32 %s, 0xfffc0000" % sr(S_WI + 1))
        g.s("s_cmov_b32 %s, 0x40000" % sr(S_WI + 1))
    vop(g, "v_add_u32 %s, %s, %s" % (vr(VW), sr(S_T), vr(T2)), VW, [T2])
    g.s("s_lshl_b32 %s, %s, 19" % (sr(S_T), sr(S_HG)))
    g.s("s_add_u32 %s, %s, %s" % (sr(S_T), sr(S_T), sr(S_T + 1)))
    vop(g, "v_and_b32 %s, 1, %s" % (vr(T2), vr(G)), T2, [G])
    vop(g, "v_lshl_add_u32 %s, %s, 12, %s" % (vr(T1), vr(T2), vr(T1)), T1, [T2, T1])
    vop(g, "v_lshrrev_b32 %s, 1, %s" % (vr(T2), vr(G)), T2, [G])
    vop(g, "v_lshl_add_u32 %s, %s, 16, %s" % (vr(T2), vr(T2), vr(T1)), T2, [T2, T1])
    vop(g, "v_add_u32 %s, %s, %s" % (vr(VWO), sr(S_T), vr(T2)), VWO, [T2])
    vop(g, "v_xor_b32 %s, %s, %s" % (vr(T1), vr(Q), vr(G)), T1, [Q, G])
    vop(g, "v_lshlrev_b32 %s, 4, %s" % (vr(T1), vr(T1)), T1, [T1])
    vop(g, "v_lshl_add_u32 %s, %s, 8, %s" % (vr(VKD), vr(G), vr(T1)), VKD, [G, T1])
    vop(g, "v_lshlrev_b32 %s, 2, %s" % (vr(T1), vr(G)), T1, [G])
    vop(g, "v_xor_b32 %s, %s, %s" % (vr(T1), vr(T1), vr(Q)), T1, [T1, Q])
    vop(g, "v_lshlrev_b32 %s, 4, %s" % (vr(T1), vr(T1)), T1, [T1])
    vop(g, "v_lshl_add_u32 %s, %s, 8, %s" % (vr(VKR), vr(Q), vr(T1)), VKR, [Q, T1])
    vop(g, "v_add_u32 %s, %s, %s" % (vr(VKR), sr(S_VL), vr(VKR)), VKR, [VKR])
    for m in range(1, 4):
        vop(g, "v_xor_b32 %s, %d, %s" % (vr(VKD + m), m * 64, vr(VKD)), VKD + m, [VKD])
        vop(g, "v_xor_b32 %s, %d, %s" % (vr(VKR + m), m * 16, vr(VKR)), VKR + m, [VKR])
    vop(g, "v_mov_b32 %s, %s" % (vr(VV), vr(VKD)), VV, [VKD])
    vop(g, "v_mov_b32 %s, %s" % (vr(VK), vr(VKD + 1)), VK, [VKD + 1])
    vop(g, "v_lshrrev_b32 %s, 1, %s" % (vr(T1), vr(Q)), T1, [Q])
    vop(g, "v_xor_b32 %s, %s, %s" % (vr(T1), vr(T1), vr(G)), T1, [T1, G])
    vop(g, "v_lshlrev_b32 %s, 7, %s" % (vr(T2), vr(Q)), T2, [Q])
    vop(g, "v_lshl_add_u32 %s, %s, 4, %s" % (vr(XB), vr(T1), vr(T2)), XB, [T1, T2])
    if ROT:
        vop(g, "v_xor_b32 %s, %s, %s" % (vr(XB), sr(S_XR + 1), vr(XB)), XB, [XB])
    vop(g, "v_xor_b32 %s, 64, %s" % (vr(XB + 1), vr(XB)), XB + 1, [XB])
    vop(g, "v_add_u32 %s, 0xc000, %s" % (vr(XB + 2), vr(XB)), XB + 2, [XB])
    vop(g, "v_add_u32 %s, 0xc000, %s" % (vr(XB + 3), vr(XB + 1)), XB + 3, [XB + 1])
    vop(g, "v_add_u32 %s, %s, %s" % (vr(VOW), sr(S_VL), vr(L16)), VOW, [L16])
    g.s("s_lshl_b32 %s, %s, 2" % (sr(S_T), sr(S_B)))
    g.s("s_add_u32 %s, %s, s3" % (sr(S_T), sr(S_T)))
    g.s("s_lshl_b32 %s, %s, 16" % (sr(S_T), sr(S_T)))
    g.s("s_lshl_b32 %s, %s, 10" % (sr(S_T + 1), sr(S_HG)))
    g.s("s_add_u32 %s, %s, %s" % (sr(S_T), sr(S_T), sr(S_T + 1)))
    vop(g, "v_lshlrev_b32 %s, 7, %s" % (vr(T1), vr(C8)), T1, [C8])
    vop(g, "v_lshl_add_u32 %s, %s, 13, %s" % (vr(T1), vr(R8), vr(T1)), T1, [R8, T1])
    vop(g, "v_add_u32 %s, %s, %s" % (vr(WTA), sr(S_T), vr(T1)), WTA, [T1])
    g.waitcnt(lg=0)
    make_srd(g, SRD_X, 8, 1572864)
    make_srd(g, SRD_K, 10, 12582912)
    make_srd(g, SRD_V, 12, 12582912)
    make_srd(g, SRD_W, 14, 4194304)
    make_srd(g, SRD_WO, 16, 4194304)
    make_srd(g, SRD_OUT, 4, 16 * 96 * 1024 * 2)
    make_srd(g, SRD_DBG, 6, 256)
    make_srd(g, SRD_WS, 18, WS_BYTES)
    g.s("s_lshl_b32 %s, s3, 13" % sr(S_K2))
    g.s("s_sub_u32 %s, %s, %s" % (sr(S_KD), sr(S_VL), sr(S_K2)))
    g.s("s_lshl_b32 %s, %s, 1" % (sr(S_T), sr(S_B)))
    g.s("s_lshr_b32 %s, s3, 1" % sr(S_T + 1))
    g.s("s_add_u32 %s, %s, %s" % (sr(S_T), sr(S_T), sr(S_T + 1)))
    g.s("s_lshl_b32 %s, %s, 13" % (sr(S_T), sr(S_T)))
    g.s("s_lshl_b32 %s, %s, 10" % (sr(S_T + 1), sr(S_HG)))
    g.s("s_add_u32 %s, %s, %s" % (sr(S_T), sr(S_T), sr(S_T + 1)))
    g.s("s_and_b32 %s, s3, 1" % sr(S_T + 1))
    g.s("s_lshl_b32 %s, %s, 9" % (sr(S_T + 1), sr(S_T + 1)))
    g.s("s_add_u32 %s, %s, %s" % (sr(S_T), sr(S_T), sr(S_T + 1)))
    g.s("s_add_u32 %s, s14, %s" % (sr(S_TB), sr(S_T)))
    g.s("s_addc_u32 %s, s15, 0" % sr(S_TB + 1))
    stamp(g, have=True)
    return g


def tok_ops(g, tok):
    ops = []
    if tok[0] == 'x':
        sp = int(tok[1:])
        for t in range(3):
            if ROT:
                ops.append(lambda t=t: g.s("s_add_u32 %s, %s, %d" % (sr(S_T), sr(S_XR), sp * 128)))
                ops.append(lambda t=t: g.s("s_and_b32 %s, %s, 0x3ff" % (sr(S_T), sr(S_T))))
                ops.append(lambda t=t: g.s("s_add_u32 %s, %s, %s" % (sr(S_T), sr(S_T), sr(S_XS + t))))
            else:
                ops.append(lambda t=t: g.s("s_add_u32 %s, %s, %d" % (sr(S_T), sr(S_XS + t), sp * 128)))
            ops.append(lambda t=t: g.s("s_add_u32 m0, %s, %d" % (sr(S_XM + t), sp * 12288), m0=True))
            ops.append(lambda t=t: g.vload("buffer_load_dwordx4 %s, %s, %s offen lds" % (vr(XA + t), sr(SRD_X, 4), sr(S_T)), "X%d" % sp, addr=[XA + t], lds=True))
    elif tok[0] == 'w':
        ops += w1_loads(g)(int(tok[1:]))
    elif tok == 't':
        ops.append(lambda: g.vload("buffer_load_dword %s, %s, %s, 0 offen" % (vr(TQ + 3), vr(WTA), sr(SRD_W, 4)), "TCH", dst=[TQ + 3], addr=[WTA]))
    elif tok[0] == 's':
        st = int(tok[1:])
        ops.append(lambda: g.s("s_mov_b32 %s, %d" % (sr(S_T + 2), st * 262144)))
        for l in range(8 if SM2 else 4):
            def sm(l=l):
                g.s("s_load_dword %s, %s, %s offset:%d" % (sr(S_JUNK), sr(S_TB, 2), sr(S_T + 2), l * (64 if SM2 else 128)))
                g.lgq.append("SM")
            ops.append(sm)
    elif tok == 'T':
        ops += wo_touch(g)
    elif tok == 'Y':
        for srd, so in ((SRD_WS, S_XS + 1), (SRD_WS, S_PB), (SRD_WS, S_PB + 1), (SRD_WS, S_XS + 2), (SRD_OUT, S_OB)):
            ops.append(lambda srd=srd, so=so: g.vload("buffer_load_dword %s, off, %s, %s" % (vr(VW), sr(srd, 4), sr(so)), "TCH", dst=[VW]))
    elif tok[0] == 'Z':
        t = int(tok[1])
        if t == 0:
            for k in range(4):
                ops.append(lambda k=k: vop(g, "v_mov_b32 %s, -1" % vr(ZQ + k), ZQ + k))
        for h in range(2):
            for i in range(4):
                ops.append(lambda h=h, i=i: g.s("s_add_u32 %s, %s, %d" % (sr(S_T + 6), sr(S_PB + h), (i * 3 + t) * 1024)))
                o = lambda: g.vstore("buffer_store_dwordx4 %s, %s, %s, %s offen sc1" % (vr(ZQ, 4), vr(L16), sr(SRD_WS, 4), sr(S_T + 6)),
                                     "POI", data=rng(ZQ, 4), addr=[L16])
                o.is_load = True
                ops.append(o)
    elif tok[0] == 'K':
        ops += k_dma(g, int(tok[1]), int(tok[3]))
    elif tok[0] == 'R':
        ops += k_read(g, int(tok[1]), int(tok[3]))
    elif tok[0] == 'V' and len(tok) == 4:
        assert VL[int(tok[1])] == int(tok[3])
        ops += v_dma(g, int(tok[1]), int(tok[3]))
    elif tok[0] == 'V':
        vl = v_loads(g, int(tok[1]))
        ops += vl if len(tok) == 2 else vl[:5] if tok[2] == 'a' else vl[5:]
    else:
        raise ValueError(tok)
    return mark(ops)


def part1(g, cl):
    for tok in cl["P"]:
        run(tok_ops(g, tok))
    g.wait_vm(["X%d" % k for k in range(XBAR[0] + 1)])
    g.barrier()
    stamp(g)
    run(b1_reads(g)(0))

    def tail(u):
        return q_conv(g, u) if u < 2 else []
    assert max(XBAR) >= 6
    pend, rest = gemm1(g, cl, b1_reads(g), tail)
    run(pend)
    stamp(g)
    g.s("s_lshl_b32 %s, s3, 13" % sr(S_T))
    vop(g, "v_add_u32 %s, %s, %s" % (vr(VOW2), sr(S_T), vr(L16)), VOW2, [L16])
    run(rest)
    stamp(g)
    g.nop(8)


S_FS, S_OB = 69, 93


def job_setup(g, A):
    A(lambda: g.s("s_lshl_b32 %s, %s, 2" % (sr(S_T), sr(S_GRP))))
    A(lambda: g.s("s_lshr_b32 %s, %s, 1" % (sr(S_T + 1), sr(S_RO))))
    A(lambda: g.s("s_add_u32 %s, %s, %s" % (sr(S_T + 1), sr(S_T + 1), sr(S_T))))
    A(lambda: g.s("s_lshl_b32 %s, %s, 7" % (sr(S_T + 1), sr(S_T + 1))))
    A(lambda: g.s("s_add_u32 %s, %s, %d" % (sr(S_XS + 1), sr(S_T + 1), FLG)))
    A(lambda: g.s("s_lshl_b32 %s, %s, 3" % (sr(S_T), sr(S_GRP))))
    A(lambda: g.s("s_add_u32 %s, %s, %s" % (sr(S_T), sr(S_T), sr(S_RO))))
    A(lambda: g.s("s_mul_i32 %s, %s, 96" % (sr(S_T), sr(S_T))))
    A(lambda: g.s("s_mul_i32 %s, %s, 3" % (sr(S_T + 1), sr(S_RR))))
    A(lambda: g.s("s_add_u32 %s, %s, %s" % (sr(S_T), sr(S_T), sr(S_T + 1))))
    A(lambda: g.s("s_lshl_b32 %s, %s, 10" % (sr(S_XS + 2), sr(S_T))))
    A(lambda: g.s("s_mul_i32 %s, %s, %d" % (sr(S_OB), sr(S_B), 96 * 2048)))
    A(lambda: g.s("s_lshl_b32 %s, %s, 10" % (sr(S_T), sr(S_BLK))))
    A(lambda: g.s("s_add_u32 %s, %s, %s" % (sr(S_OB), sr(S_OB), sr(S_T))))
    A(lambda: g.s("s_lshr_b32 %s, %s, 1" % (sr(S_T), sr(S_RO))))
    A(lambda: g.s("s_lshl_b32 %s, %s, 8" % (sr(S_T), sr(S_T))))
    A(lambda: g.s("s_add_u32 %s, %s, %s" % (sr(S_OB), sr(S_OB), sr(S_T))))
    A(lambda: g.s("s_lshl_b32 %s, %s, 4" % (sr(S_T), sr(S_RR))))
    A(lambda: g.s("s_add_u32 %s, %s, %s" % (sr(S_OB), sr(S_OB), sr(S_T))))
    A(lambda: g.s("s_and_b32 %s, %s, 1" % (sr(S_T), sr(S_RO))))
    A(lambda: g.s("s_lshl_b32 %s, %s, 15" % (sr(S_T), sr(S_T))))
    A(lambda: g.s("s_add_u32 %s, %s, %s" % (sr(S_OB), sr(S_OB), sr(S_T))))


def part2(g):
    g.s("s_memrealtime %s" % sr(S_T + 4, 2))
    NV = 238
    g.s("s_lshl_b32 %s, %s, 2" % (sr(S_T + 3), sr(S_GRP)))
    lq = list(g.lgq)
    g.waitcnt(lg=0)
    g.lgq = []
    g.s("s_or_b32 %s, %s, 1" % (sr(S_NONCE), sr(S_T + 4)))
    vop(g, "v_mov_b32 %s, %s" % (vr(NV), sr(S_NONCE)), NV)
    vop(g, "v_mov_b32 %s, 0" % vr(NV + 1), NV + 1)
    g.s("s_mov_b64 exec, %s" % sr(S_W0, 2))
    g.vload("buffer_atomic_cmpswap %s, off, %s, %s sc0 sc1" % (vr(NV, 2), sr(SRD_DBG, 4), sr(S_T + 3)), "NONCE", dst=[NV], addr=[NV, NV + 1])
    g.s("s_mov_b64 exec, -1")
    g.s("s_lshl_b32 %s, %s, 3" % (sr(S_PB), sr(S_GRP)))
    g.s("s_lshl_b32 %s, s3, 1" % sr(S_PB + 1))
    g.s("s_add_u32 %s, %s, %s" % (sr(S_PB), sr(S_PB), sr(S_PB + 1)))
    g.s("s_lshl_b32 %s, %s, 3" % (sr(S_PB), sr(S_PB)))
    g.s("s_add_u32 %s, %s, %s" % (sr(S_PB), sr(S_PB), sr(S_HG)))
    g.s("s_mul_i32 %s, %s, 12288" % (sr(S_PB), sr(S_PB)))
    g.s("s_add_u32 %s, %s, %d" % (sr(S_PB + 1), sr(S_PB), 8 * 12288))
    g.s("s_lshl_b32 %s, %s, 2" % (sr(S_XS), sr(S_GRP)))
    g.s("s_add_u32 %s, %s, s3" % (sr(S_XS), sr(S_XS)))
    g.s("s_lshl_b32 %s, %s, 7" % (sr(S_XS), sr(S_XS)))
    g.s("s_add_u32 %s, %s, %d" % (sr(S_XS), sr(S_XS), FLG))
    g.s("s_lshl_b32 %s, %s, 3" % (sr(S_FS), sr(S_HG)))
    g.s("s_add_u32 %s, %s, %s" % (sr(S_FS), sr(S_FS), sr(S_XS)))
    g.s("s_mov_b32 %s, %s" % (sr(S_RO), sr(S_HG)))
    g.s("s_mov_b32 %s, s3" % sr(S_RR))
    job_setup(g, lambda o: o())
    for k in range(4):
        vop(g, "v_mov_b32 %s, 0x3f803f80" % vr(ONES + k), ONES + k)

    def vt(pp, j):
        return KF + (pp * 8 + j) * 4
    VA = 0

    def tr_addr():
        ops = []
        V = lambda text, d, src=(): ops.append(lambda: vop(g, text, d, src))
        a, b = VA + 8, VA + 9
        V("v_lshrrev_b32 %s, 6, %s" % (vr(a), vr(L16)), a, [L16])
        V("v_and_b32 %s, 7, %s" % (vr(b), vr(a)), b, [a])
        V("v_lshlrev_b32 %s, 4, %s" % (vr(b), vr(b)), b, [b])
        V("v_lshl_add_u32 %s, %s, 8, %s" % (vr(VA), vr(a), vr(b)), VA, [a, b])
        V("v_and_b32 %s, 32, %s" % (vr(a), vr(L16)), a, [L16])
        V("v_lshl_add_u32 %s, %s, 2, %s" % (vr(VA), vr(a), vr(VA)), VA, [a, VA])
        V("v_and_b32 %s, 16, %s" % (vr(a), vr(L16)), a, [L16])
        V("v_lshrrev_b32 %s, 1, %s" % (vr(a), vr(a)), a, [a])
        V("v_add_u32 %s, %s, %s" % (vr(VA), vr(a), vr(VA)), VA, [a, VA])
        V("v_add_u32 %s, %s, %s" % (vr(VA + 8), sr(S_K2), vr(VA)), VA + 8, [VA])
        V("v_add_u32 %s, %s, %s" % (vr(VA), sr(S_VL), vr(VA)), VA, [VA])
        for j in range(1, 8):
            V("v_xor_b32 %s, %d, %s" % (vr(VA + j), j * 16, vr(VA)), VA + j, [VA])
            V("v_xor_b32 %s, %d, %s" % (vr(VA + 8 + j), j * 16, vr(VA + 8)), VA + 8 + j, [VA + 8])
        return ops

    def tr_reads(pp, js):
        ops = []
        for j in js:
            for h in range(2):
                d = vt(pp, j) + 2 * h
                a, off = (VA + j, VL[pp] * 8192 + h * 4096) if VL[pp] < 2 else (VA + 8 + j, L_V2 + h * 4096)
                ops.append(lambda d=d, a=a, off=off: g.dsread("ds_read_b64_tr_b16 %s, %s offset:%d" % (vr(d, 2), vr(a), off), "V%d" % pp, dst=rng(d, 2), addr=[a]))
        return ops
    OAC = [16 + 0, 96, 64, 96, 64, 96]

    def oacc(u, j):
        return OAC[u] + j * 4

    def pv_main(u, pmajor=False):
        ix = [(pp, j) for pp in range(3) for j in range(8)] if pmajor else [(pp, j) for j in range(8) for pp in range(3)]
        return [(lambda pp=pp, j=j: g.mfma(oacc(u, j), vt(pp, j), pfrag(u, pp), None if pp == 0 else oacc(u, j))) for pp, j in ix]

    def o_conv(u):
        ops = []
        r = TQ + 2
        ops.append(lambda: g.valu("v_accvgpr_read_b32 %s, %s" % (vr(r), vr(psum(u))), dst=[r], src=[psum(u)]))
        ops.append(lambda: g.valu("v_rcp_f32 %s, %s" % (vr(r), vr(r)), dst=[r], src=[r], trans=True))
        for i in range(4):
            d = PT_O + (i % 2) * 4
            for k in range(8):
                a = oacc(u, 2 * i) + k
                ops.append(lambda a=a: g.valu("v_mul_f32 %s, %s, %s" % (vr(a), vr(a), vr(r)), dst=[a], src=[a, r]))
            for m in range(4):
                a = oacc(u, 2 * i) + 2 * m
                ops.append(lambda d=d + m, a=a: g.valu("v_cvt_pk_bf16_f32 %s, %s, %s" % (vr(d), vr(a), vr(a + 1)), dst=[d], src=[a, a + 1]))
            n = i * 6 + u
            a, off = (VOW, n * 1024) if n < 16 else (VOW2, (n - 16) * 1024)
            ops.append(lambda d=d, a=a, off=off: g.dswrite("ds_write_b128 %s, %s offset:%d" % (vr(a), vr(d, 4), off), "OW", data=rng(d, 4), addr=[a]))
        return ops
    PT_O = 228
    wl2 = w2_loads(g)

    def spread(fill, pre):
        if not pre:
            return fill
        k = max(1, len(fill) // len(pre))
        nf = []
        for i, f in enumerate(fill):
            if i % k == 0 and pre:
                nf.append(pre.pop(0))
            nf.append(f)
        return nf + pre
    for u in range(6):
        main = [(lambda kt=kt, i=i, u=u: g.mfma(sacc(u, kt), KF + (kt * 4 + i) * 4, QF + (u % 2) * 16 + i * 4, None if i == 0 else sacc(u, kt)))
                for kt in range(6) for i in range(4)]
        fill = []
        if u >= 1:
            fill += softmax_ops(g, u - 1)
        if 2 <= u + 1 <= 5:
            fill += q_conv(g, u + 1)
        if u == 4:
            fill += tr_addr()
        pre = []
        for tok in POST.get(u, []):
            pre += tok_ops(g, tok)
        fill = spread(fill, pre)
        if u < 5:
            merge(main, fill)
        else:
            n3 = (len(fill) + 2) // 3
            merge(main[:8], fill[:n3] + [lambda: g.wait_vm(["VD"])])
            merge(main[8:16], spread(fill[n3:2 * n3], tr_reads(0, range(8))))
            merge(main[16:], spread(fill[2 * n3:], tr_reads(1, range(8))))
    stamp(g)
    sm5 = softmax_ops(g, 5)
    pv0 = pv_main(0, True)
    n3 = (len(sm5) + 2) // 3
    run(tr_reads(2, range(4)))
    g.wait_lg("V0")
    merge(pv0[:8], spread(sm5[:n3], tr_reads(2, range(4, 8))))
    g.wait_lg("V1")
    merge(pv0[8:16], sm5[n3:2 * n3])
    g.wait_lg("V2")
    merge(pv0[16:], sm5[2 * n3:])
    stamp(g)
    vop(g, "v_mov_b32 %s, %d" % (vr(TQ + 1), L_MISC), TQ + 1)
    for u in range(1, 6):
        fill = o_conv(u - 1)
        if u == 2:
            fill = spread(fill, wl2(0))
        if u == 3:
            fill = spread(fill, wl2(1))
        merge(pv_main(u), fill)
    g.wait_vm("NONCE")
    g.valu("v_readfirstlane_b32 %s, %s" % (sr(S_T), vr(NV)), src=[NV], readlane=True, sdst=[S_T])
    g.s("s_cmp_eq_u32 %s, 0" % sr(S_T))
    g.s("s_cselect_b32 %s, %s, %s" % (sr(S_T), sr(S_NONCE), sr(S_T)))
    vop(g, "v_mov_b32 %s, %s" % (vr(TQ), sr(S_T)), TQ)
    g.s("s_mov_b64 exec, %s" % sr(S_W0, 2))
    g.dswrite("ds_write_b32 %s, %s offset:4" % (vr(TQ + 1), vr(TQ)), "OW", data=[TQ], addr=[TQ + 1])
    g.s("s_mov_b64 exec, -1")
    run(o_conv(5))
    g.waitcnt(lg=0)
    g.lgq = []
    stamp(g)
    g.barrier()
    stamp(g)
    g.dsread("ds_read_b32 %s, %s offset:4" % (vr(NV), vr(TQ + 1)), "NN", dst=[NV], addr=[TQ + 1])
    run(b2_reads(g)(0))
    g.wait_lg("NN")
    g.valu("v_readfirstlane_b32 %s, %s" % (sr(S_NONCE), vr(NV)), src=[NV], readlane=True, sdst=[S_NONCE])
    cnt = [0]
    AC, VO, VF, F0, PL, PP = 224, 230, 231, 232, 234, 242
    S_CL = S_TYPE

    def tail(n):
        u = n
        ops = []
        for i in range(4):
            d = 96 + (cnt[0] % 8) * 4
            cnt[0] += 1
            for m in range(4):
                a, b = acc2(2 * m, u) + i, acc2(2 * m + 1, u) + i
                t0, t1 = TQ + (m % 2) * 2, TQ + (m % 2) * 2 + 1
                ops.append(lambda t=t0, s=a: g.valu("v_accvgpr_read_b32 %s, %s" % (vr(t), vr(s)), dst=[t], src=[s]))
                ops.append(lambda t=t1, s=b: g.valu("v_accvgpr_read_b32 %s, %s" % (vr(t), vr(s)), dst=[t], src=[s]))
                ops.append(lambda d=d + m, a=t0, b=t1: g.valu("v_cvt_pk_bf16_f32 %s, %s, %s" % (vr(d), vr(a), vr(b)), dst=[d], src=[a, b]))
                if not E("NOFAST", 1):
                    ops.append(lambda d=d + m: g.valu("v_min_u32 %s, -2, %s" % (vr(d), vr(d)), dst=[d], src=[d]))
            p = i * 3 + (n >> 1)
            if EXP and i >= 2:
                continue
            ops.append(lambda p=p: g.s("s_add_u32 %s, %s, %d" % (sr(S_T + 6), sr(S_PB + (n & 1)), p * 1024)))
            ops.append(lambda d=d: g.vstore("buffer_store_dwordx4 %s, %s, %s, %s offen sc1" % (vr(d, 4), vr(L16), sr(SRD_WS, 4), sr(S_T + 6)),
                                            "PS", data=rng(d, 4), addr=[L16]))
        return ops

    def flag_store(soff, tag):
        g.s("s_mov_b64 exec, 1")
        g.vstore("buffer_store_dwordx2 %s, off, %s, %s sc1" % (vr(F0, 2), sr(SRD_WS, 4), sr(soff)), tag, data=[F0, F0 + 1])
        g.s("s_mov_b64 exec, -1")

    def setup_ops():
        ops = []
        A = ops.append
        A(lambda: g.s("s_xor_b32 %s, %s, 0x%x" % (sr(S_T), sr(S_NONCE), FC)))
        A(lambda: vop(g, "v_mov_b32 %s, %s" % (vr(F0), sr(S_NONCE)), F0))
        A(lambda: vop(g, "v_mov_b32 %s, %s" % (vr(F0 + 1), sr(S_T)), F0 + 1))
        LN, Q, G_, X1, X2, X3 = 112, 113, 114, 115, 116, 117
        V = lambda text, d, src=(): A(lambda: vop(g, text, d, src))
        V("v_lshrrev_b32 %s, 4, %s" % (vr(LN), vr(L16)), LN, [L16])
        V("v_and_b32 %s, 15, %s" % (vr(Q), vr(LN)), Q, [LN])
        V("v_lshrrev_b32 %s, 4, %s" % (vr(G_), vr(LN)), G_, [LN])
        V("v_lshrrev_b32 %s, 2, %s" % (vr(X1), vr(Q)), X1, [Q])
        V("v_and_b32 %s, 1, %s" % (vr(X2), vr(Q)), X2, [Q])
        V("v_lshlrev_b32 %s, 4, %s" % (vr(X2), vr(X2)), X2, [X2])
        V("v_mov_b32 %s, 0x3f80" % vr(X3), X3)
        V("v_lshlrev_b32 %s, %s, %s" % (vr(X3), vr(X2), vr(X3)), X3, [X2, X3])
        A(lambda: g.valu("v_cmp_eq_u32 vcc, %s, %s" % (vr(X1), vr(G_)), src=[X1, G_]))
        A(lambda: g.nop(2))
        V("v_cndmask_b32 %s, 0, %s, vcc" % (vr(X3), vr(X3)), X3, [X3])
        V("v_and_b32 %s, 2, %s" % (vr(X2), vr(Q)), X2, [Q])
        A(lambda: g.valu("v_cmp_eq_u32 vcc, 0, %s" % vr(X2), src=[X2]))
        for k in (0, 1, 4, 5):
            V("v_mov_b32 %s, 0" % vr(AC + k), AC + k)
        V("v_cndmask_b32 %s, 0, %s, vcc" % (vr(AC + 2), vr(X3)), AC + 2, [X3])
        V("v_cndmask_b32 %s, %s, 0, vcc" % (vr(AC + 3), vr(X3)), AC + 3, [X3])
        V("v_lshlrev_b32 %s, 6, %s" % (vr(VO), vr(G_)), VO, [G_])
        V("v_lshl_add_u32 %s, %s, 11, %s" % (vr(VO), vr(Q), vr(VO)), VO, [Q, VO])
        V("v_lshrrev_b32 %s, 1, %s" % (vr(VF), vr(L16)), VF, [L16])
        A(lambda: g.s("s_mov_b32 %s, 0" % sr(S_PHASE)))
        A(lambda: g.s("s_mov_b32 %s, 0" % sr(S_PEND)))
        A(lambda: g.s("s_mov_b32 %s, 0" % sr(S_CNT)))
        return ops

    def extra(s):
        ops = []
        if EXP and EXS <= s < EXS + 6:
            n = s - EXS
            for i in (2, 3):
                p = i * 3 + (n >> 1)
                def st(p=p, n=n):
                    g.s("s_add_u32 %s, %s, %d" % (sr(S_T + 6), sr(S_PB + (n & 1)), p * 1024))
                    g.vstore("buffer_store_dwordx4 %s, %s, %s, %s offen sc1" % (vr(A0 + 240, 4), vr(L16), sr(SRD_WS, 4), sr(S_T + 6)), "PS", data=rng(A0 + 240, 4), addr=[L16])
                ops.append(st)
        if EXP and s == EXL:
            for k in range(12):
                def ld(k=k):
                    d = A0 + 244 + (k % 3) * 4
                    g.s("s_add_u32 %s, %s, %d" % (sr(S_T), sr(S_XS + 2), (k & 7) * 12288 + (k >> 3) * 1024))
                    g.vload("buffer_load_dwordx4 %s, %s, %s, %s offen sc1" % (vr(d, 4), vr(L16), sr(SRD_WS, 4), sr(S_T)), "RX", dst=rng(d, 4), addr=[L16])
                ops.append(ld)
        if s == 0:
            ops.append(lambda: g.wait_vm("POI"))
            ops += setup_ops()
        if s == PFS and not E("NOFAST", 1):
            def pf():
                g.wait_vm("POI")
                g.s("s_add_u32 %s, %s, %d" % (sr(S_T), sr(S_FS), FLGP - FLG))
                flag_store(S_T, "PF")
            ops.append(pf)
        if s == PPS and not E("NOFAST", 1):
            def pp():
                g.s("s_add_u32 %s, %s, %d" % (sr(S_T), sr(S_XS + 1), FLGP - FLG))
                g.vload("buffer_load_dwordx2 %s, %s, %s, %s offen sc1" % (vr(PP, 2), vr(VF), sr(SRD_WS, 4), sr(S_T)), "PP", dst=[PP, PP + 1], addr=[VF])
            ops.append(pp)
        return ops
    gemm2(g, wl2, b2_reads(g), tail, extra)
    stamp(g)
    LDT = [KF, KF + 32, 0]
    RD = 32
    OQ = 64

    def r_loads(t):
        for src in range(8):
            if EXP and (t == 0 or (t == 1 and src < 4)):
                continue
            d = LDT[t] + src * 4
            g.s("s_add_u32 %s, %s, %d" % (sr(S_T), sr(S_XS + 2), src * 12288 + t * 1024))
            g.vload("buffer_load_dwordx4 %s, %s, %s, %s offen sc1" % (vr(d, 4), vr(L16), sr(SRD_WS, 4), sr(S_T)), "R%d" % t, dst=rng(d, 4), addr=[L16])

    def r_sum(t):
        for src in range(8):
            d = LDT[t] + src * 4
            for h in range(2):
                r = RD + (t * 2 + h) * 4
                g.mfma(r, AC + 2 - 2 * h, d, None if src == 0 else r)

    def r_out(t):
        o = OQ + t * 4
        for h in range(2):
            r = RD + (t * 2 + h) * 4
            for k in range(2):
                g.valu("v_cvt_pk_bf16_f32 %s, %s, %s" % (vr(o + h * 2 + k), vr(r + 2 * k), vr(r + 2 * k + 1)), dst=[o + h * 2 + k], src=[r + 2 * k, r + 2 * k + 1])
        g.s("s_add_u32 %s, %s, %d" % (sr(S_T + 3), sr(S_OB), t * 65536))
        g.vstore("buffer_store_dwordx4 %s, %s, %s, %s offen%s" % (vr(o, 4), vr(VO), sr(SRD_OUT, 4), sr(S_T + 3), os.environ.get("OUTF", "")), "OUT", data=rng(o, 4), addr=[VO])

    def r_check(t):
        m = [TQ, TQ + 1]
        b = LDT[t]
        for c in range(2):
            g.valu("v_max3_u32 %s, %s, %s, %s" % (vr(m[c]), vr(b + 16 * c), vr(b + 16 * c + 1), vr(b + 16 * c + 2)), dst=[m[c]], src=rng(b + 16 * c, 3))
        for k in range(3, 15, 2):
            for c in range(2):
                x = b + 16 * c + k
                g.valu("v_max3_u32 %s, %s, %s, %s" % (vr(m[c]), vr(m[c]), vr(x), vr(x + 1)), dst=[m[c]], src=[m[c], x, x + 1])
        g.valu("v_max3_u32 %s, %s, %s, %s" % (vr(m[0]), vr(m[0]), vr(b + 15), vr(b + 31)), dst=[m[0]], src=[m[0], b + 15, b + 31])
        g.valu("v_max_u32 %s, %s, %s" % (vr(m[0]), vr(m[0]), vr(m[1])), dst=[m[0]], src=m)
        g.valu("v_cmp_eq_u32 vcc, -1, %s" % vr(m[0]), src=[m[0]])
        g.nop(1)
        g.s("s_cbranch_vccnz retry%d" % t)

    def flags_ok(pl):
        g.valu("v_cmp_eq_u32 vcc, %s, %s" % (vr(pl), vr(F0)), src=[pl, F0])
        g.valu("v_cmp_eq_u32 %s, %s, %s" % (sr(S_M, 2), vr(pl + 1), vr(F0 + 1)), src=[pl + 1, F0 + 1])
        g.s("s_mov_b64 exec, -1")
        g.s("s_and_b32 %s, %s, vcc_lo" % (sr(S_M), sr(S_M)))
        g.s("s_and_b32 %s, %s, 0xff" % (sr(S_M + 1), sr(S_M)))
        g.s("s_cmp_eq_u32 %s, 0xff" % sr(S_M + 1))

    NOFAST = E("NOFAST", 1)
    if not NOFAST:
        r_loads(0)
        r_loads(1)
        if T2POS == 0:
            r_loads(2)
        g.wait_vm("PP")
        flags_ok(PP)
        if FORCE_AB & 512:
            g.s("s_bitcmp1_b32 s2, 4")
        g.s("s_cbranch_scc0 slow")
        if FORCE_AB & 255:
            g.s("s_and_b32 %s, s2, %d" % (sr(S_T), FORCE_AB & 255))
            g.s("s_cmp_eq_u32 %s, 0" % sr(S_T))
            g.s("s_cbranch_scc1 slow")
        if FORCE_AB & 256:
            g.s("s_branch slow")
        g.wait_vm("R0")
        flag_store(S_FS, "FS")
        stamp(g)
        for t in range(3):
            g.wait_vm("R%d" % t)
            g.label("chk%d" % t)
            g.nop(1)
            r_check(t)
            if t == 0 and T2POS == 1:
                r_loads(2)
            r_sum(t)
            if t == 0 and T2POS == 2:
                r_loads(2)
            if t == 2:
                stamp(g)
            r_out(t)
        stamp(g)
        stamp_flush(g)
        g.s("s_branch after")
        for t in range(3):
            g.label("retry%d" % t)
            g.vmq = []
            r_loads(t)
            g.s("s_add_u32 %s, %s, 1" % (sr(S_CNT), sr(S_CNT)))
            g.s("s_cmp_lt_u32 %s, %d" % (sr(S_CNT), RETRY))
            g.waitcnt(vm=0)
            g.vmq = []
            g.s("s_cbranch_scc1 chk%d" % t)
            if t < 2:
                g.s("s_branch slow")
    S_DONE, S_ACC, S_NEW = S_CNT, S_T + 6, S_T + 7

    def poll_load(soff):
        g.vload("buffer_load_dwordx2 %s, %s, %s, %s offen sc1" % (vr(PL, 2), vr(VF), sr(SRD_WS, 4), sr(soff)), "PL", dst=[PL, PL + 1], addr=[VF])

    def poll(soff):
        poll_load(soff)
        g.waitcnt(vm=0)
        g.vmq = []
        flags_ok(PL)

    def elapsed():
        g.s("s_memrealtime %s" % sr(S_T + 4, 2))
        g.waitcnt(lg=0)
        g.s("s_sub_u32 %s, %s, %s" % (sr(S_T + 4), sr(S_T + 4), sr(S_NONCE)))

    def job_init():
        for k in range(24):
            vop(g, "v_mov_b32 %s, 0" % vr(RD + k), RD + k)
        g.s("s_mov_b32 %s, 0" % sr(S_DONE))
        g.s("s_mov_b32 %s, 0" % sr(S_ACC))
    g.label("slow")
    if E("PFIRST", 0):
        poll_load(S_XS + 1)
    job_init()
    g.waitcnt(vm=0)
    g.vmq = []
    flag_store(S_FS, "FS")
    if NOFAST:
        stamp(g)
    if FORCE_AB & 255:
        g.s("s_and_b32 %s, s2, %d" % (sr(S_T), FORCE_AB & 255))
        g.s("s_cmp_eq_u32 %s, 0" % sr(S_T))
        g.s("s_cbranch_scc1 giveup")
    if FORCE_AB & 256:
        g.s("s_branch giveup")
    g.s("s_branch %s" % ("process" if E("PFIRST", 0) else "poll"))
    g.label("job")
    job_setup(g, lambda o: o())
    job_init()
    g.label("poll")
    poll_load(S_XS + 1)
    g.waitcnt(vm=0)
    g.vmq = []
    g.label("process")
    flags_ok(PL)
    g.s("s_andn2_b32 %s, %s, %s" % (sr(S_NEW), sr(S_M + 1), sr(S_DONE)))
    g.s("s_cbranch_scc0 noload")
    for src in range(8):
        g.s("s_bitcmp1_b32 %s, %d" % (sr(S_NEW), src))
        g.s("s_cbranch_scc0 nold%d" % src)
        g.s("s_add_u32 %s, %s, %d" % (sr(S_T), sr(S_XS + 2), src * 12288))
        for t in range(3):
            d = LDT[t] + src * 4
            g.vload("buffer_load_dwordx4 %s, %s, %s, %s offen offset:%d sc1" % (vr(d, 4), vr(L16), sr(SRD_WS, 4), sr(S_T), t * 1024), "R", dst=rng(d, 4), addr=[L16])
        g.label("nold%d" % src)
    g.vmq = []
    g.label("noload")
    g.s("s_cmp_eq_u32 %s, 0" % sr(S_ACC))
    g.s("s_cbranch_scc1 noacc")
    for src in range(8):
        g.s("s_bitcmp1_b32 %s, %d" % (sr(S_ACC), src))
        g.s("s_cbranch_scc0 noac%d" % src)
        for t in range(3):
            for h in range(2):
                r = RD + (t * 2 + h) * 4
                g.mfma(r, AC + 2 - 2 * h, LDT[t] + src * 4, r)
        g.label("noac%d" % src)
    g.label("noacc")
    g.s("s_or_b32 %s, %s, %s" % (sr(S_DONE), sr(S_DONE), sr(S_NEW)))
    g.s("s_mov_b32 %s, %s" % (sr(S_ACC), sr(S_NEW)))
    g.s("s_cmp_lg_u32 %s, 0xff" % sr(S_DONE))
    g.s("s_cbranch_scc1 more")
    g.s("s_cmp_eq_u32 %s, 0" % sr(S_ACC))
    g.s("s_cbranch_scc1 finish")
    if NOFAST:
        stamp(g)
    g.waitcnt(vm=0)
    g.s("s_mov_b32 %s, 0" % sr(S_NEW))
    g.s("s_branch noload")
    g.label("more")
    g.s("s_cmp_lg_u32 %s, 0" % sr(S_NEW))
    g.s("s_cbranch_scc1 poll")
    g.s("s_sleep %d" % SLEEP)
    elapsed()
    g.s("s_cmp_lt_i32 %s, %d" % (sr(S_T + 4), X_AB))
    g.s("s_cbranch_scc1 poll")
    g.label("giveup")
    g.s("s_and_b32 %s, %s, 1" % (sr(S_T), sr(S_RO)))
    g.s("s_lshl_b32 %s, %s, 2" % (sr(S_T), sr(S_T)))
    g.s("s_add_u32 %s, %s, %s" % (sr(S_T), sr(S_T), sr(S_RR)))
    g.s("s_lshl_b32 %s, %s, 3" % (sr(S_T), sr(S_T)))
    g.s("s_add_u32 %s, %s, 64" % (sr(S_T), sr(S_T)))
    g.s("s_add_u32 %s, %s, %s" % (sr(S_T), sr(S_T), sr(S_XS + 1)))
    flag_store(S_T, "FS")
    g.waitcnt(vm=0)
    g.vmq = []
    poll(S_XS + 1)
    g.s("s_cbranch_scc1 process")
    g.s("s_branch after")
    g.label("finish")
    g.nop(10)
    for t in range(3):
        r_out(t)
    if NOFAST:
        stamp(g)
        stamp_flush(g)
    g.label("after")
    g.nop(8)
    g.s("s_cmp_lg_u32 %s, 0" % sr(S_PHASE))
    g.s("s_cbranch_scc1 next")
    g.s("s_mov_b32 %s, 1" % sr(S_PHASE))
    g.waitcnt(vm=3 + (1 if STAMP else 0))
    elapsed()
    g.s("s_cmp_lt_i32 %s, %d" % (sr(S_T + 4), X_CK))
    if not FORCE_AB:
        g.s("s_cbranch_scc1 k_end")
    poll(S_XS)
    g.s("s_lshr_b32 %s, %s, 8" % (sr(S_PEND), sr(S_M)))
    g.s("s_and_b32 %s, %s, 0xff" % (sr(S_PEND), sr(S_PEND)))
    g.s("s_cmp_eq_u32 %s, 0xff" % sr(S_M + 1))
    g.s("s_cselect_b32 %s, %s, 0" % (sr(S_PEND), sr(S_PEND)))
    g.label("next")
    g.s("s_cmp_eq_u32 %s, 0" % sr(S_PEND))
    g.s("s_cbranch_scc1 k_end")
    g.s("s_ff1_i32_b32 %s, %s" % (sr(S_T), sr(S_PEND)))
    g.s("s_bitset0_b32 %s, %s" % (sr(S_PEND), sr(S_T)))
    g.s("s_and_b32 %s, %s, 3" % (sr(S_RR), sr(S_T)))
    g.s("s_lshr_b32 %s, %s, 2" % (sr(S_T), sr(S_T)))
    g.s("s_lshl_b32 %s, s3, 1" % sr(S_RO))
    g.s("s_add_u32 %s, %s, %s" % (sr(S_RO), sr(S_RO), sr(S_T)))
    g.waitcnt(vm=0)
    g.s("s_branch job")
    g.label("k_end")


def body():
    _stamp_n[0] = 0
    g0 = prologue()
    n = len(CLS)
    if n > 1:
        if CLF == "b":
            g0.s("s_and_b32 %s, %s, %d" % (sr(S_TYPE), sr(S_B), n - 1))
        else:
            g0.s("s_add_u32 %s, %s, %s" % (sr(S_TYPE), sr(S_B), sr(S_HG)))
            g0.s("s_and_b32 %s, %s, %d" % (sr(S_TYPE), sr(S_TYPE), n - 1))
        for c in range(1, n):
            g0.s("s_cmp_eq_u32 %s, %d" % (sr(S_TYPE), c))
            g0.s("s_cbranch_scc1 cls%d" % c)
    n0 = _stamp_n[0]
    txt = []
    for c in range(n):
        _stamp_n[0] = n0
        g = Gen()
        g.label("cls%d" % c)
        part1(g, CLS[c])
        if c:
            g.s("s_branch join")
        txt.append(g.text())
    g = Gen()
    g.vmq = ["V0", "V1", "V2", "TCH", "VD"]
    g.label("join")
    part2(g)
    g.raw("s_endpgm")
    return g0.text() + txt[0] + g.text() + "".join(txt[1:]) + "code_end:\n"


def main():
    out = "; fused attention: q-proj + attention + o-proj partial per workgroup, cross-workgroup bf16 reduction\n"
    out += "; @launch kernel=attn_kernel grid=(256,1,1) block=(256,1,1) lds=%d\n" % LDS_BYTES
    out += '.amdgcn_target "amdgcn-amd-amdhsa--gfx950"\n.text\n'
    out += ".globl attn_kernel\n.p2align 8\n.type attn_kernel,@function\nattn_kernel:\n"
    out += body()
    out += '.section .rodata,"a"\n.p2align 6\n.amdhsa_kernel attn_kernel\n'
    out += "  .amdhsa_next_free_vgpr 512\n  .amdhsa_next_free_sgpr 102\n  .amdhsa_accum_offset 256\n"
    out += "  .amdhsa_group_segment_fixed_size 0\n  .amdhsa_kernarg_size 104\n  .amdhsa_user_sgpr_count 2\n"
    out += "  .amdhsa_user_sgpr_kernarg_segment_ptr 1\n  .amdhsa_system_sgpr_workgroup_id_x 1\n.end_amdhsa_kernel\n"
    path = sys.argv[1] if len(sys.argv) > 1 else "cdna_kernels/%s.s" % NAME
    open(path, "w").write(out)
    print("wrote", path, len(out), "bytes; stamps", _stamp_n[0], "late", LATE[:12])
    if E("INFO", 0):
        for i in INFO:
            print(i)


main()
```

```python
import sys, os
sys.path.insert(0, os.path.dirname(os.path.abspath(__file__)))
from asmgen2 import Gen, vr, sr

NAME = "concat_heads__gqa_block_cached__gqa_block_cached__near_ridge"
WS_BYTES = 268435456
E = lambda k, d: int(os.environ.get(k, str(d)))
STAMP = E("STAMP", 0)
STAMP_BASE = 200 * 1024 * 1024
NRAW = E("NRAW", 3)
WQT = E("WQT", 1)
WOT = E("WOT", 1)
XBAR = dict((int(a), int(b)) for a, b in (t.split(":") for t in os.environ.get("XBAR", "0:1,4:3,8:5,12:7").split(",")))
VL = dict((int(t[0]), int(t[2])) for t in os.environ.get("VL", "0h0,1h1,2h2").split(",") if t)
PDEF = os.environ.get("PTOK", "x0,w0,x1,w1,t")
QB = os.environ.get("QB", "w2,x2,x3,w3,w4,w5,w6,x4,x5,w7,w8,w9,w10,x6,x7,w11,w12,w13,w14,w15,V0h0,V1h1")
CLS = []
for c in os.environ.get("KP", "5,9,13|6,10,14|7,11,15|8,12,15").split("|"):
    kp = [int(t) for t in c.split(",")]
    q = []
    for tok in QB.split(","):
        q.append(tok)
        for p_ in range(3):
            if tok == "w%d" % kp[p_]:
                q.append("K%dh%d" % (p_, p_))
    CLS.append({"P": PDEF.split(","), "Q": q})
if os.environ.get("QTOK"):
    CLS = [{"P": PDEF.split(","), "Q": c.split(",")} for c in os.environ["QTOK"].split("|")]
RM = E("RM", 14)
BUD, CC, CW, CAP = E("BUD", 58), E("CC", 65), E("CW", 33), E("CAP", 100)
SM2 = E("SM2", 0)
POST = {}
for it in os.environ.get("POST", "0=V2h2;3=T;4=Y").split(";"):
    k, v = it.split("=")
    POST[int(k)] = v.split(",")
CLF = os.environ.get("CLF", "b")
FORCE_AB = E("FORCE_AB", 0)
POLL_MAX = E("POLL_MAX", 300)
SLEEP = E("SLEEP", 2)
NT = os.environ.get("NT", " nt")
PART = 0
FLG = 64 * 1024 * 1024
FC = 0x5A3C96E1
FLGP = FLG + 65536
X_AB = E("X_AB", 40000)
X_CK = E("X_CK", 20000)
RETRY = E("RETRY", 40)
R2 = [int(c) for c in os.environ.get("R2", "11211212")]
PFS = E("PFS", 1)
PPS = E("PPS", 11)
T2POS = E("T2POS", 1)
EXP, EXS, EXL = E("EXP", 0), E("EXS", 4), E("EXL", 11)

SRD_X, SRD_K, SRD_V, SRD_W, SRD_WS, SRD_WO, SRD_OUT, SRD_DBG = 20, 24, 28, 32, 36, 40, 44, 48
SE = 51
S_PLO, S_PHI = 60, 61
S_BH, S_HG, S_B, S_BLK, S_GRP, S_TYPE, S_C = 62, 63, 64, 65, 66, 67, 68
S_W0 = 70
S_T = 72
S_NONCE, S_RO, S_RR, S_PEND, S_PHASE, S_CNT = 80, 81, 82, 83, 84, 85
S_WI, S_XR = 80, 82
ROT = E("ROT", 2)
S_XS = 86
S_XM = 89
S_PB = 89
S_VL = 92
S_M = 94
S_ST = 96

RAW = 0
WT = 96 if NRAW == 3 else 224
WT8 = 64
KF = 128
VW, XB, VK, VV, VWO, L16, VOW, L16H = 240, 241, 245, 246, 247, 248, 249, 250
VOW2 = XB
TQ = 251
XA = TQ
WTA = 112 if NRAW == 3 else A0 + 254 if False else 112
VR2 = 0
VKD, VKR = 113, 117
QF = 32
SB = 64
PT = 112
TM = 124
OB = 64
TT = 32
ZQ = 224
A0 = 256
ACC = A0
BF = A0 + 192
VRA = A0 + 192

L_V = 98304
L_MISC = 34816
LDS_BYTES = 163840

_stamp_n = [0]


def rng(a, n):
    return list(range(a, a + n))


def vop(g, text, dst, src=()):
    g.valu(text, dst=[dst] if isinstance(dst, int) else dst, src=src)


SV = 236


def stamp(g, have=False):
    if not STAMP:
        return
    n = _stamp_n[0]
    _stamp_n[0] += 1
    if not have:
        g.s("%s %s" % (os.environ.get("CLK", "s_memrealtime"), sr(S_ST, 2)))
        g.waitcnt(lg=0)
        g.lgq = []
    g.valu("v_writelane_b32 %s, %s, %d" % (vr(SV), sr(S_ST), n), dst=[SV])
    g.valu("v_writelane_b32 %s, %s, %d" % (vr(SV + 1), sr(S_ST + 1), n), dst=[SV + 1])


def stamp_flush(g):
    if not STAMP:
        return
    g.s("s_lshl_b32 %s, s2, 8" % sr(S_ST + 2))
    g.s("s_add_u32 %s, %s, %d" % (sr(S_ST + 2), sr(S_ST + 2), STAMP_BASE))
    g.s("s_mul_i32 %s, s3, 1048576" % sr(S_ST + 3))
    g.s("s_add_u32 %s, %s, %s" % (sr(S_ST + 2), sr(S_ST + 2), sr(S_ST + 3)))
    vop(g, "v_lshrrev_b32 %s, 1, %s" % (vr(TQ), vr(L16)), TQ, [L16])
    g.s("s_mov_b64 exec, 0xffffffff")
    g.vstore("buffer_store_dwordx2 %s, %s, %s, %s offen" % (vr(SV, 2), vr(TQ), sr(SRD_WS, 4), sr(S_ST + 2)), "STAMP", data=[SV, SV + 1], addr=[TQ])
    g.s("s_mov_b64 exec, -1")


def make_srd(g, srd, ptr, nbytes):
    g.s("s_mov_b32 %s, %s" % (sr(srd), sr(ptr)))
    g.s("s_and_b32 %s, %s, 0xffff" % (sr(srd + 1), sr(ptr + 1)))
    g.s("s_mov_b32 %s, %d" % (sr(srd + 2), nbytes))
    g.s("s_mov_b32 %s, 0x00020000" % sr(srd + 3))


def acc1(j, u):
    return ACC + (u * 8 + j) * 4


def acc2(j, u):
    return ACC + (u * 8 + j) * 4


SL2 = [32, 0, 64, KF, KF + 32]


def raw2(s, e):
    return SL2[s % 5] + e * 4


CYC = [KF + 64, 32, 64, 0, KF, KF + 32]


def raw(s, e):
    return CYC[s % 6] + e * 4


def bf(s, u):
    return BF + ((s % 2) * 6 + u) * 4


def perm_ops(g, rbase, j, dst):
    ops = []
    for m in range(4):
        a, b = rbase + (2 * m) * 4 + (j >> 1), rbase + (2 * m + 1) * 4 + (j >> 1)
        sel = S_PHI if j & 1 else S_PLO

        def op(a=a, b=b, d=dst + m, sel=sel):
            g.valu("v_perm_b32 %s, %s, %s, %s" % (vr(d), vr(b), vr(a), sr(sel)), dst=[d], src=[a, b])
        ops.append(op)
    return ops


def merge(main, fill):
    n = len(main)
    k = 0
    for i, m in enumerate(main):
        m()
        upto = (len(fill) * (i + 1) + n - 1) // n
        while k < upto:
            fill[k]()
            k += 1


def units(tag, ops, cost):
    out, cur = [], []
    for o in ops:
        cur.append(o)
        if getattr(o, "is_load", False):
            out.append([tag, cost, cur])
            cur = []
    if cur:
        out.append([tag, 0, cur])
    return out


def gemm1(g, cl, b_reads, tail):
    acc = acc1
    pend = []
    rdone = set()
    kbar = min(k - 1 for k in XBAR if k - 1 >= 5)
    vbar = min(k - 1 for k in XBAR if k - 1 >= 11)
    for tok in cl["Q"]:
        if tok[0] == "@":
            pend.append([tok, 0, []])
        else:
            pend += units(tok, tok_ops(g, tok), CW if tok[0] == "w" or (ROT == 2 and tok[0] == "x" and int(tok[1]) >= 4) else CC)
    credit = [0]
    kiss = {}
    INFO.append(kiss)

    def ok(tag, s, j):
        if tag[0] == "@":
            return s >= int(tag[1:])
        if tag[0] == "w":
            return (s, j) >= (int(tag[1:]) - 6, 7)
        if tag[0] == "K" and tag[3] == "2":
            return (s, j) >= (kbar, 4)
        if tag[0] == "V" and tag[3] == "2":
            return (s, j) >= (vbar, 4)
        if tag[0] == "V":
            return tag[3] in rdone
        return True

    def take(s, j):
        out = []
        credit[0] = min(CAP, credit[0] + BUD)
        while pend and ok(pend[0][0], s, j) and credit[0] >= pend[0][1]:
            t, c, o = pend.pop(0)
            credit[0] -= c
            out += o
            kiss[t] = 8 * s + j
        return out

    def upto(tag, s, j):
        out = []
        while any(t == tag for t, _, _ in pend):
            t, c, o = pend.pop(0)
            assert t[0] == "@" or ok(t, s, j), (t, tag, s, j)
            credit[0] -= c
            out += o
            kiss[t] = 8 * s + j
            LATE.append((tag, t, s, j))
        return out
    side = []

    rnext = [0]

    def side_add(s):
        while rnext[0] < 3:
            p_ = rnext[0]
            tok = "R%dh%d" % (p_, p_)
            if s < 16 and (s < 11 + p_ or any(t == "K" + tok[1:] for t, _, _ in pend) or 8 * s < kiss["K" + tok[1:]] + RM):
                break
            side.append(lambda tok=tok, s=s: run(upto("K" + tok[1:], s, 0)))
            side.extend(tok_ops(g, tok))
            side.append(lambda tok=tok: rdone.add(tok[3]))
            rnext[0] += 1
            INFO.append((tok, s))

    def side_take(n):
        out = []
        while side and n > 0:
            o = side.pop(0)
            out.append(o)
            if getattr(o, "is_load", False):
                n -= 1
        while side and not getattr(side[0], "is_load", False) and len(side) == 1:
            out.append(side.pop(0))
        return out
    g.wait_vm("W0")
    for op in perm_ops(g, raw(0, 0), 0, WT):
        op()
    for s in range(15):
        side_add(s)
        for j in range(8):
            idx = 8 * s + j
            fill = []
            if j == 7:
                fill += upto("w%d" % (s + 1), s, j)
                fill.append(lambda s=s: g.wait_vm("W%d" % (s + 1)))
                fill += perm_ops(g, raw(s + 1, 0), 0, (WT8 if s == 14 else WT + ((idx + 1) % 4) * 4))
            else:
                fill += perm_ops(g, raw(s, 0), j + 1, WT + ((idx + 1) % 4) * 4)
            fill += take(s, j)
            if j == 3 and (s + 1) in XBAR:
                tags = ["X%d" % k for k in range(XBAR[s + 1] + 1)]
                for t in tags:
                    fill += upto(t.lower(), s, j)
                fill.append(lambda tags=tags: g.wait_vm(tags))
                fill.append(g.barrier)
            if 3 <= j <= 5:
                fill += b_reads(s + 1)[(j - 3) * 2:(j - 3) * 2 + 2]
            elif j < 3:
                fill += side_take(3)
            if j == 0:
                g.wait_lg("B%d" % s)
                if STAMP == 2 and s > 0:
                    stamp(g)
            a = WT + (idx % 4) * 4
            main = [(lambda u=u: g.mfma(acc(j, u), a, bf(s, u), None if s == 0 else acc(j, u))) for u in range(6)]
            merge(main, fill)
    s = 15
    side_add(15)
    g.wait_lg("B15")
    carry = []
    for n, u in enumerate(range(6)):
        main = [(lambda j=j: g.mfma(acc(j, u), WT8 + j * 4, bf(s, u), acc(j, u))) for j in range(8)]
        if n == 0:
            for j in range(8):
                main[j]()
                if j < 7:
                    for op in perm_ops(g, raw(s, 0), j + 1, WT8 + (j + 1) * 4):
                        op()
        else:
            fill = side_take(4)
            merge(main[:1], fill)
            fill = take(15, n) + take(15, n) + carry[:20]
            carry = carry[20:]
            merge(main[1:], fill)
        carry += tail(u)
    side_add(16)
    run(side)
    rest = []
    for t, c, o in pend:
        assert t[0] == "@" or ok(t, 16, 0), t
        rest += o
    return rest, carry


LATE = []
INFO = []


def mark(ops):
    for o in ops:
        names = o.__code__.co_names
        if "vload" in names:
            o.is_load = True
    return ops


def q_conv(g, u):
    ops = []
    for i in range(4):
        for m in range(4):
            t0, t1 = TQ + (m % 2) * 2, TQ + (m % 2) * 2 + 1
            s0, s1 = acc1(2 * m, u) + i, acc1(2 * m + 1, u) + i
            d = QF + (u % 2) * 16 + i * 4 + m
            ops.append(lambda t=t0, s=s0: g.valu("v_accvgpr_read_b32 %s, %s" % (vr(t), vr(s)), dst=[t], src=[s]))
            ops.append(lambda t=t1, s=s1: g.valu("v_accvgpr_read_b32 %s, %s" % (vr(t), vr(s)), dst=[t], src=[s]))
            ops.append(lambda d=d, a=t0, b=t1: g.valu("v_cvt_pk_bf16_f32 %s, %s, %s" % (vr(d), vr(a), vr(b)), dst=[d], src=[a, b]))
    return ops


def sacc(u, kt):
    return SB + (u % 2) * 24 + kt * 4


def pfrag(u, pp):
    return ACC + u * 32 + pp * 4


ONES = 224


def psum(u):
    return ACC + u * 32 + 12


def softmax_ops(g, u):
    ops = []
    A = ops.append
    vals = [sacc(u, kt) + r for kt in range(6) for r in range(4)]
    m, tmp, r = TM, TM + 1, TM + 2
    m2 = TM + 3

    def V(text, dst, src, **kw):
        A(lambda: g.valu(text, dst=dst, src=src, **kw))
    V("v_max3_f32 %s, %s, %s, %s" % (vr(m), vr(vals[0]), vr(vals[1]), vr(vals[2])), [m], vals[0:3])
    V("v_max3_f32 %s, %s, %s, %s" % (vr(m2), vr(vals[3]), vr(vals[4]), vr(vals[5])), [m2], vals[3:6])
    k = 6
    while k < 24:
        mm = m if (k // 2) % 2 else m2
        V("v_max3_f32 %s, %s, %s, %s" % (vr(mm), vr(mm), vr(vals[k]), vr(vals[k + 1])), [mm], [mm, vals[k], vals[k + 1]])
        k += 2
    V("v_max_f32 %s, %s, %s" % (vr(m), vr(m), vr(m2)), [m], [m, m2])

    def xl(x, op):
        for sw in ("v_permlane32_swap_b32", "v_permlane16_swap_b32"):
            V("v_mov_b32 %s, %s" % (vr(tmp), vr(x)), [tmp], [x])
            V("%s %s, %s" % (sw, vr(x), vr(tmp)), [x, tmp], [x, tmp], permlane=True)
            V("%s %s, %s, %s" % (op, vr(x), vr(x), vr(tmp)), [x], [x, tmp])
    xl(m, "v_max_f32")
    V("v_mul_f32 %s, %s, %s" % (vr(m), sr(S_C), vr(m)), [m], [m])
    for v in vals:
        V("v_fma_f32 %s, %s, %s, -%s" % (vr(v), vr(v), sr(S_C), vr(m)), [v], [v, m])
    for v in vals:
        V("v_exp_f32 %s, %s" % (vr(v), vr(v)), [v], [v], trans=True)
    for pp in range(3):
        for h in range(4):
            a = sacc(u, 2 * pp + (h >> 1)) + (h & 1) * 2
            d = PT + pp * 4 + h
            V("v_cvt_pk_bf16_f32 %s, %s, %s" % (vr(d), vr(a), vr(a + 1)), [d], [a, a + 1])
    for k in range(12):
        d = pfrag(u, 0) + k
        V("v_accvgpr_write_b32 %s, %s" % (vr(d), vr(PT + k)), [d], [PT + k])
    for pp in range(3):
        A(lambda pp=pp: g.mfma(psum(u), ONES, PT + pp * 4, None if pp == 0 else psum(u)))
    return ops


S_K2, S_KD, S_JUNK, S_TB = 4, 5, 13, 6


def k_dma(g, part, half):
    ops = []
    for n8 in range(8):
        n = part * 8 + n8
        ops.append(lambda n=n: g.s("s_add_u32 %s, %s, %d" % (sr(S_T + 1), sr(S_BH), n * 1024)))
        if half == 2:
            ops.append(lambda n8=n8: g.s("s_add_u32 m0, %s, %d" % (sr(S_K2), n8 * 1024), m0=True))
        else:
            ops.append(lambda n8=n8: g.s("s_add_u32 m0, %s, %d" % (sr(S_VL), half * 8192 + n8 * 1024), m0=True))
        ops.append(lambda n=n: g.vload("buffer_load_dwordx4 %s, %s, %s offen%s lds" % (vr(VKD + (n & 3)), sr(SRD_K, 4), sr(S_T + 1), NT), "KD%d" % part, addr=[VKD + (n & 3)], lds=True))
    return ops


def k_read(g, part, half):
    ops = [lambda: g.wait_vm("KD%d" % part)]
    if half == 2:
        for i in range(4):
            ops.append(lambda i=i: vop(g, "v_subrev_u32 %s, %s, %s" % (vr(VKR + i), sr(S_KD), vr(VKR + i)), VKR + i, [VKR + i]))
    for k2 in range(2):
        for i in range(4):
            d = KF + ((part * 2 + k2) * 4 + i) * 4
            o = lambda d=d, i=i, k2=k2: g.dsread("ds_read_b128 %s, %s offset:%d" % (vr(d, 4), vr(VKR + i), (half & 1) * 8192 + k2 * 4096), "KR%d" % half, dst=rng(d, 4), addr=[VKR + i])
            o.is_load = True
            ops.append(o)
    return ops


def vraw(pp, e):
    return (VRA + pp * 32 + e * 4) if pp < 2 else (VR2 + e * 4)


def v_loads(g, pp_):
    ops = []
    for pp in (pp_,):
        for e in range(8):
            if e % 4 == 0:
                ops.append(lambda pp=pp, e=e: g.s("s_add_u32 %s, %s, %d" % (sr(S_T + 1), sr(S_BH), pp * 8192 + (e >> 2) * 4096)))
            d = vraw(pp, e)
            ops.append(lambda d=d, e=e, pp=pp: g.vload("buffer_load_dwordx4 %s, %s, %s, %s offen offset:%d%s" % (vr(d, 4), vr(VV), sr(SRD_V, 4), sr(S_T + 1), (e & 3) * 256, NT),
                                                       "V%d" % pp, dst=rng(d, 4), addr=[VV]))
    return ops


L_V2 = 36864


def v_dma(g, pp, half):
    ops = [lambda: g.wait_lg("KR%d" % half)] if half < 2 else []
    for e in range(8):
        ops.append(lambda pp=pp, e=e: g.s("s_add_u32 %s, %s, %d" % (sr(S_T + 1), sr(S_BH), pp * 8192 + e * 1024)))
        if half < 2:
            ops.append(lambda pp=pp, e=e: g.s("s_add_u32 m0, %s, %d" % (sr(S_VL), (half * 8 + e) * 1024), m0=True))
        else:
            ops.append(lambda pp=pp, e=e: g.s("s_add_u32 m0, %s, %d" % (sr(S_K2), L_V2 + e * 1024), m0=True))
        a = VK if e & 1 else VV
        ops.append(lambda a=a: g.vload("buffer_load_dwordx4 %s, %s, %s offen%s lds" % (vr(a), sr(SRD_V, 4), sr(S_T + 1), NT), "VD", addr=[a], lds=True))
    return ops


def wo_touch(g):
    ops = []
    A = ops.append
    A(lambda: g.s("s_lshl_b32 %s, %s, 2" % (sr(S_T + 3), sr(S_B))))
    A(lambda: g.s("s_add_u32 %s, %s, s3" % (sr(S_T + 3), sr(S_T + 3))))
    A(lambda: g.s("s_lshl_b32 %s, %s, 13" % (sr(S_T + 3), sr(S_T + 3))))
    A(lambda: g.s("s_lshl_b32 %s, %s, 19" % (sr(S_T + 4), sr(S_HG))))
    A(lambda: g.s("s_add_u32 %s, %s, %s" % (sr(S_T + 3), sr(S_T + 3), sr(S_T + 4))))
    A(lambda: vop(g, "v_lshlrev_b32 %s, 3, %s" % (vr(TQ + 4), vr(L16)), TQ + 4, [L16]))
    A(lambda: g.vload("buffer_load_dword %s, %s, %s, %s offen" % (vr(TQ + 4), vr(TQ + 4), sr(SRD_WO, 4), sr(S_T + 3)), "TCH", dst=[TQ + 4], addr=[TQ + 4]))
    return ops


def w1_loads(g):
    def f(s):
        ops = []
        if s > 0:
            if ROT:
                ops.append(lambda: vop(g, "v_add_u32 %s, %s, %s" % (vr(VW), sr(S_WI + (s & 1)), vr(VW)), VW, [VW]))
                ops.append(lambda: vop(g, "v_and_b32 %s, 0x3fffff, %s" % (vr(VW), vr(VW)), VW, [VW]))
            else:
                ops.append(lambda: vop(g, "v_add_u32 %s, 0x40000, %s" % (vr(VW), vr(VW)), VW, [VW]))
        for e in range(8):
            d = raw(s, e)
            so = "0" if e == 0 else sr(SE + e)
            ops.append(lambda d=d, so=so, s=s: g.vload("buffer_load_dwordx4 %s, %s, %s, %s offen" % (vr(d, 4), vr(VW), sr(SRD_W, 4), so),
                                                       "W%d" % s, dst=rng(d, 4), addr=[VW]))
        return mark(ops)
    return f


def b1_reads(g):
    def f(s):
        ops = []
        sp = s >> 1
        a = XB + (s & 1) + 2 * (sp >> 2)
        for u in range(6):
            d = bf(s, u)
            ops.append(lambda d=d, a=a, off=((sp & 3) * 12 + 2 * u) * 1024, s=s:
                       g.dsread("ds_read_b128 %s, %s offset:%d" % (vr(d, 4), vr(a), off), "B%d" % s, dst=rng(d, 4), addr=[a]))
        return ops
    return f


def w2_loads(g):
    def f(s):
        ops = []
        if E("NOW2", 0) and s >= 5:
            return ops
        h, i = s >> 2, s & 3
        base = h * 131072 + i * 16384
        for e in range(8):
            if e % 4 == 0:
                ops.append(lambda e=e: g.s("s_mov_b32 %s, %d" % (sr(S_T + 2), base + (e >> 2) * 8192)))
            d = raw2(s, e)
            if E("X2T", 0):
                for hf in range(2):
                    ops.append(lambda d=d + 2 * hf, e=e, s=s, hf=hf: g.vload("buffer_load_dwordx2 %s, %s, %s, %s offen offset:%d" % (vr(d, 2), vr(VWO), sr(SRD_WO, 4), sr(S_T + 2), (e & 3) * 1024 + hf * 128),
                                                                         "W%d" % s, dst=rng(d, 2), addr=[VWO]))
                continue
            ops.append(lambda d=d, e=e, s=s: g.vload("buffer_load_dwordx4 %s, %s, %s, %s offen offset:%d" % (vr(d, 4), vr(VWO), sr(SRD_WO, 4), sr(S_T + 2), (e & 3) * 1024),
                                                     "W%d" % s, dst=rng(d, 4), addr=[VWO]))
        return mark(ops)
    return f


def b2_reads(g):
    def f(s):
        ops = []
        h, i = s >> 2, s & 3
        for u in range(6):
            d = bf(s, u)
            n = i * 6 + u
            a, off = (L16H, h * 16384 + n * 1024) if n < 16 else (L16, h * 8192 + (n - 16) * 1024)
            ops.append(lambda d=d, a=a, off=off, s=s:
                       g.dsread("ds_read_b128 %s, %s offset:%d" % (vr(d, 4), vr(a), off), "B%d" % s, dst=rng(d, 4), addr=[a]))
        return ops
    return f


def b2_read1(g, s, u, d, tag):
    h, i = s >> 2, s & 3
    n = i * 6 + u
    a, off = (L16H, h * 16384 + n * 1024) if n < 16 else (L16, h * 8192 + (n - 16) * 1024)
    return lambda: g.dsread("ds_read_b128 %s, %s offset:%d" % (vr(d, 4), vr(a), off), tag, dst=rng(d, 4), addr=[a])


def gemm2(g, w_loads, b_reads, tail, extra):
    pend = []

    def add(tag, ops):
        pend.extend((tag, o) for o in ops)

    def take(n):
        out = []
        while pend and n > 0:
            t, o = pend.pop(0)
            out.append(o)
            if getattr(o, "is_load", False):
                n -= 1
        return out

    def upto(tag):
        out = []
        while any(t == tag for t, _ in pend):
            out.append(pend.pop(0)[1])
        return out
    TS = {13: KF + 64, 14: SL2[11 % 5], 15: SL2[12 % 5]}
    bq = lambda n, k: BF + (((n * 3 + 6) % 12) + k) * 4
    for t in (2, 3, 4):
        add("W%d" % t, w_loads(t))
    g.wait_vm("W0")
    for op in perm_ops(g, raw2(0, 0), 0, WT):
        op()
    xq = []
    for s in range(13):
        xq += extra(s)
        if s == 12:
            xq += upto("W13") + [lambda: g.wait_vm("W13")]
            for j in range(8):
                xq += perm_ops(g, raw2(13, 0), j, TS[13] + j * 4)
        for j in range(8):
            idx = 8 * s + j
            fill = []
            if j == 7:
                if s < 12:
                    fill += upto("W%d" % (s + 1))
                    fill.append(lambda s=s: g.wait_vm("W%d" % (s + 1)))
                    fill += perm_ops(g, raw2(s + 1, 0), 0, WT + ((idx + 1) % 4) * 4)
                if s + 5 < 16:
                    add("W%d" % (s + 5), w_loads(s + 5))
            else:
                fill += perm_ops(g, raw2(s, 0), j + 1, WT + ((idx + 1) % 4) * 4)
            fill += take(R2[j])
            if 3 <= j <= 5:
                if s < 12:
                    fill += b_reads(s + 1)[(j - 3) * 2:(j - 3) * 2 + 2]
                else:
                    fill += [b2_read1(g, 13 + (j - 3), n, bq(n, j - 3), "C%d" % n) for n in range(2)]
            k = (len(xq) + 7 - j) // (8 - j)
            k = min(k, 8) if s < 12 else k
            fill += xq[:k]
            xq = xq[k:]
            if j == 0:
                g.wait_lg("B%d" % s)
                if STAMP == 3 and s > 0:
                    stamp(g)
            a = WT + (idx % 4) * 4
            main = [(lambda u=u: g.mfma(acc2(j, u), a, bf(s, u), None if s == 0 else acc2(j, u))) for u in range(6)]
            merge(main, fill)
    assert not xq
    carry = []
    for n in range(6):
        u = n
        g.wait_lg("C%d" % n)
        if STAMP == 3:
            stamp(g)
        main = [(lambda j=j, k=k: g.mfma(acc2(j, u), TS[13 + k] + j * 4, bq(n, k), acc2(j, u))) for k in range(3) for j in range(8)]
        brd = [b2_read1(g, 13 + k, n + 2, bq(n + 2, k), "C%d" % (n + 2)) for k in range(3)] if n + 2 < 6 else []
        if n == 0:
            for k in (1, 2):
                fill = upto("W%d" % (13 + k)) + [lambda k=k: g.wait_vm("W%d" % (13 + k))]
                for j in range(8):
                    fill += perm_ops(g, raw2(13 + k, 0), j, TS[13 + k] + j * 4)
                merge(main[(k - 1) * 8:k * 8 - 1], fill)
                main[k * 8 - 1]()
            merge(main[16:], brd)
        else:
            merge(main, brd + carry)
        carry = tail(n)
    assert not pend
    run(carry)


def run(ops):
    for o in ops:
        o()


def prologue():
    g = Gen()
    g.s("s_cmp_ge_u32 s2, 256")
    g.s("s_cbranch_scc1 k_end")
    if STAMP:
        g.s("%s %s" % (os.environ.get("CLK", "s_memrealtime"), sr(S_ST, 2)))
    if E("CPF", 2):
        g.s("s_getpc_b64 %s" % sr(SRD_OUT, 2))
        g.label("pc_here")
        if E("CPF", 2) == 1:
            g.s("s_bfe_u32 %s, s2, 0x30003" % sr(S_T))
            g.s("s_lshl_b32 %s, %s, 15" % (sr(S_T), sr(S_T)))
        else:
            g.s("s_lshr_b32 %s, s2, 3" % sr(S_T))
            g.s("s_lshl_b32 %s, %s, 12" % (sr(S_T), sr(S_T)))
            g.valu("v_cmp_gt_u32 vcc, 32, v0", src=[0])
        g.s("s_and_b32 %s, %s, 0xffff" % (sr(SRD_OUT + 1), sr(SRD_OUT + 1)))
        g.s("s_mov_b32 %s, code_end-pc_here" % sr(SRD_OUT + 2))
        g.s("s_mov_b32 %s, 0x00020000" % sr(SRD_OUT + 3))
        vop(g, "v_lshlrev_b32 %s, 7, v0" % vr(TQ + 4), TQ + 4, [0])
        if E("CPF", 2) != 1:
            vop(g, "v_cndmask_b32 %s, -1, %s, vcc" % (vr(TQ + 4), vr(TQ + 4)), TQ + 4, [TQ + 4])
        g.vload("buffer_load_dword %s, %s, %s, %s offen" % (vr(TQ + 4), vr(TQ + 4), sr(SRD_OUT, 4), sr(S_T)), "CPF", dst=[TQ + 4], addr=[TQ + 4])
    g.s("s_bfe_u32 %s, s2, 0x10002" % sr(S_BLK))
    g.s("s_mul_i32 s16, %s, 40" % sr(S_BLK))
    g.s("s_add_u32 s18, s0, s16")
    g.s("s_addc_u32 s19, s1, 0")
    g.s("s_load_dwordx8 s[8:15], s[18:19], 0")
    g.s("s_load_dwordx2 s[16:17], s[18:19], 32")
    g.s("s_load_dwordx4 s[4:7], s[0:1], 80")
    g.s("s_load_dwordx2 s[18:19], s[0:1], 96")
    LN, Q, G, R8, C8, T1, T2 = 130, 131, 132, 133, 134, 135, 136
    vop(g, "v_lshrrev_b32 %s, 6, v0" % vr(T1), T1, [0])
    vop(g, "v_and_b32 %s, 63, v0" % vr(LN), LN, [0])
    g.valu("v_readfirstlane_b32 s3, %s" % vr(T1), src=[T1], readlane=True, sdst=[3])
    g.s("s_and_b32 %s, s2, 3" % sr(S_HG))
    g.s("s_lshl_b32 %s, %s, 1" % (sr(S_HG), sr(S_HG)))
    g.s("s_bfe_u32 %s, s2, 0x10003" % sr(S_T))
    g.s("s_add_u32 %s, %s, %s" % (sr(S_HG), sr(S_HG), sr(S_T)))
    g.s("s_lshr_b32 %s, s2, 4" % sr(S_B))
    g.s("s_lshl_b32 %s, %s, 4" % (sr(S_GRP), sr(S_BLK)))
    g.s("s_add_u32 %s, %s, %s" % (sr(S_GRP), sr(S_GRP), sr(S_B)))
    vop(g, "v_and_b32 %s, 15, %s" % (vr(Q), vr(LN)), Q, [LN])
    vop(g, "v_lshrrev_b32 %s, 4, %s" % (vr(G), vr(LN)), G, [LN])
    vop(g, "v_lshrrev_b32 %s, 3, %s" % (vr(R8), vr(LN)), R8, [LN])
    vop(g, "v_and_b32 %s, 7, %s" % (vr(C8), vr(LN)), C8, [LN])
    vop(g, "v_lshlrev_b32 %s, 4, %s" % (vr(L16), vr(LN)), L16, [LN])
    vop(g, "v_add_u32 %s, %d, %s" % (vr(L16H), L_V, vr(L16)), L16H, [L16])
    for e in range(1, 8):
        g.s("s_mov_b32 %s, %d" % (sr(SE + e), e * 8192))
    g.s("s_mov_b32 %s, 0x05040100" % sr(S_PLO))
    g.s("s_mov_b32 %s, 0x07060302" % sr(S_PHI))
    g.s("s_mov_b32 %s, 0x3e0293ee" % sr(S_C))
    g.s("s_cmp_eq_u32 s3, 0")
    g.s("s_cselect_b32 %s, 1, 0" % sr(S_W0))
    g.s("s_mov_b32 %s, 0" % sr(S_W0 + 1))
    g.s("s_lshl_b32 %s, %s, 5" % (sr(S_T), sr(S_B)))
    g.s("s_lshl_b32 %s, %s, 2" % (sr(S_T + 1), sr(S_HG)))
    g.s("s_add_u32 %s, %s, %s" % (sr(S_T), sr(S_T), sr(S_T + 1)))
    g.s("s_add_u32 %s, %s, s3" % (sr(S_T), sr(S_T)))
    g.s("s_mul_i32 %s, %s, 24576" % (sr(S_BH), sr(S_T)))
    g.s("s_lshl_b32 %s, s3, 14" % sr(S_T))
    g.s("s_add_u32 %s, %s, %d" % (sr(S_VL), sr(S_T), L_V))

    vop(g, "v_lshrrev_b32 %s, 1, %s" % (vr(T1), vr(R8)), T1, [R8])
    vop(g, "v_xor_b32 %s, %s, %s" % (vr(T1), vr(T1), vr(C8)), T1, [T1, C8])
    g.s("s_mul_i32 %s, %s, 98304" % (sr(S_T + 2), sr(S_B)))
    for t in range(3):
        g.s("s_mul_i32 %s, s3, 3" % sr(S_T))
        g.s("s_add_u32 %s, %s, %d" % (sr(S_T), sr(S_T), t))
        g.s("s_lshl_b32 %s, %s, 10" % (sr(S_XM + t), sr(S_T)))
        g.s("s_lshl_b32 %s, %s, 13" % (sr(S_T + 1), sr(S_T)))
        g.s("s_add_u32 %s, %s, %s" % (sr(S_XS + t), sr(S_T + 1), sr(S_T + 2)))
        g.s("s_and_b32 %s, %s, 1" % (sr(S_T), sr(S_T)))
        g.s("s_lshl_b32 %s, %s, 2" % (sr(S_T), sr(S_T)))
        vop(g, "v_xor_b32 %s, %s, %s" % (vr(T2), sr(S_T), vr(T1)), T2, [T1])
        vop(g, "v_lshlrev_b32 %s, 4, %s" % (vr(T2), vr(T2)), T2, [T2])
        vop(g, "v_lshl_add_u32 %s, %s, 10, %s" % (vr(XA + t), vr(R8), vr(T2)), XA + t, [R8, T2])
    PI = 140
    PI = Q
    g.s("s_lshl_b32 %s, %s, 10" % (sr(S_T), sr(S_HG)))
    g.s("s_lshl_b32 %s, s3, 8" % sr(S_T + 1))
    g.s("s_add_u32 %s, %s, %s" % (sr(S_T), sr(S_T), sr(S_T + 1)))
    vop(g, "v_lshlrev_b32 %s, 4, %s" % (vr(T1), vr(PI)), T1, [PI])
    vop(g, "v_lshl_add_u32 %s, %s, 16, %s" % (vr(T2), vr(G), vr(T1)), T2, [G, T1])
    if ROT:
        if ROT == 1:
            g.s("s_mov_b32 %s, %s" % (sr(S_XR + 2), sr(S_B)))
        else:
            g.s("s_and_b32 %s, s2, 8" % sr(S_XR + 2))
        g.s("s_lshl_b32 %s, %s, 18" % (sr(S_WI), sr(S_XR + 2)))
        g.s("s_add_u32 %s, %s, %s" % (sr(S_T), sr(S_T), sr(S_WI)))
        g.s("s_and_b32 %s, %s, 14" % (sr(S_XR), sr(S_XR + 2)))
        g.s("s_lshl_b32 %s, %s, 6" % (sr(S_XR), sr(S_XR)))
        g.s("s_and_b32 %s, %s, 1" % (sr(S_XR + 1), sr(S_XR + 2)))
        g.s("s_lshl_b32 %s, %s, 6" % (sr(S_XR + 1), sr(S_XR + 1)))
        g.s("s_cmp_eq_u32 %s, 0" % sr(S_XR + 1))
        g.s("s_cselect_b32 %s, 0x40000, 0xc0000" % sr(S_WI) if False else "s_mov_b32 %s, 0xc0000" % sr(S_WI))
        g.s("s_cmov_b32 %s, 0x40000" % sr(S_WI))
        g.s("s_mov_b32 %s, 0xfffc0000" % sr(S_WI + 1))
        g.s("s_cmov_b32 %s, 0x40000" % sr(S_WI + 1))
    vop(g, "v_add_u32 %s, %s, %s" % (vr(VW), sr(S_T), vr(T2)), VW, [T2])
    g.s("s_lshl_b32 %s, %s, 19" % (sr(S_T), sr(S_HG)))
    g.s("s_add_u32 %s, %s, %s" % (sr(S_T), sr(S_T), sr(S_T + 1)))
    vop(g, "v_and_b32 %s, 1, %s" % (vr(T2), vr(G)), T2, [G])
    vop(g, "v_lshl_add_u32 %s, %s, 12, %s" % (vr(T1), vr(T2), vr(T1)), T1, [T2, T1])
    vop(g, "v_lshrrev_b32 %s, 1, %s" % (vr(T2), vr(G)), T2, [G])
    vop(g, "v_lshl_add_u32 %s, %s, 16, %s" % (vr(T2), vr(T2), vr(T1)), T2, [T2, T1])
    vop(g, "v_add_u32 %s, %s, %s" % (vr(VWO), sr(S_T), vr(T2)), VWO, [T2])
    vop(g, "v_xor_b32 %s, %s, %s" % (vr(T1), vr(Q), vr(G)), T1, [Q, G])
    vop(g, "v_lshlrev_b32 %s, 4, %s" % (vr(T1), vr(T1)), T1, [T1])
    vop(g, "v_lshl_add_u32 %s, %s, 8, %s" % (vr(VKD), vr(G), vr(T1)), VKD, [G, T1])
    vop(g, "v_lshlrev_b32 %s, 2, %s" % (vr(T1), vr(G)), T1, [G])
    vop(g, "v_xor_b32 %s, %s, %s" % (vr(T1), vr(T1), vr(Q)), T1, [T1, Q])
    vop(g, "v_lshlrev_b32 %s, 4, %s" % (vr(T1), vr(T1)), T1, [T1])
    vop(g, "v_lshl_add_u32 %s, %s, 8, %s" % (vr(VKR), vr(Q), vr(T1)), VKR, [Q, T1])
    vop(g, "v_add_u32 %s, %s, %s" % (vr(VKR), sr(S_VL), vr(VKR)), VKR, [VKR])
    for m in range(1, 4):
        vop(g, "v_xor_b32 %s, %d, %s" % (vr(VKD + m), m * 64, vr(VKD)), VKD + m, [VKD])
        vop(g, "v_xor_b32 %s, %d, %s" % (vr(VKR + m), m * 16, vr(VKR)), VKR + m, [VKR])
    vop(g, "v_mov_b32 %s, %s" % (vr(VV), vr(VKD)), VV, [VKD])
    vop(g, "v_mov_b32 %s, %s" % (vr(VK), vr(VKD + 1)), VK, [VKD + 1])
    vop(g, "v_lshrrev_b32 %s, 1, %s" % (vr(T1), vr(Q)), T1, [Q])
    vop(g, "v_xor_b32 %s, %s, %s" % (vr(T1), vr(T1), vr(G)), T1, [T1, G])
    vop(g, "v_lshlrev_b32 %s, 7, %s" % (vr(T2), vr(Q)), T2, [Q])
    vop(g, "v_lshl_add_u32 %s, %s, 4, %s" % (vr(XB), vr(T1), vr(T2)), XB, [T1, T2])
    if ROT:
        vop(g, "v_xor_b32 %s, %s, %s" % (vr(XB), sr(S_XR + 1), vr(XB)), XB, [XB])
    vop(g, "v_xor_b32 %s, 64, %s" % (vr(XB + 1), vr(XB)), XB + 1, [XB])
    vop(g, "v_add_u32 %s, 0xc000, %s" % (vr(XB + 2), vr(XB)), XB + 2, [XB])
    vop(g, "v_add_u32 %s, 0xc000, %s" % (vr(XB + 3), vr(XB + 1)), XB + 3, [XB + 1])
    vop(g, "v_add_u32 %s, %s, %s" % (vr(VOW), sr(S_VL), vr(L16)), VOW, [L16])
    g.s("s_lshl_b32 %s, %s, 2" % (sr(S_T), sr(S_B)))
    g.s("s_add_u32 %s, %s, s3" % (sr(S_T), sr(S_T)))
    g.s("s_lshl_b32 %s, %s, 16" % (sr(S_T), sr(S_T)))
    g.s("s_lshl_b32 %s, %s, 10" % (sr(S_T + 1), sr(S_HG)))
    g.s("s_add_u32 %s, %s, %s" % (sr(S_T), sr(S_T), sr(S_T + 1)))
    vop(g, "v_lshlrev_b32 %s, 7, %s" % (vr(T1), vr(C8)), T1, [C8])
    vop(g, "v_lshl_add_u32 %s, %s, 13, %s" % (vr(T1), vr(R8), vr(T1)), T1, [R8, T1])
    vop(g, "v_add_u32 %s, %s, %s" % (vr(WTA), sr(S_T), vr(T1)), WTA, [T1])
    g.waitcnt(lg=0)
    make_srd(g, SRD_X, 8, 1572864)
    make_srd(g, SRD_K, 10, 12582912)
    make_srd(g, SRD_V, 12, 12582912)
    make_srd(g, SRD_W, 14, 4194304)
    make_srd(g, SRD_WO, 16, 4194304)
    make_srd(g, SRD_OUT, 4, 16 * 96 * 1024 * 2)
    make_srd(g, SRD_DBG, 6, 256)
    make_srd(g, SRD_WS, 18, WS_BYTES)
    g.s("s_lshl_b32 %s, s3, 13" % sr(S_K2))
    g.s("s_sub_u32 %s, %s, %s" % (sr(S_KD), sr(S_VL), sr(S_K2)))
    g.s("s_lshl_b32 %s, %s, 1" % (sr(S_T), sr(S_B)))
    g.s("s_lshr_b32 %s, s3, 1" % sr(S_T + 1))
    g.s("s_add_u32 %s, %s, %s" % (sr(S_T), sr(S_T), sr(S_T + 1)))
    g.s("s_lshl_b32 %s, %s, 13" % (sr(S_T), sr(S_T)))
    g.s("s_lshl_b32 %s, %s, 10" % (sr(S_T + 1), sr(S_HG)))
    g.s("s_add_u32 %s, %s, %s" % (sr(S_T), sr(S_T), sr(S_T + 1)))
    g.s("s_and_b32 %s, s3, 1" % sr(S_T + 1))
    g.s("s_lshl_b32 %s, %s, 9" % (sr(S_T + 1), sr(S_T + 1)))
    g.s("s_add_u32 %s, %s, %s" % (sr(S_T), sr(S_T), sr(S_T + 1)))
    g.s("s_add_u32 %s, s14, %s" % (sr(S_TB), sr(S_T)))
    g.s("s_addc_u32 %s, s15, 0" % sr(S_TB + 1))
    stamp(g, have=True)
    return g


def tok_ops(g, tok):
    ops = []
    if tok[0] == 'x':
        sp = int(tok[1:])
        for t in range(3):
            if ROT:
                ops.append(lambda t=t: g.s("s_add_u32 %s, %s, %d" % (sr(S_T), sr(S_XR), sp * 128)))
                ops.append(lambda t=t: g.s("s_and_b32 %s, %s, 0x3ff" % (sr(S_T), sr(S_T))))
                ops.append(lambda t=t: g.s("s_add_u32 %s, %s, %s" % (sr(S_T), sr(S_T), sr(S_XS + t))))
            else:
                ops.append(lambda t=t: g.s("s_add_u32 %s, %s, %d" % (sr(S_T), sr(S_XS + t), sp * 128)))
            ops.append(lambda t=t: g.s("s_add_u32 m0, %s, %d" % (sr(S_XM + t), sp * 12288), m0=True))
            ops.append(lambda t=t: g.vload("buffer_load_dwordx4 %s, %s, %s offen lds" % (vr(XA + t), sr(SRD_X, 4), sr(S_T)), "X%d" % sp, addr=[XA + t], lds=True))
    elif tok[0] == 'w':
        ops += w1_loads(g)(int(tok[1:]))
    elif tok == 't':
        ops.append(lambda: g.vload("buffer_load_dword %s, %s, %s, 0 offen" % (vr(TQ + 3), vr(WTA), sr(SRD_W, 4)), "TCH", dst=[TQ + 3], addr=[WTA]))
    elif tok[0] == 's':
        st = int(tok[1:])
        ops.append(lambda: g.s("s_mov_b32 %s, %d" % (sr(S_T + 2), st * 262144)))
        for l in range(8 if SM2 else 4):
            def sm(l=l):
                g.s("s_load_dword %s, %s, %s offset:%d" % (sr(S_JUNK), sr(S_TB, 2), sr(S_T + 2), l * (64 if SM2 else 128)))
                g.lgq.append("SM")
            ops.append(sm)
    elif tok == 'T':
        ops += wo_touch(g)
    elif tok == 'Y':
        for srd, so in ((SRD_WS, S_XS + 1), (SRD_WS, S_PB), (SRD_WS, S_PB + 1), (SRD_WS, S_XS + 2), (SRD_OUT, S_OB)):
            ops.append(lambda srd=srd, so=so: g.vload("buffer_load_dword %s, off, %s, %s" % (vr(VW), sr(srd, 4), sr(so)), "TCH", dst=[VW]))
    elif tok[0] == 'Z':
        t = int(tok[1])
        if t == 0:
            for k in range(4):
                ops.append(lambda k=k: vop(g, "v_mov_b32 %s, -1" % vr(ZQ + k), ZQ + k))
        for h in range(2):
            for i in range(4):
                ops.append(lambda h=h, i=i: g.s("s_add_u32 %s, %s, %d" % (sr(S_T + 6), sr(S_PB + h), (i * 3 + t) * 1024)))
                o = lambda: g.vstore("buffer_store_dwordx4 %s, %s, %s, %s offen sc1" % (vr(ZQ, 4), vr(L16), sr(SRD_WS, 4), sr(S_T + 6)),
                                     "POI", data=rng(ZQ, 4), addr=[L16])
                o.is_load = True
                ops.append(o)
    elif tok[0] == 'K':
        ops += k_dma(g, int(tok[1]), int(tok[3]))
    elif tok[0] == 'R':
        ops += k_read(g, int(tok[1]), int(tok[3]))
    elif tok[0] == 'V' and len(tok) == 4:
        assert VL[int(tok[1])] == int(tok[3])
        ops += v_dma(g, int(tok[1]), int(tok[3]))
    elif tok[0] == 'V':
        vl = v_loads(g, int(tok[1]))
        ops += vl if len(tok) == 2 else vl[:5] if tok[2] == 'a' else vl[5:]
    else:
        raise ValueError(tok)
    return mark(ops)


def part1(g, cl):
    for tok in cl["P"]:
        run(tok_ops(g, tok))
    g.wait_vm(["X%d" % k for k in range(XBAR[0] + 1)])
    g.barrier()
    stamp(g)
    run(b1_reads(g)(0))

    def tail(u):
        return q_conv(g, u) if u < 2 else []
    assert max(XBAR) >= 6
    pend, rest = gemm1(g, cl, b1_reads(g), tail)
    run(pend)
    stamp(g)
    g.s("s_lshl_b32 %s, s3, 13" % sr(S_T))
    vop(g, "v_add_u32 %s, %s, %s" % (vr(VOW2), sr(S_T), vr(L16)), VOW2, [L16])
    run(rest)
    stamp(g)
    g.nop(8)


S_FS, S_OB = 69, 93


def job_setup(g, A):
    A(lambda: g.s("s_lshl_b32 %s, %s, 2" % (sr(S_T), sr(S_GRP))))
    A(lambda: g.s("s_lshr_b32 %s, %s, 1" % (sr(S_T + 1), sr(S_RO))))
    A(lambda: g.s("s_add_u32 %s, %s, %s" % (sr(S_T + 1), sr(S_T + 1), sr(S_T))))
    A(lambda: g.s("s_lshl_b32 %s, %s, 7" % (sr(S_T + 1), sr(S_T + 1))))
    A(lambda: g.s("s_add_u32 %s, %s, %d" % (sr(S_XS + 1), sr(S_T + 1), FLG)))
    A(lambda: g.s("s_lshl_b32 %s, %s, 3" % (sr(S_T), sr(S_GRP))))
    A(lambda: g.s("s_add_u32 %s, %s, %s" % (sr(S_T), sr(S_T), sr(S_RO))))
    A(lambda: g.s("s_mul_i32 %s, %s, 96" % (sr(S_T), sr(S_T))))
    A(lambda: g.s("s_mul_i32 %s, %s, 3" % (sr(S_T + 1), sr(S_RR))))
    A(lambda: g.s("s_add_u32 %s, %s, %s" % (sr(S_T), sr(S_T), sr(S_T + 1))))
    A(lambda: g.s("s_lshl_b32 %s, %s, 10" % (sr(S_XS + 2), sr(S_T))))
    A(lambda: g.s("s_mul_i32 %s, %s, %d" % (sr(S_OB), sr(S_B), 96 * 2048)))
    A(lambda: g.s("s_lshl_b32 %s, %s, 10" % (sr(S_T), sr(S_BLK))))
    A(lambda: g.s("s_add_u32 %s, %s, %s" % (sr(S_OB), sr(S_OB), sr(S_T))))
    A(lambda: g.s("s_lshr_b32 %s, %s, 1" % (sr(S_T), sr(S_RO))))
    A(lambda: g.s("s_lshl_b32 %s, %s, 8" % (sr(S_T), sr(S_T))))
    A(lambda: g.s("s_add_u32 %s, %s, %s" % (sr(S_OB), sr(S_OB), sr(S_T))))
    A(lambda: g.s("s_lshl_b32 %s, %s, 4" % (sr(S_T), sr(S_RR))))
    A(lambda: g.s("s_add_u32 %s, %s, %s" % (sr(S_OB), sr(S_OB), sr(S_T))))
    A(lambda: g.s("s_and_b32 %s, %s, 1" % (sr(S_T), sr(S_RO))))
    A(lambda: g.s("s_lshl_b32 %s, %s, 15" % (sr(S_T), sr(S_T))))
    A(lambda: g.s("s_add_u32 %s, %s, %s" % (sr(S_OB), sr(S_OB), sr(S_T))))


def part2(g):
    g.s("s_memrealtime %s" % sr(S_T + 4, 2))
    NV = 238
    g.s("s_lshl_b32 %s, %s, 2" % (sr(S_T + 3), sr(S_GRP)))
    lq = list(g.lgq)
    g.waitcnt(lg=0)
    g.lgq = []
    g.s("s_or_b32 %s, %s, 1" % (sr(S_NONCE), sr(S_T + 4)))
    vop(g, "v_mov_b32 %s, %s" % (vr(NV), sr(S_NONCE)), NV)
    vop(g, "v_mov_b32 %s, 0" % vr(NV + 1), NV + 1)
    g.s("s_mov_b64 exec, %s" % sr(S_W0, 2))
    g.vload("buffer_atomic_cmpswap %s, off, %s, %s sc0 sc1" % (vr(NV, 2), sr(SRD_DBG, 4), sr(S_T + 3)), "NONCE", dst=[NV], addr=[NV, NV + 1])
    g.s("s_mov_b64 exec, -1")
    g.s("s_lshl_b32 %s, %s, 3" % (sr(S_PB), sr(S_GRP)))
    g.s("s_lshl_b32 %s, s3, 1" % sr(S_PB + 1))
    g.s("s_add_u32 %s, %s, %s" % (sr(S_PB), sr(S_PB), sr(S_PB + 1)))
    g.s("s_lshl_b32 %s, %s, 3" % (sr(S_PB), sr(S_PB)))
    g.s("s_add_u32 %s, %s, %s" % (sr(S_PB), sr(S_PB), sr(S_HG)))
    g.s("s_mul_i32 %s, %s, 12288" % (sr(S_PB), sr(S_PB)))
    g.s("s_add_u32 %s, %s, %d" % (sr(S_PB + 1), sr(S_PB), 8 * 12288))
    g.s("s_lshl_b32 %s, %s, 2" % (sr(S_XS), sr(S_GRP)))
    g.s("s_add_u32 %s, %s, s3" % (sr(S_XS), sr(S_XS)))
    g.s("s_lshl_b32 %s, %s, 7" % (sr(S_XS), sr(S_XS)))
    g.s("s_add_u32 %s, %s, %d" % (sr(S_XS), sr(S_XS), FLG))
    g.s("s_lshl_b32 %s, %s, 3" % (sr(S_FS), sr(S_HG)))
    g.s("s_add_u32 %s, %s, %s" % (sr(S_FS), sr(S_FS), sr(S_XS)))
    g.s("s_mov_b32 %s, %s" % (sr(S_RO), sr(S_HG)))
    g.s("s_mov_b32 %s, s3" % sr(S_RR))
    job_setup(g, lambda o: o())
    for k in range(4):
        vop(g, "v_mov_b32 %s, 0x3f803f80" % vr(ONES + k), ONES + k)

    def vt(pp, j):
        return KF + (pp * 8 + j) * 4
    VA = 0

    def tr_addr():
        ops = []
        V = lambda text, d, src=(): ops.append(lambda: vop(g, text, d, src))
        a, b = VA + 8, VA + 9
        V("v_lshrrev_b32 %s, 6, %s" % (vr(a), vr(L16)), a, [L16])
        V("v_and_b32 %s, 7, %s" % (vr(b), vr(a)), b, [a])
        V("v_lshlrev_b32 %s, 4, %s" % (vr(b), vr(b)), b, [b])
        V("v_lshl_add_u32 %s, %s, 8, %s" % (vr(VA), vr(a), vr(b)), VA, [a, b])
        V("v_and_b32 %s, 32, %s" % (vr(a), vr(L16)), a, [L16])
        V("v_lshl_add_u32 %s, %s, 2, %s" % (vr(VA), vr(a), vr(VA)), VA, [a, VA])
        V("v_and_b32 %s, 16, %s" % (vr(a), vr(L16)), a, [L16])
        V("v_lshrrev_b32 %s, 1, %s" % (vr(a), vr(a)), a, [a])
        V("v_add_u32 %s, %s, %s" % (vr(VA), vr(a), vr(VA)), VA, [a, VA])
        V("v_add_u32 %s, %s, %s" % (vr(VA + 8), sr(S_K2), vr(VA)), VA + 8, [VA])
        V("v_add_u32 %s, %s, %s" % (vr(VA), sr(S_VL), vr(VA)), VA, [VA])
        for j in range(1, 8):
            V("v_xor_b32 %s, %d, %s" % (vr(VA + j), j * 16, vr(VA)), VA + j, [VA])
            V("v_xor_b32 %s, %d, %s" % (vr(VA + 8 + j), j * 16, vr(VA + 8)), VA + 8 + j, [VA + 8])
        return ops

    def tr_reads(pp, js):
        ops = []
        for j in js:
            for h in range(2):
                d = vt(pp, j) + 2 * h
                a, off = (VA + j, VL[pp] * 8192 + h * 4096) if VL[pp] < 2 else (VA + 8 + j, L_V2 + h * 4096)
                ops.append(lambda d=d, a=a, off=off: g.dsread("ds_read_b64_tr_b16 %s, %s offset:%d" % (vr(d, 2), vr(a), off), "V%d" % pp, dst=rng(d, 2), addr=[a]))
        return ops
    OAC = [16 + 0, 96, 64, 96, 64, 96]

    def oacc(u, j):
        return OAC[u] + j * 4

    def pv_main(u, pmajor=False):
        ix = [(pp, j) for pp in range(3) for j in range(8)] if pmajor else [(pp, j) for j in range(8) for pp in range(3)]
        return [(lambda pp=pp, j=j: g.mfma(oacc(u, j), vt(pp, j), pfrag(u, pp), None if pp == 0 else oacc(u, j))) for pp, j in ix]

    def o_conv(u):
        ops = []
        r = TQ + 2
        ops.append(lambda: g.valu("v_accvgpr_read_b32 %s, %s" % (vr(r), vr(psum(u))), dst=[r], src=[psum(u)]))
        ops.append(lambda: g.valu("v_rcp_f32 %s, %s" % (vr(r), vr(r)), dst=[r], src=[r], trans=True))
        for i in range(4):
            d = PT_O + (i % 2) * 4
            for k in range(8):
                a = oacc(u, 2 * i) + k
                ops.append(lambda a=a: g.valu("v_mul_f32 %s, %s, %s" % (vr(a), vr(a), vr(r)), dst=[a], src=[a, r]))
            for m in range(4):
                a = oacc(u, 2 * i) + 2 * m
                ops.append(lambda d=d + m, a=a: g.valu("v_cvt_pk_bf16_f32 %s, %s, %s" % (vr(d), vr(a), vr(a + 1)), dst=[d], src=[a, a + 1]))
            n = i * 6 + u
            a, off = (VOW, n * 1024) if n < 16 else (VOW2, (n - 16) * 1024)
            ops.append(lambda d=d, a=a, off=off: g.dswrite("ds_write_b128 %s, %s offset:%d" % (vr(a), vr(d, 4), off), "OW", data=rng(d, 4), addr=[a]))
        return ops
    PT_O = 228
    wl2 = w2_loads(g)

    def spread(fill, pre):
        if not pre:
            return fill
        k = max(1, len(fill) // len(pre))
        nf = []
        for i, f in enumerate(fill):
            if i % k == 0 and pre:
                nf.append(pre.pop(0))
            nf.append(f)
        return nf + pre
    for u in range(6):
        main = [(lambda kt=kt, i=i, u=u: g.mfma(sacc(u, kt), KF + (kt * 4 + i) * 4, QF + (u % 2) * 16 + i * 4, None if i == 0 else sacc(u, kt)))
                for kt in range(6) for i in range(4)]
        fill = []
        if u >= 1:
            fill += softmax_ops(g, u - 1)
        if 2 <= u + 1 <= 5:
            fill += q_conv(g, u + 1)
        if u == 4:
            fill += tr_addr()
        pre = []
        for tok in POST.get(u, []):
            pre += tok_ops(g, tok)
        fill = spread(fill, pre)
        if STAMP == 4 and u > 0:
            stamp(g)
        if u < 5:
            merge(main, fill)
        else:
            n3 = (len(fill) + 2) // 3
            merge(main[:8], fill[:n3])
            if STAMP == 4:
                stamp(g)
            g.wait_vm(["VD"])
            if STAMP == 4:
                stamp(g)
            merge(main[8:16], spread(fill[n3:2 * n3], tr_reads(0, range(8))))
            merge(main[16:], spread(fill[2 * n3:], tr_reads(1, range(8))))
    stamp(g)
    sm5 = softmax_ops(g, 5)
    pv0 = pv_main(0, True)
    n3 = (len(sm5) + 2) // 3
    run(tr_reads(2, range(4)))
    g.wait_lg("V0")
    merge(pv0[:8], spread(sm5[:n3], tr_reads(2, range(4, 8))))
    g.wait_lg("V1")
    merge(pv0[8:16], sm5[n3:2 * n3])
    g.wait_lg("V2")
    merge(pv0[16:], sm5[2 * n3:])
    stamp(g)
    vop(g, "v_mov_b32 %s, %d" % (vr(TQ + 1), L_MISC), TQ + 1)
    for u in range(1, 6):
        fill = o_conv(u - 1)
        if u == 2:
            fill = spread(fill, wl2(0))
        if u == 3:
            fill = spread(fill, wl2(1))
        merge(pv_main(u), fill)
        if STAMP == 4:
            stamp(g)
    g.wait_vm("NONCE")
    g.valu("v_readfirstlane_b32 %s, %s" % (sr(S_T), vr(NV)), src=[NV], readlane=True, sdst=[S_T])
    g.s("s_cmp_eq_u32 %s, 0" % sr(S_T))
    g.s("s_cselect_b32 %s, %s, %s" % (sr(S_T), sr(S_NONCE), sr(S_T)))
    vop(g, "v_mov_b32 %s, %s" % (vr(TQ), sr(S_T)), TQ)
    g.s("s_mov_b64 exec, %s" % sr(S_W0, 2))
    g.dswrite("ds_write_b32 %s, %s offset:4" % (vr(TQ + 1), vr(TQ)), "OW", data=[TQ], addr=[TQ + 1])
    g.s("s_mov_b64 exec, -1")
    run(o_conv(5))
    g.waitcnt(lg=0)
    g.lgq = []
    stamp(g)
    g.barrier()
    stamp(g)
    g.dsread("ds_read_b32 %s, %s offset:4" % (vr(NV), vr(TQ + 1)), "NN", dst=[NV], addr=[TQ + 1])
    run(b2_reads(g)(0))
    g.wait_lg("NN")
    g.valu("v_readfirstlane_b32 %s, %s" % (sr(S_NONCE), vr(NV)), src=[NV], readlane=True, sdst=[S_NONCE])
    cnt = [0]
    AC, VO, VF, F0, PL, PP = 224, 230, 231, 232, 234, 242
    S_CL = S_TYPE

    def tail(n):
        u = n
        ops = []
        for i in range(4):
            d = 96 + (cnt[0] % 8) * 4
            cnt[0] += 1
            for m in range(4):
                a, b = acc2(2 * m, u) + i, acc2(2 * m + 1, u) + i
                t0, t1 = TQ + (m % 2) * 2, TQ + (m % 2) * 2 + 1
                ops.append(lambda t=t0, s=a: g.valu("v_accvgpr_read_b32 %s, %s" % (vr(t), vr(s)), dst=[t], src=[s]))
                ops.append(lambda t=t1, s=b: g.valu("v_accvgpr_read_b32 %s, %s" % (vr(t), vr(s)), dst=[t], src=[s]))
                ops.append(lambda d=d + m, a=t0, b=t1: g.valu("v_cvt_pk_bf16_f32 %s, %s, %s" % (vr(d), vr(a), vr(b)), dst=[d], src=[a, b]))
                if not E("NOFAST", 1):
                    ops.append(lambda d=d + m: g.valu("v_min_u32 %s, -2, %s" % (vr(d), vr(d)), dst=[d], src=[d]))
            p = i * 3 + (n >> 1)
            if EXP and i >= 2:
                continue
            ops.append(lambda p=p: g.s("s_add_u32 %s, %s, %d" % (sr(S_T + 6), sr(S_PB + (n & 1)), p * 1024)))
            ops.append(lambda d=d: g.vstore("buffer_store_dwordx4 %s, %s, %s, %s offen sc1" % (vr(d, 4), vr(L16), sr(SRD_WS, 4), sr(S_T + 6)),
                                            "PS", data=rng(d, 4), addr=[L16]))
        return ops

    def flag_store(soff, tag):
        g.s("s_mov_b64 exec, 1")
        g.vstore("buffer_store_dwordx2 %s, off, %s, %s sc1" % (vr(F0, 2), sr(SRD_WS, 4), sr(soff)), tag, data=[F0, F0 + 1])
        g.s("s_mov_b64 exec, -1")

    def setup_ops():
        ops = []
        A = ops.append
        A(lambda: g.s("s_xor_b32 %s, %s, 0x%x" % (sr(S_T), sr(S_NONCE), FC)))
        A(lambda: vop(g, "v_mov_b32 %s, %s" % (vr(F0), sr(S_NONCE)), F0))
        A(lambda: vop(g, "v_mov_b32 %s, %s" % (vr(F0 + 1), sr(S_T)), F0 + 1))
        LN, Q, G_, X1, X2, X3 = 112, 113, 114, 115, 116, 117
        V = lambda text, d, src=(): A(lambda: vop(g, text, d, src))
        V("v_lshrrev_b32 %s, 4, %s" % (vr(LN), vr(L16)), LN, [L16])
        V("v_and_b32 %s, 15, %s" % (vr(Q), vr(LN)), Q, [LN])
        V("v_lshrrev_b32 %s, 4, %s" % (vr(G_), vr(LN)), G_, [LN])
        V("v_lshrrev_b32 %s, 2, %s" % (vr(X1), vr(Q)), X1, [Q])
        V("v_and_b32 %s, 1, %s" % (vr(X2), vr(Q)), X2, [Q])
        V("v_lshlrev_b32 %s, 4, %s" % (vr(X2), vr(X2)), X2, [X2])
        V("v_mov_b32 %s, 0x3f80" % vr(X3), X3)
        V("v_lshlrev_b32 %s, %s, %s" % (vr(X3), vr(X2), vr(X3)), X3, [X2, X3])
        A(lambda: g.valu("v_cmp_eq_u32 vcc, %s, %s" % (vr(X1), vr(G_)), src=[X1, G_]))
        A(lambda: g.nop(2))
        V("v_cndmask_b32 %s, 0, %s, vcc" % (vr(X3), vr(X3)), X3, [X3])
        V("v_and_b32 %s, 2, %s" % (vr(X2), vr(Q)), X2, [Q])
        A(lambda: g.valu("v_cmp_eq_u32 vcc, 0, %s" % vr(X2), src=[X2]))
        for k in (0, 1, 4, 5):
            V("v_mov_b32 %s, 0" % vr(AC + k), AC + k)
        V("v_cndmask_b32 %s, 0, %s, vcc" % (vr(AC + 2), vr(X3)), AC + 2, [X3])
        V("v_cndmask_b32 %s, %s, 0, vcc" % (vr(AC + 3), vr(X3)), AC + 3, [X3])
        V("v_lshlrev_b32 %s, 6, %s" % (vr(VO), vr(G_)), VO, [G_])
        V("v_lshl_add_u32 %s, %s, 11, %s" % (vr(VO), vr(Q), vr(VO)), VO, [Q, VO])
        V("v_lshrrev_b32 %s, 1, %s" % (vr(VF), vr(L16)), VF, [L16])
        A(lambda: g.s("s_mov_b32 %s, 0" % sr(S_PHASE)))
        A(lambda: g.s("s_mov_b32 %s, 0" % sr(S_PEND)))
        A(lambda: g.s("s_mov_b32 %s, 0" % sr(S_CNT)))
        return ops

    def extra(s):
        ops = []
        if EXP and EXS <= s < EXS + 6:
            n = s - EXS
            for i in (2, 3):
                p = i * 3 + (n >> 1)
                def st(p=p, n=n):
                    g.s("s_add_u32 %s, %s, %d" % (sr(S_T + 6), sr(S_PB + (n & 1)), p * 1024))
                    g.vstore("buffer_store_dwordx4 %s, %s, %s, %s offen sc1" % (vr(A0 + 240, 4), vr(L16), sr(SRD_WS, 4), sr(S_T + 6)), "PS", data=rng(A0 + 240, 4), addr=[L16])
                ops.append(st)
        if EXP and s == EXL:
            for k in range(12):
                def ld(k=k):
                    d = A0 + 244 + (k % 3) * 4
                    g.s("s_add_u32 %s, %s, %d" % (sr(S_T), sr(S_XS + 2), (k & 7) * 12288 + (k >> 3) * 1024))
                    g.vload("buffer_load_dwordx4 %s, %s, %s, %s offen sc1" % (vr(d, 4), vr(L16), sr(SRD_WS, 4), sr(S_T)), "RX", dst=rng(d, 4), addr=[L16])
                ops.append(ld)
        if s == 0:
            ops.append(lambda: g.wait_vm("POI"))
            ops += setup_ops()
        if s == PFS and not E("NOFAST", 1):
            def pf():
                g.wait_vm("POI")
                g.s("s_add_u32 %s, %s, %d" % (sr(S_T), sr(S_FS), FLGP - FLG))
                flag_store(S_T, "PF")
            ops.append(pf)
        if s == PPS and not E("NOFAST", 1):
            def pp():
                g.s("s_add_u32 %s, %s, %d" % (sr(S_T), sr(S_XS + 1), FLGP - FLG))
                g.vload("buffer_load_dwordx2 %s, %s, %s, %s offen sc1" % (vr(PP, 2), vr(VF), sr(SRD_WS, 4), sr(S_T)), "PP", dst=[PP, PP + 1], addr=[VF])
            ops.append(pp)
        return ops
    gemm2(g, wl2, b2_reads(g), tail, extra)
    stamp(g)
    LDT = [KF, KF + 32, 0]
    RD = 32
    OQ = 64

    def r_loads(t):
        for src in range(8):
            if EXP and (t == 0 or (t == 1 and src < 4)):
                continue
            d = LDT[t] + src * 4
            g.s("s_add_u32 %s, %s, %d" % (sr(S_T), sr(S_XS + 2), src * 12288 + t * 1024))
            g.vload("buffer_load_dwordx4 %s, %s, %s, %s offen sc1" % (vr(d, 4), vr(L16), sr(SRD_WS, 4), sr(S_T)), "R%d" % t, dst=rng(d, 4), addr=[L16])

    def r_sum(t):
        for src in range(8):
            d = LDT[t] + src * 4
            for h in range(2):
                r = RD + (t * 2 + h) * 4
                g.mfma(r, AC + 2 - 2 * h, d, None if src == 0 else r)

    def r_out(t):
        o = OQ + t * 4
        for h in range(2):
            r = RD + (t * 2 + h) * 4
            for k in range(2):
                g.valu("v_cvt_pk_bf16_f32 %s, %s, %s" % (vr(o + h * 2 + k), vr(r + 2 * k), vr(r + 2 * k + 1)), dst=[o + h * 2 + k], src=[r + 2 * k, r + 2 * k + 1])
        g.s("s_add_u32 %s, %s, %d" % (sr(S_T + 3), sr(S_OB), t * 65536))
        g.vstore("buffer_store_dwordx4 %s, %s, %s, %s offen%s" % (vr(o, 4), vr(VO), sr(SRD_OUT, 4), sr(S_T + 3), os.environ.get("OUTF", "")), "OUT", data=rng(o, 4), addr=[VO])

    def r_check(t):
        m = [TQ, TQ + 1]
        b = LDT[t]
        for c in range(2):
            g.valu("v_max3_u32 %s, %s, %s, %s" % (vr(m[c]), vr(b + 16 * c), vr(b + 16 * c + 1), vr(b + 16 * c + 2)), dst=[m[c]], src=rng(b + 16 * c, 3))
        for k in range(3, 15, 2):
            for c in range(2):
                x = b + 16 * c + k
                g.valu("v_max3_u32 %s, %s, %s, %s" % (vr(m[c]), vr(m[c]), vr(x), vr(x + 1)), dst=[m[c]], src=[m[c], x, x + 1])
        g.valu("v_max3_u32 %s, %s, %s, %s" % (vr(m[0]), vr(m[0]), vr(b + 15), vr(b + 31)), dst=[m[0]], src=[m[0], b + 15, b + 31])
        g.valu("v_max_u32 %s, %s, %s" % (vr(m[0]), vr(m[0]), vr(m[1])), dst=[m[0]], src=m)
        g.valu("v_cmp_eq_u32 vcc, -1, %s" % vr(m[0]), src=[m[0]])
        g.nop(1)
        g.s("s_cbranch_vccnz retry%d" % t)

    def flags_ok(pl):
        g.valu("v_cmp_eq_u32 vcc, %s, %s" % (vr(pl), vr(F0)), src=[pl, F0])
        g.valu("v_cmp_eq_u32 %s, %s, %s" % (sr(S_M, 2), vr(pl + 1), vr(F0 + 1)), src=[pl + 1, F0 + 1])
        g.s("s_mov_b64 exec, -1")
        g.s("s_and_b32 %s, %s, vcc_lo" % (sr(S_M), sr(S_M)))
        g.s("s_and_b32 %s, %s, 0xff" % (sr(S_M + 1), sr(S_M)))
        g.s("s_cmp_eq_u32 %s, 0xff" % sr(S_M + 1))

    NOFAST = E("NOFAST", 1)
    if not NOFAST:
        r_loads(0)
        r_loads(1)
        if T2POS == 0:
            r_loads(2)
        g.wait_vm("PP")
        flags_ok(PP)
        if FORCE_AB & 512:
            g.s("s_bitcmp1_b32 s2, 4")
        g.s("s_cbranch_scc0 slow")
        if FORCE_AB & 255:
            g.s("s_and_b32 %s, s2, %d" % (sr(S_T), FORCE_AB & 255))
            g.s("s_cmp_eq_u32 %s, 0" % sr(S_T))
            g.s("s_cbranch_scc1 slow")
        if FORCE_AB & 256:
            g.s("s_branch slow")
        g.wait_vm("R0")
        flag_store(S_FS, "FS")
        stamp(g)
        for t in range(3):
            g.wait_vm("R%d" % t)
            g.label("chk%d" % t)
            g.nop(1)
            r_check(t)
            if t == 0 and T2POS == 1:
                r_loads(2)
            r_sum(t)
            if t == 0 and T2POS == 2:
                r_loads(2)
            if t == 2:
                stamp(g)
            r_out(t)
        stamp(g)
        stamp_flush(g)
        g.s("s_branch after")
        for t in range(3):
            g.label("retry%d" % t)
            g.vmq = []
            r_loads(t)
            g.s("s_add_u32 %s, %s, 1" % (sr(S_CNT), sr(S_CNT)))
            g.s("s_cmp_lt_u32 %s, %d" % (sr(S_CNT), RETRY))
            g.waitcnt(vm=0)
            g.vmq = []
            g.s("s_cbranch_scc1 chk%d" % t)
            if t < 2:
                g.s("s_branch slow")
    S_DONE, S_ACC, S_NEW = S_CNT, S_T + 6, S_T + 7

    def poll_load(soff):
        g.vload("buffer_load_dwordx2 %s, %s, %s, %s offen sc1" % (vr(PL, 2), vr(VF), sr(SRD_WS, 4), sr(soff)), "PL", dst=[PL, PL + 1], addr=[VF])

    def poll(soff):
        poll_load(soff)
        g.waitcnt(vm=0)
        g.vmq = []
        flags_ok(PL)

    def elapsed():
        g.s("s_memrealtime %s" % sr(S_T + 4, 2))
        g.waitcnt(lg=0)
        g.s("s_sub_u32 %s, %s, %s" % (sr(S_T + 4), sr(S_T + 4), sr(S_NONCE)))

    def job_init():
        for k in range(24):
            vop(g, "v_mov_b32 %s, 0" % vr(RD + k), RD + k)
        g.s("s_mov_b32 %s, 0" % sr(S_DONE))
        g.s("s_mov_b32 %s, 0" % sr(S_ACC))
    g.label("slow")
    if E("PFIRST", 0):
        poll_load(S_XS + 1)
    job_init()
    g.waitcnt(vm=0)
    g.vmq = []
    flag_store(S_FS, "FS")
    if NOFAST:
        stamp(g)
    if FORCE_AB & 255:
        g.s("s_and_b32 %s, s2, %d" % (sr(S_T), FORCE_AB & 255))
        g.s("s_cmp_eq_u32 %s, 0" % sr(S_T))
        g.s("s_cbranch_scc1 giveup")
    if FORCE_AB & 256:
        g.s("s_branch giveup")
    g.s("s_branch %s" % ("process" if E("PFIRST", 0) else "poll"))
    g.label("job")
    job_setup(g, lambda o: o())
    job_init()
    g.label("poll")
    poll_load(S_XS + 1)
    g.waitcnt(vm=0)
    g.vmq = []
    g.label("process")
    flags_ok(PL)
    g.s("s_andn2_b32 %s, %s, %s" % (sr(S_NEW), sr(S_M + 1), sr(S_DONE)))
    g.s("s_cbranch_scc0 noload")
    for src in range(8):
        g.s("s_bitcmp1_b32 %s, %d" % (sr(S_NEW), src))
        g.s("s_cbranch_scc0 nold%d" % src)
        g.s("s_add_u32 %s, %s, %d" % (sr(S_T), sr(S_XS + 2), src * 12288))
        for t in range(3):
            d = LDT[t] + src * 4
            g.vload("buffer_load_dwordx4 %s, %s, %s, %s offen offset:%d sc1" % (vr(d, 4), vr(L16), sr(SRD_WS, 4), sr(S_T), t * 1024), "R", dst=rng(d, 4), addr=[L16])
        g.label("nold%d" % src)
    g.vmq = []
    g.label("noload")
    g.s("s_cmp_eq_u32 %s, 0" % sr(S_ACC))
    g.s("s_cbranch_scc1 noacc")
    for src in range(8):
        g.s("s_bitcmp1_b32 %s, %d" % (sr(S_ACC), src))
        g.s("s_cbranch_scc0 noac%d" % src)
        for t in range(3):
            for h in range(2):
                r = RD + (t * 2 + h) * 4
                g.mfma(r, AC + 2 - 2 * h, LDT[t] + src * 4, r)
        g.label("noac%d" % src)
    g.label("noacc")
    g.s("s_or_b32 %s, %s, %s" % (sr(S_DONE), sr(S_DONE), sr(S_NEW)))
    g.s("s_mov_b32 %s, %s" % (sr(S_ACC), sr(S_NEW)))
    g.s("s_cmp_lg_u32 %s, 0xff" % sr(S_DONE))
    g.s("s_cbranch_scc1 more")
    g.s("s_cmp_eq_u32 %s, 0" % sr(S_ACC))
    g.s("s_cbranch_scc1 finish")
    if NOFAST:
        stamp(g)
    g.waitcnt(vm=0)
    g.s("s_mov_b32 %s, 0" % sr(S_NEW))
    g.s("s_branch noload")
    g.label("more")
    g.s("s_cmp_lg_u32 %s, 0" % sr(S_NEW))
    g.s("s_cbranch_scc1 poll")
    g.s("s_sleep %d" % SLEEP)
    elapsed()
    g.s("s_cmp_lt_i32 %s, %d" % (sr(S_T + 4), X_AB))
    g.s("s_cbranch_scc1 poll")
    g.label("giveup")
    g.s("s_and_b32 %s, %s, 1" % (sr(S_T), sr(S_RO)))
    g.s("s_lshl_b32 %s, %s, 2" % (sr(S_T), sr(S_T)))
    g.s("s_add_u32 %s, %s, %s" % (sr(S_T), sr(S_T), sr(S_RR)))
    g.s("s_lshl_b32 %s, %s, 3" % (sr(S_T), sr(S_T)))
    g.s("s_add_u32 %s, %s, 64" % (sr(S_T), sr(S_T)))
    g.s("s_add_u32 %s, %s, %s" % (sr(S_T), sr(S_T), sr(S_XS + 1)))
    flag_store(S_T, "FS")
    g.waitcnt(vm=0)
    g.vmq = []
    poll(S_XS + 1)
    g.s("s_cbranch_scc1 process")
    g.s("s_branch after")
    g.label("finish")
    g.nop(10)
    for t in range(3):
        r_out(t)
    if NOFAST:
        stamp(g)
        stamp_flush(g)
    g.label("after")
    g.nop(8)
    g.s("s_cmp_lg_u32 %s, 0" % sr(S_PHASE))
    g.s("s_cbranch_scc1 next")
    g.s("s_mov_b32 %s, 1" % sr(S_PHASE))
    g.waitcnt(vm=3 + (1 if STAMP else 0))
    elapsed()
    g.s("s_cmp_lt_i32 %s, %d" % (sr(S_T + 4), X_CK))
    if not FORCE_AB:
        g.s("s_cbranch_scc1 k_end")
    poll(S_XS)
    g.s("s_lshr_b32 %s, %s, 8" % (sr(S_PEND), sr(S_M)))
    g.s("s_and_b32 %s, %s, 0xff" % (sr(S_PEND), sr(S_PEND)))
    g.s("s_cmp_eq_u32 %s, 0xff" % sr(S_M + 1))
    g.s("s_cselect_b32 %s, %s, 0" % (sr(S_PEND), sr(S_PEND)))
    g.label("next")
    g.s("s_cmp_eq_u32 %s, 0" % sr(S_PEND))
    g.s("s_cbranch_scc1 k_end")
    g.s("s_ff1_i32_b32 %s, %s" % (sr(S_T), sr(S_PEND)))
    g.s("s_bitset0_b32 %s, %s" % (sr(S_PEND), sr(S_T)))
    g.s("s_and_b32 %s, %s, 3" % (sr(S_RR), sr(S_T)))
    g.s("s_lshr_b32 %s, %s, 2" % (sr(S_T), sr(S_T)))
    g.s("s_lshl_b32 %s, s3, 1" % sr(S_RO))
    g.s("s_add_u32 %s, %s, %s" % (sr(S_RO), sr(S_RO), sr(S_T)))
    g.waitcnt(vm=0)
    g.s("s_branch job")
    g.label("k_end")


def body():
    _stamp_n[0] = 0
    g0 = prologue()
    n = len(CLS)
    if n > 1:
        if CLF == "b":
            g0.s("s_and_b32 %s, %s, %d" % (sr(S_TYPE), sr(S_B), n - 1))
        else:
            g0.s("s_add_u32 %s, %s, %s" % (sr(S_TYPE), sr(S_B), sr(S_HG)))
            g0.s("s_and_b32 %s, %s, %d" % (sr(S_TYPE), sr(S_TYPE), n - 1))
        for c in range(1, n):
            g0.s("s_cmp_eq_u32 %s, %d" % (sr(S_TYPE), c))
            g0.s("s_cbranch_scc1 cls%d" % c)
    n0 = _stamp_n[0]
    txt = []
    for c in range(n):
        _stamp_n[0] = n0
        g = Gen()
        g.label("cls%d" % c)
        part1(g, CLS[c])
        if c:
            g.s("s_branch join")
        txt.append(g.text())
    g = Gen()
    g.vmq = ["V0", "V1", "V2", "TCH", "VD"]
    g.label("join")
    part2(g)
    g.raw("s_endpgm")
    return g0.text() + txt[0] + g.text() + "".join(txt[1:]) + "code_end:\n"


def main():
    out = "; fused attention: q-proj + attention + o-proj partial per workgroup, cross-workgroup bf16 reduction\n"
    out += "; @launch kernel=attn_kernel grid=(256,1,1) block=(256,1,1) lds=%d\n" % LDS_BYTES
    out += '.amdgcn_target "amdgcn-amd-amdhsa--gfx950"\n.text\n'
    out += ".globl attn_kernel\n.p2align 8\n.type attn_kernel,@function\nattn_kernel:\n"
    out += body()
    out += '.section .rodata,"a"\n.p2align 6\n.amdhsa_kernel attn_kernel\n'
    out += "  .amdhsa_next_free_vgpr 512\n  .amdhsa_next_free_sgpr 102\n  .amdhsa_accum_offset 256\n"
    out += "  .amdhsa_group_segment_fixed_size 0\n  .amdhsa_kernarg_size 104\n  .amdhsa_user_sgpr_count 2\n"
    out += "  .amdhsa_user_sgpr_kernarg_segment_ptr 1\n  .amdhsa_system_sgpr_workgroup_id_x 1\n.end_amdhsa_kernel\n"
    path = sys.argv[1] if len(sys.argv) > 1 else "cdna_kernels/%s.s" % NAME
    open(path, "w").write(out)
    print("wrote", path, len(out), "bytes; stamps", _stamp_n[0], "late", LATE[:12])
    if E("INFO", 0):
        for i in INFO:
            print(i)


main()
```

```python
import sys, os
sys.path.insert(0, os.path.dirname(os.path.abspath(__file__)))
from asmgen2 import Gen, vr, sr

NAME = "concat_heads__gqa_block_cached__gqa_block_cached__near_ridge"
WS_BYTES = 268435456
E = lambda k, d: int(os.environ.get(k, str(d)))
STAMP = E("STAMP", 0)
STAMP_BASE = 200 * 1024 * 1024
NRAW = E("NRAW", 3)
WQT = E("WQT", 1)
WOT = E("WOT", 1)
XBAR = dict((int(a), int(b)) for a, b in (t.split(":") for t in os.environ.get("XBAR", "0:1,4:3,8:5,12:7").split(",")))
VL = dict((int(t[0]), int(t[2])) for t in os.environ.get("VL", "0h0,1h1,2h2").split(",") if t)
PDEF = os.environ.get("PTOK", "x0,w0,x1,w1,t")
QB = os.environ.get("QB", "w2,x2,x3,w3,w4,w5,w6,x4,x5,w7,w8,w9,w10,x6,x7,w11,w12,w13,w14,w15,V0h0,V1h1")
CLS = []
for c in os.environ.get("KP", "5,9,13|6,10,14|7,11,15|8,12,15").split("|"):
    kp = [int(t) for t in c.split(",")]
    q = []
    for tok in QB.split(","):
        q.append(tok)
        for p_ in range(3):
            if tok == "w%d" % kp[p_]:
                q.append("K%dh%d" % (p_, p_))
    CLS.append({"P": PDEF.split(","), "Q": q})
if os.environ.get("QTOK"):
    CLS = [{"P": PDEF.split(","), "Q": c.split(",")} for c in os.environ["QTOK"].split("|")]
RM = E("RM", 14)
BUD, CC, CW, CAP = E("BUD", 58), E("CC", 65), E("CW", 33), E("CAP", 100)
SM2 = E("SM2", 0)
POST = {}
for it in os.environ.get("POST", "0=V2h2;3=T;4=Y").split(";"):
    k, v = it.split("=")
    POST[int(k)] = v.split(",")
CLF = os.environ.get("CLF", "b")
FORCE_AB = E("FORCE_AB", 0)
POLL_MAX = E("POLL_MAX", 300)
SLEEP = E("SLEEP", 2)
NT = os.environ.get("NT", " nt")
PART = 0
FLG = 64 * 1024 * 1024
FC = 0x5A3C96E1
FLGP = FLG + 65536
X_AB = E("X_AB", 40000)
X_CK = E("X_CK", 20000)
RETRY = E("RETRY", 40)
R2 = [int(c) for c in os.environ.get("R2", "11211212")]
PFS = E("PFS", 1)
PPS = E("PPS", 11)
T2POS = E("T2POS", 1)
EXP, EXS, EXL = E("EXP", 0), E("EXS", 4), E("EXL", 11)

SRD_X, SRD_K, SRD_V, SRD_W, SRD_WS, SRD_WO, SRD_OUT, SRD_DBG = 20, 24, 28, 32, 36, 40, 44, 48
SE = 51
S_PLO, S_PHI = 60, 61
S_BH, S_HG, S_B, S_BLK, S_GRP, S_TYPE, S_C = 62, 63, 64, 65, 66, 67, 68
S_W0 = 70
S_T = 72
S_NONCE, S_RO, S_RR, S_PEND, S_PHASE, S_CNT = 80, 81, 82, 83, 84, 85
S_WI, S_XR = 80, 82
ROT = E("ROT", 2)
S_XS = 86
S_XM = 89
S_PB = 89
S_VL = 92
S_M = 94
S_ST = 96

RAW = 0
WT = 96 if NRAW == 3 else 224
WT8 = 64
KF = 128
VW, XB, VK, VV, VWO, L16, VOW, L16H = 240, 241, 245, 246, 247, 248, 249, 250
VOW2 = XB
TQ = 251
XA = TQ
WTA = 112 if NRAW == 3 else A0 + 254 if False else 112
VR2 = 0
VKD, VKR = 113, 117
QF = 32
SB = 64
PT = 112
TM = 124
OB = 64
TT = 32
ZQ = 224
A0 = 256
ACC = A0
BF = A0 + 192
VRA = A0 + 192

L_V = 98304
L_MISC = 34816
LDS_BYTES = 163840

_stamp_n = [0]


def rng(a, n):
    return list(range(a, a + n))


def vop(g, text, dst, src=()):
    g.valu(text, dst=[dst] if isinstance(dst, int) else dst, src=src)


SV = 236


def stamp(g, have=False):
    if not STAMP:
        return
    n = _stamp_n[0]
    _stamp_n[0] += 1
    if not have:
        g.s("%s %s" % (os.environ.get("CLK", "s_memrealtime"), sr(S_ST, 2)))
        g.waitcnt(lg=0)
        g.lgq = []
    g.valu("v_writelane_b32 %s, %s, %d" % (vr(SV), sr(S_ST), n), dst=[SV])
    g.valu("v_writelane_b32 %s, %s, %d" % (vr(SV + 1), sr(S_ST + 1), n), dst=[SV + 1])


def stamp_flush(g):
    if not STAMP:
        return
    g.s("s_lshl_b32 %s, s2, 8" % sr(S_ST + 2))
    g.s("s_add_u32 %s, %s, %d" % (sr(S_ST + 2), sr(S_ST + 2), STAMP_BASE))
    g.s("s_mul_i32 %s, s3, 1048576" % sr(S_ST + 3))
    g.s("s_add_u32 %s, %s, %s" % (sr(S_ST + 2), sr(S_ST + 2), sr(S_ST + 3)))
    vop(g, "v_lshrrev_b32 %s, 1, %s" % (vr(TQ), vr(L16)), TQ, [L16])
    g.s("s_mov_b64 exec, 0xffffffff")
    g.vstore("buffer_store_dwordx2 %s, %s, %s, %s offen" % (vr(SV, 2), vr(TQ), sr(SRD_WS, 4), sr(S_ST + 2)), "STAMP", data=[SV, SV + 1], addr=[TQ])
    g.s("s_mov_b64 exec, -1")


def make_srd(g, srd, ptr, nbytes):
    g.s("s_mov_b32 %s, %s" % (sr(srd), sr(ptr)))
    g.s("s_and_b32 %s, %s, 0xffff" % (sr(srd + 1), sr(ptr + 1)))
    g.s("s_mov_b32 %s, %d" % (sr(srd + 2), nbytes))
    g.s("s_mov_b32 %s, 0x00020000" % sr(srd + 3))


def acc1(j, u):
    return ACC + (u * 8 + j) * 4


def acc2(j, u):
    return ACC + (u * 8 + j) * 4


SL2 = [32, 0, 64, KF, KF + 32]


def raw2(s, e):
    return SL2[s % 5] + e * 4


CYC = [KF + 64, 32, 64, 0, KF, KF + 32]


def raw(s, e):
    return CYC[s % 6] + e * 4


def bf(s, u):
    return BF + ((s % 2) * 6 + u) * 4


def perm_ops(g, rbase, j, dst):
    ops = []
    for m in range(4):
        a, b = rbase + (2 * m) * 4 + (j >> 1), rbase + (2 * m + 1) * 4 + (j >> 1)
        sel = S_PHI if j & 1 else S_PLO

        def op(a=a, b=b, d=dst + m, sel=sel):
            g.valu("v_perm_b32 %s, %s, %s, %s" % (vr(d), vr(b), vr(a), sr(sel)), dst=[d], src=[a, b])
        ops.append(op)
    return ops


def merge(main, fill):
    n = len(main)
    k = 0
    for i, m in enumerate(main):
        m()
        upto = (len(fill) * (i + 1) + n - 1) // n
        while k < upto:
            fill[k]()
            k += 1


def units(tag, ops, cost):
    out, cur = [], []
    for o in ops:
        cur.append(o)
        if getattr(o, "is_load", False):
            out.append([tag, cost, cur])
            cur = []
    if cur:
        out.append([tag, 0, cur])
    return out


def gemm1(g, cl, b_reads, tail):
    acc = acc1
    pend = []
    rdone = set()
    kbar = min(k - 1 for k in XBAR if k - 1 >= 5)
    vbar = min(k - 1 for k in XBAR if k - 1 >= 11)
    for tok in cl["Q"]:
        if tok[0] == "@":
            pend.append([tok, 0, []])
        else:
            pend += units(tok, tok_ops(g, tok), CW if tok[0] == "w" or (ROT == 2 and tok[0] == "x" and int(tok[1]) >= 4) else CC)
    credit = [0]
    kiss = {}
    INFO.append(kiss)

    def ok(tag, s, j):
        if tag[0] == "@":
            return s >= int(tag[1:])
        if tag[0] == "w":
            return (s, j) >= (int(tag[1:]) - 6, 7)
        if tag[0] == "K" and tag[3] == "2":
            return (s, j) >= (kbar, 4)
        if tag[0] == "V" and tag[3] == "2":
            return (s, j) >= (vbar, 4)
        if tag[0] == "V":
            return tag[3] in rdone
        return True

    def take(s, j):
        out = []
        credit[0] = min(CAP, credit[0] + BUD)
        while pend and ok(pend[0][0], s, j) and credit[0] >= pend[0][1]:
            t, c, o = pend.pop(0)
            credit[0] -= c
            out += o
            kiss[t] = 8 * s + j
        return out

    def upto(tag, s, j):
        out = []
        while any(t == tag for t, _, _ in pend):
            t, c, o = pend.pop(0)
            assert t[0] == "@" or ok(t, s, j), (t, tag, s, j)
            credit[0] -= c
            out += o
            kiss[t] = 8 * s + j
            LATE.append((tag, t, s, j))
        return out
    side = []

    rnext = [0]

    def side_add(s):
        while rnext[0] < 3:
            p_ = rnext[0]
            tok = "R%dh%d" % (p_, p_)
            if s < 16 and (s < 11 + p_ or any(t == "K" + tok[1:] for t, _, _ in pend) or 8 * s < kiss["K" + tok[1:]] + RM):
                break
            side.append(lambda tok=tok, s=s: run(upto("K" + tok[1:], s, 0)))
            side.extend(tok_ops(g, tok))
            side.append(lambda tok=tok: rdone.add(tok[3]))
            rnext[0] += 1
            INFO.append((tok, s))

    def side_take(n):
        out = []
        while side and n > 0:
            o = side.pop(0)
            out.append(o)
            if getattr(o, "is_load", False):
                n -= 1
        while side and not getattr(side[0], "is_load", False) and len(side) == 1:
            out.append(side.pop(0))
        return out
    g.wait_vm("W0")
    for op in perm_ops(g, raw(0, 0), 0, WT):
        op()
    for s in range(15):
        side_add(s)
        for j in range(8):
            idx = 8 * s + j
            fill = []
            if j == 7:
                fill += upto("w%d" % (s + 1), s, j)
                fill.append(lambda s=s: g.wait_vm("W%d" % (s + 1)))
                fill += perm_ops(g, raw(s + 1, 0), 0, (WT8 if s == 14 else WT + ((idx + 1) % 4) * 4))
            else:
                fill += perm_ops(g, raw(s, 0), j + 1, WT + ((idx + 1) % 4) * 4)
            fill += take(s, j)
            if j == 3 and (s + 1) in XBAR:
                tags = ["X%d" % k for k in range(XBAR[s + 1] + 1)]
                for t in tags:
                    fill += upto(t.lower(), s, j)
                fill.append(lambda tags=tags: g.wait_vm(tags))
                fill.append(g.barrier)
            if 3 <= j <= 5:
                fill += b_reads(s + 1)[(j - 3) * 2:(j - 3) * 2 + 2]
            elif j < 3:
                fill += side_take(3)
            if j == 0:
                g.wait_lg("B%d" % s)
                if STAMP == 2 and s > 0:
                    stamp(g)
            a = WT + (idx % 4) * 4
            main = [(lambda u=u: g.mfma(acc(j, u), a, bf(s, u), None if s == 0 else acc(j, u))) for u in range(6)]
            merge(main, fill)
    s = 15
    side_add(15)
    g.wait_lg("B15")
    carry = []
    for n, u in enumerate(range(6)):
        main = [(lambda j=j: g.mfma(acc(j, u), WT8 + j * 4, bf(s, u), acc(j, u))) for j in range(8)]
        if n == 0:
            for j in range(8):
                main[j]()
                if j < 7:
                    for op in perm_ops(g, raw(s, 0), j + 1, WT8 + (j + 1) * 4):
                        op()
        else:
            fill = side_take(4)
            merge(main[:1], fill)
            fill = take(15, n) + take(15, n) + carry[:20]
            carry = carry[20:]
            merge(main[1:], fill)
        carry += tail(u)
    side_add(16)
    run(side)
    rest = []
    for t, c, o in pend:
        assert t[0] == "@" or ok(t, 16, 0), t
        rest += o
    return rest, carry


LATE = []
INFO = []


def mark(ops):
    for o in ops:
        names = o.__code__.co_names
        if "vload" in names:
            o.is_load = True
    return ops


def q_conv(g, u):
    ops = []
    for i in range(4):
        for m in range(4):
            t0, t1 = TQ + (m % 2) * 2, TQ + (m % 2) * 2 + 1
            s0, s1 = acc1(2 * m, u) + i, acc1(2 * m + 1, u) + i
            d = QF + (u % 2) * 16 + i * 4 + m
            ops.append(lambda t=t0, s=s0: g.valu("v_accvgpr_read_b32 %s, %s" % (vr(t), vr(s)), dst=[t], src=[s]))
            ops.append(lambda t=t1, s=s1: g.valu("v_accvgpr_read_b32 %s, %s" % (vr(t), vr(s)), dst=[t], src=[s]))
            ops.append(lambda d=d, a=t0, b=t1: g.valu("v_cvt_pk_bf16_f32 %s, %s, %s" % (vr(d), vr(a), vr(b)), dst=[d], src=[a, b]))
    return ops


def sacc(u, kt):
    return SB + (u % 2) * 24 + kt * 4


def pfrag(u, pp):
    return ACC + u * 32 + pp * 4


ONES = 224


def psum(u):
    return ACC + u * 32 + 12


def softmax_ops(g, u):
    ops = []
    A = ops.append
    vals = [sacc(u, kt) + r for kt in range(6) for r in range(4)]
    m, tmp, r = TM, TM + 1, TM + 2
    m2 = TM + 3

    def V(text, dst, src, **kw):
        A(lambda: g.valu(text, dst=dst, src=src, **kw))
    V("v_max3_f32 %s, %s, %s, %s" % (vr(m), vr(vals[0]), vr(vals[1]), vr(vals[2])), [m], vals[0:3])
    V("v_max3_f32 %s, %s, %s, %s" % (vr(m2), vr(vals[3]), vr(vals[4]), vr(vals[5])), [m2], vals[3:6])
    k = 6
    while k < 24:
        mm = m if (k // 2) % 2 else m2
        V("v_max3_f32 %s, %s, %s, %s" % (vr(mm), vr(mm), vr(vals[k]), vr(vals[k + 1])), [mm], [mm, vals[k], vals[k + 1]])
        k += 2
    V("v_max_f32 %s, %s, %s" % (vr(m), vr(m), vr(m2)), [m], [m, m2])

    def xl(x, op):
        for sw in ("v_permlane32_swap_b32", "v_permlane16_swap_b32"):
            V("v_mov_b32 %s, %s" % (vr(tmp), vr(x)), [tmp], [x])
            V("%s %s, %s" % (sw, vr(x), vr(tmp)), [x, tmp], [x, tmp], permlane=True)
            V("%s %s, %s, %s" % (op, vr(x), vr(x), vr(tmp)), [x], [x, tmp])
    xl(m, "v_max_f32")
    V("v_mul_f32 %s, %s, %s" % (vr(m), sr(S_C), vr(m)), [m], [m])
    for v in vals:
        V("v_fma_f32 %s, %s, %s, -%s" % (vr(v), vr(v), sr(S_C), vr(m)), [v], [v, m])
    for v in vals:
        V("v_exp_f32 %s, %s" % (vr(v), vr(v)), [v], [v], trans=True)
    for pp in range(3):
        for h in range(4):
            a = sacc(u, 2 * pp + (h >> 1)) + (h & 1) * 2
            d = PT + pp * 4 + h
            V("v_cvt_pk_bf16_f32 %s, %s, %s" % (vr(d), vr(a), vr(a + 1)), [d], [a, a + 1])
    for k in range(12):
        d = pfrag(u, 0) + k
        V("v_accvgpr_write_b32 %s, %s" % (vr(d), vr(PT + k)), [d], [PT + k])
    for pp in range(3):
        A(lambda pp=pp: g.mfma(psum(u), ONES, PT + pp * 4, None if pp == 0 else psum(u)))
    return ops


S_K2, S_KD, S_JUNK, S_TB = 4, 5, 13, 6


def k_dma(g, part, half):
    ops = []
    for n8 in range(8):
        n = part * 8 + n8
        ops.append(lambda n=n: g.s("s_add_u32 %s, %s, %d" % (sr(S_T + 1), sr(S_BH), n * 1024)))
        if half == 2:
            ops.append(lambda n8=n8: g.s("s_add_u32 m0, %s, %d" % (sr(S_K2), n8 * 1024), m0=True))
        else:
            ops.append(lambda n8=n8: g.s("s_add_u32 m0, %s, %d" % (sr(S_VL), half * 8192 + n8 * 1024), m0=True))
        ops.append(lambda n=n: g.vload("buffer_load_dwordx4 %s, %s, %s offen%s lds" % (vr(VKD + (n & 3)), sr(SRD_K, 4), sr(S_T + 1), NT), "KD%d" % part, addr=[VKD + (n & 3)], lds=True))
    return ops


def k_read(g, part, half):
    ops = [lambda: g.wait_vm("KD%d" % part)]
    if half == 2:
        for i in range(4):
            ops.append(lambda i=i: vop(g, "v_subrev_u32 %s, %s, %s" % (vr(VKR + i), sr(S_KD), vr(VKR + i)), VKR + i, [VKR + i]))
    for k2 in range(2):
        for i in range(4):
            d = KF + ((part * 2 + k2) * 4 + i) * 4
            o = lambda d=d, i=i, k2=k2: g.dsread("ds_read_b128 %s, %s offset:%d" % (vr(d, 4), vr(VKR + i), (half & 1) * 8192 + k2 * 4096), "KR%d" % half, dst=rng(d, 4), addr=[VKR + i])
            o.is_load = True
            ops.append(o)
    return ops


def vraw(pp, e):
    return (VRA + pp * 32 + e * 4) if pp < 2 else (VR2 + e * 4)


def v_loads(g, pp_):
    ops = []
    for pp in (pp_,):
        for e in range(8):
            if e % 4 == 0:
                ops.append(lambda pp=pp, e=e: g.s("s_add_u32 %s, %s, %d" % (sr(S_T + 1), sr(S_BH), pp * 8192 + (e >> 2) * 4096)))
            d = vraw(pp, e)
            ops.append(lambda d=d, e=e, pp=pp: g.vload("buffer_load_dwordx4 %s, %s, %s, %s offen offset:%d%s" % (vr(d, 4), vr(VV), sr(SRD_V, 4), sr(S_T + 1), (e & 3) * 256, NT),
                                                       "V%d" % pp, dst=rng(d, 4), addr=[VV]))
    return ops


L_V2 = 36864


def v_dma(g, pp, half):
    ops = [lambda: g.wait_lg("KR%d" % half)] if half < 2 else []
    for e in range(8):
        ops.append(lambda pp=pp, e=e: g.s("s_add_u32 %s, %s, %d" % (sr(S_T + 1), sr(S_BH), pp * 8192 + e * 1024)))
        if half < 2:
            ops.append(lambda pp=pp, e=e: g.s("s_add_u32 m0, %s, %d" % (sr(S_VL), (half * 8 + e) * 1024), m0=True))
        else:
            ops.append(lambda pp=pp, e=e: g.s("s_add_u32 m0, %s, %d" % (sr(S_K2), L_V2 + e * 1024), m0=True))
        a = VK if e & 1 else VV
        ops.append(lambda a=a: g.vload("buffer_load_dwordx4 %s, %s, %s offen%s lds" % (vr(a), sr(SRD_V, 4), sr(S_T + 1), NT), "VD", addr=[a], lds=True))
    return ops


def wo_touch(g):
    ops = []
    A = ops.append
    A(lambda: g.s("s_lshl_b32 %s, %s, 2" % (sr(S_T + 3), sr(S_B))))
    A(lambda: g.s("s_add_u32 %s, %s, s3" % (sr(S_T + 3), sr(S_T + 3))))
    A(lambda: g.s("s_lshl_b32 %s, %s, 13" % (sr(S_T + 3), sr(S_T + 3))))
    A(lambda: g.s("s_lshl_b32 %s, %s, 19" % (sr(S_T + 4), sr(S_HG))))
    A(lambda: g.s("s_add_u32 %s, %s, %s" % (sr(S_T + 3), sr(S_T + 3), sr(S_T + 4))))
    A(lambda: vop(g, "v_lshlrev_b32 %s, 3, %s" % (vr(TQ + 4), vr(L16)), TQ + 4, [L16]))
    A(lambda: g.vload("buffer_load_dword %s, %s, %s, %s offen" % (vr(TQ + 4), vr(TQ + 4), sr(SRD_WO, 4), sr(S_T + 3)), "TCH", dst=[TQ + 4], addr=[TQ + 4]))
    return ops


def w1_loads(g):
    def f(s):
        ops = []
        if s > 0:
            if ROT:
                ops.append(lambda: vop(g, "v_add_u32 %s, %s, %s" % (vr(VW), sr(S_WI + (s & 1)), vr(VW)), VW, [VW]))
                ops.append(lambda: vop(g, "v_and_b32 %s, 0x3fffff, %s" % (vr(VW), vr(VW)), VW, [VW]))
            else:
                ops.append(lambda: vop(g, "v_add_u32 %s, 0x40000, %s" % (vr(VW), vr(VW)), VW, [VW]))
        for e in range(8):
            d = raw(s, e)
            so = "0" if e == 0 else sr(SE + e)
            ops.append(lambda d=d, so=so, s=s: g.vload("buffer_load_dwordx4 %s, %s, %s, %s offen" % (vr(d, 4), vr(VW), sr(SRD_W, 4), so),
                                                       "W%d" % s, dst=rng(d, 4), addr=[VW]))
        return mark(ops)
    return f


def b1_reads(g):
    def f(s):
        ops = []
        sp = s >> 1
        a = XB + (s & 1) + 2 * (sp >> 2)
        for u in range(6):
            d = bf(s, u)
            ops.append(lambda d=d, a=a, off=((sp & 3) * 12 + 2 * u) * 1024, s=s:
                       g.dsread("ds_read_b128 %s, %s offset:%d" % (vr(d, 4), vr(a), off), "B%d" % s, dst=rng(d, 4), addr=[a]))
        return ops
    return f


def w2_loads(g):
    def f(s):
        ops = []
        if E("NOW2", 0) and s >= 5:
            return ops
        h, i = s >> 2, s & 3
        base = h * 131072 + i * 16384
        for e in range(8):
            if e % 4 == 0:
                ops.append(lambda e=e: g.s("s_mov_b32 %s, %d" % (sr(S_T + 2), base + (e >> 2) * 8192)))
            d = raw2(s, e)
            if E("X2T", 0):
                for hf in range(2):
                    ops.append(lambda d=d + 2 * hf, e=e, s=s, hf=hf: g.vload("buffer_load_dwordx2 %s, %s, %s, %s offen offset:%d" % (vr(d, 2), vr(VWO), sr(SRD_WO, 4), sr(S_T + 2), (e & 3) * 1024 + hf * 128),
                                                                         "W%d" % s, dst=rng(d, 2), addr=[VWO]))
                continue
            ops.append(lambda d=d, e=e, s=s: g.vload("buffer_load_dwordx4 %s, %s, %s, %s offen offset:%d" % (vr(d, 4), vr(VWO), sr(SRD_WO, 4), sr(S_T + 2), (e & 3) * 1024),
                                                     "W%d" % s, dst=rng(d, 4), addr=[VWO]))
        return mark(ops)
    return f


def b2_reads(g):
    def f(s):
        ops = []
        h, i = s >> 2, s & 3
        for u in range(6):
            d = bf(s, u)
            n = i * 6 + u
            a, off = (L16H, h * 16384 + n * 1024) if n < 16 else (L16, h * 8192 + (n - 16) * 1024)
            ops.append(lambda d=d, a=a, off=off, s=s:
                       g.dsread("ds_read_b128 %s, %s offset:%d" % (vr(d, 4), vr(a), off), "B%d" % s, dst=rng(d, 4), addr=[a]))
        return ops
    return f


def b2_read1(g, s, u, d, tag):
    h, i = s >> 2, s & 3
    n = i * 6 + u
    a, off = (L16H, h * 16384 + n * 1024) if n < 16 else (L16, h * 8192 + (n - 16) * 1024)
    return lambda: g.dsread("ds_read_b128 %s, %s offset:%d" % (vr(d, 4), vr(a), off), tag, dst=rng(d, 4), addr=[a])


def gemm2(g, w_loads, b_reads, tail, extra):
    pend = []

    def add(tag, ops):
        pend.extend((tag, o) for o in ops)

    def take(n):
        out = []
        while pend and n > 0:
            t, o = pend.pop(0)
            out.append(o)
            if getattr(o, "is_load", False):
                n -= 1
        return out

    def upto(tag):
        out = []
        while any(t == tag for t, _ in pend):
            out.append(pend.pop(0)[1])
        return out
    TS = {13: KF + 64, 14: SL2[11 % 5], 15: SL2[12 % 5]}
    bq = lambda n, k: BF + (((n * 3 + 6) % 12) + k) * 4
    for t in (2, 3, 4):
        add("W%d" % t, w_loads(t))
    g.wait_vm("W0")
    for op in perm_ops(g, raw2(0, 0), 0, WT):
        op()
    xq = []
    for s in range(13):
        xq += extra(s)
        if s == 12:
            xq += upto("W13") + [lambda: g.wait_vm("W13")]
            for j in range(8):
                xq += perm_ops(g, raw2(13, 0), j, TS[13] + j * 4)
        for j in range(8):
            idx = 8 * s + j
            fill = []
            if j == 7:
                if s < 12:
                    fill += upto("W%d" % (s + 1))
                    fill.append(lambda s=s: g.wait_vm("W%d" % (s + 1)))
                    fill += perm_ops(g, raw2(s + 1, 0), 0, WT + ((idx + 1) % 4) * 4)
                if s + 5 < 16:
                    add("W%d" % (s + 5), w_loads(s + 5))
            else:
                fill += perm_ops(g, raw2(s, 0), j + 1, WT + ((idx + 1) % 4) * 4)
            fill += take(R2[j])
            if 3 <= j <= 5:
                if s < 12:
                    fill += b_reads(s + 1)[(j - 3) * 2:(j - 3) * 2 + 2]
                else:
                    fill += [b2_read1(g, 13 + (j - 3), n, bq(n, j - 3), "C%d" % n) for n in range(2)]
            k = (len(xq) + 7 - j) // (8 - j)
            k = min(k, 8) if s < 12 else k
            fill += xq[:k]
            xq = xq[k:]
            if j == 0:
                g.wait_lg("B%d" % s)
                if STAMP == 3 and s > 0:
                    stamp(g)
            a = WT + (idx % 4) * 4
            main = [(lambda u=u: g.mfma(acc2(j, u), a, bf(s, u), None if s == 0 else acc2(j, u))) for u in range(6)]
            merge(main, fill)
    assert not xq
    carry = []
    for n in range(6):
        u = n
        g.wait_lg("C%d" % n)
        if STAMP == 3:
            stamp(g)
        main = [(lambda j=j, k=k: g.mfma(acc2(j, u), TS[13 + k] + j * 4, bq(n, k), acc2(j, u))) for k in range(3) for j in range(8)]
        brd = [b2_read1(g, 13 + k, n + 2, bq(n + 2, k), "C%d" % (n + 2)) for k in range(3)] if n + 2 < 6 else []
        if n == 0:
            for k in (1, 2):
                fill = upto("W%d" % (13 + k)) + [lambda k=k: g.wait_vm("W%d" % (13 + k))]
                for j in range(8):
                    fill += perm_ops(g, raw2(13 + k, 0), j, TS[13 + k] + j * 4)
                merge(main[(k - 1) * 8:k * 8 - 1], fill)
                main[k * 8 - 1]()
            merge(main[16:], brd)
        else:
            merge(main, brd + carry)
        carry = tail(n)
    assert not pend
    run(carry)


def run(ops):
    for o in ops:
        o()


def prologue():
    g = Gen()
    g.s("s_cmp_ge_u32 s2, 256")
    g.s("s_cbranch_scc1 k_end")
    if STAMP:
        g.s("%s %s" % (os.environ.get("CLK", "s_memrealtime"), sr(S_ST, 2)))
    if E("CPF", 2):
        g.s("s_getpc_b64 %s" % sr(SRD_OUT, 2))
        g.label("pc_here")
        if E("CPF", 2) == 1:
            g.s("s_bfe_u32 %s, s2, 0x30003" % sr(S_T))
            g.s("s_lshl_b32 %s, %s, 15" % (sr(S_T), sr(S_T)))
        else:
            g.s("s_lshr_b32 %s, s2, 3" % sr(S_T))
            g.s("s_lshl_b32 %s, %s, 12" % (sr(S_T), sr(S_T)))
            g.valu("v_cmp_gt_u32 vcc, 32, v0", src=[0])
        g.s("s_and_b32 %s, %s, 0xffff" % (sr(SRD_OUT + 1), sr(SRD_OUT + 1)))
        g.s("s_mov_b32 %s, code_end-pc_here" % sr(SRD_OUT + 2))
        g.s("s_mov_b32 %s, 0x00020000" % sr(SRD_OUT + 3))
        vop(g, "v_lshlrev_b32 %s, 7, v0" % vr(TQ + 4), TQ + 4, [0])
        if E("CPF", 2) != 1:
            vop(g, "v_cndmask_b32 %s, -1, %s, vcc" % (vr(TQ + 4), vr(TQ + 4)), TQ + 4, [TQ + 4])
        g.vload("buffer_load_dword %s, %s, %s, %s offen" % (vr(TQ + 4), vr(TQ + 4), sr(SRD_OUT, 4), sr(S_T)), "CPF", dst=[TQ + 4], addr=[TQ + 4])
    g.s("s_bfe_u32 %s, s2, 0x10002" % sr(S_BLK))
    g.s("s_mul_i32 s16, %s, 40" % sr(S_BLK))
    g.s("s_add_u32 s18, s0, s16")
    g.s("s_addc_u32 s19, s1, 0")
    g.s("s_load_dwordx8 s[8:15], s[18:19], 0")
    g.s("s_load_dwordx2 s[16:17], s[18:19], 32")
    g.s("s_load_dwordx4 s[4:7], s[0:1], 80")
    g.s("s_load_dwordx2 s[18:19], s[0:1], 96")
    LN, Q, G, R8, C8, T1, T2 = 130, 131, 132, 133, 134, 135, 136
    vop(g, "v_lshrrev_b32 %s, 6, v0" % vr(T1), T1, [0])
    vop(g, "v_and_b32 %s, 63, v0" % vr(LN), LN, [0])
    g.valu("v_readfirstlane_b32 s3, %s" % vr(T1), src=[T1], readlane=True, sdst=[3])
    g.s("s_and_b32 %s, s2, 3" % sr(S_HG))
    g.s("s_lshl_b32 %s, %s, 1" % (sr(S_HG), sr(S_HG)))
    g.s("s_bfe_u32 %s, s2, 0x10003" % sr(S_T))
    g.s("s_add_u32 %s, %s, %s" % (sr(S_HG), sr(S_HG), sr(S_T)))
    g.s("s_lshr_b32 %s, s2, 4" % sr(S_B))
    g.s("s_lshl_b32 %s, %s, 4" % (sr(S_GRP), sr(S_BLK)))
    g.s("s_add_u32 %s, %s, %s" % (sr(S_GRP), sr(S_GRP), sr(S_B)))
    vop(g, "v_and_b32 %s, 15, %s" % (vr(Q), vr(LN)), Q, [LN])
    vop(g, "v_lshrrev_b32 %s, 4, %s" % (vr(G), vr(LN)), G, [LN])
    vop(g, "v_lshrrev_b32 %s, 3, %s" % (vr(R8), vr(LN)), R8, [LN])
    vop(g, "v_and_b32 %s, 7, %s" % (vr(C8), vr(LN)), C8, [LN])
    vop(g, "v_lshlrev_b32 %s, 4, %s" % (vr(L16), vr(LN)), L16, [LN])
    vop(g, "v_add_u32 %s, %d, %s" % (vr(L16H), L_V, vr(L16)), L16H, [L16])
    for e in range(1, 8):
        g.s("s_mov_b32 %s, %d" % (sr(SE + e), e * 8192))
    g.s("s_mov_b32 %s, 0x05040100" % sr(S_PLO))
    g.s("s_mov_b32 %s, 0x07060302" % sr(S_PHI))
    g.s("s_mov_b32 %s, 0x3e0293ee" % sr(S_C))
    g.s("s_cmp_eq_u32 s3, 0")
    g.s("s_cselect_b32 %s, 1, 0" % sr(S_W0))
    g.s("s_mov_b32 %s, 0" % sr(S_W0 + 1))
    g.s("s_lshl_b32 %s, %s, 5" % (sr(S_T), sr(S_B)))
    g.s("s_lshl_b32 %s, %s, 2" % (sr(S_T + 1), sr(S_HG)))
    g.s("s_add_u32 %s, %s, %s" % (sr(S_T), sr(S_T), sr(S_T + 1)))
    g.s("s_add_u32 %s, %s, s3" % (sr(S_T), sr(S_T)))
    g.s("s_mul_i32 %s, %s, 24576" % (sr(S_BH), sr(S_T)))
    g.s("s_lshl_b32 %s, s3, 14" % sr(S_T))
    g.s("s_add_u32 %s, %s, %d" % (sr(S_VL), sr(S_T), L_V))

    vop(g, "v_lshrrev_b32 %s, 1, %s" % (vr(T1), vr(R8)), T1, [R8])
    vop(g, "v_xor_b32 %s, %s, %s" % (vr(T1), vr(T1), vr(C8)), T1, [T1, C8])
    g.s("s_mul_i32 %s, %s, 98304" % (sr(S_T + 2), sr(S_B)))
    for t in range(3):
        g.s("s_mul_i32 %s, s3, 3" % sr(S_T))
        g.s("s_add_u32 %s, %s, %d" % (sr(S_T), sr(S_T), t))
        g.s("s_lshl_b32 %s, %s, 10" % (sr(S_XM + t), sr(S_T)))
        g.s("s_lshl_b32 %s, %s, 13" % (sr(S_T + 1), sr(S_T)))
        g.s("s_add_u32 %s, %s, %s" % (sr(S_XS + t), sr(S_T + 1), sr(S_T + 2)))
        g.s("s_and_b32 %s, %s, 1" % (sr(S_T), sr(S_T)))
        g.s("s_lshl_b32 %s, %s, 2" % (sr(S_T), sr(S_T)))
        vop(g, "v_xor_b32 %s, %s, %s" % (vr(T2), sr(S_T), vr(T1)), T2, [T1])
        vop(g, "v_lshlrev_b32 %s, 4, %s" % (vr(T2), vr(T2)), T2, [T2])
        vop(g, "v_lshl_add_u32 %s, %s, 10, %s" % (vr(XA + t), vr(R8), vr(T2)), XA + t, [R8, T2])
    PI = 140
    PI = Q
    g.s("s_lshl_b32 %s, %s, 10" % (sr(S_T), sr(S_HG)))
    g.s("s_lshl_b32 %s, s3, 8" % sr(S_T + 1))
    g.s("s_add_u32 %s, %s, %s" % (sr(S_T), sr(S_T), sr(S_T + 1)))
    vop(g, "v_lshlrev_b32 %s, 4, %s" % (vr(T1), vr(PI)), T1, [PI])
    vop(g, "v_lshl_add_u32 %s, %s, 16, %s" % (vr(T2), vr(G), vr(T1)), T2, [G, T1])
    if ROT:
        if ROT == 1:
            g.s("s_mov_b32 %s, %s" % (sr(S_XR + 2), sr(S_B)))
        else:
            g.s("s_and_b32 %s, s2, 8" % sr(S_XR + 2))
        g.s("s_lshl_b32 %s, %s, 18" % (sr(S_WI), sr(S_XR + 2)))
        g.s("s_add_u32 %s, %s, %s" % (sr(S_T), sr(S_T), sr(S_WI)))
        g.s("s_and_b32 %s, %s, 14" % (sr(S_XR), sr(S_XR + 2)))
        g.s("s_lshl_b32 %s, %s, 6" % (sr(S_XR), sr(S_XR)))
        g.s("s_and_b32 %s, %s, 1" % (sr(S_XR + 1), sr(S_XR + 2)))
        g.s("s_lshl_b32 %s, %s, 6" % (sr(S_XR + 1), sr(S_XR + 1)))
        g.s("s_cmp_eq_u32 %s, 0" % sr(S_XR + 1))
        g.s("s_cselect_b32 %s, 0x40000, 0xc0000" % sr(S_WI) if False else "s_mov_b32 %s, 0xc0000" % sr(S_WI))
        g.s("s_cmov_b32 %s, 0x40000" % sr(S_WI))
        g.s("s_mov_b32 %s, 0xfffc0000" % sr(S_WI + 1))
        g.s("s_cmov_b32 %s, 0x40000" % sr(S_WI + 1))
    vop(g, "v_add_u32 %s, %s, %s" % (vr(VW), sr(S_T), vr(T2)), VW, [T2])
    g.s("s_lshl_b32 %s, %s, 19" % (sr(S_T), sr(S_HG)))
    g.s("s_add_u32 %s, %s, %s" % (sr(S_T), sr(S_T), sr(S_T + 1)))
    vop(g, "v_and_b32 %s, 1, %s" % (vr(T2), vr(G)), T2, [G])
    vop(g, "v_lshl_add_u32 %s, %s, 12, %s" % (vr(T1), vr(T2), vr(T1)), T1, [T2, T1])
    vop(g, "v_lshrrev_b32 %s, 1, %s" % (vr(T2), vr(G)), T2, [G])
    vop(g, "v_lshl_add_u32 %s, %s, 16, %s" % (vr(T2), vr(T2), vr(T1)), T2, [T2, T1])
    vop(g, "v_add_u32 %s, %s, %s" % (vr(VWO), sr(S_T), vr(T2)), VWO, [T2])
    vop(g, "v_xor_b32 %s, %s, %s" % (vr(T1), vr(Q), vr(G)), T1, [Q, G])
    vop(g, "v_lshlrev_b32 %s, 4, %s" % (vr(T1), vr(T1)), T1, [T1])
    vop(g, "v_lshl_add_u32 %s, %s, 8, %s" % (vr(VKD), vr(G), vr(T1)), VKD, [G, T1])
    vop(g, "v_lshlrev_b32 %s, 2, %s" % (vr(T1), vr(G)), T1, [G])
    vop(g, "v_xor_b32 %s, %s, %s" % (vr(T1), vr(T1), vr(Q)), T1, [T1, Q])
    vop(g, "v_lshlrev_b32 %s, 4, %s" % (vr(T1), vr(T1)), T1, [T1])
    vop(g, "v_lshl_add_u32 %s, %s, 8, %s" % (vr(VKR), vr(Q), vr(T1)), VKR, [Q, T1])
    vop(g, "v_add_u32 %s, %s, %s" % (vr(VKR), sr(S_VL), vr(VKR)), VKR, [VKR])
    for m in range(1, 4):
        vop(g, "v_xor_b32 %s, %d, %s" % (vr(VKD + m), m * 64, vr(VKD)), VKD + m, [VKD])
        vop(g, "v_xor_b32 %s, %d, %s" % (vr(VKR + m), m * 16, vr(VKR)), VKR + m, [VKR])
    vop(g, "v_mov_b32 %s, %s" % (vr(VV), vr(VKD)), VV, [VKD])
    vop(g, "v_mov_b32 %s, %s" % (vr(VK), vr(VKD + 1)), VK, [VKD + 1])
    vop(g, "v_lshrrev_b32 %s, 1, %s" % (vr(T1), vr(Q)), T1, [Q])
    vop(g, "v_xor_b32 %s, %s, %s" % (vr(T1), vr(T1), vr(G)), T1, [T1, G])
    vop(g, "v_lshlrev_b32 %s, 7, %s" % (vr(T2), vr(Q)), T2, [Q])
    vop(g, "v_lshl_add_u32 %s, %s, 4, %s" % (vr(XB), vr(T1), vr(T2)), XB, [T1, T2])
    if ROT:
        vop(g, "v_xor_b32 %s, %s, %s" % (vr(XB), sr(S_XR + 1), vr(XB)), XB, [XB])
    vop(g, "v_xor_b32 %s, 64, %s" % (vr(XB + 1), vr(XB)), XB + 1, [XB])
    vop(g, "v_add_u32 %s, 0xc000, %s" % (vr(XB + 2), vr(XB)), XB + 2, [XB])
    vop(g, "v_add_u32 %s, 0xc000, %s" % (vr(XB + 3), vr(XB + 1)), XB + 3, [XB + 1])
    vop(g, "v_add_u32 %s, %s, %s" % (vr(VOW), sr(S_VL), vr(L16)), VOW, [L16])
    g.s("s_lshl_b32 %s, %s, 2" % (sr(S_T), sr(S_B)))
    g.s("s_add_u32 %s, %s, s3" % (sr(S_T), sr(S_T)))
    g.s("s_lshl_b32 %s, %s, 16" % (sr(S_T), sr(S_T)))
    g.s("s_lshl_b32 %s, %s, 10" % (sr(S_T + 1), sr(S_HG)))
    g.s("s_add_u32 %s, %s, %s" % (sr(S_T), sr(S_T), sr(S_T + 1)))
    vop(g, "v_lshlrev_b32 %s, 7, %s" % (vr(T1), vr(C8)), T1, [C8])
    vop(g, "v_lshl_add_u32 %s, %s, 13, %s" % (vr(T1), vr(R8), vr(T1)), T1, [R8, T1])
    vop(g, "v_add_u32 %s, %s, %s" % (vr(WTA), sr(S_T), vr(T1)), WTA, [T1])
    g.waitcnt(lg=0)
    make_srd(g, SRD_X, 8, 1572864)
    make_srd(g, SRD_K, 10, 12582912)
    make_srd(g, SRD_V, 12, 12582912)
    make_srd(g, SRD_W, 14, 4194304)
    make_srd(g, SRD_WO, 16, 4194304)
    make_srd(g, SRD_OUT, 4, 16 * 96 * 1024 * 2)
    make_srd(g, SRD_DBG, 6, 256)
    make_srd(g, SRD_WS, 18, WS_BYTES)
    g.s("s_lshl_b32 %s, s3, 13" % sr(S_K2))
    g.s("s_sub_u32 %s, %s, %s" % (sr(S_KD), sr(S_VL), sr(S_K2)))
    g.s("s_lshl_b32 %s, %s, 1" % (sr(S_T), sr(S_B)))
    g.s("s_lshr_b32 %s, s3, 1" % sr(S_T + 1))
    g.s("s_add_u32 %s, %s, %s" % (sr(S_T), sr(S_T), sr(S_T + 1)))
    g.s("s_lshl_b32 %s, %s, 13" % (sr(S_T), sr(S_T)))
    g.s("s_lshl_b32 %s, %s, 10" % (sr(S_T + 1), sr(S_HG)))
    g.s("s_add_u32 %s, %s, %s" % (sr(S_T), sr(S_T), sr(S_T + 1)))
    g.s("s_and_b32 %s, s3, 1" % sr(S_T + 1))
    g.s("s_lshl_b32 %s, %s, 9" % (sr(S_T + 1), sr(S_T + 1)))
    g.s("s_add_u32 %s, %s, %s" % (sr(S_T), sr(S_T), sr(S_T + 1)))
    g.s("s_add_u32 %s, s14, %s" % (sr(S_TB), sr(S_T)))
    g.s("s_addc_u32 %s, s15, 0" % sr(S_TB + 1))
    stamp(g, have=True)
    return g


def tok_ops(g, tok):
    ops = []
    if tok[0] == 'x':
        sp = int(tok[1:])
        for t in range(3):
            if ROT:
                ops.append(lambda t=t: g.s("s_add_u32 %s, %s, %d" % (sr(S_T), sr(S_XR), sp * 128)))
                ops.append(lambda t=t: g.s("s_and_b32 %s, %s, 0x3ff" % (sr(S_T), sr(S_T))))
                ops.append(lambda t=t: g.s("s_add_u32 %s, %s, %s" % (sr(S_T), sr(S_T), sr(S_XS + t))))
            else:
                ops.append(lambda t=t: g.s("s_add_u32 %s, %s, %d" % (sr(S_T), sr(S_XS + t), sp * 128)))
            ops.append(lambda t=t: g.s("s_add_u32 m0, %s, %d" % (sr(S_XM + t), sp * 12288), m0=True))
            ops.append(lambda t=t: g.vload("buffer_load_dwordx4 %s, %s, %s offen lds" % (vr(XA + t), sr(SRD_X, 4), sr(S_T)), "X%d" % sp, addr=[XA + t], lds=True))
    elif tok[0] == 'w':
        ops += w1_loads(g)(int(tok[1:]))
    elif tok == 't':
        ops.append(lambda: g.vload("buffer_load_dword %s, %s, %s, 0 offen" % (vr(TQ + 3), vr(WTA), sr(SRD_W, 4)), "TCH", dst=[TQ + 3], addr=[WTA]))
    elif tok[0] == 's':
        st = int(tok[1:])
        ops.append(lambda: g.s("s_mov_b32 %s, %d" % (sr(S_T + 2), st * 262144)))
        for l in range(8 if SM2 else 4):
            def sm(l=l):
                g.s("s_load_dword %s, %s, %s offset:%d" % (sr(S_JUNK), sr(S_TB, 2), sr(S_T + 2), l * (64 if SM2 else 128)))
                g.lgq.append("SM")
            ops.append(sm)
    elif tok == 'T':
        ops += wo_touch(g)
    elif tok == 'Y':
        for srd, so in ((SRD_WS, S_XS + 1), (SRD_WS, S_PB), (SRD_WS, S_PB + 1), (SRD_WS, S_XS + 2), (SRD_OUT, S_OB)):
            ops.append(lambda srd=srd, so=so: g.vload("buffer_load_dword %s, off, %s, %s" % (vr(VW), sr(srd, 4), sr(so)), "TCH", dst=[VW]))
    elif tok[0] == 'Z':
        t = int(tok[1])
        if t == 0:
            for k in range(4):
                ops.append(lambda k=k: vop(g, "v_mov_b32 %s, -1" % vr(ZQ + k), ZQ + k))
        for h in range(2):
            for i in range(4):
                ops.append(lambda h=h, i=i: g.s("s_add_u32 %s, %s, %d" % (sr(S_T + 6), sr(S_PB + h), (i * 3 + t) * 1024)))
                o = lambda: g.vstore("buffer_store_dwordx4 %s, %s, %s, %s offen sc1" % (vr(ZQ, 4), vr(L16), sr(SRD_WS, 4), sr(S_T + 6)),
                                     "POI", data=rng(ZQ, 4), addr=[L16])
                o.is_load = True
                ops.append(o)
    elif tok[0] == 'K':
        ops += k_dma(g, int(tok[1]), int(tok[3]))
    elif tok[0] == 'R':
        ops += k_read(g, int(tok[1]), int(tok[3]))
    elif tok[0] == 'V' and len(tok) == 4:
        assert VL[int(tok[1])] == int(tok[3])
        ops += v_dma(g, int(tok[1]), int(tok[3]))
    elif tok[0] == 'V':
        vl = v_loads(g, int(tok[1]))
        ops += vl if len(tok) == 2 else vl[:5] if tok[2] == 'a' else vl[5:]
    else:
        raise ValueError(tok)
    return mark(ops)


def part1(g, cl):
    for tok in cl["P"]:
        run(tok_ops(g, tok))
    g.wait_vm(["X%d" % k for k in range(XBAR[0] + 1)])
    g.barrier()
    stamp(g)
    run(b1_reads(g)(0))

    def tail(u):
        return q_conv(g, u) if u < 2 else []
    assert max(XBAR) >= 6
    pend, rest = gemm1(g, cl, b1_reads(g), tail)
    run(pend)
    stamp(g)
    g.s("s_lshl_b32 %s, s3, 13" % sr(S_T))
    vop(g, "v_add_u32 %s, %s, %s" % (vr(VOW2), sr(S_T), vr(L16)), VOW2, [L16])
    run(rest)
    stamp(g)
    g.nop(8)


S_FS, S_OB = 69, 93


def job_setup(g, A):
    A(lambda: g.s("s_lshl_b32 %s, %s, 2" % (sr(S_T), sr(S_GRP))))
    A(lambda: g.s("s_lshr_b32 %s, %s, 1" % (sr(S_T + 1), sr(S_RO))))
    A(lambda: g.s("s_add_u32 %s, %s, %s" % (sr(S_T + 1), sr(S_T + 1), sr(S_T))))
    A(lambda: g.s("s_lshl_b32 %s, %s, 7" % (sr(S_T + 1), sr(S_T + 1))))
    A(lambda: g.s("s_add_u32 %s, %s, %d" % (sr(S_XS + 1), sr(S_T + 1), FLG)))
    A(lambda: g.s("s_lshl_b32 %s, %s, 3" % (sr(S_T), sr(S_GRP))))
    A(lambda: g.s("s_add_u32 %s, %s, %s" % (sr(S_T), sr(S_T), sr(S_RO))))
    A(lambda: g.s("s_mul_i32 %s, %s, 96" % (sr(S_T), sr(S_T))))
    A(lambda: g.s("s_mul_i32 %s, %s, 3" % (sr(S_T + 1), sr(S_RR))))
    A(lambda: g.s("s_add_u32 %s, %s, %s" % (sr(S_T), sr(S_T), sr(S_T + 1))))
    A(lambda: g.s("s_lshl_b32 %s, %s, 10" % (sr(S_XS + 2), sr(S_T))))
    A(lambda: g.s("s_mul_i32 %s, %s, %d" % (sr(S_OB), sr(S_B), 96 * 2048)))
    A(lambda: g.s("s_lshl_b32 %s, %s, 10" % (sr(S_T), sr(S_BLK))))
    A(lambda: g.s("s_add_u32 %s, %s, %s" % (sr(S_OB), sr(S_OB), sr(S_T))))
    A(lambda: g.s("s_lshr_b32 %s, %s, 1" % (sr(S_T), sr(S_RO))))
    A(lambda: g.s("s_lshl_b32 %s, %s, 8" % (sr(S_T), sr(S_T))))
    A(lambda: g.s("s_add_u32 %s, %s, %s" % (sr(S_OB), sr(S_OB), sr(S_T))))
    A(lambda: g.s("s_lshl_b32 %s, %s, 4" % (sr(S_T), sr(S_RR))))
    A(lambda: g.s("s_add_u32 %s, %s, %s" % (sr(S_OB), sr(S_OB), sr(S_T))))
    A(lambda: g.s("s_and_b32 %s, %s, 1" % (sr(S_T), sr(S_RO))))
    A(lambda: g.s("s_lshl_b32 %s, %s, 15" % (sr(S_T), sr(S_T))))
    A(lambda: g.s("s_add_u32 %s, %s, %s" % (sr(S_OB), sr(S_OB), sr(S_T))))


def part2(g):
    g.s("s_memrealtime %s" % sr(S_T + 4, 2))
    NV = 238
    g.s("s_lshl_b32 %s, %s, 2" % (sr(S_T + 3), sr(S_GRP)))
    lq = list(g.lgq)
    g.waitcnt(lg=0)
    g.lgq = []
    g.s("s_or_b32 %s, %s, 1" % (sr(S_NONCE), sr(S_T + 4)))
    vop(g, "v_mov_b32 %s, %s" % (vr(NV), sr(S_NONCE)), NV)
    vop(g, "v_mov_b32 %s, 0" % vr(NV + 1), NV + 1)
    g.s("s_mov_b64 exec, %s" % sr(S_W0, 2))
    g.vload("buffer_atomic_cmpswap %s, off, %s, %s sc0 sc1" % (vr(NV, 2), sr(SRD_DBG, 4), sr(S_T + 3)), "NONCE", dst=[NV], addr=[NV, NV + 1])
    g.s("s_mov_b64 exec, -1")
    g.s("s_lshl_b32 %s, %s, 3" % (sr(S_PB), sr(S_GRP)))
    g.s("s_lshl_b32 %s, s3, 1" % sr(S_PB + 1))
    g.s("s_add_u32 %s, %s, %s" % (sr(S_PB), sr(S_PB), sr(S_PB + 1)))
    g.s("s_lshl_b32 %s, %s, 3" % (sr(S_PB), sr(S_PB)))
    g.s("s_add_u32 %s, %s, %s" % (sr(S_PB), sr(S_PB), sr(S_HG)))
    g.s("s_mul_i32 %s, %s, 12288" % (sr(S_PB), sr(S_PB)))
    g.s("s_add_u32 %s, %s, %d" % (sr(S_PB + 1), sr(S_PB), 8 * 12288))
    g.s("s_lshl_b32 %s, %s, 2" % (sr(S_XS), sr(S_GRP)))
    g.s("s_add_u32 %s, %s, s3" % (sr(S_XS), sr(S_XS)))
    g.s("s_lshl_b32 %s, %s, 7" % (sr(S_XS), sr(S_XS)))
    g.s("s_add_u32 %s, %s, %d" % (sr(S_XS), sr(S_XS), FLG))
    g.s("s_lshl_b32 %s, %s, 3" % (sr(S_FS), sr(S_HG)))
    g.s("s_add_u32 %s, %s, %s" % (sr(S_FS), sr(S_FS), sr(S_XS)))
    g.s("s_mov_b32 %s, %s" % (sr(S_RO), sr(S_HG)))
    g.s("s_mov_b32 %s, s3" % sr(S_RR))
    job_setup(g, lambda o: o())
    for k in range(4):
        vop(g, "v_mov_b32 %s, 0x3f803f80" % vr(ONES + k), ONES + k)

    def vt(pp, j):
        return KF + (pp * 8 + j) * 4
    VA = 0

    def tr_addr():
        ops = []
        V = lambda text, d, src=(): ops.append(lambda: vop(g, text, d, src))
        a, b = VA + 8, VA + 9
        V("v_lshrrev_b32 %s, 6, %s" % (vr(a), vr(L16)), a, [L16])
        V("v_and_b32 %s, 7, %s" % (vr(b), vr(a)), b, [a])
        V("v_lshlrev_b32 %s, 4, %s" % (vr(b), vr(b)), b, [b])
        V("v_lshl_add_u32 %s, %s, 8, %s" % (vr(VA), vr(a), vr(b)), VA, [a, b])
        V("v_and_b32 %s, 32, %s" % (vr(a), vr(L16)), a, [L16])
        V("v_lshl_add_u32 %s, %s, 2, %s" % (vr(VA), vr(a), vr(VA)), VA, [a, VA])
        V("v_and_b32 %s, 16, %s" % (vr(a), vr(L16)), a, [L16])
        V("v_lshrrev_b32 %s, 1, %s" % (vr(a), vr(a)), a, [a])
        V("v_add_u32 %s, %s, %s" % (vr(VA), vr(a), vr(VA)), VA, [a, VA])
        V("v_add_u32 %s, %s, %s" % (vr(VA + 8), sr(S_K2), vr(VA)), VA + 8, [VA])
        V("v_add_u32 %s, %s, %s" % (vr(VA), sr(S_VL), vr(VA)), VA, [VA])
        for j in range(1, 8):
            V("v_xor_b32 %s, %d, %s" % (vr(VA + j), j * 16, vr(VA)), VA + j, [VA])
            V("v_xor_b32 %s, %d, %s" % (vr(VA + 8 + j), j * 16, vr(VA + 8)), VA + 8 + j, [VA + 8])
        return ops

    def tr_reads(pp, js):
        ops = []
        for j in js:
            for h in range(2):
                d = vt(pp, j) + 2 * h
                a, off = (VA + j, VL[pp] * 8192 + h * 4096) if VL[pp] < 2 else (VA + 8 + j, L_V2 + h * 4096)
                ops.append(lambda d=d, a=a, off=off: g.dsread("ds_read_b64_tr_b16 %s, %s offset:%d" % (vr(d, 2), vr(a), off), "V%d" % pp, dst=rng(d, 2), addr=[a]))
        return ops
    OAC = [16 + 0, 96, 64, 96, 64, 96]

    def oacc(u, j):
        return OAC[u] + j * 4

    def pv_main(u, pmajor=False):
        ix = [(pp, j) for pp in range(3) for j in range(8)] if pmajor else [(pp, j) for j in range(8) for pp in range(3)]
        return [(lambda pp=pp, j=j: g.mfma(oacc(u, j), vt(pp, j), pfrag(u, pp), None if pp == 0 else oacc(u, j))) for pp, j in ix]

    def o_conv(u):
        ops = []
        r = TQ + 2
        ops.append(lambda: g.valu("v_accvgpr_read_b32 %s, %s" % (vr(r), vr(psum(u))), dst=[r], src=[psum(u)]))
        ops.append(lambda: g.valu("v_rcp_f32 %s, %s" % (vr(r), vr(r)), dst=[r], src=[r], trans=True))
        for i in range(4):
            d = PT_O + (i % 2) * 4
            for k in range(8):
                a = oacc(u, 2 * i) + k
                ops.append(lambda a=a: g.valu("v_mul_f32 %s, %s, %s" % (vr(a), vr(a), vr(r)), dst=[a], src=[a, r]))
            for m in range(4):
                a = oacc(u, 2 * i) + 2 * m
                ops.append(lambda d=d + m, a=a: g.valu("v_cvt_pk_bf16_f32 %s, %s, %s" % (vr(d), vr(a), vr(a + 1)), dst=[d], src=[a, a + 1]))
            n = i * 6 + u
            a, off = (VOW, n * 1024) if n < 16 else (VOW2, (n - 16) * 1024)
            ops.append(lambda d=d, a=a, off=off: g.dswrite("ds_write_b128 %s, %s offset:%d" % (vr(a), vr(d, 4), off), "OW", data=rng(d, 4), addr=[a]))
            if E("EXP3", 0):
                fl = ["", "", " sc1", " nt", " sc0"][E("EXP3", 0)]
                ops.append(lambda n=n: g.s("s_add_u32 %s, s7, %d" % (sr(S_T + 6), n * 1024)))
                ops.append(lambda d=d, fl=fl: g.vstore("buffer_store_dwordx4 %s, %s, %s, %s offen%s" % (vr(d, 4), vr(L16), sr(SRD_WS, 4), sr(S_T + 6), fl), "OS", data=rng(d, 4), addr=[L16]))
        return ops
    if E("EXP3", 0):
        g.s("s_lshl_b32 s7, s2, 2")
        g.s("s_add_u32 s7, s7, s3")
        g.s("s_mul_i32 s7, s7, 24576")
        g.s("s_add_u32 s7, s7, %d" % (32 * 1024 * 1024))
    PT_O = 228
    wl2 = w2_loads(g)

    def spread(fill, pre):
        if not pre:
            return fill
        k = max(1, len(fill) // len(pre))
        nf = []
        for i, f in enumerate(fill):
            if i % k == 0 and pre:
                nf.append(pre.pop(0))
            nf.append(f)
        return nf + pre
    for u in range(6):
        main = [(lambda kt=kt, i=i, u=u: g.mfma(sacc(u, kt), KF + (kt * 4 + i) * 4, QF + (u % 2) * 16 + i * 4, None if i == 0 else sacc(u, kt)))
                for kt in range(6) for i in range(4)]
        fill = []
        if u >= 1:
            fill += softmax_ops(g, u - 1)
        if 2 <= u + 1 <= 5:
            fill += q_conv(g, u + 1)
        if u == 4:
            fill += tr_addr()
        pre = []
        for tok in POST.get(u, []):
            pre += tok_ops(g, tok)
        fill = spread(fill, pre)
        if STAMP == 4 and u > 0:
            stamp(g)
        if u < 5:
            merge(main, fill)
        else:
            n3 = (len(fill) + 2) // 3
            merge(main[:8], fill[:n3])
            if STAMP == 4:
                stamp(g)
            g.wait_vm(["VD"])
            if STAMP == 4:
                stamp(g)
            merge(main[8:16], spread(fill[n3:2 * n3], tr_reads(0, range(8))))
            merge(main[16:], spread(fill[2 * n3:], tr_reads(1, range(8))))
    stamp(g)
    sm5 = softmax_ops(g, 5)
    pv0 = pv_main(0, True)
    n3 = (len(sm5) + 2) // 3
    run(tr_reads(2, range(4)))
    g.wait_lg("V0")
    merge(pv0[:8], spread(sm5[:n3], tr_reads(2, range(4, 8))))
    g.wait_lg("V1")
    merge(pv0[8:16], sm5[n3:2 * n3])
    g.wait_lg("V2")
    merge(pv0[16:], sm5[2 * n3:])
    stamp(g)
    vop(g, "v_mov_b32 %s, %d" % (vr(TQ + 1), L_MISC), TQ + 1)
    for u in range(1, 6):
        fill = o_conv(u - 1)
        if u == 2:
            fill = spread(fill, wl2(0))
        if u == 3:
            fill = spread(fill, wl2(1))
        merge(pv_main(u), fill)
        if STAMP == 4:
            stamp(g)
    g.wait_vm("NONCE")
    g.valu("v_readfirstlane_b32 %s, %s" % (sr(S_T), vr(NV)), src=[NV], readlane=True, sdst=[S_T])
    g.s("s_cmp_eq_u32 %s, 0" % sr(S_T))
    g.s("s_cselect_b32 %s, %s, %s" % (sr(S_T), sr(S_NONCE), sr(S_T)))
    vop(g, "v_mov_b32 %s, %s" % (vr(TQ), sr(S_T)), TQ)
    g.s("s_mov_b64 exec, %s" % sr(S_W0, 2))
    g.dswrite("ds_write_b32 %s, %s offset:4" % (vr(TQ + 1), vr(TQ)), "OW", data=[TQ], addr=[TQ + 1])
    g.s("s_mov_b64 exec, -1")
    run(o_conv(5))
    g.waitcnt(lg=0)
    g.lgq = []
    stamp(g)
    g.barrier()
    stamp(g)
    g.dsread("ds_read_b32 %s, %s offset:4" % (vr(NV), vr(TQ + 1)), "NN", dst=[NV], addr=[TQ + 1])
    run(b2_reads(g)(0))
    g.wait_lg("NN")
    g.valu("v_readfirstlane_b32 %s, %s" % (sr(S_NONCE), vr(NV)), src=[NV], readlane=True, sdst=[S_NONCE])
    cnt = [0]
    AC, VO, VF, F0, PL, PP = 224, 230, 231, 232, 234, 242
    S_CL = S_TYPE

    def tail(n):
        u = n
        ops = []
        for i in range(4):
            d = 96 + (cnt[0] % 8) * 4
            cnt[0] += 1
            for m in range(4):
                a, b = acc2(2 * m, u) + i, acc2(2 * m + 1, u) + i
                t0, t1 = TQ + (m % 2) * 2, TQ + (m % 2) * 2 + 1
                ops.append(lambda t=t0, s=a: g.valu("v_accvgpr_read_b32 %s, %s" % (vr(t), vr(s)), dst=[t], src=[s]))
                ops.append(lambda t=t1, s=b: g.valu("v_accvgpr_read_b32 %s, %s" % (vr(t), vr(s)), dst=[t], src=[s]))
                ops.append(lambda d=d + m, a=t0, b=t1: g.valu("v_cvt_pk_bf16_f32 %s, %s, %s" % (vr(d), vr(a), vr(b)), dst=[d], src=[a, b]))
                if not E("NOFAST", 1):
                    ops.append(lambda d=d + m: g.valu("v_min_u32 %s, -2, %s" % (vr(d), vr(d)), dst=[d], src=[d]))
            p = i * 3 + (n >> 1)
            if (EXP or E("EXP2", 0)) and i >= 2:
                continue
            ops.append(lambda p=p: g.s("s_add_u32 %s, %s, %d" % (sr(S_T + 6), sr(S_PB + (n & 1)), p * 1024)))
            ops.append(lambda d=d: g.vstore("buffer_store_dwordx4 %s, %s, %s, %s offen sc1" % (vr(d, 4), vr(L16), sr(SRD_WS, 4), sr(S_T + 6)),
                                            "PS", data=rng(d, 4), addr=[L16]))
        return ops

    def flag_store(soff, tag):
        g.s("s_mov_b64 exec, 1")
        g.vstore("buffer_store_dwordx2 %s, off, %s, %s sc1" % (vr(F0, 2), sr(SRD_WS, 4), sr(soff)), tag, data=[F0, F0 + 1])
        g.s("s_mov_b64 exec, -1")

    def setup_ops():
        ops = []
        A = ops.append
        A(lambda: g.s("s_xor_b32 %s, %s, 0x%x" % (sr(S_T), sr(S_NONCE), FC)))
        A(lambda: vop(g, "v_mov_b32 %s, %s" % (vr(F0), sr(S_NONCE)), F0))
        A(lambda: vop(g, "v_mov_b32 %s, %s" % (vr(F0 + 1), sr(S_T)), F0 + 1))
        LN, Q, G_, X1, X2, X3 = 112, 113, 114, 115, 116, 117
        V = lambda text, d, src=(): A(lambda: vop(g, text, d, src))
        V("v_lshrrev_b32 %s, 4, %s" % (vr(LN), vr(L16)), LN, [L16])
        V("v_and_b32 %s, 15, %s" % (vr(Q), vr(LN)), Q, [LN])
        V("v_lshrrev_b32 %s, 4, %s" % (vr(G_), vr(LN)), G_, [LN])
        V("v_lshrrev_b32 %s, 2, %s" % (vr(X1), vr(Q)), X1, [Q])
        V("v_and_b32 %s, 1, %s" % (vr(X2), vr(Q)), X2, [Q])
        V("v_lshlrev_b32 %s, 4, %s" % (vr(X2), vr(X2)), X2, [X2])
        V("v_mov_b32 %s, 0x3f80" % vr(X3), X3)
        V("v_lshlrev_b32 %s, %s, %s" % (vr(X3), vr(X2), vr(X3)), X3, [X2, X3])
        A(lambda: g.valu("v_cmp_eq_u32 vcc, %s, %s" % (vr(X1), vr(G_)), src=[X1, G_]))
        A(lambda: g.nop(2))
        V("v_cndmask_b32 %s, 0, %s, vcc" % (vr(X3), vr(X3)), X3, [X3])
        V("v_and_b32 %s, 2, %s" % (vr(X2), vr(Q)), X2, [Q])
        A(lambda: g.valu("v_cmp_eq_u32 vcc, 0, %s" % vr(X2), src=[X2]))
        for k in (0, 1, 4, 5):
            V("v_mov_b32 %s, 0" % vr(AC + k), AC + k)
        V("v_cndmask_b32 %s, 0, %s, vcc" % (vr(AC + 2), vr(X3)), AC + 2, [X3])
        V("v_cndmask_b32 %s, %s, 0, vcc" % (vr(AC + 3), vr(X3)), AC + 3, [X3])
        V("v_lshlrev_b32 %s, 6, %s" % (vr(VO), vr(G_)), VO, [G_])
        V("v_lshl_add_u32 %s, %s, 11, %s" % (vr(VO), vr(Q), vr(VO)), VO, [Q, VO])
        V("v_lshrrev_b32 %s, 1, %s" % (vr(VF), vr(L16)), VF, [L16])
        A(lambda: g.s("s_mov_b32 %s, 0" % sr(S_PHASE)))
        A(lambda: g.s("s_mov_b32 %s, 0" % sr(S_PEND)))
        A(lambda: g.s("s_mov_b32 %s, 0" % sr(S_CNT)))
        return ops

    def extra(s):
        ops = []
        if EXP and EXS <= s < EXS + 6:
            n = s - EXS
            for i in (2, 3):
                p = i * 3 + (n >> 1)
                def st(p=p, n=n):
                    g.s("s_add_u32 %s, %s, %d" % (sr(S_T + 6), sr(S_PB + (n & 1)), p * 1024))
                    g.vstore("buffer_store_dwordx4 %s, %s, %s, %s offen sc1" % (vr(A0 + 240, 4), vr(L16), sr(SRD_WS, 4), sr(S_T + 6)), "PS", data=rng(A0 + 240, 4), addr=[L16])
                ops.append(st)
        if EXP and s == EXL:
            for k in range(12):
                def ld(k=k):
                    d = A0 + 244 + (k % 3) * 4
                    g.s("s_add_u32 %s, %s, %d" % (sr(S_T), sr(S_XS + 2), (k & 7) * 12288 + (k >> 3) * 1024))
                    g.vload("buffer_load_dwordx4 %s, %s, %s, %s offen sc1" % (vr(d, 4), vr(L16), sr(SRD_WS, 4), sr(S_T)), "RX", dst=rng(d, 4), addr=[L16])
                ops.append(ld)
        if s == 0:
            ops.append(lambda: g.wait_vm("POI"))
            ops += setup_ops()
        if s == PFS and not E("NOFAST", 1):
            def pf():
                g.wait_vm("POI")
                g.s("s_add_u32 %s, %s, %d" % (sr(S_T), sr(S_FS), FLGP - FLG))
                flag_store(S_T, "PF")
            ops.append(pf)
        if s == PPS and not E("NOFAST", 1):
            def pp():
                g.s("s_add_u32 %s, %s, %d" % (sr(S_T), sr(S_XS + 1), FLGP - FLG))
                g.vload("buffer_load_dwordx2 %s, %s, %s, %s offen sc1" % (vr(PP, 2), vr(VF), sr(SRD_WS, 4), sr(S_T)), "PP", dst=[PP, PP + 1], addr=[VF])
            ops.append(pp)
        return ops
    gemm2(g, wl2, b2_reads(g), tail, extra)
    stamp(g)
    LDT = [KF, KF + 32, 0]
    RD = 32
    OQ = 64

    def r_loads(t):
        for src in range(8):
            if EXP and (t == 0 or (t == 1 and src < 4)):
                continue
            d = LDT[t] + src * 4
            g.s("s_add_u32 %s, %s, %d" % (sr(S_T), sr(S_XS + 2), src * 12288 + t * 1024))
            g.vload("buffer_load_dwordx4 %s, %s, %s, %s offen sc1" % (vr(d, 4), vr(L16), sr(SRD_WS, 4), sr(S_T)), "R%d" % t, dst=rng(d, 4), addr=[L16])

    def r_sum(t):
        for src in range(8):
            d = LDT[t] + src * 4
            for h in range(2):
                r = RD + (t * 2 + h) * 4
                g.mfma(r, AC + 2 - 2 * h, d, None if src == 0 else r)

    def r_out(t):
        o = OQ + t * 4
        for h in range(2):
            r = RD + (t * 2 + h) * 4
            for k in range(2):
                g.valu("v_cvt_pk_bf16_f32 %s, %s, %s" % (vr(o + h * 2 + k), vr(r + 2 * k), vr(r + 2 * k + 1)), dst=[o + h * 2 + k], src=[r + 2 * k, r + 2 * k + 1])
        g.s("s_add_u32 %s, %s, %d" % (sr(S_T + 3), sr(S_OB), t * 65536))
        g.vstore("buffer_store_dwordx4 %s, %s, %s, %s offen%s" % (vr(o, 4), vr(VO), sr(SRD_OUT, 4), sr(S_T + 3), os.environ.get("OUTF", "")), "OUT", data=rng(o, 4), addr=[VO])

    def r_check(t):
        m = [TQ, TQ + 1]
        b = LDT[t]
        for c in range(2):
            g.valu("v_max3_u32 %s, %s, %s, %s" % (vr(m[c]), vr(b + 16 * c), vr(b + 16 * c + 1), vr(b + 16 * c + 2)), dst=[m[c]], src=rng(b + 16 * c, 3))
        for k in range(3, 15, 2):
            for c in range(2):
                x = b + 16 * c + k
                g.valu("v_max3_u32 %s, %s, %s, %s" % (vr(m[c]), vr(m[c]), vr(x), vr(x + 1)), dst=[m[c]], src=[m[c], x, x + 1])
        g.valu("v_max3_u32 %s, %s, %s, %s" % (vr(m[0]), vr(m[0]), vr(b + 15), vr(b + 31)), dst=[m[0]], src=[m[0], b + 15, b + 31])
        g.valu("v_max_u32 %s, %s, %s" % (vr(m[0]), vr(m[0]), vr(m[1])), dst=[m[0]], src=m)
        g.valu("v_cmp_eq_u32 vcc, -1, %s" % vr(m[0]), src=[m[0]])
        g.nop(1)
        g.s("s_cbranch_vccnz retry%d" % t)

    def flags_ok(pl):
        g.valu("v_cmp_eq_u32 vcc, %s, %s" % (vr(pl), vr(F0)), src=[pl, F0])
        g.valu("v_cmp_eq_u32 %s, %s, %s" % (sr(S_M, 2), vr(pl + 1), vr(F0 + 1)), src=[pl + 1, F0 + 1])
        g.s("s_mov_b64 exec, -1")
        g.s("s_and_b32 %s, %s, vcc_lo" % (sr(S_M), sr(S_M)))
        g.s("s_and_b32 %s, %s, 0xff" % (sr(S_M + 1), sr(S_M)))
        g.s("s_cmp_eq_u32 %s, 0xff" % sr(S_M + 1))

    NOFAST = E("NOFAST", 1)
    if not NOFAST:
        r_loads(0)
        r_loads(1)
        if T2POS == 0:
            r_loads(2)
        g.wait_vm("PP")
        flags_ok(PP)
        if FORCE_AB & 512:
            g.s("s_bitcmp1_b32 s2, 4")
        g.s("s_cbranch_scc0 slow")
        if FORCE_AB & 255:
            g.s("s_and_b32 %s, s2, %d" % (sr(S_T), FORCE_AB & 255))
            g.s("s_cmp_eq_u32 %s, 0" % sr(S_T))
            g.s("s_cbranch_scc1 slow")
        if FORCE_AB & 256:
            g.s("s_branch slow")
        g.wait_vm("R0")
        flag_store(S_FS, "FS")
        stamp(g)
        for t in range(3):
            g.wait_vm("R%d" % t)
            g.label("chk%d" % t)
            g.nop(1)
            r_check(t)
            if t == 0 and T2POS == 1:
                r_loads(2)
            r_sum(t)
            if t == 0 and T2POS == 2:
                r_loads(2)
            if t == 2:
                stamp(g)
            r_out(t)
        stamp(g)
        stamp_flush(g)
        g.s("s_branch after")
        for t in range(3):
            g.label("retry%d" % t)
            g.vmq = []
            r_loads(t)
            g.s("s_add_u32 %s, %s, 1" % (sr(S_CNT), sr(S_CNT)))
            g.s("s_cmp_lt_u32 %s, %d" % (sr(S_CNT), RETRY))
            g.waitcnt(vm=0)
            g.vmq = []
            g.s("s_cbranch_scc1 chk%d" % t)
            if t < 2:
                g.s("s_branch slow")
    S_DONE, S_ACC, S_NEW = S_CNT, S_T + 6, S_T + 7

    def poll_load(soff):
        if E("PX", 1):
            g.s("s_mov_b64 exec, 0xffff")
        g.vload("buffer_load_dwordx2 %s, %s, %s, %s offen sc1" % (vr(PL, 2), vr(VF), sr(SRD_WS, 4), sr(soff)), "PL", dst=[PL, PL + 1], addr=[VF])

    def poll(soff):
        poll_load(soff)
        g.waitcnt(vm=0)
        g.vmq = []
        flags_ok(PL)

    def elapsed():
        g.s("s_memrealtime %s" % sr(S_T + 4, 2))
        g.waitcnt(lg=0)
        g.s("s_sub_u32 %s, %s, %s" % (sr(S_T + 4), sr(S_T + 4), sr(S_NONCE)))

    def job_init():
        for k in range(24):
            vop(g, "v_mov_b32 %s, 0" % vr(RD + k), RD + k)
        g.s("s_mov_b32 %s, 0" % sr(S_DONE))
        g.s("s_mov_b32 %s, 0" % sr(S_ACC))
    g.label("slow")
    if STAMP == 5:
        g.s("s_mov_b32 m0, 12")
        g.s("s_mov_b64 exec, 0xfffff000")
        vop(g, "v_mov_b32 %s, 0" % vr(SV), SV)
        vop(g, "v_mov_b32 %s, 0" % vr(SV + 1), SV + 1)
        g.s("s_mov_b64 exec, -1")
    if E("PFIRST", 0):
        poll_load(S_XS + 1)
    job_init()
    g.waitcnt(vm=0)
    g.vmq = []
    flag_store(S_FS, "FS")
    if NOFAST:
        stamp(g)
    if FORCE_AB & 255:
        g.s("s_and_b32 %s, s2, %d" % (sr(S_T), FORCE_AB & 255))
        g.s("s_cmp_eq_u32 %s, 0" % sr(S_T))
        g.s("s_cbranch_scc1 giveup")
    if FORCE_AB & 256:
        g.s("s_branch giveup")
    g.s("s_branch %s" % ("process" if E("PFIRST", 0) else "poll"))
    g.label("job")
    job_setup(g, lambda o: o())
    job_init()
    g.label("poll")
    poll_load(S_XS + 1)
    g.waitcnt(vm=0)
    g.vmq = []
    g.label("process")
    flags_ok(PL)
    if STAMP == 5:
        g.s("s_memrealtime %s" % sr(S_ST, 2))
        g.waitcnt(lg=0)
        g.valu("v_writelane_b32 %s, %s, m0" % (vr(SV), sr(S_ST)), dst=[SV])
        g.valu("v_writelane_b32 %s, %s, m0" % (vr(SV + 1), sr(S_M + 1)), dst=[SV + 1])
        g.s("s_add_u32 m0, m0, 1")
        g.s("s_min_u32 m0, m0, 31")
    g.s("s_andn2_b32 %s, %s, %s" % (sr(S_NEW), sr(S_M + 1), sr(S_DONE)))
    g.s("s_cbranch_scc0 noload")
    for src in range(8):
        g.s("s_bitcmp1_b32 %s, %d" % (sr(S_NEW), src))
        g.s("s_cbranch_scc0 nold%d" % src)
        g.s("s_add_u32 %s, %s, %d" % (sr(S_T), sr(S_XS + 2), src * 12288))
        for t in range(3):
            if E("EXP2", 0) and (src & 1):
                continue
            d = LDT[t] + src * 4
            g.vload("buffer_load_dwordx4 %s, %s, %s, %s offen offset:%d sc1" % (vr(d, 4), vr(L16), sr(SRD_WS, 4), sr(S_T), t * 1024), "R", dst=rng(d, 4), addr=[L16])
        g.label("nold%d" % src)
    g.vmq = []
    g.label("noload")
    g.s("s_cmp_eq_u32 %s, 0" % sr(S_ACC))
    g.s("s_cbranch_scc1 noacc")
    for src in range(8):
        g.s("s_bitcmp1_b32 %s, %d" % (sr(S_ACC), src))
        g.s("s_cbranch_scc0 noac%d" % src)
        for t in range(3):
            for h in range(2):
                r = RD + (t * 2 + h) * 4
                g.mfma(r, AC + 2 - 2 * h, LDT[t] + src * 4, r)
        g.label("noac%d" % src)
    g.label("noacc")
    g.s("s_or_b32 %s, %s, %s" % (sr(S_DONE), sr(S_DONE), sr(S_NEW)))
    g.s("s_mov_b32 %s, %s" % (sr(S_ACC), sr(S_NEW)))
    g.s("s_cmp_lg_u32 %s, 0xff" % sr(S_DONE))
    g.s("s_cbranch_scc1 more")
    g.s("s_cmp_eq_u32 %s, 0" % sr(S_ACC))
    g.s("s_cbranch_scc1 finish")
    if NOFAST:
        stamp(g)
    g.waitcnt(vm=0)
    g.s("s_mov_b32 %s, 0" % sr(S_NEW))
    g.s("s_branch noload")
    g.label("more")
    g.s("s_cmp_lg_u32 %s, 0" % sr(S_NEW))
    g.s("s_cbranch_scc1 poll")
    g.s("s_sleep %d" % SLEEP)
    elapsed()
    g.s("s_cmp_lt_i32 %s, %d" % (sr(S_T + 4), X_AB))
    g.s("s_cbranch_scc1 poll")
    g.label("giveup")
    g.s("s_and_b32 %s, %s, 1" % (sr(S_T), sr(S_RO)))
    g.s("s_lshl_b32 %s, %s, 2" % (sr(S_T), sr(S_T)))
    g.s("s_add_u32 %s, %s, %s" % (sr(S_T), sr(S_T), sr(S_RR)))
    g.s("s_lshl_b32 %s, %s, 3" % (sr(S_T), sr(S_T)))
    g.s("s_add_u32 %s, %s, 64" % (sr(S_T), sr(S_T)))
    g.s("s_add_u32 %s, %s, %s" % (sr(S_T), sr(S_T), sr(S_XS + 1)))
    flag_store(S_T, "FS")
    g.waitcnt(vm=0)
    g.vmq = []
    poll(S_XS + 1)
    g.s("s_cbranch_scc1 process")
    g.s("s_branch after")
    g.label("finish")
    g.nop(10)
    for t in range(3):
        r_out(t)
    if NOFAST:
        stamp(g)
        stamp_flush(g)
    g.label("after")
    g.nop(8)
    g.s("s_cmp_lg_u32 %s, 0" % sr(S_PHASE))
    g.s("s_cbranch_scc1 next")
    g.s("s_mov_b32 %s, 1" % sr(S_PHASE))
    g.waitcnt(vm=3 + (1 if STAMP else 0))
    elapsed()
    g.s("s_cmp_lt_i32 %s, %d" % (sr(S_T + 4), X_CK))
    if not FORCE_AB:
        g.s("s_cbranch_scc1 k_end")
    poll(S_XS)
    g.s("s_lshr_b32 %s, %s, 8" % (sr(S_PEND), sr(S_M)))
    g.s("s_and_b32 %s, %s, 0xff" % (sr(S_PEND), sr(S_PEND)))
    g.s("s_cmp_eq_u32 %s, 0xff" % sr(S_M + 1))
    g.s("s_cselect_b32 %s, %s, 0" % (sr(S_PEND), sr(S_PEND)))
    g.label("next")
    g.s("s_cmp_eq_u32 %s, 0" % sr(S_PEND))
    g.s("s_cbranch_scc1 k_end")
    g.s("s_ff1_i32_b32 %s, %s" % (sr(S_T), sr(S_PEND)))
    g.s("s_bitset0_b32 %s, %s" % (sr(S_PEND), sr(S_T)))
    g.s("s_and_b32 %s, %s, 3" % (sr(S_RR), sr(S_T)))
    g.s("s_lshr_b32 %s, %s, 2" % (sr(S_T), sr(S_T)))
    g.s("s_lshl_b32 %s, s3, 1" % sr(S_RO))
    g.s("s_add_u32 %s, %s, %s" % (sr(S_RO), sr(S_RO), sr(S_T)))
    g.waitcnt(vm=0)
    g.s("s_branch job")
    g.label("k_end")


def body():
    _stamp_n[0] = 0
    g0 = prologue()
    n = len(CLS)
    if n > 1:
        if CLF == "b":
            g0.s("s_and_b32 %s, %s, %d" % (sr(S_TYPE), sr(S_B), n - 1))
        else:
            g0.s("s_add_u32 %s, %s, %s" % (sr(S_TYPE), sr(S_B), sr(S_HG)))
            g0.s("s_and_b32 %s, %s, %d" % (sr(S_TYPE), sr(S_TYPE), n - 1))
        for c in range(1, n):
            g0.s("s_cmp_eq_u32 %s, %d" % (sr(S_TYPE), c))
            g0.s("s_cbranch_scc1 cls%d" % c)
    n0 = _stamp_n[0]
    txt = []
    for c in range(n):
        _stamp_n[0] = n0
        g = Gen()
        g.label("cls%d" % c)
        part1(g, CLS[c])
        if c:
            g.s("s_branch join")
        txt.append(g.text())
    g = Gen()
    g.vmq = ["V0", "V1", "V2", "TCH", "VD"]
    g.label("join")
    part2(g)
    g.raw("s_endpgm")
    return g0.text() + txt[0] + g.text() + "".join(txt[1:]) + "code_end:\n"


def main():
    out = "; fused attention: q-proj + attention + o-proj partial per workgroup, cross-workgroup bf16 reduction\n"
    out += "; @launch kernel=attn_kernel grid=(256,1,1) block=(256,1,1) lds=%d\n" % LDS_BYTES
    out += '.amdgcn_target "amdgcn-amd-amdhsa--gfx950"\n.text\n'
    out += ".globl attn_kernel\n.p2align 8\n.type attn_kernel,@function\nattn_kernel:\n"
    out += body()
    out += '.section .rodata,"a"\n.p2align 6\n.amdhsa_kernel attn_kernel\n'
    out += "  .amdhsa_next_free_vgpr 512\n  .amdhsa_next_free_sgpr 102\n  .amdhsa_accum_offset 256\n"
    out += "  .amdhsa_group_segment_fixed_size 0\n  .amdhsa_kernarg_size 104\n  .amdhsa_user_sgpr_count 2\n"
    out += "  .amdhsa_user_sgpr_kernarg_segment_ptr 1\n  .amdhsa_system_sgpr_workgroup_id_x 1\n.end_amdhsa_kernel\n"
    path = sys.argv[1] if len(sys.argv) > 1 else "cdna_kernels/%s.s" % NAME
    open(path, "w").write(out)
    print("wrote", path, len(out), "bytes; stamps", _stamp_n[0], "late", LATE[:12])
    if E("INFO", 0):
        for i in INFO:
            print(i)


main()
```

```python
import sys, os
sys.path.insert(0, os.path.dirname(os.path.abspath(__file__)))
from asmgen2 import Gen, vr, sr

NAME = "concat_heads__gqa_block_cached__gqa_block_cached__near_ridge"
WS_BYTES = 268435456
E = lambda k, d: int(os.environ.get(k, str(d)))
STAMP = E("STAMP", 0)
STAMP_BASE = 200 * 1024 * 1024
NRAW = E("NRAW", 3)
WQT = E("WQT", 1)
WOT = E("WOT", 1)
XBAR = dict((int(a), int(b)) for a, b in (t.split(":") for t in os.environ.get("XBAR", "0:1,4:3,8:5,12:7").split(",")))
VL = dict((int(t[0]), int(t[2])) for t in os.environ.get("VL", "0h0,1h1,2h2").split(",") if t)
PDEF = os.environ.get("PTOK", "x0,w0,x1,w1,t")
QB = os.environ.get("QB", "w2,x2,x3,w3,w4,w5,w6,x4,x5,w7,w8,w9,w10,x6,x7,w11,w12,w13,w14,w15,V0h0,V1h1")
CLS = []
for c in os.environ.get("KP", "5,9,13|6,10,14|7,11,15|8,12,15").split("|"):
    kp = [int(t) for t in c.split(",")]
    q = []
    for tok in QB.split(","):
        q.append(tok)
        for p_ in range(3):
            if tok == "w%d" % kp[p_]:
                q.append("K%dh%d" % (p_, p_))
    CLS.append({"P": PDEF.split(","), "Q": q})
if os.environ.get("QTOK"):
    CLS = [{"P": PDEF.split(","), "Q": c.split(",")} for c in os.environ["QTOK"].split("|")]
RM = E("RM", 14)
MAP = E("MAP", 0)
PLAIN = E("PLAIN", 0)
DF = "" if PLAIN else " sc1"
DFL = ["", "", " sc0", " sc1"][PLAIN] if PLAIN else " sc1"
BUD, CC, CW, CAP = E("BUD", 58), E("CC", 65), E("CW", 33), E("CAP", 100)
SM2 = E("SM2", 0)
POST = {}
for it in os.environ.get("POST", "0=V2h2;3=T;4=Y").split(";"):
    k, v = it.split("=")
    POST[int(k)] = v.split(",")
CLF = os.environ.get("CLF", "b")
FORCE_AB = E("FORCE_AB", 0)
POLL_MAX = E("POLL_MAX", 300)
SLEEP = E("SLEEP", 2)
NT = os.environ.get("NT", " nt")
PART = 0
FLG = 64 * 1024 * 1024
FC = 0x5A3C96E1
FLGP = FLG + 65536
X_AB = E("X_AB", 40000)
X_CK = E("X_CK", 20000)
RETRY = E("RETRY", 40)
R2 = [int(c) for c in os.environ.get("R2", "11211212")]
PFS = E("PFS", 1)
PPS = E("PPS", 11)
T2POS = E("T2POS", 1)
EXP, EXS, EXL = E("EXP", 0), E("EXS", 4), E("EXL", 11)

SRD_X, SRD_K, SRD_V, SRD_W, SRD_WS, SRD_WO, SRD_OUT, SRD_DBG = 20, 24, 28, 32, 36, 40, 44, 48
SE = 51
S_PLO, S_PHI = 60, 61
S_BH, S_HG, S_B, S_BLK, S_GRP, S_TYPE, S_C = 62, 63, 64, 65, 66, 67, 68
S_W0 = 70
S_T = 72
S_NONCE, S_RO, S_RR, S_PEND, S_PHASE, S_CNT = 80, 81, 82, 83, 84, 85
S_WI, S_XR = 80, 82
ROT = E("ROT", 2)
S_XS = 86
S_XM = 89
S_PB = 89
S_VL = 92
S_M = 94
S_ST = 96

RAW = 0
WT = 96 if NRAW == 3 else 224
WT8 = 64
KF = 128
VW, XB, VK, VV, VWO, L16, VOW, L16H = 240, 241, 245, 246, 247, 248, 249, 250
VOW2 = XB
TQ = 251
XA = TQ
WTA = 112 if NRAW == 3 else A0 + 254 if False else 112
VR2 = 0
VKD, VKR = 113, 117
QF = 32
SB = 64
PT = 112
TM = 124
OB = 64
TT = 32
ZQ = 224
A0 = 256
ACC = A0
BF = A0 + 192
VRA = A0 + 192

L_V = 98304
L_MISC = 34816
LDS_BYTES = 163840

_stamp_n = [0]


def rng(a, n):
    return list(range(a, a + n))


def vop(g, text, dst, src=()):
    g.valu(text, dst=[dst] if isinstance(dst, int) else dst, src=src)


SV = 236


def stamp(g, have=False):
    if not STAMP:
        return
    n = _stamp_n[0]
    _stamp_n[0] += 1
    if not have:
        g.s("%s %s" % (os.environ.get("CLK", "s_memrealtime"), sr(S_ST, 2)))
        g.waitcnt(lg=0)
        g.lgq = []
    g.valu("v_writelane_b32 %s, %s, %d" % (vr(SV), sr(S_ST), n), dst=[SV])
    g.valu("v_writelane_b32 %s, %s, %d" % (vr(SV + 1), sr(S_ST + 1), n), dst=[SV + 1])


def stamp_flush(g):
    if not STAMP:
        return
    g.s("s_lshl_b32 %s, s2, 8" % sr(S_ST + 2))
    g.s("s_add_u32 %s, %s, %d" % (sr(S_ST + 2), sr(S_ST + 2), STAMP_BASE))
    g.s("s_mul_i32 %s, s3, 1048576" % sr(S_ST + 3))
    g.s("s_add_u32 %s, %s, %s" % (sr(S_ST + 2), sr(S_ST + 2), sr(S_ST + 3)))
    vop(g, "v_lshrrev_b32 %s, 1, %s" % (vr(TQ), vr(L16)), TQ, [L16])
    g.s("s_mov_b64 exec, 0xffffffff")
    g.vstore("buffer_store_dwordx2 %s, %s, %s, %s offen" % (vr(SV, 2), vr(TQ), sr(SRD_WS, 4), sr(S_ST + 2)), "STAMP", data=[SV, SV + 1], addr=[TQ])
    g.s("s_mov_b64 exec, -1")


def make_srd(g, srd, ptr, nbytes):
    g.s("s_mov_b32 %s, %s" % (sr(srd), sr(ptr)))
    g.s("s_and_b32 %s, %s, 0xffff" % (sr(srd + 1), sr(ptr + 1)))
    g.s("s_mov_b32 %s, %d" % (sr(srd + 2), nbytes))
    g.s("s_mov_b32 %s, 0x00020000" % sr(srd + 3))


def acc1(j, u):
    return ACC + (u * 8 + j) * 4


def acc2(j, u):
    return ACC + (u * 8 + j) * 4


SL2 = [32, 0, 64, KF, KF + 32]


UM = E("UM", 6)


def raw2(s, e):
    if UM == 6 and s in (13, 14):
        s = 27 - s
    return SL2[s % 5] + e * 4


CYC = [KF + 64, 32, 64, 0, KF, KF + 32]


def raw(s, e):
    return CYC[s % 6] + e * 4


def bf(s, u):
    return BF + ((s % 2) * 6 + u) * 4


def perm_ops(g, rbase, j, dst):
    ops = []
    for m in range(4):
        a, b = rbase + (2 * m) * 4 + (j >> 1), rbase + (2 * m + 1) * 4 + (j >> 1)
        sel = S_PHI if j & 1 else S_PLO

        def op(a=a, b=b, d=dst + m, sel=sel):
            g.valu("v_perm_b32 %s, %s, %s, %s" % (vr(d), vr(b), vr(a), sr(sel)), dst=[d], src=[a, b])
        ops.append(op)
    return ops


def merge(main, fill):
    n = len(main)
    k = 0
    for i, m in enumerate(main):
        m()
        upto = (len(fill) * (i + 1) + n - 1) // n
        while k < upto:
            fill[k]()
            k += 1


def units(tag, ops, cost):
    out, cur = [], []
    for o in ops:
        cur.append(o)
        if getattr(o, "is_load", False):
            out.append([tag, cost, cur])
            cur = []
    if cur:
        out.append([tag, 0, cur])
    return out


def gemm1(g, cl, b_reads, tail):
    acc = acc1
    pend = []
    rdone = set()
    kbar = min(k - 1 for k in XBAR if k - 1 >= 5)
    vbar = min(k - 1 for k in XBAR if k - 1 >= 11)
    for tok in cl["Q"]:
        if tok[0] == "@":
            pend.append([tok, 0, []])
        else:
            pend += units(tok, tok_ops(g, tok), CW if tok[0] == "w" or (ROT == 2 and tok[0] == "x" and int(tok[1]) >= 4) else CC)
    credit = [0]
    kiss = {}
    INFO.append(kiss)

    def ok(tag, s, j):
        if tag[0] == "@":
            return s >= int(tag[1:])
        if tag[0] == "w":
            return (s, j) >= (int(tag[1:]) - 6, 7)
        if tag[0] == "K" and tag[3] == "2":
            return (s, j) >= (kbar, 4)
        if tag[0] == "V" and tag[3] == "2":
            return (s, j) >= (vbar, 4)
        if tag[0] == "V":
            return tag[3] in rdone
        return True

    def take(s, j):
        out = []
        credit[0] = min(CAP, credit[0] + BUD)
        while pend and ok(pend[0][0], s, j) and credit[0] >= pend[0][1]:
            t, c, o = pend.pop(0)
            credit[0] -= c
            out += o
            kiss[t] = 8 * s + j
        return out

    def upto(tag, s, j):
        out = []
        while any(t == tag for t, _, _ in pend):
            t, c, o = pend.pop(0)
            assert t[0] == "@" or ok(t, s, j), (t, tag, s, j)
            credit[0] -= c
            out += o
            kiss[t] = 8 * s + j
            LATE.append((tag, t, s, j))
        return out
    side = []

    rnext = [0]

    def side_add(s):
        while rnext[0] < 3:
            p_ = rnext[0]
            tok = "R%dh%d" % (p_, p_)
            if s < 16 and (s < 11 + p_ or any(t == "K" + tok[1:] for t, _, _ in pend) or 8 * s < kiss["K" + tok[1:]] + RM):
                break
            side.append(lambda tok=tok, s=s: run(upto("K" + tok[1:], s, 0)))
            side.extend(tok_ops(g, tok))
            side.append(lambda tok=tok: rdone.add(tok[3]))
            rnext[0] += 1
            INFO.append((tok, s))

    def side_take(n):
        out = []
        while side and n > 0:
            o = side.pop(0)
            out.append(o)
            if getattr(o, "is_load", False):
                n -= 1
        while side and not getattr(side[0], "is_load", False) and len(side) == 1:
            out.append(side.pop(0))
        return out
    g.wait_vm("W0")
    for op in perm_ops(g, raw(0, 0), 0, WT):
        op()
    for s in range(15):
        side_add(s)
        for j in range(8):
            idx = 8 * s + j
            fill = []
            if j == 7:
                fill += upto("w%d" % (s + 1), s, j)
                fill.append(lambda s=s: g.wait_vm("W%d" % (s + 1)))
                fill += perm_ops(g, raw(s + 1, 0), 0, (WT8 if s == 14 else WT + ((idx + 1) % 4) * 4))
            else:
                fill += perm_ops(g, raw(s, 0), j + 1, WT + ((idx + 1) % 4) * 4)
            fill += take(s, j)
            if j == 3 and (s + 1) in XBAR:
                tags = ["X%d" % k for k in range(XBAR[s + 1] + 1)]
                for t in tags:
                    fill += upto(t.lower(), s, j)
                fill.append(lambda tags=tags: g.wait_vm(tags))
                fill.append(g.barrier)
            if 3 <= j <= 5:
                fill += b_reads(s + 1)[(j - 3) * 2:(j - 3) * 2 + 2]
            elif j < 3:
                fill += side_take(3)
            if j == 0:
                g.wait_lg("B%d" % s)
                if STAMP == 2 and s > 0:
                    stamp(g)
            a = WT + (idx % 4) * 4
            main = [(lambda u=u: g.mfma(acc(j, u), a, bf(s, u), None if s == 0 else acc(j, u))) for u in range(6)]
            merge(main, fill)
    s = 15
    side_add(15)
    g.wait_lg("B15")
    carry = []
    for n, u in enumerate(range(6)):
        main = [(lambda j=j: g.mfma(acc(j, u), WT8 + j * 4, bf(s, u), acc(j, u))) for j in range(8)]
        if n == 0:
            for j in range(8):
                main[j]()
                if j < 7:
                    for op in perm_ops(g, raw(s, 0), j + 1, WT8 + (j + 1) * 4):
                        op()
        else:
            fill = side_take(4)
            merge(main[:1], fill)
            fill = take(15, n) + take(15, n) + carry[:20]
            carry = carry[20:]
            merge(main[1:], fill)
        carry += tail(u)
    side_add(16)
    run(side)
    rest = []
    for t, c, o in pend:
        assert t[0] == "@" or ok(t, 16, 0), t
        rest += o
    return rest, carry


LATE = []
INFO = []


def mark(ops):
    for o in ops:
        names = o.__code__.co_names
        if "vload" in names:
            o.is_load = True
    return ops


def q_conv(g, u):
    ops = []
    for i in range(4):
        for m in range(4):
            t0, t1 = TQ + (m % 2) * 2, TQ + (m % 2) * 2 + 1
            s0, s1 = acc1(2 * m, u) + i, acc1(2 * m + 1, u) + i
            d = QF + (u % 2) * 16 + i * 4 + m
            ops.append(lambda t=t0, s=s0: g.valu("v_accvgpr_read_b32 %s, %s" % (vr(t), vr(s)), dst=[t], src=[s]))
            ops.append(lambda t=t1, s=s1: g.valu("v_accvgpr_read_b32 %s, %s" % (vr(t), vr(s)), dst=[t], src=[s]))
            ops.append(lambda d=d, a=t0, b=t1: g.valu("v_cvt_pk_bf16_f32 %s, %s, %s" % (vr(d), vr(a), vr(b)), dst=[d], src=[a, b]))
    return ops


def sacc(u, kt):
    return SB + (u % 2) * 24 + kt * 4


def pfrag(u, pp):
    return ACC + u * 32 + pp * 4


ONES = 224


def psum(u):
    return ACC + u * 32 + 12


def softmax_ops(g, u):
    ops = []
    A = ops.append
    vals = [sacc(u, kt) + r for kt in range(6) for r in range(4)]
    m, tmp, r = TM, TM + 1, TM + 2
    m2 = TM + 3

    def V(text, dst, src, **kw):
        A(lambda: g.valu(text, dst=dst, src=src, **kw))
    V("v_max3_f32 %s, %s, %s, %s" % (vr(m), vr(vals[0]), vr(vals[1]), vr(vals[2])), [m], vals[0:3])
    V("v_max3_f32 %s, %s, %s, %s" % (vr(m2), vr(vals[3]), vr(vals[4]), vr(vals[5])), [m2], vals[3:6])
    k = 6
    while k < 24:
        mm = m if (k // 2) % 2 else m2
        V("v_max3_f32 %s, %s, %s, %s" % (vr(mm), vr(mm), vr(vals[k]), vr(vals[k + 1])), [mm], [mm, vals[k], vals[k + 1]])
        k += 2
    V("v_max_f32 %s, %s, %s" % (vr(m), vr(m), vr(m2)), [m], [m, m2])

    def xl(x, op):
        for sw in ("v_permlane32_swap_b32", "v_permlane16_swap_b32"):
            V("v_mov_b32 %s, %s" % (vr(tmp), vr(x)), [tmp], [x])
            V("%s %s, %s" % (sw, vr(x), vr(tmp)), [x, tmp], [x, tmp], permlane=True)
            V("%s %s, %s, %s" % (op, vr(x), vr(x), vr(tmp)), [x], [x, tmp])
    xl(m, "v_max_f32")
    V("v_mul_f32 %s, %s, %s" % (vr(m), sr(S_C), vr(m)), [m], [m])
    for v in vals:
        V("v_fma_f32 %s, %s, %s, -%s" % (vr(v), vr(v), sr(S_C), vr(m)), [v], [v, m])
    for v in vals:
        V("v_exp_f32 %s, %s" % (vr(v), vr(v)), [v], [v], trans=True)
    for pp in range(3):
        for h in range(4):
            a = sacc(u, 2 * pp + (h >> 1)) + (h & 1) * 2
            d = PT + pp * 4 + h
            V("v_cvt_pk_bf16_f32 %s, %s, %s" % (vr(d), vr(a), vr(a + 1)), [d], [a, a + 1])
    for k in range(12):
        d = pfrag(u, 0) + k
        V("v_accvgpr_write_b32 %s, %s" % (vr(d), vr(PT + k)), [d], [PT + k])
    for pp in range(3):
        A(lambda pp=pp: g.mfma(psum(u), ONES, PT + pp * 4, None if pp == 0 else psum(u)))
    return ops


S_K2, S_KD, S_JUNK, S_TB = 4, 5, 13, 6


def k_dma(g, part, half):
    ops = []
    for n8 in range(8):
        n = part * 8 + n8
        ops.append(lambda n=n: g.s("s_add_u32 %s, %s, %d" % (sr(S_T + 1), sr(S_BH), n * 1024)))
        if half == 2:
            ops.append(lambda n8=n8: g.s("s_add_u32 m0, %s, %d" % (sr(S_K2), n8 * 1024), m0=True))
        else:
            ops.append(lambda n8=n8: g.s("s_add_u32 m0, %s, %d" % (sr(S_VL), half * 8192 + n8 * 1024), m0=True))
        ops.append(lambda n=n: g.vload("buffer_load_dwordx4 %s, %s, %s offen%s lds" % (vr(VKD + (n & 3)), sr(SRD_K, 4), sr(S_T + 1), NT), "KD%d" % part, addr=[VKD + (n & 3)], lds=True))
    return ops


def k_read(g, part, half):
    ops = [lambda: g.wait_vm("KD%d" % part)]
    if half == 2:
        for i in range(4):
            ops.append(lambda i=i: vop(g, "v_subrev_u32 %s, %s, %s" % (vr(VKR + i), sr(S_KD), vr(VKR + i)), VKR + i, [VKR + i]))
    for k2 in range(2):
        for i in range(4):
            d = KF + ((part * 2 + k2) * 4 + i) * 4
            o = lambda d=d, i=i, k2=k2: g.dsread("ds_read_b128 %s, %s offset:%d" % (vr(d, 4), vr(VKR + i), (half & 1) * 8192 + k2 * 4096), "KR%d" % half, dst=rng(d, 4), addr=[VKR + i])
            o.is_load = True
            ops.append(o)
    return ops


def vraw(pp, e):
    return (VRA + pp * 32 + e * 4) if pp < 2 else (VR2 + e * 4)


def v_loads(g, pp_):
    ops = []
    for pp in (pp_,):
        for e in range(8):
            if e % 4 == 0:
                ops.append(lambda pp=pp, e=e: g.s("s_add_u32 %s, %s, %d" % (sr(S_T + 1), sr(S_BH), pp * 8192 + (e >> 2) * 4096)))
            d = vraw(pp, e)
            ops.append(lambda d=d, e=e, pp=pp: g.vload("buffer_load_dwordx4 %s, %s, %s, %s offen offset:%d%s" % (vr(d, 4), vr(VV), sr(SRD_V, 4), sr(S_T + 1), (e & 3) * 256, NT),
                                                       "V%d" % pp, dst=rng(d, 4), addr=[VV]))
    return ops


L_V2 = 36864


def v_dma(g, pp, half):
    ops = [lambda: g.wait_lg("KR%d" % half)] if half < 2 else []
    for e in range(8):
        ops.append(lambda pp=pp, e=e: g.s("s_add_u32 %s, %s, %d" % (sr(S_T + 1), sr(S_BH), pp * 8192 + e * 1024)))
        if half < 2:
            ops.append(lambda pp=pp, e=e: g.s("s_add_u32 m0, %s, %d" % (sr(S_VL), (half * 8 + e) * 1024), m0=True))
        else:
            ops.append(lambda pp=pp, e=e: g.s("s_add_u32 m0, %s, %d" % (sr(S_K2), L_V2 + e * 1024), m0=True))
        a = VK if e & 1 else VV
        ops.append(lambda a=a: g.vload("buffer_load_dwordx4 %s, %s, %s offen%s lds" % (vr(a), sr(SRD_V, 4), sr(S_T + 1), NT), "VD", addr=[a], lds=True))
    return ops


def wo_touch(g):
    ops = []
    A = ops.append
    if MAP:
        A(lambda: g.s("s_and_b32 %s, %s, 3" % (sr(S_T + 3), sr(S_B))))
        A(lambda: g.s("s_lshl_b32 %s, %s, 2" % (sr(S_T + 3), sr(S_T + 3))))
    else:
        A(lambda: g.s("s_lshl_b32 %s, %s, 2" % (sr(S_T + 3), sr(S_B))))
    A(lambda: g.s("s_add_u32 %s, %s, s3" % (sr(S_T + 3), sr(S_T + 3))))
    A(lambda: g.s("s_lshl_b32 %s, %s, 13" % (sr(S_T + 3), sr(S_T + 3))))
    A(lambda: g.s("s_lshl_b32 %s, %s, 19" % (sr(S_T + 4), sr(S_HG))))
    A(lambda: g.s("s_add_u32 %s, %s, %s" % (sr(S_T + 3), sr(S_T + 3), sr(S_T + 4))))
    A(lambda: vop(g, "v_lshlrev_b32 %s, 3, %s" % (vr(TQ + 4), vr(L16)), TQ + 4, [L16]))
    for k in range(3 if MAP else 0):
        A(lambda: g.vload("buffer_load_dword %s, %s, %s, %s offen" % (vr(VW), vr(TQ + 4), sr(SRD_WO, 4), sr(S_T + 3)), "TCH", dst=[VW], addr=[TQ + 4]))
        A(lambda: g.s("s_add_u32 %s, %s, 131072" % (sr(S_T + 3), sr(S_T + 3))))
    A(lambda: g.vload("buffer_load_dword %s, %s, %s, %s offen" % (vr(TQ + 4), vr(TQ + 4), sr(SRD_WO, 4), sr(S_T + 3)), "TCH", dst=[TQ + 4], addr=[TQ + 4]))
    return ops


def w1_loads(g):
    def f(s):
        ops = []
        if s > 0:
            if ROT:
                ops.append(lambda: vop(g, "v_add_u32 %s, %s, %s" % (vr(VW), sr(S_WI + (s & 1)), vr(VW)), VW, [VW]))
                ops.append(lambda: vop(g, "v_and_b32 %s, 0x3fffff, %s" % (vr(VW), vr(VW)), VW, [VW]))
            else:
                ops.append(lambda: vop(g, "v_add_u32 %s, 0x40000, %s" % (vr(VW), vr(VW)), VW, [VW]))
        for e in range(8):
            d = raw(s, e)
            so = "0" if e == 0 else sr(SE + e)
            ops.append(lambda d=d, so=so, s=s: g.vload("buffer_load_dwordx4 %s, %s, %s, %s offen" % (vr(d, 4), vr(VW), sr(SRD_W, 4), so),
                                                       "W%d" % s, dst=rng(d, 4), addr=[VW]))
        return mark(ops)
    return f


def b1_reads(g):
    def f(s):
        ops = []
        sp = s >> 1
        a = XB + (s & 1) + 2 * (sp >> 2)
        for u in range(6):
            d = bf(s, u)
            ops.append(lambda d=d, a=a, off=((sp & 3) * 12 + 2 * u) * 1024, s=s:
                       g.dsread("ds_read_b128 %s, %s offset:%d" % (vr(d, 4), vr(a), off), "B%d" % s, dst=rng(d, 4), addr=[a]))
        return ops
    return f


def w2_loads(g):
    def f(s):
        ops = []
        if E("NOW2", 0) and s >= 5:
            return ops
        h, i = s >> 2, s & 3
        base = h * 131072 + i * 16384
        for e in range(8):
            if e % 4 == 0:
                ops.append(lambda e=e: g.s("s_mov_b32 %s, %d" % (sr(S_T + 2), base + (e >> 2) * 8192)))
            d = raw2(s, e)
            if E("X2T", 0):
                for hf in range(2):
                    ops.append(lambda d=d + 2 * hf, e=e, s=s, hf=hf: g.vload("buffer_load_dwordx2 %s, %s, %s, %s offen offset:%d" % (vr(d, 2), vr(VWO), sr(SRD_WO, 4), sr(S_T + 2), (e & 3) * 1024 + hf * 128),
                                                                         "W%d" % s, dst=rng(d, 2), addr=[VWO]))
                continue
            ops.append(lambda d=d, e=e, s=s: g.vload("buffer_load_dwordx4 %s, %s, %s, %s offen offset:%d" % (vr(d, 4), vr(VWO), sr(SRD_WO, 4), sr(S_T + 2), (e & 3) * 1024),
                                                     "W%d" % s, dst=rng(d, 4), addr=[VWO]))
        return mark(ops)
    return f


def b2_reads(g):
    def f(s):
        ops = []
        h, i = s >> 2, s & 3
        for u in range(6):
            d = bf(s, u)
            n = i * 6 + u
            a, off = (L16H, h * 16384 + n * 1024) if n < 16 else (L16, h * 8192 + (n - 16) * 1024)
            ops.append(lambda d=d, a=a, off=off, s=s:
                       g.dsread("ds_read_b128 %s, %s offset:%d" % (vr(d, 4), vr(a), off), "B%d" % s, dst=rng(d, 4), addr=[a]))
        return ops
    return f


def b2_read1(g, s, u, d, tag):
    h, i = s >> 2, s & 3
    n = i * 6 + u
    a, off = (L16H, h * 16384 + n * 1024) if n < 16 else (L16, h * 8192 + (n - 16) * 1024)
    return lambda: g.dsread("ds_read_b128 %s, %s offset:%d" % (vr(d, 4), vr(a), off), tag, dst=rng(d, 4), addr=[a])


def gemm2(g, w_loads, b_reads, tail, extra):
    pend = []

    def add(tag, ops):
        pend.extend((tag, o) for o in ops)

    def take(n):
        out = []
        while pend and n > 0:
            t, o = pend.pop(0)
            out.append(o)
            if getattr(o, "is_load", False):
                n -= 1
        return out

    def upto(tag):
        out = []
        while any(t == tag for t, _ in pend):
            out.append(pend.pop(0)[1])
        return out
    TS = {13: KF + 64, 14: SL2[11 % 5], 15: SL2[12 % 5]}
    bq = lambda n, k: BF + (((n * 3 + 6) % 12) + k) * 4
    for t in (2, 3, 4):
        add("W%d" % t, w_loads(t))
    g.wait_vm("W0")
    for op in perm_ops(g, raw2(0, 0), 0, WT):
        op()
    xq = []
    for s in range(13):
        xq += extra(s)
        if s == 12:
            xq += upto("W13") + [lambda: g.wait_vm("W13")]
            for j in range(8):
                xq += perm_ops(g, raw2(13, 0), j, TS[13] + j * 4)
        for j in range(8):
            idx = 8 * s + j
            fill = []
            if j == 7:
                if s < 12:
                    fill += upto("W%d" % (s + 1))
                    fill.append(lambda s=s: g.wait_vm("W%d" % (s + 1)))
                    fill += perm_ops(g, raw2(s + 1, 0), 0, WT + ((idx + 1) % 4) * 4)
                if s + 5 < 16:
                    add("W%d" % (s + 5), w_loads(s + 5))
            else:
                fill += perm_ops(g, raw2(s, 0), j + 1, WT + ((idx + 1) % 4) * 4)
            fill += take(R2[j])
            if 3 <= j <= 5:
                if s < 12:
                    fill += b_reads(s + 1)[(j - 3) * 2:(j - 3) * 2 + 2]
                else:
                    fill += [b2_read1(g, 13 + (j - 3), n, bq(n, j - 3), "C%d" % n) for n in range(2)]
            k = (len(xq) + 7 - j) // (8 - j)
            k = min(k, 8) if s < 12 else k
            fill += xq[:k]
            xq = xq[k:]
            if j == 0:
                g.wait_lg("B%d" % s)
                if STAMP == 3 and s > 0:
                    stamp(g)
            a = WT + (idx % 4) * 4
            main = [(lambda u=u: g.mfma(acc2(j, u), a, bf(s, u), None if s == 0 else acc2(j, u))) for u in range(6)]
            merge(main, fill)
    assert not xq
    carry = []
    for n in range(6):
        u = n
        g.wait_lg("C%d" % n)
        if STAMP == 3:
            stamp(g)
        main = [(lambda j=j, k=k: g.mfma(acc2(j, u), TS[13 + k] + j * 4, bq(n, k), acc2(j, u))) for k in range(3) for j in range(8)]
        brd = [b2_read1(g, 13 + k, n + 2, bq(n + 2, k), "C%d" % (n + 2)) for k in range(3)] if n + 2 < 6 else []
        if n == 0:
            for k in (1, 2):
                fill = upto("W%d" % (13 + k)) + [lambda k=k: g.wait_vm("W%d" % (13 + k))]
                for j in range(8):
                    fill += perm_ops(g, raw2(13 + k, 0), j, TS[13 + k] + j * 4)
                merge(main[(k - 1) * 8:k * 8 - 1], fill)
                main[k * 8 - 1]()
            merge(main[16:], brd)
        else:
            merge(main, brd + carry)
        carry = tail(n)
    assert not pend
    run(carry)


def gemm2u(g, w_loads, b_reads, tail, extra):
    pend = []

    def add(tag, ops):
        pend.extend((tag, o) for o in ops)

    def take(n):
        out = []
        while pend and n > 0:
            t, o = pend.pop(0)
            out.append(o)
            if getattr(o, "is_load", False):
                n -= 1
        return out

    def upto(tag):
        out = []
        while any(t == tag for t, _ in pend):
            out.append(pend.pop(0)[1])
        return out

    def conv(s, dst):
        ops = upto("W%d" % s) + [lambda: g.wait_vm("W%d" % s)]
        for j in range(8):
            ops += perm_ops(g, raw2(s, 0), j, dst + j * 4)
        return ops
    TS = {9: KF + 64, 10: 96, 11: KF + 64, 12: raw2(11, 0), 13: raw2(12, 0), 14: raw2(13, 0), 15: raw2(14, 0)}
    seq = [(u, k) for k in range(6) for u in range(2)] + [(u, k) for u in range(2, 6) for k in range(6)]
    bq = lambda i: BF + (i % 12) * 4
    brd = lambda i: [b2_read1(g, 10 + seq[i][1], seq[i][0], bq(i), "C%d" % i)] if i < len(seq) else []
    for t in (2, 3, 4):
        add("W%d" % t, w_loads(t))
    g.wait_vm("W0")
    for op in perm_ops(g, raw2(0, 0), 0, WT):
        op()
    xq = []
    for s in range(10):
        xq += extra(s)
        cv = conv(s + 1, TS[s + 1]) if s >= 8 else []
        ncv = (len(cv) + 3) // 4
        for j in range(8):
            idx = 8 * s + j
            fill = []
            if j == 7:
                if s < 8:
                    fill += upto("W%d" % (s + 1))
                    fill.append(lambda s=s: g.wait_vm("W%d" % (s + 1)))
                    fill += perm_ops(g, raw2(s + 1, 0), 0, WT + ((idx + 1) % 4) * 4)
                    add("W%d" % (s + 5), w_loads(s + 5))
                if s == 8:
                    add("W14", w_loads(14))
            elif s < 9:
                fill += perm_ops(g, raw2(s, 0), j + 1, WT + ((idx + 1) % 4) * 4)
            if j < 4:
                fill += cv[j * ncv:(j + 1) * ncv]
            if j == 4 and s >= 8:
                add("W%d" % (13 if s == 8 else 15), w_loads(13 if s == 8 else 15))
            fill += take(R2[j] if s < 8 else 2)
            if 3 <= j <= 5:
                if s < 9:
                    fill += b_reads(s + 1)[(j - 3) * 2:(j - 3) * 2 + 2]
                else:
                    fill += brd((j - 3) * 2) + brd((j - 3) * 2 + 1)
            k = (len(xq) + 7 - j) // (8 - j)
            k = min(k, 8) if s < 9 else k
            fill += xq[:k]
            xq = xq[k:]
            if j == 0:
                g.wait_lg("B%d" % s)
                if STAMP == 3 and s > 0:
                    stamp(g)
            a = WT + (idx % 4) * 4 if s < 9 else TS[9] + j * 4
            main = [(lambda u=u: g.mfma(acc2(j, u), a, bf(s, u), None if s == 0 else acc2(j, u))) for u in range(6)]
            merge(main, fill)
    assert not xq

    def block(i):
        u, k = seq[i]
        m = [(lambda j=j: g.mfma(acc2(j, u), TS[10 + k] + j * 4, bq(i), acc2(j, u))) for j in range(8)]
        f = m[0]
        m[0] = lambda: (g.wait_lg("C%d" % i), f(), run(brd(i + 6)))
        return m
    for k in range(6):
        if STAMP == 3:
            stamp(g)
        main = block(2 * k) + block(2 * k + 1)
        if k < 5:
            fill = take(8) + conv(11 + k, TS[11 + k])
            merge(main[:15], fill)
            main[15]()
        else:
            run(main[:8])
            merge(main[8:], tail(0)[:20])
    carry = TL0[20:] + tail(1)
    for n in range(2, 6):
        if STAMP == 3:
            stamp(g)
        main = []
        for k in range(6):
            main += block(12 + (n - 2) * 6 + k)
        merge(main, carry)
        carry = tail(n)
    assert not pend
    run(carry)


TL0 = []


def run(ops):
    for o in ops:
        o()


def prologue():
    g = Gen()
    g.s("s_cmp_ge_u32 s2, 256")
    g.s("s_cbranch_scc1 k_end")
    if STAMP:
        g.s("%s %s" % (os.environ.get("CLK", "s_memrealtime"), sr(S_ST, 2)))
    if E("CPF", 2):
        g.s("s_getpc_b64 %s" % sr(SRD_OUT, 2))
        g.label("pc_here")
        if E("CPF", 2) == 1:
            g.s("s_bfe_u32 %s, s2, 0x30003" % sr(S_T))
            g.s("s_lshl_b32 %s, %s, 15" % (sr(S_T), sr(S_T)))
        else:
            g.s("s_lshr_b32 %s, s2, 3" % sr(S_T))
            g.s("s_lshl_b32 %s, %s, 12" % (sr(S_T), sr(S_T)))
            g.valu("v_cmp_gt_u32 vcc, 32, v0", src=[0])
        g.s("s_and_b32 %s, %s, 0xffff" % (sr(SRD_OUT + 1), sr(SRD_OUT + 1)))
        g.s("s_mov_b32 %s, code_end-pc_here" % sr(SRD_OUT + 2))
        g.s("s_mov_b32 %s, 0x00020000" % sr(SRD_OUT + 3))
        vop(g, "v_lshlrev_b32 %s, 7, v0" % vr(TQ + 4), TQ + 4, [0])
        if E("CPF", 2) != 1:
            vop(g, "v_cndmask_b32 %s, -1, %s, vcc" % (vr(TQ + 4), vr(TQ + 4)), TQ + 4, [TQ + 4])
        g.vload("buffer_load_dword %s, %s, %s, %s offen" % (vr(TQ + 4), vr(TQ + 4), sr(SRD_OUT, 4), sr(S_T)), "CPF", dst=[TQ + 4], addr=[TQ + 4])
    g.s("s_bfe_u32 %s, s2, 0x10002" % sr(S_BLK))
    g.s("s_mul_i32 s16, %s, 40" % sr(S_BLK))
    g.s("s_add_u32 s18, s0, s16")
    g.s("s_addc_u32 s19, s1, 0")
    g.s("s_load_dwordx8 s[8:15], s[18:19], 0")
    g.s("s_load_dwordx2 s[16:17], s[18:19], 32")
    g.s("s_load_dwordx4 s[4:7], s[0:1], 80")
    g.s("s_load_dwordx2 s[18:19], s[0:1], 96")
    LN, Q, G, R8, C8, T1, T2 = 130, 131, 132, 133, 134, 135, 136
    vop(g, "v_lshrrev_b32 %s, 6, v0" % vr(T1), T1, [0])
    vop(g, "v_and_b32 %s, 63, v0" % vr(LN), LN, [0])
    g.valu("v_readfirstlane_b32 s3, %s" % vr(T1), src=[T1], readlane=True, sdst=[3])
    g.s("s_and_b32 %s, s2, 3" % sr(S_HG))
    g.s("s_lshl_b32 %s, %s, 1" % (sr(S_HG), sr(S_HG)))
    g.s("s_bfe_u32 %s, s2, 0x10003" % sr(S_T))
    g.s("s_add_u32 %s, %s, %s" % (sr(S_HG), sr(S_HG), sr(S_T)))
    g.s("s_lshr_b32 %s, s2, 4" % sr(S_B))
    if MAP:
        g.s("s_bfe_u32 %s, s2, 0x30003" % sr(S_HG))
        g.s("s_and_b32 %s, s2, 3" % sr(S_B))
        g.s("s_lshl_b32 %s, %s, 2" % (sr(S_B), sr(S_B)))
        g.s("s_lshr_b32 %s, s2, 6" % sr(S_T))
        g.s("s_add_u32 %s, %s, %s" % (sr(S_B), sr(S_B), sr(S_T)))
    g.s("s_lshl_b32 %s, %s, 4" % (sr(S_GRP), sr(S_BLK)))
    g.s("s_add_u32 %s, %s, %s" % (sr(S_GRP), sr(S_GRP), sr(S_B)))
    vop(g, "v_and_b32 %s, 15, %s" % (vr(Q), vr(LN)), Q, [LN])
    vop(g, "v_lshrrev_b32 %s, 4, %s" % (vr(G), vr(LN)), G, [LN])
    vop(g, "v_lshrrev_b32 %s, 3, %s" % (vr(R8), vr(LN)), R8, [LN])
    vop(g, "v_and_b32 %s, 7, %s" % (vr(C8), vr(LN)), C8, [LN])
    vop(g, "v_lshlrev_b32 %s, 4, %s" % (vr(L16), vr(LN)), L16, [LN])
    vop(g, "v_add_u32 %s, %d, %s" % (vr(L16H), L_V, vr(L16)), L16H, [L16])
    for e in range(1, 8):
        g.s("s_mov_b32 %s, %d" % (sr(SE + e), e * 8192))
    g.s("s_mov_b32 %s, 0x05040100" % sr(S_PLO))
    g.s("s_mov_b32 %s, 0x07060302" % sr(S_PHI))
    g.s("s_mov_b32 %s, 0x3e0293ee" % sr(S_C))
    g.s("s_cmp_eq_u32 s3, 0")
    g.s("s_cselect_b32 %s, 1, 0" % sr(S_W0))
    g.s("s_mov_b32 %s, 0" % sr(S_W0 + 1))
    g.s("s_lshl_b32 %s, %s, 5" % (sr(S_T), sr(S_B)))
    g.s("s_lshl_b32 %s, %s, 2" % (sr(S_T + 1), sr(S_HG)))
    g.s("s_add_u32 %s, %s, %s" % (sr(S_T), sr(S_T), sr(S_T + 1)))
    g.s("s_add_u32 %s, %s, s3" % (sr(S_T), sr(S_T)))
    g.s("s_mul_i32 %s, %s, 24576" % (sr(S_BH), sr(S_T)))
    g.s("s_lshl_b32 %s, s3, 14" % sr(S_T))
    g.s("s_add_u32 %s, %s, %d" % (sr(S_VL), sr(S_T), L_V))

    vop(g, "v_lshrrev_b32 %s, 1, %s" % (vr(T1), vr(R8)), T1, [R8])
    vop(g, "v_xor_b32 %s, %s, %s" % (vr(T1), vr(T1), vr(C8)), T1, [T1, C8])
    g.s("s_mul_i32 %s, %s, 98304" % (sr(S_T + 2), sr(S_B)))
    for t in range(3):
        g.s("s_mul_i32 %s, s3, 3" % sr(S_T))
        g.s("s_add_u32 %s, %s, %d" % (sr(S_T), sr(S_T), t))
        g.s("s_lshl_b32 %s, %s, 10" % (sr(S_XM + t), sr(S_T)))
        g.s("s_lshl_b32 %s, %s, 13" % (sr(S_T + 1), sr(S_T)))
        g.s("s_add_u32 %s, %s, %s" % (sr(S_XS + t), sr(S_T + 1), sr(S_T + 2)))
        g.s("s_and_b32 %s, %s, 1" % (sr(S_T), sr(S_T)))
        g.s("s_lshl_b32 %s, %s, 2" % (sr(S_T), sr(S_T)))
        vop(g, "v_xor_b32 %s, %s, %s" % (vr(T2), sr(S_T), vr(T1)), T2, [T1])
        vop(g, "v_lshlrev_b32 %s, 4, %s" % (vr(T2), vr(T2)), T2, [T2])
        vop(g, "v_lshl_add_u32 %s, %s, 10, %s" % (vr(XA + t), vr(R8), vr(T2)), XA + t, [R8, T2])
    PI = 140
    PI = Q
    g.s("s_lshl_b32 %s, %s, 10" % (sr(S_T), sr(S_HG)))
    g.s("s_lshl_b32 %s, s3, 8" % sr(S_T + 1))
    g.s("s_add_u32 %s, %s, %s" % (sr(S_T), sr(S_T), sr(S_T + 1)))
    vop(g, "v_lshlrev_b32 %s, 4, %s" % (vr(T1), vr(PI)), T1, [PI])
    vop(g, "v_lshl_add_u32 %s, %s, 16, %s" % (vr(T2), vr(G), vr(T1)), T2, [G, T1])
    if ROT:
        if ROT == 1:
            g.s("s_mov_b32 %s, %s" % (sr(S_XR + 2), sr(S_B)))
        else:
            g.s("s_and_b32 %s, s2, 8" % sr(S_XR + 2))
        g.s("s_lshl_b32 %s, %s, 18" % (sr(S_WI), sr(S_XR + 2)))
        g.s("s_add_u32 %s, %s, %s" % (sr(S_T), sr(S_T), sr(S_WI)))
        g.s("s_and_b32 %s, %s, 14" % (sr(S_XR), sr(S_XR + 2)))
        g.s("s_lshl_b32 %s, %s, 6" % (sr(S_XR), sr(S_XR)))
        g.s("s_and_b32 %s, %s, 1" % (sr(S_XR + 1), sr(S_XR + 2)))
        g.s("s_lshl_b32 %s, %s, 6" % (sr(S_XR + 1), sr(S_XR + 1)))
        g.s("s_cmp_eq_u32 %s, 0" % sr(S_XR + 1))
        g.s("s_cselect_b32 %s, 0x40000, 0xc0000" % sr(S_WI) if False else "s_mov_b32 %s, 0xc0000" % sr(S_WI))
        g.s("s_cmov_b32 %s, 0x40000" % sr(S_WI))
        g.s("s_mov_b32 %s, 0xfffc0000" % sr(S_WI + 1))
        g.s("s_cmov_b32 %s, 0x40000" % sr(S_WI + 1))
    vop(g, "v_add_u32 %s, %s, %s" % (vr(VW), sr(S_T), vr(T2)), VW, [T2])
    g.s("s_lshl_b32 %s, %s, 19" % (sr(S_T), sr(S_HG)))
    g.s("s_add_u32 %s, %s, %s" % (sr(S_T), sr(S_T), sr(S_T + 1)))
    vop(g, "v_and_b32 %s, 1, %s" % (vr(T2), vr(G)), T2, [G])
    vop(g, "v_lshl_add_u32 %s, %s, 12, %s" % (vr(T1), vr(T2), vr(T1)), T1, [T2, T1])
    vop(g, "v_lshrrev_b32 %s, 1, %s" % (vr(T2), vr(G)), T2, [G])
    vop(g, "v_lshl_add_u32 %s, %s, 16, %s" % (vr(T2), vr(T2), vr(T1)), T2, [T2, T1])
    vop(g, "v_add_u32 %s, %s, %s" % (vr(VWO), sr(S_T), vr(T2)), VWO, [T2])
    vop(g, "v_xor_b32 %s, %s, %s" % (vr(T1), vr(Q), vr(G)), T1, [Q, G])
    vop(g, "v_lshlrev_b32 %s, 4, %s" % (vr(T1), vr(T1)), T1, [T1])
    vop(g, "v_lshl_add_u32 %s, %s, 8, %s" % (vr(VKD), vr(G), vr(T1)), VKD, [G, T1])
    vop(g, "v_lshlrev_b32 %s, 2, %s" % (vr(T1), vr(G)), T1, [G])
    vop(g, "v_xor_b32 %s, %s, %s" % (vr(T1), vr(T1), vr(Q)), T1, [T1, Q])
    vop(g, "v_lshlrev_b32 %s, 4, %s" % (vr(T1), vr(T1)), T1, [T1])
    vop(g, "v_lshl_add_u32 %s, %s, 8, %s" % (vr(VKR), vr(Q), vr(T1)), VKR, [Q, T1])
    vop(g, "v_add_u32 %s, %s, %s" % (vr(VKR), sr(S_VL), vr(VKR)), VKR, [VKR])
    for m in range(1, 4):
        vop(g, "v_xor_b32 %s, %d, %s" % (vr(VKD + m), m * 64, vr(VKD)), VKD + m, [VKD])
        vop(g, "v_xor_b32 %s, %d, %s" % (vr(VKR + m), m * 16, vr(VKR)), VKR + m, [VKR])
    vop(g, "v_mov_b32 %s, %s" % (vr(VV), vr(VKD)), VV, [VKD])
    vop(g, "v_mov_b32 %s, %s" % (vr(VK), vr(VKD + 1)), VK, [VKD + 1])
    vop(g, "v_lshrrev_b32 %s, 1, %s" % (vr(T1), vr(Q)), T1, [Q])
    vop(g, "v_xor_b32 %s, %s, %s" % (vr(T1), vr(T1), vr(G)), T1, [T1, G])
    vop(g, "v_lshlrev_b32 %s, 7, %s" % (vr(T2), vr(Q)), T2, [Q])
    vop(g, "v_lshl_add_u32 %s, %s, 4, %s" % (vr(XB), vr(T1), vr(T2)), XB, [T1, T2])
    if ROT:
        vop(g, "v_xor_b32 %s, %s, %s" % (vr(XB), sr(S_XR + 1), vr(XB)), XB, [XB])
    vop(g, "v_xor_b32 %s, 64, %s" % (vr(XB + 1), vr(XB)), XB + 1, [XB])
    vop(g, "v_add_u32 %s, 0xc000, %s" % (vr(XB + 2), vr(XB)), XB + 2, [XB])
    vop(g, "v_add_u32 %s, 0xc000, %s" % (vr(XB + 3), vr(XB + 1)), XB + 3, [XB + 1])
    vop(g, "v_add_u32 %s, %s, %s" % (vr(VOW), sr(S_VL), vr(L16)), VOW, [L16])
    if MAP:
        g.s("s_and_b32 %s, %s, 3" % (sr(S_T), sr(S_B)))
        g.s("s_lshl_b32 %s, %s, 2" % (sr(S_T), sr(S_T)))
    else:
        g.s("s_lshl_b32 %s, %s, 2" % (sr(S_T), sr(S_B)))
    g.s("s_add_u32 %s, %s, s3" % (sr(S_T), sr(S_T)))
    g.s("s_lshl_b32 %s, %s, 16" % (sr(S_T), sr(S_T)))
    g.s("s_lshl_b32 %s, %s, 10" % (sr(S_T + 1), sr(S_HG)))
    g.s("s_add_u32 %s, %s, %s" % (sr(S_T), sr(S_T), sr(S_T + 1)))
    vop(g, "v_lshlrev_b32 %s, 7, %s" % (vr(T1), vr(C8)), T1, [C8])
    vop(g, "v_lshl_add_u32 %s, %s, 13, %s" % (vr(T1), vr(R8), vr(T1)), T1, [R8, T1])
    vop(g, "v_add_u32 %s, %s, %s" % (vr(WTA), sr(S_T), vr(T1)), WTA, [T1])
    g.waitcnt(lg=0)
    make_srd(g, SRD_X, 8, 1572864)
    make_srd(g, SRD_K, 10, 12582912)
    make_srd(g, SRD_V, 12, 12582912)
    make_srd(g, SRD_W, 14, 4194304)
    make_srd(g, SRD_WO, 16, 4194304)
    make_srd(g, SRD_OUT, 4, 16 * 96 * 1024 * 2)
    make_srd(g, SRD_DBG, 6, 256)
    make_srd(g, SRD_WS, 18, WS_BYTES)
    g.s("s_lshl_b32 %s, s3, 13" % sr(S_K2))
    g.s("s_sub_u32 %s, %s, %s" % (sr(S_KD), sr(S_VL), sr(S_K2)))
    g.s("s_lshl_b32 %s, %s, 1" % (sr(S_T), sr(S_B)))
    g.s("s_lshr_b32 %s, s3, 1" % sr(S_T + 1))
    g.s("s_add_u32 %s, %s, %s" % (sr(S_T), sr(S_T), sr(S_T + 1)))
    g.s("s_lshl_b32 %s, %s, 13" % (sr(S_T), sr(S_T)))
    g.s("s_lshl_b32 %s, %s, 10" % (sr(S_T + 1), sr(S_HG)))
    g.s("s_add_u32 %s, %s, %s" % (sr(S_T), sr(S_T), sr(S_T + 1)))
    g.s("s_and_b32 %s, s3, 1" % sr(S_T + 1))
    g.s("s_lshl_b32 %s, %s, 9" % (sr(S_T + 1), sr(S_T + 1)))
    g.s("s_add_u32 %s, %s, %s" % (sr(S_T), sr(S_T), sr(S_T + 1)))
    g.s("s_add_u32 %s, s14, %s" % (sr(S_TB), sr(S_T)))
    g.s("s_addc_u32 %s, s15, 0" % sr(S_TB + 1))
    stamp(g, have=True)
    return g


def tok_ops(g, tok):
    ops = []
    if tok[0] == 'x':
        sp = int(tok[1:])
        for t in range(3):
            if ROT:
                ops.append(lambda t=t: g.s("s_add_u32 %s, %s, %d" % (sr(S_T), sr(S_XR), sp * 128)))
                ops.append(lambda t=t: g.s("s_and_b32 %s, %s, 0x3ff" % (sr(S_T), sr(S_T))))
                ops.append(lambda t=t: g.s("s_add_u32 %s, %s, %s" % (sr(S_T), sr(S_T), sr(S_XS + t))))
            else:
                ops.append(lambda t=t: g.s("s_add_u32 %s, %s, %d" % (sr(S_T), sr(S_XS + t), sp * 128)))
            ops.append(lambda t=t: g.s("s_add_u32 m0, %s, %d" % (sr(S_XM + t), sp * 12288), m0=True))
            ops.append(lambda t=t: g.vload("buffer_load_dwordx4 %s, %s, %s offen lds" % (vr(XA + t), sr(SRD_X, 4), sr(S_T)), "X%d" % sp, addr=[XA + t], lds=True))
    elif tok[0] == 'w':
        ops += w1_loads(g)(int(tok[1:]))
    elif tok == 't':
        ops.append(lambda: g.vload("buffer_load_dword %s, %s, %s, 0 offen" % (vr(TQ + 3), vr(WTA), sr(SRD_W, 4)), "TCH", dst=[TQ + 3], addr=[WTA]))
        for k in range(3 if MAP else 0):
            ops.append(lambda: vop(g, "v_add_u32 %s, 0x100000, %s" % (vr(WTA), vr(WTA)), WTA, [WTA]))
            ops.append(lambda: g.vload("buffer_load_dword %s, %s, %s, 0 offen" % (vr(TQ + 3), vr(WTA), sr(SRD_W, 4)), "TCH", dst=[TQ + 3], addr=[WTA]))
    elif tok[0] == 's':
        st = int(tok[1:])
        ops.append(lambda: g.s("s_mov_b32 %s, %d" % (sr(S_T + 2), st * 262144)))
        for l in range(8 if SM2 else 4):
            def sm(l=l):
                g.s("s_load_dword %s, %s, %s offset:%d" % (sr(S_JUNK), sr(S_TB, 2), sr(S_T + 2), l * (64 if SM2 else 128)))
                g.lgq.append("SM")
            ops.append(sm)
    elif tok == 'T':
        ops += wo_touch(g)
    elif tok == 'Y':
        for srd, so in ((SRD_WS, S_XS + 1), (SRD_WS, S_PB), (SRD_WS, S_PB + 1), (SRD_WS, S_XS + 2), (SRD_OUT, S_OB)):
            ops.append(lambda srd=srd, so=so: g.vload("buffer_load_dword %s, off, %s, %s" % (vr(VW), sr(srd, 4), sr(so)), "TCH", dst=[VW]))
    elif tok[0] == 'Z':
        t = int(tok[1])
        if t == 0:
            for k in range(4):
                ops.append(lambda k=k: vop(g, "v_mov_b32 %s, -1" % vr(ZQ + k), ZQ + k))
        for h in range(2):
            for i in range(4):
                ops.append(lambda h=h, i=i: g.s("s_add_u32 %s, %s, %d" % (sr(S_T + 6), sr(S_PB + h), (i * 3 + t) * 1024)))
                o = lambda: g.vstore("buffer_store_dwordx4 %s, %s, %s, %s offen sc1" % (vr(ZQ, 4), vr(L16), sr(SRD_WS, 4), sr(S_T + 6)),
                                     "POI", data=rng(ZQ, 4), addr=[L16])
                o.is_load = True
                ops.append(o)
    elif tok[0] == 'K':
        ops += k_dma(g, int(tok[1]), int(tok[3]))
    elif tok[0] == 'R':
        ops += k_read(g, int(tok[1]), int(tok[3]))
    elif tok[0] == 'V' and len(tok) == 4:
        assert VL[int(tok[1])] == int(tok[3])
        ops += v_dma(g, int(tok[1]), int(tok[3]))
    elif tok[0] == 'V':
        vl = v_loads(g, int(tok[1]))
        ops += vl if len(tok) == 2 else vl[:5] if tok[2] == 'a' else vl[5:]
    else:
        raise ValueError(tok)
    return mark(ops)


def part1(g, cl):
    for tok in cl["P"]:
        run(tok_ops(g, tok))
    g.wait_vm(["X%d" % k for k in range(XBAR[0] + 1)])
    g.barrier()
    stamp(g)
    run(b1_reads(g)(0))

    def tail(u):
        return q_conv(g, u) if u < 2 else []
    assert max(XBAR) >= 6
    pend, rest = gemm1(g, cl, b1_reads(g), tail)
    run(pend)
    stamp(g)
    g.s("s_lshl_b32 %s, s3, 13" % sr(S_T))
    vop(g, "v_add_u32 %s, %s, %s" % (vr(VOW2), sr(S_T), vr(L16)), VOW2, [L16])
    run(rest)
    stamp(g)
    g.nop(8)


S_FS, S_OB = 69, 93


def job_setup(g, A):
    A(lambda: g.s("s_lshl_b32 %s, %s, 2" % (sr(S_T), sr(S_GRP))))
    A(lambda: g.s("s_lshr_b32 %s, %s, 1" % (sr(S_T + 1), sr(S_RO))))
    A(lambda: g.s("s_add_u32 %s, %s, %s" % (sr(S_T + 1), sr(S_T + 1), sr(S_T))))
    A(lambda: g.s("s_lshl_b32 %s, %s, 7" % (sr(S_T + 1), sr(S_T + 1))))
    A(lambda: g.s("s_add_u32 %s, %s, %d" % (sr(S_XS + 1), sr(S_T + 1), FLG)))
    A(lambda: g.s("s_lshl_b32 %s, %s, 3" % (sr(S_T), sr(S_GRP))))
    A(lambda: g.s("s_add_u32 %s, %s, %s" % (sr(S_T), sr(S_T), sr(S_RO))))
    A(lambda: g.s("s_mul_i32 %s, %s, 96" % (sr(S_T), sr(S_T))))
    A(lambda: g.s("s_mul_i32 %s, %s, 3" % (sr(S_T + 1), sr(S_RR))))
    A(lambda: g.s("s_add_u32 %s, %s, %s" % (sr(S_T), sr(S_T), sr(S_T + 1))))
    A(lambda: g.s("s_lshl_b32 %s, %s, 10" % (sr(S_XS + 2), sr(S_T))))
    A(lambda: g.s("s_mul_i32 %s, %s, %d" % (sr(S_OB), sr(S_B), 96 * 2048)))
    A(lambda: g.s("s_lshl_b32 %s, %s, 10" % (sr(S_T), sr(S_BLK))))
    A(lambda: g.s("s_add_u32 %s, %s, %s" % (sr(S_OB), sr(S_OB), sr(S_T))))
    A(lambda: g.s("s_lshr_b32 %s, %s, 1" % (sr(S_T), sr(S_RO))))
    A(lambda: g.s("s_lshl_b32 %s, %s, 8" % (sr(S_T), sr(S_T))))
    A(lambda: g.s("s_add_u32 %s, %s, %s" % (sr(S_OB), sr(S_OB), sr(S_T))))
    A(lambda: g.s("s_lshl_b32 %s, %s, 4" % (sr(S_T), sr(S_RR))))
    A(lambda: g.s("s_add_u32 %s, %s, %s" % (sr(S_OB), sr(S_OB), sr(S_T))))
    A(lambda: g.s("s_and_b32 %s, %s, 1" % (sr(S_T), sr(S_RO))))
    A(lambda: g.s("s_lshl_b32 %s, %s, 15" % (sr(S_T), sr(S_T))))
    A(lambda: g.s("s_add_u32 %s, %s, %s" % (sr(S_OB), sr(S_OB), sr(S_T))))


def part2(g):
    g.s("s_memrealtime %s" % sr(S_T + 4, 2))
    NV = 238
    g.s("s_lshl_b32 %s, %s, 2" % (sr(S_T + 3), sr(S_GRP)))
    lq = list(g.lgq)
    g.waitcnt(lg=0)
    g.lgq = []
    g.s("s_or_b32 %s, %s, 1" % (sr(S_NONCE), sr(S_T + 4)))
    vop(g, "v_mov_b32 %s, %s" % (vr(NV), sr(S_NONCE)), NV)
    vop(g, "v_mov_b32 %s, 0" % vr(NV + 1), NV + 1)
    g.s("s_mov_b64 exec, %s" % sr(S_W0, 2))
    g.vload("buffer_atomic_cmpswap %s, off, %s, %s sc0 sc1" % (vr(NV, 2), sr(SRD_DBG, 4), sr(S_T + 3)), "NONCE", dst=[NV], addr=[NV, NV + 1])
    g.s("s_mov_b64 exec, -1")
    g.s("s_lshl_b32 %s, %s, 3" % (sr(S_PB), sr(S_GRP)))
    g.s("s_lshl_b32 %s, s3, 1" % sr(S_PB + 1))
    g.s("s_add_u32 %s, %s, %s" % (sr(S_PB), sr(S_PB), sr(S_PB + 1)))
    g.s("s_lshl_b32 %s, %s, 3" % (sr(S_PB), sr(S_PB)))
    g.s("s_add_u32 %s, %s, %s" % (sr(S_PB), sr(S_PB), sr(S_HG)))
    g.s("s_mul_i32 %s, %s, 12288" % (sr(S_PB), sr(S_PB)))
    g.s("s_add_u32 %s, %s, %d" % (sr(S_PB + 1), sr(S_PB), 8 * 12288))
    g.s("s_lshl_b32 %s, %s, 2" % (sr(S_XS), sr(S_GRP)))
    g.s("s_add_u32 %s, %s, s3" % (sr(S_XS), sr(S_XS)))
    g.s("s_lshl_b32 %s, %s, 7" % (sr(S_XS), sr(S_XS)))
    g.s("s_add_u32 %s, %s, %d" % (sr(S_XS), sr(S_XS), FLG))
    g.s("s_lshl_b32 %s, %s, 3" % (sr(S_FS), sr(S_HG)))
    g.s("s_add_u32 %s, %s, %s" % (sr(S_FS), sr(S_FS), sr(S_XS)))
    g.s("s_mov_b32 %s, %s" % (sr(S_RO), sr(S_HG)))
    g.s("s_mov_b32 %s, s3" % sr(S_RR))
    job_setup(g, lambda o: o())
    for k in range(4):
        vop(g, "v_mov_b32 %s, 0x3f803f80" % vr(ONES + k), ONES + k)

    def vt(pp, j):
        return KF + (pp * 8 + j) * 4
    VA = 0

    def tr_addr():
        ops = []
        V = lambda text, d, src=(): ops.append(lambda: vop(g, text, d, src))
        a, b = VA + 8, VA + 9
        V("v_lshrrev_b32 %s, 6, %s" % (vr(a), vr(L16)), a, [L16])
        V("v_and_b32 %s, 7, %s" % (vr(b), vr(a)), b, [a])
        V("v_lshlrev_b32 %s, 4, %s" % (vr(b), vr(b)), b, [b])
        V("v_lshl_add_u32 %s, %s, 8, %s" % (vr(VA), vr(a), vr(b)), VA, [a, b])
        V("v_and_b32 %s, 32, %s" % (vr(a), vr(L16)), a, [L16])
        V("v_lshl_add_u32 %s, %s, 2, %s" % (vr(VA), vr(a), vr(VA)), VA, [a, VA])
        V("v_and_b32 %s, 16, %s" % (vr(a), vr(L16)), a, [L16])
        V("v_lshrrev_b32 %s, 1, %s" % (vr(a), vr(a)), a, [a])
        V("v_add_u32 %s, %s, %s" % (vr(VA), vr(a), vr(VA)), VA, [a, VA])
        V("v_add_u32 %s, %s, %s" % (vr(VA + 8), sr(S_K2), vr(VA)), VA + 8, [VA])
        V("v_add_u32 %s, %s, %s" % (vr(VA), sr(S_VL), vr(VA)), VA, [VA])
        for j in range(1, 8):
            V("v_xor_b32 %s, %d, %s" % (vr(VA + j), j * 16, vr(VA)), VA + j, [VA])
            V("v_xor_b32 %s, %d, %s" % (vr(VA + 8 + j), j * 16, vr(VA + 8)), VA + 8 + j, [VA + 8])
        return ops

    def tr_reads(pp, js):
        ops = []
        for j in js:
            for h in range(2):
                d = vt(pp, j) + 2 * h
                a, off = (VA + j, VL[pp] * 8192 + h * 4096) if VL[pp] < 2 else (VA + 8 + j, L_V2 + h * 4096)
                ops.append(lambda d=d, a=a, off=off: g.dsread("ds_read_b64_tr_b16 %s, %s offset:%d" % (vr(d, 2), vr(a), off), "V%d" % pp, dst=rng(d, 2), addr=[a]))
        return ops
    OAC = [16 + 0, 96, 64, 96, 64, 96]

    def oacc(u, j):
        return OAC[u] + j * 4

    def pv_main(u, pmajor=False):
        ix = [(pp, j) for pp in range(3) for j in range(8)] if pmajor else [(pp, j) for j in range(8) for pp in range(3)]
        return [(lambda pp=pp, j=j: g.mfma(oacc(u, j), vt(pp, j), pfrag(u, pp), None if pp == 0 else oacc(u, j))) for pp, j in ix]

    def o_conv(u):
        ops = []
        r = TQ + 2
        ops.append(lambda: g.valu("v_accvgpr_read_b32 %s, %s" % (vr(r), vr(psum(u))), dst=[r], src=[psum(u)]))
        ops.append(lambda: g.valu("v_rcp_f32 %s, %s" % (vr(r), vr(r)), dst=[r], src=[r], trans=True))
        for i in range(4):
            d = PT_O + (i % 2) * 4
            for k in range(8):
                a = oacc(u, 2 * i) + k
                ops.append(lambda a=a: g.valu("v_mul_f32 %s, %s, %s" % (vr(a), vr(a), vr(r)), dst=[a], src=[a, r]))
            for m in range(4):
                a = oacc(u, 2 * i) + 2 * m
                ops.append(lambda d=d + m, a=a: g.valu("v_cvt_pk_bf16_f32 %s, %s, %s" % (vr(d), vr(a), vr(a + 1)), dst=[d], src=[a, a + 1]))
            n = i * 6 + u
            a, off = (VOW, n * 1024) if n < 16 else (VOW2, (n - 16) * 1024)
            ops.append(lambda d=d, a=a, off=off: g.dswrite("ds_write_b128 %s, %s offset:%d" % (vr(a), vr(d, 4), off), "OW", data=rng(d, 4), addr=[a]))
            if E("EXP3", 0):
                fl = ["", "", " sc1", " nt", " sc0"][E("EXP3", 0)]
                ops.append(lambda n=n: g.s("s_add_u32 %s, s7, %d" % (sr(S_T + 6), n * 1024)))
                ops.append(lambda d=d, fl=fl: g.vstore("buffer_store_dwordx4 %s, %s, %s, %s offen%s" % (vr(d, 4), vr(L16), sr(SRD_WS, 4), sr(S_T + 6), fl), "OS", data=rng(d, 4), addr=[L16]))
        return ops
    if E("EXP3", 0):
        g.s("s_lshl_b32 s7, s2, 2")
        g.s("s_add_u32 s7, s7, s3")
        g.s("s_mul_i32 s7, s7, 24576")
        g.s("s_add_u32 s7, s7, %d" % (32 * 1024 * 1024))
    PT_O = 228
    wl2 = w2_loads(g)

    def spread(fill, pre):
        if not pre:
            return fill
        k = max(1, len(fill) // len(pre))
        nf = []
        for i, f in enumerate(fill):
            if i % k == 0 and pre:
                nf.append(pre.pop(0))
            nf.append(f)
        return nf + pre
    for u in range(6):
        main = [(lambda kt=kt, i=i, u=u: g.mfma(sacc(u, kt), KF + (kt * 4 + i) * 4, QF + (u % 2) * 16 + i * 4, None if i == 0 else sacc(u, kt)))
                for kt in range(6) for i in range(4)]
        fill = []
        if u >= 1:
            fill += softmax_ops(g, u - 1)
        if 2 <= u + 1 <= 5:
            fill += q_conv(g, u + 1)
        if u == 4:
            fill += tr_addr()
        pre = []
        for tok in POST.get(u, []):
            pre += tok_ops(g, tok)
        fill = spread(fill, pre)
        if STAMP == 4 and u > 0:
            stamp(g)
        if u < 5:
            merge(main, fill)
        else:
            n3 = (len(fill) + 2) // 3
            merge(main[:8], fill[:n3])
            if STAMP == 4:
                stamp(g)
            g.wait_vm(["VD"])
            if STAMP == 4:
                stamp(g)
            merge(main[8:16], spread(fill[n3:2 * n3], tr_reads(0, range(8))))
            merge(main[16:], spread(fill[2 * n3:], tr_reads(1, range(8))))
    stamp(g)
    sm5 = softmax_ops(g, 5)
    pv0 = pv_main(0, True)
    n3 = (len(sm5) + 2) // 3
    run(tr_reads(2, range(4)))
    g.wait_lg("V0")
    merge(pv0[:8], spread(sm5[:n3], tr_reads(2, range(4, 8))))
    g.wait_lg("V1")
    merge(pv0[8:16], sm5[n3:2 * n3])
    g.wait_lg("V2")
    merge(pv0[16:], sm5[2 * n3:])
    stamp(g)
    vop(g, "v_mov_b32 %s, %d" % (vr(TQ + 1), L_MISC), TQ + 1)
    for u in range(1, 6):
        fill = o_conv(u - 1)
        if u == 2:
            fill = spread(fill, wl2(0))
        if u == 3:
            fill = spread(fill, wl2(1))
        merge(pv_main(u), fill)
        if STAMP == 4:
            stamp(g)
    g.wait_vm("NONCE")
    g.valu("v_readfirstlane_b32 %s, %s" % (sr(S_T), vr(NV)), src=[NV], readlane=True, sdst=[S_T])
    g.s("s_cmp_eq_u32 %s, 0" % sr(S_T))
    g.s("s_cselect_b32 %s, %s, %s" % (sr(S_T), sr(S_NONCE), sr(S_T)))
    vop(g, "v_mov_b32 %s, %s" % (vr(TQ), sr(S_T)), TQ)
    g.s("s_mov_b64 exec, %s" % sr(S_W0, 2))
    g.dswrite("ds_write_b32 %s, %s offset:4" % (vr(TQ + 1), vr(TQ)), "OW", data=[TQ], addr=[TQ + 1])
    g.s("s_mov_b64 exec, -1")
    run(o_conv(5))
    g.waitcnt(lg=0)
    g.lgq = []
    stamp(g)
    g.barrier()
    stamp(g)
    g.dsread("ds_read_b32 %s, %s offset:4" % (vr(NV), vr(TQ + 1)), "NN", dst=[NV], addr=[TQ + 1])
    run(b2_reads(g)(0))
    g.wait_lg("NN")
    g.valu("v_readfirstlane_b32 %s, %s" % (sr(S_NONCE), vr(NV)), src=[NV], readlane=True, sdst=[S_NONCE])
    cnt = [0]
    AC, VO, VF, F0, PL, PP = 224, 230, 231, 232, 234, 242
    S_CL = S_TYPE

    def tail(n):
        u = n
        ops = []
        for i in range(4):
            d = (raw2(15, 0) if UM == 6 else 96) + (cnt[0] % 8) * 4
            cnt[0] += 1
            for m in range(4):
                a, b = acc2(2 * m, u) + i, acc2(2 * m + 1, u) + i
                t0, t1 = TQ + (m % 2) * 2, TQ + (m % 2) * 2 + 1
                ops.append(lambda t=t0, s=a: g.valu("v_accvgpr_read_b32 %s, %s" % (vr(t), vr(s)), dst=[t], src=[s]))
                ops.append(lambda t=t1, s=b: g.valu("v_accvgpr_read_b32 %s, %s" % (vr(t), vr(s)), dst=[t], src=[s]))
                ops.append(lambda d=d + m, a=t0, b=t1: g.valu("v_cvt_pk_bf16_f32 %s, %s, %s" % (vr(d), vr(a), vr(b)), dst=[d], src=[a, b]))
                if not E("NOFAST", 1):
                    ops.append(lambda d=d + m: g.valu("v_min_u32 %s, -2, %s" % (vr(d), vr(d)), dst=[d], src=[d]))
            p = i * 3 + (n >> 1)
            if (EXP or E("EXP2", 0)) and i >= 2:
                continue
            ops.append(lambda p=p: g.s("s_add_u32 %s, %s, %d" % (sr(S_T + 6), sr(S_PB + (n & 1)), p * 1024)))
            ops.append(lambda d=d: g.vstore("buffer_store_dwordx4 %s, %s, %s, %s offen%s" % (vr(d, 4), vr(L16), sr(SRD_WS, 4), sr(S_T + 6), DF),
                                            "PS", data=rng(d, 4), addr=[L16]))
        if n == 0:
            TL0[:] = ops
        return ops

    def flag_store(soff, tag):
        g.s("s_mov_b64 exec, 1")
        g.vstore("buffer_store_dwordx2 %s, off, %s, %s sc1" % (vr(F0, 2), sr(SRD_WS, 4), sr(soff)), tag, data=[F0, F0 + 1])
        g.s("s_mov_b64 exec, -1")

    def setup_ops():
        ops = []
        A = ops.append
        A(lambda: g.s("s_xor_b32 %s, %s, 0x%x" % (sr(S_T), sr(S_NONCE), FC)))
        A(lambda: vop(g, "v_mov_b32 %s, %s" % (vr(F0), sr(S_NONCE)), F0))
        A(lambda: vop(g, "v_mov_b32 %s, %s" % (vr(F0 + 1), sr(S_T)), F0 + 1))
        LN, Q, G_, X1, X2, X3 = 112, 113, 114, 115, 116, 117
        V = lambda text, d, src=(): A(lambda: vop(g, text, d, src))
        V("v_lshrrev_b32 %s, 4, %s" % (vr(LN), vr(L16)), LN, [L16])
        V("v_and_b32 %s, 15, %s" % (vr(Q), vr(LN)), Q, [LN])
        V("v_lshrrev_b32 %s, 4, %s" % (vr(G_), vr(LN)), G_, [LN])
        V("v_lshrrev_b32 %s, 2, %s" % (vr(X1), vr(Q)), X1, [Q])
        V("v_and_b32 %s, 1, %s" % (vr(X2), vr(Q)), X2, [Q])
        V("v_lshlrev_b32 %s, 4, %s" % (vr(X2), vr(X2)), X2, [X2])
        V("v_mov_b32 %s, 0x3f80" % vr(X3), X3)
        V("v_lshlrev_b32 %s, %s, %s" % (vr(X3), vr(X2), vr(X3)), X3, [X2, X3])
        A(lambda: g.valu("v_cmp_eq_u32 vcc, %s, %s" % (vr(X1), vr(G_)), src=[X1, G_]))
        A(lambda: g.nop(2))
        V("v_cndmask_b32 %s, 0, %s, vcc" % (vr(X3), vr(X3)), X3, [X3])
        V("v_and_b32 %s, 2, %s" % (vr(X2), vr(Q)), X2, [Q])
        A(lambda: g.valu("v_cmp_eq_u32 vcc, 0, %s" % vr(X2), src=[X2]))
        for k in (0, 1, 4, 5):
            V("v_mov_b32 %s, 0" % vr(AC + k), AC + k)
        V("v_cndmask_b32 %s, 0, %s, vcc" % (vr(AC + 2), vr(X3)), AC + 2, [X3])
        V("v_cndmask_b32 %s, %s, 0, vcc" % (vr(AC + 3), vr(X3)), AC + 3, [X3])
        V("v_lshlrev_b32 %s, 6, %s" % (vr(VO), vr(G_)), VO, [G_])
        V("v_lshl_add_u32 %s, %s, 11, %s" % (vr(VO), vr(Q), vr(VO)), VO, [Q, VO])
        V("v_lshrrev_b32 %s, 1, %s" % (vr(VF), vr(L16)), VF, [L16])
        A(lambda: g.s("s_mov_b32 %s, 0" % sr(S_PHASE)))
        A(lambda: g.s("s_mov_b32 %s, 0" % sr(S_PEND)))
        A(lambda: g.s("s_mov_b32 %s, 0" % sr(S_CNT)))
        return ops

    def extra(s):
        ops = []
        if EXP and EXS <= s < EXS + 6:
            n = s - EXS
            for i in (2, 3):
                p = i * 3 + (n >> 1)
                def st(p=p, n=n):
                    g.s("s_add_u32 %s, %s, %d" % (sr(S_T + 6), sr(S_PB + (n & 1)), p * 1024))
                    g.vstore("buffer_store_dwordx4 %s, %s, %s, %s offen sc1" % (vr(A0 + 240, 4), vr(L16), sr(SRD_WS, 4), sr(S_T + 6)), "PS", data=rng(A0 + 240, 4), addr=[L16])
                ops.append(st)
        if EXP and s == EXL:
            for k in range(12):
                def ld(k=k):
                    d = A0 + 244 + (k % 3) * 4
                    g.s("s_add_u32 %s, %s, %d" % (sr(S_T), sr(S_XS + 2), (k & 7) * 12288 + (k >> 3) * 1024))
                    g.vload("buffer_load_dwordx4 %s, %s, %s, %s offen sc1" % (vr(d, 4), vr(L16), sr(SRD_WS, 4), sr(S_T)), "RX", dst=rng(d, 4), addr=[L16])
                ops.append(ld)
        if s == 0:
            ops.append(lambda: g.wait_vm("POI"))
            ops += setup_ops()
        if s == PFS and not E("NOFAST", 1):
            def pf():
                g.wait_vm("POI")
                g.s("s_add_u32 %s, %s, %d" % (sr(S_T), sr(S_FS), FLGP - FLG))
                flag_store(S_T, "PF")
            ops.append(pf)
        if s == PPS and not E("NOFAST", 1):
            def pp():
                g.s("s_add_u32 %s, %s, %d" % (sr(S_T), sr(S_XS + 1), FLGP - FLG))
                g.vload("buffer_load_dwordx2 %s, %s, %s, %s offen sc1" % (vr(PP, 2), vr(VF), sr(SRD_WS, 4), sr(S_T)), "PP", dst=[PP, PP + 1], addr=[VF])
            ops.append(pp)
        return ops
    (gemm2u if UM == 6 else gemm2)(g, wl2, b2_reads(g), tail, extra)
    stamp(g)
    LDT = [KF, KF + 32, 0]
    RD = 32
    OQ = 64

    def r_loads(t):
        for src in range(8):
            if EXP and (t == 0 or (t == 1 and src < 4)):
                continue
            d = LDT[t] + src * 4
            g.s("s_add_u32 %s, %s, %d" % (sr(S_T), sr(S_XS + 2), src * 12288 + t * 1024))
            g.vload("buffer_load_dwordx4 %s, %s, %s, %s offen sc1" % (vr(d, 4), vr(L16), sr(SRD_WS, 4), sr(S_T)), "R%d" % t, dst=rng(d, 4), addr=[L16])

    def r_sum(t):
        for src in range(8):
            d = LDT[t] + src * 4
            for h in range(2):
                r = RD + (t * 2 + h) * 4
                g.mfma(r, AC + 2 - 2 * h, d, None if src == 0 else r)

    def r_out(t):
        o = OQ + t * 4
        for h in range(2):
            r = RD + (t * 2 + h) * 4
            for k in range(2):
                g.valu("v_cvt_pk_bf16_f32 %s, %s, %s" % (vr(o + h * 2 + k), vr(r + 2 * k), vr(r + 2 * k + 1)), dst=[o + h * 2 + k], src=[r + 2 * k, r + 2 * k + 1])
        g.s("s_add_u32 %s, %s, %d" % (sr(S_T + 3), sr(S_OB), t * 65536))
        g.vstore("buffer_store_dwordx4 %s, %s, %s, %s offen%s" % (vr(o, 4), vr(VO), sr(SRD_OUT, 4), sr(S_T + 3), os.environ.get("OUTF", "")), "OUT", data=rng(o, 4), addr=[VO])

    def r_check(t):
        m = [TQ, TQ + 1]
        b = LDT[t]
        for c in range(2):
            g.valu("v_max3_u32 %s, %s, %s, %s" % (vr(m[c]), vr(b + 16 * c), vr(b + 16 * c + 1), vr(b + 16 * c + 2)), dst=[m[c]], src=rng(b + 16 * c, 3))
        for k in range(3, 15, 2):
            for c in range(2):
                x = b + 16 * c + k
                g.valu("v_max3_u32 %s, %s, %s, %s" % (vr(m[c]), vr(m[c]), vr(x), vr(x + 1)), dst=[m[c]], src=[m[c], x, x + 1])
        g.valu("v_max3_u32 %s, %s, %s, %s" % (vr(m[0]), vr(m[0]), vr(b + 15), vr(b + 31)), dst=[m[0]], src=[m[0], b + 15, b + 31])
        g.valu("v_max_u32 %s, %s, %s" % (vr(m[0]), vr(m[0]), vr(m[1])), dst=[m[0]], src=m)
        g.valu("v_cmp_eq_u32 vcc, -1, %s" % vr(m[0]), src=[m[0]])
        g.nop(1)
        g.s("s_cbranch_vccnz retry%d" % t)

    def flags_ok(pl):
        g.valu("v_cmp_eq_u32 vcc, %s, %s" % (vr(pl), vr(F0)), src=[pl, F0])
        g.valu("v_cmp_eq_u32 %s, %s, %s" % (sr(S_M, 2), vr(pl + 1), vr(F0 + 1)), src=[pl + 1, F0 + 1])
        g.s("s_mov_b64 exec, -1")
        g.s("s_and_b32 %s, %s, vcc_lo" % (sr(S_M), sr(S_M)))
        g.s("s_and_b32 %s, %s, 0xff" % (sr(S_M + 1), sr(S_M)))
        g.s("s_cmp_eq_u32 %s, 0xff" % sr(S_M + 1))

    NOFAST = E("NOFAST", 1)
    if not NOFAST:
        r_loads(0)
        r_loads(1)
        if T2POS == 0:
            r_loads(2)
        g.wait_vm("PP")
        flags_ok(PP)
        if FORCE_AB & 512:
            g.s("s_bitcmp1_b32 s2, 4")
        g.s("s_cbranch_scc0 slow")
        if FORCE_AB & 255:
            g.s("s_and_b32 %s, s2, %d" % (sr(S_T), FORCE_AB & 255))
            g.s("s_cmp_eq_u32 %s, 0" % sr(S_T))
            g.s("s_cbranch_scc1 slow")
        if FORCE_AB & 256:
            g.s("s_branch slow")
        g.wait_vm("R0")
        flag_store(S_FS, "FS")
        stamp(g)
        for t in range(3):
            g.wait_vm("R%d" % t)
            g.label("chk%d" % t)
            g.nop(1)
            r_check(t)
            if t == 0 and T2POS == 1:
                r_loads(2)
            r_sum(t)
            if t == 0 and T2POS == 2:
                r_loads(2)
            if t == 2:
                stamp(g)
            r_out(t)
        stamp(g)
        stamp_flush(g)
        g.s("s_branch after")
        for t in range(3):
            g.label("retry%d" % t)
            g.vmq = []
            r_loads(t)
            g.s("s_add_u32 %s, %s, 1" % (sr(S_CNT), sr(S_CNT)))
            g.s("s_cmp_lt_u32 %s, %d" % (sr(S_CNT), RETRY))
            g.waitcnt(vm=0)
            g.vmq = []
            g.s("s_cbranch_scc1 chk%d" % t)
            if t < 2:
                g.s("s_branch slow")
    S_DONE, S_ACC, S_NEW = S_CNT, S_T + 6, S_T + 7

    def poll_load(soff):
        if E("PX", 1):
            g.s("s_mov_b64 exec, 0xffff")
        g.vload("buffer_load_dwordx2 %s, %s, %s, %s offen sc1" % (vr(PL, 2), vr(VF), sr(SRD_WS, 4), sr(soff)), "PL", dst=[PL, PL + 1], addr=[VF])

    def poll(soff):
        poll_load(soff)
        g.waitcnt(vm=0)
        g.vmq = []
        flags_ok(PL)

    def elapsed():
        g.s("s_memrealtime %s" % sr(S_T + 4, 2))
        g.waitcnt(lg=0)
        g.s("s_sub_u32 %s, %s, %s" % (sr(S_T + 4), sr(S_T + 4), sr(S_NONCE)))

    def job_init():
        for k in range(24):
            vop(g, "v_mov_b32 %s, 0" % vr(RD + k), RD + k)
        g.s("s_mov_b32 %s, 0" % sr(S_DONE))
        g.s("s_mov_b32 %s, 0" % sr(S_ACC))
    g.label("slow")
    if STAMP == 5:
        g.s("s_mov_b32 m0, 12")
        g.s("s_mov_b64 exec, 0xfffff000")
        vop(g, "v_mov_b32 %s, 0" % vr(SV), SV)
        vop(g, "v_mov_b32 %s, 0" % vr(SV + 1), SV + 1)
        g.s("s_mov_b64 exec, -1")
    if E("PFIRST", 0):
        poll_load(S_XS + 1)
    job_init()
    g.waitcnt(vm=0)
    g.vmq = []
    flag_store(S_FS, "FS")
    if NOFAST:
        stamp(g)
    if FORCE_AB & 255:
        g.s("s_and_b32 %s, s2, %d" % (sr(S_T), FORCE_AB & 255))
        g.s("s_cmp_eq_u32 %s, 0" % sr(S_T))
        g.s("s_cbranch_scc1 giveup")
    if FORCE_AB & 256:
        g.s("s_branch giveup")
    g.s("s_branch %s" % ("process" if E("PFIRST", 0) else "poll"))
    g.label("job")
    job_setup(g, lambda o: o())
    job_init()
    g.label("poll")
    poll_load(S_XS + 1)
    g.waitcnt(vm=0)
    g.vmq = []
    g.label("process")
    flags_ok(PL)
    if STAMP == 5:
        g.s("s_memrealtime %s" % sr(S_ST, 2))
        g.waitcnt(lg=0)
        g.valu("v_writelane_b32 %s, %s, m0" % (vr(SV), sr(S_ST)), dst=[SV])
        g.valu("v_writelane_b32 %s, %s, m0" % (vr(SV + 1), sr(S_M + 1)), dst=[SV + 1])
        g.s("s_add_u32 m0, m0, 1")
        g.s("s_min_u32 m0, m0, 31")
    g.s("s_andn2_b32 %s, %s, %s" % (sr(S_NEW), sr(S_M + 1), sr(S_DONE)))
    g.s("s_cbranch_scc0 noload")
    for src in range(8):
        g.s("s_bitcmp1_b32 %s, %d" % (sr(S_NEW), src))
        g.s("s_cbranch_scc0 nold%d" % src)
        g.s("s_add_u32 %s, %s, %d" % (sr(S_T), sr(S_XS + 2), src * 12288))
        for t in range(3):
            if E("EXP2", 0) and (src & 1):
                continue
            d = LDT[t] + src * 4
            g.vload("buffer_load_dwordx4 %s, %s, %s, %s offen offset:%d%s" % (vr(d, 4), vr(L16), sr(SRD_WS, 4), sr(S_T), t * 1024, DFL), "R", dst=rng(d, 4), addr=[L16])
        g.label("nold%d" % src)
    g.vmq = []
    g.label("noload")
    g.s("s_cmp_eq_u32 %s, 0" % sr(S_ACC))
    g.s("s_cbranch_scc1 noacc")
    for src in range(8):
        g.s("s_bitcmp1_b32 %s, %d" % (sr(S_ACC), src))
        g.s("s_cbranch_scc0 noac%d" % src)
        for t in range(3):
            for h in range(2):
                r = RD + (t * 2 + h) * 4
                g.mfma(r, AC + 2 - 2 * h, LDT[t] + src * 4, r)
        g.label("noac%d" % src)
    g.label("noacc")
    g.s("s_or_b32 %s, %s, %s" % (sr(S_DONE), sr(S_DONE), sr(S_NEW)))
    g.s("s_mov_b32 %s, %s" % (sr(S_ACC), sr(S_NEW)))
    g.s("s_cmp_lg_u32 %s, 0xff" % sr(S_DONE))
    g.s("s_cbranch_scc1 more")
    g.s("s_cmp_eq_u32 %s, 0" % sr(S_ACC))
    g.s("s_cbranch_scc1 finish")
    if NOFAST:
        stamp(g)
    g.waitcnt(vm=0)
    g.s("s_mov_b32 %s, 0" % sr(S_NEW))
    g.s("s_branch noload")
    g.label("more")
    g.s("s_cmp_lg_u32 %s, 0" % sr(S_NEW))
    g.s("s_cbranch_scc1 poll")
    g.s("s_sleep %d" % SLEEP)
    elapsed()
    g.s("s_cmp_lt_i32 %s, %d" % (sr(S_T + 4), X_AB))
    g.s("s_cbranch_scc1 poll")
    g.label("giveup")
    g.s("s_and_b32 %s, %s, 1" % (sr(S_T), sr(S_RO)))
    g.s("s_lshl_b32 %s, %s, 2" % (sr(S_T), sr(S_T)))
    g.s("s_add_u32 %s, %s, %s" % (sr(S_T), sr(S_T), sr(S_RR)))
    g.s("s_lshl_b32 %s, %s, 3" % (sr(S_T), sr(S_T)))
    g.s("s_add_u32 %s, %s, 64" % (sr(S_T), sr(S_T)))
    g.s("s_add_u32 %s, %s, %s" % (sr(S_T), sr(S_T), sr(S_XS + 1)))
    flag_store(S_T, "FS")
    g.waitcnt(vm=0)
    g.vmq = []
    poll(S_XS + 1)
    g.s("s_cbranch_scc1 process")
    g.s("s_branch after")
    g.label("finish")
    g.nop(10)
    for t in range(3):
        r_out(t)
    if NOFAST:
        stamp(g)
        stamp_flush(g)
    g.label("after")
    g.nop(8)
    g.s("s_cmp_lg_u32 %s, 0" % sr(S_PHASE))
    g.s("s_cbranch_scc1 next")
    g.s("s_mov_b32 %s, 1" % sr(S_PHASE))
    g.waitcnt(vm=3 + (1 if STAMP else 0))
    elapsed()
    g.s("s_cmp_lt_i32 %s, %d" % (sr(S_T + 4), X_CK))
    if not FORCE_AB:
        g.s("s_cbranch_scc1 k_end")
    poll(S_XS)
    g.s("s_lshr_b32 %s, %s, 8" % (sr(S_PEND), sr(S_M)))
    g.s("s_and_b32 %s, %s, 0xff" % (sr(S_PEND), sr(S_PEND)))
    g.s("s_cmp_eq_u32 %s, 0xff" % sr(S_M + 1))
    g.s("s_cselect_b32 %s, %s, 0" % (sr(S_PEND), sr(S_PEND)))
    g.label("next")
    g.s("s_cmp_eq_u32 %s, 0" % sr(S_PEND))
    g.s("s_cbranch_scc1 k_end")
    g.s("s_ff1_i32_b32 %s, %s" % (sr(S_T), sr(S_PEND)))
    g.s("s_bitset0_b32 %s, %s" % (sr(S_PEND), sr(S_T)))
    g.s("s_and_b32 %s, %s, 3" % (sr(S_RR), sr(S_T)))
    g.s("s_lshr_b32 %s, %s, 2" % (sr(S_T), sr(S_T)))
    g.s("s_lshl_b32 %s, s3, 1" % sr(S_RO))
    g.s("s_add_u32 %s, %s, %s" % (sr(S_RO), sr(S_RO), sr(S_T)))
    g.waitcnt(vm=0)
    g.s("s_branch job")
    g.label("k_end")


def body():
    _stamp_n[0] = 0
    g0 = prologue()
    n = len(CLS)
    if n > 1:
        if CLF == "b":
            g0.s("s_and_b32 %s, %s, %d" % (sr(S_TYPE), sr(S_B), n - 1))
        else:
            g0.s("s_add_u32 %s, %s, %s" % (sr(S_TYPE), sr(S_B), sr(S_HG)))
            g0.s("s_and_b32 %s, %s, %d" % (sr(S_TYPE), sr(S_TYPE), n - 1))
        for c in range(1, n):
            g0.s("s_cmp_eq_u32 %s, %d" % (sr(S_TYPE), c))
            g0.s("s_cbranch_scc1 cls%d" % c)
    n0 = _stamp_n[0]
    txt = []
    for c in range(n):
        _stamp_n[0] = n0
        g = Gen()
        g.label("cls%d" % c)
        part1(g, CLS[c])
        if c:
            g.s("s_branch join")
        txt.append(g.text())
    g = Gen()
    g.vmq = ["V0", "V1", "V2", "TCH", "VD"]
    g.label("join")
    part2(g)
    g.raw("s_endpgm")
    return g0.text() + txt[0] + g.text() + "".join(txt[1:]) + "code_end:\n"


def main():
    out = "; fused attention: q-proj + attention + o-proj partial per workgroup, cross-workgroup bf16 reduction\n"
    out += "; @launch kernel=attn_kernel grid=(256,1,1) block=(256,1,1) lds=%d\n" % LDS_BYTES
    out += '.amdgcn_target "amdgcn-amd-amdhsa--gfx950"\n.text\n'
    out += ".globl attn_kernel\n.p2align 8\n.type attn_kernel,@function\nattn_kernel:\n"
    out += body()
    out += '.section .rodata,"a"\n.p2align 6\n.amdhsa_kernel attn_kernel\n'
    out += "  .amdhsa_next_free_vgpr 512\n  .amdhsa_next_free_sgpr 102\n  .amdhsa_accum_offset 256\n"
    out += "  .amdhsa_group_segment_fixed_size 0\n  .amdhsa_kernarg_size 104\n  .amdhsa_user_sgpr_count 2\n"
    out += "  .amdhsa_user_sgpr_kernarg_segment_ptr 1\n  .amdhsa_system_sgpr_workgroup_id_x 1\n.end_amdhsa_kernel\n"
    path = sys.argv[1] if len(sys.argv) > 1 else "cdna_kernels/%s.s" % NAME
    open(path, "w").write(out)
    print("wrote", path, len(out), "bytes; stamps", _stamp_n[0], "late", LATE[:12])
    if E("INFO", 0):
        for i in INFO:
            print(i)


main()
```

```python
import sys, os
sys.path.insert(0, os.path.dirname(os.path.abspath(__file__)))
from asmgen2 import Gen, vr, sr

NAME = "concat_heads__gqa_block_cached__gqa_block_cached__near_ridge"
WS_BYTES = 268435456
E = lambda k, d: int(os.environ.get(k, str(d)))
STAMP = E("STAMP", 0)
STAMP_BASE = 200 * 1024 * 1024
NRAW = E("NRAW", 3)
WQT = E("WQT", 1)
WOT = E("WOT", 1)
XBAR = dict((int(a), int(b)) for a, b in (t.split(":") for t in os.environ.get("XBAR", "0:1,4:3,8:5,12:7").split(",")))
VL = dict((int(t[0]), int(t[2])) for t in os.environ.get("VL", "0h0,1h1,2h2").split(",") if t)
PDEF = os.environ.get("PTOK", "x0,w0,x1,w1,t")
QB = os.environ.get("QB", "w2,x2,x3,w3,w4,w5,w6,x4,x5,w7,w8,w9,w10,x6,x7,w11,w12,w13,w14,w15,V0h0,V1h1")
CLS = []
for c in os.environ.get("KP", "5,9,13|6,10,14|7,11,15|8,12,15").split("|"):
    kp = [int(t) for t in c.split(",")]
    q = []
    for tok in QB.split(","):
        q.append(tok)
        for p_ in range(3):
            if tok == "w%d" % kp[p_]:
                q.append("K%dh%d" % (p_, p_))
    CLS.append({"P": PDEF.split(","), "Q": q})
if os.environ.get("QTOK"):
    CLS = [{"P": PDEF.split(","), "Q": c.split(",")} for c in os.environ["QTOK"].split("|")]
RM = E("RM", 14)
MAP = E("MAP", 0)
PLAIN = E("PLAIN", 0)
DF = "" if PLAIN else " sc1"
DFL = ["", "", " sc0", " sc1"][PLAIN] if PLAIN else " sc1"
BUD, CC, CW, CAP = E("BUD", 58), E("CC", 65), E("CW", 33), E("CAP", 100)
SM2 = E("SM2", 0)
POST = {}
for it in os.environ.get("POST", "0=V2h2;3=T;4=Y").split(";"):
    k, v = it.split("=")
    POST[int(k)] = v.split(",")
CLF = os.environ.get("CLF", "b")
FORCE_AB = E("FORCE_AB", 0)
POLL_MAX = E("POLL_MAX", 300)
SLEEP = E("SLEEP", 2)
NT = os.environ.get("NT", " nt")
PART = 0
FLG = 64 * 1024 * 1024
FC = 0x5A3C96E1
FLGP = FLG + 65536
X_AB = E("X_AB", 40000)
X_CK = E("X_CK", 20000)
RETRY = E("RETRY", 40)
R2 = [int(c) for c in os.environ.get("R2", "11211212")]
PFS = E("PFS", 1)
PPS = E("PPS", 11)
T2POS = E("T2POS", 1)
EXP, EXS, EXL = E("EXP", 0), E("EXS", 4), E("EXL", 11)

SRD_X, SRD_K, SRD_V, SRD_W, SRD_WS, SRD_WO, SRD_OUT, SRD_DBG = 20, 24, 28, 32, 36, 40, 44, 48
SE = 51
S_PLO, S_PHI = 60, 61
S_BH, S_HG, S_B, S_BLK, S_GRP, S_TYPE, S_C = 62, 63, 64, 65, 66, 67, 68
S_W0 = 70
S_T = 72
S_NONCE, S_RO, S_RR, S_PEND, S_PHASE, S_CNT = 80, 81, 82, 83, 84, 85
S_WI, S_XR = 80, 82
ROT = E("ROT", 2)
S_XS = 86
S_XM = 89
S_PB = 89
S_VL = 92
S_M = 94
S_ST = 96

RAW = 0
WT = 96 if NRAW == 3 else 224
WT8 = 64
KF = 128
VW, XB, VK, VV, VWO, L16, VOW, L16H = 240, 241, 245, 246, 247, 248, 249, 250
VOW2 = XB
TQ = 251
XA = TQ
WTA = 112 if NRAW == 3 else A0 + 254 if False else 112
VR2 = 0
VKD, VKR = 113, 117
QF = 32
SB = 64
PT = 112
TM = 124
OB = 64
TT = 32
ZQ = 224
A0 = 256
ACC = A0
BF = A0 + 192
VRA = A0 + 192

L_V = 98304
L_MISC = 34816
LDS_BYTES = 163840

_stamp_n = [0]


def rng(a, n):
    return list(range(a, a + n))


def vop(g, text, dst, src=()):
    g.valu(text, dst=[dst] if isinstance(dst, int) else dst, src=src)


SV = 236


def stamp(g, have=False):
    if not STAMP:
        return
    n = _stamp_n[0]
    _stamp_n[0] += 1
    if not have:
        g.s("%s %s" % (os.environ.get("CLK", "s_memrealtime"), sr(S_ST, 2)))
        g.waitcnt(lg=0)
        g.lgq = []
    g.valu("v_writelane_b32 %s, %s, %d" % (vr(SV), sr(S_ST), n), dst=[SV])
    g.valu("v_writelane_b32 %s, %s, %d" % (vr(SV + 1), sr(S_ST + 1), n), dst=[SV + 1])


def stamp_flush(g):
    if not STAMP:
        return
    g.s("s_lshl_b32 %s, s2, 8" % sr(S_ST + 2))
    g.s("s_add_u32 %s, %s, %d" % (sr(S_ST + 2), sr(S_ST + 2), STAMP_BASE))
    g.s("s_mul_i32 %s, s3, 1048576" % sr(S_ST + 3))
    g.s("s_add_u32 %s, %s, %s" % (sr(S_ST + 2), sr(S_ST + 2), sr(S_ST + 3)))
    vop(g, "v_lshrrev_b32 %s, 1, %s" % (vr(TQ), vr(L16)), TQ, [L16])
    g.s("s_mov_b64 exec, 0xffffffff")
    g.vstore("buffer_store_dwordx2 %s, %s, %s, %s offen" % (vr(SV, 2), vr(TQ), sr(SRD_WS, 4), sr(S_ST + 2)), "STAMP", data=[SV, SV + 1], addr=[TQ])
    g.s("s_mov_b64 exec, -1")


def make_srd(g, srd, ptr, nbytes):
    g.s("s_mov_b32 %s, %s" % (sr(srd), sr(ptr)))
    g.s("s_and_b32 %s, %s, 0xffff" % (sr(srd + 1), sr(ptr + 1)))
    g.s("s_mov_b32 %s, %d" % (sr(srd + 2), nbytes))
    g.s("s_mov_b32 %s, 0x00020000" % sr(srd + 3))


def acc1(j, u):
    return ACC + (u * 8 + j) * 4


def acc2(j, u):
    return ACC + (u * 8 + j) * 4


SL2 = [32, 0, 64, KF, KF + 32]


UM = E("UM", 6)
SELF = E("SELF", 1)
L_SELF = 49152
S_SM, S_SP = 8, 14


def raw2(s, e):
    if UM == 6 and s in (13, 14):
        s = 27 - s
    return SL2[s % 5] + e * 4


CYC = [KF + 64, 32, 64, 0, KF, KF + 32]


def raw(s, e):
    return CYC[s % 6] + e * 4


def bf(s, u):
    return BF + ((s % 2) * 6 + u) * 4


def perm_ops(g, rbase, j, dst):
    ops = []
    for m in range(4):
        a, b = rbase + (2 * m) * 4 + (j >> 1), rbase + (2 * m + 1) * 4 + (j >> 1)
        sel = S_PHI if j & 1 else S_PLO

        def op(a=a, b=b, d=dst + m, sel=sel):
            g.valu("v_perm_b32 %s, %s, %s, %s" % (vr(d), vr(b), vr(a), sr(sel)), dst=[d], src=[a, b])
        ops.append(op)
    return ops


def merge(main, fill):
    n = len(main)
    k = 0
    for i, m in enumerate(main):
        m()
        upto = (len(fill) * (i + 1) + n - 1) // n
        while k < upto:
            fill[k]()
            k += 1


def units(tag, ops, cost):
    out, cur = [], []
    for o in ops:
        cur.append(o)
        if getattr(o, "is_load", False):
            out.append([tag, cost, cur])
            cur = []
    if cur:
        out.append([tag, 0, cur])
    return out


def gemm1(g, cl, b_reads, tail):
    acc = acc1
    pend = []
    rdone = set()
    kbar = min(k - 1 for k in XBAR if k - 1 >= 5)
    vbar = min(k - 1 for k in XBAR if k - 1 >= 11)
    for tok in cl["Q"]:
        if tok[0] == "@":
            pend.append([tok, 0, []])
        else:
            pend += units(tok, tok_ops(g, tok), CW if tok[0] == "w" or (ROT == 2 and tok[0] == "x" and int(tok[1]) >= 4) else CC)
    credit = [0]
    kiss = {}
    INFO.append(kiss)

    def ok(tag, s, j):
        if tag[0] == "@":
            return s >= int(tag[1:])
        if tag[0] == "w":
            return (s, j) >= (int(tag[1:]) - 6, 7)
        if tag[0] == "K" and tag[3] == "2":
            return (s, j) >= (kbar, 4)
        if tag[0] == "V" and tag[3] == "2":
            return (s, j) >= (vbar, 4)
        if tag[0] == "V":
            return tag[3] in rdone
        return True

    def take(s, j):
        out = []
        credit[0] = min(CAP, credit[0] + BUD)
        while pend and ok(pend[0][0], s, j) and credit[0] >= pend[0][1]:
            t, c, o = pend.pop(0)
            credit[0] -= c
            out += o
            kiss[t] = 8 * s + j
        return out

    def upto(tag, s, j):
        out = []
        while any(t == tag for t, _, _ in pend):
            t, c, o = pend.pop(0)
            assert t[0] == "@" or ok(t, s, j), (t, tag, s, j)
            credit[0] -= c
            out += o
            kiss[t] = 8 * s + j
            LATE.append((tag, t, s, j))
        return out
    side = []

    rnext = [0]

    def side_add(s):
        while rnext[0] < 3:
            p_ = rnext[0]
            tok = "R%dh%d" % (p_, p_)
            if s < 16 and (s < 11 + p_ or any(t == "K" + tok[1:] for t, _, _ in pend) or 8 * s < kiss["K" + tok[1:]] + RM):
                break
            side.append(lambda tok=tok, s=s: run(upto("K" + tok[1:], s, 0)))
            side.extend(tok_ops(g, tok))
            side.append(lambda tok=tok: rdone.add(tok[3]))
            rnext[0] += 1
            INFO.append((tok, s))

    def side_take(n):
        out = []
        while side and n > 0:
            o = side.pop(0)
            out.append(o)
            if getattr(o, "is_load", False):
                n -= 1
        while side and not getattr(side[0], "is_load", False) and len(side) == 1:
            out.append(side.pop(0))
        return out
    g.wait_vm("W0")
    for op in perm_ops(g, raw(0, 0), 0, WT):
        op()
    for s in range(15):
        side_add(s)
        for j in range(8):
            idx = 8 * s + j
            fill = []
            if j == 7:
                fill += upto("w%d" % (s + 1), s, j)
                fill.append(lambda s=s: g.wait_vm("W%d" % (s + 1)))
                fill += perm_ops(g, raw(s + 1, 0), 0, (WT8 if s == 14 else WT + ((idx + 1) % 4) * 4))
            else:
                fill += perm_ops(g, raw(s, 0), j + 1, WT + ((idx + 1) % 4) * 4)
            fill += take(s, j)
            if j == 3 and (s + 1) in XBAR:
                tags = ["X%d" % k for k in range(XBAR[s + 1] + 1)]
                for t in tags:
                    fill += upto(t.lower(), s, j)
                fill.append(lambda tags=tags: g.wait_vm(tags))
                fill.append(g.barrier)
            if 3 <= j <= 5:
                fill += b_reads(s + 1)[(j - 3) * 2:(j - 3) * 2 + 2]
            elif j < 3:
                fill += side_take(3)
            if j == 0:
                g.wait_lg("B%d" % s)
                if STAMP == 2 and s > 0:
                    stamp(g)
            a = WT + (idx % 4) * 4
            main = [(lambda u=u: g.mfma(acc(j, u), a, bf(s, u), None if s == 0 else acc(j, u))) for u in range(6)]
            merge(main, fill)
    s = 15
    side_add(15)
    g.wait_lg("B15")
    carry = []
    for n, u in enumerate(range(6)):
        main = [(lambda j=j: g.mfma(acc(j, u), WT8 + j * 4, bf(s, u), acc(j, u))) for j in range(8)]
        if n == 0:
            for j in range(8):
                main[j]()
                if j < 7:
                    for op in perm_ops(g, raw(s, 0), j + 1, WT8 + (j + 1) * 4):
                        op()
        else:
            fill = side_take(4)
            merge(main[:1], fill)
            fill = take(15, n) + take(15, n) + carry[:20]
            carry = carry[20:]
            merge(main[1:], fill)
        carry += tail(u)
    side_add(16)
    run(side)
    rest = []
    for t, c, o in pend:
        assert t[0] == "@" or ok(t, 16, 0), t
        rest += o
    return rest, carry


LATE = []
INFO = []


def mark(ops):
    for o in ops:
        names = o.__code__.co_names
        if "vload" in names:
            o.is_load = True
    return ops


def q_conv(g, u):
    ops = []
    for i in range(4):
        for m in range(4):
            t0, t1 = TQ + (m % 2) * 2, TQ + (m % 2) * 2 + 1
            s0, s1 = acc1(2 * m, u) + i, acc1(2 * m + 1, u) + i
            d = QF + (u % 2) * 16 + i * 4 + m
            ops.append(lambda t=t0, s=s0: g.valu("v_accvgpr_read_b32 %s, %s" % (vr(t), vr(s)), dst=[t], src=[s]))
            ops.append(lambda t=t1, s=s1: g.valu("v_accvgpr_read_b32 %s, %s" % (vr(t), vr(s)), dst=[t], src=[s]))
            ops.append(lambda d=d, a=t0, b=t1: g.valu("v_cvt_pk_bf16_f32 %s, %s, %s" % (vr(d), vr(a), vr(b)), dst=[d], src=[a, b]))
    return ops


def sacc(u, kt):
    return SB + (u % 2) * 24 + kt * 4


def pfrag(u, pp):
    return ACC + u * 32 + pp * 4


ONES = 224


def psum(u):
    return ACC + u * 32 + 12


def softmax_ops(g, u):
    ops = []
    A = ops.append
    vals = [sacc(u, kt) + r for kt in range(6) for r in range(4)]
    m, tmp, r = TM, TM + 1, TM + 2
    m2 = TM + 3

    def V(text, dst, src, **kw):
        A(lambda: g.valu(text, dst=dst, src=src, **kw))
    V("v_max3_f32 %s, %s, %s, %s" % (vr(m), vr(vals[0]), vr(vals[1]), vr(vals[2])), [m], vals[0:3])
    V("v_max3_f32 %s, %s, %s, %s" % (vr(m2), vr(vals[3]), vr(vals[4]), vr(vals[5])), [m2], vals[3:6])
    k = 6
    while k < 24:
        mm = m if (k // 2) % 2 else m2
        V("v_max3_f32 %s, %s, %s, %s" % (vr(mm), vr(mm), vr(vals[k]), vr(vals[k + 1])), [mm], [mm, vals[k], vals[k + 1]])
        k += 2
    V("v_max_f32 %s, %s, %s" % (vr(m), vr(m), vr(m2)), [m], [m, m2])

    def xl(x, op):
        for sw in ("v_permlane32_swap_b32", "v_permlane16_swap_b32"):
            V("v_mov_b32 %s, %s" % (vr(tmp), vr(x)), [tmp], [x])
            V("%s %s, %s" % (sw, vr(x), vr(tmp)), [x, tmp], [x, tmp], permlane=True)
            V("%s %s, %s, %s" % (op, vr(x), vr(x), vr(tmp)), [x], [x, tmp])
    xl(m, "v_max_f32")
    V("v_mul_f32 %s, %s, %s" % (vr(m), sr(S_C), vr(m)), [m], [m])
    for v in vals:
        V("v_fma_f32 %s, %s, %s, -%s" % (vr(v), vr(v), sr(S_C), vr(m)), [v], [v, m])
    for v in vals:
        V("v_exp_f32 %s, %s" % (vr(v), vr(v)), [v], [v], trans=True)
    for pp in range(3):
        for h in range(4):
            a = sacc(u, 2 * pp + (h >> 1)) + (h & 1) * 2
            d = PT + pp * 4 + h
            V("v_cvt_pk_bf16_f32 %s, %s, %s" % (vr(d), vr(a), vr(a + 1)), [d], [a, a + 1])
    for k in range(12):
        d = pfrag(u, 0) + k
        V("v_accvgpr_write_b32 %s, %s" % (vr(d), vr(PT + k)), [d], [PT + k])
    for pp in range(3):
        A(lambda pp=pp: g.mfma(psum(u), ONES, PT + pp * 4, None if pp == 0 else psum(u)))
    return ops


S_K2, S_KD, S_JUNK, S_TB = 4, 5, 13, 6


def k_dma(g, part, half):
    ops = []
    for n8 in range(8):
        n = part * 8 + n8
        ops.append(lambda n=n: g.s("s_add_u32 %s, %s, %d" % (sr(S_T + 1), sr(S_BH), n * 1024)))
        if half == 2:
            ops.append(lambda n8=n8: g.s("s_add_u32 m0, %s, %d" % (sr(S_K2), n8 * 1024), m0=True))
        else:
            ops.append(lambda n8=n8: g.s("s_add_u32 m0, %s, %d" % (sr(S_VL), half * 8192 + n8 * 1024), m0=True))
        ops.append(lambda n=n: g.vload("buffer_load_dwordx4 %s, %s, %s offen%s lds" % (vr(VKD + (n & 3)), sr(SRD_K, 4), sr(S_T + 1), NT), "KD%d" % part, addr=[VKD + (n & 3)], lds=True))
    return ops


def k_read(g, part, half):
    ops = [lambda: g.wait_vm("KD%d" % part)]
    if half == 2:
        for i in range(4):
            ops.append(lambda i=i: vop(g, "v_subrev_u32 %s, %s, %s" % (vr(VKR + i), sr(S_KD), vr(VKR + i)), VKR + i, [VKR + i]))
    for k2 in range(2):
        for i in range(4):
            d = KF + ((part * 2 + k2) * 4 + i) * 4
            o = lambda d=d, i=i, k2=k2: g.dsread("ds_read_b128 %s, %s offset:%d" % (vr(d, 4), vr(VKR + i), (half & 1) * 8192 + k2 * 4096), "KR%d" % half, dst=rng(d, 4), addr=[VKR + i])
            o.is_load = True
            ops.append(o)
    return ops


def vraw(pp, e):
    return (VRA + pp * 32 + e * 4) if pp < 2 else (VR2 + e * 4)


def v_loads(g, pp_):
    ops = []
    for pp in (pp_,):
        for e in range(8):
            if e % 4 == 0:
                ops.append(lambda pp=pp, e=e: g.s("s_add_u32 %s, %s, %d" % (sr(S_T + 1), sr(S_BH), pp * 8192 + (e >> 2) * 4096)))
            d = vraw(pp, e)
            ops.append(lambda d=d, e=e, pp=pp: g.vload("buffer_load_dwordx4 %s, %s, %s, %s offen offset:%d%s" % (vr(d, 4), vr(VV), sr(SRD_V, 4), sr(S_T + 1), (e & 3) * 256, NT),
                                                       "V%d" % pp, dst=rng(d, 4), addr=[VV]))
    return ops


L_V2 = 36864


def v_dma(g, pp, half):
    ops = [lambda: g.wait_lg("KR%d" % half)] if half < 2 else []
    for e in range(8):
        ops.append(lambda pp=pp, e=e: g.s("s_add_u32 %s, %s, %d" % (sr(S_T + 1), sr(S_BH), pp * 8192 + e * 1024)))
        if half < 2:
            ops.append(lambda pp=pp, e=e: g.s("s_add_u32 m0, %s, %d" % (sr(S_VL), (half * 8 + e) * 1024), m0=True))
        else:
            ops.append(lambda pp=pp, e=e: g.s("s_add_u32 m0, %s, %d" % (sr(S_K2), L_V2 + e * 1024), m0=True))
        a = VK if e & 1 else VV
        ops.append(lambda a=a: g.vload("buffer_load_dwordx4 %s, %s, %s offen%s lds" % (vr(a), sr(SRD_V, 4), sr(S_T + 1), NT), "VD", addr=[a], lds=True))
    return ops


def wo_touch(g):
    ops = []
    A = ops.append
    if MAP:
        A(lambda: g.s("s_and_b32 %s, %s, 3" % (sr(S_T + 3), sr(S_B))))
        A(lambda: g.s("s_lshl_b32 %s, %s, 2" % (sr(S_T + 3), sr(S_T + 3))))
    else:
        A(lambda: g.s("s_lshl_b32 %s, %s, 2" % (sr(S_T + 3), sr(S_B))))
    A(lambda: g.s("s_add_u32 %s, %s, s3" % (sr(S_T + 3), sr(S_T + 3))))
    A(lambda: g.s("s_lshl_b32 %s, %s, 13" % (sr(S_T + 3), sr(S_T + 3))))
    A(lambda: g.s("s_lshl_b32 %s, %s, 19" % (sr(S_T + 4), sr(S_HG))))
    A(lambda: g.s("s_add_u32 %s, %s, %s" % (sr(S_T + 3), sr(S_T + 3), sr(S_T + 4))))
    A(lambda: vop(g, "v_lshlrev_b32 %s, 3, %s" % (vr(TQ + 4), vr(L16)), TQ + 4, [L16]))
    for k in range(3 if MAP else 0):
        A(lambda: g.vload("buffer_load_dword %s, %s, %s, %s offen" % (vr(VW), vr(TQ + 4), sr(SRD_WO, 4), sr(S_T + 3)), "TCH", dst=[VW], addr=[TQ + 4]))
        A(lambda: g.s("s_add_u32 %s, %s, 131072" % (sr(S_T + 3), sr(S_T + 3))))
    A(lambda: g.vload("buffer_load_dword %s, %s, %s, %s offen" % (vr(TQ + 4), vr(TQ + 4), sr(SRD_WO, 4), sr(S_T + 3)), "TCH", dst=[TQ + 4], addr=[TQ + 4]))
    return ops


def w1_loads(g):
    def f(s):
        ops = []
        if s > 0:
            if ROT:
                ops.append(lambda: vop(g, "v_add_u32 %s, %s, %s" % (vr(VW), sr(S_WI + (s & 1)), vr(VW)), VW, [VW]))
                ops.append(lambda: vop(g, "v_and_b32 %s, 0x3fffff, %s" % (vr(VW), vr(VW)), VW, [VW]))
            else:
                ops.append(lambda: vop(g, "v_add_u32 %s, 0x40000, %s" % (vr(VW), vr(VW)), VW, [VW]))
        for e in range(8):
            d = raw(s, e)
            so = "0" if e == 0 else sr(SE + e)
            ops.append(lambda d=d, so=so, s=s: g.vload("buffer_load_dwordx4 %s, %s, %s, %s offen" % (vr(d, 4), vr(VW), sr(SRD_W, 4), so),
                                                       "W%d" % s, dst=rng(d, 4), addr=[VW]))
        return mark(ops)
    return f


def b1_reads(g):
    def f(s):
        ops = []
        sp = s >> 1
        a = XB + (s & 1) + 2 * (sp >> 2)
        for u in range(6):
            d = bf(s, u)
            ops.append(lambda d=d, a=a, off=((sp & 3) * 12 + 2 * u) * 1024, s=s:
                       g.dsread("ds_read_b128 %s, %s offset:%d" % (vr(d, 4), vr(a), off), "B%d" % s, dst=rng(d, 4), addr=[a]))
        return ops
    return f


def w2_loads(g):
    def f(s):
        ops = []
        if E("NOW2", 0) and s >= 5:
            return ops
        h, i = s >> 2, s & 3
        base = h * 131072 + i * 16384
        for e in range(8):
            if e % 4 == 0:
                ops.append(lambda e=e: g.s("s_mov_b32 %s, %d" % (sr(S_T + 2), base + (e >> 2) * 8192)))
            d = raw2(s, e)
            if E("X2T", 0):
                for hf in range(2):
                    ops.append(lambda d=d + 2 * hf, e=e, s=s, hf=hf: g.vload("buffer_load_dwordx2 %s, %s, %s, %s offen offset:%d" % (vr(d, 2), vr(VWO), sr(SRD_WO, 4), sr(S_T + 2), (e & 3) * 1024 + hf * 128),
                                                                         "W%d" % s, dst=rng(d, 2), addr=[VWO]))
                continue
            ops.append(lambda d=d, e=e, s=s: g.vload("buffer_load_dwordx4 %s, %s, %s, %s offen offset:%d" % (vr(d, 4), vr(VWO), sr(SRD_WO, 4), sr(S_T + 2), (e & 3) * 1024),
                                                     "W%d" % s, dst=rng(d, 4), addr=[VWO]))
        return mark(ops)
    return f


def b2_reads(g):
    def f(s):
        ops = []
        h, i = s >> 2, s & 3
        for u in range(6):
            d = bf(s, u)
            n = i * 6 + u
            a, off = (L16H, h * 16384 + n * 1024) if n < 16 else (L16, h * 8192 + (n - 16) * 1024)
            ops.append(lambda d=d, a=a, off=off, s=s:
                       g.dsread("ds_read_b128 %s, %s offset:%d" % (vr(d, 4), vr(a), off), "B%d" % s, dst=rng(d, 4), addr=[a]))
        return ops
    return f


def b2_read1(g, s, u, d, tag):
    h, i = s >> 2, s & 3
    n = i * 6 + u
    a, off = (L16H, h * 16384 + n * 1024) if n < 16 else (L16, h * 8192 + (n - 16) * 1024)
    return lambda: g.dsread("ds_read_b128 %s, %s offset:%d" % (vr(d, 4), vr(a), off), tag, dst=rng(d, 4), addr=[a])


def gemm2(g, w_loads, b_reads, tail, extra):
    pend = []

    def add(tag, ops):
        pend.extend((tag, o) for o in ops)

    def take(n):
        out = []
        while pend and n > 0:
            t, o = pend.pop(0)
            out.append(o)
            if getattr(o, "is_load", False):
                n -= 1
        return out

    def upto(tag):
        out = []
        while any(t == tag for t, _ in pend):
            out.append(pend.pop(0)[1])
        return out
    TS = {13: KF + 64, 14: SL2[11 % 5], 15: SL2[12 % 5]}
    bq = lambda n, k: BF + (((n * 3 + 6) % 12) + k) * 4
    for t in (2, 3, 4):
        add("W%d" % t, w_loads(t))
    g.wait_vm("W0")
    for op in perm_ops(g, raw2(0, 0), 0, WT):
        op()
    xq = []
    for s in range(13):
        xq += extra(s)
        if s == 12:
            xq += upto("W13") + [lambda: g.wait_vm("W13")]
            for j in range(8):
                xq += perm_ops(g, raw2(13, 0), j, TS[13] + j * 4)
        for j in range(8):
            idx = 8 * s + j
            fill = []
            if j == 7:
                if s < 12:
                    fill += upto("W%d" % (s + 1))
                    fill.append(lambda s=s: g.wait_vm("W%d" % (s + 1)))
                    fill += perm_ops(g, raw2(s + 1, 0), 0, WT + ((idx + 1) % 4) * 4)
                if s + 5 < 16:
                    add("W%d" % (s + 5), w_loads(s + 5))
            else:
                fill += perm_ops(g, raw2(s, 0), j + 1, WT + ((idx + 1) % 4) * 4)
            fill += take(R2[j])
            if 3 <= j <= 5:
                if s < 12:
                    fill += b_reads(s + 1)[(j - 3) * 2:(j - 3) * 2 + 2]
                else:
                    fill += [b2_read1(g, 13 + (j - 3), n, bq(n, j - 3), "C%d" % n) for n in range(2)]
            k = (len(xq) + 7 - j) // (8 - j)
            k = min(k, 8) if s < 12 else k
            fill += xq[:k]
            xq = xq[k:]
            if j == 0:
                g.wait_lg("B%d" % s)
                if STAMP == 3 and s > 0:
                    stamp(g)
            a = WT + (idx % 4) * 4
            main = [(lambda u=u: g.mfma(acc2(j, u), a, bf(s, u), None if s == 0 else acc2(j, u))) for u in range(6)]
            merge(main, fill)
    assert not xq
    carry = []
    for n in range(6):
        u = n
        g.wait_lg("C%d" % n)
        if STAMP == 3:
            stamp(g)
        main = [(lambda j=j, k=k: g.mfma(acc2(j, u), TS[13 + k] + j * 4, bq(n, k), acc2(j, u))) for k in range(3) for j in range(8)]
        brd = [b2_read1(g, 13 + k, n + 2, bq(n + 2, k), "C%d" % (n + 2)) for k in range(3)] if n + 2 < 6 else []
        if n == 0:
            for k in (1, 2):
                fill = upto("W%d" % (13 + k)) + [lambda k=k: g.wait_vm("W%d" % (13 + k))]
                for j in range(8):
                    fill += perm_ops(g, raw2(13 + k, 0), j, TS[13 + k] + j * 4)
                merge(main[(k - 1) * 8:k * 8 - 1], fill)
                main[k * 8 - 1]()
            merge(main[16:], brd)
        else:
            merge(main, brd + carry)
        carry = tail(n)
    assert not pend
    run(carry)


def gemm2u(g, w_loads, b_reads, tail, extra):
    pend = []

    def add(tag, ops):
        pend.extend((tag, o) for o in ops)

    def take(n):
        out = []
        while pend and n > 0:
            t, o = pend.pop(0)
            out.append(o)
            if getattr(o, "is_load", False):
                n -= 1
        return out

    def upto(tag):
        out = []
        while any(t == tag for t, _ in pend):
            out.append(pend.pop(0)[1])
        return out

    def conv(s, dst):
        ops = upto("W%d" % s) + [lambda: g.wait_vm("W%d" % s)]
        for j in range(8):
            ops += perm_ops(g, raw2(s, 0), j, dst + j * 4)
        return ops
    TS = {9: KF + 64, 10: 96, 11: KF + 64, 12: raw2(11, 0), 13: raw2(12, 0), 14: raw2(13, 0), 15: raw2(14, 0)}
    seq = [(u, k) for k in range(6) for u in range(2)] + [(u, k) for u in range(2, 6) for k in range(6)]
    bq = lambda i: BF + (i % 12) * 4
    brd = lambda i: [b2_read1(g, 10 + seq[i][1], seq[i][0], bq(i), "C%d" % i)] if i < len(seq) else []
    for t in (2, 3, 4):
        add("W%d" % t, w_loads(t))
    g.wait_vm("W0")
    for op in perm_ops(g, raw2(0, 0), 0, WT):
        op()
    xq = []
    for s in range(10):
        xq += extra(s)
        cv = conv(s + 1, TS[s + 1]) if s >= 8 else []
        ncv = (len(cv) + 3) // 4
        for j in range(8):
            idx = 8 * s + j
            fill = []
            if j == 7:
                if s < 8:
                    fill += upto("W%d" % (s + 1))
                    fill.append(lambda s=s: g.wait_vm("W%d" % (s + 1)))
                    fill += perm_ops(g, raw2(s + 1, 0), 0, WT + ((idx + 1) % 4) * 4)
                    add("W%d" % (s + 5), w_loads(s + 5))
                if s == 8:
                    add("W14", w_loads(14))
            elif s < 9:
                fill += perm_ops(g, raw2(s, 0), j + 1, WT + ((idx + 1) % 4) * 4)
            if j < 4:
                fill += cv[j * ncv:(j + 1) * ncv]
            if j == 4 and s >= 8:
                add("W%d" % (13 if s == 8 else 15), w_loads(13 if s == 8 else 15))
            fill += take(R2[j] if s < 8 else 2)
            if 3 <= j <= 5:
                if s < 9:
                    fill += b_reads(s + 1)[(j - 3) * 2:(j - 3) * 2 + 2]
                else:
                    fill += brd((j - 3) * 2) + brd((j - 3) * 2 + 1)
            k = (len(xq) + 7 - j) // (8 - j)
            k = min(k, 8) if s < 9 else k
            fill += xq[:k]
            xq = xq[k:]
            if j == 0:
                g.wait_lg("B%d" % s)
                if STAMP == 3 and s > 0:
                    stamp(g)
            a = WT + (idx % 4) * 4 if s < 9 else TS[9] + j * 4
            main = [(lambda u=u: g.mfma(acc2(j, u), a, bf(s, u), None if s == 0 else acc2(j, u))) for u in range(6)]
            merge(main, fill)
    assert not xq

    def block(i):
        u, k = seq[i]
        m = [(lambda j=j: g.mfma(acc2(j, u), TS[10 + k] + j * 4, bq(i), acc2(j, u))) for j in range(8)]
        f = m[0]
        m[0] = lambda: (g.wait_lg("C%d" % i), f(), run(brd(i + 6)))
        return m
    for k in range(6):
        if STAMP == 3:
            stamp(g)
        main = block(2 * k) + block(2 * k + 1)
        if k < 5:
            fill = take(8) + conv(11 + k, TS[11 + k])
            merge(main[:15], fill)
            main[15]()
        else:
            run(main[:8])
            merge(main[8:], tail(0)[:20])
    carry = TL0[20:] + tail(1)
    for n in range(2, 6):
        if STAMP == 3:
            stamp(g)
        main = []
        for k in range(6):
            main += block(12 + (n - 2) * 6 + k)
        fl = E("FL", 48) if n > 2 else 48
        merge(main[:fl], carry)
        run(main[fl:])
        carry = tail(n)
    assert not pend
    run(carry)


TL0 = []


def run(ops):
    for o in ops:
        o()


def prologue():
    g = Gen()
    g.s("s_cmp_ge_u32 s2, 256")
    g.s("s_cbranch_scc1 k_end")
    if STAMP:
        g.s("%s %s" % (os.environ.get("CLK", "s_memrealtime"), sr(S_ST, 2)))
    if E("CPF", 2):
        g.s("s_getpc_b64 %s" % sr(SRD_OUT, 2))
        g.label("pc_here")
        if E("CPF", 2) == 1:
            g.s("s_bfe_u32 %s, s2, 0x30003" % sr(S_T))
            g.s("s_lshl_b32 %s, %s, 15" % (sr(S_T), sr(S_T)))
        else:
            g.s("s_lshr_b32 %s, s2, 3" % sr(S_T))
            g.s("s_lshl_b32 %s, %s, 12" % (sr(S_T), sr(S_T)))
            g.valu("v_cmp_gt_u32 vcc, 32, v0", src=[0])
        g.s("s_and_b32 %s, %s, 0xffff" % (sr(SRD_OUT + 1), sr(SRD_OUT + 1)))
        g.s("s_mov_b32 %s, code_end-pc_here" % sr(SRD_OUT + 2))
        g.s("s_mov_b32 %s, 0x00020000" % sr(SRD_OUT + 3))
        vop(g, "v_lshlrev_b32 %s, 7, v0" % vr(TQ + 4), TQ + 4, [0])
        if E("CPF", 2) != 1:
            vop(g, "v_cndmask_b32 %s, -1, %s, vcc" % (vr(TQ + 4), vr(TQ + 4)), TQ + 4, [TQ + 4])
        g.vload("buffer_load_dword %s, %s, %s, %s offen" % (vr(TQ + 4), vr(TQ + 4), sr(SRD_OUT, 4), sr(S_T)), "CPF", dst=[TQ + 4], addr=[TQ + 4])
    g.s("s_bfe_u32 %s, s2, 0x10002" % sr(S_BLK))
    g.s("s_mul_i32 s16, %s, 40" % sr(S_BLK))
    g.s("s_add_u32 s18, s0, s16")
    g.s("s_addc_u32 s19, s1, 0")
    g.s("s_load_dwordx8 s[8:15], s[18:19], 0")
    g.s("s_load_dwordx2 s[16:17], s[18:19], 32")
    g.s("s_load_dwordx4 s[4:7], s[0:1], 80")
    g.s("s_load_dwordx2 s[18:19], s[0:1], 96")
    LN, Q, G, R8, C8, T1, T2 = 130, 131, 132, 133, 134, 135, 136
    vop(g, "v_lshrrev_b32 %s, 6, v0" % vr(T1), T1, [0])
    vop(g, "v_and_b32 %s, 63, v0" % vr(LN), LN, [0])
    g.valu("v_readfirstlane_b32 s3, %s" % vr(T1), src=[T1], readlane=True, sdst=[3])
    g.s("s_and_b32 %s, s2, 3" % sr(S_HG))
    g.s("s_lshl_b32 %s, %s, 1" % (sr(S_HG), sr(S_HG)))
    g.s("s_bfe_u32 %s, s2, 0x10003" % sr(S_T))
    g.s("s_add_u32 %s, %s, %s" % (sr(S_HG), sr(S_HG), sr(S_T)))
    g.s("s_lshr_b32 %s, s2, 4" % sr(S_B))
    if MAP:
        g.s("s_bfe_u32 %s, s2, 0x30003" % sr(S_HG))
        g.s("s_and_b32 %s, s2, 3" % sr(S_B))
        g.s("s_lshl_b32 %s, %s, 2" % (sr(S_B), sr(S_B)))
        g.s("s_lshr_b32 %s, s2, 6" % sr(S_T))
        g.s("s_add_u32 %s, %s, %s" % (sr(S_B), sr(S_B), sr(S_T)))
    g.s("s_lshl_b32 %s, %s, 4" % (sr(S_GRP), sr(S_BLK)))
    g.s("s_add_u32 %s, %s, %s" % (sr(S_GRP), sr(S_GRP), sr(S_B)))
    vop(g, "v_and_b32 %s, 15, %s" % (vr(Q), vr(LN)), Q, [LN])
    vop(g, "v_lshrrev_b32 %s, 4, %s" % (vr(G), vr(LN)), G, [LN])
    vop(g, "v_lshrrev_b32 %s, 3, %s" % (vr(R8), vr(LN)), R8, [LN])
    vop(g, "v_and_b32 %s, 7, %s" % (vr(C8), vr(LN)), C8, [LN])
    vop(g, "v_lshlrev_b32 %s, 4, %s" % (vr(L16), vr(LN)), L16, [LN])
    vop(g, "v_add_u32 %s, %d, %s" % (vr(L16H), L_V, vr(L16)), L16H, [L16])
    for e in range(1, 8):
        g.s("s_mov_b32 %s, %d" % (sr(SE + e), e * 8192))
    g.s("s_mov_b32 %s, 0x05040100" % sr(S_PLO))
    g.s("s_mov_b32 %s, 0x07060302" % sr(S_PHI))
    g.s("s_mov_b32 %s, 0x3e0293ee" % sr(S_C))
    g.s("s_cmp_eq_u32 s3, 0")
    g.s("s_cselect_b32 %s, 1, 0" % sr(S_W0))
    g.s("s_mov_b32 %s, 0" % sr(S_W0 + 1))
    g.s("s_lshl_b32 %s, %s, 5" % (sr(S_T), sr(S_B)))
    g.s("s_lshl_b32 %s, %s, 2" % (sr(S_T + 1), sr(S_HG)))
    g.s("s_add_u32 %s, %s, %s" % (sr(S_T), sr(S_T), sr(S_T + 1)))
    g.s("s_add_u32 %s, %s, s3" % (sr(S_T), sr(S_T)))
    g.s("s_mul_i32 %s, %s, 24576" % (sr(S_BH), sr(S_T)))
    g.s("s_lshl_b32 %s, s3, 14" % sr(S_T))
    g.s("s_add_u32 %s, %s, %d" % (sr(S_VL), sr(S_T), L_V))

    vop(g, "v_lshrrev_b32 %s, 1, %s" % (vr(T1), vr(R8)), T1, [R8])
    vop(g, "v_xor_b32 %s, %s, %s" % (vr(T1), vr(T1), vr(C8)), T1, [T1, C8])
    g.s("s_mul_i32 %s, %s, 98304" % (sr(S_T + 2), sr(S_B)))
    for t in range(3):
        g.s("s_mul_i32 %s, s3, 3" % sr(S_T))
        g.s("s_add_u32 %s, %s, %d" % (sr(S_T), sr(S_T), t))
        g.s("s_lshl_b32 %s, %s, 10" % (sr(S_XM + t), sr(S_T)))
        g.s("s_lshl_b32 %s, %s, 13" % (sr(S_T + 1), sr(S_T)))
        g.s("s_add_u32 %s, %s, %s" % (sr(S_XS + t), sr(S_T + 1), sr(S_T + 2)))
        g.s("s_and_b32 %s, %s, 1" % (sr(S_T), sr(S_T)))
        g.s("s_lshl_b32 %s, %s, 2" % (sr(S_T), sr(S_T)))
        vop(g, "v_xor_b32 %s, %s, %s" % (vr(T2), sr(S_T), vr(T1)), T2, [T1])
        vop(g, "v_lshlrev_b32 %s, 4, %s" % (vr(T2), vr(T2)), T2, [T2])
        vop(g, "v_lshl_add_u32 %s, %s, 10, %s" % (vr(XA + t), vr(R8), vr(T2)), XA + t, [R8, T2])
    PI = 140
    PI = Q
    g.s("s_lshl_b32 %s, %s, 10" % (sr(S_T), sr(S_HG)))
    g.s("s_lshl_b32 %s, s3, 8" % sr(S_T + 1))
    g.s("s_add_u32 %s, %s, %s" % (sr(S_T), sr(S_T), sr(S_T + 1)))
    vop(g, "v_lshlrev_b32 %s, 4, %s" % (vr(T1), vr(PI)), T1, [PI])
    vop(g, "v_lshl_add_u32 %s, %s, 16, %s" % (vr(T2), vr(G), vr(T1)), T2, [G, T1])
    if ROT:
        if ROT == 1:
            g.s("s_mov_b32 %s, %s" % (sr(S_XR + 2), sr(S_B)))
        else:
            g.s("s_and_b32 %s, s2, 8" % sr(S_XR + 2))
        g.s("s_lshl_b32 %s, %s, 18" % (sr(S_WI), sr(S_XR + 2)))
        g.s("s_add_u32 %s, %s, %s" % (sr(S_T), sr(S_T), sr(S_WI)))
        g.s("s_and_b32 %s, %s, 14" % (sr(S_XR), sr(S_XR + 2)))
        g.s("s_lshl_b32 %s, %s, 6" % (sr(S_XR), sr(S_XR)))
        g.s("s_and_b32 %s, %s, 1" % (sr(S_XR + 1), sr(S_XR + 2)))
        g.s("s_lshl_b32 %s, %s, 6" % (sr(S_XR + 1), sr(S_XR + 1)))
        g.s("s_cmp_eq_u32 %s, 0" % sr(S_XR + 1))
        g.s("s_cselect_b32 %s, 0x40000, 0xc0000" % sr(S_WI) if False else "s_mov_b32 %s, 0xc0000" % sr(S_WI))
        g.s("s_cmov_b32 %s, 0x40000" % sr(S_WI))
        g.s("s_mov_b32 %s, 0xfffc0000" % sr(S_WI + 1))
        g.s("s_cmov_b32 %s, 0x40000" % sr(S_WI + 1))
    vop(g, "v_add_u32 %s, %s, %s" % (vr(VW), sr(S_T), vr(T2)), VW, [T2])
    g.s("s_lshl_b32 %s, %s, 19" % (sr(S_T), sr(S_HG)))
    g.s("s_add_u32 %s, %s, %s" % (sr(S_T), sr(S_T), sr(S_T + 1)))
    vop(g, "v_and_b32 %s, 1, %s" % (vr(T2), vr(G)), T2, [G])
    vop(g, "v_lshl_add_u32 %s, %s, 12, %s" % (vr(T1), vr(T2), vr(T1)), T1, [T2, T1])
    vop(g, "v_lshrrev_b32 %s, 1, %s" % (vr(T2), vr(G)), T2, [G])
    vop(g, "v_lshl_add_u32 %s, %s, 16, %s" % (vr(T2), vr(T2), vr(T1)), T2, [T2, T1])
    vop(g, "v_add_u32 %s, %s, %s" % (vr(VWO), sr(S_T), vr(T2)), VWO, [T2])
    vop(g, "v_xor_b32 %s, %s, %s" % (vr(T1), vr(Q), vr(G)), T1, [Q, G])
    vop(g, "v_lshlrev_b32 %s, 4, %s" % (vr(T1), vr(T1)), T1, [T1])
    vop(g, "v_lshl_add_u32 %s, %s, 8, %s" % (vr(VKD), vr(G), vr(T1)), VKD, [G, T1])
    vop(g, "v_lshlrev_b32 %s, 2, %s" % (vr(T1), vr(G)), T1, [G])
    vop(g, "v_xor_b32 %s, %s, %s" % (vr(T1), vr(T1), vr(Q)), T1, [T1, Q])
    vop(g, "v_lshlrev_b32 %s, 4, %s" % (vr(T1), vr(T1)), T1, [T1])
    vop(g, "v_lshl_add_u32 %s, %s, 8, %s" % (vr(VKR), vr(Q), vr(T1)), VKR, [Q, T1])
    vop(g, "v_add_u32 %s, %s, %s" % (vr(VKR), sr(S_VL), vr(VKR)), VKR, [VKR])
    for m in range(1, 4):
        vop(g, "v_xor_b32 %s, %d, %s" % (vr(VKD + m), m * 64, vr(VKD)), VKD + m, [VKD])
        vop(g, "v_xor_b32 %s, %d, %s" % (vr(VKR + m), m * 16, vr(VKR)), VKR + m, [VKR])
    vop(g, "v_mov_b32 %s, %s" % (vr(VV), vr(VKD)), VV, [VKD])
    vop(g, "v_mov_b32 %s, %s" % (vr(VK), vr(VKD + 1)), VK, [VKD + 1])
    vop(g, "v_lshrrev_b32 %s, 1, %s" % (vr(T1), vr(Q)), T1, [Q])
    vop(g, "v_xor_b32 %s, %s, %s" % (vr(T1), vr(T1), vr(G)), T1, [T1, G])
    vop(g, "v_lshlrev_b32 %s, 7, %s" % (vr(T2), vr(Q)), T2, [Q])
    vop(g, "v_lshl_add_u32 %s, %s, 4, %s" % (vr(XB), vr(T1), vr(T2)), XB, [T1, T2])
    if ROT:
        vop(g, "v_xor_b32 %s, %s, %s" % (vr(XB), sr(S_XR + 1), vr(XB)), XB, [XB])
    vop(g, "v_xor_b32 %s, 64, %s" % (vr(XB + 1), vr(XB)), XB + 1, [XB])
    vop(g, "v_add_u32 %s, 0xc000, %s" % (vr(XB + 2), vr(XB)), XB + 2, [XB])
    vop(g, "v_add_u32 %s, 0xc000, %s" % (vr(XB + 3), vr(XB + 1)), XB + 3, [XB + 1])
    vop(g, "v_add_u32 %s, %s, %s" % (vr(VOW), sr(S_VL), vr(L16)), VOW, [L16])
    if MAP:
        g.s("s_and_b32 %s, %s, 3" % (sr(S_T), sr(S_B)))
        g.s("s_lshl_b32 %s, %s, 2" % (sr(S_T), sr(S_T)))
    else:
        g.s("s_lshl_b32 %s, %s, 2" % (sr(S_T), sr(S_B)))
    g.s("s_add_u32 %s, %s, s3" % (sr(S_T), sr(S_T)))
    g.s("s_lshl_b32 %s, %s, 16" % (sr(S_T), sr(S_T)))
    g.s("s_lshl_b32 %s, %s, 10" % (sr(S_T + 1), sr(S_HG)))
    g.s("s_add_u32 %s, %s, %s" % (sr(S_T), sr(S_T), sr(S_T + 1)))
    vop(g, "v_lshlrev_b32 %s, 7, %s" % (vr(T1), vr(C8)), T1, [C8])
    vop(g, "v_lshl_add_u32 %s, %s, 13, %s" % (vr(T1), vr(R8), vr(T1)), T1, [R8, T1])
    vop(g, "v_add_u32 %s, %s, %s" % (vr(WTA), sr(S_T), vr(T1)), WTA, [T1])
    g.waitcnt(lg=0)
    make_srd(g, SRD_X, 8, 1572864)
    make_srd(g, SRD_K, 10, 12582912)
    make_srd(g, SRD_V, 12, 12582912)
    make_srd(g, SRD_W, 14, 4194304)
    make_srd(g, SRD_WO, 16, 4194304)
    make_srd(g, SRD_OUT, 4, 16 * 96 * 1024 * 2)
    make_srd(g, SRD_DBG, 6, 256)
    make_srd(g, SRD_WS, 18, WS_BYTES)
    g.s("s_lshl_b32 %s, s3, 13" % sr(S_K2))
    g.s("s_sub_u32 %s, %s, %s" % (sr(S_KD), sr(S_VL), sr(S_K2)))
    g.s("s_lshl_b32 %s, %s, 1" % (sr(S_T), sr(S_B)))
    g.s("s_lshr_b32 %s, s3, 1" % sr(S_T + 1))
    g.s("s_add_u32 %s, %s, %s" % (sr(S_T), sr(S_T), sr(S_T + 1)))
    g.s("s_lshl_b32 %s, %s, 13" % (sr(S_T), sr(S_T)))
    g.s("s_lshl_b32 %s, %s, 10" % (sr(S_T + 1), sr(S_HG)))
    g.s("s_add_u32 %s, %s, %s" % (sr(S_T), sr(S_T), sr(S_T + 1)))
    g.s("s_and_b32 %s, s3, 1" % sr(S_T + 1))
    g.s("s_lshl_b32 %s, %s, 9" % (sr(S_T + 1), sr(S_T + 1)))
    g.s("s_add_u32 %s, %s, %s" % (sr(S_T), sr(S_T), sr(S_T + 1)))
    g.s("s_add_u32 %s, s14, %s" % (sr(S_TB), sr(S_T)))
    g.s("s_addc_u32 %s, s15, 0" % sr(S_TB + 1))
    stamp(g, have=True)
    return g


def tok_ops(g, tok):
    ops = []
    if tok[0] == 'x':
        sp = int(tok[1:])
        for t in range(3):
            if ROT:
                ops.append(lambda t=t: g.s("s_add_u32 %s, %s, %d" % (sr(S_T), sr(S_XR), sp * 128)))
                ops.append(lambda t=t: g.s("s_and_b32 %s, %s, 0x3ff" % (sr(S_T), sr(S_T))))
                ops.append(lambda t=t: g.s("s_add_u32 %s, %s, %s" % (sr(S_T), sr(S_T), sr(S_XS + t))))
            else:
                ops.append(lambda t=t: g.s("s_add_u32 %s, %s, %d" % (sr(S_T), sr(S_XS + t), sp * 128)))
            ops.append(lambda t=t: g.s("s_add_u32 m0, %s, %d" % (sr(S_XM + t), sp * 12288), m0=True))
            ops.append(lambda t=t: g.vload("buffer_load_dwordx4 %s, %s, %s offen lds" % (vr(XA + t), sr(SRD_X, 4), sr(S_T)), "X%d" % sp, addr=[XA + t], lds=True))
    elif tok[0] == 'w':
        ops += w1_loads(g)(int(tok[1:]))
    elif tok == 't':
        ops.append(lambda: g.vload("buffer_load_dword %s, %s, %s, 0 offen" % (vr(TQ + 3), vr(WTA), sr(SRD_W, 4)), "TCH", dst=[TQ + 3], addr=[WTA]))
        for k in range(3 if MAP else 0):
            ops.append(lambda: vop(g, "v_add_u32 %s, 0x100000, %s" % (vr(WTA), vr(WTA)), WTA, [WTA]))
            ops.append(lambda: g.vload("buffer_load_dword %s, %s, %s, 0 offen" % (vr(TQ + 3), vr(WTA), sr(SRD_W, 4)), "TCH", dst=[TQ + 3], addr=[WTA]))
    elif tok[0] == 's':
        st = int(tok[1:])
        ops.append(lambda: g.s("s_mov_b32 %s, %d" % (sr(S_T + 2), st * 262144)))
        for l in range(8 if SM2 else 4):
            def sm(l=l):
                g.s("s_load_dword %s, %s, %s offset:%d" % (sr(S_JUNK), sr(S_TB, 2), sr(S_T + 2), l * (64 if SM2 else 128)))
                g.lgq.append("SM")
            ops.append(sm)
    elif tok == 'T':
        ops += wo_touch(g)
    elif tok == 'Y':
        for srd, so in ((SRD_WS, S_XS + 1), (SRD_WS, S_PB), (SRD_WS, S_PB + 1), (SRD_WS, S_XS + 2), (SRD_OUT, S_OB)):
            ops.append(lambda srd=srd, so=so: g.vload("buffer_load_dword %s, off, %s, %s" % (vr(VW), sr(srd, 4), sr(so)), "TCH", dst=[VW]))
    elif tok[0] == 'Z':
        t = int(tok[1])
        if t == 0:
            for k in range(4):
                ops.append(lambda k=k: vop(g, "v_mov_b32 %s, -1" % vr(ZQ + k), ZQ + k))
        for h in range(2):
            for i in range(4):
                ops.append(lambda h=h, i=i: g.s("s_add_u32 %s, %s, %d" % (sr(S_T + 6), sr(S_PB + h), (i * 3 + t) * 1024)))
                o = lambda: g.vstore("buffer_store_dwordx4 %s, %s, %s, %s offen sc1" % (vr(ZQ, 4), vr(L16), sr(SRD_WS, 4), sr(S_T + 6)),
                                     "POI", data=rng(ZQ, 4), addr=[L16])
                o.is_load = True
                ops.append(o)
    elif tok[0] == 'K':
        ops += k_dma(g, int(tok[1]), int(tok[3]))
    elif tok[0] == 'R':
        ops += k_read(g, int(tok[1]), int(tok[3]))
    elif tok[0] == 'V' and len(tok) == 4:
        assert VL[int(tok[1])] == int(tok[3])
        ops += v_dma(g, int(tok[1]), int(tok[3]))
    elif tok[0] == 'V':
        vl = v_loads(g, int(tok[1]))
        ops += vl if len(tok) == 2 else vl[:5] if tok[2] == 'a' else vl[5:]
    else:
        raise ValueError(tok)
    return mark(ops)


def part1(g, cl):
    for tok in cl["P"]:
        run(tok_ops(g, tok))
    g.wait_vm(["X%d" % k for k in range(XBAR[0] + 1)])
    g.barrier()
    stamp(g)
    run(b1_reads(g)(0))

    def tail(u):
        return q_conv(g, u) if u < 2 else []
    assert max(XBAR) >= 6
    pend, rest = gemm1(g, cl, b1_reads(g), tail)
    run(pend)
    stamp(g)
    g.s("s_lshl_b32 %s, s3, 13" % sr(S_T))
    vop(g, "v_add_u32 %s, %s, %s" % (vr(VOW2), sr(S_T), vr(L16)), VOW2, [L16])
    run(rest)
    stamp(g)
    g.nop(8)


S_FS, S_OB = 69, 93


def job_setup(g, A):
    A(lambda: g.s("s_lshl_b32 %s, %s, 2" % (sr(S_T), sr(S_GRP))))
    A(lambda: g.s("s_lshr_b32 %s, %s, 1" % (sr(S_T + 1), sr(S_RO))))
    A(lambda: g.s("s_add_u32 %s, %s, %s" % (sr(S_T + 1), sr(S_T + 1), sr(S_T))))
    A(lambda: g.s("s_lshl_b32 %s, %s, 7" % (sr(S_T + 1), sr(S_T + 1))))
    A(lambda: g.s("s_add_u32 %s, %s, %d" % (sr(S_XS + 1), sr(S_T + 1), FLG)))
    A(lambda: g.s("s_lshl_b32 %s, %s, 3" % (sr(S_T), sr(S_GRP))))
    A(lambda: g.s("s_add_u32 %s, %s, %s" % (sr(S_T), sr(S_T), sr(S_RO))))
    A(lambda: g.s("s_mul_i32 %s, %s, 96" % (sr(S_T), sr(S_T))))
    A(lambda: g.s("s_mul_i32 %s, %s, 3" % (sr(S_T + 1), sr(S_RR))))
    A(lambda: g.s("s_add_u32 %s, %s, %s" % (sr(S_T), sr(S_T), sr(S_T + 1))))
    A(lambda: g.s("s_lshl_b32 %s, %s, 10" % (sr(S_XS + 2), sr(S_T))))
    A(lambda: g.s("s_mul_i32 %s, %s, %d" % (sr(S_OB), sr(S_B), 96 * 2048)))
    A(lambda: g.s("s_lshl_b32 %s, %s, 10" % (sr(S_T), sr(S_BLK))))
    A(lambda: g.s("s_add_u32 %s, %s, %s" % (sr(S_OB), sr(S_OB), sr(S_T))))
    A(lambda: g.s("s_lshr_b32 %s, %s, 1" % (sr(S_T), sr(S_RO))))
    A(lambda: g.s("s_lshl_b32 %s, %s, 8" % (sr(S_T), sr(S_T))))
    A(lambda: g.s("s_add_u32 %s, %s, %s" % (sr(S_OB), sr(S_OB), sr(S_T))))
    A(lambda: g.s("s_lshl_b32 %s, %s, 4" % (sr(S_T), sr(S_RR))))
    A(lambda: g.s("s_add_u32 %s, %s, %s" % (sr(S_OB), sr(S_OB), sr(S_T))))
    A(lambda: g.s("s_and_b32 %s, %s, 1" % (sr(S_T), sr(S_RO))))
    A(lambda: g.s("s_lshl_b32 %s, %s, 15" % (sr(S_T), sr(S_T))))
    A(lambda: g.s("s_add_u32 %s, %s, %s" % (sr(S_OB), sr(S_OB), sr(S_T))))


def part2(g):
    g.s("s_memrealtime %s" % sr(S_T + 4, 2))
    NV = 238
    g.s("s_lshl_b32 %s, %s, 2" % (sr(S_T + 3), sr(S_GRP)))
    lq = list(g.lgq)
    g.waitcnt(lg=0)
    g.lgq = []
    g.s("s_or_b32 %s, %s, 1" % (sr(S_NONCE), sr(S_T + 4)))
    vop(g, "v_mov_b32 %s, %s" % (vr(NV), sr(S_NONCE)), NV)
    vop(g, "v_mov_b32 %s, 0" % vr(NV + 1), NV + 1)
    g.s("s_mov_b64 exec, %s" % sr(S_W0, 2))
    g.vload("buffer_atomic_cmpswap %s, off, %s, %s sc0 sc1" % (vr(NV, 2), sr(SRD_DBG, 4), sr(S_T + 3)), "NONCE", dst=[NV], addr=[NV, NV + 1])
    g.s("s_mov_b64 exec, -1")
    g.s("s_lshl_b32 %s, %s, 3" % (sr(S_PB), sr(S_GRP)))
    g.s("s_lshl_b32 %s, s3, 1" % sr(S_PB + 1))
    g.s("s_add_u32 %s, %s, %s" % (sr(S_PB), sr(S_PB), sr(S_PB + 1)))
    g.s("s_lshl_b32 %s, %s, 3" % (sr(S_PB), sr(S_PB)))
    g.s("s_add_u32 %s, %s, %s" % (sr(S_PB), sr(S_PB), sr(S_HG)))
    g.s("s_mul_i32 %s, %s, 12288" % (sr(S_PB), sr(S_PB)))
    g.s("s_add_u32 %s, %s, %d" % (sr(S_PB + 1), sr(S_PB), 8 * 12288))
    g.s("s_lshl_b32 %s, %s, 2" % (sr(S_XS), sr(S_GRP)))
    g.s("s_add_u32 %s, %s, s3" % (sr(S_XS), sr(S_XS)))
    g.s("s_lshl_b32 %s, %s, 7" % (sr(S_XS), sr(S_XS)))
    g.s("s_add_u32 %s, %s, %d" % (sr(S_XS), sr(S_XS), FLG))
    g.s("s_lshl_b32 %s, %s, 3" % (sr(S_FS), sr(S_HG)))
    g.s("s_add_u32 %s, %s, %s" % (sr(S_FS), sr(S_FS), sr(S_XS)))
    g.s("s_mov_b32 %s, %s" % (sr(S_RO), sr(S_HG)))
    g.s("s_mov_b32 %s, s3" % sr(S_RR))
    job_setup(g, lambda o: o())
    for k in range(4):
        vop(g, "v_mov_b32 %s, 0x3f803f80" % vr(ONES + k), ONES + k)

    def vt(pp, j):
        return KF + (pp * 8 + j) * 4
    VA = 0

    def tr_addr():
        ops = []
        V = lambda text, d, src=(): ops.append(lambda: vop(g, text, d, src))
        a, b = VA + 8, VA + 9
        V("v_lshrrev_b32 %s, 6, %s" % (vr(a), vr(L16)), a, [L16])
        V("v_and_b32 %s, 7, %s" % (vr(b), vr(a)), b, [a])
        V("v_lshlrev_b32 %s, 4, %s" % (vr(b), vr(b)), b, [b])
        V("v_lshl_add_u32 %s, %s, 8, %s" % (vr(VA), vr(a), vr(b)), VA, [a, b])
        V("v_and_b32 %s, 32, %s" % (vr(a), vr(L16)), a, [L16])
        V("v_lshl_add_u32 %s, %s, 2, %s" % (vr(VA), vr(a), vr(VA)), VA, [a, VA])
        V("v_and_b32 %s, 16, %s" % (vr(a), vr(L16)), a, [L16])
        V("v_lshrrev_b32 %s, 1, %s" % (vr(a), vr(a)), a, [a])
        V("v_add_u32 %s, %s, %s" % (vr(VA), vr(a), vr(VA)), VA, [a, VA])
        V("v_add_u32 %s, %s, %s" % (vr(VA + 8), sr(S_K2), vr(VA)), VA + 8, [VA])
        V("v_add_u32 %s, %s, %s" % (vr(VA), sr(S_VL), vr(VA)), VA, [VA])
        for j in range(1, 8):
            V("v_xor_b32 %s, %d, %s" % (vr(VA + j), j * 16, vr(VA)), VA + j, [VA])
            V("v_xor_b32 %s, %d, %s" % (vr(VA + 8 + j), j * 16, vr(VA + 8)), VA + 8 + j, [VA + 8])
        return ops

    def tr_reads(pp, js):
        ops = []
        for j in js:
            for h in range(2):
                d = vt(pp, j) + 2 * h
                a, off = (VA + j, VL[pp] * 8192 + h * 4096) if VL[pp] < 2 else (VA + 8 + j, L_V2 + h * 4096)
                ops.append(lambda d=d, a=a, off=off: g.dsread("ds_read_b64_tr_b16 %s, %s offset:%d" % (vr(d, 2), vr(a), off), "V%d" % pp, dst=rng(d, 2), addr=[a]))
        return ops
    OAC = [16 + 0, 96, 64, 96, 64, 96]

    def oacc(u, j):
        return OAC[u] + j * 4

    def pv_main(u, pmajor=False):
        ix = [(pp, j) for pp in range(3) for j in range(8)] if pmajor else [(pp, j) for j in range(8) for pp in range(3)]
        return [(lambda pp=pp, j=j: g.mfma(oacc(u, j), vt(pp, j), pfrag(u, pp), None if pp == 0 else oacc(u, j))) for pp, j in ix]

    def o_conv(u):
        ops = []
        r = TQ + 2
        ops.append(lambda: g.valu("v_accvgpr_read_b32 %s, %s" % (vr(r), vr(psum(u))), dst=[r], src=[psum(u)]))
        ops.append(lambda: g.valu("v_rcp_f32 %s, %s" % (vr(r), vr(r)), dst=[r], src=[r], trans=True))
        for i in range(4):
            d = PT_O + (i % 2) * 4
            for k in range(8):
                a = oacc(u, 2 * i) + k
                ops.append(lambda a=a: g.valu("v_mul_f32 %s, %s, %s" % (vr(a), vr(a), vr(r)), dst=[a], src=[a, r]))
            for m in range(4):
                a = oacc(u, 2 * i) + 2 * m
                ops.append(lambda d=d + m, a=a: g.valu("v_cvt_pk_bf16_f32 %s, %s, %s" % (vr(d), vr(a), vr(a + 1)), dst=[d], src=[a, a + 1]))
            n = i * 6 + u
            a, off = (VOW, n * 1024) if n < 16 else (VOW2, (n - 16) * 1024)
            ops.append(lambda d=d, a=a, off=off: g.dswrite("ds_write_b128 %s, %s offset:%d" % (vr(a), vr(d, 4), off), "OW", data=rng(d, 4), addr=[a]))
            if E("EXP3", 0):
                fl = ["", "", " sc1", " nt", " sc0"][E("EXP3", 0)]
                ops.append(lambda n=n: g.s("s_add_u32 %s, s7, %d" % (sr(S_T + 6), n * 1024)))
                ops.append(lambda d=d, fl=fl: g.vstore("buffer_store_dwordx4 %s, %s, %s, %s offen%s" % (vr(d, 4), vr(L16), sr(SRD_WS, 4), sr(S_T + 6), fl), "OS", data=rng(d, 4), addr=[L16]))
        return ops
    if E("EXP3", 0):
        g.s("s_lshl_b32 s7, s2, 2")
        g.s("s_add_u32 s7, s7, s3")
        g.s("s_mul_i32 s7, s7, 24576")
        g.s("s_add_u32 s7, s7, %d" % (32 * 1024 * 1024))
    PT_O = 228
    wl2 = w2_loads(g)

    def spread(fill, pre):
        if not pre:
            return fill
        k = max(1, len(fill) // len(pre))
        nf = []
        for i, f in enumerate(fill):
            if i % k == 0 and pre:
                nf.append(pre.pop(0))
            nf.append(f)
        return nf + pre
    for u in range(6):
        main = [(lambda kt=kt, i=i, u=u: g.mfma(sacc(u, kt), KF + (kt * 4 + i) * 4, QF + (u % 2) * 16 + i * 4, None if i == 0 else sacc(u, kt)))
                for kt in range(6) for i in range(4)]
        fill = []
        if u >= 1:
            fill += softmax_ops(g, u - 1)
        if 2 <= u + 1 <= 5:
            fill += q_conv(g, u + 1)
        if u == 4:
            fill += tr_addr()
        pre = []
        for tok in POST.get(u, []):
            pre += tok_ops(g, tok)
        fill = spread(fill, pre)
        if STAMP == 4 and u > 0:
            stamp(g)
        if u < 5:
            merge(main, fill)
        else:
            n3 = (len(fill) + 2) // 3
            merge(main[:8], fill[:n3])
            if STAMP == 4:
                stamp(g)
            g.wait_vm(["VD"])
            if STAMP == 4:
                stamp(g)
            merge(main[8:16], spread(fill[n3:2 * n3], tr_reads(0, range(8))))
            merge(main[16:], spread(fill[2 * n3:], tr_reads(1, range(8))))
    stamp(g)
    sm5 = softmax_ops(g, 5)
    pv0 = pv_main(0, True)
    n3 = (len(sm5) + 2) // 3
    run(tr_reads(2, range(4)))
    g.wait_lg("V0")
    merge(pv0[:8], spread(sm5[:n3], tr_reads(2, range(4, 8))))
    g.wait_lg("V1")
    merge(pv0[8:16], sm5[n3:2 * n3])
    g.wait_lg("V2")
    merge(pv0[16:], sm5[2 * n3:])
    stamp(g)
    vop(g, "v_mov_b32 %s, %d" % (vr(TQ + 1), L_MISC), TQ + 1)
    for u in range(1, 6):
        fill = o_conv(u - 1)
        if u == 2:
            fill = spread(fill, wl2(0))
        if u == 3:
            fill = spread(fill, wl2(1))
        merge(pv_main(u), fill)
        if STAMP == 4:
            stamp(g)
    g.wait_vm("NONCE")
    g.valu("v_readfirstlane_b32 %s, %s" % (sr(S_T), vr(NV)), src=[NV], readlane=True, sdst=[S_T])
    g.s("s_cmp_eq_u32 %s, 0" % sr(S_T))
    g.s("s_cselect_b32 %s, %s, %s" % (sr(S_T), sr(S_NONCE), sr(S_T)))
    vop(g, "v_mov_b32 %s, %s" % (vr(TQ), sr(S_T)), TQ)
    g.s("s_mov_b64 exec, %s" % sr(S_W0, 2))
    g.dswrite("ds_write_b32 %s, %s offset:4" % (vr(TQ + 1), vr(TQ)), "OW", data=[TQ], addr=[TQ + 1])
    if SELF:
        g.dswrite("ds_write_b32 %s, %s offset:8" % (vr(TQ + 1), vr(NV + 1)), "OW", data=[NV + 1], addr=[TQ + 1])
    g.s("s_mov_b64 exec, -1")
    run(o_conv(5))
    g.waitcnt(lg=0)
    g.lgq = []
    stamp(g)
    g.barrier()
    stamp(g)
    g.dsread("ds_read_b32 %s, %s offset:4" % (vr(NV), vr(TQ + 1)), "NN", dst=[NV], addr=[TQ + 1])
    run(b2_reads(g)(0))
    g.wait_lg("NN")
    g.valu("v_readfirstlane_b32 %s, %s" % (sr(S_NONCE), vr(NV)), src=[NV], readlane=True, sdst=[S_NONCE])
    cnt = [0]
    AC, VO, VF, F0, PL, PP = 224, 230, 231, 232, 234, 242
    S_CL = S_TYPE

    def tail(n):
        u = n
        ops = []
        for i in range(4):
            d = (raw2(15, 0) if UM == 6 else 96) + (cnt[0] % 8) * 4
            cnt[0] += 1
            for m in range(4):
                a, b = acc2(2 * m, u) + i, acc2(2 * m + 1, u) + i
                t0, t1 = TQ + (m % 2) * 2, TQ + (m % 2) * 2 + 1
                ops.append(lambda t=t0, s=a: g.valu("v_accvgpr_read_b32 %s, %s" % (vr(t), vr(s)), dst=[t], src=[s]))
                ops.append(lambda t=t1, s=b: g.valu("v_accvgpr_read_b32 %s, %s" % (vr(t), vr(s)), dst=[t], src=[s]))
                ops.append(lambda d=d + m, a=t0, b=t1: g.valu("v_cvt_pk_bf16_f32 %s, %s, %s" % (vr(d), vr(a), vr(b)), dst=[d], src=[a, b]))
                if not E("NOFAST", 1):
                    ops.append(lambda d=d + m: g.valu("v_min_u32 %s, -2, %s" % (vr(d), vr(d)), dst=[d], src=[d]))
            p = i * 3 + (n >> 1)
            if (EXP or E("EXP2", 0)) and i >= 2:
                continue
            ops.append(lambda p=p: g.s("s_add_u32 %s, %s, %d" % (sr(S_T + 6), sr(S_PB + (n & 1)), p * 1024)))
            def pst(d=d, p=p):
                if SELF:
                    g.s("s_mov_b64 exec, %s" % sr(S_SM + 2 * (n & 1), 2))
                g.vstore("buffer_store_dwordx4 %s, %s, %s, %s offen%s" % (vr(d, 4), vr(L16), sr(SRD_WS, 4), sr(S_T + 6), DF), "PS", data=rng(d, 4), addr=[L16])
                if SELF:
                    g.s("s_not_b64 exec, exec")
                    g.dswrite("ds_write_b128 %s, %s offset:%d" % (vr(L16), vr(d, 4), L_SELF + p * 1024), "SW", data=rng(d, 4), addr=[L16])
                    g.s("s_mov_b64 exec, -1")
            ops.append(pst)
        if n == 0:
            TL0[:] = ops
        return ops

    def flag_store(soff, tag):
        g.s("s_mov_b64 exec, 1")
        g.vstore("buffer_store_dwordx2 %s, off, %s, %s sc1" % (vr(F0, 2), sr(SRD_WS, 4), sr(soff)), tag, data=[F0, F0 + 1])
        g.s("s_mov_b64 exec, -1")

    def setup_ops():
        ops = []
        A = ops.append
        A(lambda: g.s("s_xor_b32 %s, %s, 0x%x" % (sr(S_T), sr(S_NONCE), FC)))
        A(lambda: vop(g, "v_mov_b32 %s, %s" % (vr(F0), sr(S_NONCE)), F0))
        A(lambda: vop(g, "v_mov_b32 %s, %s" % (vr(F0 + 1), sr(S_T)), F0 + 1))
        LN, Q, G_, X1, X2, X3 = 112, 113, 114, 115, 116, 117
        V = lambda text, d, src=(): A(lambda: vop(g, text, d, src))
        V("v_lshrrev_b32 %s, 4, %s" % (vr(LN), vr(L16)), LN, [L16])
        V("v_and_b32 %s, 15, %s" % (vr(Q), vr(LN)), Q, [LN])
        V("v_lshrrev_b32 %s, 4, %s" % (vr(G_), vr(LN)), G_, [LN])
        V("v_lshrrev_b32 %s, 2, %s" % (vr(X1), vr(Q)), X1, [Q])
        V("v_and_b32 %s, 1, %s" % (vr(X2), vr(Q)), X2, [Q])
        V("v_lshlrev_b32 %s, 4, %s" % (vr(X2), vr(X2)), X2, [X2])
        V("v_mov_b32 %s, 0x3f80" % vr(X3), X3)
        V("v_lshlrev_b32 %s, %s, %s" % (vr(X3), vr(X2), vr(X3)), X3, [X2, X3])
        A(lambda: g.valu("v_cmp_eq_u32 vcc, %s, %s" % (vr(X1), vr(G_)), src=[X1, G_]))
        A(lambda: g.nop(2))
        V("v_cndmask_b32 %s, 0, %s, vcc" % (vr(X3), vr(X3)), X3, [X3])
        V("v_and_b32 %s, 2, %s" % (vr(X2), vr(Q)), X2, [Q])
        A(lambda: g.valu("v_cmp_eq_u32 vcc, 0, %s" % vr(X2), src=[X2]))
        for k in (0, 1, 4, 5):
            V("v_mov_b32 %s, 0" % vr(AC + k), AC + k)
        V("v_cndmask_b32 %s, 0, %s, vcc" % (vr(AC + 2), vr(X3)), AC + 2, [X3])
        V("v_cndmask_b32 %s, %s, 0, vcc" % (vr(AC + 3), vr(X3)), AC + 3, [X3])
        V("v_lshlrev_b32 %s, 6, %s" % (vr(VO), vr(G_)), VO, [G_])
        V("v_lshl_add_u32 %s, %s, 11, %s" % (vr(VO), vr(Q), vr(VO)), VO, [Q, VO])
        V("v_lshrrev_b32 %s, 1, %s" % (vr(VF), vr(L16)), VF, [L16])
        if SELF:
            A(lambda: g.s("s_mul_i32 %s, s3, 3072" % sr(S_T)))
            V("v_add_u32 %s, %s, %s" % (vr(PP), sr(S_T), vr(L16)), PP, [L16])
            V("v_mov_b32 %s, %d" % (vr(PP + 1), L_MISC), PP + 1)

            def masks():
                for h in range(2):
                    g.s("s_lshl_b32 %s, s3, 1" % sr(S_T))
                    g.s("s_add_u32 %s, %s, %d" % (sr(S_T), sr(S_T), h))
                    g.s("s_cmp_lg_u32 %s, %s" % (sr(S_T), sr(S_HG)))
                    g.s("s_cselect_b64 %s, -1, 0" % sr(S_SM + 2 * h, 2))
                g.s("s_lshr_b32 %s, %s, 1" % (sr(S_T), sr(S_HG)))
                g.s("s_cmp_eq_u32 %s, s3" % sr(S_T))
                g.s("s_cselect_b64 %s, 1, 0" % sr(S_SP, 2))
            A(masks)
        A(lambda: g.s("s_mov_b32 %s, 0" % sr(S_PHASE)))
        A(lambda: g.s("s_mov_b32 %s, 0" % sr(S_PEND)))
        A(lambda: g.s("s_mov_b32 %s, 0" % sr(S_CNT)))
        return ops

    def extra(s):
        ops = []
        if EXP and EXS <= s < EXS + 6:
            n = s - EXS
            for i in (2, 3):
                p = i * 3 + (n >> 1)
                def st(p=p, n=n):
                    g.s("s_add_u32 %s, %s, %d" % (sr(S_T + 6), sr(S_PB + (n & 1)), p * 1024))
                    g.vstore("buffer_store_dwordx4 %s, %s, %s, %s offen sc1" % (vr(A0 + 240, 4), vr(L16), sr(SRD_WS, 4), sr(S_T + 6)), "PS", data=rng(A0 + 240, 4), addr=[L16])
                ops.append(st)
        if EXP and s == EXL:
            for k in range(12):
                def ld(k=k):
                    d = A0 + 244 + (k % 3) * 4
                    g.s("s_add_u32 %s, %s, %d" % (sr(S_T), sr(S_XS + 2), (k & 7) * 12288 + (k >> 3) * 1024))
                    g.vload("buffer_load_dwordx4 %s, %s, %s, %s offen sc1" % (vr(d, 4), vr(L16), sr(SRD_WS, 4), sr(S_T)), "RX", dst=rng(d, 4), addr=[L16])
                ops.append(ld)
        if s == 0:
            ops.append(lambda: g.wait_vm("POI"))
            ops += setup_ops()
        if s == PFS and not E("NOFAST", 1):
            def pf():
                g.wait_vm("POI")
                g.s("s_add_u32 %s, %s, %d" % (sr(S_T), sr(S_FS), FLGP - FLG))
                flag_store(S_T, "PF")
            ops.append(pf)
        if s == PPS and not E("NOFAST", 1):
            def pp():
                g.s("s_add_u32 %s, %s, %d" % (sr(S_T), sr(S_XS + 1), FLGP - FLG))
                g.vload("buffer_load_dwordx2 %s, %s, %s, %s offen sc1" % (vr(PP, 2), vr(VF), sr(SRD_WS, 4), sr(S_T)), "PP", dst=[PP, PP + 1], addr=[VF])
            ops.append(pp)
        return ops
    (gemm2u if UM == 6 else gemm2)(g, wl2, b2_reads(g), tail, extra)
    stamp(g)
    LDT = [KF, KF + 32, 0]
    RD = 32
    OQ = 64

    def r_loads(t):
        for src in range(8):
            if EXP and (t == 0 or (t == 1 and src < 4)):
                continue
            d = LDT[t] + src * 4
            g.s("s_add_u32 %s, %s, %d" % (sr(S_T), sr(S_XS + 2), src * 12288 + t * 1024))
            g.vload("buffer_load_dwordx4 %s, %s, %s, %s offen sc1" % (vr(d, 4), vr(L16), sr(SRD_WS, 4), sr(S_T)), "R%d" % t, dst=rng(d, 4), addr=[L16])

    def r_sum(t):
        for src in range(8):
            d = LDT[t] + src * 4
            for h in range(2):
                r = RD + (t * 2 + h) * 4
                g.mfma(r, AC + 2 - 2 * h, d, None if src == 0 else r)

    def r_out(t):
        o = OQ + t * 4
        for h in range(2):
            r = RD + (t * 2 + h) * 4
            for k in range(2):
                g.valu("v_cvt_pk_bf16_f32 %s, %s, %s" % (vr(o + h * 2 + k), vr(r + 2 * k), vr(r + 2 * k + 1)), dst=[o + h * 2 + k], src=[r + 2 * k, r + 2 * k + 1])
        g.s("s_add_u32 %s, %s, %d" % (sr(S_T + 3), sr(S_OB), t * 65536))
        g.vstore("buffer_store_dwordx4 %s, %s, %s, %s offen%s" % (vr(o, 4), vr(VO), sr(SRD_OUT, 4), sr(S_T + 3), os.environ.get("OUTF", "")), "OUT", data=rng(o, 4), addr=[VO])

    def r_check(t):
        m = [TQ, TQ + 1]
        b = LDT[t]
        for c in range(2):
            g.valu("v_max3_u32 %s, %s, %s, %s" % (vr(m[c]), vr(b + 16 * c), vr(b + 16 * c + 1), vr(b + 16 * c + 2)), dst=[m[c]], src=rng(b + 16 * c, 3))
        for k in range(3, 15, 2):
            for c in range(2):
                x = b + 16 * c + k
                g.valu("v_max3_u32 %s, %s, %s, %s" % (vr(m[c]), vr(m[c]), vr(x), vr(x + 1)), dst=[m[c]], src=[m[c], x, x + 1])
        g.valu("v_max3_u32 %s, %s, %s, %s" % (vr(m[0]), vr(m[0]), vr(b + 15), vr(b + 31)), dst=[m[0]], src=[m[0], b + 15, b + 31])
        g.valu("v_max_u32 %s, %s, %s" % (vr(m[0]), vr(m[0]), vr(m[1])), dst=[m[0]], src=m)
        g.valu("v_cmp_eq_u32 vcc, -1, %s" % vr(m[0]), src=[m[0]])
        g.nop(1)
        g.s("s_cbranch_vccnz retry%d" % t)

    def flags_ok(pl):
        g.valu("v_cmp_eq_u32 vcc, %s, %s" % (vr(pl), vr(F0)), src=[pl, F0])
        g.valu("v_cmp_eq_u32 %s, %s, %s" % (sr(S_M, 2), vr(pl + 1), vr(F0 + 1)), src=[pl + 1, F0 + 1])
        g.s("s_mov_b64 exec, -1")
        g.s("s_and_b32 %s, %s, vcc_lo" % (sr(S_M), sr(S_M)))
        g.s("s_and_b32 %s, %s, 0xff" % (sr(S_M + 1), sr(S_M)))
        g.s("s_cmp_eq_u32 %s, 0xff" % sr(S_M + 1))

    NOFAST = E("NOFAST", 1)
    if not NOFAST:
        r_loads(0)
        r_loads(1)
        if T2POS == 0:
            r_loads(2)
        g.wait_vm("PP")
        flags_ok(PP)
        if FORCE_AB & 512:
            g.s("s_bitcmp1_b32 s2, 4")
        g.s("s_cbranch_scc0 slow")
        if FORCE_AB & 255:
            g.s("s_and_b32 %s, s2, %d" % (sr(S_T), FORCE_AB & 255))
            g.s("s_cmp_eq_u32 %s, 0" % sr(S_T))
            g.s("s_cbranch_scc1 slow")
        if FORCE_AB & 256:
            g.s("s_branch slow")
        g.wait_vm("R0")
        flag_store(S_FS, "FS")
        stamp(g)
        for t in range(3):
            g.wait_vm("R%d" % t)
            g.label("chk%d" % t)
            g.nop(1)
            r_check(t)
            if t == 0 and T2POS == 1:
                r_loads(2)
            r_sum(t)
            if t == 0 and T2POS == 2:
                r_loads(2)
            if t == 2:
                stamp(g)
            r_out(t)
        stamp(g)
        stamp_flush(g)
        g.s("s_branch after")
        for t in range(3):
            g.label("retry%d" % t)
            g.vmq = []
            r_loads(t)
            g.s("s_add_u32 %s, %s, 1" % (sr(S_CNT), sr(S_CNT)))
            g.s("s_cmp_lt_u32 %s, %d" % (sr(S_CNT), RETRY))
            g.waitcnt(vm=0)
            g.vmq = []
            g.s("s_cbranch_scc1 chk%d" % t)
            if t < 2:
                g.s("s_branch slow")
    S_DONE, S_ACC, S_NEW = S_CNT, S_T + 6, S_T + 7

    def poll_load(soff):
        if E("PX", 1):
            g.s("s_mov_b64 exec, 0xffff")
        g.vload("buffer_load_dwordx2 %s, %s, %s, %s offen sc1" % (vr(PL, 2), vr(VF), sr(SRD_WS, 4), sr(soff)), "PL", dst=[PL, PL + 1], addr=[VF])

    def poll(soff):
        poll_load(soff)
        g.waitcnt(vm=0)
        g.vmq = []
        flags_ok(PL)

    def elapsed():
        g.s("s_memrealtime %s" % sr(S_T + 4, 2))
        g.waitcnt(lg=0)
        g.s("s_sub_u32 %s, %s, %s" % (sr(S_T + 4), sr(S_T + 4), sr(S_NONCE)))

    def job_init():
        for k in range(24):
            vop(g, "v_mov_b32 %s, 0" % vr(RD + k), RD + k)
        g.s("s_mov_b32 %s, 0" % sr(S_DONE))
        g.s("s_mov_b32 %s, 0" % sr(S_ACC))
    g.label("slow")
    if STAMP == 5:
        g.s("s_mov_b32 m0, 12")
        g.s("s_mov_b64 exec, 0xfffff000")
        vop(g, "v_mov_b32 %s, 0" % vr(SV), SV)
        vop(g, "v_mov_b32 %s, 0" % vr(SV + 1), SV + 1)
        g.s("s_mov_b64 exec, -1")
    SF = 96
    if SELF:
        g.s("s_mov_b64 exec, %s" % sr(S_SP, 2))
        g.dswrite("ds_write_b32 %s, %s offset:8" % (vr(PP + 1), vr(F0)), "SW", data=[F0], addr=[PP + 1])
        g.s("s_mov_b64 exec, -1")
        g.s("s_lshl_b32 %s, 1, %s" % (sr(S_DONE), sr(S_HG)))
        g.s("s_mov_b32 %s, 0" % sr(S_ACC))
    else:
        job_init()
    g.waitcnt(vm=0)
    g.vmq = []
    flag_store(S_FS, "FS")
    if NOFAST:
        stamp(g)
    if SELF:
        poll_load(S_XS + 1)
        g.s("s_mov_b64 exec, -1")
        g.label("selfw")
        g.dsread("ds_read_b32 %s, %s offset:8" % (vr(TQ), vr(PP + 1)), "SR", dst=[TQ], addr=[PP + 1])
        for t in range(3):
            g.dsread("ds_read_b128 %s, %s offset:%d" % (vr(SF + t * 4, 4), vr(PP), L_SELF + t * 1024), "SR", dst=rng(SF + t * 4, 4), addr=[PP])
        g.waitcnt(lg=0)
        g.lgq = []
        g.valu("v_readfirstlane_b32 %s, %s" % (sr(S_T), vr(TQ)), src=[TQ], readlane=True, sdst=[S_T])
        g.s("s_cmp_eq_u32 %s, %s" % (sr(S_T), sr(S_NONCE)))
        g.s("s_cbranch_scc0 selfw")
        for t in range(3):
            for h in range(2):
                g.mfma(RD + (t * 2 + h) * 4, AC + 2 - 2 * h, SF + t * 4, None)
        g.waitcnt(vm=0)
        g.vmq = []
    if FORCE_AB & 255:
        g.s("s_and_b32 %s, s2, %d" % (sr(S_T), FORCE_AB & 255))
        g.s("s_cmp_eq_u32 %s, 0" % sr(S_T))
        g.s("s_cbranch_scc1 giveup")
    if FORCE_AB & 256:
        g.s("s_branch giveup")
    g.s("s_branch %s" % ("process" if SELF else "poll"))
    g.label("job")
    job_setup(g, lambda o: o())
    job_init()
    g.label("poll")
    poll_load(S_XS + 1)
    g.waitcnt(vm=0)
    g.vmq = []
    g.label("process")
    flags_ok(PL)
    if STAMP == 5:
        g.s("s_memrealtime %s" % sr(S_ST, 2))
        g.waitcnt(lg=0)
        g.valu("v_writelane_b32 %s, %s, m0" % (vr(SV), sr(S_ST)), dst=[SV])
        g.valu("v_writelane_b32 %s, %s, m0" % (vr(SV + 1), sr(S_M + 1)), dst=[SV + 1])
        g.s("s_add_u32 m0, m0, 1")
        g.s("s_min_u32 m0, m0, 31")
    g.s("s_andn2_b32 %s, %s, %s" % (sr(S_NEW), sr(S_M + 1), sr(S_DONE)))
    g.s("s_cbranch_scc0 noload")
    for src in range(8):
        g.s("s_bitcmp1_b32 %s, %d" % (sr(S_NEW), src))
        g.s("s_cbranch_scc0 nold%d" % src)
        g.s("s_add_u32 %s, %s, %d" % (sr(S_T), sr(S_XS + 2), src * 12288))
        for t in range(3):
            if E("EXP2", 0) and (src & 1):
                continue
            d = LDT[t] + src * 4
            g.vload("buffer_load_dwordx4 %s, %s, %s, %s offen offset:%d%s" % (vr(d, 4), vr(L16), sr(SRD_WS, 4), sr(S_T), t * 1024, DFL), "R", dst=rng(d, 4), addr=[L16])
        g.label("nold%d" % src)
    g.vmq = []
    g.label("noload")
    g.s("s_cmp_eq_u32 %s, 0" % sr(S_ACC))
    g.s("s_cbranch_scc1 noacc")
    for src in range(8):
        g.s("s_bitcmp1_b32 %s, %d" % (sr(S_ACC), src))
        g.s("s_cbranch_scc0 noac%d" % src)
        for t in range(3):
            for h in range(2):
                r = RD + (t * 2 + h) * 4
                g.mfma(r, AC + 2 - 2 * h, LDT[t] + src * 4, r)
        g.label("noac%d" % src)
    g.label("noacc")
    g.s("s_or_b32 %s, %s, %s" % (sr(S_DONE), sr(S_DONE), sr(S_NEW)))
    g.s("s_mov_b32 %s, %s" % (sr(S_ACC), sr(S_NEW)))
    g.s("s_cmp_lg_u32 %s, 0xff" % sr(S_DONE))
    g.s("s_cbranch_scc1 more")
    g.s("s_cmp_eq_u32 %s, 0" % sr(S_ACC))
    g.s("s_cbranch_scc1 finish")
    if NOFAST:
        stamp(g)
    g.waitcnt(vm=0)
    g.s("s_mov_b32 %s, 0" % sr(S_NEW))
    g.s("s_branch noload")
    g.label("more")
    g.s("s_cmp_lg_u32 %s, 0" % sr(S_NEW))
    g.s("s_cbranch_scc1 poll")
    g.s("s_sleep %d" % SLEEP)
    elapsed()
    g.s("s_cmp_lt_i32 %s, %d" % (sr(S_T + 4), X_AB))
    g.s("s_cbranch_scc1 poll")
    g.label("giveup")
    if SELF:
        g.s("s_cmp_lg_u32 %s, 0" % sr(S_PHASE))
        g.s("s_cbranch_scc1 giveup2")
        g.s("s_mul_i32 %s, %s, 12288" % (sr(S_T), sr(S_HG)))
        g.s("s_add_u32 %s, %s, %s" % (sr(S_T), sr(S_T), sr(S_XS + 2)))
        for t in range(3):
            g.vstore("buffer_store_dwordx4 %s, %s, %s, %s offen offset:%d sc1" % (vr(SF + t * 4, 4), vr(L16), sr(SRD_WS, 4), sr(S_T), t * 1024), "PS", data=rng(SF + t * 4, 4), addr=[L16])
        g.waitcnt(vm=0)
        g.vmq = []
        g.label("giveup2")
    g.s("s_and_b32 %s, %s, 1" % (sr(S_T), sr(S_RO)))
    g.s("s_lshl_b32 %s, %s, 2" % (sr(S_T), sr(S_T)))
    g.s("s_add_u32 %s, %s, %s" % (sr(S_T), sr(S_T), sr(S_RR)))
    g.s("s_lshl_b32 %s, %s, 3" % (sr(S_T), sr(S_T)))
    g.s("s_add_u32 %s, %s, 64" % (sr(S_T), sr(S_T)))
    g.s("s_add_u32 %s, %s, %s" % (sr(S_T), sr(S_T), sr(S_XS + 1)))
    flag_store(S_T, "FS")
    g.waitcnt(vm=0)
    g.vmq = []
    poll(S_XS + 1)
    g.s("s_cbranch_scc1 process")
    g.s("s_branch after")
    g.label("finish")
    g.nop(10)
    for t in range(3):
        r_out(t)
    if NOFAST:
        stamp(g)
        stamp_flush(g)
    g.label("after")
    g.nop(8)
    g.s("s_cmp_lg_u32 %s, 0" % sr(S_PHASE))
    g.s("s_cbranch_scc1 next")
    g.s("s_mov_b32 %s, 1" % sr(S_PHASE))
    g.waitcnt(vm=3 + (1 if STAMP else 0))
    elapsed()
    g.s("s_cmp_lt_i32 %s, %d" % (sr(S_T + 4), X_CK))
    if not FORCE_AB:
        g.s("s_cbranch_scc1 k_end")
    poll(S_XS)
    g.s("s_lshr_b32 %s, %s, 8" % (sr(S_PEND), sr(S_M)))
    g.s("s_and_b32 %s, %s, 0xff" % (sr(S_PEND), sr(S_PEND)))
    g.s("s_cmp_eq_u32 %s, 0xff" % sr(S_M + 1))
    g.s("s_cselect_b32 %s, %s, 0" % (sr(S_PEND), sr(S_PEND)))
    g.label("next")
    g.s("s_cmp_eq_u32 %s, 0" % sr(S_PEND))
    g.s("s_cbranch_scc1 k_end")
    g.s("s_ff1_i32_b32 %s, %s" % (sr(S_T), sr(S_PEND)))
    g.s("s_bitset0_b32 %s, %s" % (sr(S_PEND), sr(S_T)))
    g.s("s_and_b32 %s, %s, 3" % (sr(S_RR), sr(S_T)))
    g.s("s_lshr_b32 %s, %s, 2" % (sr(S_T), sr(S_T)))
    g.s("s_lshl_b32 %s, s3, 1" % sr(S_RO))
    g.s("s_add_u32 %s, %s, %s" % (sr(S_RO), sr(S_RO), sr(S_T)))
    g.waitcnt(vm=0)
    g.s("s_branch job")
    g.label("k_end")


def body():
    _stamp_n[0] = 0
    g0 = prologue()
    n = len(CLS)
    if n > 1:
        if CLF == "b":
            g0.s("s_and_b32 %s, %s, %d" % (sr(S_TYPE), sr(S_B), n - 1))
        else:
            g0.s("s_add_u32 %s, %s, %s" % (sr(S_TYPE), sr(S_B), sr(S_HG)))
            g0.s("s_and_b32 %s, %s, %d" % (sr(S_TYPE), sr(S_TYPE), n - 1))
        for c in range(1, n):
            g0.s("s_cmp_eq_u32 %s, %d" % (sr(S_TYPE), c))
            g0.s("s_cbranch_scc1 cls%d" % c)
    n0 = _stamp_n[0]
    txt = []
    for c in range(n):
        _stamp_n[0] = n0
        g = Gen()
        g.label("cls%d" % c)
        part1(g, CLS[c])
        if c:
            g.s("s_branch join")
        txt.append(g.text())
    g = Gen()
    g.vmq = ["V0", "V1", "V2", "TCH", "VD"]
    g.label("join")
    part2(g)
    g.raw("s_endpgm")
    return g0.text() + txt[0] + g.text() + "".join(txt[1:]) + "code_end:\n"


def main():
    out = "; fused attention: q-proj + attention + o-proj partial per workgroup, cross-workgroup bf16 reduction\n"
    out += "; @launch kernel=attn_kernel grid=(256,1,1) block=(256,1,1) lds=%d\n" % LDS_BYTES
    out += '.amdgcn_target "amdgcn-amd-amdhsa--gfx950"\n.text\n'
    out += ".globl attn_kernel\n.p2align 8\n.type attn_kernel,@function\nattn_kernel:\n"
    out += body()
    out += '.section .rodata,"a"\n.p2align 6\n.amdhsa_kernel attn_kernel\n'
    out += "  .amdhsa_next_free_vgpr 512\n  .amdhsa_next_free_sgpr 102\n  .amdhsa_accum_offset 256\n"
    out += "  .amdhsa_group_segment_fixed_size 0\n  .amdhsa_kernarg_size 104\n  .amdhsa_user_sgpr_count 2\n"
    out += "  .amdhsa_user_sgpr_kernarg_segment_ptr 1\n  .amdhsa_system_sgpr_workgroup_id_x 1\n.end_amdhsa_kernel\n"
    path = sys.argv[1] if len(sys.argv) > 1 else "cdna_kernels/%s.s" % NAME
    open(path, "w").write(out)
    print("wrote", path, len(out), "bytes; stamps", _stamp_n[0], "late", LATE[:12])
    if E("INFO", 0):
        for i in INFO:
            print(i)


main()
```

```python
import sys, os
sys.path.insert(0, os.path.dirname(os.path.abspath(__file__)))
from asmgen2 import Gen, vr, sr

NAME = "concat_heads__gqa_block_cached__gqa_block_cached__near_ridge"
WS_BYTES = 268435456
E = lambda k, d: int(os.environ.get(k, str(d)))
STAMP = E("STAMP", 0)
STAMP_BASE = 200 * 1024 * 1024
NRAW = E("NRAW", 3)
WQT = E("WQT", 1)
WOT = E("WOT", 1)
XBAR = dict((int(a), int(b)) for a, b in (t.split(":") for t in os.environ.get("XBAR", "0:1,4:3,8:5,12:7").split(",")))
VL = dict((int(t[0]), int(t[2])) for t in os.environ.get("VL", "0h0,1h1,2h2").split(",") if t)
PDEF = os.environ.get("PTOK", "x0,w0,x1,w1,t")
QB = os.environ.get("QB", "w2,x2,x3,w3,w4,w5,w6,x4,x5,w7,w8,w9,w10,x6,x7,w11,w12,w13,w14,w15,V0h0,V1h1")
CLS = []
for c in os.environ.get("KP", "5,9,13|6,10,14|7,11,15|8,12,15").split("|"):
    kp = [int(t) for t in c.split(",")]
    q = []
    for tok in QB.split(","):
        q.append(tok)
        for p_ in range(3):
            if tok == "w%d" % kp[p_]:
                q.append("K%dh%d" % (p_, p_))
    CLS.append({"P": PDEF.split(","), "Q": q})
if os.environ.get("QTOK"):
    CLS = [{"P": PDEF.split(","), "Q": c.split(",")} for c in os.environ["QTOK"].split("|")]
RM = E("RM", 14)
MAP = E("MAP", 0)
PLAIN = E("PLAIN", 0)
DF = "" if PLAIN else " sc1"
DFL = ["", "", " sc0", " sc1"][PLAIN] if PLAIN else " sc1"
BUD, CC, CW, CAP = E("BUD", 58), E("CC", 65), E("CW", 33), E("CAP", 100)
SM2 = E("SM2", 0)
POST = {}
for it in os.environ.get("POST", "0=V2h2;3=T;4=Y").split(";"):
    k, v = it.split("=")
    POST[int(k)] = v.split(",")
CLF = os.environ.get("CLF", "b")
FORCE_AB = E("FORCE_AB", 0)
POLL_MAX = E("POLL_MAX", 300)
SLEEP = E("SLEEP", 2)
NT = os.environ.get("NT", " nt")
PART = 0
FLG = 64 * 1024 * 1024
FC = 0x5A3C96E1
FLGP = FLG + 65536
X_AB = E("X_AB", 40000)
X_CK = E("X_CK", 20000)
RETRY = E("RETRY", 40)
R2 = [int(c) for c in os.environ.get("R2", "11211212")]
PFS = E("PFS", 1)
PPS = E("PPS", 11)
T2POS = E("T2POS", 1)
EXP, EXS, EXL = E("EXP", 0), E("EXS", 4), E("EXL", 11)

SRD_X, SRD_K, SRD_V, SRD_W, SRD_WS, SRD_WO, SRD_OUT, SRD_DBG = 20, 24, 28, 32, 36, 40, 44, 48
SE = 51
S_PLO, S_PHI = 60, 61
S_BH, S_HG, S_B, S_BLK, S_GRP, S_TYPE, S_C = 62, 63, 64, 65, 66, 67, 68
S_W0 = 70
S_T = 72
S_NONCE, S_RO, S_RR, S_PEND, S_PHASE, S_CNT = 80, 81, 82, 83, 84, 85
S_WI, S_XR = 80, 82
ROT = E("ROT", 2)
S_XS = 86
S_XM = 89
S_PB = 89
S_VL = 92
S_M = 94
S_ST = 96

RAW = 0
WT = 96 if NRAW == 3 else 224
WT8 = 64
KF = 128
VW, XB, VK, VV, VWO, L16, VOW, L16H = 240, 241, 245, 246, 247, 248, 249, 250
VOW2 = XB
TQ = 251
XA = TQ
WTA = 112 if NRAW == 3 else A0 + 254 if False else 112
VR2 = 0
VKD, VKR = 113, 117
QF = 32
SB = 64
PT = 112
TM = 124
OB = 64
TT = 32
ZQ = 224
A0 = 256
ACC = A0
BF = A0 + 192
VRA = A0 + 192

L_V = 98304
L_MISC = 34816
LDS_BYTES = 163840

_stamp_n = [0]


def rng(a, n):
    return list(range(a, a + n))


def vop(g, text, dst, src=()):
    g.valu(text, dst=[dst] if isinstance(dst, int) else dst, src=src)


SV = 236


def stamp(g, have=False):
    if not STAMP:
        return
    n = _stamp_n[0]
    _stamp_n[0] += 1
    if not have:
        g.s("%s %s" % (os.environ.get("CLK", "s_memrealtime"), sr(S_ST, 2)))
        g.waitcnt(lg=0)
        g.lgq = []
    g.valu("v_writelane_b32 %s, %s, %d" % (vr(SV), sr(S_ST), n), dst=[SV])
    g.valu("v_writelane_b32 %s, %s, %d" % (vr(SV + 1), sr(S_ST + 1), n), dst=[SV + 1])


def stamp_flush(g):
    if not STAMP:
        return
    g.s("s_lshl_b32 %s, s2, 8" % sr(S_ST + 2))
    g.s("s_add_u32 %s, %s, %d" % (sr(S_ST + 2), sr(S_ST + 2), STAMP_BASE))
    g.s("s_mul_i32 %s, s3, 1048576" % sr(S_ST + 3))
    g.s("s_add_u32 %s, %s, %s" % (sr(S_ST + 2), sr(S_ST + 2), sr(S_ST + 3)))
    vop(g, "v_lshrrev_b32 %s, 1, %s" % (vr(TQ), vr(L16)), TQ, [L16])
    g.s("s_mov_b64 exec, 0xffffffff")
    g.vstore("buffer_store_dwordx2 %s, %s, %s, %s offen" % (vr(SV, 2), vr(TQ), sr(SRD_WS, 4), sr(S_ST + 2)), "STAMP", data=[SV, SV + 1], addr=[TQ])
    g.s("s_mov_b64 exec, -1")


def make_srd(g, srd, ptr, nbytes):
    g.s("s_mov_b32 %s, %s" % (sr(srd), sr(ptr)))
    g.s("s_and_b32 %s, %s, 0xffff" % (sr(srd + 1), sr(ptr + 1)))
    g.s("s_mov_b32 %s, %d" % (sr(srd + 2), nbytes))
    g.s("s_mov_b32 %s, 0x00020000" % sr(srd + 3))


def acc1(j, u):
    return ACC + (u * 8 + j) * 4


def acc2(j, u):
    return ACC + (u * 8 + j) * 4


SL2 = [32, 0, 64, KF, KF + 32]


UM = E("UM", 6)
SELF = E("SELF", 1)
L_SELF = 49152
S_SM, S_SP = 8, 14


def raw2(s, e):
    if UM == 6 and s in (13, 14):
        s = 27 - s
    return SL2[s % 5] + e * 4


CYC = [KF + 64, 32, 64, 0, KF, KF + 32]


def raw(s, e):
    return CYC[s % 6] + e * 4


def bf(s, u):
    return BF + ((s % 2) * 6 + u) * 4


def perm_ops(g, rbase, j, dst):
    ops = []
    for m in range(4):
        a, b = rbase + (2 * m) * 4 + (j >> 1), rbase + (2 * m + 1) * 4 + (j >> 1)
        sel = S_PHI if j & 1 else S_PLO

        def op(a=a, b=b, d=dst + m, sel=sel):
            g.valu("v_perm_b32 %s, %s, %s, %s" % (vr(d), vr(b), vr(a), sr(sel)), dst=[d], src=[a, b])
        ops.append(op)
    return ops


def merge(main, fill):
    n = len(main)
    k = 0
    for i, m in enumerate(main):
        m()
        upto = (len(fill) * (i + 1) + n - 1) // n
        while k < upto:
            fill[k]()
            k += 1


def units(tag, ops, cost):
    out, cur = [], []
    for o in ops:
        cur.append(o)
        if getattr(o, "is_load", False):
            out.append([tag, cost, cur])
            cur = []
    if cur:
        out.append([tag, 0, cur])
    return out


def gemm1(g, cl, b_reads, tail):
    acc = acc1
    pend = []
    rdone = set()
    kbar = min(k - 1 for k in XBAR if k - 1 >= 5)
    vbar = min(k - 1 for k in XBAR if k - 1 >= 11)
    for tok in cl["Q"]:
        if tok[0] == "@":
            pend.append([tok, 0, []])
        else:
            pend += units(tok, tok_ops(g, tok), CW if tok[0] == "w" or (ROT == 2 and tok[0] == "x" and int(tok[1]) >= 4) else CC)
    credit = [0]
    kiss = {}
    INFO.append(kiss)

    def ok(tag, s, j):
        if tag[0] == "@":
            return s >= int(tag[1:])
        if tag[0] == "w":
            return (s, j) >= (int(tag[1:]) - 6, 7)
        if tag[0] == "K" and tag[3] == "2":
            return (s, j) >= (kbar, 4)
        if tag[0] == "V" and tag[3] == "2":
            return (s, j) >= (vbar, 4)
        if tag[0] == "V":
            return tag[3] in rdone
        return True

    def take(s, j):
        out = []
        credit[0] = min(CAP, credit[0] + BUD)
        while pend and ok(pend[0][0], s, j) and credit[0] >= pend[0][1]:
            t, c, o = pend.pop(0)
            credit[0] -= c
            out += o
            kiss[t] = 8 * s + j
        return out

    def upto(tag, s, j):
        out = []
        while any(t == tag for t, _, _ in pend):
            t, c, o = pend.pop(0)
            assert t[0] == "@" or ok(t, s, j), (t, tag, s, j)
            credit[0] -= c
            out += o
            kiss[t] = 8 * s + j
            LATE.append((tag, t, s, j))
        return out
    side = []

    rnext = [0]

    def side_add(s):
        while rnext[0] < 3:
            p_ = rnext[0]
            tok = "R%dh%d" % (p_, p_)
            if s < 16 and (s < 11 + p_ or any(t == "K" + tok[1:] for t, _, _ in pend) or 8 * s < kiss["K" + tok[1:]] + RM):
                break
            side.append(lambda tok=tok, s=s: run(upto("K" + tok[1:], s, 0)))
            side.extend(tok_ops(g, tok))
            side.append(lambda tok=tok: rdone.add(tok[3]))
            rnext[0] += 1
            INFO.append((tok, s))

    def side_take(n):
        out = []
        while side and n > 0:
            o = side.pop(0)
            out.append(o)
            if getattr(o, "is_load", False):
                n -= 1
        while side and not getattr(side[0], "is_load", False) and len(side) == 1:
            out.append(side.pop(0))
        return out
    g.wait_vm("W0")
    for op in perm_ops(g, raw(0, 0), 0, WT):
        op()
    for s in range(15):
        side_add(s)
        for j in range(8):
            idx = 8 * s + j
            fill = []
            if j == 7:
                fill += upto("w%d" % (s + 1), s, j)
                fill.append(lambda s=s: g.wait_vm("W%d" % (s + 1)))
                fill += perm_ops(g, raw(s + 1, 0), 0, (WT8 if s == 14 else WT + ((idx + 1) % 4) * 4))
            else:
                fill += perm_ops(g, raw(s, 0), j + 1, WT + ((idx + 1) % 4) * 4)
            fill += take(s, j)
            if j == 3 and (s + 1) in XBAR:
                tags = ["X%d" % k for k in range(XBAR[s + 1] + 1)]
                for t in tags:
                    fill += upto(t.lower(), s, j)
                fill.append(lambda tags=tags: g.wait_vm(tags))
                fill.append(g.barrier)
            if 3 <= j <= 5:
                fill += b_reads(s + 1)[(j - 3) * 2:(j - 3) * 2 + 2]
            elif j < 3:
                fill += side_take(3)
            if j == 0:
                g.wait_lg("B%d" % s)
                if STAMP == 2 and s > 0:
                    stamp(g)
            a = WT + (idx % 4) * 4
            main = [(lambda u=u: g.mfma(acc(j, u), a, bf(s, u), None if s == 0 else acc(j, u))) for u in range(6)]
            merge(main, fill)
    s = 15
    side_add(15)
    g.wait_lg("B15")
    carry = []
    for n, u in enumerate(range(6)):
        main = [(lambda j=j: g.mfma(acc(j, u), WT8 + j * 4, bf(s, u), acc(j, u))) for j in range(8)]
        if n == 0:
            for j in range(8):
                main[j]()
                if j < 7:
                    for op in perm_ops(g, raw(s, 0), j + 1, WT8 + (j + 1) * 4):
                        op()
        else:
            fill = side_take(4)
            merge(main[:1], fill)
            fill = take(15, n) + take(15, n) + carry[:20]
            carry = carry[20:]
            merge(main[1:], fill)
        carry += tail(u)
    side_add(16)
    run(side)
    rest = []
    for t, c, o in pend:
        assert t[0] == "@" or ok(t, 16, 0), t
        rest += o
    return rest, carry


LATE = []
INFO = []


def mark(ops):
    for o in ops:
        names = o.__code__.co_names
        if "vload" in names:
            o.is_load = True
    return ops


def q_conv(g, u):
    ops = []
    for i in range(4):
        for m in range(4):
            t0, t1 = TQ + (m % 2) * 2, TQ + (m % 2) * 2 + 1
            s0, s1 = acc1(2 * m, u) + i, acc1(2 * m + 1, u) + i
            d = QF + (u % 2) * 16 + i * 4 + m
            ops.append(lambda t=t0, s=s0: g.valu("v_accvgpr_read_b32 %s, %s" % (vr(t), vr(s)), dst=[t], src=[s]))
            ops.append(lambda t=t1, s=s1: g.valu("v_accvgpr_read_b32 %s, %s" % (vr(t), vr(s)), dst=[t], src=[s]))
            ops.append(lambda d=d, a=t0, b=t1: g.valu("v_cvt_pk_bf16_f32 %s, %s, %s" % (vr(d), vr(a), vr(b)), dst=[d], src=[a, b]))
    return ops


def sacc(u, kt):
    return SB + (u % 2) * 24 + kt * 4


def pfrag(u, pp):
    return ACC + u * 32 + pp * 4


ONES = 224


def psum(u):
    return ACC + u * 32 + 12


def softmax_ops(g, u):
    ops = []
    A = ops.append
    vals = [sacc(u, kt) + r for kt in range(6) for r in range(4)]
    m, tmp, r = TM, TM + 1, TM + 2
    m2 = TM + 3

    def V(text, dst, src, **kw):
        A(lambda: g.valu(text, dst=dst, src=src, **kw))
    V("v_max3_f32 %s, %s, %s, %s" % (vr(m), vr(vals[0]), vr(vals[1]), vr(vals[2])), [m], vals[0:3])
    V("v_max3_f32 %s, %s, %s, %s" % (vr(m2), vr(vals[3]), vr(vals[4]), vr(vals[5])), [m2], vals[3:6])
    k = 6
    while k < 24:
        mm = m if (k // 2) % 2 else m2
        V("v_max3_f32 %s, %s, %s, %s" % (vr(mm), vr(mm), vr(vals[k]), vr(vals[k + 1])), [mm], [mm, vals[k], vals[k + 1]])
        k += 2
    V("v_max_f32 %s, %s, %s" % (vr(m), vr(m), vr(m2)), [m], [m, m2])

    def xl(x, op):
        for sw in ("v_permlane32_swap_b32", "v_permlane16_swap_b32"):
            V("v_mov_b32 %s, %s" % (vr(tmp), vr(x)), [tmp], [x])
            V("%s %s, %s" % (sw, vr(x), vr(tmp)), [x, tmp], [x, tmp], permlane=True)
            V("%s %s, %s, %s" % (op, vr(x), vr(x), vr(tmp)), [x], [x, tmp])
    xl(m, "v_max_f32")
    V("v_mul_f32 %s, %s, %s" % (vr(m), sr(S_C), vr(m)), [m], [m])
    for v in vals:
        V("v_fma_f32 %s, %s, %s, -%s" % (vr(v), vr(v), sr(S_C), vr(m)), [v], [v, m])
    for v in vals:
        V("v_exp_f32 %s, %s" % (vr(v), vr(v)), [v], [v], trans=True)
    for pp in range(3):
        for h in range(4):
            a = sacc(u, 2 * pp + (h >> 1)) + (h & 1) * 2
            d = PT + pp * 4 + h
            V("v_cvt_pk_bf16_f32 %s, %s, %s" % (vr(d), vr(a), vr(a + 1)), [d], [a, a + 1])
    for k in range(12):
        d = pfrag(u, 0) + k
        V("v_accvgpr_write_b32 %s, %s" % (vr(d), vr(PT + k)), [d], [PT + k])
    for pp in range(3):
        A(lambda pp=pp: g.mfma(psum(u), ONES, PT + pp * 4, None if pp == 0 else psum(u)))
    return ops


S_K2, S_KD, S_JUNK, S_TB = 4, 5, 13, 6


def k_dma(g, part, half):
    ops = []
    for n8 in range(8):
        n = part * 8 + n8
        ops.append(lambda n=n: g.s("s_add_u32 %s, %s, %d" % (sr(S_T + 1), sr(S_BH), n * 1024)))
        if half == 2:
            ops.append(lambda n8=n8: g.s("s_add_u32 m0, %s, %d" % (sr(S_K2), n8 * 1024), m0=True))
        else:
            ops.append(lambda n8=n8: g.s("s_add_u32 m0, %s, %d" % (sr(S_VL), half * 8192 + n8 * 1024), m0=True))
        ops.append(lambda n=n: g.vload("buffer_load_dwordx4 %s, %s, %s offen%s lds" % (vr(VKD + (n & 3)), sr(SRD_K, 4), sr(S_T + 1), NT), "KD%d" % part, addr=[VKD + (n & 3)], lds=True))
    return ops


def k_read(g, part, half):
    ops = [lambda: g.wait_vm("KD%d" % part)]
    if half == 2:
        for i in range(4):
            ops.append(lambda i=i: vop(g, "v_subrev_u32 %s, %s, %s" % (vr(VKR + i), sr(S_KD), vr(VKR + i)), VKR + i, [VKR + i]))
    for k2 in range(2):
        for i in range(4):
            d = KF + ((part * 2 + k2) * 4 + i) * 4
            o = lambda d=d, i=i, k2=k2: g.dsread("ds_read_b128 %s, %s offset:%d" % (vr(d, 4), vr(VKR + i), (half & 1) * 8192 + k2 * 4096), "KR%d" % half, dst=rng(d, 4), addr=[VKR + i])
            o.is_load = True
            ops.append(o)
    return ops


def vraw(pp, e):
    return (VRA + pp * 32 + e * 4) if pp < 2 else (VR2 + e * 4)


def v_loads(g, pp_):
    ops = []
    for pp in (pp_,):
        for e in range(8):
            if e % 4 == 0:
                ops.append(lambda pp=pp, e=e: g.s("s_add_u32 %s, %s, %d" % (sr(S_T + 1), sr(S_BH), pp * 8192 + (e >> 2) * 4096)))
            d = vraw(pp, e)
            ops.append(lambda d=d, e=e, pp=pp: g.vload("buffer_load_dwordx4 %s, %s, %s, %s offen offset:%d%s" % (vr(d, 4), vr(VV), sr(SRD_V, 4), sr(S_T + 1), (e & 3) * 256, NT),
                                                       "V%d" % pp, dst=rng(d, 4), addr=[VV]))
    return ops


L_V2 = 36864


def v_dma(g, pp, half):
    ops = [lambda: g.wait_lg("KR%d" % half)] if half < 2 else []
    for e in range(8):
        ops.append(lambda pp=pp, e=e: g.s("s_add_u32 %s, %s, %d" % (sr(S_T + 1), sr(S_BH), pp * 8192 + e * 1024)))
        if half < 2:
            ops.append(lambda pp=pp, e=e: g.s("s_add_u32 m0, %s, %d" % (sr(S_VL), (half * 8 + e) * 1024), m0=True))
        else:
            ops.append(lambda pp=pp, e=e: g.s("s_add_u32 m0, %s, %d" % (sr(S_K2), L_V2 + e * 1024), m0=True))
        a = VK if e & 1 else VV
        ops.append(lambda a=a: g.vload("buffer_load_dwordx4 %s, %s, %s offen%s lds" % (vr(a), sr(SRD_V, 4), sr(S_T + 1), NT), "VD", addr=[a], lds=True))
    return ops


def wo_touch(g):
    ops = []
    A = ops.append
    if MAP:
        A(lambda: g.s("s_and_b32 %s, %s, 3" % (sr(S_T + 3), sr(S_B))))
        A(lambda: g.s("s_lshl_b32 %s, %s, 2" % (sr(S_T + 3), sr(S_T + 3))))
    else:
        A(lambda: g.s("s_lshl_b32 %s, %s, 2" % (sr(S_T + 3), sr(S_B))))
    A(lambda: g.s("s_add_u32 %s, %s, s3" % (sr(S_T + 3), sr(S_T + 3))))
    A(lambda: g.s("s_lshl_b32 %s, %s, 13" % (sr(S_T + 3), sr(S_T + 3))))
    A(lambda: g.s("s_lshl_b32 %s, %s, 19" % (sr(S_T + 4), sr(S_HG))))
    A(lambda: g.s("s_add_u32 %s, %s, %s" % (sr(S_T + 3), sr(S_T + 3), sr(S_T + 4))))
    A(lambda: vop(g, "v_lshlrev_b32 %s, 3, %s" % (vr(TQ + 4), vr(L16)), TQ + 4, [L16]))
    for k in range(3 if MAP else 0):
        A(lambda: g.vload("buffer_load_dword %s, %s, %s, %s offen" % (vr(VW), vr(TQ + 4), sr(SRD_WO, 4), sr(S_T + 3)), "TCH", dst=[VW], addr=[TQ + 4]))
        A(lambda: g.s("s_add_u32 %s, %s, 131072" % (sr(S_T + 3), sr(S_T + 3))))
    A(lambda: g.vload("buffer_load_dword %s, %s, %s, %s offen" % (vr(TQ + 4), vr(TQ + 4), sr(SRD_WO, 4), sr(S_T + 3)), "TCH", dst=[TQ + 4], addr=[TQ + 4]))
    return ops


def w1_loads(g):
    def f(s):
        ops = []
        if s > 0:
            if ROT:
                ops.append(lambda: vop(g, "v_add_u32 %s, %s, %s" % (vr(VW), sr(S_WI + (s & 1)), vr(VW)), VW, [VW]))
                ops.append(lambda: vop(g, "v_and_b32 %s, 0x3fffff, %s" % (vr(VW), vr(VW)), VW, [VW]))
            else:
                ops.append(lambda: vop(g, "v_add_u32 %s, 0x40000, %s" % (vr(VW), vr(VW)), VW, [VW]))
        for e in range(8):
            d = raw(s, e)
            so = "0" if e == 0 else sr(SE + e)
            ops.append(lambda d=d, so=so, s=s: g.vload("buffer_load_dwordx4 %s, %s, %s, %s offen" % (vr(d, 4), vr(VW), sr(SRD_W, 4), so),
                                                       "W%d" % s, dst=rng(d, 4), addr=[VW]))
        return mark(ops)
    return f


def b1_reads(g):
    def f(s):
        ops = []
        sp = s >> 1
        a = XB + (s & 1) + 2 * (sp >> 2)
        for u in range(6):
            d = bf(s, u)
            ops.append(lambda d=d, a=a, off=((sp & 3) * 12 + 2 * u) * 1024, s=s:
                       g.dsread("ds_read_b128 %s, %s offset:%d" % (vr(d, 4), vr(a), off), "B%d" % s, dst=rng(d, 4), addr=[a]))
        return ops
    return f


def w2_loads(g):
    def f(s):
        ops = []
        if E("NOW2", 0) and s >= 5:
            return ops
        h, i = s >> 2, s & 3
        base = h * 131072 + i * 16384
        for e in range(8):
            if e % 4 == 0:
                ops.append(lambda e=e: g.s("s_mov_b32 %s, %d" % (sr(S_T + 2), base + (e >> 2) * 8192)))
            d = raw2(s, e)
            if E("X2T", 0):
                for hf in range(2):
                    ops.append(lambda d=d + 2 * hf, e=e, s=s, hf=hf: g.vload("buffer_load_dwordx2 %s, %s, %s, %s offen offset:%d" % (vr(d, 2), vr(VWO), sr(SRD_WO, 4), sr(S_T + 2), (e & 3) * 1024 + hf * 128),
                                                                         "W%d" % s, dst=rng(d, 2), addr=[VWO]))
                continue
            ops.append(lambda d=d, e=e, s=s: g.vload("buffer_load_dwordx4 %s, %s, %s, %s offen offset:%d" % (vr(d, 4), vr(VWO), sr(SRD_WO, 4), sr(S_T + 2), (e & 3) * 1024),
                                                     "W%d" % s, dst=rng(d, 4), addr=[VWO]))
        return mark(ops)
    return f


def b2_reads(g):
    def f(s):
        ops = []
        h, i = s >> 2, s & 3
        for u in range(6):
            d = bf(s, u)
            n = i * 6 + u
            a, off = (L16H, h * 16384 + n * 1024) if n < 16 else (L16, h * 8192 + (n - 16) * 1024)
            ops.append(lambda d=d, a=a, off=off, s=s:
                       g.dsread("ds_read_b128 %s, %s offset:%d" % (vr(d, 4), vr(a), off), "B%d" % s, dst=rng(d, 4), addr=[a]))
        return ops
    return f


def b2_read1(g, s, u, d, tag):
    h, i = s >> 2, s & 3
    n = i * 6 + u
    a, off = (L16H, h * 16384 + n * 1024) if n < 16 else (L16, h * 8192 + (n - 16) * 1024)
    return lambda: g.dsread("ds_read_b128 %s, %s offset:%d" % (vr(d, 4), vr(a), off), tag, dst=rng(d, 4), addr=[a])


def gemm2(g, w_loads, b_reads, tail, extra):
    pend = []

    def add(tag, ops):
        pend.extend((tag, o) for o in ops)

    def take(n):
        out = []
        while pend and n > 0:
            t, o = pend.pop(0)
            out.append(o)
            if getattr(o, "is_load", False):
                n -= 1
        return out

    def upto(tag):
        out = []
        while any(t == tag for t, _ in pend):
            out.append(pend.pop(0)[1])
        return out
    TS = {13: KF + 64, 14: SL2[11 % 5], 15: SL2[12 % 5]}
    bq = lambda n, k: BF + (((n * 3 + 6) % 12) + k) * 4
    for t in (2, 3, 4):
        add("W%d" % t, w_loads(t))
    g.wait_vm("W0")
    for op in perm_ops(g, raw2(0, 0), 0, WT):
        op()
    xq = []
    for s in range(13):
        xq += extra(s)
        if s == 12:
            xq += upto("W13") + [lambda: g.wait_vm("W13")]
            for j in range(8):
                xq += perm_ops(g, raw2(13, 0), j, TS[13] + j * 4)
        for j in range(8):
            idx = 8 * s + j
            fill = []
            if j == 7:
                if s < 12:
                    fill += upto("W%d" % (s + 1))
                    fill.append(lambda s=s: g.wait_vm("W%d" % (s + 1)))
                    fill += perm_ops(g, raw2(s + 1, 0), 0, WT + ((idx + 1) % 4) * 4)
                if s + 5 < 16:
                    add("W%d" % (s + 5), w_loads(s + 5))
            else:
                fill += perm_ops(g, raw2(s, 0), j + 1, WT + ((idx + 1) % 4) * 4)
            fill += take(R2[j])
            if 3 <= j <= 5:
                if s < 12:
                    fill += b_reads(s + 1)[(j - 3) * 2:(j - 3) * 2 + 2]
                else:
                    fill += [b2_read1(g, 13 + (j - 3), n, bq(n, j - 3), "C%d" % n) for n in range(2)]
            k = (len(xq) + 7 - j) // (8 - j)
            k = min(k, 8) if s < 12 else k
            fill += xq[:k]
            xq = xq[k:]
            if j == 0:
                g.wait_lg("B%d" % s)
                if STAMP == 3 and s > 0:
                    stamp(g)
            a = WT + (idx % 4) * 4
            main = [(lambda u=u: g.mfma(acc2(j, u), a, bf(s, u), None if s == 0 else acc2(j, u))) for u in range(6)]
            merge(main, fill)
    assert not xq
    carry = []
    for n in range(6):
        u = n
        g.wait_lg("C%d" % n)
        if STAMP == 3:
            stamp(g)
        main = [(lambda j=j, k=k: g.mfma(acc2(j, u), TS[13 + k] + j * 4, bq(n, k), acc2(j, u))) for k in range(3) for j in range(8)]
        brd = [b2_read1(g, 13 + k, n + 2, bq(n + 2, k), "C%d" % (n + 2)) for k in range(3)] if n + 2 < 6 else []
        if n == 0:
            for k in (1, 2):
                fill = upto("W%d" % (13 + k)) + [lambda k=k: g.wait_vm("W%d" % (13 + k))]
                for j in range(8):
                    fill += perm_ops(g, raw2(13 + k, 0), j, TS[13 + k] + j * 4)
                merge(main[(k - 1) * 8:k * 8 - 1], fill)
                main[k * 8 - 1]()
            merge(main[16:], brd)
        else:
            merge(main, brd + carry)
        carry = tail(n)
    assert not pend
    run(carry)


def gemm2u(g, w_loads, b_reads, tail, extra):
    pend = []

    def add(tag, ops):
        pend.extend((tag, o) for o in ops)

    def take(n):
        out = []
        while pend and n > 0:
            t, o = pend.pop(0)
            out.append(o)
            if getattr(o, "is_load", False):
                n -= 1
        return out

    def upto(tag):
        out = []
        while any(t == tag for t, _ in pend):
            out.append(pend.pop(0)[1])
        return out

    def conv(s, dst):
        ops = upto("W%d" % s) + [lambda: g.wait_vm("W%d" % s)]
        for j in range(8):
            ops += perm_ops(g, raw2(s, 0), j, dst + j * 4)
        return ops
    TS = {9: KF + 64, 10: 96, 11: KF + 64, 12: raw2(11, 0), 13: raw2(12, 0), 14: raw2(13, 0), 15: raw2(14, 0)}
    seq = [(u, k) for k in range(6) for u in range(2)] + [(u, k) for u in range(2, 6) for k in range(6)]
    bq = lambda i: BF + (i % 12) * 4
    brd = lambda i: [b2_read1(g, 10 + seq[i][1], seq[i][0], bq(i), "C%d" % i)] if i < len(seq) else []
    for t in (2, 3, 4):
        add("W%d" % t, w_loads(t))
    g.wait_vm("W0")
    for op in perm_ops(g, raw2(0, 0), 0, WT):
        op()
    xq = []
    for s in range(10):
        xq += extra(s)
        cv = conv(s + 1, TS[s + 1]) if s >= 8 else []
        ncv = (len(cv) + 3) // 4
        for j in range(8):
            idx = 8 * s + j
            fill = []
            if j == 7:
                if s < 8:
                    fill += upto("W%d" % (s + 1))
                    fill.append(lambda s=s: g.wait_vm("W%d" % (s + 1)))
                    fill += perm_ops(g, raw2(s + 1, 0), 0, WT + ((idx + 1) % 4) * 4)
                    add("W%d" % (s + 5), w_loads(s + 5))
                if s == 8:
                    add("W14", w_loads(14))
            elif s < 9:
                fill += perm_ops(g, raw2(s, 0), j + 1, WT + ((idx + 1) % 4) * 4)
            if j < 4:
                fill += cv[j * ncv:(j + 1) * ncv]
            if j == 4 and s >= 8:
                add("W%d" % (13 if s == 8 else 15), w_loads(13 if s == 8 else 15))
            fill += take(R2[j] if s < 8 else 2)
            if 3 <= j <= 5:
                if s < 9:
                    fill += b_reads(s + 1)[(j - 3) * 2:(j - 3) * 2 + 2]
                else:
                    fill += brd((j - 3) * 2) + brd((j - 3) * 2 + 1)
            k = (len(xq) + 7 - j) // (8 - j)
            k = min(k, 8) if s < 9 else k
            fill += xq[:k]
            xq = xq[k:]
            if j == 0:
                g.wait_lg("B%d" % s)
                if STAMP == 3 and s > 0:
                    stamp(g)
            a = WT + (idx % 4) * 4 if s < 9 else TS[9] + j * 4
            main = [(lambda u=u: g.mfma(acc2(j, u), a, bf(s, u), None if s == 0 else acc2(j, u))) for u in range(6)]
            merge(main, fill)
    assert not xq

    def block(i):
        u, k = seq[i]
        m = [(lambda j=j: g.mfma(acc2(j, u), TS[10 + k] + j * 4, bq(i), acc2(j, u))) for j in range(8)]
        f = m[0]
        m[0] = lambda: (g.wait_lg("C%d" % i), f(), run(brd(i + 6)))
        return m
    for k in range(6):
        if STAMP == 3:
            stamp(g)
        main = block(2 * k) + block(2 * k + 1)
        if k < 5:
            fill = take(8) + conv(11 + k, TS[11 + k])
            merge(main[:15], fill)
            main[15]()
        else:
            run(main[:8])
            merge(main[8:], tail(0)[:20])
    carry = TL0[20:] + tail(1)
    for n in range(2, 6):
        if STAMP == 3:
            stamp(g)
        main = []
        for k in range(6):
            main += block(12 + (n - 2) * 6 + k)
        fl = E("FL", 48) if n > 2 else 48
        merge(main[:fl], carry)
        run(main[fl:])
        carry = tail(n)
    assert not pend
    run(carry)


TL0 = []


def run(ops):
    for o in ops:
        o()


def prologue():
    g = Gen()
    g.s("s_cmp_ge_u32 s2, 256")
    g.s("s_cbranch_scc1 k_end")
    if STAMP:
        g.s("%s %s" % (os.environ.get("CLK", "s_memrealtime"), sr(S_ST, 2)))
    if E("CPF", 2):
        g.s("s_getpc_b64 %s" % sr(SRD_OUT, 2))
        g.label("pc_here")
        if E("CPF", 2) == 1:
            g.s("s_bfe_u32 %s, s2, 0x30003" % sr(S_T))
            g.s("s_lshl_b32 %s, %s, 15" % (sr(S_T), sr(S_T)))
        else:
            g.s("s_lshr_b32 %s, s2, 3" % sr(S_T))
            g.s("s_lshl_b32 %s, %s, 12" % (sr(S_T), sr(S_T)))
            g.valu("v_cmp_gt_u32 vcc, 32, v0", src=[0])
        g.s("s_and_b32 %s, %s, 0xffff" % (sr(SRD_OUT + 1), sr(SRD_OUT + 1)))
        g.s("s_mov_b32 %s, code_end-pc_here" % sr(SRD_OUT + 2))
        g.s("s_mov_b32 %s, 0x00020000" % sr(SRD_OUT + 3))
        vop(g, "v_lshlrev_b32 %s, 7, v0" % vr(TQ + 4), TQ + 4, [0])
        if E("CPF", 2) != 1:
            vop(g, "v_cndmask_b32 %s, -1, %s, vcc" % (vr(TQ + 4), vr(TQ + 4)), TQ + 4, [TQ + 4])
        g.vload("buffer_load_dword %s, %s, %s, %s offen" % (vr(TQ + 4), vr(TQ + 4), sr(SRD_OUT, 4), sr(S_T)), "CPF", dst=[TQ + 4], addr=[TQ + 4])
    g.s("s_bfe_u32 %s, s2, 0x10002" % sr(S_BLK))
    if E("BSW", 2) == 1:
        g.s("s_xor_b32 %s, %s, 1" % (sr(S_BLK), sr(S_BLK)))
    if E("BSW", 2) == 2:
        g.s("s_and_b32 %s, s2, 1" % sr(S_BLK))
    if E("BSW", 2) == 3:
        g.s("s_bfe_u32 %s, s2, 0x10001" % sr(S_BLK))
    g.s("s_mul_i32 s16, %s, 40" % sr(S_BLK))
    g.s("s_add_u32 s18, s0, s16")
    g.s("s_addc_u32 s19, s1, 0")
    g.s("s_load_dwordx8 s[8:15], s[18:19], 0")
    g.s("s_load_dwordx2 s[16:17], s[18:19], 32")
    g.s("s_load_dwordx4 s[4:7], s[0:1], 80")
    g.s("s_load_dwordx2 s[18:19], s[0:1], 96")
    LN, Q, G, R8, C8, T1, T2 = 130, 131, 132, 133, 134, 135, 136
    vop(g, "v_lshrrev_b32 %s, 6, v0" % vr(T1), T1, [0])
    vop(g, "v_and_b32 %s, 63, v0" % vr(LN), LN, [0])
    g.valu("v_readfirstlane_b32 s3, %s" % vr(T1), src=[T1], readlane=True, sdst=[3])
    if E("BSW", 2) == 2:
        g.s("s_and_b32 %s, s2, 6" % sr(S_HG))
    elif E("BSW", 2) == 3:
        g.s("s_and_b32 %s, s2, 1" % sr(S_HG))
        g.s("s_lshl_b32 %s, %s, 1" % (sr(S_HG), sr(S_HG)))
        g.s("s_and_b32 %s, s2, 4" % sr(S_T))
        g.s("s_add_u32 %s, %s, %s" % (sr(S_HG), sr(S_HG), sr(S_T)))
    else:
        g.s("s_and_b32 %s, s2, 3" % sr(S_HG))
        g.s("s_lshl_b32 %s, %s, 1" % (sr(S_HG), sr(S_HG)))
    g.s("s_bfe_u32 %s, s2, 0x10003" % sr(S_T))
    g.s("s_add_u32 %s, %s, %s" % (sr(S_HG), sr(S_HG), sr(S_T)))
    g.s("s_lshr_b32 %s, s2, 4" % sr(S_B))
    if MAP:
        g.s("s_bfe_u32 %s, s2, 0x30003" % sr(S_HG))
        g.s("s_and_b32 %s, s2, 3" % sr(S_B))
        g.s("s_lshl_b32 %s, %s, 2" % (sr(S_B), sr(S_B)))
        g.s("s_lshr_b32 %s, s2, 6" % sr(S_T))
        g.s("s_add_u32 %s, %s, %s" % (sr(S_B), sr(S_B), sr(S_T)))
    g.s("s_lshl_b32 %s, %s, 4" % (sr(S_GRP), sr(S_BLK)))
    g.s("s_add_u32 %s, %s, %s" % (sr(S_GRP), sr(S_GRP), sr(S_B)))
    vop(g, "v_and_b32 %s, 15, %s" % (vr(Q), vr(LN)), Q, [LN])
    vop(g, "v_lshrrev_b32 %s, 4, %s" % (vr(G), vr(LN)), G, [LN])
    vop(g, "v_lshrrev_b32 %s, 3, %s" % (vr(R8), vr(LN)), R8, [LN])
    vop(g, "v_and_b32 %s, 7, %s" % (vr(C8), vr(LN)), C8, [LN])
    vop(g, "v_lshlrev_b32 %s, 4, %s" % (vr(L16), vr(LN)), L16, [LN])
    vop(g, "v_add_u32 %s, %d, %s" % (vr(L16H), L_V, vr(L16)), L16H, [L16])
    for e in range(1, 8):
        g.s("s_mov_b32 %s, %d" % (sr(SE + e), e * 8192))
    g.s("s_mov_b32 %s, 0x05040100" % sr(S_PLO))
    g.s("s_mov_b32 %s, 0x07060302" % sr(S_PHI))
    g.s("s_mov_b32 %s, 0x3e0293ee" % sr(S_C))
    g.s("s_cmp_eq_u32 s3, 0")
    g.s("s_cselect_b32 %s, 1, 0" % sr(S_W0))
    g.s("s_mov_b32 %s, 0" % sr(S_W0 + 1))
    g.s("s_lshl_b32 %s, %s, 5" % (sr(S_T), sr(S_B)))
    g.s("s_lshl_b32 %s, %s, 2" % (sr(S_T + 1), sr(S_HG)))
    g.s("s_add_u32 %s, %s, %s" % (sr(S_T), sr(S_T), sr(S_T + 1)))
    g.s("s_add_u32 %s, %s, s3" % (sr(S_T), sr(S_T)))
    g.s("s_mul_i32 %s, %s, 24576" % (sr(S_BH), sr(S_T)))
    g.s("s_lshl_b32 %s, s3, 14" % sr(S_T))
    g.s("s_add_u32 %s, %s, %d" % (sr(S_VL), sr(S_T), L_V))

    vop(g, "v_lshrrev_b32 %s, 1, %s" % (vr(T1), vr(R8)), T1, [R8])
    vop(g, "v_xor_b32 %s, %s, %s" % (vr(T1), vr(T1), vr(C8)), T1, [T1, C8])
    g.s("s_mul_i32 %s, %s, 98304" % (sr(S_T + 2), sr(S_B)))
    for t in range(3):
        g.s("s_mul_i32 %s, s3, 3" % sr(S_T))
        g.s("s_add_u32 %s, %s, %d" % (sr(S_T), sr(S_T), t))
        g.s("s_lshl_b32 %s, %s, 10" % (sr(S_XM + t), sr(S_T)))
        g.s("s_lshl_b32 %s, %s, 13" % (sr(S_T + 1), sr(S_T)))
        g.s("s_add_u32 %s, %s, %s" % (sr(S_XS + t), sr(S_T + 1), sr(S_T + 2)))
        g.s("s_and_b32 %s, %s, 1" % (sr(S_T), sr(S_T)))
        g.s("s_lshl_b32 %s, %s, 2" % (sr(S_T), sr(S_T)))
        vop(g, "v_xor_b32 %s, %s, %s" % (vr(T2), sr(S_T), vr(T1)), T2, [T1])
        vop(g, "v_lshlrev_b32 %s, 4, %s" % (vr(T2), vr(T2)), T2, [T2])
        vop(g, "v_lshl_add_u32 %s, %s, 10, %s" % (vr(XA + t), vr(R8), vr(T2)), XA + t, [R8, T2])
    PI = 140
    PI = Q
    g.s("s_lshl_b32 %s, %s, 10" % (sr(S_T), sr(S_HG)))
    g.s("s_lshl_b32 %s, s3, 8" % sr(S_T + 1))
    g.s("s_add_u32 %s, %s, %s" % (sr(S_T), sr(S_T), sr(S_T + 1)))
    vop(g, "v_lshlrev_b32 %s, 4, %s" % (vr(T1), vr(PI)), T1, [PI])
    vop(g, "v_lshl_add_u32 %s, %s, 16, %s" % (vr(T2), vr(G), vr(T1)), T2, [G, T1])
    if ROT:
        if ROT == 1:
            g.s("s_mov_b32 %s, %s" % (sr(S_XR + 2), sr(S_B)))
        else:
            g.s("s_and_b32 %s, s2, 8" % sr(S_XR + 2))
        g.s("s_lshl_b32 %s, %s, 18" % (sr(S_WI), sr(S_XR + 2)))
        g.s("s_add_u32 %s, %s, %s" % (sr(S_T), sr(S_T), sr(S_WI)))
        g.s("s_and_b32 %s, %s, 14" % (sr(S_XR), sr(S_XR + 2)))
        g.s("s_lshl_b32 %s, %s, 6" % (sr(S_XR), sr(S_XR)))
        g.s("s_and_b32 %s, %s, 1" % (sr(S_XR + 1), sr(S_XR + 2)))
        g.s("s_lshl_b32 %s, %s, 6" % (sr(S_XR + 1), sr(S_XR + 1)))
        g.s("s_cmp_eq_u32 %s, 0" % sr(S_XR + 1))
        g.s("s_cselect_b32 %s, 0x40000, 0xc0000" % sr(S_WI) if False else "s_mov_b32 %s, 0xc0000" % sr(S_WI))
        g.s("s_cmov_b32 %s, 0x40000" % sr(S_WI))
        g.s("s_mov_b32 %s, 0xfffc0000" % sr(S_WI + 1))
        g.s("s_cmov_b32 %s, 0x40000" % sr(S_WI + 1))
    vop(g, "v_add_u32 %s, %s, %s" % (vr(VW), sr(S_T), vr(T2)), VW, [T2])
    g.s("s_lshl_b32 %s, %s, 19" % (sr(S_T), sr(S_HG)))
    g.s("s_add_u32 %s, %s, %s" % (sr(S_T), sr(S_T), sr(S_T + 1)))
    vop(g, "v_and_b32 %s, 1, %s" % (vr(T2), vr(G)), T2, [G])
    vop(g, "v_lshl_add_u32 %s, %s, 12, %s" % (vr(T1), vr(T2), vr(T1)), T1, [T2, T1])
    vop(g, "v_lshrrev_b32 %s, 1, %s" % (vr(T2), vr(G)), T2, [G])
    vop(g, "v_lshl_add_u32 %s, %s, 16, %s" % (vr(T2), vr(T2), vr(T1)), T2, [T2, T1])
    vop(g, "v_add_u32 %s, %s, %s" % (vr(VWO), sr(S_T), vr(T2)), VWO, [T2])
    vop(g, "v_xor_b32 %s, %s, %s" % (vr(T1), vr(Q), vr(G)), T1, [Q, G])
    vop(g, "v_lshlrev_b32 %s, 4, %s" % (vr(T1), vr(T1)), T1, [T1])
    vop(g, "v_lshl_add_u32 %s, %s, 8, %s" % (vr(VKD), vr(G), vr(T1)), VKD, [G, T1])
    vop(g, "v_lshlrev_b32 %s, 2, %s" % (vr(T1), vr(G)), T1, [G])
    vop(g, "v_xor_b32 %s, %s, %s" % (vr(T1), vr(T1), vr(Q)), T1, [T1, Q])
    vop(g, "v_lshlrev_b32 %s, 4, %s" % (vr(T1), vr(T1)), T1, [T1])
    vop(g, "v_lshl_add_u32 %s, %s, 8, %s" % (vr(VKR), vr(Q), vr(T1)), VKR, [Q, T1])
    vop(g, "v_add_u32 %s, %s, %s" % (vr(VKR), sr(S_VL), vr(VKR)), VKR, [VKR])
    for m in range(1, 4):
        vop(g, "v_xor_b32 %s, %d, %s" % (vr(VKD + m), m * 64, vr(VKD)), VKD + m, [VKD])
        vop(g, "v_xor_b32 %s, %d, %s" % (vr(VKR + m), m * 16, vr(VKR)), VKR + m, [VKR])
    vop(g, "v_mov_b32 %s, %s" % (vr(VV), vr(VKD)), VV, [VKD])
    vop(g, "v_mov_b32 %s, %s" % (vr(VK), vr(VKD + 1)), VK, [VKD + 1])
    vop(g, "v_lshrrev_b32 %s, 1, %s" % (vr(T1), vr(Q)), T1, [Q])
    vop(g, "v_xor_b32 %s, %s, %s" % (vr(T1), vr(T1), vr(G)), T1, [T1, G])
    vop(g, "v_lshlrev_b32 %s, 7, %s" % (vr(T2), vr(Q)), T2, [Q])
    vop(g, "v_lshl_add_u32 %s, %s, 4, %s" % (vr(XB), vr(T1), vr(T2)), XB, [T1, T2])
    if ROT:
        vop(g, "v_xor_b32 %s, %s, %s" % (vr(XB), sr(S_XR + 1), vr(XB)), XB, [XB])
    vop(g, "v_xor_b32 %s, 64, %s" % (vr(XB + 1), vr(XB)), XB + 1, [XB])
    vop(g, "v_add_u32 %s, 0xc000, %s" % (vr(XB + 2), vr(XB)), XB + 2, [XB])
    vop(g, "v_add_u32 %s, 0xc000, %s" % (vr(XB + 3), vr(XB + 1)), XB + 3, [XB + 1])
    vop(g, "v_add_u32 %s, %s, %s" % (vr(VOW), sr(S_VL), vr(L16)), VOW, [L16])
    if MAP:
        g.s("s_and_b32 %s, %s, 3" % (sr(S_T), sr(S_B)))
        g.s("s_lshl_b32 %s, %s, 2" % (sr(S_T), sr(S_T)))
    else:
        g.s("s_lshl_b32 %s, %s, 2" % (sr(S_T), sr(S_B)))
    g.s("s_add_u32 %s, %s, s3" % (sr(S_T), sr(S_T)))
    g.s("s_lshl_b32 %s, %s, 16" % (sr(S_T), sr(S_T)))
    g.s("s_lshl_b32 %s, %s, 10" % (sr(S_T + 1), sr(S_HG)))
    g.s("s_add_u32 %s, %s, %s" % (sr(S_T), sr(S_T), sr(S_T + 1)))
    vop(g, "v_lshlrev_b32 %s, 7, %s" % (vr(T1), vr(C8)), T1, [C8])
    vop(g, "v_lshl_add_u32 %s, %s, 13, %s" % (vr(T1), vr(R8), vr(T1)), T1, [R8, T1])
    vop(g, "v_add_u32 %s, %s, %s" % (vr(WTA), sr(S_T), vr(T1)), WTA, [T1])
    g.waitcnt(lg=0)
    make_srd(g, SRD_X, 8, 1572864)
    make_srd(g, SRD_K, 10, 12582912)
    make_srd(g, SRD_V, 12, 12582912)
    make_srd(g, SRD_W, 14, 4194304)
    make_srd(g, SRD_WO, 16, 4194304)
    make_srd(g, SRD_OUT, 4, 16 * 96 * 1024 * 2)
    make_srd(g, SRD_DBG, 6, 256)
    make_srd(g, SRD_WS, 18, WS_BYTES)
    g.s("s_lshl_b32 %s, s3, 13" % sr(S_K2))
    g.s("s_sub_u32 %s, %s, %s" % (sr(S_KD), sr(S_VL), sr(S_K2)))
    g.s("s_lshl_b32 %s, %s, 1" % (sr(S_T), sr(S_B)))
    g.s("s_lshr_b32 %s, s3, 1" % sr(S_T + 1))
    g.s("s_add_u32 %s, %s, %s" % (sr(S_T), sr(S_T), sr(S_T + 1)))
    g.s("s_lshl_b32 %s, %s, 13" % (sr(S_T), sr(S_T)))
    g.s("s_lshl_b32 %s, %s, 10" % (sr(S_T + 1), sr(S_HG)))
    g.s("s_add_u32 %s, %s, %s" % (sr(S_T), sr(S_T), sr(S_T + 1)))
    g.s("s_and_b32 %s, s3, 1" % sr(S_T + 1))
    g.s("s_lshl_b32 %s, %s, 9" % (sr(S_T + 1), sr(S_T + 1)))
    g.s("s_add_u32 %s, %s, %s" % (sr(S_T), sr(S_T), sr(S_T + 1)))
    g.s("s_add_u32 %s, s14, %s" % (sr(S_TB), sr(S_T)))
    g.s("s_addc_u32 %s, s15, 0" % sr(S_TB + 1))
    stamp(g, have=True)
    return g


def tok_ops(g, tok):
    ops = []
    if tok[0] == 'x':
        sp = int(tok[1:])
        for t in range(3):
            if ROT:
                ops.append(lambda t=t: g.s("s_add_u32 %s, %s, %d" % (sr(S_T), sr(S_XR), sp * 128)))
                ops.append(lambda t=t: g.s("s_and_b32 %s, %s, 0x3ff" % (sr(S_T), sr(S_T))))
                ops.append(lambda t=t: g.s("s_add_u32 %s, %s, %s" % (sr(S_T), sr(S_T), sr(S_XS + t))))
            else:
                ops.append(lambda t=t: g.s("s_add_u32 %s, %s, %d" % (sr(S_T), sr(S_XS + t), sp * 128)))
            ops.append(lambda t=t: g.s("s_add_u32 m0, %s, %d" % (sr(S_XM + t), sp * 12288), m0=True))
            ops.append(lambda t=t: g.vload("buffer_load_dwordx4 %s, %s, %s offen lds" % (vr(XA + t), sr(SRD_X, 4), sr(S_T)), "X%d" % sp, addr=[XA + t], lds=True))
    elif tok[0] == 'w':
        ops += w1_loads(g)(int(tok[1:]))
    elif tok == 't':
        ops.append(lambda: g.vload("buffer_load_dword %s, %s, %s, 0 offen" % (vr(TQ + 3), vr(WTA), sr(SRD_W, 4)), "TCH", dst=[TQ + 3], addr=[WTA]))
        for k in range(3 if MAP else 0):
            ops.append(lambda: vop(g, "v_add_u32 %s, 0x100000, %s" % (vr(WTA), vr(WTA)), WTA, [WTA]))
            ops.append(lambda: g.vload("buffer_load_dword %s, %s, %s, 0 offen" % (vr(TQ + 3), vr(WTA), sr(SRD_W, 4)), "TCH", dst=[TQ + 3], addr=[WTA]))
    elif tok[0] == 's':
        st = int(tok[1:])
        ops.append(lambda: g.s("s_mov_b32 %s, %d" % (sr(S_T + 2), st * 262144)))
        for l in range(8 if SM2 else 4):
            def sm(l=l):
                g.s("s_load_dword %s, %s, %s offset:%d" % (sr(S_JUNK), sr(S_TB, 2), sr(S_T + 2), l * (64 if SM2 else 128)))
                g.lgq.append("SM")
            ops.append(sm)
    elif tok == 'T':
        ops += wo_touch(g)
    elif tok == 'Y':
        for srd, so in ((SRD_WS, S_XS + 1), (SRD_WS, S_PB), (SRD_WS, S_PB + 1), (SRD_WS, S_XS + 2), (SRD_OUT, S_OB)):
            ops.append(lambda srd=srd, so=so: g.vload("buffer_load_dword %s, off, %s, %s" % (vr(VW), sr(srd, 4), sr(so)), "TCH", dst=[VW]))
    elif tok[0] == 'Z':
        t = int(tok[1])
        if t == 0:
            for k in range(4):
                ops.append(lambda k=k: vop(g, "v_mov_b32 %s, -1" % vr(ZQ + k), ZQ + k))
        for h in range(2):
            for i in range(4):
                ops.append(lambda h=h, i=i: g.s("s_add_u32 %s, %s, %d" % (sr(S_T + 6), sr(S_PB + h), (i * 3 + t) * 1024)))
                o = lambda: g.vstore("buffer_store_dwordx4 %s, %s, %s, %s offen sc1" % (vr(ZQ, 4), vr(L16), sr(SRD_WS, 4), sr(S_T + 6)),
                                     "POI", data=rng(ZQ, 4), addr=[L16])
                o.is_load = True
                ops.append(o)
    elif tok[0] == 'K':
        ops += k_dma(g, int(tok[1]), int(tok[3]))
    elif tok[0] == 'R':
        ops += k_read(g, int(tok[1]), int(tok[3]))
    elif tok[0] == 'V' and len(tok) == 4:
        assert VL[int(tok[1])] == int(tok[3])
        ops += v_dma(g, int(tok[1]), int(tok[3]))
    elif tok[0] == 'V':
        vl = v_loads(g, int(tok[1]))
        ops += vl if len(tok) == 2 else vl[:5] if tok[2] == 'a' else vl[5:]
    else:
        raise ValueError(tok)
    return mark(ops)


def part1(g, cl):
    for tok in cl["P"]:
        run(tok_ops(g, tok))
    g.wait_vm(["X%d" % k for k in range(XBAR[0] + 1)])
    g.barrier()
    stamp(g)
    run(b1_reads(g)(0))

    def tail(u):
        return q_conv(g, u) if u < 2 else []
    assert max(XBAR) >= 6
    pend, rest = gemm1(g, cl, b1_reads(g), tail)
    run(pend)
    stamp(g)
    g.s("s_lshl_b32 %s, s3, 13" % sr(S_T))
    vop(g, "v_add_u32 %s, %s, %s" % (vr(VOW2), sr(S_T), vr(L16)), VOW2, [L16])
    run(rest)
    stamp(g)
    g.nop(8)


S_FS, S_OB = 69, 93


def job_setup(g, A):
    A(lambda: g.s("s_lshl_b32 %s, %s, 2" % (sr(S_T), sr(S_GRP))))
    A(lambda: g.s("s_lshr_b32 %s, %s, 1" % (sr(S_T + 1), sr(S_RO))))
    A(lambda: g.s("s_add_u32 %s, %s, %s" % (sr(S_T + 1), sr(S_T + 1), sr(S_T))))
    A(lambda: g.s("s_lshl_b32 %s, %s, 7" % (sr(S_T + 1), sr(S_T + 1))))
    A(lambda: g.s("s_add_u32 %s, %s, %d" % (sr(S_XS + 1), sr(S_T + 1), FLG)))
    A(lambda: g.s("s_lshl_b32 %s, %s, 3" % (sr(S_T), sr(S_GRP))))
    A(lambda: g.s("s_add_u32 %s, %s, %s" % (sr(S_T), sr(S_T), sr(S_RO))))
    A(lambda: g.s("s_mul_i32 %s, %s, 96" % (sr(S_T), sr(S_T))))
    A(lambda: g.s("s_mul_i32 %s, %s, 3" % (sr(S_T + 1), sr(S_RR))))
    A(lambda: g.s("s_add_u32 %s, %s, %s" % (sr(S_T), sr(S_T), sr(S_T + 1))))
    A(lambda: g.s("s_lshl_b32 %s, %s, 10" % (sr(S_XS + 2), sr(S_T))))
    A(lambda: g.s("s_mul_i32 %s, %s, %d" % (sr(S_OB), sr(S_B), 96 * 2048)))
    A(lambda: g.s("s_lshl_b32 %s, %s, 10" % (sr(S_T), sr(S_BLK))))
    A(lambda: g.s("s_add_u32 %s, %s, %s" % (sr(S_OB), sr(S_OB), sr(S_T))))
    A(lambda: g.s("s_lshr_b32 %s, %s, 1" % (sr(S_T), sr(S_RO))))
    A(lambda: g.s("s_lshl_b32 %s, %s, 8" % (sr(S_T), sr(S_T))))
    A(lambda: g.s("s_add_u32 %s, %s, %s" % (sr(S_OB), sr(S_OB), sr(S_T))))
    A(lambda: g.s("s_lshl_b32 %s, %s, 4" % (sr(S_T), sr(S_RR))))
    A(lambda: g.s("s_add_u32 %s, %s, %s" % (sr(S_OB), sr(S_OB), sr(S_T))))
    A(lambda: g.s("s_and_b32 %s, %s, 1" % (sr(S_T), sr(S_RO))))
    A(lambda: g.s("s_lshl_b32 %s, %s, 15" % (sr(S_T), sr(S_T))))
    A(lambda: g.s("s_add_u32 %s, %s, %s" % (sr(S_OB), sr(S_OB), sr(S_T))))


def part2(g):
    g.s("s_memrealtime %s" % sr(S_T + 4, 2))
    NV = 238
    g.s("s_lshl_b32 %s, %s, 2" % (sr(S_T + 3), sr(S_GRP)))
    lq = list(g.lgq)
    g.waitcnt(lg=0)
    g.lgq = []
    g.s("s_or_b32 %s, %s, 1" % (sr(S_NONCE), sr(S_T + 4)))
    vop(g, "v_mov_b32 %s, %s" % (vr(NV), sr(S_NONCE)), NV)
    vop(g, "v_mov_b32 %s, 0" % vr(NV + 1), NV + 1)
    g.s("s_mov_b64 exec, %s" % sr(S_W0, 2))
    g.vload("buffer_atomic_cmpswap %s, off, %s, %s sc0 sc1" % (vr(NV, 2), sr(SRD_DBG, 4), sr(S_T + 3)), "NONCE", dst=[NV], addr=[NV, NV + 1])
    g.s("s_mov_b64 exec, -1")
    g.s("s_lshl_b32 %s, %s, 3" % (sr(S_PB), sr(S_GRP)))
    g.s("s_lshl_b32 %s, s3, 1" % sr(S_PB + 1))
    g.s("s_add_u32 %s, %s, %s" % (sr(S_PB), sr(S_PB), sr(S_PB + 1)))
    g.s("s_lshl_b32 %s, %s, 3" % (sr(S_PB), sr(S_PB)))
    g.s("s_add_u32 %s, %s, %s" % (sr(S_PB), sr(S_PB), sr(S_HG)))
    g.s("s_mul_i32 %s, %s, 12288" % (sr(S_PB), sr(S_PB)))
    g.s("s_add_u32 %s, %s, %d" % (sr(S_PB + 1), sr(S_PB), 8 * 12288))
    g.s("s_lshl_b32 %s, %s, 2" % (sr(S_XS), sr(S_GRP)))
    g.s("s_add_u32 %s, %s, s3" % (sr(S_XS), sr(S_XS)))
    g.s("s_lshl_b32 %s, %s, 7" % (sr(S_XS), sr(S_XS)))
    g.s("s_add_u32 %s, %s, %d" % (sr(S_XS), sr(S_XS), FLG))
    g.s("s_lshl_b32 %s, %s, 3" % (sr(S_FS), sr(S_HG)))
    g.s("s_add_u32 %s, %s, %s" % (sr(S_FS), sr(S_FS), sr(S_XS)))
    g.s("s_mov_b32 %s, %s" % (sr(S_RO), sr(S_HG)))
    g.s("s_mov_b32 %s, s3" % sr(S_RR))
    job_setup(g, lambda o: o())
    for k in range(4):
        vop(g, "v_mov_b32 %s, 0x3f803f80" % vr(ONES + k), ONES + k)

    def vt(pp, j):
        return KF + (pp * 8 + j) * 4
    VA = 0

    def tr_addr():
        ops = []
        V = lambda text, d, src=(): ops.append(lambda: vop(g, text, d, src))
        a, b = VA + 8, VA + 9
        V("v_lshrrev_b32 %s, 6, %s" % (vr(a), vr(L16)), a, [L16])
        V("v_and_b32 %s, 7, %s" % (vr(b), vr(a)), b, [a])
        V("v_lshlrev_b32 %s, 4, %s" % (vr(b), vr(b)), b, [b])
        V("v_lshl_add_u32 %s, %s, 8, %s" % (vr(VA), vr(a), vr(b)), VA, [a, b])
        V("v_and_b32 %s, 32, %s" % (vr(a), vr(L16)), a, [L16])
        V("v_lshl_add_u32 %s, %s, 2, %s" % (vr(VA), vr(a), vr(VA)), VA, [a, VA])
        V("v_and_b32 %s, 16, %s" % (vr(a), vr(L16)), a, [L16])
        V("v_lshrrev_b32 %s, 1, %s" % (vr(a), vr(a)), a, [a])
        V("v_add_u32 %s, %s, %s" % (vr(VA), vr(a), vr(VA)), VA, [a, VA])
        V("v_add_u32 %s, %s, %s" % (vr(VA + 8), sr(S_K2), vr(VA)), VA + 8, [VA])
        V("v_add_u32 %s, %s, %s" % (vr(VA), sr(S_VL), vr(VA)), VA, [VA])
        for j in range(1, 8):
            V("v_xor_b32 %s, %d, %s" % (vr(VA + j), j * 16, vr(VA)), VA + j, [VA])
            V("v_xor_b32 %s, %d, %s" % (vr(VA + 8 + j), j * 16, vr(VA + 8)), VA + 8 + j, [VA + 8])
        return ops

    def tr_reads(pp, js):
        ops = []
        for j in js:
            for h in range(2):
                d = vt(pp, j) + 2 * h
                a, off = (VA + j, VL[pp] * 8192 + h * 4096) if VL[pp] < 2 else (VA + 8 + j, L_V2 + h * 4096)
                ops.append(lambda d=d, a=a, off=off: g.dsread("ds_read_b64_tr_b16 %s, %s offset:%d" % (vr(d, 2), vr(a), off), "V%d" % pp, dst=rng(d, 2), addr=[a]))
        return ops
    OAC = [16 + 0, 96, 64, 96, 64, 96]

    def oacc(u, j):
        return OAC[u] + j * 4

    def pv_main(u, pmajor=False):
        ix = [(pp, j) for pp in range(3) for j in range(8)] if pmajor else [(pp, j) for j in range(8) for pp in range(3)]
        return [(lambda pp=pp, j=j: g.mfma(oacc(u, j), vt(pp, j), pfrag(u, pp), None if pp == 0 else oacc(u, j))) for pp, j in ix]

    def o_conv(u):
        ops = []
        r = TQ + 2
        ops.append(lambda: g.valu("v_accvgpr_read_b32 %s, %s" % (vr(r), vr(psum(u))), dst=[r], src=[psum(u)]))
        ops.append(lambda: g.valu("v_rcp_f32 %s, %s" % (vr(r), vr(r)), dst=[r], src=[r], trans=True))
        for i in range(4):
            d = PT_O + (i % 2) * 4
            for k in range(8):
                a = oacc(u, 2 * i) + k
                ops.append(lambda a=a: g.valu("v_mul_f32 %s, %s, %s" % (vr(a), vr(a), vr(r)), dst=[a], src=[a, r]))
            for m in range(4):
                a = oacc(u, 2 * i) + 2 * m
                ops.append(lambda d=d + m, a=a: g.valu("v_cvt_pk_bf16_f32 %s, %s, %s" % (vr(d), vr(a), vr(a + 1)), dst=[d], src=[a, a + 1]))
            n = i * 6 + u
            a, off = (VOW, n * 1024) if n < 16 else (VOW2, (n - 16) * 1024)
            ops.append(lambda d=d, a=a, off=off: g.dswrite("ds_write_b128 %s, %s offset:%d" % (vr(a), vr(d, 4), off), "OW", data=rng(d, 4), addr=[a]))
            if E("EXP3", 0):
                fl = ["", "", " sc1", " nt", " sc0"][E("EXP3", 0)]
                ops.append(lambda n=n: g.s("s_add_u32 %s, s7, %d" % (sr(S_T + 6), n * 1024)))
                ops.append(lambda d=d, fl=fl: g.vstore("buffer_store_dwordx4 %s, %s, %s, %s offen%s" % (vr(d, 4), vr(L16), sr(SRD_WS, 4), sr(S_T + 6), fl), "OS", data=rng(d, 4), addr=[L16]))
        return ops
    if E("EXP3", 0):
        g.s("s_lshl_b32 s7, s2, 2")
        g.s("s_add_u32 s7, s7, s3")
        g.s("s_mul_i32 s7, s7, 24576")
        g.s("s_add_u32 s7, s7, %d" % (32 * 1024 * 1024))
    PT_O = 228
    wl2 = w2_loads(g)

    def spread(fill, pre):
        if not pre:
            return fill
        k = max(1, len(fill) // len(pre))
        nf = []
        for i, f in enumerate(fill):
            if i % k == 0 and pre:
                nf.append(pre.pop(0))
            nf.append(f)
        return nf + pre
    for u in range(6):
        main = [(lambda kt=kt, i=i, u=u: g.mfma(sacc(u, kt), KF + (kt * 4 + i) * 4, QF + (u % 2) * 16 + i * 4, None if i == 0 else sacc(u, kt)))
                for kt in range(6) for i in range(4)]
        fill = []
        if u >= 1:
            fill += softmax_ops(g, u - 1)
        if 2 <= u + 1 <= 5:
            fill += q_conv(g, u + 1)
        if u == 4:
            fill += tr_addr()
        pre = []
        for tok in POST.get(u, []):
            pre += tok_ops(g, tok)
        fill = spread(fill, pre)
        if STAMP == 4 and u > 0:
            stamp(g)
        if u < 5:
            merge(main, fill)
        else:
            n3 = (len(fill) + 2) // 3
            merge(main[:8], fill[:n3])
            if STAMP == 4:
                stamp(g)
            g.wait_vm(["VD"])
            if STAMP == 4:
                stamp(g)
            merge(main[8:16], spread(fill[n3:2 * n3], tr_reads(0, range(8))))
            merge(main[16:], spread(fill[2 * n3:], tr_reads(1, range(8))))
    stamp(g)
    sm5 = softmax_ops(g, 5)
    pv0 = pv_main(0, True)
    n3 = (len(sm5) + 2) // 3
    run(tr_reads(2, range(4)))
    g.wait_lg("V0")
    merge(pv0[:8], spread(sm5[:n3], tr_reads(2, range(4, 8))))
    g.wait_lg("V1")
    merge(pv0[8:16], sm5[n3:2 * n3])
    g.wait_lg("V2")
    merge(pv0[16:], sm5[2 * n3:])
    stamp(g)
    vop(g, "v_mov_b32 %s, %d" % (vr(TQ + 1), L_MISC), TQ + 1)
    for u in range(1, 6):
        fill = o_conv(u - 1)
        if u == 2:
            fill = spread(fill, wl2(0))
        if u == 3:
            fill = spread(fill, wl2(1))
        merge(pv_main(u), fill)
        if STAMP == 4:
            stamp(g)
    g.wait_vm("NONCE")
    g.valu("v_readfirstlane_b32 %s, %s" % (sr(S_T), vr(NV)), src=[NV], readlane=True, sdst=[S_T])
    g.s("s_cmp_eq_u32 %s, 0" % sr(S_T))
    g.s("s_cselect_b32 %s, %s, %s" % (sr(S_T), sr(S_NONCE), sr(S_T)))
    vop(g, "v_mov_b32 %s, %s" % (vr(TQ), sr(S_T)), TQ)
    g.s("s_mov_b64 exec, %s" % sr(S_W0, 2))
    g.dswrite("ds_write_b32 %s, %s offset:4" % (vr(TQ + 1), vr(TQ)), "OW", data=[TQ], addr=[TQ + 1])
    if SELF:
        g.dswrite("ds_write_b32 %s, %s offset:8" % (vr(TQ + 1), vr(NV + 1)), "OW", data=[NV + 1], addr=[TQ + 1])
    g.s("s_mov_b64 exec, -1")
    run(o_conv(5))
    g.waitcnt(lg=0)
    g.lgq = []
    stamp(g)
    g.barrier()
    stamp(g)
    g.dsread("ds_read_b32 %s, %s offset:4" % (vr(NV), vr(TQ + 1)), "NN", dst=[NV], addr=[TQ + 1])
    run(b2_reads(g)(0))
    g.wait_lg("NN")
    g.valu("v_readfirstlane_b32 %s, %s" % (sr(S_NONCE), vr(NV)), src=[NV], readlane=True, sdst=[S_NONCE])
    cnt = [0]
    AC, VO, VF, F0, PL, PP = 224, 230, 231, 232, 234, 242
    S_CL = S_TYPE

    def tail(n, lds=False):
        u = n
        ops = []
        for i in range(4):
            d = (raw2(15, 0) if UM == 6 and not lds else 96) + (cnt[0] % 8) * 4
            cnt[0] += 1
            for m in range(4):
                a, b = acc2(2 * m, u) + i, acc2(2 * m + 1, u) + i
                t0, t1 = TQ + (m % 2) * 2, TQ + (m % 2) * 2 + 1
                ops.append(lambda t=t0, s=a: g.valu("v_accvgpr_read_b32 %s, %s" % (vr(t), vr(s)), dst=[t], src=[s]))
                ops.append(lambda t=t1, s=b: g.valu("v_accvgpr_read_b32 %s, %s" % (vr(t), vr(s)), dst=[t], src=[s]))
                ops.append(lambda d=d + m, a=t0, b=t1: g.valu("v_cvt_pk_bf16_f32 %s, %s, %s" % (vr(d), vr(a), vr(b)), dst=[d], src=[a, b]))
                if not E("NOFAST", 1):
                    ops.append(lambda d=d + m: g.valu("v_min_u32 %s, -2, %s" % (vr(d), vr(d)), dst=[d], src=[d]))
            p = i * 3 + (n >> 1)
            if (EXP or E("EXP2", 0)) and i >= 2:
                continue
            if not lds:
                ops.append(lambda p=p: g.s("s_add_u32 %s, %s, %d" % (sr(S_T + 6), sr(S_PB + (n & 1)), p * 1024)))
            def pst(d=d, p=p):
                if lds:
                    g.dswrite("ds_write_b128 %s, %s offset:%d" % (vr(L16), vr(d, 4), L_SELF + p * 1024), "SW", data=rng(d, 4), addr=[L16])
                    return
                srd = (SRD_X, SRD_K)[n & 1] if SELF else SRD_WS
                g.vstore("buffer_store_dwordx4 %s, %s, %s, %s offen%s" % (vr(d, 4), vr(L16), sr(srd, 4), sr(S_T + 6), DF), "PS", data=rng(d, 4), addr=[L16])
            ops.append(pst)
        if n == 0:
            TL0[:] = ops
        return ops

    def flag_store(soff, tag):
        g.s("s_mov_b64 exec, 1")
        g.vstore("buffer_store_dwordx2 %s, off, %s, %s sc1" % (vr(F0, 2), sr(SRD_WS, 4), sr(soff)), tag, data=[F0, F0 + 1])
        g.s("s_mov_b64 exec, -1")

    def setup_ops():
        ops = []
        A = ops.append
        A(lambda: g.s("s_xor_b32 %s, %s, 0x%x" % (sr(S_T), sr(S_NONCE), FC)))
        A(lambda: vop(g, "v_mov_b32 %s, %s" % (vr(F0), sr(S_NONCE)), F0))
        A(lambda: vop(g, "v_mov_b32 %s, %s" % (vr(F0 + 1), sr(S_T)), F0 + 1))
        LN, Q, G_, X1, X2, X3 = 112, 113, 114, 115, 116, 117
        V = lambda text, d, src=(): A(lambda: vop(g, text, d, src))
        V("v_lshrrev_b32 %s, 4, %s" % (vr(LN), vr(L16)), LN, [L16])
        V("v_and_b32 %s, 15, %s" % (vr(Q), vr(LN)), Q, [LN])
        V("v_lshrrev_b32 %s, 4, %s" % (vr(G_), vr(LN)), G_, [LN])
        V("v_lshrrev_b32 %s, 2, %s" % (vr(X1), vr(Q)), X1, [Q])
        V("v_and_b32 %s, 1, %s" % (vr(X2), vr(Q)), X2, [Q])
        V("v_lshlrev_b32 %s, 4, %s" % (vr(X2), vr(X2)), X2, [X2])
        V("v_mov_b32 %s, 0x3f80" % vr(X3), X3)
        V("v_lshlrev_b32 %s, %s, %s" % (vr(X3), vr(X2), vr(X3)), X3, [X2, X3])
        A(lambda: g.valu("v_cmp_eq_u32 vcc, %s, %s" % (vr(X1), vr(G_)), src=[X1, G_]))
        A(lambda: g.nop(2))
        V("v_cndmask_b32 %s, 0, %s, vcc" % (vr(X3), vr(X3)), X3, [X3])
        V("v_and_b32 %s, 2, %s" % (vr(X2), vr(Q)), X2, [Q])
        A(lambda: g.valu("v_cmp_eq_u32 vcc, 0, %s" % vr(X2), src=[X2]))
        for k in (0, 1, 4, 5):
            V("v_mov_b32 %s, 0" % vr(AC + k), AC + k)
        V("v_cndmask_b32 %s, 0, %s, vcc" % (vr(AC + 2), vr(X3)), AC + 2, [X3])
        V("v_cndmask_b32 %s, %s, 0, vcc" % (vr(AC + 3), vr(X3)), AC + 3, [X3])
        V("v_lshlrev_b32 %s, 6, %s" % (vr(VO), vr(G_)), VO, [G_])
        V("v_lshl_add_u32 %s, %s, 11, %s" % (vr(VO), vr(Q), vr(VO)), VO, [Q, VO])
        V("v_lshrrev_b32 %s, 1, %s" % (vr(VF), vr(L16)), VF, [L16])
        if SELF:
            A(lambda: g.s("s_mul_i32 %s, s3, 3072" % sr(S_T)))
            V("v_add_u32 %s, %s, %s" % (vr(PP), sr(S_T), vr(L16)), PP, [L16])
            V("v_mov_b32 %s, %d" % (vr(PP + 1), L_MISC), PP + 1)

            def masks():
                for h, srd in enumerate((SRD_X, SRD_K)):
                    g.s("s_mov_b64 %s, %s" % (sr(srd, 2), sr(SRD_WS, 2)))
                    g.s("s_lshl_b32 %s, s3, 1" % sr(S_T))
                    g.s("s_add_u32 %s, %s, %d" % (sr(S_T), sr(S_T), h))
                    g.s("s_cmp_lg_u32 %s, %s" % (sr(S_T), sr(S_HG)))
                    g.s("s_cselect_b32 %s, %s, 0" % (sr(srd + 2), sr(SRD_WS + 2)))
            A(masks)
        A(lambda: g.s("s_mov_b32 %s, 0" % sr(S_PHASE)))
        A(lambda: g.s("s_mov_b32 %s, 0" % sr(S_PEND)))
        A(lambda: g.s("s_mov_b32 %s, 0" % sr(S_CNT)))
        return ops

    def extra(s):
        ops = []
        if EXP and EXS <= s < EXS + 6:
            n = s - EXS
            for i in (2, 3):
                p = i * 3 + (n >> 1)
                def st(p=p, n=n):
                    g.s("s_add_u32 %s, %s, %d" % (sr(S_T + 6), sr(S_PB + (n & 1)), p * 1024))
                    g.vstore("buffer_store_dwordx4 %s, %s, %s, %s offen sc1" % (vr(A0 + 240, 4), vr(L16), sr(SRD_WS, 4), sr(S_T + 6)), "PS", data=rng(A0 + 240, 4), addr=[L16])
                ops.append(st)
        if EXP and s == EXL:
            for k in range(12):
                def ld(k=k):
                    d = A0 + 244 + (k % 3) * 4
                    g.s("s_add_u32 %s, %s, %d" % (sr(S_T), sr(S_XS + 2), (k & 7) * 12288 + (k >> 3) * 1024))
                    g.vload("buffer_load_dwordx4 %s, %s, %s, %s offen sc1" % (vr(d, 4), vr(L16), sr(SRD_WS, 4), sr(S_T)), "RX", dst=rng(d, 4), addr=[L16])
                ops.append(ld)
        if s == 0:
            ops.append(lambda: g.wait_vm("POI"))
            ops += setup_ops()
        if s == PFS and not E("NOFAST", 1):
            def pf():
                g.wait_vm("POI")
                g.s("s_add_u32 %s, %s, %d" % (sr(S_T), sr(S_FS), FLGP - FLG))
                flag_store(S_T, "PF")
            ops.append(pf)
        if s == PPS and not E("NOFAST", 1):
            def pp():
                g.s("s_add_u32 %s, %s, %d" % (sr(S_T), sr(S_XS + 1), FLGP - FLG))
                g.vload("buffer_load_dwordx2 %s, %s, %s, %s offen sc1" % (vr(PP, 2), vr(VF), sr(SRD_WS, 4), sr(S_T)), "PP", dst=[PP, PP + 1], addr=[VF])
            ops.append(pp)
        return ops
    (gemm2u if UM == 6 else gemm2)(g, wl2, b2_reads(g), tail, extra)
    stamp(g)
    LDT = [KF, KF + 32, 0]
    RD = 32
    OQ = 64

    def r_loads(t):
        for src in range(8):
            if EXP and (t == 0 or (t == 1 and src < 4)):
                continue
            d = LDT[t] + src * 4
            g.s("s_add_u32 %s, %s, %d" % (sr(S_T), sr(S_XS + 2), src * 12288 + t * 1024))
            g.vload("buffer_load_dwordx4 %s, %s, %s, %s offen sc1" % (vr(d, 4), vr(L16), sr(SRD_WS, 4), sr(S_T)), "R%d" % t, dst=rng(d, 4), addr=[L16])

    def r_sum(t):
        for src in range(8):
            d = LDT[t] + src * 4
            for h in range(2):
                r = RD + (t * 2 + h) * 4
                g.mfma(r, AC + 2 - 2 * h, d, None if src == 0 else r)

    def r_out(t):
        o = OQ + t * 4
        for h in range(2):
            r = RD + (t * 2 + h) * 4
            for k in range(2):
                g.valu("v_cvt_pk_bf16_f32 %s, %s, %s" % (vr(o + h * 2 + k), vr(r + 2 * k), vr(r + 2 * k + 1)), dst=[o + h * 2 + k], src=[r + 2 * k, r + 2 * k + 1])
        g.s("s_add_u32 %s, %s, %d" % (sr(S_T + 3), sr(S_OB), t * 65536))
        g.vstore("buffer_store_dwordx4 %s, %s, %s, %s offen%s" % (vr(o, 4), vr(VO), sr(SRD_OUT, 4), sr(S_T + 3), os.environ.get("OUTF", "")), "OUT", data=rng(o, 4), addr=[VO])

    def r_check(t):
        m = [TQ, TQ + 1]
        b = LDT[t]
        for c in range(2):
            g.valu("v_max3_u32 %s, %s, %s, %s" % (vr(m[c]), vr(b + 16 * c), vr(b + 16 * c + 1), vr(b + 16 * c + 2)), dst=[m[c]], src=rng(b + 16 * c, 3))
        for k in range(3, 15, 2):
            for c in range(2):
                x = b + 16 * c + k
                g.valu("v_max3_u32 %s, %s, %s, %s" % (vr(m[c]), vr(m[c]), vr(x), vr(x + 1)), dst=[m[c]], src=[m[c], x, x + 1])
        g.valu("v_max3_u32 %s, %s, %s, %s" % (vr(m[0]), vr(m[0]), vr(b + 15), vr(b + 31)), dst=[m[0]], src=[m[0], b + 15, b + 31])
        g.valu("v_max_u32 %s, %s, %s" % (vr(m[0]), vr(m[0]), vr(m[1])), dst=[m[0]], src=m)
        g.valu("v_cmp_eq_u32 vcc, -1, %s" % vr(m[0]), src=[m[0]])
        g.nop(1)
        g.s("s_cbranch_vccnz retry%d" % t)

    def flags_ok(pl):
        g.valu("v_cmp_eq_u32 vcc, %s, %s" % (vr(pl), vr(F0)), src=[pl, F0])
        g.valu("v_cmp_eq_u32 %s, %s, %s" % (sr(S_M, 2), vr(pl + 1), vr(F0 + 1)), src=[pl + 1, F0 + 1])
        g.s("s_mov_b64 exec, -1")
        g.s("s_and_b32 %s, %s, vcc_lo" % (sr(S_M), sr(S_M)))
        g.s("s_and_b32 %s, %s, 0xff" % (sr(S_M + 1), sr(S_M)))
        g.s("s_cmp_eq_u32 %s, 0xff" % sr(S_M + 1))

    NOFAST = E("NOFAST", 1)
    if not NOFAST:
        r_loads(0)
        r_loads(1)
        if T2POS == 0:
            r_loads(2)
        g.wait_vm("PP")
        flags_ok(PP)
        if FORCE_AB & 512:
            g.s("s_bitcmp1_b32 s2, 4")
        g.s("s_cbranch_scc0 slow")
        if FORCE_AB & 255:
            g.s("s_and_b32 %s, s2, %d" % (sr(S_T), FORCE_AB & 255))
            g.s("s_cmp_eq_u32 %s, 0" % sr(S_T))
            g.s("s_cbranch_scc1 slow")
        if FORCE_AB & 256:
            g.s("s_branch slow")
        g.wait_vm("R0")
        flag_store(S_FS, "FS")
        stamp(g)
        for t in range(3):
            g.wait_vm("R%d" % t)
            g.label("chk%d" % t)
            g.nop(1)
            r_check(t)
            if t == 0 and T2POS == 1:
                r_loads(2)
            r_sum(t)
            if t == 0 and T2POS == 2:
                r_loads(2)
            if t == 2:
                stamp(g)
            r_out(t)
        stamp(g)
        stamp_flush(g)
        g.s("s_branch after")
        for t in range(3):
            g.label("retry%d" % t)
            g.vmq = []
            r_loads(t)
            g.s("s_add_u32 %s, %s, 1" % (sr(S_CNT), sr(S_CNT)))
            g.s("s_cmp_lt_u32 %s, %d" % (sr(S_CNT), RETRY))
            g.waitcnt(vm=0)
            g.vmq = []
            g.s("s_cbranch_scc1 chk%d" % t)
            if t < 2:
                g.s("s_branch slow")
    S_DONE, S_ACC, S_NEW = S_CNT, S_T + 6, S_T + 7

    def poll_load(soff):
        if E("PX", 1):
            g.s("s_mov_b64 exec, 0xffff")
        g.vload("buffer_load_dwordx2 %s, %s, %s, %s offen sc1" % (vr(PL, 2), vr(VF), sr(SRD_WS, 4), sr(soff)), "PL", dst=[PL, PL + 1], addr=[VF])

    def poll(soff):
        poll_load(soff)
        g.waitcnt(vm=0)
        g.vmq = []
        flags_ok(PL)

    def elapsed():
        g.s("s_memrealtime %s" % sr(S_T + 4, 2))
        g.waitcnt(lg=0)
        g.s("s_sub_u32 %s, %s, %s" % (sr(S_T + 4), sr(S_T + 4), sr(S_NONCE)))

    def job_init():
        for k in range(24):
            vop(g, "v_mov_b32 %s, 0" % vr(RD + k), RD + k)
        g.s("s_mov_b32 %s, 0" % sr(S_DONE))
        g.s("s_mov_b32 %s, 0" % sr(S_ACC))
    g.label("slow")
    if STAMP == 5:
        g.s("s_mov_b32 m0, 12")
        g.s("s_mov_b64 exec, 0xfffff000")
        vop(g, "v_mov_b32 %s, 0" % vr(SV), SV)
        vop(g, "v_mov_b32 %s, 0" % vr(SV + 1), SV + 1)
        g.s("s_mov_b64 exec, -1")
    SF = 96
    S_SF = S_SM

    def force():
        if FORCE_AB & 255:
            g.s("s_and_b32 %s, s2, %d" % (sr(S_T), FORCE_AB & 255))
            g.s("s_cmp_eq_u32 %s, 0" % sr(S_T))
            g.s("s_cbranch_scc1 giveup")
        if FORCE_AB & 256:
            g.s("s_branch giveup")

    def publish():
        g.waitcnt(vm=0)
        g.vmq = []
        flag_store(S_FS, "FS")

    def self_lds(par):
        for u in range(par, 6, 2):
            run(tail(u, True))
        g.dswrite("ds_write_b32 %s, %s offset:8" % (vr(PP + 1), vr(F0)), "SW", data=[F0], addr=[PP + 1])
    job_init()
    if SELF:
        g.s("s_lshl_b32 %s, 1, %s" % (sr(S_DONE), sr(S_HG)))
        g.s("s_mov_b32 %s, 1" % sr(S_SF))
        g.s("s_cmp_eq_u32 %s, 0" % sr(SRD_K + 2))
        g.s("s_cbranch_scc1 self1")
        g.s("s_cmp_eq_u32 %s, 0" % sr(SRD_X + 2))
        g.s("s_cbranch_scc1 self0")
        g.label("pub")
    publish()
    if SELF:
        g.label("pub2")
    if NOFAST:
        stamp(g)
    if not SELF:
        force()
    g.s("s_branch poll")
    if SELF:
        g.label("self0")
        self_lds(0)
        g.s("s_branch pub")
        g.label("self1")
        publish()
        self_lds(1)
        g.s("s_branch pub2")
    g.label("job")
    job_setup(g, lambda o: o())
    job_init()
    g.label("poll")
    poll_load(S_XS + 1)
    g.waitcnt(vm=0)
    g.vmq = []
    g.label("process")
    flags_ok(PL)
    if STAMP == 5:
        g.s("s_memrealtime %s" % sr(S_ST, 2))
        g.waitcnt(lg=0)
        g.valu("v_writelane_b32 %s, %s, m0" % (vr(SV), sr(S_ST)), dst=[SV])
        g.valu("v_writelane_b32 %s, %s, m0" % (vr(SV + 1), sr(S_M + 1)), dst=[SV + 1])
        g.s("s_add_u32 m0, m0, 1")
        g.s("s_min_u32 m0, m0, 31")
    g.s("s_andn2_b32 %s, %s, %s" % (sr(S_NEW), sr(S_M + 1), sr(S_DONE)))
    g.s("s_cbranch_scc0 noload")
    for src in range(8):
        g.s("s_bitcmp1_b32 %s, %d" % (sr(S_NEW), src))
        g.s("s_cbranch_scc0 nold%d" % src)
        g.s("s_add_u32 %s, %s, %d" % (sr(S_T), sr(S_XS + 2), src * 12288))
        for t in range(3):
            if E("EXP2", 0) and (src & 1):
                continue
            d = LDT[t] + src * 4
            g.vload("buffer_load_dwordx4 %s, %s, %s, %s offen offset:%d%s" % (vr(d, 4), vr(L16), sr(SRD_WS, 4), sr(S_T), t * 1024, DFL), "R", dst=rng(d, 4), addr=[L16])
        g.label("nold%d" % src)
    g.vmq = []
    g.label("noload")
    if SELF:
        g.s("s_cmp_eq_u32 %s, 0" % sr(S_SF))
        g.s("s_cbranch_scc1 noself")
        g.s("s_mov_b32 %s, 0" % sr(S_SF))
        g.label("selfw")
        g.dsread("ds_read_b32 %s, %s offset:8" % (vr(TQ), vr(PP + 1)), "SR", dst=[TQ], addr=[PP + 1])
        for t in range(3):
            g.dsread("ds_read_b128 %s, %s offset:%d" % (vr(SF + t * 4, 4), vr(PP), L_SELF + t * 1024), "SR", dst=rng(SF + t * 4, 4), addr=[PP])
        g.waitcnt(lg=0)
        g.lgq = []
        g.valu("v_readfirstlane_b32 %s, %s" % (sr(S_T), vr(TQ)), src=[TQ], readlane=True, sdst=[S_T])
        g.s("s_cmp_eq_u32 %s, %s" % (sr(S_T), sr(S_NONCE)))
        g.s("s_cbranch_scc0 selfw")
        for t in range(3):
            for h in range(2):
                r = RD + (t * 2 + h) * 4
                g.mfma(r, AC + 2 - 2 * h, SF + t * 4, r)
        force()
        g.label("noself")
    g.s("s_cmp_eq_u32 %s, 0" % sr(S_ACC))
    g.s("s_cbranch_scc1 noacc")
    for src in range(8):
        g.s("s_bitcmp1_b32 %s, %d" % (sr(S_ACC), src))
        g.s("s_cbranch_scc0 noac%d" % src)
        for t in range(3):
            for h in range(2):
                r = RD + (t * 2 + h) * 4
                g.mfma(r, AC + 2 - 2 * h, LDT[t] + src * 4, r)
        g.label("noac%d" % src)
    g.label("noacc")
    g.s("s_or_b32 %s, %s, %s" % (sr(S_DONE), sr(S_DONE), sr(S_NEW)))
    g.s("s_mov_b32 %s, %s" % (sr(S_ACC), sr(S_NEW)))
    g.s("s_cmp_lg_u32 %s, 0xff" % sr(S_DONE))
    g.s("s_cbranch_scc1 more")
    g.s("s_cmp_eq_u32 %s, 0" % sr(S_ACC))
    g.s("s_cbranch_scc1 finish")
    if NOFAST:
        stamp(g)
    g.waitcnt(vm=0)
    g.s("s_mov_b32 %s, 0" % sr(S_NEW))
    g.s("s_branch noload")
    g.label("more")
    g.s("s_cmp_lg_u32 %s, 0" % sr(S_NEW))
    g.s("s_cbranch_scc1 poll")
    g.s("s_sleep %d" % SLEEP)
    elapsed()
    g.s("s_cmp_lt_i32 %s, %d" % (sr(S_T + 4), X_AB))
    g.s("s_cbranch_scc1 poll")
    g.label("giveup")
    if SELF:
        g.s("s_cmp_lg_u32 %s, 0" % sr(S_PHASE))
        g.s("s_cbranch_scc1 giveup2")
        g.s("s_mul_i32 %s, %s, 12288" % (sr(S_T), sr(S_HG)))
        g.s("s_add_u32 %s, %s, %s" % (sr(S_T), sr(S_T), sr(S_XS + 2)))
        for t in range(3):
            g.vstore("buffer_store_dwordx4 %s, %s, %s, %s offen offset:%d sc1" % (vr(SF + t * 4, 4), vr(L16), sr(SRD_WS, 4), sr(S_T), t * 1024), "PS", data=rng(SF + t * 4, 4), addr=[L16])
        g.waitcnt(vm=0)
        g.vmq = []
        g.label("giveup2")
    g.s("s_and_b32 %s, %s, 1" % (sr(S_T), sr(S_RO)))
    g.s("s_lshl_b32 %s, %s, 2" % (sr(S_T), sr(S_T)))
    g.s("s_add_u32 %s, %s, %s" % (sr(S_T), sr(S_T), sr(S_RR)))
    g.s("s_lshl_b32 %s, %s, 3" % (sr(S_T), sr(S_T)))
    g.s("s_add_u32 %s, %s, 64" % (sr(S_T), sr(S_T)))
    g.s("s_add_u32 %s, %s, %s" % (sr(S_T), sr(S_T), sr(S_XS + 1)))
    flag_store(S_T, "FS")
    g.waitcnt(vm=0)
    g.vmq = []
    poll(S_XS + 1)
    g.s("s_cbranch_scc1 process")
    g.s("s_branch after")
    g.label("finish")
    g.nop(10)
    for t in range(3):
        r_out(t)
    if NOFAST:
        stamp(g)
        stamp_flush(g)
    g.label("after")
    g.nop(8)
    g.s("s_cmp_lg_u32 %s, 0" % sr(S_PHASE))
    g.s("s_cbranch_scc1 next")
    g.s("s_mov_b32 %s, 1" % sr(S_PHASE))
    g.waitcnt(vm=3 + (1 if STAMP else 0))
    elapsed()
    g.s("s_cmp_lt_i32 %s, %d" % (sr(S_T + 4), X_CK))
    if not FORCE_AB:
        g.s("s_cbranch_scc1 k_end")
    poll(S_XS)
    g.s("s_lshr_b32 %s, %s, 8" % (sr(S_PEND), sr(S_M)))
    g.s("s_and_b32 %s, %s, 0xff" % (sr(S_PEND), sr(S_PEND)))
    g.s("s_cmp_eq_u32 %s, 0xff" % sr(S_M + 1))
    g.s("s_cselect_b32 %s, %s, 0" % (sr(S_PEND), sr(S_PEND)))
    g.label("next")
    g.s("s_cmp_eq_u32 %s, 0" % sr(S_PEND))
    g.s("s_cbranch_scc1 k_end")
    g.s("s_ff1_i32_b32 %s, %s" % (sr(S_T), sr(S_PEND)))
    g.s("s_bitset0_b32 %s, %s" % (sr(S_PEND), sr(S_T)))
    g.s("s_and_b32 %s, %s, 3" % (sr(S_RR), sr(S_T)))
    g.s("s_lshr_b32 %s, %s, 2" % (sr(S_T), sr(S_T)))
    g.s("s_lshl_b32 %s, s3, 1" % sr(S_RO))
    g.s("s_add_u32 %s, %s, %s" % (sr(S_RO), sr(S_RO), sr(S_T)))
    g.waitcnt(vm=0)
    g.s("s_branch job")
    g.label("k_end")


def body():
    _stamp_n[0] = 0
    g0 = prologue()
    n = len(CLS)
    if n > 1:
        if CLF == "b":
            g0.s("s_and_b32 %s, %s, %d" % (sr(S_TYPE), sr(S_B), n - 1))
        else:
            g0.s("s_add_u32 %s, %s, %s" % (sr(S_TYPE), sr(S_B), sr(S_HG)))
            g0.s("s_and_b32 %s, %s, %d" % (sr(S_TYPE), sr(S_TYPE), n - 1))
        for c in range(1, n):
            g0.s("s_cmp_eq_u32 %s, %d" % (sr(S_TYPE), c))
            g0.s("s_cbranch_scc1 cls%d" % c)
    n0 = _stamp_n[0]
    txt = []
    for c in range(n):
        _stamp_n[0] = n0
        g = Gen()
        g.label("cls%d" % c)
        part1(g, CLS[c])
        if c:
            g.s("s_branch join")
        txt.append(g.text())
    g = Gen()
    g.vmq = ["V0", "V1", "V2", "TCH", "VD"]
    g.label("join")
    part2(g)
    g.raw("s_endpgm")
    return g0.text() + txt[0] + g.text() + "".join(txt[1:]) + "code_end:\n"


def main():
    out = "; fused attention: q-proj + attention + o-proj partial per workgroup, cross-workgroup bf16 reduction\n"
    out += "; @launch kernel=attn_kernel grid=(256,1,1) block=(256,1,1) lds=%d\n" % LDS_BYTES
    out += '.amdgcn_target "amdgcn-amd-amdhsa--gfx950"\n.text\n'
    out += ".globl attn_kernel\n.p2align 8\n.type attn_kernel,@function\nattn_kernel:\n"
    out += body()
    out += '.section .rodata,"a"\n.p2align 6\n.amdhsa_kernel attn_kernel\n'
    out += "  .amdhsa_next_free_vgpr 512\n  .amdhsa_next_free_sgpr 102\n  .amdhsa_accum_offset 256\n"
    out += "  .amdhsa_group_segment_fixed_size 0\n  .amdhsa_kernarg_size 104\n  .amdhsa_user_sgpr_count 2\n"
    out += "  .amdhsa_user_sgpr_kernarg_segment_ptr 1\n  .amdhsa_system_sgpr_workgroup_id_x 1\n.end_amdhsa_kernel\n"
    path = sys.argv[1] if len(sys.argv) > 1 else "cdna_kernels/%s.s" % NAME
    open(path, "w").write(out)
    print("wrote", path, len(out), "bytes; stamps", _stamp_n[0], "late", LATE[:12])
    if E("INFO", 0):
        for i in INFO:
            print(i)


main()
```

```python
import sys, os
sys.path.insert(0, os.path.dirname(os.path.abspath(__file__)))
from asmgen2 import Gen, vr, sr

NAME = "concat_heads__gqa_block_cached__gqa_block_cached__near_ridge"
WS_BYTES = 268435456
E = lambda k, d: int(os.environ.get(k, str(d)))
STAMP = E("STAMP", 0)
STAMP_BASE = 200 * 1024 * 1024
NRAW = E("NRAW", 3)
WQT = E("WQT", 1)
WOT = E("WOT", 1)
XBAR = dict((int(a), int(b)) for a, b in (t.split(":") for t in os.environ.get("XBAR", "0:1,4:3,8:5,12:7").split(",")))
VL = dict((int(t[0]), int(t[2])) for t in os.environ.get("VL", "0h0,1h1,2h2").split(",") if t)
PDEF = os.environ.get("PTOK", "x0,w0,x1,w1,t")
QB = os.environ.get("QB", "w2,x2,x3,w3,w4,w5,w6,x4,x5,w7,w8,w9,w10,x6,x7,w11,w12,w13,w14,w15,V0h0,V1h1")
CLS = []
for c in os.environ.get("KP", "5,9,13|6,10,14|7,11,15|8,12,15").split("|"):
    kp = [int(t) for t in c.split(",")]
    q = []
    for tok in QB.split(","):
        q.append(tok)
        for p_ in range(3):
            if tok == "w%d" % kp[p_]:
                q.append("K%dh%d" % (p_, p_))
    CLS.append({"P": PDEF.split(","), "Q": q})
if os.environ.get("QTOK"):
    CLS = [{"P": PDEF.split(","), "Q": c.split(",")} for c in os.environ["QTOK"].split("|")]
RM = E("RM", 14)
MAP = E("MAP", 0)
PLAIN = E("PLAIN", 0)
DF = "" if PLAIN else " sc1"
DFL = ["", "", " sc0", " sc1"][PLAIN] if PLAIN else " sc1"
BUD, CC, CW, CAP = E("BUD", 58), E("CC", 65), E("CW", 33), E("CAP", 100)
SM2 = E("SM2", 0)
POST = {}
for it in os.environ.get("POST", "0=V2h2;3=T;4=Y").split(";"):
    k, v = it.split("=")
    POST[int(k)] = v.split(",")
CLF = os.environ.get("CLF", "b")
FORCE_AB = E("FORCE_AB", 0)
POLL_MAX = E("POLL_MAX", 300)
SLEEP = E("SLEEP", 2)
NT = os.environ.get("NT", " nt")
PART = 0
FLG = 64 * 1024 * 1024
FC = 0x5A3C96E1
FLGP = FLG + 65536
X_AB = E("X_AB", 40000)
X_CK = E("X_CK", 20000)
RETRY = E("RETRY", 40)
R2 = [int(c) for c in os.environ.get("R2", "11211212")]
PFS = E("PFS", 1)
PPS = E("PPS", 11)
T2POS = E("T2POS", 1)
EXP, EXS, EXL = E("EXP", 0), E("EXS", 4), E("EXL", 11)

SRD_X, SRD_K, SRD_V, SRD_W, SRD_WS, SRD_WO, SRD_OUT, SRD_DBG = 20, 24, 28, 32, 36, 40, 44, 48
SE = 51
S_PLO, S_PHI = 60, 61
S_BH, S_HG, S_B, S_BLK, S_GRP, S_TYPE, S_C = 62, 63, 64, 65, 66, 67, 68
S_W0 = 70
S_T = 72
S_NONCE, S_RO, S_RR, S_PEND, S_PHASE, S_CNT = 80, 81, 82, 83, 84, 85
S_WI, S_XR = 80, 82
ROT = E("ROT", 2)
S_XS = 86
S_XM = 89
S_PB = 89
S_VL = 92
S_M = 94
S_ST = 96

RAW = 0
WT = 96 if NRAW == 3 else 224
WT8 = 64
KF = 128
VW, XB, VK, VV, VWO, L16, VOW, L16H = 240, 241, 245, 246, 247, 248, 249, 250
VOW2 = XB
TQ = 251
XA = TQ
WTA = 112 if NRAW == 3 else A0 + 254 if False else 112
VR2 = 0
VKD, VKR = 113, 117
QF = 32
SB = 64
PT = 112
TM = 124
OB = 64
TT = 32
ZQ = 224
A0 = 256
ACC = A0
BF = A0 + 192
VRA = A0 + 192

L_V = 98304
L_MISC = 34816
LDS_BYTES = 163840

_stamp_n = [0]


def rng(a, n):
    return list(range(a, a + n))


def vop(g, text, dst, src=()):
    g.valu(text, dst=[dst] if isinstance(dst, int) else dst, src=src)


SV = 236


def stamp(g, have=False):
    if not STAMP:
        return
    n = _stamp_n[0]
    _stamp_n[0] += 1
    if not have:
        g.s("%s %s" % (os.environ.get("CLK", "s_memrealtime"), sr(S_ST, 2)))
        g.waitcnt(lg=0)
        g.lgq = []
    g.valu("v_writelane_b32 %s, %s, %d" % (vr(SV), sr(S_ST), n), dst=[SV])
    g.valu("v_writelane_b32 %s, %s, %d" % (vr(SV + 1), sr(S_ST + 1), n), dst=[SV + 1])


def stamp_flush(g):
    if not STAMP:
        return
    g.s("s_lshl_b32 %s, s2, 8" % sr(S_ST + 2))
    g.s("s_add_u32 %s, %s, %d" % (sr(S_ST + 2), sr(S_ST + 2), STAMP_BASE))
    g.s("s_mul_i32 %s, s3, 1048576" % sr(S_ST + 3))
    g.s("s_add_u32 %s, %s, %s" % (sr(S_ST + 2), sr(S_ST + 2), sr(S_ST + 3)))
    vop(g, "v_lshrrev_b32 %s, 1, %s" % (vr(TQ), vr(L16)), TQ, [L16])
    g.s("s_mov_b64 exec, 0xffffffff")
    g.vstore("buffer_store_dwordx2 %s, %s, %s, %s offen" % (vr(SV, 2), vr(TQ), sr(SRD_WS, 4), sr(S_ST + 2)), "STAMP", data=[SV, SV + 1], addr=[TQ])
    g.s("s_mov_b64 exec, -1")


def make_srd(g, srd, ptr, nbytes):
    g.s("s_mov_b32 %s, %s" % (sr(srd), sr(ptr)))
    g.s("s_and_b32 %s, %s, 0xffff" % (sr(srd + 1), sr(ptr + 1)))
    g.s("s_mov_b32 %s, %d" % (sr(srd + 2), nbytes))
    g.s("s_mov_b32 %s, 0x00020000" % sr(srd + 3))


def acc1(j, u):
    return ACC + (u * 8 + j) * 4


def acc2(j, u):
    return ACC + (u * 8 + j) * 4


SL2 = [32, 0, 64, KF, KF + 32]


UM = E("UM", 6)
SELF = E("SELF", 1)
ST2 = E("ST2", 0)
HOOK = {}
OC = E("OC", 0)
VST, VLD = 240, 241
EP = E("EP", 0)
L_SELF = 49152
S_SM, S_SP = 8, 14


def raw2(s, e):
    if UM == 6 and s in (13, 14):
        s = 27 - s
    return SL2[s % 5] + e * 4


CYC = [KF + 64, 32, 64, 0, KF, KF + 32]


def raw(s, e):
    return CYC[s % 6] + e * 4


def bf(s, u):
    return BF + ((s % 2) * 6 + u) * 4


def perm_ops(g, rbase, j, dst):
    ops = []
    for m in range(4):
        a, b = rbase + (2 * m) * 4 + (j >> 1), rbase + (2 * m + 1) * 4 + (j >> 1)
        sel = S_PHI if j & 1 else S_PLO

        def op(a=a, b=b, d=dst + m, sel=sel):
            g.valu("v_perm_b32 %s, %s, %s, %s" % (vr(d), vr(b), vr(a), sr(sel)), dst=[d], src=[a, b])
        ops.append(op)
    return ops


def merge(main, fill):
    n = len(main)
    k = 0
    for i, m in enumerate(main):
        m()
        upto = (len(fill) * (i + 1) + n - 1) // n
        while k < upto:
            fill[k]()
            k += 1


def units(tag, ops, cost):
    out, cur = [], []
    for o in ops:
        cur.append(o)
        if getattr(o, "is_load", False):
            out.append([tag, cost, cur])
            cur = []
    if cur:
        out.append([tag, 0, cur])
    return out


def gemm1(g, cl, b_reads, tail):
    acc = acc1
    pend = []
    rdone = set()
    kbar = min(k - 1 for k in XBAR if k - 1 >= 5)
    vbar = min(k - 1 for k in XBAR if k - 1 >= 11)
    for tok in cl["Q"]:
        if tok[0] == "@":
            pend.append([tok, 0, []])
        else:
            pend += units(tok, tok_ops(g, tok), CW if tok[0] == "w" or (ROT == 2 and tok[0] == "x" and int(tok[1]) >= 4) else CC)
    credit = [0]
    kiss = {}
    INFO.append(kiss)

    def ok(tag, s, j):
        if tag[0] == "@":
            return s >= int(tag[1:])
        if tag[0] == "w":
            return (s, j) >= (int(tag[1:]) - 6, 7)
        if tag[0] == "K" and tag[3] == "2":
            return (s, j) >= (kbar, 4)
        if tag[0] == "V" and tag[3] == "2":
            return (s, j) >= (vbar, 4)
        if tag[0] == "V":
            return tag[3] in rdone
        return True

    def take(s, j):
        out = []
        credit[0] = min(CAP, credit[0] + BUD)
        while pend and ok(pend[0][0], s, j) and credit[0] >= pend[0][1]:
            t, c, o = pend.pop(0)
            credit[0] -= c
            out += o
            kiss[t] = 8 * s + j
        return out

    def upto(tag, s, j):
        out = []
        while any(t == tag for t, _, _ in pend):
            t, c, o = pend.pop(0)
            assert t[0] == "@" or ok(t, s, j), (t, tag, s, j)
            credit[0] -= c
            out += o
            kiss[t] = 8 * s + j
            LATE.append((tag, t, s, j))
        return out
    side = []

    rnext = [0]

    def side_add(s):
        while rnext[0] < 3:
            p_ = rnext[0]
            tok = "R%dh%d" % (p_, p_)
            if s < 16 and (s < 11 + p_ or any(t == "K" + tok[1:] for t, _, _ in pend) or 8 * s < kiss["K" + tok[1:]] + RM):
                break
            side.append(lambda tok=tok, s=s: run(upto("K" + tok[1:], s, 0)))
            side.extend(tok_ops(g, tok))
            side.append(lambda tok=tok: rdone.add(tok[3]))
            rnext[0] += 1
            INFO.append((tok, s))

    def side_take(n):
        out = []
        while side and n > 0:
            o = side.pop(0)
            out.append(o)
            if getattr(o, "is_load", False):
                n -= 1
        while side and not getattr(side[0], "is_load", False) and len(side) == 1:
            out.append(side.pop(0))
        return out
    g.wait_vm("W0")
    for op in perm_ops(g, raw(0, 0), 0, WT):
        op()
    for s in range(15):
        side_add(s)
        for j in range(8):
            idx = 8 * s + j
            fill = []
            if j == 7:
                fill += upto("w%d" % (s + 1), s, j)
                fill.append(lambda s=s: g.wait_vm("W%d" % (s + 1)))
                fill += perm_ops(g, raw(s + 1, 0), 0, (WT8 if s == 14 else WT + ((idx + 1) % 4) * 4))
            else:
                fill += perm_ops(g, raw(s, 0), j + 1, WT + ((idx + 1) % 4) * 4)
            fill += take(s, j)
            if j == 3 and (s + 1) in XBAR:
                tags = ["X%d" % k for k in range(XBAR[s + 1] + 1)]
                for t in tags:
                    fill += upto(t.lower(), s, j)
                fill.append(lambda tags=tags: g.wait_vm(tags))
                fill.append(g.barrier)
            if 3 <= j <= 5:
                fill += b_reads(s + 1)[(j - 3) * 2:(j - 3) * 2 + 2]
            elif j < 3:
                fill += side_take(3)
            if j == 0:
                g.wait_lg("B%d" % s)
                if STAMP == 2 and s > 0:
                    stamp(g)
            a = WT + (idx % 4) * 4
            main = [(lambda u=u: g.mfma(acc(j, u), a, bf(s, u), None if s == 0 else acc(j, u))) for u in range(6)]
            merge(main, fill)
    s = 15
    side_add(15)
    g.wait_lg("B15")
    carry = []
    for n, u in enumerate(range(6)):
        main = [(lambda j=j: g.mfma(acc(j, u), WT8 + j * 4, bf(s, u), acc(j, u))) for j in range(8)]
        if n == 0:
            for j in range(8):
                main[j]()
                if j < 7:
                    for op in perm_ops(g, raw(s, 0), j + 1, WT8 + (j + 1) * 4):
                        op()
        else:
            fill = side_take(4)
            merge(main[:1], fill)
            fill = take(15, n) + take(15, n) + carry[:20]
            carry = carry[20:]
            merge(main[1:], fill)
        carry += tail(u)
    side_add(16)
    run(side)
    rest = []
    for t, c, o in pend:
        assert t[0] == "@" or ok(t, 16, 0), t
        rest += o
    return rest, carry


LATE = []
INFO = []


def mark(ops):
    for o in ops:
        names = o.__code__.co_names
        if "vload" in names:
            o.is_load = True
    return ops


def q_conv(g, u):
    ops = []
    for i in range(4):
        for m in range(4):
            t0, t1 = TQ + (m % 2) * 2, TQ + (m % 2) * 2 + 1
            s0, s1 = acc1(2 * m, u) + i, acc1(2 * m + 1, u) + i
            d = QF + (u % 2) * 16 + i * 4 + m
            ops.append(lambda t=t0, s=s0: g.valu("v_accvgpr_read_b32 %s, %s" % (vr(t), vr(s)), dst=[t], src=[s]))
            ops.append(lambda t=t1, s=s1: g.valu("v_accvgpr_read_b32 %s, %s" % (vr(t), vr(s)), dst=[t], src=[s]))
            ops.append(lambda d=d, a=t0, b=t1: g.valu("v_cvt_pk_bf16_f32 %s, %s, %s" % (vr(d), vr(a), vr(b)), dst=[d], src=[a, b]))
    return ops


def sacc(u, kt):
    return SB + (u % 2) * 24 + kt * 4


def pfrag(u, pp):
    return ACC + u * 32 + pp * 4


ONES = 224


def psum(u):
    return ACC + u * 32 + 12


def softmax_ops(g, u):
    ops = []
    A = ops.append
    vals = [sacc(u, kt) + r for kt in range(6) for r in range(4)]
    m, tmp, r = TM, TM + 1, TM + 2
    m2 = TM + 3

    def V(text, dst, src, **kw):
        A(lambda: g.valu(text, dst=dst, src=src, **kw))
    V("v_max3_f32 %s, %s, %s, %s" % (vr(m), vr(vals[0]), vr(vals[1]), vr(vals[2])), [m], vals[0:3])
    V("v_max3_f32 %s, %s, %s, %s" % (vr(m2), vr(vals[3]), vr(vals[4]), vr(vals[5])), [m2], vals[3:6])
    k = 6
    while k < 24:
        mm = m if (k // 2) % 2 else m2
        V("v_max3_f32 %s, %s, %s, %s" % (vr(mm), vr(mm), vr(vals[k]), vr(vals[k + 1])), [mm], [mm, vals[k], vals[k + 1]])
        k += 2
    V("v_max_f32 %s, %s, %s" % (vr(m), vr(m), vr(m2)), [m], [m, m2])

    def xl(x, op):
        for sw in ("v_permlane32_swap_b32", "v_permlane16_swap_b32"):
            V("v_mov_b32 %s, %s" % (vr(tmp), vr(x)), [tmp], [x])
            V("%s %s, %s" % (sw, vr(x), vr(tmp)), [x, tmp], [x, tmp], permlane=True)
            V("%s %s, %s, %s" % (op, vr(x), vr(x), vr(tmp)), [x], [x, tmp])
    xl(m, "v_max_f32")
    V("v_mul_f32 %s, %s, %s" % (vr(m), sr(S_C), vr(m)), [m], [m])
    for v in vals:
        V("v_fma_f32 %s, %s, %s, -%s" % (vr(v), vr(v), sr(S_C), vr(m)), [v], [v, m])
    for v in vals:
        V("v_exp_f32 %s, %s" % (vr(v), vr(v)), [v], [v], trans=True)
    for pp in range(3):
        for h in range(4):
            a = sacc(u, 2 * pp + (h >> 1)) + (h & 1) * 2
            d = PT + pp * 4 + h
            V("v_cvt_pk_bf16_f32 %s, %s, %s" % (vr(d), vr(a), vr(a + 1)), [d], [a, a + 1])
    for k in range(12):
        d = pfrag(u, 0) + k
        V("v_accvgpr_write_b32 %s, %s" % (vr(d), vr(PT + k)), [d], [PT + k])
    for pp in range(3):
        A(lambda pp=pp: g.mfma(psum(u), ONES, PT + pp * 4, None if pp == 0 else psum(u)))
    return ops


S_K2, S_KD, S_JUNK, S_TB = 4, 5, 13, 6


def k_dma(g, part, half):
    ops = []
    for n8 in range(8):
        n = part * 8 + n8
        ops.append(lambda n=n: g.s("s_add_u32 %s, %s, %d" % (sr(S_T + 1), sr(S_BH), n * 1024)))
        if half == 2:
            ops.append(lambda n8=n8: g.s("s_add_u32 m0, %s, %d" % (sr(S_K2), n8 * 1024), m0=True))
        else:
            ops.append(lambda n8=n8: g.s("s_add_u32 m0, %s, %d" % (sr(S_VL), half * 8192 + n8 * 1024), m0=True))
        ops.append(lambda n=n: g.vload("buffer_load_dwordx4 %s, %s, %s offen%s lds" % (vr(VKD + (n & 3)), sr(SRD_K, 4), sr(S_T + 1), NT), "KD%d" % part, addr=[VKD + (n & 3)], lds=True))
    return ops


def k_read(g, part, half):
    ops = [lambda: g.wait_vm("KD%d" % part)]
    if half == 2:
        for i in range(4):
            ops.append(lambda i=i: vop(g, "v_subrev_u32 %s, %s, %s" % (vr(VKR + i), sr(S_KD), vr(VKR + i)), VKR + i, [VKR + i]))
    for k2 in range(2):
        for i in range(4):
            d = KF + ((part * 2 + k2) * 4 + i) * 4
            o = lambda d=d, i=i, k2=k2: g.dsread("ds_read_b128 %s, %s offset:%d" % (vr(d, 4), vr(VKR + i), (half & 1) * 8192 + k2 * 4096), "KR%d" % half, dst=rng(d, 4), addr=[VKR + i])
            o.is_load = True
            ops.append(o)
    return ops


def vraw(pp, e):
    return (VRA + pp * 32 + e * 4) if pp < 2 else (VR2 + e * 4)


def v_loads(g, pp_):
    ops = []
    for pp in (pp_,):
        for e in range(8):
            if e % 4 == 0:
                ops.append(lambda pp=pp, e=e: g.s("s_add_u32 %s, %s, %d" % (sr(S_T + 1), sr(S_BH), pp * 8192 + (e >> 2) * 4096)))
            d = vraw(pp, e)
            ops.append(lambda d=d, e=e, pp=pp: g.vload("buffer_load_dwordx4 %s, %s, %s, %s offen offset:%d%s" % (vr(d, 4), vr(VV), sr(SRD_V, 4), sr(S_T + 1), (e & 3) * 256, NT),
                                                       "V%d" % pp, dst=rng(d, 4), addr=[VV]))
    return ops


L_V2 = 36864


def v_dma(g, pp, half):
    ops = [lambda: g.wait_lg("KR%d" % half)] if half < 2 else []
    for e in range(8):
        ops.append(lambda pp=pp, e=e: g.s("s_add_u32 %s, %s, %d" % (sr(S_T + 1), sr(S_BH), pp * 8192 + e * 1024)))
        if half < 2:
            ops.append(lambda pp=pp, e=e: g.s("s_add_u32 m0, %s, %d" % (sr(S_VL), (half * 8 + e) * 1024), m0=True))
        else:
            ops.append(lambda pp=pp, e=e: g.s("s_add_u32 m0, %s, %d" % (sr(S_K2), L_V2 + e * 1024), m0=True))
        a = VK if e & 1 else VV
        ops.append(lambda a=a: g.vload("buffer_load_dwordx4 %s, %s, %s offen%s lds" % (vr(a), sr(SRD_V, 4), sr(S_T + 1), NT), "VD", addr=[a], lds=True))
    return ops


def wo_touch(g):
    ops = []
    A = ops.append
    if MAP:
        A(lambda: g.s("s_and_b32 %s, %s, 3" % (sr(S_T + 3), sr(S_B))))
        A(lambda: g.s("s_lshl_b32 %s, %s, 2" % (sr(S_T + 3), sr(S_T + 3))))
    else:
        A(lambda: g.s("s_lshl_b32 %s, %s, 2" % (sr(S_T + 3), sr(S_B))))
    A(lambda: g.s("s_add_u32 %s, %s, s3" % (sr(S_T + 3), sr(S_T + 3))))
    A(lambda: g.s("s_lshl_b32 %s, %s, 13" % (sr(S_T + 3), sr(S_T + 3))))
    A(lambda: g.s("s_lshl_b32 %s, %s, 19" % (sr(S_T + 4), sr(S_HG))))
    A(lambda: g.s("s_add_u32 %s, %s, %s" % (sr(S_T + 3), sr(S_T + 3), sr(S_T + 4))))
    A(lambda: vop(g, "v_lshlrev_b32 %s, 3, %s" % (vr(TQ + 4), vr(L16)), TQ + 4, [L16]))
    for k in range(3 if MAP else 0):
        A(lambda: g.vload("buffer_load_dword %s, %s, %s, %s offen" % (vr(VW), vr(TQ + 4), sr(SRD_WO, 4), sr(S_T + 3)), "TCH", dst=[VW], addr=[TQ + 4]))
        A(lambda: g.s("s_add_u32 %s, %s, 131072" % (sr(S_T + 3), sr(S_T + 3))))
    A(lambda: g.vload("buffer_load_dword %s, %s, %s, %s offen" % (vr(TQ + 4), vr(TQ + 4), sr(SRD_WO, 4), sr(S_T + 3)), "TCH", dst=[TQ + 4], addr=[TQ + 4]))
    return ops


def w1_loads(g):
    def f(s):
        ops = []
        if s > 0:
            if ROT:
                ops.append(lambda: vop(g, "v_add_u32 %s, %s, %s" % (vr(VW), sr(S_WI + (s & 1)), vr(VW)), VW, [VW]))
                ops.append(lambda: vop(g, "v_and_b32 %s, 0x3fffff, %s" % (vr(VW), vr(VW)), VW, [VW]))
            else:
                ops.append(lambda: vop(g, "v_add_u32 %s, 0x40000, %s" % (vr(VW), vr(VW)), VW, [VW]))
        for e in range(8):
            d = raw(s, e)
            so = "0" if e == 0 else sr(SE + e)
            ops.append(lambda d=d, so=so, s=s: g.vload("buffer_load_dwordx4 %s, %s, %s, %s offen" % (vr(d, 4), vr(VW), sr(SRD_W, 4), so),
                                                       "W%d" % s, dst=rng(d, 4), addr=[VW]))
        return mark(ops)
    return f


def b1_reads(g):
    def f(s):
        ops = []
        sp = s >> 1
        a = XB + (s & 1) + 2 * (sp >> 2)
        for u in range(6):
            d = bf(s, u)
            ops.append(lambda d=d, a=a, off=((sp & 3) * 12 + 2 * u) * 1024, s=s:
                       g.dsread("ds_read_b128 %s, %s offset:%d" % (vr(d, 4), vr(a), off), "B%d" % s, dst=rng(d, 4), addr=[a]))
        return ops
    return f


def w2_loads(g):
    def f(s):
        ops = []
        if E("NOW2", 0) and s >= 5:
            return ops
        h, i = s >> 2, s & 3
        base = h * 131072 + i * 16384
        for e in range(8):
            if e % 4 == 0:
                ops.append(lambda e=e: g.s("s_mov_b32 %s, %d" % (sr(S_T + 2), base + (e >> 2) * 8192)))
            d = raw2(s, e)
            if E("X2T", 0):
                for hf in range(2):
                    ops.append(lambda d=d + 2 * hf, e=e, s=s, hf=hf: g.vload("buffer_load_dwordx2 %s, %s, %s, %s offen offset:%d" % (vr(d, 2), vr(VWO), sr(SRD_WO, 4), sr(S_T + 2), (e & 3) * 1024 + hf * 128),
                                                                         "W%d" % s, dst=rng(d, 2), addr=[VWO]))
                continue
            ops.append(lambda d=d, e=e, s=s: g.vload("buffer_load_dwordx4 %s, %s, %s, %s offen offset:%d" % (vr(d, 4), vr(VWO), sr(SRD_WO, 4), sr(S_T + 2), (e & 3) * 1024),
                                                     "W%d" % s, dst=rng(d, 4), addr=[VWO]))
        return mark(ops)
    return f


def b2_reads(g):
    def f(s):
        ops = []
        h, i = s >> 2, s & 3
        for u in range(6):
            d = bf(s, u)
            n = i * 6 + u
            a, off = (L16H, h * 16384 + n * 1024) if n < 16 else (L16, h * 8192 + (n - 16) * 1024)
            ops.append(lambda d=d, a=a, off=off, s=s:
                       g.dsread("ds_read_b128 %s, %s offset:%d" % (vr(d, 4), vr(a), off), "B%d" % s, dst=rng(d, 4), addr=[a]))
        return ops
    return f


def b2_read1(g, s, u, d, tag):
    h, i = s >> 2, s & 3
    n = i * 6 + u
    a, off = (L16H, h * 16384 + n * 1024) if n < 16 else (L16, h * 8192 + (n - 16) * 1024)
    return lambda: g.dsread("ds_read_b128 %s, %s offset:%d" % (vr(d, 4), vr(a), off), tag, dst=rng(d, 4), addr=[a])


def gemm2(g, w_loads, b_reads, tail, extra):
    pend = []

    def add(tag, ops):
        pend.extend((tag, o) for o in ops)

    def take(n):
        out = []
        while pend and n > 0:
            t, o = pend.pop(0)
            out.append(o)
            if getattr(o, "is_load", False):
                n -= 1
        return out

    def upto(tag):
        out = []
        while any(t == tag for t, _ in pend):
            out.append(pend.pop(0)[1])
        return out
    TS = {13: KF + 64, 14: SL2[11 % 5], 15: SL2[12 % 5]}
    bq = lambda n, k: BF + (((n * 3 + 6) % 12) + k) * 4
    for t in (2, 3, 4):
        add("W%d" % t, w_loads(t))
    g.wait_vm("W0")
    for op in perm_ops(g, raw2(0, 0), 0, WT):
        op()
    xq = []
    for s in range(13):
        xq += extra(s)
        if s == 12:
            xq += upto("W13") + [lambda: g.wait_vm("W13")]
            for j in range(8):
                xq += perm_ops(g, raw2(13, 0), j, TS[13] + j * 4)
        for j in range(8):
            idx = 8 * s + j
            fill = []
            if j == 7:
                if s < 12:
                    fill += upto("W%d" % (s + 1))
                    fill.append(lambda s=s: g.wait_vm("W%d" % (s + 1)))
                    fill += perm_ops(g, raw2(s + 1, 0), 0, WT + ((idx + 1) % 4) * 4)
                if s + 5 < 16:
                    add("W%d" % (s + 5), w_loads(s + 5))
            else:
                fill += perm_ops(g, raw2(s, 0), j + 1, WT + ((idx + 1) % 4) * 4)
            fill += take(R2[j])
            if 3 <= j <= 5:
                if s < 12:
                    fill += b_reads(s + 1)[(j - 3) * 2:(j - 3) * 2 + 2]
                else:
                    fill += [b2_read1(g, 13 + (j - 3), n, bq(n, j - 3), "C%d" % n) for n in range(2)]
            k = (len(xq) + 7 - j) // (8 - j)
            k = min(k, 8) if s < 12 else k
            fill += xq[:k]
            xq = xq[k:]
            if j == 0:
                g.wait_lg("B%d" % s)
                if STAMP == 3 and s > 0:
                    stamp(g)
            a = WT + (idx % 4) * 4
            main = [(lambda u=u: g.mfma(acc2(j, u), a, bf(s, u), None if s == 0 else acc2(j, u))) for u in range(6)]
            merge(main, fill)
    assert not xq
    carry = []
    for n in range(6):
        u = n
        g.wait_lg("C%d" % n)
        if STAMP == 3:
            stamp(g)
        main = [(lambda j=j, k=k: g.mfma(acc2(j, u), TS[13 + k] + j * 4, bq(n, k), acc2(j, u))) for k in range(3) for j in range(8)]
        brd = [b2_read1(g, 13 + k, n + 2, bq(n + 2, k), "C%d" % (n + 2)) for k in range(3)] if n + 2 < 6 else []
        if n == 0:
            for k in (1, 2):
                fill = upto("W%d" % (13 + k)) + [lambda k=k: g.wait_vm("W%d" % (13 + k))]
                for j in range(8):
                    fill += perm_ops(g, raw2(13 + k, 0), j, TS[13 + k] + j * 4)
                merge(main[(k - 1) * 8:k * 8 - 1], fill)
                main[k * 8 - 1]()
            merge(main[16:], brd)
        else:
            merge(main, brd + carry)
        carry = tail(n)
    assert not pend
    run(carry)


def gemm2u(g, w_loads, b_reads, tail, extra):
    pend = []

    def add(tag, ops):
        pend.extend((tag, o) for o in ops)

    def take(n):
        out = []
        while pend and n > 0:
            t, o = pend.pop(0)
            out.append(o)
            if getattr(o, "is_load", False):
                n -= 1
        return out

    def upto(tag):
        out = []
        while any(t == tag for t, _ in pend):
            out.append(pend.pop(0)[1])
        return out

    def conv(s, dst):
        ops = upto("W%d" % s) + [lambda: g.wait_vm("W%d" % s)]
        for j in range(8):
            ops += perm_ops(g, raw2(s, 0), j, dst + j * 4)
        return ops
    TS = {9: KF + 64, 10: 96, 11: KF + 64, 12: raw2(11, 0), 13: raw2(12, 0), 14: raw2(13, 0), 15: raw2(14, 0)}
    seq = [(u, k) for k in range(6) for u in range(2)] + [(u, k) for u in range(2, 6) for k in range(6)]
    bq = lambda i: BF + (i % 12) * 4
    brd = lambda i: [b2_read1(g, 10 + seq[i][1], seq[i][0], bq(i), "C%d" % i)] if i < len(seq) else []
    for t in (2, 3, 4):
        add("W%d" % t, w_loads(t))
    g.wait_vm("W0")
    for op in perm_ops(g, raw2(0, 0), 0, WT):
        op()
    xq = []
    for s in range(10):
        xq += extra(s)
        cv = conv(s + 1, TS[s + 1]) if s >= 8 else []
        ncv = (len(cv) + 3) // 4
        for j in range(8):
            idx = 8 * s + j
            fill = []
            if j == 7:
                if s < 8:
                    fill += upto("W%d" % (s + 1))
                    fill.append(lambda s=s: g.wait_vm("W%d" % (s + 1)))
                    fill += perm_ops(g, raw2(s + 1, 0), 0, WT + ((idx + 1) % 4) * 4)
                    add("W%d" % (s + 5), w_loads(s + 5))
                if s == 8:
                    add("W14", w_loads(14))
            elif s < 9:
                fill += perm_ops(g, raw2(s, 0), j + 1, WT + ((idx + 1) % 4) * 4)
            if j < 4:
                fill += cv[j * ncv:(j + 1) * ncv]
            if j == 4 and s >= 8:
                add("W%d" % (13 if s == 8 else 15), w_loads(13 if s == 8 else 15))
            fill += take(R2[j] if s < 8 else 2)
            if 3 <= j <= 5:
                if s < 9:
                    fill += b_reads(s + 1)[(j - 3) * 2:(j - 3) * 2 + 2]
                else:
                    fill += brd((j - 3) * 2) + brd((j - 3) * 2 + 1)
            k = (len(xq) + 7 - j) // (8 - j)
            k = min(k, 8) if s < 9 else k
            fill += xq[:k]
            xq = xq[k:]
            if j == 0:
                g.wait_lg("B%d" % s)
                if STAMP == 3 and s > 0:
                    stamp(g)
            a = WT + (idx % 4) * 4 if s < 9 else TS[9] + j * 4
            main = [(lambda u=u: g.mfma(acc2(j, u), a, bf(s, u), None if s == 0 else acc2(j, u))) for u in range(6)]
            merge(main, fill)
    assert not xq

    def block(i):
        u, k = seq[i]
        m = [(lambda j=j: g.mfma(acc2(j, u), TS[10 + k] + j * 4, bq(i), acc2(j, u))) for j in range(8)]
        f = m[0]
        m[0] = lambda: (g.wait_lg("C%d" % i), f(), run(brd(i + 6)))
        return m
    for k in range(6):
        if STAMP == 3:
            stamp(g)
        main = block(2 * k) + block(2 * k + 1)
        if k < 5:
            fill = take(8) + conv(11 + k, TS[11 + k])
            merge(main[:15], fill)
            main[15]()
        else:
            run(main[:8])
            merge(main[8:], tail(0)[:20])
    carry = TL0[20:] + tail(1)
    for n in range(2, 6):
        if STAMP == 3:
            stamp(g)
        main = []
        for k in range(6):
            main += block(12 + (n - 2) * 6 + k)
        fl = E("FL", 48) if n > 2 else 48
        merge(main[:fl], carry)
        run(main[fl:])
        carry = tail(n)
    assert not pend
    if ST2 == 1:
        HOOK["s1"]()
    run(carry)
    if ST2 == 2:
        HOOK["s1"]()


TL0 = []


def run(ops):
    for o in ops:
        o()


def prologue():
    g = Gen()
    g.s("s_cmp_ge_u32 s2, 256")
    g.s("s_cbranch_scc1 k_end")
    if STAMP:
        g.s("%s %s" % (os.environ.get("CLK", "s_memrealtime"), sr(S_ST, 2)))
    if E("CPF", 2):
        g.s("s_getpc_b64 %s" % sr(SRD_OUT, 2))
        g.label("pc_here")
        if E("CPF", 2) == 1:
            g.s("s_bfe_u32 %s, s2, 0x30003" % sr(S_T))
            g.s("s_lshl_b32 %s, %s, 15" % (sr(S_T), sr(S_T)))
        else:
            g.s("s_lshr_b32 %s, s2, 3" % sr(S_T))
            g.s("s_lshl_b32 %s, %s, 12" % (sr(S_T), sr(S_T)))
            g.valu("v_cmp_gt_u32 vcc, 32, v0", src=[0])
        g.s("s_and_b32 %s, %s, 0xffff" % (sr(SRD_OUT + 1), sr(SRD_OUT + 1)))
        g.s("s_mov_b32 %s, code_end-pc_here" % sr(SRD_OUT + 2))
        g.s("s_mov_b32 %s, 0x00020000" % sr(SRD_OUT + 3))
        vop(g, "v_lshlrev_b32 %s, 7, v0" % vr(TQ + 4), TQ + 4, [0])
        if E("CPF", 2) != 1:
            vop(g, "v_cndmask_b32 %s, -1, %s, vcc" % (vr(TQ + 4), vr(TQ + 4)), TQ + 4, [TQ + 4])
        g.vload("buffer_load_dword %s, %s, %s, %s offen" % (vr(TQ + 4), vr(TQ + 4), sr(SRD_OUT, 4), sr(S_T)), "CPF", dst=[TQ + 4], addr=[TQ + 4])
    g.s("s_bfe_u32 %s, s2, 0x10002" % sr(S_BLK))
    if E("BSW", 2) == 1:
        g.s("s_xor_b32 %s, %s, 1" % (sr(S_BLK), sr(S_BLK)))
    if E("BSW", 2) == 2:
        g.s("s_and_b32 %s, s2, 1" % sr(S_BLK))
    if E("BSW", 2) == 4:
        g.s("s_bfe_u32 %s, s2, 0x10003" % sr(S_BLK))
    if E("BSW", 2) == 3:
        g.s("s_bfe_u32 %s, s2, 0x10001" % sr(S_BLK))
    g.s("s_mul_i32 s16, %s, 40" % sr(S_BLK))
    g.s("s_add_u32 s18, s0, s16")
    g.s("s_addc_u32 s19, s1, 0")
    g.s("s_load_dwordx8 s[8:15], s[18:19], 0")
    g.s("s_load_dwordx2 s[16:17], s[18:19], 32")
    g.s("s_load_dwordx4 s[4:7], s[0:1], 80")
    g.s("s_load_dwordx2 s[18:19], s[0:1], 96")
    LN, Q, G, R8, C8, T1, T2 = 130, 131, 132, 133, 134, 135, 136
    vop(g, "v_lshrrev_b32 %s, 6, v0" % vr(T1), T1, [0])
    vop(g, "v_and_b32 %s, 63, v0" % vr(LN), LN, [0])
    g.valu("v_readfirstlane_b32 s3, %s" % vr(T1), src=[T1], readlane=True, sdst=[3])
    if E("BSW", 2) == 2:
        g.s("s_and_b32 %s, s2, 6" % sr(S_HG))
    elif E("BSW", 2) == 3:
        g.s("s_and_b32 %s, s2, 1" % sr(S_HG))
        g.s("s_lshl_b32 %s, %s, 1" % (sr(S_HG), sr(S_HG)))
        g.s("s_and_b32 %s, s2, 4" % sr(S_T))
        g.s("s_add_u32 %s, %s, %s" % (sr(S_HG), sr(S_HG), sr(S_T)))
    else:
        g.s("s_and_b32 %s, s2, 3" % sr(S_HG))
        g.s("s_lshl_b32 %s, %s, 1" % (sr(S_HG), sr(S_HG)))
    g.s("s_bfe_u32 %s, s2, 0x10003" % sr(S_T))
    g.s("s_add_u32 %s, %s, %s" % (sr(S_HG), sr(S_HG), sr(S_T)))
    if E("BSW", 2) == 4:
        g.s("s_and_b32 %s, s2, 7" % sr(S_HG))
    g.s("s_lshr_b32 %s, s2, 4" % sr(S_B))
    if MAP:
        g.s("s_bfe_u32 %s, s2, 0x30003" % sr(S_HG))
        g.s("s_and_b32 %s, s2, 3" % sr(S_B))
        g.s("s_lshl_b32 %s, %s, 2" % (sr(S_B), sr(S_B)))
        g.s("s_lshr_b32 %s, s2, 6" % sr(S_T))
        g.s("s_add_u32 %s, %s, %s" % (sr(S_B), sr(S_B), sr(S_T)))
    g.s("s_lshl_b32 %s, %s, 4" % (sr(S_GRP), sr(S_BLK)))
    g.s("s_add_u32 %s, %s, %s" % (sr(S_GRP), sr(S_GRP), sr(S_B)))
    vop(g, "v_and_b32 %s, 15, %s" % (vr(Q), vr(LN)), Q, [LN])
    vop(g, "v_lshrrev_b32 %s, 4, %s" % (vr(G), vr(LN)), G, [LN])
    vop(g, "v_lshrrev_b32 %s, 3, %s" % (vr(R8), vr(LN)), R8, [LN])
    vop(g, "v_and_b32 %s, 7, %s" % (vr(C8), vr(LN)), C8, [LN])
    vop(g, "v_lshlrev_b32 %s, 4, %s" % (vr(L16), vr(LN)), L16, [LN])
    vop(g, "v_add_u32 %s, %d, %s" % (vr(L16H), L_V, vr(L16)), L16H, [L16])
    for e in range(1, 8):
        g.s("s_mov_b32 %s, %d" % (sr(SE + e), e * 8192))
    g.s("s_mov_b32 %s, 0x05040100" % sr(S_PLO))
    g.s("s_mov_b32 %s, 0x07060302" % sr(S_PHI))
    g.s("s_mov_b32 %s, 0x3e0293ee" % sr(S_C))
    g.s("s_cmp_eq_u32 s3, 0")
    g.s("s_cselect_b32 %s, 1, 0" % sr(S_W0))
    g.s("s_mov_b32 %s, 0" % sr(S_W0 + 1))
    g.s("s_lshl_b32 %s, %s, 5" % (sr(S_T), sr(S_B)))
    g.s("s_lshl_b32 %s, %s, 2" % (sr(S_T + 1), sr(S_HG)))
    g.s("s_add_u32 %s, %s, %s" % (sr(S_T), sr(S_T), sr(S_T + 1)))
    g.s("s_add_u32 %s, %s, s3" % (sr(S_T), sr(S_T)))
    g.s("s_mul_i32 %s, %s, 24576" % (sr(S_BH), sr(S_T)))
    g.s("s_lshl_b32 %s, s3, 14" % sr(S_T))
    g.s("s_add_u32 %s, %s, %d" % (sr(S_VL), sr(S_T), L_V))

    vop(g, "v_lshrrev_b32 %s, 1, %s" % (vr(T1), vr(R8)), T1, [R8])
    vop(g, "v_xor_b32 %s, %s, %s" % (vr(T1), vr(T1), vr(C8)), T1, [T1, C8])
    g.s("s_mul_i32 %s, %s, 98304" % (sr(S_T + 2), sr(S_B)))
    for t in range(3):
        g.s("s_mul_i32 %s, s3, 3" % sr(S_T))
        g.s("s_add_u32 %s, %s, %d" % (sr(S_T), sr(S_T), t))
        g.s("s_lshl_b32 %s, %s, 10" % (sr(S_XM + t), sr(S_T)))
        g.s("s_lshl_b32 %s, %s, 13" % (sr(S_T + 1), sr(S_T)))
        g.s("s_add_u32 %s, %s, %s" % (sr(S_XS + t), sr(S_T + 1), sr(S_T + 2)))
        g.s("s_and_b32 %s, %s, 1" % (sr(S_T), sr(S_T)))
        g.s("s_lshl_b32 %s, %s, 2" % (sr(S_T), sr(S_T)))
        vop(g, "v_xor_b32 %s, %s, %s" % (vr(T2), sr(S_T), vr(T1)), T2, [T1])
        vop(g, "v_lshlrev_b32 %s, 4, %s" % (vr(T2), vr(T2)), T2, [T2])
        vop(g, "v_lshl_add_u32 %s, %s, 10, %s" % (vr(XA + t), vr(R8), vr(T2)), XA + t, [R8, T2])
    PI = 140
    PI = Q
    g.s("s_lshl_b32 %s, %s, 10" % (sr(S_T), sr(S_HG)))
    g.s("s_lshl_b32 %s, s3, 8" % sr(S_T + 1))
    g.s("s_add_u32 %s, %s, %s" % (sr(S_T), sr(S_T), sr(S_T + 1)))
    vop(g, "v_lshlrev_b32 %s, 4, %s" % (vr(T1), vr(PI)), T1, [PI])
    vop(g, "v_lshl_add_u32 %s, %s, 16, %s" % (vr(T2), vr(G), vr(T1)), T2, [G, T1])
    if ROT:
        if ROT == 1:
            g.s("s_mov_b32 %s, %s" % (sr(S_XR + 2), sr(S_B)))
        else:
            g.s("s_and_b32 %s, s2, 8" % sr(S_XR + 2))
            if E("RB", 3) != 3:
                g.s("s_bfe_u32 %s, s2, 0x%x" % (sr(S_XR + 2), 0x10000 + E("RB", 3)))
                g.s("s_lshl_b32 %s, %s, 3" % (sr(S_XR + 2), sr(S_XR + 2)))
        g.s("s_lshl_b32 %s, %s, 18" % (sr(S_WI), sr(S_XR + 2)))
        g.s("s_add_u32 %s, %s, %s" % (sr(S_T), sr(S_T), sr(S_WI)))
        g.s("s_and_b32 %s, %s, 14" % (sr(S_XR), sr(S_XR + 2)))
        g.s("s_lshl_b32 %s, %s, 6" % (sr(S_XR), sr(S_XR)))
        g.s("s_and_b32 %s, %s, 1" % (sr(S_XR + 1), sr(S_XR + 2)))
        g.s("s_lshl_b32 %s, %s, 6" % (sr(S_XR + 1), sr(S_XR + 1)))
        g.s("s_cmp_eq_u32 %s, 0" % sr(S_XR + 1))
        g.s("s_cselect_b32 %s, 0x40000, 0xc0000" % sr(S_WI) if False else "s_mov_b32 %s, 0xc0000" % sr(S_WI))
        g.s("s_cmov_b32 %s, 0x40000" % sr(S_WI))
        g.s("s_mov_b32 %s, 0xfffc0000" % sr(S_WI + 1))
        g.s("s_cmov_b32 %s, 0x40000" % sr(S_WI + 1))
    vop(g, "v_add_u32 %s, %s, %s" % (vr(VW), sr(S_T), vr(T2)), VW, [T2])
    g.s("s_lshl_b32 %s, %s, 19" % (sr(S_T), sr(S_HG)))
    g.s("s_add_u32 %s, %s, %s" % (sr(S_T), sr(S_T), sr(S_T + 1)))
    vop(g, "v_and_b32 %s, 1, %s" % (vr(T2), vr(G)), T2, [G])
    vop(g, "v_lshl_add_u32 %s, %s, 12, %s" % (vr(T1), vr(T2), vr(T1)), T1, [T2, T1])
    vop(g, "v_lshrrev_b32 %s, 1, %s" % (vr(T2), vr(G)), T2, [G])
    vop(g, "v_lshl_add_u32 %s, %s, 16, %s" % (vr(T2), vr(T2), vr(T1)), T2, [T2, T1])
    vop(g, "v_add_u32 %s, %s, %s" % (vr(VWO), sr(S_T), vr(T2)), VWO, [T2])
    vop(g, "v_xor_b32 %s, %s, %s" % (vr(T1), vr(Q), vr(G)), T1, [Q, G])
    vop(g, "v_lshlrev_b32 %s, 4, %s" % (vr(T1), vr(T1)), T1, [T1])
    vop(g, "v_lshl_add_u32 %s, %s, 8, %s" % (vr(VKD), vr(G), vr(T1)), VKD, [G, T1])
    vop(g, "v_lshlrev_b32 %s, 2, %s" % (vr(T1), vr(G)), T1, [G])
    vop(g, "v_xor_b32 %s, %s, %s" % (vr(T1), vr(T1), vr(Q)), T1, [T1, Q])
    vop(g, "v_lshlrev_b32 %s, 4, %s" % (vr(T1), vr(T1)), T1, [T1])
    vop(g, "v_lshl_add_u32 %s, %s, 8, %s" % (vr(VKR), vr(Q), vr(T1)), VKR, [Q, T1])
    vop(g, "v_add_u32 %s, %s, %s" % (vr(VKR), sr(S_VL), vr(VKR)), VKR, [VKR])
    for m in range(1, 4):
        vop(g, "v_xor_b32 %s, %d, %s" % (vr(VKD + m), m * 64, vr(VKD)), VKD + m, [VKD])
        vop(g, "v_xor_b32 %s, %d, %s" % (vr(VKR + m), m * 16, vr(VKR)), VKR + m, [VKR])
    vop(g, "v_mov_b32 %s, %s" % (vr(VV), vr(VKD)), VV, [VKD])
    vop(g, "v_mov_b32 %s, %s" % (vr(VK), vr(VKD + 1)), VK, [VKD + 1])
    vop(g, "v_lshrrev_b32 %s, 1, %s" % (vr(T1), vr(Q)), T1, [Q])
    vop(g, "v_xor_b32 %s, %s, %s" % (vr(T1), vr(T1), vr(G)), T1, [T1, G])
    vop(g, "v_lshlrev_b32 %s, 7, %s" % (vr(T2), vr(Q)), T2, [Q])
    vop(g, "v_lshl_add_u32 %s, %s, 4, %s" % (vr(XB), vr(T1), vr(T2)), XB, [T1, T2])
    if ROT:
        vop(g, "v_xor_b32 %s, %s, %s" % (vr(XB), sr(S_XR + 1), vr(XB)), XB, [XB])
    vop(g, "v_xor_b32 %s, 64, %s" % (vr(XB + 1), vr(XB)), XB + 1, [XB])
    vop(g, "v_add_u32 %s, 0xc000, %s" % (vr(XB + 2), vr(XB)), XB + 2, [XB])
    vop(g, "v_add_u32 %s, 0xc000, %s" % (vr(XB + 3), vr(XB + 1)), XB + 3, [XB + 1])
    vop(g, "v_add_u32 %s, %s, %s" % (vr(VOW), sr(S_VL), vr(L16)), VOW, [L16])
    if MAP:
        g.s("s_and_b32 %s, %s, 3" % (sr(S_T), sr(S_B)))
        g.s("s_lshl_b32 %s, %s, 2" % (sr(S_T), sr(S_T)))
    else:
        g.s("s_lshl_b32 %s, %s, 2" % (sr(S_T), sr(S_B)))
    g.s("s_add_u32 %s, %s, s3" % (sr(S_T), sr(S_T)))
    g.s("s_lshl_b32 %s, %s, 16" % (sr(S_T), sr(S_T)))
    g.s("s_lshl_b32 %s, %s, 10" % (sr(S_T + 1), sr(S_HG)))
    g.s("s_add_u32 %s, %s, %s" % (sr(S_T), sr(S_T), sr(S_T + 1)))
    vop(g, "v_lshlrev_b32 %s, 7, %s" % (vr(T1), vr(C8)), T1, [C8])
    vop(g, "v_lshl_add_u32 %s, %s, 13, %s" % (vr(T1), vr(R8), vr(T1)), T1, [R8, T1])
    vop(g, "v_add_u32 %s, %s, %s" % (vr(WTA), sr(S_T), vr(T1)), WTA, [T1])
    g.waitcnt(lg=0)
    make_srd(g, SRD_X, 8, 1572864)
    make_srd(g, SRD_K, 10, 12582912)
    make_srd(g, SRD_V, 12, 12582912)
    make_srd(g, SRD_W, 14, 4194304)
    make_srd(g, SRD_WO, 16, 4194304)
    make_srd(g, SRD_OUT, 4, 16 * 96 * 1024 * 2)
    make_srd(g, SRD_DBG, 6, 256)
    make_srd(g, SRD_WS, 18, WS_BYTES)
    g.s("s_lshl_b32 %s, s3, 13" % sr(S_K2))
    g.s("s_sub_u32 %s, %s, %s" % (sr(S_KD), sr(S_VL), sr(S_K2)))
    g.s("s_lshl_b32 %s, %s, 1" % (sr(S_T), sr(S_B)))
    g.s("s_lshr_b32 %s, s3, 1" % sr(S_T + 1))
    g.s("s_add_u32 %s, %s, %s" % (sr(S_T), sr(S_T), sr(S_T + 1)))
    g.s("s_lshl_b32 %s, %s, 13" % (sr(S_T), sr(S_T)))
    g.s("s_lshl_b32 %s, %s, 10" % (sr(S_T + 1), sr(S_HG)))
    g.s("s_add_u32 %s, %s, %s" % (sr(S_T), sr(S_T), sr(S_T + 1)))
    g.s("s_and_b32 %s, s3, 1" % sr(S_T + 1))
    g.s("s_lshl_b32 %s, %s, 9" % (sr(S_T + 1), sr(S_T + 1)))
    g.s("s_add_u32 %s, %s, %s" % (sr(S_T), sr(S_T), sr(S_T + 1)))
    g.s("s_add_u32 %s, s14, %s" % (sr(S_TB), sr(S_T)))
    g.s("s_addc_u32 %s, s15, 0" % sr(S_TB + 1))
    stamp(g, have=True)
    return g


def tok_ops(g, tok):
    ops = []
    if tok[0] == 'x':
        sp = int(tok[1:])
        for t in range(3):
            if ROT:
                ops.append(lambda t=t: g.s("s_add_u32 %s, %s, %d" % (sr(S_T), sr(S_XR), sp * 128)))
                ops.append(lambda t=t: g.s("s_and_b32 %s, %s, 0x3ff" % (sr(S_T), sr(S_T))))
                ops.append(lambda t=t: g.s("s_add_u32 %s, %s, %s" % (sr(S_T), sr(S_T), sr(S_XS + t))))
            else:
                ops.append(lambda t=t: g.s("s_add_u32 %s, %s, %d" % (sr(S_T), sr(S_XS + t), sp * 128)))
            ops.append(lambda t=t: g.s("s_add_u32 m0, %s, %d" % (sr(S_XM + t), sp * 12288), m0=True))
            ops.append(lambda t=t: g.vload("buffer_load_dwordx4 %s, %s, %s offen lds" % (vr(XA + t), sr(SRD_X, 4), sr(S_T)), "X%d" % sp, addr=[XA + t], lds=True))
    elif tok[0] == 'w':
        ops += w1_loads(g)(int(tok[1:]))
    elif tok == 't':
        ops.append(lambda: g.vload("buffer_load_dword %s, %s, %s, 0 offen" % (vr(TQ + 3), vr(WTA), sr(SRD_W, 4)), "TCH", dst=[TQ + 3], addr=[WTA]))
        for k in range(3 if MAP else 0):
            ops.append(lambda: vop(g, "v_add_u32 %s, 0x100000, %s" % (vr(WTA), vr(WTA)), WTA, [WTA]))
            ops.append(lambda: g.vload("buffer_load_dword %s, %s, %s, 0 offen" % (vr(TQ + 3), vr(WTA), sr(SRD_W, 4)), "TCH", dst=[TQ + 3], addr=[WTA]))
    elif tok[0] == 's':
        st = int(tok[1:])
        ops.append(lambda: g.s("s_mov_b32 %s, %d" % (sr(S_T + 2), st * 262144)))
        for l in range(8 if SM2 else 4):
            def sm(l=l):
                g.s("s_load_dword %s, %s, %s offset:%d" % (sr(S_JUNK), sr(S_TB, 2), sr(S_T + 2), l * (64 if SM2 else 128)))
                g.lgq.append("SM")
            ops.append(sm)
    elif tok == 'T':
        ops += wo_touch(g)
    elif tok == 'Y':
        for srd, so in ((SRD_WS, S_XS + 1), (SRD_WS, S_PB), (SRD_WS, S_PB + 1), (SRD_WS, S_XS + 2), (SRD_OUT, S_OB)):
            ops.append(lambda srd=srd, so=so: g.vload("buffer_load_dword %s, off, %s, %s" % (vr(VW), sr(srd, 4), sr(so)), "TCH", dst=[VW]))
    elif tok[0] == 'Z':
        t = int(tok[1])
        if t == 0:
            for k in range(4):
                ops.append(lambda k=k: vop(g, "v_mov_b32 %s, -1" % vr(ZQ + k), ZQ + k))
        for h in range(2):
            for i in range(4):
                ops.append(lambda h=h, i=i: g.s("s_add_u32 %s, %s, %d" % (sr(S_T + 6), sr(S_PB + h), (i * 3 + t) * 1024)))
                o = lambda: g.vstore("buffer_store_dwordx4 %s, %s, %s, %s offen sc1" % (vr(ZQ, 4), vr(L16), sr(SRD_WS, 4), sr(S_T + 6)),
                                     "POI", data=rng(ZQ, 4), addr=[L16])
                o.is_load = True
                ops.append(o)
    elif tok[0] == 'K':
        ops += k_dma(g, int(tok[1]), int(tok[3]))
    elif tok[0] == 'R':
        ops += k_read(g, int(tok[1]), int(tok[3]))
    elif tok[0] == 'V' and len(tok) == 4:
        assert VL[int(tok[1])] == int(tok[3])
        ops += v_dma(g, int(tok[1]), int(tok[3]))
    elif tok[0] == 'V':
        vl = v_loads(g, int(tok[1]))
        ops += vl if len(tok) == 2 else vl[:5] if tok[2] == 'a' else vl[5:]
    else:
        raise ValueError(tok)
    return mark(ops)


def part1(g, cl):
    for tok in cl["P"]:
        run(tok_ops(g, tok))
    g.wait_vm(["X%d" % k for k in range(XBAR[0] + 1)])
    g.barrier()
    stamp(g)
    run(b1_reads(g)(0))

    def tail(u):
        return q_conv(g, u) if u < 2 else []
    assert max(XBAR) >= 6
    pend, rest = gemm1(g, cl, b1_reads(g), tail)
    run(pend)
    stamp(g)
    g.s("s_lshl_b32 %s, s3, 13" % sr(S_T))
    vop(g, "v_add_u32 %s, %s, %s" % (vr(VOW2), sr(S_T), vr(L16)), VOW2, [L16])
    run(rest)
    stamp(g)
    g.nop(8)


S_FS, S_OB = 69, 93


def job_setup(g, A):
    A(lambda: g.s("s_lshl_b32 %s, %s, 2" % (sr(S_T), sr(S_GRP))))
    A(lambda: g.s("s_lshr_b32 %s, %s, 1" % (sr(S_T + 1), sr(S_RO))))
    A(lambda: g.s("s_add_u32 %s, %s, %s" % (sr(S_T + 1), sr(S_T + 1), sr(S_T))))
    A(lambda: g.s("s_lshl_b32 %s, %s, 7" % (sr(S_T + 1), sr(S_T + 1))))
    A(lambda: g.s("s_add_u32 %s, %s, %d" % (sr(S_XS + 1), sr(S_T + 1), FLG)))
    A(lambda: g.s("s_lshl_b32 %s, %s, 3" % (sr(S_T), sr(S_GRP))))
    A(lambda: g.s("s_add_u32 %s, %s, %s" % (sr(S_T), sr(S_T), sr(S_RO))))
    A(lambda: g.s("s_mul_i32 %s, %s, 96" % (sr(S_T), sr(S_T))))
    A(lambda: g.s("s_mul_i32 %s, %s, 3" % (sr(S_T + 1), sr(S_RR))))
    A(lambda: g.s("s_add_u32 %s, %s, %s" % (sr(S_T), sr(S_T), sr(S_T + 1))))
    A(lambda: g.s("s_lshl_b32 %s, %s, 10" % (sr(S_XS + 2), sr(S_T))))
    A(lambda: g.s("s_mul_i32 %s, %s, %d" % (sr(S_OB), sr(S_B), 96 * 2048)))
    A(lambda: g.s("s_lshl_b32 %s, %s, 10" % (sr(S_T), sr(S_BLK))))
    A(lambda: g.s("s_add_u32 %s, %s, %s" % (sr(S_OB), sr(S_OB), sr(S_T))))
    A(lambda: g.s("s_lshr_b32 %s, %s, 1" % (sr(S_T), sr(S_RO))))
    A(lambda: g.s("s_lshl_b32 %s, %s, 8" % (sr(S_T), sr(S_T))))
    A(lambda: g.s("s_add_u32 %s, %s, %s" % (sr(S_OB), sr(S_OB), sr(S_T))))
    A(lambda: g.s("s_lshl_b32 %s, %s, %d" % (sr(S_T), sr(S_RR), 6 if OC else 4)))
    A(lambda: g.s("s_add_u32 %s, %s, %s" % (sr(S_OB), sr(S_OB), sr(S_T))))
    A(lambda: g.s("s_and_b32 %s, %s, 1" % (sr(S_T), sr(S_RO))))
    A(lambda: g.s("s_lshl_b32 %s, %s, 15" % (sr(S_T), sr(S_T))))
    A(lambda: g.s("s_add_u32 %s, %s, %s" % (sr(S_OB), sr(S_OB), sr(S_T))))


def part2(g):
    g.s("s_memrealtime %s" % sr(S_T + 4, 2))
    NV = 238
    g.s("s_lshl_b32 %s, %s, 2" % (sr(S_T + 3), sr(S_GRP)))
    lq = list(g.lgq)
    g.waitcnt(lg=0)
    g.lgq = []
    g.s("s_or_b32 %s, %s, 1" % (sr(S_NONCE), sr(S_T + 4)))
    vop(g, "v_mov_b32 %s, %s" % (vr(NV), sr(S_NONCE)), NV)
    vop(g, "v_mov_b32 %s, 0" % vr(NV + 1), NV + 1)
    g.s("s_mov_b64 exec, %s" % sr(S_W0, 2))
    g.vload("buffer_atomic_cmpswap %s, off, %s, %s sc0 sc1" % (vr(NV, 2), sr(SRD_DBG, 4), sr(S_T + 3)), "NONCE", dst=[NV], addr=[NV, NV + 1])
    g.s("s_mov_b64 exec, -1")
    g.s("s_lshl_b32 %s, %s, 3" % (sr(S_PB), sr(S_GRP)))
    g.s("s_lshl_b32 %s, s3, 1" % sr(S_PB + 1))
    g.s("s_add_u32 %s, %s, %s" % (sr(S_PB), sr(S_PB), sr(S_PB + 1)))
    g.s("s_lshl_b32 %s, %s, 3" % (sr(S_PB), sr(S_PB)))
    g.s("s_add_u32 %s, %s, %s" % (sr(S_PB), sr(S_PB), sr(S_HG)))
    g.s("s_mul_i32 %s, %s, 12288" % (sr(S_PB), sr(S_PB)))
    g.s("s_add_u32 %s, %s, %d" % (sr(S_PB + 1), sr(S_PB), 8 * 12288))
    g.s("s_lshl_b32 %s, %s, 2" % (sr(S_XS), sr(S_GRP)))
    g.s("s_add_u32 %s, %s, s3" % (sr(S_XS), sr(S_XS)))
    g.s("s_lshl_b32 %s, %s, 7" % (sr(S_XS), sr(S_XS)))
    g.s("s_add_u32 %s, %s, %d" % (sr(S_XS), sr(S_XS), FLG))
    g.s("s_lshl_b32 %s, %s, 3" % (sr(S_FS), sr(S_HG)))
    g.s("s_add_u32 %s, %s, %s" % (sr(S_FS), sr(S_FS), sr(S_XS)))
    g.s("s_mov_b32 %s, %s" % (sr(S_RO), sr(S_HG)))
    g.s("s_mov_b32 %s, s3" % sr(S_RR))
    job_setup(g, lambda o: o())
    for k in range(4):
        vop(g, "v_mov_b32 %s, 0x3f803f80" % vr(ONES + k), ONES + k)

    def vt(pp, j):
        return KF + (pp * 8 + j) * 4
    VA = 0

    def tr_addr():
        ops = []
        V = lambda text, d, src=(): ops.append(lambda: vop(g, text, d, src))
        a, b = VA + 8, VA + 9
        V("v_lshrrev_b32 %s, 6, %s" % (vr(a), vr(L16)), a, [L16])
        V("v_and_b32 %s, 7, %s" % (vr(b), vr(a)), b, [a])
        V("v_lshlrev_b32 %s, 4, %s" % (vr(b), vr(b)), b, [b])
        V("v_lshl_add_u32 %s, %s, 8, %s" % (vr(VA), vr(a), vr(b)), VA, [a, b])
        V("v_and_b32 %s, 32, %s" % (vr(a), vr(L16)), a, [L16])
        V("v_lshl_add_u32 %s, %s, 2, %s" % (vr(VA), vr(a), vr(VA)), VA, [a, VA])
        V("v_and_b32 %s, 16, %s" % (vr(a), vr(L16)), a, [L16])
        V("v_lshrrev_b32 %s, 1, %s" % (vr(a), vr(a)), a, [a])
        V("v_add_u32 %s, %s, %s" % (vr(VA), vr(a), vr(VA)), VA, [a, VA])
        V("v_add_u32 %s, %s, %s" % (vr(VA + 8), sr(S_K2), vr(VA)), VA + 8, [VA])
        V("v_add_u32 %s, %s, %s" % (vr(VA), sr(S_VL), vr(VA)), VA, [VA])
        for j in range(1, 8):
            V("v_xor_b32 %s, %d, %s" % (vr(VA + j), j * 16, vr(VA)), VA + j, [VA])
            V("v_xor_b32 %s, %d, %s" % (vr(VA + 8 + j), j * 16, vr(VA + 8)), VA + 8 + j, [VA + 8])
        return ops

    def tr_reads(pp, js):
        ops = []
        for j in js:
            for h in range(2):
                d = vt(pp, j) + 2 * h
                a, off = (VA + j, VL[pp] * 8192 + h * 4096) if VL[pp] < 2 else (VA + 8 + j, L_V2 + h * 4096)
                ops.append(lambda d=d, a=a, off=off: g.dsread("ds_read_b64_tr_b16 %s, %s offset:%d" % (vr(d, 2), vr(a), off), "V%d" % pp, dst=rng(d, 2), addr=[a]))
        return ops
    OAC = [16 + 0, 96, 64, 96, 64, 96]

    def oacc(u, j):
        return OAC[u] + j * 4

    def pv_main(u, pmajor=False):
        ix = [(pp, j) for pp in range(3) for j in range(8)] if pmajor else [(pp, j) for j in range(8) for pp in range(3)]
        return [(lambda pp=pp, j=j: g.mfma(oacc(u, j), vt(pp, j), pfrag(u, pp), None if pp == 0 else oacc(u, j))) for pp, j in ix]

    def o_conv(u):
        ops = []
        r = TQ + 2
        ops.append(lambda: g.valu("v_accvgpr_read_b32 %s, %s" % (vr(r), vr(psum(u))), dst=[r], src=[psum(u)]))
        ops.append(lambda: g.valu("v_rcp_f32 %s, %s" % (vr(r), vr(r)), dst=[r], src=[r], trans=True))
        for i in range(4):
            d = PT_O + (i % 2) * 4
            for k in range(8):
                a = oacc(u, 2 * i) + k
                ops.append(lambda a=a: g.valu("v_mul_f32 %s, %s, %s" % (vr(a), vr(a), vr(r)), dst=[a], src=[a, r]))
            for m in range(4):
                a = oacc(u, 2 * i) + 2 * m
                ops.append(lambda d=d + m, a=a: g.valu("v_cvt_pk_bf16_f32 %s, %s, %s" % (vr(d), vr(a), vr(a + 1)), dst=[d], src=[a, a + 1]))
            n = i * 6 + u
            a, off = (VOW, n * 1024) if n < 16 else (VOW2, (n - 16) * 1024)
            ops.append(lambda d=d, a=a, off=off: g.dswrite("ds_write_b128 %s, %s offset:%d" % (vr(a), vr(d, 4), off), "OW", data=rng(d, 4), addr=[a]))
            if E("EXP3", 0):
                fl = ["", "", " sc1", " nt", " sc0"][E("EXP3", 0)]
                ops.append(lambda n=n: g.s("s_add_u32 %s, s7, %d" % (sr(S_T + 6), n * 1024)))
                ops.append(lambda d=d, fl=fl: g.vstore("buffer_store_dwordx4 %s, %s, %s, %s offen%s" % (vr(d, 4), vr(L16), sr(SRD_WS, 4), sr(S_T + 6), fl), "OS", data=rng(d, 4), addr=[L16]))
        return ops
    if E("EXP3", 0):
        g.s("s_lshl_b32 s7, s2, 2")
        g.s("s_add_u32 s7, s7, s3")
        g.s("s_mul_i32 s7, s7, 24576")
        g.s("s_add_u32 s7, s7, %d" % (32 * 1024 * 1024))
    PT_O = 228
    wl2 = w2_loads(g)

    def spread(fill, pre):
        if not pre:
            return fill
        k = max(1, len(fill) // len(pre))
        nf = []
        for i, f in enumerate(fill):
            if i % k == 0 and pre:
                nf.append(pre.pop(0))
            nf.append(f)
        return nf + pre
    for u in range(6):
        main = [(lambda kt=kt, i=i, u=u: g.mfma(sacc(u, kt), KF + (kt * 4 + i) * 4, QF + (u % 2) * 16 + i * 4, None if i == 0 else sacc(u, kt)))
                for kt in range(6) for i in range(4)]
        fill = []
        if u >= 1:
            fill += softmax_ops(g, u - 1)
        if 2 <= u + 1 <= 5:
            fill += q_conv(g, u + 1)
        if u == 4:
            fill += tr_addr()
        pre = []
        for tok in POST.get(u, []):
            pre += tok_ops(g, tok)
        fill = spread(fill, pre)
        if STAMP == 4 and u > 0:
            stamp(g)
        if u < 5:
            merge(main, fill)
        else:
            n3 = (len(fill) + 2) // 3
            merge(main[:8], fill[:n3])
            if STAMP == 4:
                stamp(g)
            g.wait_vm(["VD"])
            if STAMP == 4:
                stamp(g)
            merge(main[8:16], spread(fill[n3:2 * n3], tr_reads(0, range(8))))
            merge(main[16:], spread(fill[2 * n3:], tr_reads(1, range(8))))
    stamp(g)
    sm5 = softmax_ops(g, 5)
    pv0 = pv_main(0, True)
    n3 = (len(sm5) + 2) // 3
    run(tr_reads(2, range(4)))
    g.wait_lg("V0")
    merge(pv0[:8], spread(sm5[:n3], tr_reads(2, range(4, 8))))
    g.wait_lg("V1")
    merge(pv0[8:16], sm5[n3:2 * n3])
    g.wait_lg("V2")
    merge(pv0[16:], sm5[2 * n3:])
    stamp(g)
    vop(g, "v_mov_b32 %s, %d" % (vr(TQ + 1), L_MISC), TQ + 1)
    for u in range(1, 6):
        fill = o_conv(u - 1)
        if u == 2:
            fill = spread(fill, wl2(0))
        if u == 3:
            fill = spread(fill, wl2(1))
        merge(pv_main(u), fill)
        if STAMP == 4:
            stamp(g)
    g.wait_vm("NONCE")
    g.valu("v_readfirstlane_b32 %s, %s" % (sr(S_T), vr(NV)), src=[NV], readlane=True, sdst=[S_T])
    g.s("s_cmp_eq_u32 %s, 0" % sr(S_T))
    g.s("s_cselect_b32 %s, %s, %s" % (sr(S_T), sr(S_NONCE), sr(S_T)))
    vop(g, "v_mov_b32 %s, %s" % (vr(TQ), sr(S_T)), TQ)
    g.s("s_mov_b64 exec, %s" % sr(S_W0, 2))
    g.dswrite("ds_write_b32 %s, %s offset:4" % (vr(TQ + 1), vr(TQ)), "OW", data=[TQ], addr=[TQ + 1])
    if SELF:
        g.dswrite("ds_write_b32 %s, %s offset:8" % (vr(TQ + 1), vr(NV + 1)), "OW", data=[NV + 1], addr=[TQ + 1])
    g.s("s_mov_b64 exec, -1")
    run(o_conv(5))
    g.waitcnt(lg=0)
    g.lgq = []
    stamp(g)
    g.barrier()
    stamp(g)
    g.dsread("ds_read_b32 %s, %s offset:4" % (vr(NV), vr(TQ + 1)), "NN", dst=[NV], addr=[TQ + 1])
    run(b2_reads(g)(0))
    g.wait_lg("NN")
    g.valu("v_readfirstlane_b32 %s, %s" % (sr(S_NONCE), vr(NV)), src=[NV], readlane=True, sdst=[S_NONCE])
    cnt = [0]
    AC, VO, VF, F0, PL, PP = 224, 230, 231, 232, 234, 242
    S_CL = S_TYPE

    def tail(n, lds=False):
        u = n
        ops = []
        for i in range(4):
            d = (raw2(15, 0) if UM == 6 and not lds else 96) + (cnt[0] % 8) * 4
            cnt[0] += 1
            for m in range(4):
                a, b = acc2(2 * m, u) + i, acc2(2 * m + 1, u) + i
                t0, t1 = TQ + (m % 2) * 2, TQ + (m % 2) * 2 + 1
                ops.append(lambda t=t0, s=a: g.valu("v_accvgpr_read_b32 %s, %s" % (vr(t), vr(s)), dst=[t], src=[s]))
                ops.append(lambda t=t1, s=b: g.valu("v_accvgpr_read_b32 %s, %s" % (vr(t), vr(s)), dst=[t], src=[s]))
                ops.append(lambda d=d + m, a=t0, b=t1: g.valu("v_cvt_pk_bf16_f32 %s, %s, %s" % (vr(d), vr(a), vr(b)), dst=[d], src=[a, b]))
                if not E("NOFAST", 1):
                    ops.append(lambda d=d + m: g.valu("v_min_u32 %s, -2, %s" % (vr(d), vr(d)), dst=[d], src=[d]))
            p = i * 3 + (n >> 1)
            po = p * 1024
            va = L16
            if OC:
                po = (n >> 1) * 1024 + i * 256
                va = VST
            if (EXP or E("EXP2", 0)) and i >= 2:
                continue
            if not lds:
                ops.append(lambda po=po: g.s("s_add_u32 %s, %s, %d" % (sr(S_T + 6), sr(S_PB + (n & 1)), po)))
            def pst(d=d, po=po, va=va):
                if lds:
                    g.dswrite("ds_write_b128 %s, %s offset:%d" % (vr(va), vr(d, 4), L_SELF + po), "SW", data=rng(d, 4), addr=[va])
                    return
                srd = (SRD_X, SRD_K)[n & 1] if SELF else SRD_WS
                g.vstore("buffer_store_dwordx4 %s, %s, %s, %s offen%s" % (vr(d, 4), vr(va), sr(srd, 4), sr(S_T + 6), DF), "PS%d" % (n >> 1), data=rng(d, 4), addr=[va])
            ops.append(pst)
        if n == 0:
            TL0[:] = ops
        return ops

    def flag_store(soff, tag):
        g.s("s_mov_b64 exec, 1")
        g.vstore("buffer_store_dwordx2 %s, off, %s, %s sc1" % (vr(F0, 2), sr(SRD_WS, 4), sr(soff)), tag, data=[F0, F0 + 1])
        g.s("s_mov_b64 exec, -1")

    G0, FO = 244, 246
    LR = VLD if OC == 2 else L16

    def stage1():
        g.wait_vm("PS1")
        g.s("s_mov_b64 exec, 1")
        g.vstore("buffer_store_dwordx2 %s, off, %s, %s sc1" % (vr(G0, 2), sr(SRD_WS, 4), sr(S_FS)), "FS", data=[G0, G0 + 1])
        if EP:
            g.s("s_mov_b64 exec, 0xffff")
            g.vload("buffer_load_dwordx2 %s, %s, %s, %s offen sc1" % (vr(PL, 2), vr(VF), sr(SRD_WS, 4), sr(S_XS + 1)), "P0", dst=[PL, PL + 1], addr=[VF])
        g.s("s_mov_b64 exec, -1")
    HOOK["s1"] = stage1

    def setup_ops():
        ops = []
        A = ops.append
        A(lambda: g.s("s_xor_b32 %s, %s, 0x%x" % (sr(S_T), sr(S_NONCE), FC)))
        A(lambda: vop(g, "v_mov_b32 %s, %s" % (vr(F0), sr(S_NONCE)), F0))
        A(lambda: vop(g, "v_mov_b32 %s, %s" % (vr(F0 + 1), sr(S_T)), F0 + 1))
        if ST2:
            A(lambda: vop(g, "v_mov_b32 %s, %s" % (vr(G0), sr(S_NONCE)), G0))
            A(lambda: vop(g, "v_xor_b32 %s, 1, %s" % (vr(G0 + 1), vr(F0 + 1)), G0 + 1, [F0 + 1]))
            A(lambda: vop(g, "v_or_b32 %s, 1, %s" % (vr(FO), vr(F0 + 1)), FO, [F0 + 1]))
        LN, Q, G_, X1, X2, X3 = 112, 113, 114, 115, 116, 117
        V = lambda text, d, src=(): A(lambda: vop(g, text, d, src))
        V("v_lshrrev_b32 %s, 4, %s" % (vr(LN), vr(L16)), LN, [L16])
        V("v_and_b32 %s, 15, %s" % (vr(Q), vr(LN)), Q, [LN])
        V("v_lshrrev_b32 %s, 4, %s" % (vr(G_), vr(LN)), G_, [LN])
        V("v_lshrrev_b32 %s, 2, %s" % (vr(X1), vr(Q)), X1, [Q])
        V("v_and_b32 %s, 1, %s" % (vr(X2), vr(Q)), X2, [Q])
        V("v_lshlrev_b32 %s, 4, %s" % (vr(X2), vr(X2)), X2, [X2])
        V("v_mov_b32 %s, 0x3f80" % vr(X3), X3)
        V("v_lshlrev_b32 %s, %s, %s" % (vr(X3), vr(X2), vr(X3)), X3, [X2, X3])
        A(lambda: g.valu("v_cmp_eq_u32 vcc, %s, %s" % (vr(X1), vr(G_)), src=[X1, G_]))
        A(lambda: g.nop(2))
        V("v_cndmask_b32 %s, 0, %s, vcc" % (vr(X3), vr(X3)), X3, [X3])
        V("v_and_b32 %s, 2, %s" % (vr(X2), vr(Q)), X2, [Q])
        A(lambda: g.valu("v_cmp_eq_u32 vcc, 0, %s" % vr(X2), src=[X2]))
        for k in (0, 1, 4, 5):
            V("v_mov_b32 %s, 0" % vr(AC + k), AC + k)
        V("v_cndmask_b32 %s, 0, %s, vcc" % (vr(AC + 2), vr(X3)), AC + 2, [X3])
        V("v_cndmask_b32 %s, %s, 0, vcc" % (vr(AC + 3), vr(X3)), AC + 3, [X3])
        if OC:
            V("v_mul_u32_u24 %s, 0xc00, %s" % (vr(VST), vr(G_)), VST, [G_])
            V("v_lshl_add_u32 %s, %s, 4, %s" % (vr(VST), vr(Q), vr(VST)), VST, [Q, VST])
        if OC == 2:
            V("v_and_b32 %s, 3, %s" % (vr(G_), vr(LN)), G_, [LN])
            V("v_lshrrev_b32 %s, 2, %s" % (vr(Q), vr(LN)), Q, [LN])
            V("v_lshlrev_b32 %s, 8, %s" % (vr(VLD), vr(G_)), VLD, [G_])
            V("v_lshl_add_u32 %s, %s, 4, %s" % (vr(VLD), vr(Q), vr(VLD)), VLD, [Q, VLD])
        V("v_lshlrev_b32 %s, %d, %s" % (vr(VO), 4 if OC else 6, vr(G_)), VO, [G_])
        V("v_lshl_add_u32 %s, %s, 11, %s" % (vr(VO), vr(Q), vr(VO)), VO, [Q, VO])
        V("v_lshrrev_b32 %s, 1, %s" % (vr(VF), vr(L16)), VF, [L16])
        if SELF:
            A(lambda: g.s("s_mul_i32 %s, s3, 3072" % sr(S_T)))
            V("v_add_u32 %s, %s, %s" % (vr(PP), sr(S_T), vr(LR)), PP, [LR])
            V("v_mov_b32 %s, %d" % (vr(PP + 1), L_MISC), PP + 1)

            def masks():
                if EP:
                    g.s("s_mov_b64 %s, %s" % (sr(SRD_V, 2), sr(SRD_WS, 2)))
                for h, srd in enumerate((SRD_X, SRD_K)):
                    g.s("s_mov_b64 %s, %s" % (sr(srd, 2), sr(SRD_WS, 2)))
                    g.s("s_lshl_b32 %s, s3, 1" % sr(S_T))
                    g.s("s_add_u32 %s, %s, %d" % (sr(S_T), sr(S_T), h))
                    g.s("s_cmp_lg_u32 %s, %s" % (sr(S_T), sr(S_HG)))
                    g.s("s_cselect_b32 %s, %s, 0" % (sr(srd + 2), sr(SRD_WS + 2)))
            A(masks)
        A(lambda: g.s("s_mov_b32 %s, 0" % sr(S_PHASE)))
        A(lambda: g.s("s_mov_b32 %s, 0" % sr(S_PEND)))
        A(lambda: g.s("s_mov_b32 %s, 0" % sr(S_CNT)))
        return ops

    def extra(s):
        ops = []
        if EXP and EXS <= s < EXS + 6:
            n = s - EXS
            for i in (2, 3):
                p = i * 3 + (n >> 1)
                def st(p=p, n=n):
                    g.s("s_add_u32 %s, %s, %d" % (sr(S_T + 6), sr(S_PB + (n & 1)), p * 1024))
                    g.vstore("buffer_store_dwordx4 %s, %s, %s, %s offen sc1" % (vr(A0 + 240, 4), vr(L16), sr(SRD_WS, 4), sr(S_T + 6)), "PS", data=rng(A0 + 240, 4), addr=[L16])
                ops.append(st)
        if EXP and s == EXL:
            for k in range(12):
                def ld(k=k):
                    d = A0 + 244 + (k % 3) * 4
                    g.s("s_add_u32 %s, %s, %d" % (sr(S_T), sr(S_XS + 2), (k & 7) * 12288 + (k >> 3) * 1024))
                    g.vload("buffer_load_dwordx4 %s, %s, %s, %s offen sc1" % (vr(d, 4), vr(L16), sr(SRD_WS, 4), sr(S_T)), "RX", dst=rng(d, 4), addr=[L16])
                ops.append(ld)
        if s == 0:
            ops.append(lambda: g.wait_vm("POI"))
            ops += setup_ops()
        if s == PFS and not E("NOFAST", 1):
            def pf():
                g.wait_vm("POI")
                g.s("s_add_u32 %s, %s, %d" % (sr(S_T), sr(S_FS), FLGP - FLG))
                flag_store(S_T, "PF")
            ops.append(pf)
        if s == PPS and not E("NOFAST", 1):
            def pp():
                g.s("s_add_u32 %s, %s, %d" % (sr(S_T), sr(S_XS + 1), FLGP - FLG))
                g.vload("buffer_load_dwordx2 %s, %s, %s, %s offen sc1" % (vr(PP, 2), vr(VF), sr(SRD_WS, 4), sr(S_T)), "PP", dst=[PP, PP + 1], addr=[VF])
            ops.append(pp)
        return ops
    (gemm2u if UM == 6 else gemm2)(g, wl2, b2_reads(g), tail, extra)
    stamp(g)
    LDT = [KF, KF + 32, 0]
    RD = 32
    OQ = 64

    def r_loads(t):
        for src in range(8):
            if EXP and (t == 0 or (t == 1 and src < 4)):
                continue
            d = LDT[t] + src * 4
            g.s("s_add_u32 %s, %s, %d" % (sr(S_T), sr(S_XS + 2), src * 12288 + t * 1024))
            g.vload("buffer_load_dwordx4 %s, %s, %s, %s offen sc1" % (vr(d, 4), vr(L16), sr(SRD_WS, 4), sr(S_T)), "R%d" % t, dst=rng(d, 4), addr=[L16])

    def r_sum(t):
        for src in range(8):
            d = LDT[t] + src * 4
            for h in range(2):
                r = RD + (t * 2 + h) * 4
                g.mfma(r, AC + 2 - 2 * h, d, None if src == 0 else r)

    def r_out(t):
        o = OQ + t * 4
        for h in range(2):
            r = RD + (t * 2 + h) * 4
            for k in range(2):
                g.valu("v_cvt_pk_bf16_f32 %s, %s, %s" % (vr(o + h * 2 + k), vr(r + 2 * k), vr(r + 2 * k + 1)), dst=[o + h * 2 + k], src=[r + 2 * k, r + 2 * k + 1])
        g.s("s_add_u32 %s, %s, %d" % (sr(S_T + 3), sr(S_OB), t * 65536))
        g.vstore("buffer_store_dwordx4 %s, %s, %s, %s offen%s" % (vr(o, 4), vr(VO), sr(SRD_OUT, 4), sr(S_T + 3), os.environ.get("OUTF", "")), "OUT", data=rng(o, 4), addr=[VO])

    def r_check(t):
        m = [TQ, TQ + 1]
        b = LDT[t]
        for c in range(2):
            g.valu("v_max3_u32 %s, %s, %s, %s" % (vr(m[c]), vr(b + 16 * c), vr(b + 16 * c + 1), vr(b + 16 * c + 2)), dst=[m[c]], src=rng(b + 16 * c, 3))
        for k in range(3, 15, 2):
            for c in range(2):
                x = b + 16 * c + k
                g.valu("v_max3_u32 %s, %s, %s, %s" % (vr(m[c]), vr(m[c]), vr(x), vr(x + 1)), dst=[m[c]], src=[m[c], x, x + 1])
        g.valu("v_max3_u32 %s, %s, %s, %s" % (vr(m[0]), vr(m[0]), vr(b + 15), vr(b + 31)), dst=[m[0]], src=[m[0], b + 15, b + 31])
        g.valu("v_max_u32 %s, %s, %s" % (vr(m[0]), vr(m[0]), vr(m[1])), dst=[m[0]], src=m)
        g.valu("v_cmp_eq_u32 vcc, -1, %s" % vr(m[0]), src=[m[0]])
        g.nop(1)
        g.s("s_cbranch_vccnz retry%d" % t)

    def flags_ok(pl):
        g.valu("v_cmp_eq_u32 vcc, %s, %s" % (vr(pl), vr(F0)), src=[pl, F0])
        g.valu("v_cmp_eq_u32 %s, %s, %s" % (sr(S_M, 2), vr(pl + 1), vr(F0 + 1)), src=[pl + 1, F0 + 1])
        g.s("s_mov_b64 exec, -1")
        g.s("s_and_b32 %s, %s, vcc_lo" % (sr(S_M), sr(S_M)))
        g.s("s_and_b32 %s, %s, 0xff" % (sr(S_M + 1), sr(S_M)))
        g.s("s_cmp_eq_u32 %s, 0xff" % sr(S_M + 1))

    NOFAST = E("NOFAST", 1)
    if not NOFAST:
        r_loads(0)
        r_loads(1)
        if T2POS == 0:
            r_loads(2)
        g.wait_vm("PP")
        flags_ok(PP)
        if FORCE_AB & 512:
            g.s("s_bitcmp1_b32 s2, 4")
        g.s("s_cbranch_scc0 slow")
        if FORCE_AB & 255:
            g.s("s_and_b32 %s, s2, %d" % (sr(S_T), FORCE_AB & 255))
            g.s("s_cmp_eq_u32 %s, 0" % sr(S_T))
            g.s("s_cbranch_scc1 slow")
        if FORCE_AB & 256:
            g.s("s_branch slow")
        g.wait_vm("R0")
        flag_store(S_FS, "FS")
        stamp(g)
        for t in range(3):
            g.wait_vm("R%d" % t)
            g.label("chk%d" % t)
            g.nop(1)
            r_check(t)
            if t == 0 and T2POS == 1:
                r_loads(2)
            r_sum(t)
            if t == 0 and T2POS == 2:
                r_loads(2)
            if t == 2:
                stamp(g)
            r_out(t)
        stamp(g)
        stamp_flush(g)
        g.s("s_branch after")
        for t in range(3):
            g.label("retry%d" % t)
            g.vmq = []
            r_loads(t)
            g.s("s_add_u32 %s, %s, 1" % (sr(S_CNT), sr(S_CNT)))
            g.s("s_cmp_lt_u32 %s, %d" % (sr(S_CNT), RETRY))
            g.waitcnt(vm=0)
            g.vmq = []
            g.s("s_cbranch_scc1 chk%d" % t)
            if t < 2:
                g.s("s_branch slow")
    S_DONE, S_ACC, S_NEW = S_CNT, S_T + 6, S_T + 7

    def poll_load(soff):
        if E("PX", 1):
            g.s("s_mov_b64 exec, 0xffff")
        g.vload("buffer_load_dwordx2 %s, %s, %s, %s offen sc1" % (vr(PL, 2), vr(VF), sr(SRD_WS, 4), sr(soff)), "PL", dst=[PL, PL + 1], addr=[VF])

    def poll(soff):
        poll_load(soff)
        g.waitcnt(vm=0)
        g.vmq = []
        flags_ok(PL)

    def elapsed():
        g.s("s_memrealtime %s" % sr(S_T + 4, 2))
        g.waitcnt(lg=0)
        g.s("s_sub_u32 %s, %s, %s" % (sr(S_T + 4), sr(S_T + 4), sr(S_NONCE)))

    def job_init():
        for k in range(24):
            vop(g, "v_mov_b32 %s, 0" % vr(RD + k), RD + k)
        g.s("s_mov_b32 %s, 0" % sr(S_DONE))
        g.s("s_mov_b32 %s, 0" % sr(S_ACC))
    g.label("slow")
    if STAMP == 5:
        g.s("s_mov_b32 m0, 12")
        g.s("s_mov_b64 exec, 0xfffff000")
        vop(g, "v_mov_b32 %s, 0" % vr(SV), SV)
        vop(g, "v_mov_b32 %s, 0" % vr(SV + 1), SV + 1)
        g.s("s_mov_b64 exec, -1")
    SF = 96
    S_SF = S_SM

    def force():
        if FORCE_AB & 255:
            g.s("s_and_b32 %s, s2, %d" % (sr(S_T), FORCE_AB & 255))
            g.s("s_cmp_eq_u32 %s, 0" % sr(S_T))
            g.s("s_cbranch_scc1 giveup")
        if FORCE_AB & 256:
            g.s("s_branch giveup")

    def publish():
        g.waitcnt(vm=0)
        g.vmq = []
        flag_store(S_FS, "FS")

    def self_lds(par):
        for u in range(par, 6, 2):
            run(tail(u, True))
        g.dswrite("ds_write_b32 %s, %s offset:8" % (vr(PP + 1), vr(F0)), "SW", data=[F0], addr=[PP + 1])
    PARTS = [(src, (0, 1)) for src in range(8)] + [(src, (2,)) for src in range(8)] if ST2 else [(src, (0, 1, 2)) for src in range(8)]

    def masks2():
        if ST2:
            vop(g, "v_or_b32 %s, 1, %s" % (vr(TQ), vr(PL + 1)), TQ, [PL + 1])
            g.valu("v_cmp_eq_u32 s[10:11], %s, %s" % (vr(TQ), vr(FO)), src=[TQ, FO])
        flags_ok(PL)
        if ST2:
            g.s("s_and_b32 s10, s10, vcc_lo")
            g.s("s_and_b32 s10, s10, 0xff")
            g.s("s_lshl_b32 %s, %s, 8" % (sr(S_M + 1), sr(S_M + 1)))
            g.s("s_or_b32 %s, %s, s10" % (sr(S_M + 1), sr(S_M + 1)))

    def self_acc():
        g.label("selfw")
        g.dsread("ds_read_b32 %s, %s offset:8" % (vr(TQ), vr(PP + 1)), "SR", dst=[TQ], addr=[PP + 1])
        for t in range(3):
            g.dsread("ds_read_b128 %s, %s offset:%d" % (vr(SF + t * 4, 4), vr(PP), L_SELF + t * 1024), "SR", dst=rng(SF + t * 4, 4), addr=[PP])
        g.waitcnt(lg=0)
        g.lgq = []
        g.valu("v_readfirstlane_b32 %s, %s" % (sr(S_T), vr(TQ)), src=[TQ], readlane=True, sdst=[S_T])
        g.s("s_cmp_eq_u32 %s, %s" % (sr(S_T), sr(S_NONCE)))
        g.s("s_cbranch_scc0 selfw")
        for t in range(3):
            for h in range(2):
                r = RD + (t * 2 + h) * 4
                g.mfma(r, AC + 2 - 2 * h, SF + t * 4, r)
        force()
    if EP:
        assert SELF and ST2 == 1
        job_init()
        g.s("s_lshl_b32 %s, 0x101, %s" % (sr(S_DONE), sr(S_HG)))
        g.s("s_cmp_eq_u32 %s, 0" % sr(SRD_K + 2))
        g.s("s_cbranch_scc1 self1")
        g.s("s_cmp_eq_u32 %s, 0" % sr(SRD_X + 2))
        g.s("s_cbranch_scc1 self0")
        g.label("pub")
        g.wait_vm("P0")
        masks2()
        g.s("s_andn2_b32 %s, %s, %s" % (sr(S_ACC), sr(S_M + 1), sr(S_DONE)))
        for bit, (src, ts) in enumerate(PARTS):
            g.s("s_add_u32 %s, %s, %d" % (sr(S_T), sr(S_XS + 2), src * 12288))
            g.s("s_bitcmp1_b32 %s, %d" % (sr(S_ACC), bit))
            g.s("s_cselect_b32 %s, %s, 0" % (sr(SRD_V + 2), sr(SRD_WS + 2)))
            for t in ts:
                d = LDT[t] + src * 4
                g.vload("buffer_load_dwordx4 %s, %s, %s, %s offen offset:%d%s" % (vr(d, 4), vr(LR), sr(SRD_V, 4), sr(S_T), t * 1024, DFL), "R", dst=rng(d, 4), addr=[LR])
        g.s("s_or_b32 %s, %s, %s" % (sr(S_DONE), sr(S_DONE), sr(S_ACC)))
        g.wait_vm("PS2")
        flag_store(S_FS, "FS")
        stamp(g)
        poll_load(S_XS + 1)
        g.s("s_mov_b64 exec, -1")
        self_acc()
        g.waitcnt(vm=0)
        g.vmq = []
        g.s("s_branch process")
        for par in range(2):
            g.label("self%d" % par)
            self_lds(par)
            g.s("s_branch pub")
    else:
        job_init()
        if SELF:
            g.s("s_lshl_b32 %s, %s, %s" % (sr(S_DONE), "0x101" if ST2 else "1", sr(S_HG)))
            g.s("s_mov_b32 %s, 1" % sr(S_SF))
            g.s("s_cmp_eq_u32 %s, 0" % sr(SRD_K + 2))
            g.s("s_cbranch_scc1 self1")
            g.s("s_cmp_eq_u32 %s, 0" % sr(SRD_X + 2))
            g.s("s_cbranch_scc1 self0")
            g.label("pub")
        publish()
        if SELF:
            g.label("pub2")
        if NOFAST:
            stamp(g)
        if not SELF:
            force()
        g.s("s_branch poll")
        if SELF:
            g.label("self0")
            self_lds(0)
            g.s("s_branch pub")
            g.label("self1")
            publish()
            self_lds(1)
            g.s("s_branch pub2")
    g.label("job")
    job_setup(g, lambda o: o())
    job_init()
    g.label("poll")
    poll_load(S_XS + 1)
    g.waitcnt(vm=0)
    g.vmq = []
    g.label("process")
    masks2()
    if STAMP == 5:
        g.s("s_memrealtime %s" % sr(S_ST, 2))
        g.waitcnt(lg=0)
        g.valu("v_writelane_b32 %s, %s, m0" % (vr(SV), sr(S_ST)), dst=[SV])
        g.valu("v_writelane_b32 %s, %s, m0" % (vr(SV + 1), sr(S_M + 1)), dst=[SV + 1])
        g.s("s_add_u32 m0, m0, 1")
        g.s("s_min_u32 m0, m0, 31")
    if E("WA", 0):
        g.s("s_or_b32 %s, %s, %s" % (sr(S_T), sr(S_M + 1), sr(S_DONE)))
        g.s("s_bcnt1_i32_b32 %s, %s" % (sr(S_T), sr(S_T)))
        g.s("s_cmp_gt_u32 %s, %d" % (sr(S_T), 8 - E("WA", 0)))
        if E("LIM", 0):
            g.s("s_cselect_b32 %s, -1, 0" % sr(S_T + 1))
            g.s("s_andn2_b32 %s, %s, %s" % (sr(S_NEW), sr(S_M + 1), sr(S_DONE)))
            g.s("s_sub_u32 %s, 0, %s" % (sr(S_T), sr(S_NEW)))
            g.s("s_or_b32 %s, %s, %s" % (sr(S_T), sr(S_T), sr(S_T + 1)))
            g.s("s_and_b32 %s, %s, %s" % (sr(S_M + 1), sr(S_NEW), sr(S_T)))
        else:
            g.s("s_cselect_b32 %s, %s, 0" % (sr(S_M + 1), sr(S_M + 1)))
    g.s("s_andn2_b32 %s, %s, %s" % (sr(S_NEW), sr(S_M + 1), sr(S_DONE)))
    g.s("s_cbranch_scc0 noload")
    for bit, (src, ts) in enumerate(PARTS):
        g.s("s_bitcmp1_b32 %s, %d" % (sr(S_NEW), bit))
        g.s("s_cbranch_scc0 nold%d" % bit)
        g.s("s_add_u32 %s, %s, %d" % (sr(S_T), sr(S_XS + 2), src * 12288))
        for t in ts:
            if E("EXP2", 0) and (src & 1):
                continue
            d = LDT[t] + src * 4
            g.vload("buffer_load_dwordx4 %s, %s, %s, %s offen offset:%d%s" % (vr(d, 4), vr(LR), sr(SRD_WS, 4), sr(S_T), t * 1024, DFL), "R", dst=rng(d, 4), addr=[LR])
        g.label("nold%d" % bit)
    g.vmq = []
    g.label("noload")
    if SELF and not EP:
        g.s("s_cmp_eq_u32 %s, 0" % sr(S_SF))
        g.s("s_cbranch_scc1 noself")
        g.s("s_mov_b32 %s, 0" % sr(S_SF))
        self_acc()
        g.label("noself")
    g.s("s_cmp_eq_u32 %s, 0" % sr(S_ACC))
    g.s("s_cbranch_scc1 noacc")
    for bit, (src, ts) in enumerate(PARTS):
        g.s("s_bitcmp1_b32 %s, %d" % (sr(S_ACC), bit))
        g.s("s_cbranch_scc0 noac%d" % bit)
        for t in ts:
            for h in range(2):
                r = RD + (t * 2 + h) * 4
                g.mfma(r, AC + 2 - 2 * h, LDT[t] + src * 4, r)
        g.label("noac%d" % bit)
    g.label("noacc")
    g.s("s_or_b32 %s, %s, %s" % (sr(S_DONE), sr(S_DONE), sr(S_NEW)))
    g.s("s_mov_b32 %s, %s" % (sr(S_ACC), sr(S_NEW)))
    g.s("s_cmp_lg_u32 %s, %s" % (sr(S_DONE), "0xffff" if ST2 else "0xff"))
    g.s("s_cbranch_scc1 more")
    g.s("s_cmp_eq_u32 %s, 0" % sr(S_ACC))
    g.s("s_cbranch_scc1 finish")
    if NOFAST:
        stamp(g)
    g.waitcnt(vm=0)
    g.s("s_mov_b32 %s, 0" % sr(S_NEW))
    g.s("s_branch noload")
    g.label("more")
    g.s("s_cmp_lg_u32 %s, 0" % sr(S_NEW))
    g.s("s_cbranch_scc1 poll")
    g.s("s_sleep %d" % SLEEP)
    elapsed()
    g.s("s_cmp_lt_i32 %s, %d" % (sr(S_T + 4), X_AB))
    g.s("s_cbranch_scc1 poll")
    g.label("giveup")
    if SELF:
        g.s("s_cmp_lg_u32 %s, 0" % sr(S_PHASE))
        g.s("s_cbranch_scc1 giveup2")
        g.s("s_mul_i32 %s, %s, 12288" % (sr(S_T), sr(S_HG)))
        g.s("s_add_u32 %s, %s, %s" % (sr(S_T), sr(S_T), sr(S_XS + 2)))
        for t in range(3):
            g.vstore("buffer_store_dwordx4 %s, %s, %s, %s offen offset:%d sc1" % (vr(SF + t * 4, 4), vr(LR), sr(SRD_WS, 4), sr(S_T), t * 1024), "PS", data=rng(SF + t * 4, 4), addr=[LR])
        g.waitcnt(vm=0)
        g.vmq = []
        g.label("giveup2")
    g.s("s_and_b32 %s, %s, 1" % (sr(S_T), sr(S_RO)))
    g.s("s_lshl_b32 %s, %s, 2" % (sr(S_T), sr(S_T)))
    g.s("s_add_u32 %s, %s, %s" % (sr(S_T), sr(S_T), sr(S_RR)))
    g.s("s_lshl_b32 %s, %s, 3" % (sr(S_T), sr(S_T)))
    g.s("s_add_u32 %s, %s, 64" % (sr(S_T), sr(S_T)))
    g.s("s_add_u32 %s, %s, %s" % (sr(S_T), sr(S_T), sr(S_XS + 1)))
    flag_store(S_T, "FS")
    g.waitcnt(vm=0)
    g.vmq = []
    poll(S_XS + 1)
    g.s("s_cbranch_scc1 process")
    g.s("s_branch after")
    g.label("finish")
    g.nop(10)
    for t in range(3):
        r_out(t)
    if NOFAST:
        stamp(g)
        stamp_flush(g)
    g.label("after")
    g.nop(8)
    g.s("s_cmp_lg_u32 %s, 0" % sr(S_PHASE))
    g.s("s_cbranch_scc1 next")
    g.s("s_mov_b32 %s, 1" % sr(S_PHASE))
    g.waitcnt(vm=3 + (1 if STAMP else 0))
    elapsed()
    g.s("s_cmp_lt_i32 %s, %d" % (sr(S_T + 4), X_CK))
    if not FORCE_AB:
        g.s("s_cbranch_scc1 k_end")
    poll(S_XS)
    g.s("s_lshr_b32 %s, %s, 8" % (sr(S_PEND), sr(S_M)))
    g.s("s_and_b32 %s, %s, 0xff" % (sr(S_PEND), sr(S_PEND)))
    g.s("s_cmp_eq_u32 %s, 0xff" % sr(S_M + 1))
    g.s("s_cselect_b32 %s, %s, 0" % (sr(S_PEND), sr(S_PEND)))
    g.label("next")
    g.s("s_cmp_eq_u32 %s, 0" % sr(S_PEND))
    g.s("s_cbranch_scc1 k_end")
    g.s("s_ff1_i32_b32 %s, %s" % (sr(S_T), sr(S_PEND)))
    g.s("s_bitset0_b32 %s, %s" % (sr(S_PEND), sr(S_T)))
    g.s("s_and_b32 %s, %s, 3" % (sr(S_RR), sr(S_T)))
    g.s("s_lshr_b32 %s, %s, 2" % (sr(S_T), sr(S_T)))
    g.s("s_lshl_b32 %s, s3, 1" % sr(S_RO))
    g.s("s_add_u32 %s, %s, %s" % (sr(S_RO), sr(S_RO), sr(S_T)))
    g.waitcnt(vm=0)
    g.s("s_branch job")
    g.label("k_end")


def body():
    _stamp_n[0] = 0
    g0 = prologue()
    n = len(CLS)
    if n > 1:
        if CLF == "b":
            g0.s("s_and_b32 %s, %s, %d" % (sr(S_TYPE), sr(S_B), n - 1))
        else:
            g0.s("s_add_u32 %s, %s, %s" % (sr(S_TYPE), sr(S_B), sr(S_HG)))
            g0.s("s_and_b32 %s, %s, %d" % (sr(S_TYPE), sr(S_TYPE), n - 1))
        for c in range(1, n):
            g0.s("s_cmp_eq_u32 %s, %d" % (sr(S_TYPE), c))
            g0.s("s_cbranch_scc1 cls%d" % c)
    n0 = _stamp_n[0]
    txt = []
    for c in range(n):
        _stamp_n[0] = n0
        g = Gen()
        g.label("cls%d" % c)
        part1(g, CLS[c])
        if c:
            g.s("s_branch join")
        txt.append(g.text())
    g = Gen()
    g.vmq = ["V0", "V1", "V2", "TCH", "VD"]
    g.label("join")
    part2(g)
    g.raw("s_endpgm")
    return g0.text() + txt[0] + g.text() + "".join(txt[1:]) + "code_end:\n"


def main():
    out = "; fused attention: q-proj + attention + o-proj partial per workgroup, cross-workgroup bf16 reduction\n"
    out += "; @launch kernel=attn_kernel grid=(256,1,1) block=(256,1,1) lds=%d\n" % LDS_BYTES
    out += '.amdgcn_target "amdgcn-amd-amdhsa--gfx950"\n.text\n'
    out += ".globl attn_kernel\n.p2align 8\n.type attn_kernel,@function\nattn_kernel:\n"
    out += body()
    out += '.section .rodata,"a"\n.p2align 6\n.amdhsa_kernel attn_kernel\n'
    out += "  .amdhsa_next_free_vgpr 512\n  .amdhsa_next_free_sgpr 102\n  .amdhsa_accum_offset 256\n"
    out += "  .amdhsa_group_segment_fixed_size 0\n  .amdhsa_kernarg_size 104\n  .amdhsa_user_sgpr_count 2\n"
    out += "  .amdhsa_user_sgpr_kernarg_segment_ptr 1\n  .amdhsa_system_sgpr_workgroup_id_x 1\n.end_amdhsa_kernel\n"
    path = sys.argv[1] if len(sys.argv) > 1 else "cdna_kernels/%s.s" % NAME
    open(path, "w").write(out)
    print("wrote", path, len(out), "bytes; stamps", _stamp_n[0], "late", LATE[:12])
    if E("INFO", 0):
        for i in INFO:
            print(i)


main()
```

```python
import sys, os
sys.path.insert(0, os.path.dirname(os.path.abspath(__file__)))
from asmgen2 import Gen, vr, sr

NAME = "concat_heads__gqa_block_cached__gqa_block_cached__near_ridge"
WS_BYTES = 268435456
E = lambda k, d: int(os.environ.get(k, str(d)))
STAMP = E("STAMP", 0)
STAMP_BASE = 200 * 1024 * 1024
NRAW = E("NRAW", 3)
WQT = E("WQT", 1)
WOT = E("WOT", 1)
XBAR = dict((int(a), int(b)) for a, b in (t.split(":") for t in os.environ.get("XBAR", "0:1,4:3,8:5,12:7").split(",")))
VL = dict((int(t[0]), int(t[2])) for t in os.environ.get("VL", "0h0,1h1,2h2").split(",") if t)
PDEF = os.environ.get("PTOK", "x0,w0,x1,w1,t")
QB = os.environ.get("QB", "w2,x2,x3,w3,w4,w5,w6,x4,x5,w7,w8,w9,w10,x6,x7,w11,w12,w13,w14,w15,V0h0,V1h1")
CLS = []
for c in os.environ.get("KP", "5,9,13|6,10,14|7,11,15|8,12,15").split("|"):
    kp = [int(t) for t in c.split(",")]
    q = []
    for tok in QB.split(","):
        q.append(tok)
        for p_ in range(3):
            if tok == "w%d" % kp[p_]:
                q.append("K%dh%d" % (p_, p_))
    CLS.append({"P": PDEF.split(","), "Q": q})
if os.environ.get("QTOK"):
    CLS = [{"P": PDEF.split(","), "Q": c.split(",")} for c in os.environ["QTOK"].split("|")]
RM = E("RM", 14)
MAP = E("MAP", 0)
PLAIN = E("PLAIN", 0)
DF = "" if PLAIN else " sc1"
DFL = ["", "", " sc0", " sc1"][PLAIN] if PLAIN else " sc1"
BUD, CC, CW, CAP = E("BUD", 58), E("CC", 65), E("CW", 33), E("CAP", 100)
SM2 = E("SM2", 0)
POST = {}
for it in os.environ.get("POST", "0=V2h2;3=T;4=Y").split(";"):
    k, v = it.split("=")
    POST[int(k)] = v.split(",")
CLF = os.environ.get("CLF", "b")
FORCE_AB = E("FORCE_AB", 0)
POLL_MAX = E("POLL_MAX", 300)
SLEEP = E("SLEEP", 2)
NT = os.environ.get("NT", " nt")
PART = 0
FLG = 64 * 1024 * 1024
FC = 0x5A3C96E1
FLGP = FLG + 65536
X_AB = E("X_AB", 40000)
X_CK = E("X_CK", 20000)
RETRY = E("RETRY", 40)
R2 = [int(c) for c in os.environ.get("R2", "11211212")]
PFS = E("PFS", 1)
PPS = E("PPS", 11)
T2POS = E("T2POS", 1)
EXP, EXS, EXL = E("EXP", 0), E("EXS", 4), E("EXL", 11)

SRD_X, SRD_K, SRD_V, SRD_W, SRD_WS, SRD_WO, SRD_OUT, SRD_DBG = 20, 24, 28, 32, 36, 40, 44, 48
SE = 51
S_PLO, S_PHI = 60, 61
S_BH, S_HG, S_B, S_BLK, S_GRP, S_TYPE, S_C = 62, 63, 64, 65, 66, 67, 68
S_W0 = 70
S_T = 72
S_NONCE, S_RO, S_RR, S_PEND, S_PHASE, S_CNT = 80, 81, 82, 83, 84, 85
S_WI, S_XR = 80, 82
ROT = E("ROT", 2)
S_XS = 86
S_XM = 89
S_PB = 89
S_VL = 92
S_M = 94
S_ST = 96

RAW = 0
WT = 96 if NRAW == 3 else 224
WT8 = 64
KF = 128
VW, XB, VK, VV, VWO, L16, VOW, L16H = 240, 241, 245, 246, 247, 248, 249, 250
VOW2 = XB
TQ = 251
XA = TQ
WTA = 112 if NRAW == 3 else A0 + 254 if False else 112
VR2 = 0
VKD, VKR = 113, 117
QF = 32
SB = 64
PT = 112
TM = 124
OB = 64
TT = 32
ZQ = 224
A0 = 256
ACC = A0
BF = A0 + 192
VRA = A0 + 192

L_V = 98304
L_MISC = 34816
LDS_BYTES = 163840

_stamp_n = [0]


def rng(a, n):
    return list(range(a, a + n))


def vop(g, text, dst, src=()):
    g.valu(text, dst=[dst] if isinstance(dst, int) else dst, src=src)


SV = 236


def stamp(g, have=False):
    if not STAMP:
        return
    n = _stamp_n[0]
    _stamp_n[0] += 1
    if not have:
        g.s("%s %s" % (os.environ.get("CLK", "s_memrealtime"), sr(S_ST, 2)))
        g.waitcnt(lg=0)
        g.lgq = []
    g.valu("v_writelane_b32 %s, %s, %d" % (vr(SV), sr(S_ST), n), dst=[SV])
    g.valu("v_writelane_b32 %s, %s, %d" % (vr(SV + 1), sr(S_ST + 1), n), dst=[SV + 1])


def stamp_flush(g):
    if not STAMP:
        return
    g.s("s_lshl_b32 %s, s2, 8" % sr(S_ST + 2))
    g.s("s_add_u32 %s, %s, %d" % (sr(S_ST + 2), sr(S_ST + 2), STAMP_BASE))
    g.s("s_mul_i32 %s, s3, 1048576" % sr(S_ST + 3))
    g.s("s_add_u32 %s, %s, %s" % (sr(S_ST + 2), sr(S_ST + 2), sr(S_ST + 3)))
    vop(g, "v_lshrrev_b32 %s, 1, %s" % (vr(TQ), vr(L16)), TQ, [L16])
    g.s("s_mov_b64 exec, 0xffffffff")
    g.vstore("buffer_store_dwordx2 %s, %s, %s, %s offen" % (vr(SV, 2), vr(TQ), sr(SRD_WS, 4), sr(S_ST + 2)), "STAMP", data=[SV, SV + 1], addr=[TQ])
    g.s("s_mov_b64 exec, -1")


def make_srd(g, srd, ptr, nbytes):
    g.s("s_mov_b32 %s, %s" % (sr(srd), sr(ptr)))
    g.s("s_and_b32 %s, %s, 0xffff" % (sr(srd + 1), sr(ptr + 1)))
    g.s("s_mov_b32 %s, %d" % (sr(srd + 2), nbytes))
    g.s("s_mov_b32 %s, 0x00020000" % sr(srd + 3))


def acc1(j, u):
    return ACC + (u * 8 + j) * 4


def acc2(j, u):
    return ACC + (u * 8 + j) * 4


SL2 = [32, 0, 64, KF, KF + 32]


UM = E("UM", 6)
SELF = E("SELF", 1)
ST2 = E("ST2", 0)
HOOK = {}
OC = E("OC", 1)
VST, VLD = 240, 241
EP = E("EP", 0)
L_SELF = 49152
S_SM, S_SP = 8, 14


def raw2(s, e):
    if UM == 6 and s in (13, 14):
        s = 27 - s
    return SL2[s % 5] + e * 4


CYC = [KF + 64, 32, 64, 0, KF, KF + 32]


def raw(s, e):
    return CYC[s % 6] + e * 4


def bf(s, u):
    return BF + ((s % 2) * 6 + u) * 4


def perm_ops(g, rbase, j, dst):
    ops = []
    for m in range(4):
        a, b = rbase + (2 * m) * 4 + (j >> 1), rbase + (2 * m + 1) * 4 + (j >> 1)
        sel = S_PHI if j & 1 else S_PLO

        def op(a=a, b=b, d=dst + m, sel=sel):
            g.valu("v_perm_b32 %s, %s, %s, %s" % (vr(d), vr(b), vr(a), sr(sel)), dst=[d], src=[a, b])
        ops.append(op)
    return ops


def merge(main, fill):
    n = len(main)
    k = 0
    for i, m in enumerate(main):
        m()
        upto = (len(fill) * (i + 1) + n - 1) // n
        while k < upto:
            fill[k]()
            k += 1


def units(tag, ops, cost):
    out, cur = [], []
    for o in ops:
        cur.append(o)
        if getattr(o, "is_load", False):
            out.append([tag, cost, cur])
            cur = []
    if cur:
        out.append([tag, 0, cur])
    return out


def gemm1(g, cl, b_reads, tail):
    acc = acc1
    pend = []
    rdone = set()
    kbar = min(k - 1 for k in XBAR if k - 1 >= 5)
    vbar = min(k - 1 for k in XBAR if k - 1 >= 11)
    for tok in cl["Q"]:
        if tok[0] == "@":
            pend.append([tok, 0, []])
        else:
            pend += units(tok, tok_ops(g, tok), CW if tok[0] == "w" or (ROT == 2 and tok[0] == "x" and int(tok[1]) >= 4) else CC)
    credit = [0]
    kiss = {}
    INFO.append(kiss)

    def ok(tag, s, j):
        if tag[0] == "@":
            return s >= int(tag[1:])
        if tag[0] == "w":
            return (s, j) >= (int(tag[1:]) - 6, 7)
        if tag[0] == "K" and tag[3] == "2":
            return (s, j) >= (kbar, 4)
        if tag[0] == "V" and tag[3] == "2":
            return (s, j) >= (vbar, 4)
        if tag[0] == "V":
            return tag[3] in rdone
        return True

    def take(s, j):
        out = []
        credit[0] = min(CAP, credit[0] + BUD)
        while pend and ok(pend[0][0], s, j) and credit[0] >= pend[0][1]:
            t, c, o = pend.pop(0)
            credit[0] -= c
            out += o
            kiss[t] = 8 * s + j
        return out

    def upto(tag, s, j):
        out = []
        while any(t == tag for t, _, _ in pend):
            t, c, o = pend.pop(0)
            assert t[0] == "@" or ok(t, s, j), (t, tag, s, j)
            credit[0] -= c
            out += o
            kiss[t] = 8 * s + j
            LATE.append((tag, t, s, j))
        return out
    side = []

    rnext = [0]

    def side_add(s):
        while rnext[0] < 3:
            p_ = rnext[0]
            tok = "R%dh%d" % (p_, p_)
            if s < 16 and (s < 11 + p_ or any(t == "K" + tok[1:] for t, _, _ in pend) or 8 * s < kiss["K" + tok[1:]] + RM):
                break
            side.append(lambda tok=tok, s=s: run(upto("K" + tok[1:], s, 0)))
            side.extend(tok_ops(g, tok))
            side.append(lambda tok=tok: rdone.add(tok[3]))
            rnext[0] += 1
            INFO.append((tok, s))

    def side_take(n):
        out = []
        while side and n > 0:
            o = side.pop(0)
            out.append(o)
            if getattr(o, "is_load", False):
                n -= 1
        while side and not getattr(side[0], "is_load", False) and len(side) == 1:
            out.append(side.pop(0))
        return out
    g.wait_vm("W0")
    for op in perm_ops(g, raw(0, 0), 0, WT):
        op()
    for s in range(15):
        side_add(s)
        for j in range(8):
            idx = 8 * s + j
            fill = []
            if j == 7:
                fill += upto("w%d" % (s + 1), s, j)
                fill.append(lambda s=s: g.wait_vm("W%d" % (s + 1)))
                fill += perm_ops(g, raw(s + 1, 0), 0, (WT8 if s == 14 else WT + ((idx + 1) % 4) * 4))
            else:
                fill += perm_ops(g, raw(s, 0), j + 1, WT + ((idx + 1) % 4) * 4)
            fill += take(s, j)
            if j == 3 and (s + 1) in XBAR:
                tags = ["X%d" % k for k in range(XBAR[s + 1] + 1)]
                for t in tags:
                    fill += upto(t.lower(), s, j)
                fill.append(lambda tags=tags: g.wait_vm(tags))
                fill.append(g.barrier)
            if 3 <= j <= 5:
                fill += b_reads(s + 1)[(j - 3) * 2:(j - 3) * 2 + 2]
            elif j < 3:
                fill += side_take(3)
            if j == 0:
                g.wait_lg("B%d" % s)
                if STAMP == 2 and s > 0:
                    stamp(g)
            a = WT + (idx % 4) * 4
            main = [(lambda u=u: g.mfma(acc(j, u), a, bf(s, u), None if s == 0 else acc(j, u))) for u in range(6)]
            merge(main, fill)
    s = 15
    side_add(15)
    g.wait_lg("B15")
    carry = []
    for n, u in enumerate(range(6)):
        main = [(lambda j=j: g.mfma(acc(j, u), WT8 + j * 4, bf(s, u), acc(j, u))) for j in range(8)]
        if n == 0:
            for j in range(8):
                main[j]()
                if j < 7:
                    for op in perm_ops(g, raw(s, 0), j + 1, WT8 + (j + 1) * 4):
                        op()
        else:
            fill = side_take(4)
            merge(main[:1], fill)
            fill = take(15, n) + take(15, n) + carry[:20]
            carry = carry[20:]
            merge(main[1:], fill)
        carry += tail(u)
    side_add(16)
    run(side)
    rest = []
    for t, c, o in pend:
        assert t[0] == "@" or ok(t, 16, 0), t
        rest += o
    return rest, carry


LATE = []
INFO = []


def mark(ops):
    for o in ops:
        names = o.__code__.co_names
        if "vload" in names:
            o.is_load = True
    return ops


def q_conv(g, u):
    ops = []
    for i in range(4):
        for m in range(4):
            t0, t1 = TQ + (m % 2) * 2, TQ + (m % 2) * 2 + 1
            s0, s1 = acc1(2 * m, u) + i, acc1(2 * m + 1, u) + i
            d = QF + (u % 2) * 16 + i * 4 + m
            ops.append(lambda t=t0, s=s0: g.valu("v_accvgpr_read_b32 %s, %s" % (vr(t), vr(s)), dst=[t], src=[s]))
            ops.append(lambda t=t1, s=s1: g.valu("v_accvgpr_read_b32 %s, %s" % (vr(t), vr(s)), dst=[t], src=[s]))
            ops.append(lambda d=d, a=t0, b=t1: g.valu("v_cvt_pk_bf16_f32 %s, %s, %s" % (vr(d), vr(a), vr(b)), dst=[d], src=[a, b]))
    return ops


def sacc(u, kt):
    return SB + (u % 2) * 24 + kt * 4


def pfrag(u, pp):
    return ACC + u * 32 + pp * 4


ONES = 224


def psum(u):
    return ACC + u * 32 + 12


def softmax_ops(g, u):
    ops = []
    A = ops.append
    vals = [sacc(u, kt) + r for kt in range(6) for r in range(4)]
    m, tmp, r = TM, TM + 1, TM + 2
    m2 = TM + 3

    def V(text, dst, src, **kw):
        A(lambda: g.valu(text, dst=dst, src=src, **kw))
    V("v_max3_f32 %s, %s, %s, %s" % (vr(m), vr(vals[0]), vr(vals[1]), vr(vals[2])), [m], vals[0:3])
    V("v_max3_f32 %s, %s, %s, %s" % (vr(m2), vr(vals[3]), vr(vals[4]), vr(vals[5])), [m2], vals[3:6])
    k = 6
    while k < 24:
        mm = m if (k // 2) % 2 else m2
        V("v_max3_f32 %s, %s, %s, %s" % (vr(mm), vr(mm), vr(vals[k]), vr(vals[k + 1])), [mm], [mm, vals[k], vals[k + 1]])
        k += 2
    V("v_max_f32 %s, %s, %s" % (vr(m), vr(m), vr(m2)), [m], [m, m2])

    def xl(x, op):
        for sw in ("v_permlane32_swap_b32", "v_permlane16_swap_b32"):
            V("v_mov_b32 %s, %s" % (vr(tmp), vr(x)), [tmp], [x])
            V("%s %s, %s" % (sw, vr(x), vr(tmp)), [x, tmp], [x, tmp], permlane=True)
            V("%s %s, %s, %s" % (op, vr(x), vr(x), vr(tmp)), [x], [x, tmp])
    xl(m, "v_max_f32")
    V("v_mul_f32 %s, %s, %s" % (vr(m), sr(S_C), vr(m)), [m], [m])
    for v in vals:
        V("v_fma_f32 %s, %s, %s, -%s" % (vr(v), vr(v), sr(S_C), vr(m)), [v], [v, m])
    for v in vals:
        V("v_exp_f32 %s, %s" % (vr(v), vr(v)), [v], [v], trans=True)
    for pp in range(3):
        for h in range(4):
            a = sacc(u, 2 * pp + (h >> 1)) + (h & 1) * 2
            d = PT + pp * 4 + h
            V("v_cvt_pk_bf16_f32 %s, %s, %s" % (vr(d), vr(a), vr(a + 1)), [d], [a, a + 1])
    for k in range(12):
        d = pfrag(u, 0) + k
        V("v_accvgpr_write_b32 %s, %s" % (vr(d), vr(PT + k)), [d], [PT + k])
    for pp in range(3):
        A(lambda pp=pp: g.mfma(psum(u), ONES, PT + pp * 4, None if pp == 0 else psum(u)))
    return ops


S_K2, S_KD, S_JUNK, S_TB = 4, 5, 13, 6


def k_dma(g, part, half):
    ops = []
    for n8 in range(8):
        n = part * 8 + n8
        ops.append(lambda n=n: g.s("s_add_u32 %s, %s, %d" % (sr(S_T + 1), sr(S_BH), n * 1024)))
        if half == 2:
            ops.append(lambda n8=n8: g.s("s_add_u32 m0, %s, %d" % (sr(S_K2), n8 * 1024), m0=True))
        else:
            ops.append(lambda n8=n8: g.s("s_add_u32 m0, %s, %d" % (sr(S_VL), half * 8192 + n8 * 1024), m0=True))
        ops.append(lambda n=n: g.vload("buffer_load_dwordx4 %s, %s, %s offen%s lds" % (vr(VKD + (n & 3)), sr(SRD_K, 4), sr(S_T + 1), NT), "KD%d" % part, addr=[VKD + (n & 3)], lds=True))
    return ops


def k_read(g, part, half):
    ops = [lambda: g.wait_vm("KD%d" % part)]
    if half == 2:
        for i in range(4):
            ops.append(lambda i=i: vop(g, "v_subrev_u32 %s, %s, %s" % (vr(VKR + i), sr(S_KD), vr(VKR + i)), VKR + i, [VKR + i]))
    for k2 in range(2):
        for i in range(4):
            d = KF + ((part * 2 + k2) * 4 + i) * 4
            o = lambda d=d, i=i, k2=k2: g.dsread("ds_read_b128 %s, %s offset:%d" % (vr(d, 4), vr(VKR + i), (half & 1) * 8192 + k2 * 4096), "KR%d" % half, dst=rng(d, 4), addr=[VKR + i])
            o.is_load = True
            ops.append(o)
    return ops


def vraw(pp, e):
    return (VRA + pp * 32 + e * 4) if pp < 2 else (VR2 + e * 4)


def v_loads(g, pp_):
    ops = []
    for pp in (pp_,):
        for e in range(8):
            if e % 4 == 0:
                ops.append(lambda pp=pp, e=e: g.s("s_add_u32 %s, %s, %d" % (sr(S_T + 1), sr(S_BH), pp * 8192 + (e >> 2) * 4096)))
            d = vraw(pp, e)
            ops.append(lambda d=d, e=e, pp=pp: g.vload("buffer_load_dwordx4 %s, %s, %s, %s offen offset:%d%s" % (vr(d, 4), vr(VV), sr(SRD_V, 4), sr(S_T + 1), (e & 3) * 256, NT),
                                                       "V%d" % pp, dst=rng(d, 4), addr=[VV]))
    return ops


L_V2 = 36864


def v_dma(g, pp, half):
    ops = [lambda: g.wait_lg("KR%d" % half)] if half < 2 else []
    for e in range(8):
        ops.append(lambda pp=pp, e=e: g.s("s_add_u32 %s, %s, %d" % (sr(S_T + 1), sr(S_BH), pp * 8192 + e * 1024)))
        if half < 2:
            ops.append(lambda pp=pp, e=e: g.s("s_add_u32 m0, %s, %d" % (sr(S_VL), (half * 8 + e) * 1024), m0=True))
        else:
            ops.append(lambda pp=pp, e=e: g.s("s_add_u32 m0, %s, %d" % (sr(S_K2), L_V2 + e * 1024), m0=True))
        a = VK if e & 1 else VV
        ops.append(lambda a=a: g.vload("buffer_load_dwordx4 %s, %s, %s offen%s lds" % (vr(a), sr(SRD_V, 4), sr(S_T + 1), NT), "VD", addr=[a], lds=True))
    return ops


def wo_touch(g):
    ops = []
    A = ops.append
    if MAP:
        A(lambda: g.s("s_and_b32 %s, %s, 3" % (sr(S_T + 3), sr(S_B))))
        A(lambda: g.s("s_lshl_b32 %s, %s, 2" % (sr(S_T + 3), sr(S_T + 3))))
    else:
        A(lambda: g.s("s_lshl_b32 %s, %s, 2" % (sr(S_T + 3), sr(S_B))))
    A(lambda: g.s("s_add_u32 %s, %s, s3" % (sr(S_T + 3), sr(S_T + 3))))
    A(lambda: g.s("s_lshl_b32 %s, %s, 13" % (sr(S_T + 3), sr(S_T + 3))))
    A(lambda: g.s("s_lshl_b32 %s, %s, 19" % (sr(S_T + 4), sr(S_HG))))
    A(lambda: g.s("s_add_u32 %s, %s, %s" % (sr(S_T + 3), sr(S_T + 3), sr(S_T + 4))))
    A(lambda: vop(g, "v_lshlrev_b32 %s, 3, %s" % (vr(TQ + 4), vr(L16)), TQ + 4, [L16]))
    for k in range(3 if MAP else 0):
        A(lambda: g.vload("buffer_load_dword %s, %s, %s, %s offen" % (vr(VW), vr(TQ + 4), sr(SRD_WO, 4), sr(S_T + 3)), "TCH", dst=[VW], addr=[TQ + 4]))
        A(lambda: g.s("s_add_u32 %s, %s, 131072" % (sr(S_T + 3), sr(S_T + 3))))
    A(lambda: g.vload("buffer_load_dword %s, %s, %s, %s offen" % (vr(TQ + 4), vr(TQ + 4), sr(SRD_WO, 4), sr(S_T + 3)), "TCH", dst=[TQ + 4], addr=[TQ + 4]))
    return ops


def w1_loads(g):
    def f(s):
        ops = []
        if s > 0:
            if ROT:
                ops.append(lambda: vop(g, "v_add_u32 %s, %s, %s" % (vr(VW), sr(S_WI + (s & 1)), vr(VW)), VW, [VW]))
                ops.append(lambda: vop(g, "v_and_b32 %s, 0x3fffff, %s" % (vr(VW), vr(VW)), VW, [VW]))
            else:
                ops.append(lambda: vop(g, "v_add_u32 %s, 0x40000, %s" % (vr(VW), vr(VW)), VW, [VW]))
        for e in range(8):
            d = raw(s, e)
            so = "0" if e == 0 else sr(SE + e)
            ops.append(lambda d=d, so=so, s=s: g.vload("buffer_load_dwordx4 %s, %s, %s, %s offen" % (vr(d, 4), vr(VW), sr(SRD_W, 4), so),
                                                       "W%d" % s, dst=rng(d, 4), addr=[VW]))
        return mark(ops)
    return f


def b1_reads(g):
    def f(s):
        ops = []
        sp = s >> 1
        a = XB + (s & 1) + 2 * (sp >> 2)
        for u in range(6):
            d = bf(s, u)
            ops.append(lambda d=d, a=a, off=((sp & 3) * 12 + 2 * u) * 1024, s=s:
                       g.dsread("ds_read_b128 %s, %s offset:%d" % (vr(d, 4), vr(a), off), "B%d" % s, dst=rng(d, 4), addr=[a]))
        return ops
    return f


def w2_loads(g):
    def f(s):
        ops = []
        if E("NOW2", 0) and s >= 5:
            return ops
        h, i = s >> 2, s & 3
        base = h * 131072 + i * 16384
        for e in range(8):
            if e % 4 == 0:
                ops.append(lambda e=e: g.s("s_mov_b32 %s, %d" % (sr(S_T + 2), base + (e >> 2) * 8192)))
            d = raw2(s, e)
            if E("X2T", 0):
                for hf in range(2):
                    ops.append(lambda d=d + 2 * hf, e=e, s=s, hf=hf: g.vload("buffer_load_dwordx2 %s, %s, %s, %s offen offset:%d" % (vr(d, 2), vr(VWO), sr(SRD_WO, 4), sr(S_T + 2), (e & 3) * 1024 + hf * 128),
                                                                         "W%d" % s, dst=rng(d, 2), addr=[VWO]))
                continue
            ops.append(lambda d=d, e=e, s=s: g.vload("buffer_load_dwordx4 %s, %s, %s, %s offen offset:%d" % (vr(d, 4), vr(VWO), sr(SRD_WO, 4), sr(S_T + 2), (e & 3) * 1024),
                                                     "W%d" % s, dst=rng(d, 4), addr=[VWO]))
        return mark(ops)
    return f


def b2_reads(g):
    def f(s):
        ops = []
        h, i = s >> 2, s & 3
        for u in range(6):
            d = bf(s, u)
            n = i * 6 + u
            a, off = (L16H, h * 16384 + n * 1024) if n < 16 else (L16, h * 8192 + (n - 16) * 1024)
            ops.append(lambda d=d, a=a, off=off, s=s:
                       g.dsread("ds_read_b128 %s, %s offset:%d" % (vr(d, 4), vr(a), off), "B%d" % s, dst=rng(d, 4), addr=[a]))
        return ops
    return f


def b2_read1(g, s, u, d, tag):
    h, i = s >> 2, s & 3
    n = i * 6 + u
    a, off = (L16H, h * 16384 + n * 1024) if n < 16 else (L16, h * 8192 + (n - 16) * 1024)
    return lambda: g.dsread("ds_read_b128 %s, %s offset:%d" % (vr(d, 4), vr(a), off), tag, dst=rng(d, 4), addr=[a])


def gemm2(g, w_loads, b_reads, tail, extra):
    pend = []

    def add(tag, ops):
        pend.extend((tag, o) for o in ops)

    def take(n):
        out = []
        while pend and n > 0:
            t, o = pend.pop(0)
            out.append(o)
            if getattr(o, "is_load", False):
                n -= 1
        return out

    def upto(tag):
        out = []
        while any(t == tag for t, _ in pend):
            out.append(pend.pop(0)[1])
        return out
    TS = {13: KF + 64, 14: SL2[11 % 5], 15: SL2[12 % 5]}
    bq = lambda n, k: BF + (((n * 3 + 6) % 12) + k) * 4
    for t in (2, 3, 4):
        add("W%d" % t, w_loads(t))
    g.wait_vm("W0")
    for op in perm_ops(g, raw2(0, 0), 0, WT):
        op()
    xq = []
    for s in range(13):
        xq += extra(s)
        if s == 12:
            xq += upto("W13") + [lambda: g.wait_vm("W13")]
            for j in range(8):
                xq += perm_ops(g, raw2(13, 0), j, TS[13] + j * 4)
        for j in range(8):
            idx = 8 * s + j
            fill = []
            if j == 7:
                if s < 12:
                    fill += upto("W%d" % (s + 1))
                    fill.append(lambda s=s: g.wait_vm("W%d" % (s + 1)))
                    fill += perm_ops(g, raw2(s + 1, 0), 0, WT + ((idx + 1) % 4) * 4)
                if s + 5 < 16:
                    add("W%d" % (s + 5), w_loads(s + 5))
            else:
                fill += perm_ops(g, raw2(s, 0), j + 1, WT + ((idx + 1) % 4) * 4)
            fill += take(R2[j])
            if 3 <= j <= 5:
                if s < 12:
                    fill += b_reads(s + 1)[(j - 3) * 2:(j - 3) * 2 + 2]
                else:
                    fill += [b2_read1(g, 13 + (j - 3), n, bq(n, j - 3), "C%d" % n) for n in range(2)]
            k = (len(xq) + 7 - j) // (8 - j)
            k = min(k, 8) if s < 12 else k
            fill += xq[:k]
            xq = xq[k:]
            if j == 0:
                g.wait_lg("B%d" % s)
                if STAMP == 3 and s > 0:
                    stamp(g)
            a = WT + (idx % 4) * 4
            main = [(lambda u=u: g.mfma(acc2(j, u), a, bf(s, u), None if s == 0 else acc2(j, u))) for u in range(6)]
            merge(main, fill)
    assert not xq
    carry = []
    for n in range(6):
        u = n
        g.wait_lg("C%d" % n)
        if STAMP == 3:
            stamp(g)
        main = [(lambda j=j, k=k: g.mfma(acc2(j, u), TS[13 + k] + j * 4, bq(n, k), acc2(j, u))) for k in range(3) for j in range(8)]
        brd = [b2_read1(g, 13 + k, n + 2, bq(n + 2, k), "C%d" % (n + 2)) for k in range(3)] if n + 2 < 6 else []
        if n == 0:
            for k in (1, 2):
                fill = upto("W%d" % (13 + k)) + [lambda k=k: g.wait_vm("W%d" % (13 + k))]
                for j in range(8):
                    fill += perm_ops(g, raw2(13 + k, 0), j, TS[13 + k] + j * 4)
                merge(main[(k - 1) * 8:k * 8 - 1], fill)
                main[k * 8 - 1]()
            merge(main[16:], brd)
        else:
            merge(main, brd + carry)
        carry = tail(n)
    assert not pend
    run(carry)


def gemm2u(g, w_loads, b_reads, tail, extra):
    pend = []

    def add(tag, ops):
        pend.extend((tag, o) for o in ops)

    def take(n):
        out = []
        while pend and n > 0:
            t, o = pend.pop(0)
            out.append(o)
            if getattr(o, "is_load", False):
                n -= 1
        return out

    def upto(tag):
        out = []
        while any(t == tag for t, _ in pend):
            out.append(pend.pop(0)[1])
        return out

    def conv(s, dst):
        ops = upto("W%d" % s) + [lambda: g.wait_vm("W%d" % s)]
        for j in range(8):
            ops += perm_ops(g, raw2(s, 0), j, dst + j * 4)
        return ops
    TS = {9: KF + 64, 10: 96, 11: KF + 64, 12: raw2(11, 0), 13: raw2(12, 0), 14: raw2(13, 0), 15: raw2(14, 0)}
    seq = [(u, k) for k in range(6) for u in range(2)] + [(u, k) for u in range(2, 6) for k in range(6)]
    bq = lambda i: BF + (i % 12) * 4
    brd = lambda i: [b2_read1(g, 10 + seq[i][1], seq[i][0], bq(i), "C%d" % i)] if i < len(seq) else []
    for t in (2, 3, 4):
        add("W%d" % t, w_loads(t))
    g.wait_vm("W0")
    for op in perm_ops(g, raw2(0, 0), 0, WT):
        op()
    xq = []
    for s in range(10):
        xq += extra(s)
        cv = conv(s + 1, TS[s + 1]) if s >= 8 else []
        ncv = (len(cv) + 3) // 4
        for j in range(8):
            idx = 8 * s + j
            fill = []
            if j == 7:
                if s < 8:
                    fill += upto("W%d" % (s + 1))
                    fill.append(lambda s=s: g.wait_vm("W%d" % (s + 1)))
                    fill += perm_ops(g, raw2(s + 1, 0), 0, WT + ((idx + 1) % 4) * 4)
                    add("W%d" % (s + 5), w_loads(s + 5))
                if s == 8:
                    add("W14", w_loads(14))
            elif s < 9:
                fill += perm_ops(g, raw2(s, 0), j + 1, WT + ((idx + 1) % 4) * 4)
            if j < 4:
                fill += cv[j * ncv:(j + 1) * ncv]
            if j == 4 and s >= 8:
                add("W%d" % (13 if s == 8 else 15), w_loads(13 if s == 8 else 15))
            fill += take(R2[j] if s < 8 else 2)
            if 3 <= j <= 5:
                if s < 9:
                    fill += b_reads(s + 1)[(j - 3) * 2:(j - 3) * 2 + 2]
                else:
                    fill += brd((j - 3) * 2) + brd((j - 3) * 2 + 1)
            k = (len(xq) + 7 - j) // (8 - j)
            k = min(k, 8) if s < 9 else k
            fill += xq[:k]
            xq = xq[k:]
            if j == 0:
                g.wait_lg("B%d" % s)
                if STAMP == 3 and s > 0:
                    stamp(g)
            a = WT + (idx % 4) * 4 if s < 9 else TS[9] + j * 4
            main = [(lambda u=u: g.mfma(acc2(j, u), a, bf(s, u), None if s == 0 else acc2(j, u))) for u in range(6)]
            merge(main, fill)
    assert not xq

    def block(i):
        u, k = seq[i]
        m = [(lambda j=j: g.mfma(acc2(j, u), TS[10 + k] + j * 4, bq(i), acc2(j, u))) for j in range(8)]
        f = m[0]
        m[0] = lambda: (g.wait_lg("C%d" % i), f(), run(brd(i + 6)))
        return m
    for k in range(6):
        if STAMP == 3:
            stamp(g)
        main = block(2 * k) + block(2 * k + 1)
        if k < 5:
            fill = take(8) + conv(11 + k, TS[11 + k])
            merge(main[:15], fill)
            main[15]()
        else:
            run(main[:8])
            merge(main[8:], tail(0)[:20])
    carry = TL0[20:] + tail(1)
    for n in range(2, 6):
        if STAMP == 3:
            stamp(g)
        main = []
        for k in range(6):
            main += block(12 + (n - 2) * 6 + k)
        fl = E("FL", 48) if n > 2 else 48
        merge(main[:fl], carry)
        run(main[fl:])
        carry = tail(n)
    assert not pend
    if ST2 == 1:
        HOOK["s1"]()
    run(carry)
    if ST2 == 2:
        HOOK["s1"]()


TL0 = []


def run(ops):
    for o in ops:
        o()


def prologue():
    g = Gen()
    g.s("s_cmp_ge_u32 s2, 256")
    g.s("s_cbranch_scc1 k_end")
    if STAMP:
        g.s("%s %s" % (os.environ.get("CLK", "s_memrealtime"), sr(S_ST, 2)))
    if E("CPF", 2):
        g.s("s_getpc_b64 %s" % sr(SRD_OUT, 2))
        g.label("pc_here")
        if E("CPF", 2) == 1:
            g.s("s_bfe_u32 %s, s2, 0x30003" % sr(S_T))
            g.s("s_lshl_b32 %s, %s, 15" % (sr(S_T), sr(S_T)))
        else:
            g.s("s_lshr_b32 %s, s2, 3" % sr(S_T))
            g.s("s_lshl_b32 %s, %s, 12" % (sr(S_T), sr(S_T)))
            g.valu("v_cmp_gt_u32 vcc, 32, v0", src=[0])
        g.s("s_and_b32 %s, %s, 0xffff" % (sr(SRD_OUT + 1), sr(SRD_OUT + 1)))
        g.s("s_mov_b32 %s, code_end-pc_here" % sr(SRD_OUT + 2))
        g.s("s_mov_b32 %s, 0x00020000" % sr(SRD_OUT + 3))
        vop(g, "v_lshlrev_b32 %s, 7, v0" % vr(TQ + 4), TQ + 4, [0])
        if E("CPF", 2) != 1:
            vop(g, "v_cndmask_b32 %s, -1, %s, vcc" % (vr(TQ + 4), vr(TQ + 4)), TQ + 4, [TQ + 4])
        g.vload("buffer_load_dword %s, %s, %s, %s offen" % (vr(TQ + 4), vr(TQ + 4), sr(SRD_OUT, 4), sr(S_T)), "CPF", dst=[TQ + 4], addr=[TQ + 4])
    g.s("s_bfe_u32 %s, s2, 0x10002" % sr(S_BLK))
    if E("BSW", 2) == 1:
        g.s("s_xor_b32 %s, %s, 1" % (sr(S_BLK), sr(S_BLK)))
    if E("BSW", 2) == 2:
        g.s("s_and_b32 %s, s2, 1" % sr(S_BLK))
    if E("BSW", 2) == 4:
        g.s("s_bfe_u32 %s, s2, 0x10003" % sr(S_BLK))
    if E("BSW", 2) == 3:
        g.s("s_bfe_u32 %s, s2, 0x10001" % sr(S_BLK))
    g.s("s_mul_i32 s16, %s, 40" % sr(S_BLK))
    g.s("s_add_u32 s18, s0, s16")
    g.s("s_addc_u32 s19, s1, 0")
    g.s("s_load_dwordx8 s[8:15], s[18:19], 0")
    g.s("s_load_dwordx2 s[16:17], s[18:19], 32")
    g.s("s_load_dwordx4 s[4:7], s[0:1], 80")
    g.s("s_load_dwordx2 s[18:19], s[0:1], 96")
    LN, Q, G, R8, C8, T1, T2 = 130, 131, 132, 133, 134, 135, 136
    vop(g, "v_lshrrev_b32 %s, 6, v0" % vr(T1), T1, [0])
    vop(g, "v_and_b32 %s, 63, v0" % vr(LN), LN, [0])
    g.valu("v_readfirstlane_b32 s3, %s" % vr(T1), src=[T1], readlane=True, sdst=[3])
    if E("BSW", 2) == 2:
        g.s("s_and_b32 %s, s2, 6" % sr(S_HG))
    elif E("BSW", 2) == 3:
        g.s("s_and_b32 %s, s2, 1" % sr(S_HG))
        g.s("s_lshl_b32 %s, %s, 1" % (sr(S_HG), sr(S_HG)))
        g.s("s_and_b32 %s, s2, 4" % sr(S_T))
        g.s("s_add_u32 %s, %s, %s" % (sr(S_HG), sr(S_HG), sr(S_T)))
    else:
        g.s("s_and_b32 %s, s2, 3" % sr(S_HG))
        g.s("s_lshl_b32 %s, %s, 1" % (sr(S_HG), sr(S_HG)))
    g.s("s_bfe_u32 %s, s2, 0x10003" % sr(S_T))
    g.s("s_add_u32 %s, %s, %s" % (sr(S_HG), sr(S_HG), sr(S_T)))
    if E("BSW", 2) == 4:
        g.s("s_and_b32 %s, s2, 7" % sr(S_HG))
    g.s("s_lshr_b32 %s, s2, 4" % sr(S_B))
    if MAP:
        g.s("s_bfe_u32 %s, s2, 0x30003" % sr(S_HG))
        g.s("s_and_b32 %s, s2, 3" % sr(S_B))
        g.s("s_lshl_b32 %s, %s, 2" % (sr(S_B), sr(S_B)))
        g.s("s_lshr_b32 %s, s2, 6" % sr(S_T))
        g.s("s_add_u32 %s, %s, %s" % (sr(S_B), sr(S_B), sr(S_T)))
    g.s("s_lshl_b32 %s, %s, 4" % (sr(S_GRP), sr(S_BLK)))
    g.s("s_add_u32 %s, %s, %s" % (sr(S_GRP), sr(S_GRP), sr(S_B)))
    vop(g, "v_and_b32 %s, 15, %s" % (vr(Q), vr(LN)), Q, [LN])
    vop(g, "v_lshrrev_b32 %s, 4, %s" % (vr(G), vr(LN)), G, [LN])
    vop(g, "v_lshrrev_b32 %s, 3, %s" % (vr(R8), vr(LN)), R8, [LN])
    vop(g, "v_and_b32 %s, 7, %s" % (vr(C8), vr(LN)), C8, [LN])
    vop(g, "v_lshlrev_b32 %s, 4, %s" % (vr(L16), vr(LN)), L16, [LN])
    vop(g, "v_add_u32 %s, %d, %s" % (vr(L16H), L_V, vr(L16)), L16H, [L16])
    for e in range(1, 8):
        g.s("s_mov_b32 %s, %d" % (sr(SE + e), e * 8192))
    g.s("s_mov_b32 %s, 0x05040100" % sr(S_PLO))
    g.s("s_mov_b32 %s, 0x07060302" % sr(S_PHI))
    g.s("s_mov_b32 %s, 0x3e0293ee" % sr(S_C))
    g.s("s_cmp_eq_u32 s3, 0")
    g.s("s_cselect_b32 %s, 1, 0" % sr(S_W0))
    g.s("s_mov_b32 %s, 0" % sr(S_W0 + 1))
    g.s("s_lshl_b32 %s, %s, 5" % (sr(S_T), sr(S_B)))
    g.s("s_lshl_b32 %s, %s, 2" % (sr(S_T + 1), sr(S_HG)))
    g.s("s_add_u32 %s, %s, %s" % (sr(S_T), sr(S_T), sr(S_T + 1)))
    g.s("s_add_u32 %s, %s, s3" % (sr(S_T), sr(S_T)))
    g.s("s_mul_i32 %s, %s, 24576" % (sr(S_BH), sr(S_T)))
    g.s("s_lshl_b32 %s, s3, 14" % sr(S_T))
    g.s("s_add_u32 %s, %s, %d" % (sr(S_VL), sr(S_T), L_V))

    vop(g, "v_lshrrev_b32 %s, 1, %s" % (vr(T1), vr(R8)), T1, [R8])
    vop(g, "v_xor_b32 %s, %s, %s" % (vr(T1), vr(T1), vr(C8)), T1, [T1, C8])
    g.s("s_mul_i32 %s, %s, 98304" % (sr(S_T + 2), sr(S_B)))
    for t in range(3):
        g.s("s_mul_i32 %s, s3, 3" % sr(S_T))
        g.s("s_add_u32 %s, %s, %d" % (sr(S_T), sr(S_T), t))
        g.s("s_lshl_b32 %s, %s, 10" % (sr(S_XM + t), sr(S_T)))
        g.s("s_lshl_b32 %s, %s, 13" % (sr(S_T + 1), sr(S_T)))
        g.s("s_add_u32 %s, %s, %s" % (sr(S_XS + t), sr(S_T + 1), sr(S_T + 2)))
        g.s("s_and_b32 %s, %s, 1" % (sr(S_T), sr(S_T)))
        g.s("s_lshl_b32 %s, %s, 2" % (sr(S_T), sr(S_T)))
        vop(g, "v_xor_b32 %s, %s, %s" % (vr(T2), sr(S_T), vr(T1)), T2, [T1])
        vop(g, "v_lshlrev_b32 %s, 4, %s" % (vr(T2), vr(T2)), T2, [T2])
        vop(g, "v_lshl_add_u32 %s, %s, 10, %s" % (vr(XA + t), vr(R8), vr(T2)), XA + t, [R8, T2])
    PI = 140
    PI = Q
    g.s("s_lshl_b32 %s, %s, 10" % (sr(S_T), sr(S_HG)))
    g.s("s_lshl_b32 %s, s3, 8" % sr(S_T + 1))
    g.s("s_add_u32 %s, %s, %s" % (sr(S_T), sr(S_T), sr(S_T + 1)))
    vop(g, "v_lshlrev_b32 %s, 4, %s" % (vr(T1), vr(PI)), T1, [PI])
    vop(g, "v_lshl_add_u32 %s, %s, 16, %s" % (vr(T2), vr(G), vr(T1)), T2, [G, T1])
    if ROT:
        if ROT == 1:
            g.s("s_mov_b32 %s, %s" % (sr(S_XR + 2), sr(S_B)))
        else:
            g.s("s_and_b32 %s, s2, 8" % sr(S_XR + 2))
            if E("RB", 3) != 3:
                g.s("s_bfe_u32 %s, s2, 0x%x" % (sr(S_XR + 2), 0x10000 + E("RB", 3)))
                g.s("s_lshl_b32 %s, %s, 3" % (sr(S_XR + 2), sr(S_XR + 2)))
        g.s("s_lshl_b32 %s, %s, 18" % (sr(S_WI), sr(S_XR + 2)))
        g.s("s_add_u32 %s, %s, %s" % (sr(S_T), sr(S_T), sr(S_WI)))
        g.s("s_and_b32 %s, %s, 14" % (sr(S_XR), sr(S_XR + 2)))
        g.s("s_lshl_b32 %s, %s, 6" % (sr(S_XR), sr(S_XR)))
        g.s("s_and_b32 %s, %s, 1" % (sr(S_XR + 1), sr(S_XR + 2)))
        g.s("s_lshl_b32 %s, %s, 6" % (sr(S_XR + 1), sr(S_XR + 1)))
        g.s("s_cmp_eq_u32 %s, 0" % sr(S_XR + 1))
        g.s("s_cselect_b32 %s, 0x40000, 0xc0000" % sr(S_WI) if False else "s_mov_b32 %s, 0xc0000" % sr(S_WI))
        g.s("s_cmov_b32 %s, 0x40000" % sr(S_WI))
        g.s("s_mov_b32 %s, 0xfffc0000" % sr(S_WI + 1))
        g.s("s_cmov_b32 %s, 0x40000" % sr(S_WI + 1))
    vop(g, "v_add_u32 %s, %s, %s" % (vr(VW), sr(S_T), vr(T2)), VW, [T2])
    g.s("s_lshl_b32 %s, %s, 19" % (sr(S_T), sr(S_HG)))
    g.s("s_add_u32 %s, %s, %s" % (sr(S_T), sr(S_T), sr(S_T + 1)))
    vop(g, "v_and_b32 %s, 1, %s" % (vr(T2), vr(G)), T2, [G])
    vop(g, "v_lshl_add_u32 %s, %s, 12, %s" % (vr(T1), vr(T2), vr(T1)), T1, [T2, T1])
    vop(g, "v_lshrrev_b32 %s, 1, %s" % (vr(T2), vr(G)), T2, [G])
    vop(g, "v_lshl_add_u32 %s, %s, 16, %s" % (vr(T2), vr(T2), vr(T1)), T2, [T2, T1])
    vop(g, "v_add_u32 %s, %s, %s" % (vr(VWO), sr(S_T), vr(T2)), VWO, [T2])
    vop(g, "v_xor_b32 %s, %s, %s" % (vr(T1), vr(Q), vr(G)), T1, [Q, G])
    vop(g, "v_lshlrev_b32 %s, 4, %s" % (vr(T1), vr(T1)), T1, [T1])
    vop(g, "v_lshl_add_u32 %s, %s, 8, %s" % (vr(VKD), vr(G), vr(T1)), VKD, [G, T1])
    vop(g, "v_lshlrev_b32 %s, 2, %s" % (vr(T1), vr(G)), T1, [G])
    vop(g, "v_xor_b32 %s, %s, %s" % (vr(T1), vr(T1), vr(Q)), T1, [T1, Q])
    vop(g, "v_lshlrev_b32 %s, 4, %s" % (vr(T1), vr(T1)), T1, [T1])
    vop(g, "v_lshl_add_u32 %s, %s, 8, %s" % (vr(VKR), vr(Q), vr(T1)), VKR, [Q, T1])
    vop(g, "v_add_u32 %s, %s, %s" % (vr(VKR), sr(S_VL), vr(VKR)), VKR, [VKR])
    for m in range(1, 4):
        vop(g, "v_xor_b32 %s, %d, %s" % (vr(VKD + m), m * 64, vr(VKD)), VKD + m, [VKD])
        vop(g, "v_xor_b32 %s, %d, %s" % (vr(VKR + m), m * 16, vr(VKR)), VKR + m, [VKR])
    vop(g, "v_mov_b32 %s, %s" % (vr(VV), vr(VKD)), VV, [VKD])
    vop(g, "v_mov_b32 %s, %s" % (vr(VK), vr(VKD + 1)), VK, [VKD + 1])
    vop(g, "v_lshrrev_b32 %s, 1, %s" % (vr(T1), vr(Q)), T1, [Q])
    vop(g, "v_xor_b32 %s, %s, %s" % (vr(T1), vr(T1), vr(G)), T1, [T1, G])
    vop(g, "v_lshlrev_b32 %s, 7, %s" % (vr(T2), vr(Q)), T2, [Q])
    vop(g, "v_lshl_add_u32 %s, %s, 4, %s" % (vr(XB), vr(T1), vr(T2)), XB, [T1, T2])
    if ROT:
        vop(g, "v_xor_b32 %s, %s, %s" % (vr(XB), sr(S_XR + 1), vr(XB)), XB, [XB])
    vop(g, "v_xor_b32 %s, 64, %s" % (vr(XB + 1), vr(XB)), XB + 1, [XB])
    vop(g, "v_add_u32 %s, 0xc000, %s" % (vr(XB + 2), vr(XB)), XB + 2, [XB])
    vop(g, "v_add_u32 %s, 0xc000, %s" % (vr(XB + 3), vr(XB + 1)), XB + 3, [XB + 1])
    vop(g, "v_add_u32 %s, %s, %s" % (vr(VOW), sr(S_VL), vr(L16)), VOW, [L16])
    if MAP:
        g.s("s_and_b32 %s, %s, 3" % (sr(S_T), sr(S_B)))
        g.s("s_lshl_b32 %s, %s, 2" % (sr(S_T), sr(S_T)))
    else:
        g.s("s_lshl_b32 %s, %s, 2" % (sr(S_T), sr(S_B)))
    g.s("s_add_u32 %s, %s, s3" % (sr(S_T), sr(S_T)))
    g.s("s_lshl_b32 %s, %s, 16" % (sr(S_T), sr(S_T)))
    g.s("s_lshl_b32 %s, %s, 10" % (sr(S_T + 1), sr(S_HG)))
    g.s("s_add_u32 %s, %s, %s" % (sr(S_T), sr(S_T), sr(S_T + 1)))
    vop(g, "v_lshlrev_b32 %s, 7, %s" % (vr(T1), vr(C8)), T1, [C8])
    vop(g, "v_lshl_add_u32 %s, %s, 13, %s" % (vr(T1), vr(R8), vr(T1)), T1, [R8, T1])
    vop(g, "v_add_u32 %s, %s, %s" % (vr(WTA), sr(S_T), vr(T1)), WTA, [T1])
    g.waitcnt(lg=0)
    make_srd(g, SRD_X, 8, 1572864)
    make_srd(g, SRD_K, 10, 12582912)
    make_srd(g, SRD_V, 12, 12582912)
    make_srd(g, SRD_W, 14, 4194304)
    make_srd(g, SRD_WO, 16, 4194304)
    make_srd(g, SRD_OUT, 4, 16 * 96 * 1024 * 2)
    make_srd(g, SRD_DBG, 6, 256)
    make_srd(g, SRD_WS, 18, WS_BYTES)
    g.s("s_lshl_b32 %s, s3, 13" % sr(S_K2))
    g.s("s_sub_u32 %s, %s, %s" % (sr(S_KD), sr(S_VL), sr(S_K2)))
    g.s("s_lshl_b32 %s, %s, 1" % (sr(S_T), sr(S_B)))
    g.s("s_lshr_b32 %s, s3, 1" % sr(S_T + 1))
    g.s("s_add_u32 %s, %s, %s" % (sr(S_T), sr(S_T), sr(S_T + 1)))
    g.s("s_lshl_b32 %s, %s, 13" % (sr(S_T), sr(S_T)))
    g.s("s_lshl_b32 %s, %s, 10" % (sr(S_T + 1), sr(S_HG)))
    g.s("s_add_u32 %s, %s, %s" % (sr(S_T), sr(S_T), sr(S_T + 1)))
    g.s("s_and_b32 %s, s3, 1" % sr(S_T + 1))
    g.s("s_lshl_b32 %s, %s, 9" % (sr(S_T + 1), sr(S_T + 1)))
    g.s("s_add_u32 %s, %s, %s" % (sr(S_T), sr(S_T), sr(S_T + 1)))
    g.s("s_add_u32 %s, s14, %s" % (sr(S_TB), sr(S_T)))
    g.s("s_addc_u32 %s, s15, 0" % sr(S_TB + 1))
    stamp(g, have=True)
    return g


def tok_ops(g, tok):
    ops = []
    if tok[0] == 'x':
        sp = int(tok[1:])
        for t in range(3):
            if ROT:
                ops.append(lambda t=t: g.s("s_add_u32 %s, %s, %d" % (sr(S_T), sr(S_XR), sp * 128)))
                ops.append(lambda t=t: g.s("s_and_b32 %s, %s, 0x3ff" % (sr(S_T), sr(S_T))))
                ops.append(lambda t=t: g.s("s_add_u32 %s, %s, %s" % (sr(S_T), sr(S_T), sr(S_XS + t))))
            else:
                ops.append(lambda t=t: g.s("s_add_u32 %s, %s, %d" % (sr(S_T), sr(S_XS + t), sp * 128)))
            ops.append(lambda t=t: g.s("s_add_u32 m0, %s, %d" % (sr(S_XM + t), sp * 12288), m0=True))
            ops.append(lambda t=t: g.vload("buffer_load_dwordx4 %s, %s, %s offen lds" % (vr(XA + t), sr(SRD_X, 4), sr(S_T)), "X%d" % sp, addr=[XA + t], lds=True))
    elif tok[0] == 'w':
        ops += w1_loads(g)(int(tok[1:]))
    elif tok == 't':
        ops.append(lambda: g.vload("buffer_load_dword %s, %s, %s, 0 offen" % (vr(TQ + 3), vr(WTA), sr(SRD_W, 4)), "TCH", dst=[TQ + 3], addr=[WTA]))
        for k in range(3 if MAP else 0):
            ops.append(lambda: vop(g, "v_add_u32 %s, 0x100000, %s" % (vr(WTA), vr(WTA)), WTA, [WTA]))
            ops.append(lambda: g.vload("buffer_load_dword %s, %s, %s, 0 offen" % (vr(TQ + 3), vr(WTA), sr(SRD_W, 4)), "TCH", dst=[TQ + 3], addr=[WTA]))
    elif tok[0] == 's':
        st = int(tok[1:])
        ops.append(lambda: g.s("s_mov_b32 %s, %d" % (sr(S_T + 2), st * 262144)))
        for l in range(8 if SM2 else 4):
            def sm(l=l):
                g.s("s_load_dword %s, %s, %s offset:%d" % (sr(S_JUNK), sr(S_TB, 2), sr(S_T + 2), l * (64 if SM2 else 128)))
                g.lgq.append("SM")
            ops.append(sm)
    elif tok == 'T':
        ops += wo_touch(g)
    elif tok == 'Y':
        for srd, so in ((SRD_WS, S_XS + 1), (SRD_WS, S_PB), (SRD_WS, S_PB + 1), (SRD_WS, S_XS + 2), (SRD_OUT, S_OB)):
            ops.append(lambda srd=srd, so=so: g.vload("buffer_load_dword %s, off, %s, %s" % (vr(VW), sr(srd, 4), sr(so)), "TCH", dst=[VW]))
    elif tok[0] == 'Z':
        t = int(tok[1])
        if t == 0:
            for k in range(4):
                ops.append(lambda k=k: vop(g, "v_mov_b32 %s, -1" % vr(ZQ + k), ZQ + k))
        for h in range(2):
            for i in range(4):
                ops.append(lambda h=h, i=i: g.s("s_add_u32 %s, %s, %d" % (sr(S_T + 6), sr(S_PB + h), (i * 3 + t) * 1024)))
                o = lambda: g.vstore("buffer_store_dwordx4 %s, %s, %s, %s offen sc1" % (vr(ZQ, 4), vr(L16), sr(SRD_WS, 4), sr(S_T + 6)),
                                     "POI", data=rng(ZQ, 4), addr=[L16])
                o.is_load = True
                ops.append(o)
    elif tok[0] == 'K':
        ops += k_dma(g, int(tok[1]), int(tok[3]))
    elif tok[0] == 'R':
        ops += k_read(g, int(tok[1]), int(tok[3]))
    elif tok[0] == 'V' and len(tok) == 4:
        assert VL[int(tok[1])] == int(tok[3])
        ops += v_dma(g, int(tok[1]), int(tok[3]))
    elif tok[0] == 'V':
        vl = v_loads(g, int(tok[1]))
        ops += vl if len(tok) == 2 else vl[:5] if tok[2] == 'a' else vl[5:]
    else:
        raise ValueError(tok)
    return mark(ops)


def part1(g, cl):
    for tok in cl["P"]:
        run(tok_ops(g, tok))
    g.wait_vm(["X%d" % k for k in range(XBAR[0] + 1)])
    g.barrier()
    stamp(g)
    run(b1_reads(g)(0))

    def tail(u):
        return q_conv(g, u) if u < 2 else []
    assert max(XBAR) >= 6
    pend, rest = gemm1(g, cl, b1_reads(g), tail)
    run(pend)
    stamp(g)
    g.s("s_lshl_b32 %s, s3, 13" % sr(S_T))
    vop(g, "v_add_u32 %s, %s, %s" % (vr(VOW2), sr(S_T), vr(L16)), VOW2, [L16])
    run(rest)
    stamp(g)
    g.nop(8)


S_FS, S_OB = 69, 93


def job_setup(g, A):
    A(lambda: g.s("s_lshl_b32 %s, %s, 2" % (sr(S_T), sr(S_GRP))))
    A(lambda: g.s("s_lshr_b32 %s, %s, 1" % (sr(S_T + 1), sr(S_RO))))
    A(lambda: g.s("s_add_u32 %s, %s, %s" % (sr(S_T + 1), sr(S_T + 1), sr(S_T))))
    A(lambda: g.s("s_lshl_b32 %s, %s, 7" % (sr(S_T + 1), sr(S_T + 1))))
    A(lambda: g.s("s_add_u32 %s, %s, %d" % (sr(S_XS + 1), sr(S_T + 1), FLG)))
    A(lambda: g.s("s_lshl_b32 %s, %s, 3" % (sr(S_T), sr(S_GRP))))
    A(lambda: g.s("s_add_u32 %s, %s, %s" % (sr(S_T), sr(S_T), sr(S_RO))))
    A(lambda: g.s("s_mul_i32 %s, %s, 96" % (sr(S_T), sr(S_T))))
    A(lambda: g.s("s_mul_i32 %s, %s, 3" % (sr(S_T + 1), sr(S_RR))))
    A(lambda: g.s("s_add_u32 %s, %s, %s" % (sr(S_T), sr(S_T), sr(S_T + 1))))
    A(lambda: g.s("s_lshl_b32 %s, %s, 10" % (sr(S_XS + 2), sr(S_T))))
    A(lambda: g.s("s_mul_i32 %s, %s, %d" % (sr(S_OB), sr(S_B), 96 * 2048)))
    A(lambda: g.s("s_lshl_b32 %s, %s, 10" % (sr(S_T), sr(S_BLK))))
    A(lambda: g.s("s_add_u32 %s, %s, %s" % (sr(S_OB), sr(S_OB), sr(S_T))))
    A(lambda: g.s("s_lshr_b32 %s, %s, 1" % (sr(S_T), sr(S_RO))))
    A(lambda: g.s("s_lshl_b32 %s, %s, 8" % (sr(S_T), sr(S_T))))
    A(lambda: g.s("s_add_u32 %s, %s, %s" % (sr(S_OB), sr(S_OB), sr(S_T))))
    if OC == 3:
        A(lambda: g.s("s_and_b32 %s, %s, 1" % (sr(S_T), sr(S_RR))))
        A(lambda: g.s("s_lshl_b32 %s, %s, 14" % (sr(S_T), sr(S_T))))
        A(lambda: g.s("s_add_u32 %s, %s, %s" % (sr(S_OB), sr(S_OB), sr(S_T))))
        A(lambda: g.s("s_and_b32 %s, %s, 2" % (sr(S_T), sr(S_RR))))
        A(lambda: g.s("s_lshl_b32 %s, %s, 6" % (sr(S_T), sr(S_T))))
    else:
        A(lambda: g.s("s_lshl_b32 %s, %s, %d" % (sr(S_T), sr(S_RR), 6 if OC else 4)))
    A(lambda: g.s("s_add_u32 %s, %s, %s" % (sr(S_OB), sr(S_OB), sr(S_T))))
    A(lambda: g.s("s_and_b32 %s, %s, 1" % (sr(S_T), sr(S_RO))))
    A(lambda: g.s("s_lshl_b32 %s, %s, 15" % (sr(S_T), sr(S_T))))
    A(lambda: g.s("s_add_u32 %s, %s, %s" % (sr(S_OB), sr(S_OB), sr(S_T))))


def part2(g):
    g.s("s_memrealtime %s" % sr(S_T + 4, 2))
    NV = 238
    g.s("s_lshl_b32 %s, %s, 2" % (sr(S_T + 3), sr(S_GRP)))
    lq = list(g.lgq)
    g.waitcnt(lg=0)
    g.lgq = []
    g.s("s_or_b32 %s, %s, 1" % (sr(S_NONCE), sr(S_T + 4)))
    vop(g, "v_mov_b32 %s, %s" % (vr(NV), sr(S_NONCE)), NV)
    vop(g, "v_mov_b32 %s, 0" % vr(NV + 1), NV + 1)
    g.s("s_mov_b64 exec, %s" % sr(S_W0, 2))
    g.vload("buffer_atomic_cmpswap %s, off, %s, %s sc0 sc1" % (vr(NV, 2), sr(SRD_DBG, 4), sr(S_T + 3)), "NONCE", dst=[NV], addr=[NV, NV + 1])
    g.s("s_mov_b64 exec, -1")
    g.s("s_lshl_b32 %s, %s, 3" % (sr(S_PB), sr(S_GRP)))
    g.s("s_lshl_b32 %s, s3, 1" % sr(S_PB + 1))
    g.s("s_add_u32 %s, %s, %s" % (sr(S_PB), sr(S_PB), sr(S_PB + 1)))
    g.s("s_lshl_b32 %s, %s, 3" % (sr(S_PB), sr(S_PB)))
    g.s("s_add_u32 %s, %s, %s" % (sr(S_PB), sr(S_PB), sr(S_HG)))
    g.s("s_mul_i32 %s, %s, 12288" % (sr(S_PB), sr(S_PB)))
    g.s("s_add_u32 %s, %s, %d" % (sr(S_PB + 1), sr(S_PB), 8 * 12288))
    g.s("s_lshl_b32 %s, %s, 2" % (sr(S_XS), sr(S_GRP)))
    g.s("s_add_u32 %s, %s, s3" % (sr(S_XS), sr(S_XS)))
    g.s("s_lshl_b32 %s, %s, 7" % (sr(S_XS), sr(S_XS)))
    g.s("s_add_u32 %s, %s, %d" % (sr(S_XS), sr(S_XS), FLG))
    g.s("s_lshl_b32 %s, %s, 3" % (sr(S_FS), sr(S_HG)))
    g.s("s_add_u32 %s, %s, %s" % (sr(S_FS), sr(S_FS), sr(S_XS)))
    g.s("s_mov_b32 %s, %s" % (sr(S_RO), sr(S_HG)))
    g.s("s_mov_b32 %s, s3" % sr(S_RR))
    job_setup(g, lambda o: o())
    for k in range(4):
        vop(g, "v_mov_b32 %s, 0x3f803f80" % vr(ONES + k), ONES + k)

    def vt(pp, j):
        return KF + (pp * 8 + j) * 4
    VA = 0

    def tr_addr():
        ops = []
        V = lambda text, d, src=(): ops.append(lambda: vop(g, text, d, src))
        a, b = VA + 8, VA + 9
        V("v_lshrrev_b32 %s, 6, %s" % (vr(a), vr(L16)), a, [L16])
        V("v_and_b32 %s, 7, %s" % (vr(b), vr(a)), b, [a])
        V("v_lshlrev_b32 %s, 4, %s" % (vr(b), vr(b)), b, [b])
        V("v_lshl_add_u32 %s, %s, 8, %s" % (vr(VA), vr(a), vr(b)), VA, [a, b])
        V("v_and_b32 %s, 32, %s" % (vr(a), vr(L16)), a, [L16])
        V("v_lshl_add_u32 %s, %s, 2, %s" % (vr(VA), vr(a), vr(VA)), VA, [a, VA])
        V("v_and_b32 %s, 16, %s" % (vr(a), vr(L16)), a, [L16])
        V("v_lshrrev_b32 %s, 1, %s" % (vr(a), vr(a)), a, [a])
        V("v_add_u32 %s, %s, %s" % (vr(VA), vr(a), vr(VA)), VA, [a, VA])
        V("v_add_u32 %s, %s, %s" % (vr(VA + 8), sr(S_K2), vr(VA)), VA + 8, [VA])
        V("v_add_u32 %s, %s, %s" % (vr(VA), sr(S_VL), vr(VA)), VA, [VA])
        for j in range(1, 8):
            V("v_xor_b32 %s, %d, %s" % (vr(VA + j), j * 16, vr(VA)), VA + j, [VA])
            V("v_xor_b32 %s, %d, %s" % (vr(VA + 8 + j), j * 16, vr(VA + 8)), VA + 8 + j, [VA + 8])
        return ops

    def tr_reads(pp, js):
        ops = []
        for j in js:
            for h in range(2):
                d = vt(pp, j) + 2 * h
                a, off = (VA + j, VL[pp] * 8192 + h * 4096) if VL[pp] < 2 else (VA + 8 + j, L_V2 + h * 4096)
                ops.append(lambda d=d, a=a, off=off: g.dsread("ds_read_b64_tr_b16 %s, %s offset:%d" % (vr(d, 2), vr(a), off), "V%d" % pp, dst=rng(d, 2), addr=[a]))
        return ops
    OAC = [16 + 0, 96, 64, 96, 64, 96]

    def oacc(u, j):
        return OAC[u] + j * 4

    def pv_main(u, pmajor=False):
        ix = [(pp, j) for pp in range(3) for j in range(8)] if pmajor else [(pp, j) for j in range(8) for pp in range(3)]
        return [(lambda pp=pp, j=j: g.mfma(oacc(u, j), vt(pp, j), pfrag(u, pp), None if pp == 0 else oacc(u, j))) for pp, j in ix]

    def o_conv(u):
        ops = []
        r = TQ + 2
        ops.append(lambda: g.valu("v_accvgpr_read_b32 %s, %s" % (vr(r), vr(psum(u))), dst=[r], src=[psum(u)]))
        ops.append(lambda: g.valu("v_rcp_f32 %s, %s" % (vr(r), vr(r)), dst=[r], src=[r], trans=True))
        for i in range(4):
            d = PT_O + (i % 2) * 4
            for k in range(8):
                a = oacc(u, 2 * i) + k
                ops.append(lambda a=a: g.valu("v_mul_f32 %s, %s, %s" % (vr(a), vr(a), vr(r)), dst=[a], src=[a, r]))
            for m in range(4):
                a = oacc(u, 2 * i) + 2 * m
                ops.append(lambda d=d + m, a=a: g.valu("v_cvt_pk_bf16_f32 %s, %s, %s" % (vr(d), vr(a), vr(a + 1)), dst=[d], src=[a, a + 1]))
            n = i * 6 + u
            a, off = (VOW, n * 1024) if n < 16 else (VOW2, (n - 16) * 1024)
            ops.append(lambda d=d, a=a, off=off: g.dswrite("ds_write_b128 %s, %s offset:%d" % (vr(a), vr(d, 4), off), "OW", data=rng(d, 4), addr=[a]))
            if E("EXP3", 0):
                fl = ["", "", " sc1", " nt", " sc0"][E("EXP3", 0)]
                ops.append(lambda n=n: g.s("s_add_u32 %s, s7, %d" % (sr(S_T + 6), n * 1024)))
                ops.append(lambda d=d, fl=fl: g.vstore("buffer_store_dwordx4 %s, %s, %s, %s offen%s" % (vr(d, 4), vr(L16), sr(SRD_WS, 4), sr(S_T + 6), fl), "OS", data=rng(d, 4), addr=[L16]))
        return ops
    if E("EXP3", 0):
        g.s("s_lshl_b32 s7, s2, 2")
        g.s("s_add_u32 s7, s7, s3")
        g.s("s_mul_i32 s7, s7, 24576")
        g.s("s_add_u32 s7, s7, %d" % (32 * 1024 * 1024))
    PT_O = 228
    wl2 = w2_loads(g)

    def spread(fill, pre):
        if not pre:
            return fill
        k = max(1, len(fill) // len(pre))
        nf = []
        for i, f in enumerate(fill):
            if i % k == 0 and pre:
                nf.append(pre.pop(0))
            nf.append(f)
        return nf + pre
    for u in range(6):
        main = [(lambda kt=kt, i=i, u=u: g.mfma(sacc(u, kt), KF + (kt * 4 + i) * 4, QF + (u % 2) * 16 + i * 4, None if i == 0 else sacc(u, kt)))
                for kt in range(6) for i in range(4)]
        fill = []
        if u >= 1:
            fill += softmax_ops(g, u - 1)
        if 2 <= u + 1 <= 5:
            fill += q_conv(g, u + 1)
        if u == 4:
            fill += tr_addr()
        pre = []
        for tok in POST.get(u, []):
            pre += tok_ops(g, tok)
        fill = spread(fill, pre)
        if STAMP == 4 and u > 0:
            stamp(g)
        if u < 5:
            merge(main, fill)
        else:
            n3 = (len(fill) + 2) // 3
            merge(main[:8], fill[:n3])
            if STAMP == 4:
                stamp(g)
            g.wait_vm(["VD"])
            if STAMP == 4:
                stamp(g)
            merge(main[8:16], spread(fill[n3:2 * n3], tr_reads(0, range(8))))
            merge(main[16:], spread(fill[2 * n3:], tr_reads(1, range(8))))
    stamp(g)
    sm5 = softmax_ops(g, 5)
    pv0 = pv_main(0, True)
    n3 = (len(sm5) + 2) // 3
    run(tr_reads(2, range(4)))
    g.wait_lg("V0")
    merge(pv0[:8], spread(sm5[:n3], tr_reads(2, range(4, 8))))
    g.wait_lg("V1")
    merge(pv0[8:16], sm5[n3:2 * n3])
    g.wait_lg("V2")
    merge(pv0[16:], sm5[2 * n3:])
    stamp(g)
    vop(g, "v_mov_b32 %s, %d" % (vr(TQ + 1), L_MISC), TQ + 1)
    for u in range(1, 6):
        fill = o_conv(u - 1)
        if u == 2:
            fill = spread(fill, wl2(0))
        if u == 3:
            fill = spread(fill, wl2(1))
        merge(pv_main(u), fill)
        if STAMP == 4:
            stamp(g)
    g.wait_vm("NONCE")
    g.valu("v_readfirstlane_b32 %s, %s" % (sr(S_T), vr(NV)), src=[NV], readlane=True, sdst=[S_T])
    g.s("s_cmp_eq_u32 %s, 0" % sr(S_T))
    g.s("s_cselect_b32 %s, %s, %s" % (sr(S_T), sr(S_NONCE), sr(S_T)))
    vop(g, "v_mov_b32 %s, %s" % (vr(TQ), sr(S_T)), TQ)
    g.s("s_mov_b64 exec, %s" % sr(S_W0, 2))
    g.dswrite("ds_write_b32 %s, %s offset:4" % (vr(TQ + 1), vr(TQ)), "OW", data=[TQ], addr=[TQ + 1])
    if SELF:
        g.dswrite("ds_write_b32 %s, %s offset:8" % (vr(TQ + 1), vr(NV + 1)), "OW", data=[NV + 1], addr=[TQ + 1])
    g.s("s_mov_b64 exec, -1")
    run(o_conv(5))
    g.waitcnt(lg=0)
    g.lgq = []
    stamp(g)
    g.barrier()
    stamp(g)
    g.dsread("ds_read_b32 %s, %s offset:4" % (vr(NV), vr(TQ + 1)), "NN", dst=[NV], addr=[TQ + 1])
    run(b2_reads(g)(0))
    g.wait_lg("NN")
    g.valu("v_readfirstlane_b32 %s, %s" % (sr(S_NONCE), vr(NV)), src=[NV], readlane=True, sdst=[S_NONCE])
    cnt = [0]
    AC, VO, VF, F0, PL, PP = 224, 230, 231, 232, 234, 242
    S_CL = S_TYPE

    def tail(n, lds=False):
        u = n
        ops = []
        for i in range(4):
            d = (raw2(15, 0) if UM == 6 and not lds else 96) + (cnt[0] % 8) * 4
            cnt[0] += 1
            for m in range(4):
                a, b = acc2(2 * m, u) + i, acc2(2 * m + 1, u) + i
                t0, t1 = TQ + (m % 2) * 2, TQ + (m % 2) * 2 + 1
                ops.append(lambda t=t0, s=a: g.valu("v_accvgpr_read_b32 %s, %s" % (vr(t), vr(s)), dst=[t], src=[s]))
                ops.append(lambda t=t1, s=b: g.valu("v_accvgpr_read_b32 %s, %s" % (vr(t), vr(s)), dst=[t], src=[s]))
                ops.append(lambda d=d + m, a=t0, b=t1: g.valu("v_cvt_pk_bf16_f32 %s, %s, %s" % (vr(d), vr(a), vr(b)), dst=[d], src=[a, b]))
                if not E("NOFAST", 1):
                    ops.append(lambda d=d + m: g.valu("v_min_u32 %s, -2, %s" % (vr(d), vr(d)), dst=[d], src=[d]))
            p = i * 3 + (n >> 1)
            po = p * 1024
            va = L16
            if OC:
                po = (n >> 1) * 1024 + i * (128 if OC == 3 else 256)
                va = VST
            if (EXP or E("EXP2", 0)) and i >= 2:
                continue
            if not lds:
                ops.append(lambda po=po: g.s("s_add_u32 %s, %s, %d" % (sr(S_T + 6), sr(S_PB + (n & 1)), po)))
            def pst(d=d, po=po, va=va):
                if lds:
                    g.dswrite("ds_write_b128 %s, %s offset:%d" % (vr(va), vr(d, 4), L_SELF + po), "SW", data=rng(d, 4), addr=[va])
                    return
                srd = (SRD_X, SRD_K)[n & 1] if SELF else SRD_WS
                g.vstore("buffer_store_dwordx4 %s, %s, %s, %s offen%s" % (vr(d, 4), vr(va), sr(srd, 4), sr(S_T + 6), DF), "PS%d" % (n >> 1), data=rng(d, 4), addr=[va])
            ops.append(pst)
        if n == 0:
            TL0[:] = ops
        return ops

    def flag_store(soff, tag):
        g.s("s_mov_b64 exec, 1")
        g.vstore("buffer_store_dwordx2 %s, off, %s, %s sc1" % (vr(F0, 2), sr(SRD_WS, 4), sr(soff)), tag, data=[F0, F0 + 1])
        g.s("s_mov_b64 exec, -1")

    G0, FO = 244, 246
    LR = VLD if OC == 2 else L16

    def stage1():
        g.wait_vm("PS1")
        g.s("s_mov_b64 exec, 1")
        g.vstore("buffer_store_dwordx2 %s, off, %s, %s sc1" % (vr(G0, 2), sr(SRD_WS, 4), sr(S_FS)), "FS", data=[G0, G0 + 1])
        if EP:
            g.s("s_mov_b64 exec, 0xffff")
            g.vload("buffer_load_dwordx2 %s, %s, %s, %s offen sc1" % (vr(PL, 2), vr(VF), sr(SRD_WS, 4), sr(S_XS + 1)), "P0", dst=[PL, PL + 1], addr=[VF])
        g.s("s_mov_b64 exec, -1")
    HOOK["s1"] = stage1

    def setup_ops():
        ops = []
        A = ops.append
        A(lambda: g.s("s_xor_b32 %s, %s, 0x%x" % (sr(S_T), sr(S_NONCE), FC)))
        A(lambda: vop(g, "v_mov_b32 %s, %s" % (vr(F0), sr(S_NONCE)), F0))
        A(lambda: vop(g, "v_mov_b32 %s, %s" % (vr(F0 + 1), sr(S_T)), F0 + 1))
        if ST2:
            A(lambda: vop(g, "v_mov_b32 %s, %s" % (vr(G0), sr(S_NONCE)), G0))
            A(lambda: vop(g, "v_xor_b32 %s, 1, %s" % (vr(G0 + 1), vr(F0 + 1)), G0 + 1, [F0 + 1]))
            A(lambda: vop(g, "v_or_b32 %s, 1, %s" % (vr(FO), vr(F0 + 1)), FO, [F0 + 1]))
        LN, Q, G_, X1, X2, X3 = 112, 113, 114, 115, 116, 117
        V = lambda text, d, src=(): A(lambda: vop(g, text, d, src))
        V("v_lshrrev_b32 %s, 4, %s" % (vr(LN), vr(L16)), LN, [L16])
        V("v_and_b32 %s, 15, %s" % (vr(Q), vr(LN)), Q, [LN])
        V("v_lshrrev_b32 %s, 4, %s" % (vr(G_), vr(LN)), G_, [LN])
        V("v_lshrrev_b32 %s, 2, %s" % (vr(X1), vr(Q)), X1, [Q])
        V("v_and_b32 %s, 1, %s" % (vr(X2), vr(Q)), X2, [Q])
        V("v_lshlrev_b32 %s, 4, %s" % (vr(X2), vr(X2)), X2, [X2])
        V("v_mov_b32 %s, 0x3f80" % vr(X3), X3)
        V("v_lshlrev_b32 %s, %s, %s" % (vr(X3), vr(X2), vr(X3)), X3, [X2, X3])
        A(lambda: g.valu("v_cmp_eq_u32 vcc, %s, %s" % (vr(X1), vr(G_)), src=[X1, G_]))
        A(lambda: g.nop(2))
        V("v_cndmask_b32 %s, 0, %s, vcc" % (vr(X3), vr(X3)), X3, [X3])
        V("v_and_b32 %s, 2, %s" % (vr(X2), vr(Q)), X2, [Q])
        A(lambda: g.valu("v_cmp_eq_u32 vcc, 0, %s" % vr(X2), src=[X2]))
        for k in (0, 1, 4, 5):
            V("v_mov_b32 %s, 0" % vr(AC + k), AC + k)
        V("v_cndmask_b32 %s, 0, %s, vcc" % (vr(AC + 2), vr(X3)), AC + 2, [X3])
        V("v_cndmask_b32 %s, %s, 0, vcc" % (vr(AC + 3), vr(X3)), AC + 3, [X3])
        if OC == 3:
            V("v_lshrrev_b32 %s, 3, %s" % (vr(X1), vr(Q)), X1, [Q])
            V("v_and_b32 %s, 2, %s" % (vr(X2), vr(G_)), X2, [G_])
            V("v_add_u32 %s, %s, %s" % (vr(X1), vr(X1), vr(X2)), X1, [X1, X2])
            V("v_mul_u32_u24 %s, 0xc00, %s" % (vr(VST), vr(X1)), VST, [X1])
            V("v_and_b32 %s, 1, %s" % (vr(X2), vr(G_)), X2, [G_])
            V("v_lshl_add_u32 %s, %s, 9, %s" % (vr(VST), vr(X2), vr(VST)), VST, [X2, VST])
            V("v_and_b32 %s, 7, %s" % (vr(Q), vr(LN)), Q, [LN])
            V("v_lshl_add_u32 %s, %s, 4, %s" % (vr(VST), vr(Q), vr(VST)), VST, [Q, VST])
            V("v_lshrrev_b32 %s, 3, %s" % (vr(G_), vr(LN)), G_, [LN])
        elif OC:
            V("v_mul_u32_u24 %s, 0xc00, %s" % (vr(VST), vr(G_)), VST, [G_])
            V("v_lshl_add_u32 %s, %s, 4, %s" % (vr(VST), vr(Q), vr(VST)), VST, [Q, VST])
        if OC == 2:
            V("v_and_b32 %s, 3, %s" % (vr(G_), vr(LN)), G_, [LN])
            V("v_lshrrev_b32 %s, 2, %s" % (vr(Q), vr(LN)), Q, [LN])
            V("v_lshlrev_b32 %s, 8, %s" % (vr(VLD), vr(G_)), VLD, [G_])
            V("v_lshl_add_u32 %s, %s, 4, %s" % (vr(VLD), vr(Q), vr(VLD)), VLD, [Q, VLD])
        V("v_lshlrev_b32 %s, %d, %s" % (vr(VO), 4 if OC else 6, vr(G_)), VO, [G_])
        V("v_lshl_add_u32 %s, %s, 11, %s" % (vr(VO), vr(Q), vr(VO)), VO, [Q, VO])
        V("v_lshrrev_b32 %s, 1, %s" % (vr(VF), vr(L16)), VF, [L16])
        if SELF:
            A(lambda: g.s("s_mul_i32 %s, s3, 3072" % sr(S_T)))
            V("v_add_u32 %s, %s, %s" % (vr(PP), sr(S_T), vr(LR)), PP, [LR])
            V("v_mov_b32 %s, %d" % (vr(PP + 1), L_MISC), PP + 1)

            def masks():
                if EP:
                    g.s("s_mov_b64 %s, %s" % (sr(SRD_V, 2), sr(SRD_WS, 2)))
                for h, srd in enumerate((SRD_X, SRD_K)):
                    g.s("s_mov_b64 %s, %s" % (sr(srd, 2), sr(SRD_WS, 2)))
                    g.s("s_lshl_b32 %s, s3, 1" % sr(S_T))
                    g.s("s_add_u32 %s, %s, %d" % (sr(S_T), sr(S_T), h))
                    g.s("s_cmp_lg_u32 %s, %s" % (sr(S_T), sr(S_HG)))
                    g.s("s_cselect_b32 %s, %s, 0" % (sr(srd + 2), sr(SRD_WS + 2)))
            A(masks)
        A(lambda: g.s("s_mov_b32 %s, 0" % sr(S_PHASE)))
        A(lambda: g.s("s_mov_b32 %s, 0" % sr(S_PEND)))
        A(lambda: g.s("s_mov_b32 %s, 0" % sr(S_CNT)))
        return ops

    def extra(s):
        ops = []
        if EXP and EXS <= s < EXS + 6:
            n = s - EXS
            for i in (2, 3):
                p = i * 3 + (n >> 1)
                def st(p=p, n=n):
                    g.s("s_add_u32 %s, %s, %d" % (sr(S_T + 6), sr(S_PB + (n & 1)), p * 1024))
                    g.vstore("buffer_store_dwordx4 %s, %s, %s, %s offen sc1" % (vr(A0 + 240, 4), vr(L16), sr(SRD_WS, 4), sr(S_T + 6)), "PS", data=rng(A0 + 240, 4), addr=[L16])
                ops.append(st)
        if EXP and s == EXL:
            for k in range(12):
                def ld(k=k):
                    d = A0 + 244 + (k % 3) * 4
                    g.s("s_add_u32 %s, %s, %d" % (sr(S_T), sr(S_XS + 2), (k & 7) * 12288 + (k >> 3) * 1024))
                    g.vload("buffer_load_dwordx4 %s, %s, %s, %s offen sc1" % (vr(d, 4), vr(L16), sr(SRD_WS, 4), sr(S_T)), "RX", dst=rng(d, 4), addr=[L16])
                ops.append(ld)
        if s == 0:
            ops.append(lambda: g.wait_vm("POI"))
            ops += setup_ops()
        if s == PFS and not E("NOFAST", 1):
            def pf():
                g.wait_vm("POI")
                g.s("s_add_u32 %s, %s, %d" % (sr(S_T), sr(S_FS), FLGP - FLG))
                flag_store(S_T, "PF")
            ops.append(pf)
        if s == PPS and not E("NOFAST", 1):
            def pp():
                g.s("s_add_u32 %s, %s, %d" % (sr(S_T), sr(S_XS + 1), FLGP - FLG))
                g.vload("buffer_load_dwordx2 %s, %s, %s, %s offen sc1" % (vr(PP, 2), vr(VF), sr(SRD_WS, 4), sr(S_T)), "PP", dst=[PP, PP + 1], addr=[VF])
            ops.append(pp)
        return ops
    (gemm2u if UM == 6 else gemm2)(g, wl2, b2_reads(g), tail, extra)
    stamp(g)
    LDT = [KF, KF + 32, 0]
    RD = 32
    OQ = 64

    def r_loads(t):
        for src in range(8):
            if EXP and (t == 0 or (t == 1 and src < 4)):
                continue
            d = LDT[t] + src * 4
            g.s("s_add_u32 %s, %s, %d" % (sr(S_T), sr(S_XS + 2), src * 12288 + t * 1024))
            g.vload("buffer_load_dwordx4 %s, %s, %s, %s offen sc1" % (vr(d, 4), vr(L16), sr(SRD_WS, 4), sr(S_T)), "R%d" % t, dst=rng(d, 4), addr=[L16])

    def r_sum(t):
        for src in range(8):
            d = LDT[t] + src * 4
            for h in range(2):
                r = RD + (t * 2 + h) * 4
                g.mfma(r, AC + 2 - 2 * h, d, None if src == 0 else r)

    def r_out(t):
        o = OQ + t * 4
        for h in range(2):
            r = RD + (t * 2 + h) * 4
            for k in range(2):
                g.valu("v_cvt_pk_bf16_f32 %s, %s, %s" % (vr(o + h * 2 + k), vr(r + 2 * k), vr(r + 2 * k + 1)), dst=[o + h * 2 + k], src=[r + 2 * k, r + 2 * k + 1])
        g.s("s_add_u32 %s, %s, %d" % (sr(S_T + 3), sr(S_OB), t * 65536))
        g.vstore("buffer_store_dwordx4 %s, %s, %s, %s offen%s" % (vr(o, 4), vr(VO), sr(SRD_OUT, 4), sr(S_T + 3), os.environ.get("OUTF", "")), "OUT", data=rng(o, 4), addr=[VO])

    def r_check(t):
        m = [TQ, TQ + 1]
        b = LDT[t]
        for c in range(2):
            g.valu("v_max3_u32 %s, %s, %s, %s" % (vr(m[c]), vr(b + 16 * c), vr(b + 16 * c + 1), vr(b + 16 * c + 2)), dst=[m[c]], src=rng(b + 16 * c, 3))
        for k in range(3, 15, 2):
            for c in range(2):
                x = b + 16 * c + k
                g.valu("v_max3_u32 %s, %s, %s, %s" % (vr(m[c]), vr(m[c]), vr(x), vr(x + 1)), dst=[m[c]], src=[m[c], x, x + 1])
        g.valu("v_max3_u32 %s, %s, %s, %s" % (vr(m[0]), vr(m[0]), vr(b + 15), vr(b + 31)), dst=[m[0]], src=[m[0], b + 15, b + 31])
        g.valu("v_max_u32 %s, %s, %s" % (vr(m[0]), vr(m[0]), vr(m[1])), dst=[m[0]], src=m)
        g.valu("v_cmp_eq_u32 vcc, -1, %s" % vr(m[0]), src=[m[0]])
        g.nop(1)
        g.s("s_cbranch_vccnz retry%d" % t)

    def flags_ok(pl):
        g.valu("v_cmp_eq_u32 vcc, %s, %s" % (vr(pl), vr(F0)), src=[pl, F0])
        g.valu("v_cmp_eq_u32 %s, %s, %s" % (sr(S_M, 2), vr(pl + 1), vr(F0 + 1)), src=[pl + 1, F0 + 1])
        g.s("s_mov_b64 exec, -1")
        g.s("s_and_b32 %s, %s, vcc_lo" % (sr(S_M), sr(S_M)))
        g.s("s_and_b32 %s, %s, 0xff" % (sr(S_M + 1), sr(S_M)))
        g.s("s_cmp_eq_u32 %s, 0xff" % sr(S_M + 1))

    NOFAST = E("NOFAST", 1)
    if not NOFAST:
        r_loads(0)
        r_loads(1)
        if T2POS == 0:
            r_loads(2)
        g.wait_vm("PP")
        flags_ok(PP)
        if FORCE_AB & 512:
            g.s("s_bitcmp1_b32 s2, 4")
        g.s("s_cbranch_scc0 slow")
        if FORCE_AB & 255:
            g.s("s_and_b32 %s, s2, %d" % (sr(S_T), FORCE_AB & 255))
            g.s("s_cmp_eq_u32 %s, 0" % sr(S_T))
            g.s("s_cbranch_scc1 slow")
        if FORCE_AB & 256:
            g.s("s_branch slow")
        g.wait_vm("R0")
        flag_store(S_FS, "FS")
        stamp(g)
        for t in range(3):
            g.wait_vm("R%d" % t)
            g.label("chk%d" % t)
            g.nop(1)
            r_check(t)
            if t == 0 and T2POS == 1:
                r_loads(2)
            r_sum(t)
            if t == 0 and T2POS == 2:
                r_loads(2)
            if t == 2:
                stamp(g)
            r_out(t)
        stamp(g)
        stamp_flush(g)
        g.s("s_branch after")
        for t in range(3):
            g.label("retry%d" % t)
            g.vmq = []
            r_loads(t)
            g.s("s_add_u32 %s, %s, 1" % (sr(S_CNT), sr(S_CNT)))
            g.s("s_cmp_lt_u32 %s, %d" % (sr(S_CNT), RETRY))
            g.waitcnt(vm=0)
            g.vmq = []
            g.s("s_cbranch_scc1 chk%d" % t)
            if t < 2:
                g.s("s_branch slow")
    S_DONE, S_ACC, S_NEW = S_CNT, S_T + 6, S_T + 7

    def poll_load(soff):
        if E("PX", 1):
            g.s("s_mov_b64 exec, 0xffff")
        g.vload("buffer_load_dwordx2 %s, %s, %s, %s offen sc1" % (vr(PL, 2), vr(VF), sr(SRD_WS, 4), sr(soff)), "PL", dst=[PL, PL + 1], addr=[VF])

    def poll(soff):
        poll_load(soff)
        g.waitcnt(vm=0)
        g.vmq = []
        flags_ok(PL)

    def elapsed():
        g.s("s_memrealtime %s" % sr(S_T + 4, 2))
        g.waitcnt(lg=0)
        g.s("s_sub_u32 %s, %s, %s" % (sr(S_T + 4), sr(S_T + 4), sr(S_NONCE)))

    def job_init():
        for k in range(24):
            vop(g, "v_mov_b32 %s, 0" % vr(RD + k), RD + k)
        g.s("s_mov_b32 %s, 0" % sr(S_DONE))
        g.s("s_mov_b32 %s, 0" % sr(S_ACC))
    g.label("slow")
    if STAMP == 5:
        g.s("s_mov_b32 m0, 12")
        g.s("s_mov_b64 exec, 0xfffff000")
        vop(g, "v_mov_b32 %s, 0" % vr(SV), SV)
        vop(g, "v_mov_b32 %s, 0" % vr(SV + 1), SV + 1)
        g.s("s_mov_b64 exec, -1")
    SF = 96
    S_SF = S_SM

    def force():
        if FORCE_AB & 255:
            g.s("s_and_b32 %s, s2, %d" % (sr(S_T), FORCE_AB & 255))
            g.s("s_cmp_eq_u32 %s, 0" % sr(S_T))
            g.s("s_cbranch_scc1 giveup")
        if FORCE_AB & 256:
            g.s("s_branch giveup")

    def publish():
        g.waitcnt(vm=0)
        g.vmq = []
        flag_store(S_FS, "FS")

    def self_lds(par):
        for u in range(par, 6, 2):
            run(tail(u, True))
        g.dswrite("ds_write_b32 %s, %s offset:8" % (vr(PP + 1), vr(F0)), "SW", data=[F0], addr=[PP + 1])
    PARTS = [(src, (0, 1)) for src in range(8)] + [(src, (2,)) for src in range(8)] if ST2 else [(src, (0, 1, 2)) for src in range(8)]

    def masks2():
        if ST2:
            vop(g, "v_or_b32 %s, 1, %s" % (vr(TQ), vr(PL + 1)), TQ, [PL + 1])
            g.valu("v_cmp_eq_u32 s[10:11], %s, %s" % (vr(TQ), vr(FO)), src=[TQ, FO])
        flags_ok(PL)
        if ST2:
            g.s("s_and_b32 s10, s10, vcc_lo")
            g.s("s_and_b32 s10, s10, 0xff")
            g.s("s_lshl_b32 %s, %s, 8" % (sr(S_M + 1), sr(S_M + 1)))
            g.s("s_or_b32 %s, %s, s10" % (sr(S_M + 1), sr(S_M + 1)))

    def self_acc():
        g.label("selfw")
        g.dsread("ds_read_b32 %s, %s offset:8" % (vr(TQ), vr(PP + 1)), "SR", dst=[TQ], addr=[PP + 1])
        for t in range(3):
            g.dsread("ds_read_b128 %s, %s offset:%d" % (vr(SF + t * 4, 4), vr(PP), L_SELF + t * 1024), "SR", dst=rng(SF + t * 4, 4), addr=[PP])
        g.waitcnt(lg=0)
        g.lgq = []
        g.valu("v_readfirstlane_b32 %s, %s" % (sr(S_T), vr(TQ)), src=[TQ], readlane=True, sdst=[S_T])
        g.s("s_cmp_eq_u32 %s, %s" % (sr(S_T), sr(S_NONCE)))
        g.s("s_cbranch_scc0 selfw")
        for t in range(3):
            for h in range(2):
                r = RD + (t * 2 + h) * 4
                g.mfma(r, AC + 2 - 2 * h, SF + t * 4, r)
        force()
    if EP:
        assert SELF and ST2 == 1
        job_init()
        g.s("s_lshl_b32 %s, 0x101, %s" % (sr(S_DONE), sr(S_HG)))
        g.s("s_cmp_eq_u32 %s, 0" % sr(SRD_K + 2))
        g.s("s_cbranch_scc1 self1")
        g.s("s_cmp_eq_u32 %s, 0" % sr(SRD_X + 2))
        g.s("s_cbranch_scc1 self0")
        g.label("pub")
        g.wait_vm("P0")
        masks2()
        g.s("s_andn2_b32 %s, %s, %s" % (sr(S_ACC), sr(S_M + 1), sr(S_DONE)))
        for bit, (src, ts) in enumerate(PARTS):
            g.s("s_add_u32 %s, %s, %d" % (sr(S_T), sr(S_XS + 2), src * 12288))
            g.s("s_bitcmp1_b32 %s, %d" % (sr(S_ACC), bit))
            g.s("s_cselect_b32 %s, %s, 0" % (sr(SRD_V + 2), sr(SRD_WS + 2)))
            for t in ts:
                d = LDT[t] + src * 4
                g.vload("buffer_load_dwordx4 %s, %s, %s, %s offen offset:%d%s" % (vr(d, 4), vr(LR), sr(SRD_V, 4), sr(S_T), t * 1024, DFL), "R", dst=rng(d, 4), addr=[LR])
        g.s("s_or_b32 %s, %s, %s" % (sr(S_DONE), sr(S_DONE), sr(S_ACC)))
        g.wait_vm("PS2")
        flag_store(S_FS, "FS")
        stamp(g)
        poll_load(S_XS + 1)
        g.s("s_mov_b64 exec, -1")
        self_acc()
        g.waitcnt(vm=0)
        g.vmq = []
        g.s("s_branch process")
        for par in range(2):
            g.label("self%d" % par)
            self_lds(par)
            g.s("s_branch pub")
    else:
        job_init()
        if SELF:
            g.s("s_lshl_b32 %s, %s, %s" % (sr(S_DONE), "0x101" if ST2 else "1", sr(S_HG)))
            g.s("s_mov_b32 %s, 1" % sr(S_SF))
            g.s("s_cmp_eq_u32 %s, 0" % sr(SRD_K + 2))
            g.s("s_cbranch_scc1 self1")
            g.s("s_cmp_eq_u32 %s, 0" % sr(SRD_X + 2))
            g.s("s_cbranch_scc1 self0")
            g.label("pub")
        publish()
        if SELF:
            g.label("pub2")
        if NOFAST:
            stamp(g)
        if not SELF:
            force()
        g.s("s_branch poll")
        if SELF:
            g.label("self0")
            self_lds(0)
            g.s("s_branch pub")
            g.label("self1")
            publish()
            self_lds(1)
            g.s("s_branch pub2")
    g.label("job")
    job_setup(g, lambda o: o())
    job_init()
    g.label("poll")
    poll_load(S_XS + 1)
    g.waitcnt(vm=0)
    g.vmq = []
    g.label("process")
    masks2()
    if STAMP == 5:
        g.s("s_memrealtime %s" % sr(S_ST, 2))
        g.waitcnt(lg=0)
        g.valu("v_writelane_b32 %s, %s, m0" % (vr(SV), sr(S_ST)), dst=[SV])
        g.valu("v_writelane_b32 %s, %s, m0" % (vr(SV + 1), sr(S_M + 1)), dst=[SV + 1])
        g.s("s_add_u32 m0, m0, 1")
        g.s("s_min_u32 m0, m0, 31")
    if E("WA", 0):
        g.s("s_or_b32 %s, %s, %s" % (sr(S_T), sr(S_M + 1), sr(S_DONE)))
        g.s("s_bcnt1_i32_b32 %s, %s" % (sr(S_T), sr(S_T)))
        g.s("s_cmp_gt_u32 %s, %d" % (sr(S_T), 8 - E("WA", 0)))
        if E("LIM", 0):
            g.s("s_cselect_b32 %s, -1, 0" % sr(S_T + 1))
            g.s("s_andn2_b32 %s, %s, %s" % (sr(S_NEW), sr(S_M + 1), sr(S_DONE)))
            g.s("s_sub_u32 %s, 0, %s" % (sr(S_T), sr(S_NEW)))
            g.s("s_or_b32 %s, %s, %s" % (sr(S_T), sr(S_T), sr(S_T + 1)))
            g.s("s_and_b32 %s, %s, %s" % (sr(S_M + 1), sr(S_NEW), sr(S_T)))
        else:
            g.s("s_cselect_b32 %s, %s, 0" % (sr(S_M + 1), sr(S_M + 1)))
    g.s("s_andn2_b32 %s, %s, %s" % (sr(S_NEW), sr(S_M + 1), sr(S_DONE)))
    g.s("s_cbranch_scc0 noload")
    for bit, (src, ts) in enumerate(PARTS):
        g.s("s_bitcmp1_b32 %s, %d" % (sr(S_NEW), bit))
        g.s("s_cbranch_scc0 nold%d" % bit)
        g.s("s_add_u32 %s, %s, %d" % (sr(S_T), sr(S_XS + 2), src * 12288))
        for t in ts:
            if E("EXP2", 0) and (src & 1):
                continue
            d = LDT[t] + src * 4
            g.vload("buffer_load_dwordx4 %s, %s, %s, %s offen offset:%d%s" % (vr(d, 4), vr(LR), sr(SRD_WS, 4), sr(S_T), t * 1024, DFL), "R", dst=rng(d, 4), addr=[LR])
        g.label("nold%d" % bit)
    g.vmq = []
    g.label("noload")
    if SELF and not EP:
        g.s("s_cmp_eq_u32 %s, 0" % sr(S_SF))
        g.s("s_cbranch_scc1 noself")
        g.s("s_mov_b32 %s, 0" % sr(S_SF))
        self_acc()
        g.label("noself")
    g.s("s_cmp_eq_u32 %s, 0" % sr(S_ACC))
    g.s("s_cbranch_scc1 noacc")
    for bit, (src, ts) in enumerate(PARTS):
        g.s("s_bitcmp1_b32 %s, %d" % (sr(S_ACC), bit))
        g.s("s_cbranch_scc0 noac%d" % bit)
        for t in ts:
            for h in range(2):
                r = RD + (t * 2 + h) * 4
                g.mfma(r, AC + 2 - 2 * h, LDT[t] + src * 4, r)
        g.label("noac%d" % bit)
    g.label("noacc")
    g.s("s_or_b32 %s, %s, %s" % (sr(S_DONE), sr(S_DONE), sr(S_NEW)))
    g.s("s_mov_b32 %s, %s" % (sr(S_ACC), sr(S_NEW)))
    g.s("s_cmp_lg_u32 %s, %s" % (sr(S_DONE), "0xffff" if ST2 else "0xff"))
    g.s("s_cbranch_scc1 more")
    g.s("s_cmp_eq_u32 %s, 0" % sr(S_ACC))
    g.s("s_cbranch_scc1 finish")
    if NOFAST:
        stamp(g)
    g.waitcnt(vm=0)
    g.s("s_mov_b32 %s, 0" % sr(S_NEW))
    g.s("s_branch noload")
    g.label("more")
    g.s("s_cmp_lg_u32 %s, 0" % sr(S_NEW))
    g.s("s_cbranch_scc1 poll")
    g.s("s_sleep %d" % SLEEP)
    elapsed()
    g.s("s_cmp_lt_i32 %s, %d" % (sr(S_T + 4), X_AB))
    g.s("s_cbranch_scc1 poll")
    g.label("giveup")
    if SELF:
        g.s("s_cmp_lg_u32 %s, 0" % sr(S_PHASE))
        g.s("s_cbranch_scc1 giveup2")
        g.s("s_mul_i32 %s, %s, 12288" % (sr(S_T), sr(S_HG)))
        g.s("s_add_u32 %s, %s, %s" % (sr(S_T), sr(S_T), sr(S_XS + 2)))
        for t in range(3):
            g.vstore("buffer_store_dwordx4 %s, %s, %s, %s offen offset:%d sc1" % (vr(SF + t * 4, 4), vr(LR), sr(SRD_WS, 4), sr(S_T), t * 1024), "PS", data=rng(SF + t * 4, 4), addr=[LR])
        g.waitcnt(vm=0)
        g.vmq = []
        g.label("giveup2")
    g.s("s_and_b32 %s, %s, 1" % (sr(S_T), sr(S_RO)))
    g.s("s_lshl_b32 %s, %s, 2" % (sr(S_T), sr(S_T)))
    g.s("s_add_u32 %s, %s, %s" % (sr(S_T), sr(S_T), sr(S_RR)))
    g.s("s_lshl_b32 %s, %s, 3" % (sr(S_T), sr(S_T)))
    g.s("s_add_u32 %s, %s, 64" % (sr(S_T), sr(S_T)))
    g.s("s_add_u32 %s, %s, %s" % (sr(S_T), sr(S_T), sr(S_XS + 1)))
    flag_store(S_T, "FS")
    g.waitcnt(vm=0)
    g.vmq = []
    poll(S_XS + 1)
    g.s("s_cbranch_scc1 process")
    g.s("s_branch after")
    g.label("finish")
    g.nop(10)
    for t in range(3):
        r_out(t)
    if NOFAST:
        stamp(g)
        stamp_flush(g)
    g.label("after")
    g.nop(8)
    g.s("s_cmp_lg_u32 %s, 0" % sr(S_PHASE))
    g.s("s_cbranch_scc1 next")
    g.s("s_mov_b32 %s, 1" % sr(S_PHASE))
    g.waitcnt(vm=3 + (1 if STAMP else 0))
    elapsed()
    g.s("s_cmp_lt_i32 %s, %d" % (sr(S_T + 4), X_CK))
    if not FORCE_AB:
        g.s("s_cbranch_scc1 k_end")
    poll(S_XS)
    g.s("s_lshr_b32 %s, %s, 8" % (sr(S_PEND), sr(S_M)))
    g.s("s_and_b32 %s, %s, 0xff" % (sr(S_PEND), sr(S_PEND)))
    g.s("s_cmp_eq_u32 %s, 0xff" % sr(S_M + 1))
    g.s("s_cselect_b32 %s, %s, 0" % (sr(S_PEND), sr(S_PEND)))
    g.label("next")
    g.s("s_cmp_eq_u32 %s, 0" % sr(S_PEND))
    g.s("s_cbranch_scc1 k_end")
    g.s("s_ff1_i32_b32 %s, %s" % (sr(S_T), sr(S_PEND)))
    g.s("s_bitset0_b32 %s, %s" % (sr(S_PEND), sr(S_T)))
    g.s("s_and_b32 %s, %s, 3" % (sr(S_RR), sr(S_T)))
    g.s("s_lshr_b32 %s, %s, 2" % (sr(S_T), sr(S_T)))
    g.s("s_lshl_b32 %s, s3, 1" % sr(S_RO))
    g.s("s_add_u32 %s, %s, %s" % (sr(S_RO), sr(S_RO), sr(S_T)))
    g.waitcnt(vm=0)
    g.s("s_branch job")
    g.label("k_end")


def body():
    _stamp_n[0] = 0
    g0 = prologue()
    n = len(CLS)
    if n > 1:
        if CLF == "b":
            g0.s("s_and_b32 %s, %s, %d" % (sr(S_TYPE), sr(S_B), n - 1))
        else:
            g0.s("s_add_u32 %s, %s, %s" % (sr(S_TYPE), sr(S_B), sr(S_HG)))
            g0.s("s_and_b32 %s, %s, %d" % (sr(S_TYPE), sr(S_TYPE), n - 1))
        for c in range(1, n):
            g0.s("s_cmp_eq_u32 %s, %d" % (sr(S_TYPE), c))
            g0.s("s_cbranch_scc1 cls%d" % c)
    n0 = _stamp_n[0]
    txt = []
    for c in range(n):
        _stamp_n[0] = n0
        g = Gen()
        g.label("cls%d" % c)
        part1(g, CLS[c])
        if c:
            g.s("s_branch join")
        txt.append(g.text())
    g = Gen()
    g.vmq = ["V0", "V1", "V2", "TCH", "VD"]
    g.label("join")
    part2(g)
    g.raw("s_endpgm")
    return g0.text() + txt[0] + g.text() + "".join(txt[1:]) + "code_end:\n"


def main():
    out = "; fused attention: q-proj + attention + o-proj partial per workgroup, cross-workgroup bf16 reduction\n"
    out += "; @launch kernel=attn_kernel grid=(256,1,1) block=(256,1,1) lds=%d\n" % LDS_BYTES
    out += '.amdgcn_target "amdgcn-amd-amdhsa--gfx950"\n.text\n'
    out += ".globl attn_kernel\n.p2align 8\n.type attn_kernel,@function\nattn_kernel:\n"
    out += body()
    out += '.section .rodata,"a"\n.p2align 6\n.amdhsa_kernel attn_kernel\n'
    out += "  .amdhsa_next_free_vgpr 512\n  .amdhsa_next_free_sgpr 102\n  .amdhsa_accum_offset 256\n"
    out += "  .amdhsa_group_segment_fixed_size 0\n  .amdhsa_kernarg_size 104\n  .amdhsa_user_sgpr_count 2\n"
    out += "  .amdhsa_user_sgpr_kernarg_segment_ptr 1\n  .amdhsa_system_sgpr_workgroup_id_x 1\n.end_amdhsa_kernel\n"
    path = sys.argv[1] if len(sys.argv) > 1 else "cdna_kernels/%s.s" % NAME
    open(path, "w").write(out)
    print("wrote", path, len(out), "bytes; stamps", _stamp_n[0], "late", LATE[:12])
    if E("INFO", 0):
        for i in INFO:
            print(i)


main()
```

```python
import sys, os
sys.path.insert(0, os.path.dirname(os.path.abspath(__file__)))
from asmgen2 import Gen, vr, sr

NAME = "concat_heads__gqa_block_cached__gqa_block_cached__near_ridge"
WS_BYTES = 268435456
E = lambda k, d: int(os.environ.get(k, str(d)))
STAMP = E("STAMP", 0)
STAMP_BASE = 200 * 1024 * 1024
NRAW = E("NRAW", 3)
WQT = E("WQT", 1)
WOT = E("WOT", 1)
XBAR = dict((int(a), int(b)) for a, b in (t.split(":") for t in os.environ.get("XBAR", "0:1,4:3,8:5,12:7").split(",")))
VL = dict((int(t[0]), int(t[2])) for t in os.environ.get("VL", "0h0,1h1,2h2").split(",") if t)
PDEF = os.environ.get("PTOK", "x0,w0,x1,w1,t")
QB = os.environ.get("QB", "w2,x2,x3,w3,w4,w5,w6,x4,x5,w7,w8,w9,w10,x6,x7,w11,w12,w13,w14,w15,V0h0,V1h1")
CLS = []
for c in os.environ.get("KP", "5,9,13|6,10,14|7,11,15|8,12,15").split("|"):
    kp = [int(t) for t in c.split(",")]
    q = []
    for tok in QB.split(","):
        q.append(tok)
        for p_ in range(3):
            if tok == "w%d" % kp[p_]:
                q.append("K%dh%d" % (p_, p_))
    CLS.append({"P": PDEF.split(","), "Q": q})
if os.environ.get("QTOK"):
    CLS = [{"P": PDEF.split(","), "Q": c.split(",")} for c in os.environ["QTOK"].split("|")]
RM = E("RM", 14)
MAP = E("MAP", 0)
PLAIN = E("PLAIN", 0)
DF = "" if PLAIN else " sc1"
DFL = ["", "", " sc0", " sc1"][PLAIN] if PLAIN else " sc1"
BUD, CC, CW, CAP = E("BUD", 58), E("CC", 65), E("CW", 33), E("CAP", 100)
SM2 = E("SM2", 0)
POST = {}
for it in os.environ.get("POST", "0=V2h2;3=T;4=Y").split(";"):
    k, v = it.split("=")
    POST[int(k)] = v.split(",")
CLF = os.environ.get("CLF", "b")
FORCE_AB = E("FORCE_AB", 0)
POLL_MAX = E("POLL_MAX", 300)
SLEEP = E("SLEEP", 2)
NT = os.environ.get("NT", " nt")
PART = 0
FLG = 64 * 1024 * 1024
FC = 0x5A3C96E1
FLGP = FLG + 65536
X_AB = E("X_AB", 40000)
X_CK = E("X_CK", 20000)
RETRY = E("RETRY", 40)
R2 = [int(c) for c in os.environ.get("R2", "11211212")]
PFS = E("PFS", 1)
PPS = E("PPS", 11)
T2POS = E("T2POS", 1)
EXP, EXS, EXL = E("EXP", 0), E("EXS", 4), E("EXL", 11)

SRD_X, SRD_K, SRD_V, SRD_W, SRD_WS, SRD_WO, SRD_OUT, SRD_DBG = 20, 24, 28, 32, 36, 40, 44, 48
SE = 51
S_PLO, S_PHI = 60, 61
S_BH, S_HG, S_B, S_BLK, S_GRP, S_TYPE, S_C = 62, 63, 64, 65, 66, 67, 68
S_W0 = 70
S_T = 72
S_NONCE, S_RO, S_RR, S_PEND, S_PHASE, S_CNT = 80, 81, 82, 83, 84, 85
S_WI, S_XR = 80, 82
ROT = E("ROT", 2)
S_XS = 86
S_XM = 89
S_PB = 89
S_VL = 92
S_M = 94
S_ST = 96

RAW = 0
WT = 96 if NRAW == 3 else 224
WT8 = 64
KF = 128
VW, XB, VK, VV, VWO, L16, VOW, L16H = 240, 241, 245, 246, 247, 248, 249, 250
VOW2 = XB
TQ = 251
XA = TQ
WTA = 112 if NRAW == 3 else A0 + 254 if False else 112
VR2 = 0
VKD, VKR = 113, 117
QF = 32
SB = 64
PT = 112
TM = 124
OB = 64
TT = 32
ZQ = 224
A0 = 256
ACC = A0
BF = A0 + 192
VRA = A0 + 192

L_V = 98304
L_MISC = 34816
LDS_BYTES = 163840

_stamp_n = [0]


def rng(a, n):
    return list(range(a, a + n))


def vop(g, text, dst, src=()):
    g.valu(text, dst=[dst] if isinstance(dst, int) else dst, src=src)


SV = 236


def stamp(g, have=False):
    if not STAMP:
        return
    n = _stamp_n[0]
    _stamp_n[0] += 1
    if not have:
        g.s("%s %s" % (os.environ.get("CLK", "s_memrealtime"), sr(S_ST, 2)))
        g.waitcnt(lg=0)
        g.lgq = []
    g.valu("v_writelane_b32 %s, %s, %d" % (vr(SV), sr(S_ST), n), dst=[SV])
    g.valu("v_writelane_b32 %s, %s, %d" % (vr(SV + 1), sr(S_ST + 1), n), dst=[SV + 1])


def stamp_flush(g):
    if not STAMP:
        return
    g.s("s_lshl_b32 %s, s2, 8" % sr(S_ST + 2))
    g.s("s_add_u32 %s, %s, %d" % (sr(S_ST + 2), sr(S_ST + 2), STAMP_BASE))
    g.s("s_mul_i32 %s, s3, 1048576" % sr(S_ST + 3))
    g.s("s_add_u32 %s, %s, %s" % (sr(S_ST + 2), sr(S_ST + 2), sr(S_ST + 3)))
    vop(g, "v_lshrrev_b32 %s, 1, %s" % (vr(TQ), vr(L16)), TQ, [L16])
    g.s("s_mov_b64 exec, 0xffffffff")
    g.vstore("buffer_store_dwordx2 %s, %s, %s, %s offen" % (vr(SV, 2), vr(TQ), sr(SRD_WS, 4), sr(S_ST + 2)), "STAMP", data=[SV, SV + 1], addr=[TQ])
    g.s("s_mov_b64 exec, -1")


def make_srd(g, srd, ptr, nbytes):
    g.s("s_mov_b32 %s, %s" % (sr(srd), sr(ptr)))
    g.s("s_and_b32 %s, %s, 0xffff" % (sr(srd + 1), sr(ptr + 1)))
    g.s("s_mov_b32 %s, %d" % (sr(srd + 2), nbytes))
    g.s("s_mov_b32 %s, 0x00020000" % sr(srd + 3))


def acc1(j, u):
    return ACC + (u * 8 + j) * 4


def acc2(j, u):
    return ACC + (u * 8 + j) * 4


SL2 = [32, 0, 64, KF, KF + 32]


UM = E("UM", 6)
SELF = E("SELF", 1)
ST2 = E("ST2", 0)
HOOK = {}
OC = E("OC", 1)
VST, VLD = 240, 241
EP = E("EP", 0)
L_SELF = 49152
S_SM, S_SP = 8, 14


def raw2(s, e):
    if UM == 6 and s in (13, 14):
        s = 27 - s
    return SL2[s % 5] + e * 4


CYC = [KF + 64, 32, 64, 0, KF, KF + 32]


def raw(s, e):
    return CYC[s % 6] + e * 4


def bf(s, u):
    return BF + ((s % 2) * 6 + u) * 4


def perm_ops(g, rbase, j, dst):
    ops = []
    for m in range(4):
        a, b = rbase + (2 * m) * 4 + (j >> 1), rbase + (2 * m + 1) * 4 + (j >> 1)
        sel = S_PHI if j & 1 else S_PLO

        def op(a=a, b=b, d=dst + m, sel=sel):
            g.valu("v_perm_b32 %s, %s, %s, %s" % (vr(d), vr(b), vr(a), sr(sel)), dst=[d], src=[a, b])
        ops.append(op)
    return ops


def merge(main, fill):
    n = len(main)
    k = 0
    for i, m in enumerate(main):
        m()
        upto = (len(fill) * (i + 1) + n - 1) // n
        while k < upto:
            fill[k]()
            k += 1


def units(tag, ops, cost):
    out, cur = [], []
    for o in ops:
        cur.append(o)
        if getattr(o, "is_load", False):
            out.append([tag, cost, cur])
            cur = []
    if cur:
        out.append([tag, 0, cur])
    return out


def gemm1(g, cl, b_reads, tail):
    acc = acc1
    pend = []
    rdone = set()
    kbar = min(k - 1 for k in XBAR if k - 1 >= 5)
    vbar = min(k - 1 for k in XBAR if k - 1 >= 11)
    for tok in cl["Q"]:
        if tok[0] == "@":
            pend.append([tok, 0, []])
        else:
            pend += units(tok, tok_ops(g, tok), CW if tok[0] == "w" or (ROT == 2 and tok[0] == "x" and int(tok[1]) >= 4) else CC)
    credit = [0]
    kiss = {}
    INFO.append(kiss)

    def ok(tag, s, j):
        if tag[0] == "@":
            return s >= int(tag[1:])
        if tag[0] == "w":
            return (s, j) >= (int(tag[1:]) - 6, 7)
        if tag[0] == "K" and tag[3] == "2":
            return (s, j) >= (kbar, 4)
        if tag[0] == "V" and tag[3] == "2":
            return (s, j) >= (vbar, 4)
        if tag[0] == "V":
            return tag[3] in rdone
        return True

    def take(s, j):
        out = []
        credit[0] = min(CAP, credit[0] + BUD)
        while pend and ok(pend[0][0], s, j) and credit[0] >= pend[0][1]:
            t, c, o = pend.pop(0)
            credit[0] -= c
            out += o
            kiss[t] = 8 * s + j
        return out

    def upto(tag, s, j):
        out = []
        while any(t == tag for t, _, _ in pend):
            t, c, o = pend.pop(0)
            assert t[0] == "@" or ok(t, s, j), (t, tag, s, j)
            credit[0] -= c
            out += o
            kiss[t] = 8 * s + j
            LATE.append((tag, t, s, j))
        return out
    side = []

    rnext = [0]

    def side_add(s):
        while rnext[0] < 3:
            p_ = rnext[0]
            tok = "R%dh%d" % (p_, p_)
            if s < 16 and (s < 11 + p_ or any(t == "K" + tok[1:] for t, _, _ in pend) or 8 * s < kiss["K" + tok[1:]] + RM):
                break
            side.append(lambda tok=tok, s=s: run(upto("K" + tok[1:], s, 0)))
            side.extend(tok_ops(g, tok))
            side.append(lambda tok=tok: rdone.add(tok[3]))
            rnext[0] += 1
            INFO.append((tok, s))

    def side_take(n):
        out = []
        while side and n > 0:
            o = side.pop(0)
            out.append(o)
            if getattr(o, "is_load", False):
                n -= 1
        while side and not getattr(side[0], "is_load", False) and len(side) == 1:
            out.append(side.pop(0))
        return out
    g.wait_vm("W0")
    for op in perm_ops(g, raw(0, 0), 0, WT):
        op()
    for s in range(15):
        side_add(s)
        for j in range(8):
            idx = 8 * s + j
            fill = []
            if j == 7:
                fill += upto("w%d" % (s + 1), s, j)
                fill.append(lambda s=s: g.wait_vm("W%d" % (s + 1)))
                fill += perm_ops(g, raw(s + 1, 0), 0, (WT8 if s == 14 else WT + ((idx + 1) % 4) * 4))
            else:
                fill += perm_ops(g, raw(s, 0), j + 1, WT + ((idx + 1) % 4) * 4)
            fill += take(s, j)
            if j == 3 and (s + 1) in XBAR:
                tags = ["X%d" % k for k in range(XBAR[s + 1] + 1)]
                for t in tags:
                    fill += upto(t.lower(), s, j)
                fill.append(lambda tags=tags: g.wait_vm(tags))
                fill.append(g.barrier)
            if 3 <= j <= 5:
                fill += b_reads(s + 1)[(j - 3) * 2:(j - 3) * 2 + 2]
            elif j < 3:
                fill += side_take(3)
            if j == 0:
                g.wait_lg("B%d" % s)
                if STAMP == 2 and s > 0:
                    stamp(g)
            a = WT + (idx % 4) * 4
            main = [(lambda u=u: g.mfma(acc(j, u), a, bf(s, u), None if s == 0 else acc(j, u))) for u in range(6)]
            merge(main, fill)
    s = 15
    side_add(15)
    g.wait_lg("B15")
    carry = []
    for n, u in enumerate(range(6)):
        main = [(lambda j=j: g.mfma(acc(j, u), WT8 + j * 4, bf(s, u), acc(j, u))) for j in range(8)]
        if n == 0:
            for j in range(8):
                main[j]()
                if j < 7:
                    for op in perm_ops(g, raw(s, 0), j + 1, WT8 + (j + 1) * 4):
                        op()
        else:
            fill = side_take(4)
            merge(main[:1], fill)
            fill = take(15, n) + take(15, n) + carry[:20]
            carry = carry[20:]
            merge(main[1:], fill)
        carry += tail(u)
    side_add(16)
    run(side)
    rest = []
    for t, c, o in pend:
        assert t[0] == "@" or ok(t, 16, 0), t
        rest += o
    return rest, carry


LATE = []
INFO = []


def mark(ops):
    for o in ops:
        names = o.__code__.co_names
        if "vload" in names:
            o.is_load = True
    return ops


QH = E("QH", 3)


def qbuf(u):
    return [QF, QF + 16, 16][u % 3] if QH & 1 else QF + (u % 2) * 16


def q_conv(g, u):
    ops = []
    for i in range(4):
        for m in range(4):
            t0, t1 = TQ + (m % 2) * 2, TQ + (m % 2) * 2 + 1
            s0, s1 = acc1(2 * m, u) + i, acc1(2 * m + 1, u) + i
            d = qbuf(u) + i * 4 + m
            ops.append(lambda t=t0, s=s0: g.valu("v_accvgpr_read_b32 %s, %s" % (vr(t), vr(s)), dst=[t], src=[s]))
            ops.append(lambda t=t1, s=s1: g.valu("v_accvgpr_read_b32 %s, %s" % (vr(t), vr(s)), dst=[t], src=[s]))
            ops.append(lambda d=d, a=t0, b=t1: g.valu("v_cvt_pk_bf16_f32 %s, %s, %s" % (vr(d), vr(a), vr(b)), dst=[d], src=[a, b]))
    return ops


def sacc(u, kt):
    return SB + (u % 2) * 24 + kt * 4


def pfrag(u, pp):
    return ACC + u * 32 + pp * 4


ONES = 224


def psum(u):
    return ACC + u * 32 + 12


def softmax_ops(g, u):
    ops = []
    A = ops.append
    vals = [sacc(u, kt) + r for kt in range(6) for r in range(4)]
    m, tmp, r = TM, TM + 1, TM + 2
    m2 = TM + 3

    def V(text, dst, src, **kw):
        A(lambda: g.valu(text, dst=dst, src=src, **kw))
    V("v_max3_f32 %s, %s, %s, %s" % (vr(m), vr(vals[0]), vr(vals[1]), vr(vals[2])), [m], vals[0:3])
    V("v_max3_f32 %s, %s, %s, %s" % (vr(m2), vr(vals[3]), vr(vals[4]), vr(vals[5])), [m2], vals[3:6])
    k = 6
    while k < 24:
        mm = m if (k // 2) % 2 else m2
        V("v_max3_f32 %s, %s, %s, %s" % (vr(mm), vr(mm), vr(vals[k]), vr(vals[k + 1])), [mm], [mm, vals[k], vals[k + 1]])
        k += 2
    V("v_max_f32 %s, %s, %s" % (vr(m), vr(m), vr(m2)), [m], [m, m2])

    def xl(x, op):
        for sw in ("v_permlane32_swap_b32", "v_permlane16_swap_b32"):
            V("v_mov_b32 %s, %s" % (vr(tmp), vr(x)), [tmp], [x])
            V("%s %s, %s" % (sw, vr(x), vr(tmp)), [x, tmp], [x, tmp], permlane=True)
            V("%s %s, %s, %s" % (op, vr(x), vr(x), vr(tmp)), [x], [x, tmp])
    xl(m, "v_max_f32")
    V("v_mul_f32 %s, %s, %s" % (vr(m), sr(S_C), vr(m)), [m], [m])
    for v in vals:
        V("v_fma_f32 %s, %s, %s, -%s" % (vr(v), vr(v), sr(S_C), vr(m)), [v], [v, m])
    for v in vals:
        V("v_exp_f32 %s, %s" % (vr(v), vr(v)), [v], [v], trans=True)
    for pp in range(3):
        for h in range(4):
            a = sacc(u, 2 * pp + (h >> 1)) + (h & 1) * 2
            d = PT + pp * 4 + h
            V("v_cvt_pk_bf16_f32 %s, %s, %s" % (vr(d), vr(a), vr(a + 1)), [d], [a, a + 1])
    for k in range(12):
        d = pfrag(u, 0) + k
        V("v_accvgpr_write_b32 %s, %s" % (vr(d), vr(PT + k)), [d], [PT + k])
    for pp in range(3):
        A(lambda pp=pp: g.mfma(psum(u), ONES, PT + pp * 4, None if pp == 0 else psum(u)))
    return ops


S_K2, S_KD, S_JUNK, S_TB = 4, 5, 13, 6


def k_dma(g, part, half):
    ops = []
    for n8 in range(8):
        n = part * 8 + n8
        ops.append(lambda n=n: g.s("s_add_u32 %s, %s, %d" % (sr(S_T + 1), sr(S_BH), n * 1024)))
        if half == 2:
            ops.append(lambda n8=n8: g.s("s_add_u32 m0, %s, %d" % (sr(S_K2), n8 * 1024), m0=True))
        else:
            ops.append(lambda n8=n8: g.s("s_add_u32 m0, %s, %d" % (sr(S_VL), half * 8192 + n8 * 1024), m0=True))
        ops.append(lambda n=n: g.vload("buffer_load_dwordx4 %s, %s, %s offen%s lds" % (vr(VKD + (n & 3)), sr(SRD_K, 4), sr(S_T + 1), NT), "KD%d" % part, addr=[VKD + (n & 3)], lds=True))
    return ops


def k_read(g, part, half):
    ops = [lambda: g.wait_vm("KD%d" % part)]
    if half == 2:
        for i in range(4):
            ops.append(lambda i=i: vop(g, "v_subrev_u32 %s, %s, %s" % (vr(VKR + i), sr(S_KD), vr(VKR + i)), VKR + i, [VKR + i]))
    for k2 in range(2):
        for i in range(4):
            d = KF + ((part * 2 + k2) * 4 + i) * 4
            o = lambda d=d, i=i, k2=k2: g.dsread("ds_read_b128 %s, %s offset:%d" % (vr(d, 4), vr(VKR + i), (half & 1) * 8192 + k2 * 4096), "KR%d" % half, dst=rng(d, 4), addr=[VKR + i])
            o.is_load = True
            ops.append(o)
    return ops


def vraw(pp, e):
    return (VRA + pp * 32 + e * 4) if pp < 2 else (VR2 + e * 4)


def v_loads(g, pp_):
    ops = []
    for pp in (pp_,):
        for e in range(8):
            if e % 4 == 0:
                ops.append(lambda pp=pp, e=e: g.s("s_add_u32 %s, %s, %d" % (sr(S_T + 1), sr(S_BH), pp * 8192 + (e >> 2) * 4096)))
            d = vraw(pp, e)
            ops.append(lambda d=d, e=e, pp=pp: g.vload("buffer_load_dwordx4 %s, %s, %s, %s offen offset:%d%s" % (vr(d, 4), vr(VV), sr(SRD_V, 4), sr(S_T + 1), (e & 3) * 256, NT),
                                                       "V%d" % pp, dst=rng(d, 4), addr=[VV]))
    return ops


L_V2 = 36864


def v_dma(g, pp, half):
    ops = [lambda: g.wait_lg("KR%d" % half)] if half < 2 else []
    for e in range(8):
        ops.append(lambda pp=pp, e=e: g.s("s_add_u32 %s, %s, %d" % (sr(S_T + 1), sr(S_BH), pp * 8192 + e * 1024)))
        if half < 2:
            ops.append(lambda pp=pp, e=e: g.s("s_add_u32 m0, %s, %d" % (sr(S_VL), (half * 8 + e) * 1024), m0=True))
        else:
            ops.append(lambda pp=pp, e=e: g.s("s_add_u32 m0, %s, %d" % (sr(S_K2), L_V2 + e * 1024), m0=True))
        a = VK if e & 1 else VV
        ops.append(lambda a=a: g.vload("buffer_load_dwordx4 %s, %s, %s offen%s lds" % (vr(a), sr(SRD_V, 4), sr(S_T + 1), NT), "VD", addr=[a], lds=True))
    return ops


def wo_touch(g):
    ops = []
    A = ops.append
    if MAP:
        A(lambda: g.s("s_and_b32 %s, %s, 3" % (sr(S_T + 3), sr(S_B))))
        A(lambda: g.s("s_lshl_b32 %s, %s, 2" % (sr(S_T + 3), sr(S_T + 3))))
    else:
        A(lambda: g.s("s_lshl_b32 %s, %s, 2" % (sr(S_T + 3), sr(S_B))))
    A(lambda: g.s("s_add_u32 %s, %s, s3" % (sr(S_T + 3), sr(S_T + 3))))
    A(lambda: g.s("s_lshl_b32 %s, %s, 13" % (sr(S_T + 3), sr(S_T + 3))))
    A(lambda: g.s("s_lshl_b32 %s, %s, 19" % (sr(S_T + 4), sr(S_HG))))
    A(lambda: g.s("s_add_u32 %s, %s, %s" % (sr(S_T + 3), sr(S_T + 3), sr(S_T + 4))))
    A(lambda: vop(g, "v_lshlrev_b32 %s, 3, %s" % (vr(TQ + 4), vr(L16)), TQ + 4, [L16]))
    for k in range(3 if MAP else 0):
        A(lambda: g.vload("buffer_load_dword %s, %s, %s, %s offen" % (vr(VW), vr(TQ + 4), sr(SRD_WO, 4), sr(S_T + 3)), "TCH", dst=[VW], addr=[TQ + 4]))
        A(lambda: g.s("s_add_u32 %s, %s, 131072" % (sr(S_T + 3), sr(S_T + 3))))
    A(lambda: g.vload("buffer_load_dword %s, %s, %s, %s offen" % (vr(TQ + 4), vr(TQ + 4), sr(SRD_WO, 4), sr(S_T + 3)), "TCH", dst=[TQ + 4], addr=[TQ + 4]))
    return ops


def w1_loads(g):
    def f(s):
        ops = []
        if s > 0:
            if ROT:
                ops.append(lambda: vop(g, "v_add_u32 %s, %s, %s" % (vr(VW), sr(S_WI + (s & 1)), vr(VW)), VW, [VW]))
                ops.append(lambda: vop(g, "v_and_b32 %s, 0x3fffff, %s" % (vr(VW), vr(VW)), VW, [VW]))
            else:
                ops.append(lambda: vop(g, "v_add_u32 %s, 0x40000, %s" % (vr(VW), vr(VW)), VW, [VW]))
        for e in range(8):
            d = raw(s, e)
            so = "0" if e == 0 else sr(SE + e)
            ops.append(lambda d=d, so=so, s=s: g.vload("buffer_load_dwordx4 %s, %s, %s, %s offen" % (vr(d, 4), vr(VW), sr(SRD_W, 4), so),
                                                       "W%d" % s, dst=rng(d, 4), addr=[VW]))
        return mark(ops)
    return f


def b1_reads(g):
    def f(s):
        ops = []
        sp = s >> 1
        a = XB + (s & 1) + 2 * (sp >> 2)
        for u in range(6):
            d = bf(s, u)
            ops.append(lambda d=d, a=a, off=((sp & 3) * 12 + 2 * u) * 1024, s=s:
                       g.dsread("ds_read_b128 %s, %s offset:%d" % (vr(d, 4), vr(a), off), "B%d" % s, dst=rng(d, 4), addr=[a]))
        return ops
    return f


def w2_loads(g):
    def f(s):
        ops = []
        if E("NOW2", 0) and s >= 5:
            return ops
        h, i = s >> 2, s & 3
        base = h * 131072 + i * 16384
        for e in range(8):
            if e % 4 == 0:
                ops.append(lambda e=e: g.s("s_mov_b32 %s, %d" % (sr(S_T + 2), base + (e >> 2) * 8192)))
            d = raw2(s, e)
            if E("X2T", 0):
                for hf in range(2):
                    ops.append(lambda d=d + 2 * hf, e=e, s=s, hf=hf: g.vload("buffer_load_dwordx2 %s, %s, %s, %s offen offset:%d" % (vr(d, 2), vr(VWO), sr(SRD_WO, 4), sr(S_T + 2), (e & 3) * 1024 + hf * 128),
                                                                         "W%d" % s, dst=rng(d, 2), addr=[VWO]))
                continue
            ops.append(lambda d=d, e=e, s=s: g.vload("buffer_load_dwordx4 %s, %s, %s, %s offen offset:%d" % (vr(d, 4), vr(VWO), sr(SRD_WO, 4), sr(S_T + 2), (e & 3) * 1024),
                                                     "W%d" % s, dst=rng(d, 4), addr=[VWO]))
        return mark(ops)
    return f


def b2_reads(g):
    def f(s):
        ops = []
        h, i = s >> 2, s & 3
        for u in range(6):
            d = bf(s, u)
            n = i * 6 + u
            a, off = (L16H, h * 16384 + n * 1024) if n < 16 else (L16, h * 8192 + (n - 16) * 1024)
            ops.append(lambda d=d, a=a, off=off, s=s:
                       g.dsread("ds_read_b128 %s, %s offset:%d" % (vr(d, 4), vr(a), off), "B%d" % s, dst=rng(d, 4), addr=[a]))
        return ops
    return f


def b2_read1(g, s, u, d, tag):
    h, i = s >> 2, s & 3
    n = i * 6 + u
    a, off = (L16H, h * 16384 + n * 1024) if n < 16 else (L16, h * 8192 + (n - 16) * 1024)
    return lambda: g.dsread("ds_read_b128 %s, %s offset:%d" % (vr(d, 4), vr(a), off), tag, dst=rng(d, 4), addr=[a])


def gemm2(g, w_loads, b_reads, tail, extra):
    pend = []

    def add(tag, ops):
        pend.extend((tag, o) for o in ops)

    def take(n):
        out = []
        while pend and n > 0:
            t, o = pend.pop(0)
            out.append(o)
            if getattr(o, "is_load", False):
                n -= 1
        return out

    def upto(tag):
        out = []
        while any(t == tag for t, _ in pend):
            out.append(pend.pop(0)[1])
        return out
    TS = {13: KF + 64, 14: SL2[11 % 5], 15: SL2[12 % 5]}
    bq = lambda n, k: BF + (((n * 3 + 6) % 12) + k) * 4
    for t in (2, 3, 4):
        add("W%d" % t, w_loads(t))
    g.wait_vm("W0")
    for op in perm_ops(g, raw2(0, 0), 0, WT):
        op()
    xq = []
    for s in range(13):
        xq += extra(s)
        if s == 12:
            xq += upto("W13") + [lambda: g.wait_vm("W13")]
            for j in range(8):
                xq += perm_ops(g, raw2(13, 0), j, TS[13] + j * 4)
        for j in range(8):
            idx = 8 * s + j
            fill = []
            if j == 7:
                if s < 12:
                    fill += upto("W%d" % (s + 1))
                    fill.append(lambda s=s: g.wait_vm("W%d" % (s + 1)))
                    fill += perm_ops(g, raw2(s + 1, 0), 0, WT + ((idx + 1) % 4) * 4)
                if s + 5 < 16:
                    add("W%d" % (s + 5), w_loads(s + 5))
            else:
                fill += perm_ops(g, raw2(s, 0), j + 1, WT + ((idx + 1) % 4) * 4)
            fill += take(R2[j])
            if 3 <= j <= 5:
                if s < 12:
                    fill += b_reads(s + 1)[(j - 3) * 2:(j - 3) * 2 + 2]
                else:
                    fill += [b2_read1(g, 13 + (j - 3), n, bq(n, j - 3), "C%d" % n) for n in range(2)]
            k = (len(xq) + 7 - j) // (8 - j)
            k = min(k, 8) if s < 12 else k
            fill += xq[:k]
            xq = xq[k:]
            if j == 0:
                g.wait_lg("B%d" % s)
                if STAMP == 3 and s > 0:
                    stamp(g)
            a = WT + (idx % 4) * 4
            main = [(lambda u=u: g.mfma(acc2(j, u), a, bf(s, u), None if s == 0 else acc2(j, u))) for u in range(6)]
            merge(main, fill)
    assert not xq
    carry = []
    for n in range(6):
        u = n
        g.wait_lg("C%d" % n)
        if STAMP == 3:
            stamp(g)
        main = [(lambda j=j, k=k: g.mfma(acc2(j, u), TS[13 + k] + j * 4, bq(n, k), acc2(j, u))) for k in range(3) for j in range(8)]
        brd = [b2_read1(g, 13 + k, n + 2, bq(n + 2, k), "C%d" % (n + 2)) for k in range(3)] if n + 2 < 6 else []
        if n == 0:
            for k in (1, 2):
                fill = upto("W%d" % (13 + k)) + [lambda k=k: g.wait_vm("W%d" % (13 + k))]
                for j in range(8):
                    fill += perm_ops(g, raw2(13 + k, 0), j, TS[13 + k] + j * 4)
                merge(main[(k - 1) * 8:k * 8 - 1], fill)
                main[k * 8 - 1]()
            merge(main[16:], brd)
        else:
            merge(main, brd + carry)
        carry = tail(n)
    assert not pend
    run(carry)


def gemm2u(g, w_loads, b_reads, tail, extra):
    pend = []

    def add(tag, ops):
        pend.extend((tag, o) for o in ops)

    def take(n):
        out = []
        while pend and n > 0:
            t, o = pend.pop(0)
            out.append(o)
            if getattr(o, "is_load", False):
                n -= 1
        return out

    def upto(tag):
        out = []
        while any(t == tag for t, _ in pend):
            out.append(pend.pop(0)[1])
        return out

    def conv(s, dst):
        ops = upto("W%d" % s) + [lambda: g.wait_vm("W%d" % s)]
        for j in range(8):
            ops += perm_ops(g, raw2(s, 0), j, dst + j * 4)
        return ops
    TS = {9: KF + 64, 10: 96, 11: KF + 64, 12: raw2(11, 0), 13: raw2(12, 0), 14: raw2(13, 0), 15: raw2(14, 0)}
    seq = [(u, k) for k in range(6) for u in range(2)] + [(u, k) for u in range(2, 6) for k in range(6)]
    bq = lambda i: BF + (i % 12) * 4
    brd = lambda i: [b2_read1(g, 10 + seq[i][1], seq[i][0], bq(i), "C%d" % i)] if i < len(seq) else []
    for t in (2, 3, 4):
        add("W%d" % t, w_loads(t))
    g.wait_vm("W0")
    for op in perm_ops(g, raw2(0, 0), 0, WT):
        op()
    xq = []
    for s in range(10):
        xq += extra(s)
        cv = conv(s + 1, TS[s + 1]) if s >= 8 else []
        ncv = (len(cv) + 3) // 4
        for j in range(8):
            idx = 8 * s + j
            fill = []
            if j == 7:
                if s < 8:
                    fill += upto("W%d" % (s + 1))
                    fill.append(lambda s=s: g.wait_vm("W%d" % (s + 1)))
                    fill += perm_ops(g, raw2(s + 1, 0), 0, WT + ((idx + 1) % 4) * 4)
                    add("W%d" % (s + 5), w_loads(s + 5))
                if s == 8:
                    add("W14", w_loads(14))
            elif s < 9:
                fill += perm_ops(g, raw2(s, 0), j + 1, WT + ((idx + 1) % 4) * 4)
            if j < 4:
                fill += cv[j * ncv:(j + 1) * ncv]
            if j == 4 and s >= 8:
                add("W%d" % (13 if s == 8 else 15), w_loads(13 if s == 8 else 15))
            fill += take(R2[j] if s < 8 else 2)
            if 3 <= j <= 5:
                if s < 9:
                    fill += b_reads(s + 1)[(j - 3) * 2:(j - 3) * 2 + 2]
                else:
                    fill += brd((j - 3) * 2) + brd((j - 3) * 2 + 1)
            k = (len(xq) + 7 - j) // (8 - j)
            k = min(k, 8) if s < 9 else k
            fill += xq[:k]
            xq = xq[k:]
            if j == 0:
                g.wait_lg("B%d" % s)
                if STAMP == 3 and s > 0:
                    stamp(g)
            a = WT + (idx % 4) * 4 if s < 9 else TS[9] + j * 4
            main = [(lambda u=u: g.mfma(acc2(j, u), a, bf(s, u), None if s == 0 else acc2(j, u))) for u in range(6)]
            merge(main, fill)
    assert not xq

    def block(i):
        u, k = seq[i]
        m = [(lambda j=j: g.mfma(acc2(j, u), TS[10 + k] + j * 4, bq(i), acc2(j, u))) for j in range(8)]
        f = m[0]
        m[0] = lambda: (g.wait_lg("C%d" % i), f(), run(brd(i + 6)))
        return m
    for k in range(6):
        if STAMP == 3:
            stamp(g)
        main = block(2 * k) + block(2 * k + 1)
        if k < 5:
            fill = take(8) + conv(11 + k, TS[11 + k])
            merge(main[:15], fill)
            main[15]()
        else:
            run(main[:8])
            merge(main[8:], tail(0)[:20])
    carry = TL0[20:] + tail(1)
    for n in range(2, 6):
        if STAMP == 3:
            stamp(g)
        main = []
        for k in range(6):
            main += block(12 + (n - 2) * 6 + k)
        fl = E("FL", 48) if n > 2 else 48
        merge(main[:fl], carry)
        run(main[fl:])
        carry = tail(n)
    assert not pend
    if ST2 == 1:
        HOOK["s1"]()
    run(carry)
    if ST2 == 2:
        HOOK["s1"]()


TL0 = []


def run(ops):
    for o in ops:
        o()


def prologue():
    g = Gen()
    g.s("s_cmp_ge_u32 s2, 256")
    g.s("s_cbranch_scc1 k_end")
    if STAMP:
        g.s("%s %s" % (os.environ.get("CLK", "s_memrealtime"), sr(S_ST, 2)))
    if E("CPF", 2):
        g.s("s_getpc_b64 %s" % sr(SRD_OUT, 2))
        g.label("pc_here")
        if E("CPF", 2) == 1:
            g.s("s_bfe_u32 %s, s2, 0x30003" % sr(S_T))
            g.s("s_lshl_b32 %s, %s, 15" % (sr(S_T), sr(S_T)))
        else:
            g.s("s_lshr_b32 %s, s2, 3" % sr(S_T))
            g.s("s_lshl_b32 %s, %s, 12" % (sr(S_T), sr(S_T)))
            g.valu("v_cmp_gt_u32 vcc, 32, v0", src=[0])
        g.s("s_and_b32 %s, %s, 0xffff" % (sr(SRD_OUT + 1), sr(SRD_OUT + 1)))
        g.s("s_mov_b32 %s, code_end-pc_here" % sr(SRD_OUT + 2))
        g.s("s_mov_b32 %s, 0x00020000" % sr(SRD_OUT + 3))
        vop(g, "v_lshlrev_b32 %s, 7, v0" % vr(TQ + 4), TQ + 4, [0])
        if E("CPF", 2) != 1:
            vop(g, "v_cndmask_b32 %s, -1, %s, vcc" % (vr(TQ + 4), vr(TQ + 4)), TQ + 4, [TQ + 4])
        g.vload("buffer_load_dword %s, %s, %s, %s offen" % (vr(TQ + 4), vr(TQ + 4), sr(SRD_OUT, 4), sr(S_T)), "CPF", dst=[TQ + 4], addr=[TQ + 4])
    g.s("s_bfe_u32 %s, s2, 0x10002" % sr(S_BLK))
    if E("BSW", 2) == 1:
        g.s("s_xor_b32 %s, %s, 1" % (sr(S_BLK), sr(S_BLK)))
    if E("BSW", 2) == 2:
        g.s("s_and_b32 %s, s2, 1" % sr(S_BLK))
    if E("BSW", 2) == 4:
        g.s("s_bfe_u32 %s, s2, 0x10003" % sr(S_BLK))
    if E("BSW", 2) == 3:
        g.s("s_bfe_u32 %s, s2, 0x10001" % sr(S_BLK))
    g.s("s_mul_i32 s16, %s, 40" % sr(S_BLK))
    g.s("s_add_u32 s18, s0, s16")
    g.s("s_addc_u32 s19, s1, 0")
    g.s("s_load_dwordx8 s[8:15], s[18:19], 0")
    g.s("s_load_dwordx2 s[16:17], s[18:19], 32")
    g.s("s_load_dwordx4 s[4:7], s[0:1], 80")
    g.s("s_load_dwordx2 s[18:19], s[0:1], 96")
    LN, Q, G, R8, C8, T1, T2 = 130, 131, 132, 133, 134, 135, 136
    vop(g, "v_lshrrev_b32 %s, 6, v0" % vr(T1), T1, [0])
    vop(g, "v_and_b32 %s, 63, v0" % vr(LN), LN, [0])
    g.valu("v_readfirstlane_b32 s3, %s" % vr(T1), src=[T1], readlane=True, sdst=[3])
    if E("BSW", 2) == 2:
        g.s("s_and_b32 %s, s2, 6" % sr(S_HG))
    elif E("BSW", 2) == 3:
        g.s("s_and_b32 %s, s2, 1" % sr(S_HG))
        g.s("s_lshl_b32 %s, %s, 1" % (sr(S_HG), sr(S_HG)))
        g.s("s_and_b32 %s, s2, 4" % sr(S_T))
        g.s("s_add_u32 %s, %s, %s" % (sr(S_HG), sr(S_HG), sr(S_T)))
    else:
        g.s("s_and_b32 %s, s2, 3" % sr(S_HG))
        g.s("s_lshl_b32 %s, %s, 1" % (sr(S_HG), sr(S_HG)))
    g.s("s_bfe_u32 %s, s2, 0x10003" % sr(S_T))
    g.s("s_add_u32 %s, %s, %s" % (sr(S_HG), sr(S_HG), sr(S_T)))
    if E("BSW", 2) == 4:
        g.s("s_and_b32 %s, s2, 7" % sr(S_HG))
    g.s("s_lshr_b32 %s, s2, 4" % sr(S_B))
    if MAP:
        g.s("s_bfe_u32 %s, s2, 0x30003" % sr(S_HG))
        g.s("s_and_b32 %s, s2, 3" % sr(S_B))
        g.s("s_lshl_b32 %s, %s, 2" % (sr(S_B), sr(S_B)))
        g.s("s_lshr_b32 %s, s2, 6" % sr(S_T))
        g.s("s_add_u32 %s, %s, %s" % (sr(S_B), sr(S_B), sr(S_T)))
    g.s("s_lshl_b32 %s, %s, 4" % (sr(S_GRP), sr(S_BLK)))
    g.s("s_add_u32 %s, %s, %s" % (sr(S_GRP), sr(S_GRP), sr(S_B)))
    vop(g, "v_and_b32 %s, 15, %s" % (vr(Q), vr(LN)), Q, [LN])
    vop(g, "v_lshrrev_b32 %s, 4, %s" % (vr(G), vr(LN)), G, [LN])
    vop(g, "v_lshrrev_b32 %s, 3, %s" % (vr(R8), vr(LN)), R8, [LN])
    vop(g, "v_and_b32 %s, 7, %s" % (vr(C8), vr(LN)), C8, [LN])
    vop(g, "v_lshlrev_b32 %s, 4, %s" % (vr(L16), vr(LN)), L16, [LN])
    vop(g, "v_add_u32 %s, %d, %s" % (vr(L16H), L_V, vr(L16)), L16H, [L16])
    for e in range(1, 8):
        g.s("s_mov_b32 %s, %d" % (sr(SE + e), e * 8192))
    g.s("s_mov_b32 %s, 0x05040100" % sr(S_PLO))
    g.s("s_mov_b32 %s, 0x07060302" % sr(S_PHI))
    g.s("s_mov_b32 %s, 0x3e0293ee" % sr(S_C))
    g.s("s_cmp_eq_u32 s3, 0")
    g.s("s_cselect_b32 %s, 1, 0" % sr(S_W0))
    g.s("s_mov_b32 %s, 0" % sr(S_W0 + 1))
    g.s("s_lshl_b32 %s, %s, 5" % (sr(S_T), sr(S_B)))
    g.s("s_lshl_b32 %s, %s, 2" % (sr(S_T + 1), sr(S_HG)))
    g.s("s_add_u32 %s, %s, %s" % (sr(S_T), sr(S_T), sr(S_T + 1)))
    g.s("s_add_u32 %s, %s, s3" % (sr(S_T), sr(S_T)))
    g.s("s_mul_i32 %s, %s, 24576" % (sr(S_BH), sr(S_T)))
    g.s("s_lshl_b32 %s, s3, 14" % sr(S_T))
    g.s("s_add_u32 %s, %s, %d" % (sr(S_VL), sr(S_T), L_V))

    vop(g, "v_lshrrev_b32 %s, 1, %s" % (vr(T1), vr(R8)), T1, [R8])
    vop(g, "v_xor_b32 %s, %s, %s" % (vr(T1), vr(T1), vr(C8)), T1, [T1, C8])
    g.s("s_mul_i32 %s, %s, 98304" % (sr(S_T + 2), sr(S_B)))
    for t in range(3):
        g.s("s_mul_i32 %s, s3, 3" % sr(S_T))
        g.s("s_add_u32 %s, %s, %d" % (sr(S_T), sr(S_T), t))
        g.s("s_lshl_b32 %s, %s, 10" % (sr(S_XM + t), sr(S_T)))
        g.s("s_lshl_b32 %s, %s, 13" % (sr(S_T + 1), sr(S_T)))
        g.s("s_add_u32 %s, %s, %s" % (sr(S_XS + t), sr(S_T + 1), sr(S_T + 2)))
        g.s("s_and_b32 %s, %s, 1" % (sr(S_T), sr(S_T)))
        g.s("s_lshl_b32 %s, %s, 2" % (sr(S_T), sr(S_T)))
        vop(g, "v_xor_b32 %s, %s, %s" % (vr(T2), sr(S_T), vr(T1)), T2, [T1])
        vop(g, "v_lshlrev_b32 %s, 4, %s" % (vr(T2), vr(T2)), T2, [T2])
        vop(g, "v_lshl_add_u32 %s, %s, 10, %s" % (vr(XA + t), vr(R8), vr(T2)), XA + t, [R8, T2])
    PI = 140
    PI = Q
    g.s("s_lshl_b32 %s, %s, 10" % (sr(S_T), sr(S_HG)))
    g.s("s_lshl_b32 %s, s3, 8" % sr(S_T + 1))
    g.s("s_add_u32 %s, %s, %s" % (sr(S_T), sr(S_T), sr(S_T + 1)))
    vop(g, "v_lshlrev_b32 %s, 4, %s" % (vr(T1), vr(PI)), T1, [PI])
    vop(g, "v_lshl_add_u32 %s, %s, 16, %s" % (vr(T2), vr(G), vr(T1)), T2, [G, T1])
    if ROT:
        if ROT == 1:
            g.s("s_mov_b32 %s, %s" % (sr(S_XR + 2), sr(S_B)))
        else:
            g.s("s_and_b32 %s, s2, 8" % sr(S_XR + 2))
            if E("RB", 3) != 3:
                g.s("s_bfe_u32 %s, s2, 0x%x" % (sr(S_XR + 2), 0x10000 + E("RB", 3)))
                g.s("s_lshl_b32 %s, %s, 3" % (sr(S_XR + 2), sr(S_XR + 2)))
        g.s("s_lshl_b32 %s, %s, 18" % (sr(S_WI), sr(S_XR + 2)))
        g.s("s_add_u32 %s, %s, %s" % (sr(S_T), sr(S_T), sr(S_WI)))
        g.s("s_and_b32 %s, %s, 14" % (sr(S_XR), sr(S_XR + 2)))
        g.s("s_lshl_b32 %s, %s, 6" % (sr(S_XR), sr(S_XR)))
        g.s("s_and_b32 %s, %s, 1" % (sr(S_XR + 1), sr(S_XR + 2)))
        g.s("s_lshl_b32 %s, %s, 6" % (sr(S_XR + 1), sr(S_XR + 1)))
        g.s("s_cmp_eq_u32 %s, 0" % sr(S_XR + 1))
        g.s("s_cselect_b32 %s, 0x40000, 0xc0000" % sr(S_WI) if False else "s_mov_b32 %s, 0xc0000" % sr(S_WI))
        g.s("s_cmov_b32 %s, 0x40000" % sr(S_WI))
        g.s("s_mov_b32 %s, 0xfffc0000" % sr(S_WI + 1))
        g.s("s_cmov_b32 %s, 0x40000" % sr(S_WI + 1))
    vop(g, "v_add_u32 %s, %s, %s" % (vr(VW), sr(S_T), vr(T2)), VW, [T2])
    g.s("s_lshl_b32 %s, %s, 19" % (sr(S_T), sr(S_HG)))
    g.s("s_add_u32 %s, %s, %s" % (sr(S_T), sr(S_T), sr(S_T + 1)))
    vop(g, "v_and_b32 %s, 1, %s" % (vr(T2), vr(G)), T2, [G])
    vop(g, "v_lshl_add_u32 %s, %s, 12, %s" % (vr(T1), vr(T2), vr(T1)), T1, [T2, T1])
    vop(g, "v_lshrrev_b32 %s, 1, %s" % (vr(T2), vr(G)), T2, [G])
    vop(g, "v_lshl_add_u32 %s, %s, 16, %s" % (vr(T2), vr(T2), vr(T1)), T2, [T2, T1])
    vop(g, "v_add_u32 %s, %s, %s" % (vr(VWO), sr(S_T), vr(T2)), VWO, [T2])
    vop(g, "v_xor_b32 %s, %s, %s" % (vr(T1), vr(Q), vr(G)), T1, [Q, G])
    vop(g, "v_lshlrev_b32 %s, 4, %s" % (vr(T1), vr(T1)), T1, [T1])
    vop(g, "v_lshl_add_u32 %s, %s, 8, %s" % (vr(VKD), vr(G), vr(T1)), VKD, [G, T1])
    vop(g, "v_lshlrev_b32 %s, 2, %s" % (vr(T1), vr(G)), T1, [G])
    vop(g, "v_xor_b32 %s, %s, %s" % (vr(T1), vr(T1), vr(Q)), T1, [T1, Q])
    vop(g, "v_lshlrev_b32 %s, 4, %s" % (vr(T1), vr(T1)), T1, [T1])
    vop(g, "v_lshl_add_u32 %s, %s, 8, %s" % (vr(VKR), vr(Q), vr(T1)), VKR, [Q, T1])
    vop(g, "v_add_u32 %s, %s, %s" % (vr(VKR), sr(S_VL), vr(VKR)), VKR, [VKR])
    for m in range(1, 4):
        vop(g, "v_xor_b32 %s, %d, %s" % (vr(VKD + m), m * 64, vr(VKD)), VKD + m, [VKD])
        vop(g, "v_xor_b32 %s, %d, %s" % (vr(VKR + m), m * 16, vr(VKR)), VKR + m, [VKR])
    vop(g, "v_mov_b32 %s, %s" % (vr(VV), vr(VKD)), VV, [VKD])
    vop(g, "v_mov_b32 %s, %s" % (vr(VK), vr(VKD + 1)), VK, [VKD + 1])
    vop(g, "v_lshrrev_b32 %s, 1, %s" % (vr(T1), vr(Q)), T1, [Q])
    vop(g, "v_xor_b32 %s, %s, %s" % (vr(T1), vr(T1), vr(G)), T1, [T1, G])
    vop(g, "v_lshlrev_b32 %s, 7, %s" % (vr(T2), vr(Q)), T2, [Q])
    vop(g, "v_lshl_add_u32 %s, %s, 4, %s" % (vr(XB), vr(T1), vr(T2)), XB, [T1, T2])
    if ROT:
        vop(g, "v_xor_b32 %s, %s, %s" % (vr(XB), sr(S_XR + 1), vr(XB)), XB, [XB])
    vop(g, "v_xor_b32 %s, 64, %s" % (vr(XB + 1), vr(XB)), XB + 1, [XB])
    vop(g, "v_add_u32 %s, 0xc000, %s" % (vr(XB + 2), vr(XB)), XB + 2, [XB])
    vop(g, "v_add_u32 %s, 0xc000, %s" % (vr(XB + 3), vr(XB + 1)), XB + 3, [XB + 1])
    vop(g, "v_add_u32 %s, %s, %s" % (vr(VOW), sr(S_VL), vr(L16)), VOW, [L16])
    if MAP:
        g.s("s_and_b32 %s, %s, 3" % (sr(S_T), sr(S_B)))
        g.s("s_lshl_b32 %s, %s, 2" % (sr(S_T), sr(S_T)))
    else:
        g.s("s_lshl_b32 %s, %s, 2" % (sr(S_T), sr(S_B)))
    g.s("s_add_u32 %s, %s, s3" % (sr(S_T), sr(S_T)))
    g.s("s_lshl_b32 %s, %s, 16" % (sr(S_T), sr(S_T)))
    g.s("s_lshl_b32 %s, %s, 10" % (sr(S_T + 1), sr(S_HG)))
    g.s("s_add_u32 %s, %s, %s" % (sr(S_T), sr(S_T), sr(S_T + 1)))
    vop(g, "v_lshlrev_b32 %s, 7, %s" % (vr(T1), vr(C8)), T1, [C8])
    vop(g, "v_lshl_add_u32 %s, %s, 13, %s" % (vr(T1), vr(R8), vr(T1)), T1, [R8, T1])
    vop(g, "v_add_u32 %s, %s, %s" % (vr(WTA), sr(S_T), vr(T1)), WTA, [T1])
    g.waitcnt(lg=0)
    make_srd(g, SRD_X, 8, 1572864)
    make_srd(g, SRD_K, 10, 12582912)
    make_srd(g, SRD_V, 12, 12582912)
    make_srd(g, SRD_W, 14, 4194304)
    make_srd(g, SRD_WO, 16, 4194304)
    make_srd(g, SRD_OUT, 4, 16 * 96 * 1024 * 2)
    make_srd(g, SRD_DBG, 6, 256)
    make_srd(g, SRD_WS, 18, WS_BYTES)
    g.s("s_lshl_b32 %s, s3, 13" % sr(S_K2))
    g.s("s_sub_u32 %s, %s, %s" % (sr(S_KD), sr(S_VL), sr(S_K2)))
    g.s("s_lshl_b32 %s, %s, 1" % (sr(S_T), sr(S_B)))
    g.s("s_lshr_b32 %s, s3, 1" % sr(S_T + 1))
    g.s("s_add_u32 %s, %s, %s" % (sr(S_T), sr(S_T), sr(S_T + 1)))
    g.s("s_lshl_b32 %s, %s, 13" % (sr(S_T), sr(S_T)))
    g.s("s_lshl_b32 %s, %s, 10" % (sr(S_T + 1), sr(S_HG)))
    g.s("s_add_u32 %s, %s, %s" % (sr(S_T), sr(S_T), sr(S_T + 1)))
    g.s("s_and_b32 %s, s3, 1" % sr(S_T + 1))
    g.s("s_lshl_b32 %s, %s, 9" % (sr(S_T + 1), sr(S_T + 1)))
    g.s("s_add_u32 %s, %s, %s" % (sr(S_T), sr(S_T), sr(S_T + 1)))
    g.s("s_add_u32 %s, s14, %s" % (sr(S_TB), sr(S_T)))
    g.s("s_addc_u32 %s, s15, 0" % sr(S_TB + 1))
    stamp(g, have=True)
    return g


def tok_ops(g, tok):
    ops = []
    if tok[0] == 'x':
        sp = int(tok[1:])
        for t in range(3):
            if ROT:
                ops.append(lambda t=t: g.s("s_add_u32 %s, %s, %d" % (sr(S_T), sr(S_XR), sp * 128)))
                ops.append(lambda t=t: g.s("s_and_b32 %s, %s, 0x3ff" % (sr(S_T), sr(S_T))))
                ops.append(lambda t=t: g.s("s_add_u32 %s, %s, %s" % (sr(S_T), sr(S_T), sr(S_XS + t))))
            else:
                ops.append(lambda t=t: g.s("s_add_u32 %s, %s, %d" % (sr(S_T), sr(S_XS + t), sp * 128)))
            ops.append(lambda t=t: g.s("s_add_u32 m0, %s, %d" % (sr(S_XM + t), sp * 12288), m0=True))
            ops.append(lambda t=t: g.vload("buffer_load_dwordx4 %s, %s, %s offen lds" % (vr(XA + t), sr(SRD_X, 4), sr(S_T)), "X%d" % sp, addr=[XA + t], lds=True))
    elif tok[0] == 'w':
        ops += w1_loads(g)(int(tok[1:]))
    elif tok == 't':
        ops.append(lambda: g.vload("buffer_load_dword %s, %s, %s, 0 offen" % (vr(TQ + 3), vr(WTA), sr(SRD_W, 4)), "TCH", dst=[TQ + 3], addr=[WTA]))
        for k in range(3 if MAP else 0):
            ops.append(lambda: vop(g, "v_add_u32 %s, 0x100000, %s" % (vr(WTA), vr(WTA)), WTA, [WTA]))
            ops.append(lambda: g.vload("buffer_load_dword %s, %s, %s, 0 offen" % (vr(TQ + 3), vr(WTA), sr(SRD_W, 4)), "TCH", dst=[TQ + 3], addr=[WTA]))
    elif tok[0] == 's':
        st = int(tok[1:])
        ops.append(lambda: g.s("s_mov_b32 %s, %d" % (sr(S_T + 2), st * 262144)))
        for l in range(8 if SM2 else 4):
            def sm(l=l):
                g.s("s_load_dword %s, %s, %s offset:%d" % (sr(S_JUNK), sr(S_TB, 2), sr(S_T + 2), l * (64 if SM2 else 128)))
                g.lgq.append("SM")
            ops.append(sm)
    elif tok == 'T':
        ops += wo_touch(g)
    elif tok == 'Y':
        for srd, so in ((SRD_WS, S_XS + 1), (SRD_WS, S_PB), (SRD_WS, S_PB + 1), (SRD_WS, S_XS + 2), (SRD_OUT, S_OB)):
            ops.append(lambda srd=srd, so=so: g.vload("buffer_load_dword %s, off, %s, %s" % (vr(VW), sr(srd, 4), sr(so)), "TCH", dst=[VW]))
    elif tok[0] == 'Z':
        t = int(tok[1])
        if t == 0:
            for k in range(4):
                ops.append(lambda k=k: vop(g, "v_mov_b32 %s, -1" % vr(ZQ + k), ZQ + k))
        for h in range(2):
            for i in range(4):
                ops.append(lambda h=h, i=i: g.s("s_add_u32 %s, %s, %d" % (sr(S_T + 6), sr(S_PB + h), (i * 3 + t) * 1024)))
                o = lambda: g.vstore("buffer_store_dwordx4 %s, %s, %s, %s offen sc1" % (vr(ZQ, 4), vr(L16), sr(SRD_WS, 4), sr(S_T + 6)),
                                     "POI", data=rng(ZQ, 4), addr=[L16])
                o.is_load = True
                ops.append(o)
    elif tok[0] == 'K':
        ops += k_dma(g, int(tok[1]), int(tok[3]))
    elif tok[0] == 'R':
        ops += k_read(g, int(tok[1]), int(tok[3]))
    elif tok[0] == 'V' and len(tok) == 4:
        assert VL[int(tok[1])] == int(tok[3])
        ops += v_dma(g, int(tok[1]), int(tok[3]))
    elif tok[0] == 'V':
        vl = v_loads(g, int(tok[1]))
        ops += vl if len(tok) == 2 else vl[:5] if tok[2] == 'a' else vl[5:]
    else:
        raise ValueError(tok)
    return mark(ops)


def part1(g, cl):
    for tok in cl["P"]:
        run(tok_ops(g, tok))
    g.wait_vm(["X%d" % k for k in range(XBAR[0] + 1)])
    g.barrier()
    stamp(g)
    run(b1_reads(g)(0))

    def tail(u):
        return q_conv(g, u) if u < 2 else []
    assert max(XBAR) >= 6
    pend, rest = gemm1(g, cl, b1_reads(g), tail)
    run(pend)
    stamp(g)
    g.s("s_lshl_b32 %s, s3, 13" % sr(S_T))
    vop(g, "v_add_u32 %s, %s, %s" % (vr(VOW2), sr(S_T), vr(L16)), VOW2, [L16])
    run(rest)
    stamp(g)
    g.nop(8)


S_FS, S_OB = 69, 93


def job_setup(g, A):
    A(lambda: g.s("s_lshl_b32 %s, %s, 2" % (sr(S_T), sr(S_GRP))))
    A(lambda: g.s("s_lshr_b32 %s, %s, 1" % (sr(S_T + 1), sr(S_RO))))
    A(lambda: g.s("s_add_u32 %s, %s, %s" % (sr(S_T + 1), sr(S_T + 1), sr(S_T))))
    A(lambda: g.s("s_lshl_b32 %s, %s, 7" % (sr(S_T + 1), sr(S_T + 1))))
    A(lambda: g.s("s_add_u32 %s, %s, %d" % (sr(S_XS + 1), sr(S_T + 1), FLG)))
    A(lambda: g.s("s_lshl_b32 %s, %s, 3" % (sr(S_T), sr(S_GRP))))
    A(lambda: g.s("s_add_u32 %s, %s, %s" % (sr(S_T), sr(S_T), sr(S_RO))))
    A(lambda: g.s("s_mul_i32 %s, %s, 96" % (sr(S_T), sr(S_T))))
    A(lambda: g.s("s_mul_i32 %s, %s, 3" % (sr(S_T + 1), sr(S_RR))))
    A(lambda: g.s("s_add_u32 %s, %s, %s" % (sr(S_T), sr(S_T), sr(S_T + 1))))
    A(lambda: g.s("s_lshl_b32 %s, %s, 10" % (sr(S_XS + 2), sr(S_T))))
    A(lambda: g.s("s_mul_i32 %s, %s, %d" % (sr(S_OB), sr(S_B), 96 * 2048)))
    A(lambda: g.s("s_lshl_b32 %s, %s, 10" % (sr(S_T), sr(S_BLK))))
    A(lambda: g.s("s_add_u32 %s, %s, %s" % (sr(S_OB), sr(S_OB), sr(S_T))))
    A(lambda: g.s("s_lshr_b32 %s, %s, 1" % (sr(S_T), sr(S_RO))))
    A(lambda: g.s("s_lshl_b32 %s, %s, 8" % (sr(S_T), sr(S_T))))
    A(lambda: g.s("s_add_u32 %s, %s, %s" % (sr(S_OB), sr(S_OB), sr(S_T))))
    if OC == 3:
        A(lambda: g.s("s_and_b32 %s, %s, 1" % (sr(S_T), sr(S_RR))))
        A(lambda: g.s("s_lshl_b32 %s, %s, 14" % (sr(S_T), sr(S_T))))
        A(lambda: g.s("s_add_u32 %s, %s, %s" % (sr(S_OB), sr(S_OB), sr(S_T))))
        A(lambda: g.s("s_and_b32 %s, %s, 2" % (sr(S_T), sr(S_RR))))
        A(lambda: g.s("s_lshl_b32 %s, %s, 6" % (sr(S_T), sr(S_T))))
    else:
        A(lambda: g.s("s_lshl_b32 %s, %s, %d" % (sr(S_T), sr(S_RR), 6 if OC else 4)))
    A(lambda: g.s("s_add_u32 %s, %s, %s" % (sr(S_OB), sr(S_OB), sr(S_T))))
    A(lambda: g.s("s_and_b32 %s, %s, 1" % (sr(S_T), sr(S_RO))))
    A(lambda: g.s("s_lshl_b32 %s, %s, 15" % (sr(S_T), sr(S_T))))
    A(lambda: g.s("s_add_u32 %s, %s, %s" % (sr(S_OB), sr(S_OB), sr(S_T))))


def part2(g):
    g.s("s_memrealtime %s" % sr(S_T + 4, 2))
    NV = 238
    g.s("s_lshl_b32 %s, %s, 2" % (sr(S_T + 3), sr(S_GRP)))
    lq = list(g.lgq)
    g.waitcnt(lg=0)
    g.lgq = []
    dfr = []
    D = dfr.append if QH & 2 else (lambda o: o())
    D(lambda: g.s("s_or_b32 %s, %s, 1" % (sr(S_NONCE), sr(S_T + 4))))
    D(lambda: vop(g, "v_mov_b32 %s, %s" % (vr(NV), sr(S_NONCE)), NV))
    D(lambda: vop(g, "v_mov_b32 %s, 0" % vr(NV + 1), NV + 1))
    NP = E("NP", 0)

    def _cas():
        if NP:
            g.s("s_lshl_b32 %s, %s, 2" % (sr(S_T + 3), sr(S_GRP)))
        g.s("s_mov_b64 exec, %s" % sr(S_W0, 2))
        g.vload("buffer_atomic_cmpswap %s, off, %s, %s sc0 sc1" % (vr(NV, 2), sr(SRD_DBG, 4), sr(S_T + 3)), "NONCE", dst=[NV], addr=[NV, NV + 1])
        g.s("s_mov_b64 exec, -1")
    if not NP:
        D(_cas)
    D(lambda: g.s("s_lshl_b32 %s, %s, 3" % (sr(S_PB), sr(S_GRP))))
    D(lambda: g.s("s_lshl_b32 %s, s3, 1" % sr(S_PB + 1)))
    D(lambda: g.s("s_add_u32 %s, %s, %s" % (sr(S_PB), sr(S_PB), sr(S_PB + 1))))
    D(lambda: g.s("s_lshl_b32 %s, %s, 3" % (sr(S_PB), sr(S_PB))))
    D(lambda: g.s("s_add_u32 %s, %s, %s" % (sr(S_PB), sr(S_PB), sr(S_HG))))
    D(lambda: g.s("s_mul_i32 %s, %s, 12288" % (sr(S_PB), sr(S_PB))))
    D(lambda: g.s("s_add_u32 %s, %s, %d" % (sr(S_PB + 1), sr(S_PB), 8 * 12288)))
    D(lambda: g.s("s_lshl_b32 %s, %s, 2" % (sr(S_XS), sr(S_GRP))))
    D(lambda: g.s("s_add_u32 %s, %s, s3" % (sr(S_XS), sr(S_XS))))
    D(lambda: g.s("s_lshl_b32 %s, %s, 7" % (sr(S_XS), sr(S_XS))))
    D(lambda: g.s("s_add_u32 %s, %s, %d" % (sr(S_XS), sr(S_XS), FLG)))
    D(lambda: g.s("s_lshl_b32 %s, %s, 3" % (sr(S_FS), sr(S_HG))))
    D(lambda: g.s("s_add_u32 %s, %s, %s" % (sr(S_FS), sr(S_FS), sr(S_XS))))
    D(lambda: g.s("s_mov_b32 %s, %s" % (sr(S_RO), sr(S_HG))))
    D(lambda: g.s("s_mov_b32 %s, s3" % sr(S_RR)))
    job_setup(g, D)
    for k in range(4):
        D(lambda k=k: vop(g, "v_mov_b32 %s, 0x3f803f80" % vr(ONES + k), ONES + k))

    def vt(pp, j):
        return KF + (pp * 8 + j) * 4
    VA = 0

    def tr_addr():
        ops = []
        V = lambda text, d, src=(): ops.append(lambda: vop(g, text, d, src))
        a, b = VA + 8, VA + 9
        V("v_lshrrev_b32 %s, 6, %s" % (vr(a), vr(L16)), a, [L16])
        V("v_and_b32 %s, 7, %s" % (vr(b), vr(a)), b, [a])
        V("v_lshlrev_b32 %s, 4, %s" % (vr(b), vr(b)), b, [b])
        V("v_lshl_add_u32 %s, %s, 8, %s" % (vr(VA), vr(a), vr(b)), VA, [a, b])
        V("v_and_b32 %s, 32, %s" % (vr(a), vr(L16)), a, [L16])
        V("v_lshl_add_u32 %s, %s, 2, %s" % (vr(VA), vr(a), vr(VA)), VA, [a, VA])
        V("v_and_b32 %s, 16, %s" % (vr(a), vr(L16)), a, [L16])
        V("v_lshrrev_b32 %s, 1, %s" % (vr(a), vr(a)), a, [a])
        V("v_add_u32 %s, %s, %s" % (vr(VA), vr(a), vr(VA)), VA, [a, VA])
        V("v_add_u32 %s, %s, %s" % (vr(VA + 8), sr(S_K2), vr(VA)), VA + 8, [VA])
        V("v_add_u32 %s, %s, %s" % (vr(VA), sr(S_VL), vr(VA)), VA, [VA])
        for j in range(1, 8):
            V("v_xor_b32 %s, %d, %s" % (vr(VA + j), j * 16, vr(VA)), VA + j, [VA])
            V("v_xor_b32 %s, %d, %s" % (vr(VA + 8 + j), j * 16, vr(VA + 8)), VA + 8 + j, [VA + 8])
        return ops

    def tr_reads(pp, js):
        ops = []
        for j in js:
            for h in range(2):
                d = vt(pp, j) + 2 * h
                a, off = (VA + j, VL[pp] * 8192 + h * 4096) if VL[pp] < 2 else (VA + 8 + j, L_V2 + h * 4096)
                ops.append(lambda d=d, a=a, off=off: g.dsread("ds_read_b64_tr_b16 %s, %s offset:%d" % (vr(d, 2), vr(a), off), "V%d" % pp, dst=rng(d, 2), addr=[a]))
        return ops
    OAC = [16 + 0, 96, 64, 96, 64, 96]

    def oacc(u, j):
        return OAC[u] + j * 4

    def pv_main(u, pmajor=False):
        ix = [(pp, j) for pp in range(3) for j in range(8)] if pmajor else [(pp, j) for j in range(8) for pp in range(3)]
        return [(lambda pp=pp, j=j: g.mfma(oacc(u, j), vt(pp, j), pfrag(u, pp), None if pp == 0 else oacc(u, j))) for pp, j in ix]

    def o_conv(u):
        ops = []
        r = TQ + 2
        ops.append(lambda: g.valu("v_accvgpr_read_b32 %s, %s" % (vr(r), vr(psum(u))), dst=[r], src=[psum(u)]))
        ops.append(lambda: g.valu("v_rcp_f32 %s, %s" % (vr(r), vr(r)), dst=[r], src=[r], trans=True))
        for i in range(4):
            d = PT_O + (i % 2) * 4
            for k in range(8):
                a = oacc(u, 2 * i) + k
                ops.append(lambda a=a: g.valu("v_mul_f32 %s, %s, %s" % (vr(a), vr(a), vr(r)), dst=[a], src=[a, r]))
            for m in range(4):
                a = oacc(u, 2 * i) + 2 * m
                ops.append(lambda d=d + m, a=a: g.valu("v_cvt_pk_bf16_f32 %s, %s, %s" % (vr(d), vr(a), vr(a + 1)), dst=[d], src=[a, a + 1]))
            n = i * 6 + u
            a, off = (VOW, n * 1024) if n < 16 else (VOW2, (n - 16) * 1024)
            ops.append(lambda d=d, a=a, off=off: g.dswrite("ds_write_b128 %s, %s offset:%d" % (vr(a), vr(d, 4), off), "OW", data=rng(d, 4), addr=[a]))
            if E("EXP3", 0):
                fl = ["", "", " sc1", " nt", " sc0"][E("EXP3", 0)]
                ops.append(lambda n=n: g.s("s_add_u32 %s, s7, %d" % (sr(S_T + 6), n * 1024)))
                ops.append(lambda d=d, fl=fl: g.vstore("buffer_store_dwordx4 %s, %s, %s, %s offen%s" % (vr(d, 4), vr(L16), sr(SRD_WS, 4), sr(S_T + 6), fl), "OS", data=rng(d, 4), addr=[L16]))
        return ops
    if E("EXP3", 0):
        g.s("s_lshl_b32 s7, s2, 2")
        g.s("s_add_u32 s7, s7, s3")
        g.s("s_mul_i32 s7, s7, 24576")
        g.s("s_add_u32 s7, s7, %d" % (32 * 1024 * 1024))
    PT_O = 228
    wl2 = w2_loads(g)

    def spread(fill, pre):
        if not pre:
            return fill
        k = max(1, len(fill) // len(pre))
        nf = []
        for i, f in enumerate(fill):
            if i % k == 0 and pre:
                nf.append(pre.pop(0))
            nf.append(f)
        return nf + pre
    for u in range(6):
        main = [(lambda kt=kt, i=i, u=u: g.mfma(sacc(u, kt), KF + (kt * 4 + i) * 4, qbuf(u) + i * 4, None if i == 0 else sacc(u, kt)))
                for kt in range(6) for i in range(4)]
        fill = []
        if u >= 1:
            fill += softmax_ops(g, u - 1)
        if QH & 1:
            if u + 2 <= 5:
                fill += q_conv(g, u + 2)
        elif 2 <= u + 1 <= 5:
            fill += q_conv(g, u + 1)
        if u == 4:
            fill += tr_addr()
        pre = []
        for tok in POST.get(u, []):
            pre += tok_ops(g, tok)
        if u == 0:
            pre = (dfr[:4] + pre + dfr[4:]) if E("QO", 0) == 0 else (pre + dfr)
        if NP and u == NP:
            pre = pre + [_cas]
        fill = spread(fill, pre)
        if STAMP == 4 and u > 0:
            stamp(g)
        if u < 5:
            merge(main, fill)
        else:
            n3 = (len(fill) + 2) // 3
            merge(main[:8], fill[:n3])
            if STAMP == 4:
                stamp(g)
            g.wait_vm(["VD"])
            if STAMP == 4:
                stamp(g)
            merge(main[8:16], spread(fill[n3:2 * n3], tr_reads(0, range(8))))
            merge(main[16:], spread(fill[2 * n3:], tr_reads(1, range(8))))
    stamp(g)
    sm5 = softmax_ops(g, 5)
    pv0 = pv_main(0, True)
    n3 = (len(sm5) + 2) // 3
    run(tr_reads(2, range(4)))
    g.wait_lg("V0")
    merge(pv0[:8], spread(sm5[:n3], tr_reads(2, range(4, 8))))
    g.wait_lg("V1")
    merge(pv0[8:16], sm5[n3:2 * n3])
    g.wait_lg("V2")
    merge(pv0[16:], sm5[2 * n3:])
    stamp(g)
    vop(g, "v_mov_b32 %s, %d" % (vr(TQ + 1), L_MISC), TQ + 1)
    for u in range(1, 6):
        fill = o_conv(u - 1)
        if u == 2:
            fill = spread(fill, wl2(0))
        if u == 3:
            fill = spread(fill, wl2(1))
        merge(pv_main(u), fill)
        if STAMP == 4:
            stamp(g)
    g.wait_vm("NONCE")
    g.valu("v_readfirstlane_b32 %s, %s" % (sr(S_T), vr(NV)), src=[NV], readlane=True, sdst=[S_T])
    g.s("s_cmp_eq_u32 %s, 0" % sr(S_T))
    g.s("s_cselect_b32 %s, %s, %s" % (sr(S_T), sr(S_NONCE), sr(S_T)))
    vop(g, "v_mov_b32 %s, %s" % (vr(TQ), sr(S_T)), TQ)
    g.s("s_mov_b64 exec, %s" % sr(S_W0, 2))
    g.dswrite("ds_write_b32 %s, %s offset:4" % (vr(TQ + 1), vr(TQ)), "OW", data=[TQ], addr=[TQ + 1])
    if SELF:
        g.dswrite("ds_write_b32 %s, %s offset:8" % (vr(TQ + 1), vr(NV + 1)), "OW", data=[NV + 1], addr=[TQ + 1])
    g.s("s_mov_b64 exec, -1")
    run(o_conv(5))
    g.waitcnt(lg=0)
    g.lgq = []
    stamp(g)
    g.barrier()
    stamp(g)
    g.dsread("ds_read_b32 %s, %s offset:4" % (vr(NV), vr(TQ + 1)), "NN", dst=[NV], addr=[TQ + 1])
    run(b2_reads(g)(0))
    g.wait_lg("NN")
    g.valu("v_readfirstlane_b32 %s, %s" % (sr(S_NONCE), vr(NV)), src=[NV], readlane=True, sdst=[S_NONCE])
    cnt = [0]
    AC, VO, VF, F0, PL, PP = 224, 230, 231, 232, 234, 242
    S_CL = S_TYPE

    def tail(n, lds=False):
        u = n
        ops = []
        for i in range(4):
            d = (raw2(15, 0) if UM == 6 and not lds else 96) + (cnt[0] % 8) * 4
            cnt[0] += 1
            for m in range(4):
                a, b = acc2(2 * m, u) + i, acc2(2 * m + 1, u) + i
                t0, t1 = TQ + (m % 2) * 2, TQ + (m % 2) * 2 + 1
                ops.append(lambda t=t0, s=a: g.valu("v_accvgpr_read_b32 %s, %s" % (vr(t), vr(s)), dst=[t], src=[s]))
                ops.append(lambda t=t1, s=b: g.valu("v_accvgpr_read_b32 %s, %s" % (vr(t), vr(s)), dst=[t], src=[s]))
                ops.append(lambda d=d + m, a=t0, b=t1: g.valu("v_cvt_pk_bf16_f32 %s, %s, %s" % (vr(d), vr(a), vr(b)), dst=[d], src=[a, b]))
                if not E("NOFAST", 1):
                    ops.append(lambda d=d + m: g.valu("v_min_u32 %s, -2, %s" % (vr(d), vr(d)), dst=[d], src=[d]))
            p = i * 3 + (n >> 1)
            po = p * 1024
            va = L16
            if OC:
                po = (n >> 1) * 1024 + i * (128 if OC == 3 else 256)
                va = VST
            if (EXP or E("EXP2", 0)) and i >= 2:
                continue
            if not lds:
                ops.append(lambda po=po: g.s("s_add_u32 %s, %s, %d" % (sr(S_T + 6), sr(S_PB + (n & 1)), po)))
            def pst(d=d, po=po, va=va):
                if lds:
                    g.dswrite("ds_write_b128 %s, %s offset:%d" % (vr(va), vr(d, 4), L_SELF + po), "SW", data=rng(d, 4), addr=[va])
                    return
                srd = (SRD_X, SRD_K)[n & 1] if SELF else SRD_WS
                g.vstore("buffer_store_dwordx4 %s, %s, %s, %s offen%s" % (vr(d, 4), vr(va), sr(srd, 4), sr(S_T + 6), DF), "PS%d" % (n >> 1), data=rng(d, 4), addr=[va])
            ops.append(pst)
        if n == 0:
            TL0[:] = ops
        return ops

    def flag_store(soff, tag):
        g.s("s_mov_b64 exec, 1")
        g.vstore("buffer_store_dwordx2 %s, off, %s, %s sc1" % (vr(F0, 2), sr(SRD_WS, 4), sr(soff)), tag, data=[F0, F0 + 1])
        g.s("s_mov_b64 exec, -1")

    G0, FO = 244, 246
    LR = VLD if OC == 2 else L16

    def stage1():
        g.wait_vm("PS1")
        g.s("s_mov_b64 exec, 1")
        g.vstore("buffer_store_dwordx2 %s, off, %s, %s sc1" % (vr(G0, 2), sr(SRD_WS, 4), sr(S_FS)), "FS", data=[G0, G0 + 1])
        if EP:
            g.s("s_mov_b64 exec, 0xffff")
            g.vload("buffer_load_dwordx2 %s, %s, %s, %s offen sc1" % (vr(PL, 2), vr(VF), sr(SRD_WS, 4), sr(S_XS + 1)), "P0", dst=[PL, PL + 1], addr=[VF])
        g.s("s_mov_b64 exec, -1")
    HOOK["s1"] = stage1

    def setup_ops():
        ops = []
        A = ops.append
        A(lambda: g.s("s_xor_b32 %s, %s, 0x%x" % (sr(S_T), sr(S_NONCE), FC)))
        A(lambda: vop(g, "v_mov_b32 %s, %s" % (vr(F0), sr(S_NONCE)), F0))
        A(lambda: vop(g, "v_mov_b32 %s, %s" % (vr(F0 + 1), sr(S_T)), F0 + 1))
        if ST2:
            A(lambda: vop(g, "v_mov_b32 %s, %s" % (vr(G0), sr(S_NONCE)), G0))
            A(lambda: vop(g, "v_xor_b32 %s, 1, %s" % (vr(G0 + 1), vr(F0 + 1)), G0 + 1, [F0 + 1]))
            A(lambda: vop(g, "v_or_b32 %s, 1, %s" % (vr(FO), vr(F0 + 1)), FO, [F0 + 1]))
        LN, Q, G_, X1, X2, X3 = 112, 113, 114, 115, 116, 117
        V = lambda text, d, src=(): A(lambda: vop(g, text, d, src))
        V("v_lshrrev_b32 %s, 4, %s" % (vr(LN), vr(L16)), LN, [L16])
        V("v_and_b32 %s, 15, %s" % (vr(Q), vr(LN)), Q, [LN])
        V("v_lshrrev_b32 %s, 4, %s" % (vr(G_), vr(LN)), G_, [LN])
        V("v_lshrrev_b32 %s, 2, %s" % (vr(X1), vr(Q)), X1, [Q])
        V("v_and_b32 %s, 1, %s" % (vr(X2), vr(Q)), X2, [Q])
        V("v_lshlrev_b32 %s, 4, %s" % (vr(X2), vr(X2)), X2, [X2])
        V("v_mov_b32 %s, 0x3f80" % vr(X3), X3)
        V("v_lshlrev_b32 %s, %s, %s" % (vr(X3), vr(X2), vr(X3)), X3, [X2, X3])
        A(lambda: g.valu("v_cmp_eq_u32 vcc, %s, %s" % (vr(X1), vr(G_)), src=[X1, G_]))
        A(lambda: g.nop(2))
        V("v_cndmask_b32 %s, 0, %s, vcc" % (vr(X3), vr(X3)), X3, [X3])
        V("v_and_b32 %s, 2, %s" % (vr(X2), vr(Q)), X2, [Q])
        A(lambda: g.valu("v_cmp_eq_u32 vcc, 0, %s" % vr(X2), src=[X2]))
        for k in (0, 1, 4, 5):
            V("v_mov_b32 %s, 0" % vr(AC + k), AC + k)
        V("v_cndmask_b32 %s, 0, %s, vcc" % (vr(AC + 2), vr(X3)), AC + 2, [X3])
        V("v_cndmask_b32 %s, %s, 0, vcc" % (vr(AC + 3), vr(X3)), AC + 3, [X3])
        if OC == 3:
            V("v_lshrrev_b32 %s, 3, %s" % (vr(X1), vr(Q)), X1, [Q])
            V("v_and_b32 %s, 2, %s" % (vr(X2), vr(G_)), X2, [G_])
            V("v_add_u32 %s, %s, %s" % (vr(X1), vr(X1), vr(X2)), X1, [X1, X2])
            V("v_mul_u32_u24 %s, 0xc00, %s" % (vr(VST), vr(X1)), VST, [X1])
            V("v_and_b32 %s, 1, %s" % (vr(X2), vr(G_)), X2, [G_])
            V("v_lshl_add_u32 %s, %s, 9, %s" % (vr(VST), vr(X2), vr(VST)), VST, [X2, VST])
            V("v_and_b32 %s, 7, %s" % (vr(Q), vr(LN)), Q, [LN])
            V("v_lshl_add_u32 %s, %s, 4, %s" % (vr(VST), vr(Q), vr(VST)), VST, [Q, VST])
            V("v_lshrrev_b32 %s, 3, %s" % (vr(G_), vr(LN)), G_, [LN])
        elif OC:
            V("v_mul_u32_u24 %s, 0xc00, %s" % (vr(VST), vr(G_)), VST, [G_])
            V("v_lshl_add_u32 %s, %s, 4, %s" % (vr(VST), vr(Q), vr(VST)), VST, [Q, VST])
        if OC == 2:
            V("v_and_b32 %s, 3, %s" % (vr(G_), vr(LN)), G_, [LN])
            V("v_lshrrev_b32 %s, 2, %s" % (vr(Q), vr(LN)), Q, [LN])
            V("v_lshlrev_b32 %s, 8, %s" % (vr(VLD), vr(G_)), VLD, [G_])
            V("v_lshl_add_u32 %s, %s, 4, %s" % (vr(VLD), vr(Q), vr(VLD)), VLD, [Q, VLD])
        V("v_lshlrev_b32 %s, %d, %s" % (vr(VO), 4 if OC else 6, vr(G_)), VO, [G_])
        V("v_lshl_add_u32 %s, %s, 11, %s" % (vr(VO), vr(Q), vr(VO)), VO, [Q, VO])
        V("v_lshrrev_b32 %s, 1, %s" % (vr(VF), vr(L16)), VF, [L16])
        if SELF:
            A(lambda: g.s("s_mul_i32 %s, s3, 3072" % sr(S_T)))
            V("v_add_u32 %s, %s, %s" % (vr(PP), sr(S_T), vr(LR)), PP, [LR])
            V("v_mov_b32 %s, %d" % (vr(PP + 1), L_MISC), PP + 1)

            def masks():
                if EP:
                    g.s("s_mov_b64 %s, %s" % (sr(SRD_V, 2), sr(SRD_WS, 2)))
                for h, srd in enumerate((SRD_X, SRD_K)):
                    g.s("s_mov_b64 %s, %s" % (sr(srd, 2), sr(SRD_WS, 2)))
                    g.s("s_lshl_b32 %s, s3, 1" % sr(S_T))
                    g.s("s_add_u32 %s, %s, %d" % (sr(S_T), sr(S_T), h))
                    g.s("s_cmp_lg_u32 %s, %s" % (sr(S_T), sr(S_HG)))
                    g.s("s_cselect_b32 %s, %s, 0" % (sr(srd + 2), sr(SRD_WS + 2)))
            A(masks)
        A(lambda: g.s("s_mov_b32 %s, 0" % sr(S_PHASE)))
        A(lambda: g.s("s_mov_b32 %s, 0" % sr(S_PEND)))
        A(lambda: g.s("s_mov_b32 %s, 0" % sr(S_CNT)))
        return ops

    def extra(s):
        ops = []
        if EXP and EXS <= s < EXS + 6:
            n = s - EXS
            for i in (2, 3):
                p = i * 3 + (n >> 1)
                def st(p=p, n=n):
                    g.s("s_add_u32 %s, %s, %d" % (sr(S_T + 6), sr(S_PB + (n & 1)), p * 1024))
                    g.vstore("buffer_store_dwordx4 %s, %s, %s, %s offen sc1" % (vr(A0 + 240, 4), vr(L16), sr(SRD_WS, 4), sr(S_T + 6)), "PS", data=rng(A0 + 240, 4), addr=[L16])
                ops.append(st)
        if EXP and s == EXL:
            for k in range(12):
                def ld(k=k):
                    d = A0 + 244 + (k % 3) * 4
                    g.s("s_add_u32 %s, %s, %d" % (sr(S_T), sr(S_XS + 2), (k & 7) * 12288 + (k >> 3) * 1024))
                    g.vload("buffer_load_dwordx4 %s, %s, %s, %s offen sc1" % (vr(d, 4), vr(L16), sr(SRD_WS, 4), sr(S_T)), "RX", dst=rng(d, 4), addr=[L16])
                ops.append(ld)
        if s == 0:
            ops.append(lambda: g.wait_vm("POI"))
            ops += setup_ops()
        if s == PFS and not E("NOFAST", 1):
            def pf():
                g.wait_vm("POI")
                g.s("s_add_u32 %s, %s, %d" % (sr(S_T), sr(S_FS), FLGP - FLG))
                flag_store(S_T, "PF")
            ops.append(pf)
        if s == PPS and not E("NOFAST", 1):
            def pp():
                g.s("s_add_u32 %s, %s, %d" % (sr(S_T), sr(S_XS + 1), FLGP - FLG))
                g.vload("buffer_load_dwordx2 %s, %s, %s, %s offen sc1" % (vr(PP, 2), vr(VF), sr(SRD_WS, 4), sr(S_T)), "PP", dst=[PP, PP + 1], addr=[VF])
            ops.append(pp)
        return ops
    (gemm2u if UM == 6 else gemm2)(g, wl2, b2_reads(g), tail, extra)
    stamp(g)
    LDT = [KF, KF + 32, 0]
    RD = 32
    OQ = 64

    def r_loads(t):
        for src in range(8):
            if EXP and (t == 0 or (t == 1 and src < 4)):
                continue
            d = LDT[t] + src * 4
            g.s("s_add_u32 %s, %s, %d" % (sr(S_T), sr(S_XS + 2), src * 12288 + t * 1024))
            g.vload("buffer_load_dwordx4 %s, %s, %s, %s offen sc1" % (vr(d, 4), vr(L16), sr(SRD_WS, 4), sr(S_T)), "R%d" % t, dst=rng(d, 4), addr=[L16])

    def r_sum(t):
        for src in range(8):
            d = LDT[t] + src * 4
            for h in range(2):
                r = RD + (t * 2 + h) * 4
                g.mfma(r, AC + 2 - 2 * h, d, None if src == 0 else r)

    def r_out(t):
        o = OQ + t * 4
        for h in range(2):
            r = RD + (t * 2 + h) * 4
            for k in range(2):
                g.valu("v_cvt_pk_bf16_f32 %s, %s, %s" % (vr(o + h * 2 + k), vr(r + 2 * k), vr(r + 2 * k + 1)), dst=[o + h * 2 + k], src=[r + 2 * k, r + 2 * k + 1])
        g.s("s_add_u32 %s, %s, %d" % (sr(S_T + 3), sr(S_OB), t * 65536))
        g.vstore("buffer_store_dwordx4 %s, %s, %s, %s offen%s" % (vr(o, 4), vr(VO), sr(SRD_OUT, 4), sr(S_T + 3), os.environ.get("OUTF", "")), "OUT", data=rng(o, 4), addr=[VO])

    def r_check(t):
        m = [TQ, TQ + 1]
        b = LDT[t]
        for c in range(2):
            g.valu("v_max3_u32 %s, %s, %s, %s" % (vr(m[c]), vr(b + 16 * c), vr(b + 16 * c + 1), vr(b + 16 * c + 2)), dst=[m[c]], src=rng(b + 16 * c, 3))
        for k in range(3, 15, 2):
            for c in range(2):
                x = b + 16 * c + k
                g.valu("v_max3_u32 %s, %s, %s, %s" % (vr(m[c]), vr(m[c]), vr(x), vr(x + 1)), dst=[m[c]], src=[m[c], x, x + 1])
        g.valu("v_max3_u32 %s, %s, %s, %s" % (vr(m[0]), vr(m[0]), vr(b + 15), vr(b + 31)), dst=[m[0]], src=[m[0], b + 15, b + 31])
        g.valu("v_max_u32 %s, %s, %s" % (vr(m[0]), vr(m[0]), vr(m[1])), dst=[m[0]], src=m)
        g.valu("v_cmp_eq_u32 vcc, -1, %s" % vr(m[0]), src=[m[0]])
        g.nop(1)
        g.s("s_cbranch_vccnz retry%d" % t)

    def flags_ok(pl):
        g.valu("v_cmp_eq_u32 vcc, %s, %s" % (vr(pl), vr(F0)), src=[pl, F0])
        g.valu("v_cmp_eq_u32 %s, %s, %s" % (sr(S_M, 2), vr(pl + 1), vr(F0 + 1)), src=[pl + 1, F0 + 1])
        g.s("s_mov_b64 exec, -1")
        g.s("s_and_b32 %s, %s, vcc_lo" % (sr(S_M), sr(S_M)))
        g.s("s_and_b32 %s, %s, 0xff" % (sr(S_M + 1), sr(S_M)))
        g.s("s_cmp_eq_u32 %s, 0xff" % sr(S_M + 1))

    NOFAST = E("NOFAST", 1)
    if not NOFAST:
        r_loads(0)
        r_loads(1)
        if T2POS == 0:
            r_loads(2)
        g.wait_vm("PP")
        flags_ok(PP)
        if FORCE_AB & 512:
            g.s("s_bitcmp1_b32 s2, 4")
        g.s("s_cbranch_scc0 slow")
        if FORCE_AB & 255:
            g.s("s_and_b32 %s, s2, %d" % (sr(S_T), FORCE_AB & 255))
            g.s("s_cmp_eq_u32 %s, 0" % sr(S_T))
            g.s("s_cbranch_scc1 slow")
        if FORCE_AB & 256:
            g.s("s_branch slow")
        g.wait_vm("R0")
        flag_store(S_FS, "FS")
        stamp(g)
        for t in range(3):
            g.wait_vm("R%d" % t)
            g.label("chk%d" % t)
            g.nop(1)
            r_check(t)
            if t == 0 and T2POS == 1:
                r_loads(2)
            r_sum(t)
            if t == 0 and T2POS == 2:
                r_loads(2)
            if t == 2:
                stamp(g)
            r_out(t)
        stamp(g)
        stamp_flush(g)
        g.s("s_branch after")
        for t in range(3):
            g.label("retry%d" % t)
            g.vmq = []
            r_loads(t)
            g.s("s_add_u32 %s, %s, 1" % (sr(S_CNT), sr(S_CNT)))
            g.s("s_cmp_lt_u32 %s, %d" % (sr(S_CNT), RETRY))
            g.waitcnt(vm=0)
            g.vmq = []
            g.s("s_cbranch_scc1 chk%d" % t)
            if t < 2:
                g.s("s_branch slow")
    S_DONE, S_ACC, S_NEW = S_CNT, S_T + 6, S_T + 7

    def poll_load(soff):
        if E("PX", 1):
            g.s("s_mov_b64 exec, 0xffff")
        g.vload("buffer_load_dwordx2 %s, %s, %s, %s offen sc1" % (vr(PL, 2), vr(VF), sr(SRD_WS, 4), sr(soff)), "PL", dst=[PL, PL + 1], addr=[VF])

    def poll(soff):
        poll_load(soff)
        g.waitcnt(vm=0)
        g.vmq = []
        flags_ok(PL)

    def elapsed():
        g.s("s_memrealtime %s" % sr(S_T + 4, 2))
        g.waitcnt(lg=0)
        g.s("s_sub_u32 %s, %s, %s" % (sr(S_T + 4), sr(S_T + 4), sr(S_NONCE)))

    def job_init():
        for k in range(24):
            vop(g, "v_mov_b32 %s, 0" % vr(RD + k), RD + k)
        g.s("s_mov_b32 %s, 0" % sr(S_DONE))
        g.s("s_mov_b32 %s, 0" % sr(S_ACC))
    g.label("slow")
    if STAMP == 5:
        g.s("s_mov_b32 m0, 12")
        g.s("s_mov_b64 exec, 0xfffff000")
        vop(g, "v_mov_b32 %s, 0" % vr(SV), SV)
        vop(g, "v_mov_b32 %s, 0" % vr(SV + 1), SV + 1)
        g.s("s_mov_b64 exec, -1")
    SF = 96
    S_SF = S_SM

    def force():
        if FORCE_AB & 255:
            g.s("s_and_b32 %s, s2, %d" % (sr(S_T), FORCE_AB & 255))
            g.s("s_cmp_eq_u32 %s, 0" % sr(S_T))
            g.s("s_cbranch_scc1 giveup")
        if FORCE_AB & 256:
            g.s("s_branch giveup")

    def publish():
        g.waitcnt(vm=0)
        g.vmq = []
        flag_store(S_FS, "FS")

    def self_lds(par):
        for u in range(par, 6, 2):
            run(tail(u, True))
        g.dswrite("ds_write_b32 %s, %s offset:8" % (vr(PP + 1), vr(F0)), "SW", data=[F0], addr=[PP + 1])
    PARTS = [(src, (0, 1)) for src in range(8)] + [(src, (2,)) for src in range(8)] if ST2 else [(src, (0, 1, 2)) for src in range(8)]

    def masks2():
        if ST2:
            vop(g, "v_or_b32 %s, 1, %s" % (vr(TQ), vr(PL + 1)), TQ, [PL + 1])
            g.valu("v_cmp_eq_u32 s[10:11], %s, %s" % (vr(TQ), vr(FO)), src=[TQ, FO])
        flags_ok(PL)
        if ST2:
            g.s("s_and_b32 s10, s10, vcc_lo")
            g.s("s_and_b32 s10, s10, 0xff")
            g.s("s_lshl_b32 %s, %s, 8" % (sr(S_M + 1), sr(S_M + 1)))
            g.s("s_or_b32 %s, %s, s10" % (sr(S_M + 1), sr(S_M + 1)))

    def self_acc():
        g.label("selfw")
        g.dsread("ds_read_b32 %s, %s offset:8" % (vr(TQ), vr(PP + 1)), "SR", dst=[TQ], addr=[PP + 1])
        for t in range(3):
            g.dsread("ds_read_b128 %s, %s offset:%d" % (vr(SF + t * 4, 4), vr(PP), L_SELF + t * 1024), "SR", dst=rng(SF + t * 4, 4), addr=[PP])
        g.waitcnt(lg=0)
        g.lgq = []
        g.valu("v_readfirstlane_b32 %s, %s" % (sr(S_T), vr(TQ)), src=[TQ], readlane=True, sdst=[S_T])
        g.s("s_cmp_eq_u32 %s, %s" % (sr(S_T), sr(S_NONCE)))
        g.s("s_cbranch_scc0 selfw")
        for t in range(3):
            for h in range(2):
                r = RD + (t * 2 + h) * 4
                g.mfma(r, AC + 2 - 2 * h, SF + t * 4, r)
        force()
    if EP:
        assert SELF and ST2 == 1
        job_init()
        g.s("s_lshl_b32 %s, 0x101, %s" % (sr(S_DONE), sr(S_HG)))
        g.s("s_cmp_eq_u32 %s, 0" % sr(SRD_K + 2))
        g.s("s_cbranch_scc1 self1")
        g.s("s_cmp_eq_u32 %s, 0" % sr(SRD_X + 2))
        g.s("s_cbranch_scc1 self0")
        g.label("pub")
        g.wait_vm("P0")
        masks2()
        g.s("s_andn2_b32 %s, %s, %s" % (sr(S_ACC), sr(S_M + 1), sr(S_DONE)))
        for bit, (src, ts) in enumerate(PARTS):
            g.s("s_add_u32 %s, %s, %d" % (sr(S_T), sr(S_XS + 2), src * 12288))
            g.s("s_bitcmp1_b32 %s, %d" % (sr(S_ACC), bit))
            g.s("s_cselect_b32 %s, %s, 0" % (sr(SRD_V + 2), sr(SRD_WS + 2)))
            for t in ts:
                d = LDT[t] + src * 4
                g.vload("buffer_load_dwordx4 %s, %s, %s, %s offen offset:%d%s" % (vr(d, 4), vr(LR), sr(SRD_V, 4), sr(S_T), t * 1024, DFL), "R", dst=rng(d, 4), addr=[LR])
        g.s("s_or_b32 %s, %s, %s" % (sr(S_DONE), sr(S_DONE), sr(S_ACC)))
        g.wait_vm("PS2")
        flag_store(S_FS, "FS")
        stamp(g)
        poll_load(S_XS + 1)
        g.s("s_mov_b64 exec, -1")
        self_acc()
        g.waitcnt(vm=0)
        g.vmq = []
        g.s("s_branch process")
        for par in range(2):
            g.label("self%d" % par)
            self_lds(par)
            g.s("s_branch pub")
    else:
        job_init()
        if SELF:
            g.s("s_lshl_b32 %s, %s, %s" % (sr(S_DONE), "0x101" if ST2 else "1", sr(S_HG)))
            g.s("s_mov_b32 %s, 1" % sr(S_SF))
            g.s("s_cmp_eq_u32 %s, 0" % sr(SRD_K + 2))
            g.s("s_cbranch_scc1 self1")
            g.s("s_cmp_eq_u32 %s, 0" % sr(SRD_X + 2))
            g.s("s_cbranch_scc1 self0")
            g.label("pub")
        publish()
        if SELF:
            g.label("pub2")
        if NOFAST:
            stamp(g)
        if not SELF:
            force()
        g.s("s_branch poll")
        if SELF:
            g.label("self0")
            self_lds(0)
            g.s("s_branch pub")
            g.label("self1")
            publish()
            self_lds(1)
            g.s("s_branch pub2")
    g.label("job")
    job_setup(g, lambda o: o())
    job_init()
    g.label("poll")
    poll_load(S_XS + 1)
    g.waitcnt(vm=0)
    g.vmq = []
    g.label("process")
    masks2()
    if STAMP == 5:
        g.s("s_memrealtime %s" % sr(S_ST, 2))
        g.waitcnt(lg=0)
        g.valu("v_writelane_b32 %s, %s, m0" % (vr(SV), sr(S_ST)), dst=[SV])
        g.valu("v_writelane_b32 %s, %s, m0" % (vr(SV + 1), sr(S_M + 1)), dst=[SV + 1])
        g.s("s_add_u32 m0, m0, 1")
        g.s("s_min_u32 m0, m0, 31")
    if E("WA", 3):
        g.s("s_or_b32 %s, %s, %s" % (sr(S_T), sr(S_M + 1), sr(S_DONE)))
        g.s("s_bcnt1_i32_b32 %s, %s" % (sr(S_T), sr(S_T)))
        g.s("s_cmp_gt_u32 %s, %d" % (sr(S_T), 8 - E("WA", 3)))
        if E("LIM", 0):
            g.s("s_cselect_b32 %s, -1, 0" % sr(S_T + 1))
            g.s("s_andn2_b32 %s, %s, %s" % (sr(S_NEW), sr(S_M + 1), sr(S_DONE)))
            g.s("s_sub_u32 %s, 0, %s" % (sr(S_T), sr(S_NEW)))
            g.s("s_or_b32 %s, %s, %s" % (sr(S_T), sr(S_T), sr(S_T + 1)))
            g.s("s_and_b32 %s, %s, %s" % (sr(S_M + 1), sr(S_NEW), sr(S_T)))
        else:
            g.s("s_cselect_b32 %s, %s, 0" % (sr(S_M + 1), sr(S_M + 1)))
    g.s("s_andn2_b32 %s, %s, %s" % (sr(S_NEW), sr(S_M + 1), sr(S_DONE)))
    g.s("s_cbranch_scc0 noload")
    for bit, (src, ts) in enumerate(PARTS):
        g.s("s_bitcmp1_b32 %s, %d" % (sr(S_NEW), bit))
        g.s("s_cbranch_scc0 nold%d" % bit)
        g.s("s_add_u32 %s, %s, %d" % (sr(S_T), sr(S_XS + 2), src * 12288))
        for t in ts:
            if E("EXP2", 0) and (src & 1):
                continue
            d = LDT[t] + src * 4
            g.vload("buffer_load_dwordx4 %s, %s, %s, %s offen offset:%d%s" % (vr(d, 4), vr(LR), sr(SRD_WS, 4), sr(S_T), t * 1024, DFL), "R", dst=rng(d, 4), addr=[LR])
        g.label("nold%d" % bit)
    g.vmq = []
    g.label("noload")
    if SELF and not EP:
        g.s("s_cmp_eq_u32 %s, 0" % sr(S_SF))
        g.s("s_cbranch_scc1 noself")
        g.s("s_mov_b32 %s, 0" % sr(S_SF))
        self_acc()
        g.label("noself")
    g.s("s_cmp_eq_u32 %s, 0" % sr(S_ACC))
    g.s("s_cbranch_scc1 noacc")
    for bit, (src, ts) in enumerate(PARTS):
        g.s("s_bitcmp1_b32 %s, %d" % (sr(S_ACC), bit))
        g.s("s_cbranch_scc0 noac%d" % bit)
        for t in ts:
            for h in range(2):
                r = RD + (t * 2 + h) * 4
                g.mfma(r, AC + 2 - 2 * h, LDT[t] + src * 4, r)
        g.label("noac%d" % bit)
    g.label("noacc")
    g.s("s_or_b32 %s, %s, %s" % (sr(S_DONE), sr(S_DONE), sr(S_NEW)))
    g.s("s_mov_b32 %s, %s" % (sr(S_ACC), sr(S_NEW)))
    g.s("s_cmp_lg_u32 %s, %s" % (sr(S_DONE), "0xffff" if ST2 else "0xff"))
    g.s("s_cbranch_scc1 more")
    g.s("s_cmp_eq_u32 %s, 0" % sr(S_ACC))
    g.s("s_cbranch_scc1 finish")
    if NOFAST:
        stamp(g)
    g.waitcnt(vm=0)
    g.s("s_mov_b32 %s, 0" % sr(S_NEW))
    g.s("s_branch noload")
    g.label("more")
    g.s("s_cmp_lg_u32 %s, 0" % sr(S_NEW))
    g.s("s_cbranch_scc1 poll")
    g.s("s_sleep %d" % SLEEP)
    elapsed()
    g.s("s_cmp_lt_i32 %s, %d" % (sr(S_T + 4), X_AB))
    g.s("s_cbranch_scc1 poll")
    g.label("giveup")
    if SELF:
        g.s("s_cmp_lg_u32 %s, 0" % sr(S_PHASE))
        g.s("s_cbranch_scc1 giveup2")
        g.s("s_mul_i32 %s, %s, 12288" % (sr(S_T), sr(S_HG)))
        g.s("s_add_u32 %s, %s, %s" % (sr(S_T), sr(S_T), sr(S_XS + 2)))
        for t in range(3):
            g.vstore("buffer_store_dwordx4 %s, %s, %s, %s offen offset:%d sc1" % (vr(SF + t * 4, 4), vr(LR), sr(SRD_WS, 4), sr(S_T), t * 1024), "PS", data=rng(SF + t * 4, 4), addr=[LR])
        g.waitcnt(vm=0)
        g.vmq = []
        g.label("giveup2")
    g.s("s_and_b32 %s, %s, 1" % (sr(S_T), sr(S_RO)))
    g.s("s_lshl_b32 %s, %s, 2" % (sr(S_T), sr(S_T)))
    g.s("s_add_u32 %s, %s, %s" % (sr(S_T), sr(S_T), sr(S_RR)))
    g.s("s_lshl_b32 %s, %s, 3" % (sr(S_T), sr(S_T)))
    g.s("s_add_u32 %s, %s, 64" % (sr(S_T), sr(S_T)))
    g.s("s_add_u32 %s, %s, %s" % (sr(S_T), sr(S_T), sr(S_XS + 1)))
    flag_store(S_T, "FS")
    g.waitcnt(vm=0)
    g.vmq = []
    poll(S_XS + 1)
    g.s("s_cbranch_scc1 process")
    g.s("s_branch after")
    g.label("finish")
    g.nop(10)
    for t in range(3):
        r_out(t)
    if NOFAST:
        stamp(g)
        stamp_flush(g)
    g.label("after")
    g.nop(8)
    g.s("s_cmp_lg_u32 %s, 0" % sr(S_PHASE))
    g.s("s_cbranch_scc1 next")
    g.s("s_mov_b32 %s, 1" % sr(S_PHASE))
    g.waitcnt(vm=3 + (1 if STAMP else 0))
    elapsed()
    g.s("s_cmp_lt_i32 %s, %d" % (sr(S_T + 4), X_CK))
    if not FORCE_AB:
        g.s("s_cbranch_scc1 k_end")
    poll(S_XS)
    g.s("s_lshr_b32 %s, %s, 8" % (sr(S_PEND), sr(S_M)))
    g.s("s_and_b32 %s, %s, 0xff" % (sr(S_PEND), sr(S_PEND)))
    g.s("s_cmp_eq_u32 %s, 0xff" % sr(S_M + 1))
    g.s("s_cselect_b32 %s, %s, 0" % (sr(S_PEND), sr(S_PEND)))
    g.label("next")
    g.s("s_cmp_eq_u32 %s, 0" % sr(S_PEND))
    g.s("s_cbranch_scc1 k_end")
    g.s("s_ff1_i32_b32 %s, %s" % (sr(S_T), sr(S_PEND)))
    g.s("s_bitset0_b32 %s, %s" % (sr(S_PEND), sr(S_T)))
    g.s("s_and_b32 %s, %s, 3" % (sr(S_RR), sr(S_T)))
    g.s("s_lshr_b32 %s, %s, 2" % (sr(S_T), sr(S_T)))
    g.s("s_lshl_b32 %s, s3, 1" % sr(S_RO))
    g.s("s_add_u32 %s, %s, %s" % (sr(S_RO), sr(S_RO), sr(S_T)))
    g.waitcnt(vm=0)
    g.s("s_branch job")
    g.label("k_end")


def body():
    _stamp_n[0] = 0
    g0 = prologue()
    n = len(CLS)
    if n > 1:
        if CLF == "b":
            g0.s("s_and_b32 %s, %s, %d" % (sr(S_TYPE), sr(S_B), n - 1))
        else:
            g0.s("s_add_u32 %s, %s, %s" % (sr(S_TYPE), sr(S_B), sr(S_HG)))
            g0.s("s_and_b32 %s, %s, %d" % (sr(S_TYPE), sr(S_TYPE), n - 1))
        for c in range(1, n):
            g0.s("s_cmp_eq_u32 %s, %d" % (sr(S_TYPE), c))
            g0.s("s_cbranch_scc1 cls%d" % c)
    n0 = _stamp_n[0]
    txt = []
    for c in range(n):
        _stamp_n[0] = n0
        g = Gen()
        g.label("cls%d" % c)
        part1(g, CLS[c])
        if c:
            g.s("s_branch join")
        txt.append(g.text())
    g = Gen()
    g.vmq = ["V0", "V1", "V2", "TCH", "VD"]
    g.label("join")
    part2(g)
    g.raw("s_endpgm")
    return g0.text() + txt[0] + g.text() + "".join(txt[1:]) + "code_end:\n"


def main():
    out = "; fused attention: q-proj + attention + o-proj partial per workgroup, cross-workgroup bf16 reduction\n"
    out += "; @launch kernel=attn_kernel grid=(256,1,1) block=(256,1,1) lds=%d\n" % LDS_BYTES
    out += '.amdgcn_target "amdgcn-amd-amdhsa--gfx950"\n.text\n'
    out += ".globl attn_kernel\n.p2align 8\n.type attn_kernel,@function\nattn_kernel:\n"
    out += body()
    out += '.section .rodata,"a"\n.p2align 6\n.amdhsa_kernel attn_kernel\n'
    out += "  .amdhsa_next_free_vgpr 512\n  .amdhsa_next_free_sgpr 102\n  .amdhsa_accum_offset 256\n"
    out += "  .amdhsa_group_segment_fixed_size 0\n  .amdhsa_kernarg_size 104\n  .amdhsa_user_sgpr_count 2\n"
    out += "  .amdhsa_user_sgpr_kernarg_segment_ptr 1\n  .amdhsa_system_sgpr_workgroup_id_x 1\n.end_amdhsa_kernel\n"
    path = sys.argv[1] if len(sys.argv) > 1 else "cdna_kernels/%s.s" % NAME
    open(path, "w").write(out)
    print("wrote", path, len(out), "bytes; stamps", _stamp_n[0], "late", LATE[:12])
    if E("INFO", 0):
        for i in INFO:
            print(i)


main()
```
